```python
import torch

def _softmax(x, axis=-1):
    return torch.softmax(x, dim=axis)

def _gelu(x):
    return torch.nn.functional.gelu(x, approximate='tanh')

def _silu(x):
    return torch.nn.functional.silu(x)

def _sigmoid(x):
    return torch.sigmoid(x)

def _layernorm(x, axis=-1, eps=1e-05):
    m = x.mean(dim=axis, keepdim=True)
    v = x.var(dim=axis, keepdim=True, unbiased=False)
    return (x - m) / torch.sqrt(v + eps)

def _scatter_add(tgt, idx, src, axis=0):
    return tgt.clone().index_add_(axis, idx, src)

def _segment_sum(src, seg, n):
    out = torch.zeros((n,) + src.shape[1:], dtype=src.dtype)
    return out.index_add_(0, seg, src)

def _pad(x, pw):
    flat = tuple((v for pair in reversed(pw) for v in pair))
    return torch.nn.functional.pad(x, flat)
kernel_name = 'recurrent_scan__memory_aug_recurrent_mem_tr__geglu_ffn__prompt'

def setup_inputs():

    _w = lambda a: (lambda t: t.to(torch.bfloat16) if t.is_floating_point() else t)(torch.as_tensor(a))

    def _A_setup():
        B, S, Dm = (1, 2048, 512)
        H, Dh = (32, 128)
        M, seg = (8, 32)
        seg = min(seg, S)
        S = S // seg * seg
        return {'x': _w((lambda *s: torch.randn(*s, dtype=torch.bfloat16) * 0.05)(B, S, Dm)), 'mem0': _w((lambda *s: torch.randn(*s, dtype=torch.bfloat16) * 0.2)(B, M, Dm)), 'Wq': _w((lambda *s: torch.randn(*s, dtype=torch.bfloat16) * 1.6)(Dm, H, Dh) * Dm ** (-0.5)), 'Wk': _w((lambda *s: torch.randn(*s, dtype=torch.bfloat16) * 1.6)(Dm, H, Dh) * Dm ** (-0.5)), 'Wv': _w((lambda *s: torch.randn(*s, dtype=torch.bfloat16) * 0.2)(Dm, H, Dh) * Dm ** (-0.5)), 'Wo': _w((lambda *s: torch.randn(*s, dtype=torch.bfloat16) * 0.2)(H, Dh, Dm) * (H * Dh) ** (-0.5)), 'seg_len': seg}
    _A_in = _A_setup()

    def _B_setup():
        B, S, D, F = (1, 2048, 512, 1376)
        return {'x': _w((lambda *s: torch.randn(*s, dtype=torch.bfloat16) * 0.05)(B, S, D)), 'w_gate': _w((lambda *s: torch.randn(*s, dtype=torch.bfloat16) * 0.1)(D, F)), 'w_up': _w((lambda *s: torch.randn(*s, dtype=torch.bfloat16) * 0.1)(D, F)), 'w_down': _w((lambda *s: torch.randn(*s, dtype=torch.bfloat16) * 0.1)(F, D))}
    _B_in = _B_setup()
    return {'A_x': _A_in['x'], 'A_mem0': _A_in['mem0'], 'A_Wq': _A_in['Wq'], 'A_Wk': _A_in['Wk'], 'A_Wv': _A_in['Wv'], 'A_Wo': _A_in['Wo'], 'A_seg_len': _A_in['seg_len'], 'B_x': _B_in['x'], 'B_w_gate': _B_in['w_gate'], 'B_w_up': _B_in['w_up'], 'B_w_down': _B_in['w_down']}

def reference(A_x, A_mem0, A_Wq, A_Wk, A_Wv, A_Wo, A_seg_len, B_x, B_w_gate, B_w_up, B_w_down):

    def _A_ref(x, mem0, Wq, Wk, Wv, Wo, seg_len):
        B, S, Dm = x.shape
        H, Dh = (Wq.shape[1], Wq.shape[2])
        M = mem0.shape[1]
        scale = Dh ** (-0.5)
        n_seg = S // seg_len
        L = M + seg_len
        idx = torch.arange(L)
        mask = (idx[:, None] < M) | (idx[:, None] >= idx[None, :])
        mem = mem0
        outs = []
        for s in range(n_seg):
            xs = x[:, s * seg_len:(s + 1) * seg_len, :].clone()
            h = torch.concatenate([mem, xs], axis=1)
            q = torch.einsum('btd,dhe->bhte', h, Wq)
            k = torch.einsum('btd,dhe->bhte', h, Wk)
            v = torch.einsum('btd,dhe->bhte', h, Wv)
            scores = torch.einsum('bhqe,bhke->bhqk', q, k) * scale
            scores = torch.where(mask[None, None], scores, -1000000000.0)
            p = _softmax(scores, axis=-1)
            o = torch.einsum('bhqk,bhke->bhqe', p, v)
            o = torch.einsum('bhte,hed->btd', o, Wo)
            mem = o[:, :M, :].clone()
            outs.append(o[:, M:, :])
        return torch.concatenate(outs, axis=1)

    def _B_ref(x, w_gate, w_up, w_down):
        return _gelu(x @ w_gate) * (x @ w_up) @ w_down
    x = A_x
    xn = _layernorm(x, axis=-1)
    s = _A_ref(xn, A_mem0, A_Wq, A_Wk, A_Wv, A_Wo, A_seg_len)
    g = _silu(_B_ref(xn, B_w_gate, B_w_up, B_w_down))
    return x + s * g
```

```python
import hazard


class Asm:
    def __init__(self):
        self.lines = []

    def __call__(self, text):
        for ln in text.strip("\n").split("\n"):
            ln = ln.strip()
            if ln:
                self.lines.append(ln)

    def mark(self):
        return len(self.lines)

    def text(self):
        out = []
        for ln in self.lines:
            out.append(ln if ln.endswith(":") or ln.startswith((".", ";")) else "    " + ln)
        return "\n".join(out) + "\n"


def v(a, n=1):
    return f"v{a}" if n == 1 else f"v[{a}:{a+n-1}]"


def a(x, n=1):
    return f"a{x}" if n == 1 else f"a[{x}:{x+n-1}]"


def s(x, n=1):
    return f"s{x}" if n == 1 else f"s[{x}:{x+n-1}]"


def weave(main, early, late, ne=2, nl=1):
    out = []
    early, late = list(early), list(late)
    for m in main:
        out.append(m)
        for _ in range(ne):
            if early:
                x = early.pop(0)
                if x: out.append(x)
        for _ in range(nl):
            if late:
                x = late.pop(0)
                if x: out.append(x)
    out += [x for x in early if x] + [x for x in late if x]
    return out


def resolve_waits(body, loop=True):
    def cls(ln):
        op = ln.split()[0]
        if op.startswith(("buffer_", "global_")): return "vm"
        if op.startswith("ds_"): return "lg"
        return None
    out = []
    n = len(body)
    for i, ln in enumerate(body):
        if not ln.startswith("@wait"):
            out.append(ln.split(";@")[0].rstrip())
            continue
        parts = []
        for tok in ln.split()[1:]:
            c, tag = tok.split("=")
            cnt = 0
            found = tag == "0"
            for k in range(1, n if loop else i + 1):
                if found: break
                p = body[(i - k) % n]
                if p.startswith("@wait") or p.endswith(":"): continue
                if cls(p) == c:
                    if p.rstrip().endswith(";@" + tag):
                        found = True
                    else:
                        cnt += 1
            assert found, ln
            cnt = min(cnt, 63 if c == "vm" else 15)
            parts.append(f"vmcnt({cnt})" if c == "vm" else f"lgkmcnt({cnt})")
        out.append("s_waitcnt " + " ".join(parts))
    return out


def tagged(lst, tag):
    return [x + " ;@" + tag if x.split()[0].startswith(("buffer_", "global_", "ds_")) else x for x in lst]


def slots(main, fill):
    out = []
    for i, m in enumerate(main):
        out.append(m)
        out += fill.get(i, [])
    return out


class Gaps:
    def __init__(self):
        self.t = {}

    def put(self, kind, i, *items):
        self.t.setdefault(i, {"s": [], "d": [], "v": [], "x": []})[kind].extend(items)

    def emit(self, main):
        out = []
        for i, m in enumerate(main):
            out.append(m)
            e = self.t.get(i)
            if e: out += e["s"] + e["d"] + e["v"] + e["x"]
        return out
```

```python
from asmlib import *
from layout import *

S_WS = 4
S_W = 8
P_X, P_MEM0, P_WQ, P_WK, P_WV, P_WO, P_SEG, P_BX, P_WG, P_WU, P_WD, P_OUT, P_DBG, P_WSP = range(16, 44, 2)
S_XCC, S_TK, S_WAVE = 44, 45, 46
S_T0, S_T1, S_T2, S_T3 = 47, 48, 49, 50
S_STEP, S_H1ST, S_H1ST2, S_H1LD, S_H1LD2, S_TAG, S_H2LD, S_H2LD2, S_H2ST, S_KV, S_PUB, S_SPIN, S_SC, S_FL, S_H1B = range(51, 66)
S_HF = 66
S_RDY = 68
S_ONE = 70
S_H2RS, S_F12 = 72, 73
S_KV2, S_VV = 100, 101
IDX, LW, LM, H1ST, H2ST, QW, QR, KR, OW, FLG, TCH = range(1, 12)
VN, PA, VX, ACC, M, POOL, WRES = 12, 20, 24, 40, 64, 96, 144
FV, GM, FAD, FST = VX + 3, VX + 7, VX + 11, VX + 15
A = [ACC + 4 * i for i in range(6)]
LDS_WAVE = 36864
LDS_MISC = 147456
L_KX = LDS_MISC
L_QK = LDS_MISC + 8192
L_O = L_QK + 4608
L_SEL = L_O + 2048
assert L_SEL + 1024 <= 163840
SPIN_MAX = 1 << 13

G_R = [[(m, 0, t), (m, 1, t)] for m, t in (("q", 0), ("q", 3), ("q", 7), ("k", 5), ("v", 3), ("v", 7))]
G_M = G_R[1] + G_R[2] + G_R[3]
G_QK = G_R[4] + G_R[5] + G_R[0]
G_O = [("o", 6, 0), ("o", 6, 1), ("o", 7, 0), ("o", 7, 1), ("o", 5, 0), ("o", 5, 1)]
LDS_IDX = {k: i for i, k in enumerate(G_M + G_O + G_QK)}
LOC = {}
for i, k in enumerate(G_O):
    LOC[k] = ("v", POOL + 8 * i)
for k in G_M + G_QK:
    LOC[k] = ("v", POOL + 32 + 8 * k[1])
_n = 0
for k in [(m, x, t) for m in "qkv" for t in range(8) for x in range(2)] + [("o", x, t) for x in range(8) for t in range(2)]:
    if k in LOC: continue
    LOC[k] = ("a", 8 * _n) if _n < 32 else ("v", WRES + 8 * (_n - 32))
    _n += 1
assert _n == 46


def rng(f, b, n):
    return a(b, n) if f == "a" else v(b, n)


def wop(k):
    return rng(LOC[k][0], LOC[k][1], 8)


def smf(d, aop, k, abid=0):
    b = wop(k) if isinstance(k, tuple) else k
    return f"v_smfmac_f32_16x16x64_bf16 {v(d,4)}, {v(aop,4)}, {b}, {v(IDX)}" + (" abid:1" if abid else "")


def mf(d, x, y, c):
    return f"v_mfma_f32_16x16x32_bf16 {v(d,4)}, {v(x,4)}, {v(y,4)}, " + ("0" if c is None else v(c, 4))


def stage_reads(grp):
    return [f"ds_read_b128 {v(LOC[k][1]+4*hh,4)}, {v(LW)} offset:{LDS_IDX[k]*2048+hh*1024}" for k in grp for hh in range(2)]


def zero(base, n):
    return [f"v_mov_b64 {v(base+2*i,2)}, 0" for i in range(n // 2)]


def set_srd(g, ptr, nbytes):
    g(f"s_mov_b32 s{S_W}, s{ptr}\ns_mov_b32 s{S_W+1}, s{ptr+1}\ns_mov_b32 s{S_W+2}, {nbytes}\ns_mov_b32 s{S_W+3}, 0x20000")


def load_weights(g):
    RA, RO, DQ, DO = 10, 12, 20, 21
    T0, T1, T2, T3 = 56, 57, 58, 59
    g(f"""
    v_and_b32 v{T0}, 63, v0
    v_lshrrev_b32 v{T1}, 4, v{T0}
    v_and_b32 v{T2}, 15, v{T0}
    s_and_b32 s{S_T0}, s{S_WAVE}, 1
    s_lshr_b32 s{S_T1}, s{S_WAVE}, 1
    s_lshl_b32 s{S_T1}, s{S_T1}, 7
    s_add_u32 s{S_T1}, s{S_T1}, s{S_T0}
    s_lshl_b32 s{S_T1}, s{S_T1}, 13
    s_lshl_b32 s{S_T2}, s{S_TK}, 8
    s_add_u32 s{S_T1}, s{S_T1}, s{S_T2}
    s_lshl_b32 s{S_T0}, s{S_T0}, 3
    v_lshlrev_b32 v{T3}, 1, v{T1}
    v_xor_b32 v{T3}, v{T3}, v{T2}
    v_xor_b32 v{DQ}, s{S_T0}, v{T3}
    v_lshlrev_b32 v{DQ}, 4, v{DQ}
    v_lshlrev_b32 v{DO}, 4, v{T3}
    v_lshrrev_b32 v{T2}, 1, v{T1}
    v_and_b32 v{T3}, 1, v{T1}
    v_lshl_add_u32 v{DQ}, v{T2}, 19, v{DQ}
    v_lshl_add_u32 v{DQ}, v{T3}, 17, v{DQ}
    v_add_u32 v{DQ}, s{S_T1}, v{DQ}
    v_lshl_add_u32 v{DO}, v{T2}, 12, v{DO}
    v_lshl_add_u32 v{DO}, v{T3}, 14, v{DO}
    s_lshl_b32 s{S_T1}, s{S_TK}, 17
    s_lshl_b32 s{S_T2}, s{S_WAVE}, 8
    s_add_u32 s{S_T1}, s{S_T1}, s{S_T2}
    v_add_u32 v{DO}, s{S_T1}, v{DO}
    v_xor_b32 v{DO+1}, 0x80, v{DO}
    """)
    g(f"""
    v_bfe_u32 v{T2}, v{T0}, 2, 2
    v_and_b32 v{T3}, 1, v{T1}
    v_lshl_add_u32 v{T3}, v{T3}, 2, v{T2}
    v_lshlrev_b32 v{T3}, 5, v{T3}
    v_lshl_add_u32 v{T3}, v{T2}, 8, v{T3}
    v_and_b32 v{T2}, 3, v{T0}
    v_lshl_add_u32 v{T3}, v{T2}, 3, v{T3}
    s_lshl_b32 s{S_T0}, s{S_WAVE}, 6
    v_xor_b32 v{RA}, s{S_T0}, v{T3}
    s_mov_b32 s{S_T0}, {LDS_WAVE}
    v_mul_lo_u32 v{T2}, s{S_T0}, v{T1}
    v_add_u32 v{RA}, v{RA}, v{T2}
    v_xor_b32 v{RA+1}, 32, v{RA}
    s_mul_i32 s{S_T3}, s{S_WAVE}, {LDS_WAVE}
    v_lshl_add_u32 v{RO}, v{T1}, 10, v{T3}
    v_add_u32 v{RO}, s{S_T3}, v{RO}
    """)
    for tau in range(1, 8):
        g(f"v_xor_b32 v{RO+tau}, {32*tau}, v{RO}")
    stages = [(m, t) for m in "qkv" for t in range(8)] + [("o", t) for t in range(8)]
    park = {}
    for i, k in enumerate(G_QK): park[k] = ("v", POOL + 8 * i)
    for i, k in enumerate(G_O): park[k] = ("v", M + 8 * i) if i < 4 else ("v", VX + 8 * (i - 4))
    for k in G_M: park[k] = ("v", ACC + 8 * k[1])

    def issue(i):
        m, t = stages[i]
        if t == 0:
            set_srd(g, {"q": P_WQ, "k": P_WK, "v": P_WV, "o": P_WO}[m], 4 * MB)
        for x in range(4):
            if m == "o":
                row = 64 * (t >> 2) + 32 * ((t >> 1) & 1) + (t & 1) + 8 * (x >> 1) + 2 * (x & 1)
                so, vo = row * 1024, DO + (x & 1)
            else:
                so, vo = (256 * (x >> 1) + 32 * (x & 1) + 2 * t) * 8192, DQ
            g(f"s_add_u32 m0, s{S_T3}, {16384 + (i % 5) * 4096 + x * 1024}")
            g(f"s_mov_b32 s{S_T0}, {so}")
            g(f"buffer_load_dwordx4 v{vo}, s[{S_W}:{S_W+3}], s{S_T0} offen lds")

    for i in range(4):
        issue(i)
    for i, (m, t) in enumerate(stages):
        g(f"s_waitcnt vmcnt({4 * min(3, len(stages) - 1 - i)}) lgkmcnt(0)\ns_barrier")
        if i + 4 < len(stages):
            issue(i + 4)
        base = 16384 + (i % 5) * 4096
        for x in range(8):
            if m == "o":
                k, rho, ad, off = ("o", x, t >> 2), t & 3, RO + x, base
            else:
                k, rho, ad, off = (m, x >> 2, t), x & 3, RA + (x >> 2), base + (x & 3) * 1024
            f, b = park.get(k, LOC[k])
            g(f"ds_read_b64_tr_b16 {rng(f, b + 2*rho, 2)}, v{ad} offset:{off}")
        if (m, 0, t) in G_M:
            g("s_waitcnt lgkmcnt(0)")
            for sg in range(2):
                for hh in range(2):
                    g(f"ds_write_b128 v{LW}, {v(ACC+8*sg+4*hh,4)} offset:{LDS_IDX[(m,sg,t)]*2048+hh*1024}")
    g("s_waitcnt lgkmcnt(0)\ns_barrier")
    for k in G_O + G_QK:
        for hh in range(2):
            g(f"ds_write_b128 v{LW}, {v(park[k][1]+4*hh,4)} offset:{LDS_IDX[k]*2048+hh*1024}")
    g("s_waitcnt lgkmcnt(0)")


def setup_early(g, st):
    T0, T1, T2, T3 = 56, 57, 58, 59
    g(f"""
    v_and_b32 v{T0}, 63, v0
    v_lshlrev_b32 v{LM}, 4, v{T0}
    s_mul_i32 s{S_T0}, s{S_WAVE}, {LDS_WAVE}
    v_add_u32 v{LW}, s{S_T0}, v{LM}
    v_add_u32 v{LM}, {LDS_MISC}, v{LM}
    v_lshrrev_b32 v{T1}, 4, v{T0}
    v_and_b32 v{T2}, 15, v{T0}
    s_lshl_b32 s{S_T0}, s{S_WAVE}, 2
    v_add_u32 v{T3}, s{S_T0}, v{T1}
    v_lshlrev_b32 v{H1ST}, 14, v{T3}
    v_add_u32 v{T3}, s{S_TK}, v{T3}
    v_and_b32 v{T3}, 31, v{T3}
    v_lshl_add_u32 v{H1ST}, v{T3}, 8, v{H1ST}
    v_lshl_add_u32 v{H1ST}, v{T2}, 4, v{H1ST}
    v_lshrrev_b32 v{T3}, 3, v{T2}
    v_lshlrev_b32 v{H2ST}, 12, v{T3}
    v_bfe_u32 v{T3}, v{T2}, 1, 1
    v_lshl_add_u32 v{H2ST}, v{T3}, 11, v{H2ST}
    v_bfe_u32 v{T3}, v{T2}, 2, 1
    v_lshl_add_u32 v{H2ST}, v{T3}, 7, v{H2ST}
    v_and_b32 v{T3}, 1, v{T2}
    v_lshl_add_u32 v{H2ST}, v{T3}, 3, v{H2ST}
    v_and_b32 v{T3}, 1, v{T1}
    v_lshl_add_u32 v{H2ST}, v{T3}, 4, v{H2ST}
    v_lshrrev_b32 v{T3}, 1, v{T1}
    v_lshl_add_u32 v{H2ST}, v{T3}, 30, v{H2ST}
    s_and_b32 s{S_T0}, s{S_TK}, 3
    s_lshl_b32 s{S_T0}, s{S_T0}, 5
    s_lshr_b32 s{S_T1}, s{S_TK}, 2
    s_lshl_b32 s{S_T1}, s{S_T1}, 8
    s_add_u32 s{S_T0}, s{S_T0}, s{S_T1}
    v_add_u32 v{H2ST}, s{S_T0}, v{H2ST}
    """)
    g(f"""
    s_mov_b32 s{S_STEP}, 0
    s_lshl_b32 s{S_T0}, s{S_TK}, 13
    s_add_u32 s{S_H1LD}, s{S_T0}, {WS_H1 - LDS_MISC}
    s_add_u32 s{S_H1LD2}, s{S_H1LD}, 4096
    s_mov_b32 s{S_H1ST}, {WS_H1}
    s_mov_b32 s{S_H1ST2}, {WS_H1 + 8192}
    s_mov_b32 s{S_H2LD}, {WS_H2}
    s_mov_b32 s{S_H2LD2}, {WS_H2 + 4096}
    s_lshl_b32 s{S_T0}, s{S_TK}, 14
    s_add_u32 s{S_KV}, s{S_T0}, {WS_KV - LDS_MISC}
    s_lshl_b32 s{S_T0}, s{S_TK}, 2
    s_add_u32 s{S_T0}, s{S_T0}, s{S_WAVE}
    s_lshl_b32 s{S_T0}, s{S_T0}, 10
    s_add_u32 s{S_PUB}, s{S_T0}, {WS_PUB - LDS_MISC - 128*KB}
    s_lshl_b32 s{S_T0}, s{S_TK}, 8
    s_add_u32 s{S_FL}, s{S_T0}, {WS_FLAGS}
    s_mov_b32 s{S_HF}, 0xcccccccc
    s_mov_b32 s{S_HF+1}, 0xcccccccc
    s_mov_b32 s{S_SC}, 0x3e0293ee
    v_mov_b64 v[60:61], -1
    v_mov_b64 v[62:63], -1
    s_lshl_b32 s{S_T1}, s{S_WAVE}, 11
    s_add_u32 s{S_T1}, s{S_T1}, s{S_H1LD}
    """)
    for x in range(2):
        g(f"buffer_store_dwordx4 v[60:63], v{LM}, s[{S_WS}:{S_WS+3}], s{S_T1} offen offset:{x*1024} {st}")
    g(f"""
    s_mov_b32 s{S_H2RS}, {WS_H2 + 8192}
    s_mov_b32 s{S_F12}, {WS_H2 + 16384}
    s_lshl_b32 s{S_T0}, s{S_TK}, 2
    v_mov_b32 v50, s{S_T0}
    v_mov_b32 v51, 0
    buffer_store_dword v51, v50, s[{S_WS}:{S_WS+3}], s{S_F12} offen {st}
    buffer_store_dword v51, v50, s[{S_WS}:{S_WS+3}], s{S_F12} offen offset:256 {st}
    """)
    set_srd(g, P_MEM0, 8192)
    g(f"""
    s_lshr_b32 s{S_T0}, s{S_TK}, 3
    s_lshl_b32 s{S_T0}, s{S_T0}, 8
    s_and_b32 s{S_T1}, s{S_TK}, 1
    s_lshl_b32 s{S_T1}, s{S_T1}, 7
    s_add_u32 s{S_T0}, s{S_T0}, s{S_T1}
    s_and_b32 s{S_T1}, s{S_TK}, 6
    s_lshl_b32 s{S_T1}, s{S_T1}, 10
    s_add_u32 s{S_T0}, s{S_T0}, s{S_T1}
    v_and_b32 v{T3}, 1, v{T1}
    v_lshlrev_b32 v{T3}, 10, v{T3}
    v_lshl_add_u32 v{T3}, v{T2}, 1, v{T3}
    buffer_load_ushort v52, v{T3}, s[{S_W}:{S_W+3}], s{S_T0} offen
    buffer_load_ushort v53, v{T3}, s[{S_W}:{S_W+3}], s{S_T0} offen offset:32
    buffer_load_ushort v54, v{T3}, s[{S_W}:{S_W+3}], s{S_T0} offen offset:64
    buffer_load_ushort v55, v{T3}, s[{S_W}:{S_W+3}], s{S_T0} offen offset:96
    s_mov_b32 s{S_T0}, {WS_H2}
    s_waitcnt vmcnt(0)
    v_lshl_or_b32 v52, v53, 16, v52
    v_lshl_or_b32 v53, v55, 16, v54
    buffer_store_dwordx2 v[52:53], v{H2ST}, s[{S_WS}:{S_WS+3}], s{S_T0} offen {st}
    """)


def setup_late(g):
    T0, T1, T2, T3 = 56, 57, 58, 59
    g(f"""
    v_and_b32 v{T0}, 63, v0
    v_lshrrev_b32 v{T1}, 4, v{T0}
    v_and_b32 v{T2}, 15, v{T0}
    v_mov_b32 v{IDX}, 0x44444444
    v_mov_b32 v{T3}, 0x4e1eeeee
    v_cndmask_b32 v{IDX}, v{IDX}, v{T3}, s[{S_HF}:{S_HF+1}]
    s_mul_i32 s{S_T0}, s{S_WAVE}, 1152
    s_add_u32 s{S_T0}, s{S_T0}, {L_QK}
    v_lshrrev_b32 v{T3}, 2, v{T2}
    v_mul_u32_u24 v{QW}, 144, v{T3}
    v_lshl_add_u32 v{QW}, v{T1}, 5, v{QW}
    v_and_b32 v{T3}, 3, v{T2}
    v_lshl_add_u32 v{QW}, v{T3}, 2, v{QW}
    v_add_u32 v{QW}, s{S_T0}, v{QW}
    v_mul_u32_u24 v{QR}, 144, v{T1}
    v_add_u32 v{QR}, {L_QK}, v{QR}
    v_and_b32 v{T3}, 1, v{T2}
    v_lshl_add_u32 v{QR}, v{T3}, 4, v{QR}
    v_add_u32 v{KR}, 576, v{QR}
    v_lshrrev_b32 v{T3}, 2, v{T2}
    v_lshl_add_u32 v{QR}, v{T3}, 5, v{QR}
    v_lshrrev_b32 v{T3}, 3, v{T2}
    v_lshl_add_u32 v{KR}, v{T3}, 5, v{KR}
    v_lshrrev_b32 v{T3}, 1, v{T2}
    v_xor_b32 v{T3}, v{T3}, v{T2}
    v_and_b32 v{T3}, 2, v{T3}
    v_lshl_add_u32 v{KR}, v{T3}, 5, v{KR}
    s_lshl_b32 s{S_T0}, s{S_WAVE}, 9
    s_add_u32 s{S_T0}, s{S_T0}, {L_O}
    v_lshrrev_b32 v{T3}, 3, v{T2}
    v_lshlrev_b32 v{OW}, 8, v{T3}
    v_lshl_add_u32 v{OW}, v{T1}, 6, v{OW}
    v_bfe_u32 v{T3}, v{T2}, 2, 1
    v_lshl_add_u32 v{OW}, v{T3}, 5, v{OW}
    v_and_b32 v{T3}, 3, v{T2}
    v_lshl_add_u32 v{OW}, v{T3}, 2, v{OW}
    v_add_u32 v{OW}, s{S_T0}, v{OW}
    """)
    g(f"s_mov_b32 s{S_ONE}, 0x3f803f80\ns_mov_b32 s{S_ONE+1}, 0x3f803f80")
    for x in zero(PA, 4) + zero(VX, 16) + zero(ACC, 16): g(x)
    g(f"""
    v_lshrrev_b32 v{T3}, 3, v{T0}
    v_lshlrev_b32 v{GM}, 8, v{T3}
    v_and_b32 v{T3}, 7, v{T0}
    v_lshl_add_u32 v{GM}, v{T3}, 4, v{GM}
    v_and_b32 v{FAD}, 31, v0
    v_lshlrev_b32 v{FAD}, 2, v{FAD}
    s_lshl_b32 s{S_T0}, s{S_TK}, 2
    v_min_u32 v{FST}, 1, v{T0}
    v_lshlrev_b32 v{FST}, 30, v{FST}
    v_add_u32 v{FST}, s{S_T0}, v{FST}
    """)


def kv_addr(w):
    return [f"s_add_u32 s{S_KV2}, s{S_KV}, 4096", f"s_add_u32 s{S_VV}, s{S_KV}, {8192 + w*2048}"]


def k_load(w, hi):
    return [f"s_mov_b32 m0, {L_KX + hi*4096}",
            f"buffer_load_dwordx4 v{LM}, s[{S_WS}:{S_WS+3}], s{S_KV2 if hi else S_KV} offen offset:{w*1024} lds ;@kv"]


def v_loads():
    return [f"buffer_load_dwordx4 {v(VN+4*sg,4)}, v{LM}, s[{S_WS}:{S_WS+3}], s{S_VV} offen offset:{sg*1024} ;@kv" for sg in range(2)]


def mzero(base, n):
    op = {4: "4x4x1_16b", 16: "16x16x1_4b"}[n]
    return f"v_mfma_f32_{op}_f32 {v(base,n)}, v{PA+3}, v{PA+3}, 0"


def v_moves(src_):
    return [f"v_mov_b64 {v(VX+4*i,2)}, {v(src_+2*i,2)}" for i in range(4)]


def wait_flag(g, tag, seg_sgpr):
    g(f"""
    s_mov_b32 s{S_SPIN}, 0
    L_{tag}:
    buffer_load_dword v{FLG}, v{TCH}, s[{S_WS}:{S_WS+3}], s{S_FL} offen sc1
    s_add_u32 s{S_SPIN}, s{S_SPIN}, 1
    s_cmp_gt_u32 s{S_SPIN}, {SPIN_MAX}
    s_cbranch_scc1 L_{tag}_out
    s_waitcnt vmcnt(0)
    v_cmp_eq_u32 s[{S_RDY}:{S_RDY+1}], 1, v{FLG}
    s_nop 4
    s_bitcmp1_b64 s[{S_RDY}:{S_RDY+1}], s{seg_sgpr}
    s_cbranch_scc0 L_{tag}
    L_{tag}_out:
    s_waitcnt vmcnt(0)
    """)


def wave_loop(g, w, st, tag, opt):
    stamps = opt.get("stamps")
    WSD = f"s[{S_WS}:{S_WS+3}]"
    nst = [0]

    def stamp():
        if not stamps: return []
        i = nst[0]; nst[0] += 1
        if isinstance(stamps, list) and i not in stamps: return []
        if opt.get("rt") and w != 3: return []
        return [f"s_mem{'real' if opt.get('rt') else ''}time s[{74+2*i}:{75+2*i}]"]

    L = lambda x: f"L_{tag}{w}_{x}"
    T0 = 56
    kxr = [f"ds_read_b128 {v(POOL+4*c,4)}, v{LM} offset:{c*1024}" for c in range(8)]
    if w == 0:
        g(f"v_lshlrev_b32 v{TCH}, 2, v0")
        wait_flag(g, f"{tag}{w}_f0", S_STEP)
        g(f"s_mov_b32 s{S_T2}, 1")
        wait_flag(g, f"{tag}{w}_f2", S_T2)
    if w == 3:
        g(f"""
        v_and_b32 v{T0}, 15, v0
        v_and_b32 v{T0+1}, 1, v0
        v_lshlrev_b32 v{T0+1}, 4, v{T0+1}
        v_mov_b32 v{T0+2}, 0x3f80
        v_lshlrev_b32 v{T0+1}, v{T0+1}, v{T0+2}
        v_lshrrev_b32 v{T0}, 1, v{T0}
        """)
        for i in range(4):
            g(f"v_cmp_eq_u32 vcc, {i}, v{T0}\ns_nop 1\nv_cndmask_b32 v{M+i}, 0, v{T0+1}, vcc")
        g(f"ds_write_b128 v{LM}, {v(M,4)} offset:{L_SEL - LDS_MISC}")
    for x in zero(ACC + 16, 8): g(x)
    g("s_barrier")
    k0, k1 = k_load(w, 0), k_load(w, 1)
    nxt = [f"s_add_u32 s{S_KV}, s{S_KV}, {512*KB}"] + kv_addr(w)
    for x in [k0[0]] + kv_addr(w) + [k0[1], k1[0]] + v_loads() + [k1[1], "s_waitcnt vmcnt(0)"] + v_moves(VN) + ["s_barrier"] + kxr + nxt + ["s_waitcnt lgkmcnt(0)"]:
        g(x.split(";@")[0])
    if opt.get("count"):
        g("s_memtime s[92:93]\ns_memrealtime s[14:15]\ns_waitcnt lgkmcnt(0)")
    body = []
    E = body.extend
    nops = lambda k: [f"s_nop {x}" for x in opt.get(k, [])]
    MB_ = lambda t: L_QK + (t - 2) * 1024
    mo = lambda t: (t & 1) * 2048 + ((t >> 1) & 1) * 128
    mld = lambda t: f"buffer_load_dwordx4 {v(M+4*t,4)}, v{GM}, {WSD}, s{S_H2LD if t < 4 else S_H2LD2} offen offset:{mo(t)} sc1"
    dma = lambda t: f"buffer_load_dwordx4 v{GM}, {WSD}, s{S_H2LD if t < 4 else S_H2LD2} offen offset:{mo(t)} sc1 lds ;@dma"
    dt = {0: (2, 3), 1: (5, 4), 2: (6,), 3: (7,)}[w]
    gather = [mld(0) + " ;@c0", f"s_mov_b32 m0, {MB_(dt[0]) - mo(dt[0])}", mld(1) + " ;@c1", dma(dt[0])]
    if len(dt) > 1:
        gather += [f"s_mov_b32 m0, {MB_(dt[1]) - mo(dt[1])}", "s_nop 0", dma(dt[1])]
    R, SEL = A[5], A[4]
    nt = opt.get("nt", "")
    vl = v_loads()
    kvl = [x.replace(" lds ;@", f" {nt} lds ;@") if " lds" in x else x.replace(" ;@", f" {nt} ;@") for x in [k0[0], vl[0], k0[1], k1[0], vl[1], k1[1]]]
    if w == 0:
        kvl.append(f"buffer_load_dword v{FLG}, v{TCH}, {WSD}, s{S_FL} offen sc1 ;@kv")
    E([f"{L('top')}:", "s_barrier"] + (stamp() if opt.get("rt") else []) + nops("d2") + gather + [f"s_mov_b32 s{S_SPIN}, 0"])
    if w == 3:
        E([f"v_mov_b64 {v(PA,2)}, -1", mzero(SEL, 4), mzero(R, 4),
           f"buffer_store_dwordx2 {v(PA,2)}, v{H2ST}, {WSD}, s{S_H2RS} offen {st} ;@h2rs"])
    kvpos = opt.get("kvpos", -1)
    pub = f"buffer_store_dwordx4 {v(A[3],4)}, v{LM}, {WSD}, s{S_PUB} offen sc1"
    pb = [pub, f"s_add_u32 s{S_PUB}, s{S_PUB}, {128*KB}", "s_nop 0", mzero(A[3], 4)]
    if kvpos >= 0:
        E(nops("d5") + pb)
    elif opt.get("pubfirst", 1):
        E(nops("d5") + pb + kvl)
    else:
        E(nops("d5") + kvl + pb)
    dump = []
    if stamps:
        dump.extend(["s_waitcnt lgkmcnt(0)"] + [f"v_writelane_b32 v{M+20}, s{74+2*i}, {i}" for i in range(9)])
        dump.extend([f"v_and_b32 v{M+21}, 63, v0", f"v_lshlrev_b32 v{M+21}, 2, v{M+21}",
           f"s_lshl_b32 s{S_T0}, s{S_TK}, 2", f"s_add_u32 s{S_T0}, s{S_T0}, {w}", f"s_lshl_b32 s{S_T0}, s{S_T0}, 6", f"s_add_u32 s{S_T0}, s{S_T0}, s{S_STEP}",
           f"s_lshl_b32 s{S_T0}, s{S_T0}, 6", f"s_add_u32 s{S_T0}, s{S_T0}, {WS_STAMP}", "s_mov_b64 exec, 0xffff",
           f"buffer_store_dword v{M+20}, v{M+21}, {WSD}, s{S_T0} offen", "s_mov_b64 exec, -1"])
    if not opt.get('rt'): E(dump)
    E(["@wait vm=c0 lg=0", f"{L('c0')}:"] + stamp())
    order = [(m, sg, t) for t in range(2) for m in "qkv" for sg in range(2)] + [(m, sg, t) for m in "qkv" for t in range(2, 8) for sg in range(2)]
    acc = lambda k: A["qkv".index(k[0]) * 2 + k[1]]
    mm = [smf(acc(k), M + 4 * k[2], k) for k in order]
    rs = [tagged(stage_reads(x), f"r{i}") for i, x in enumerate(G_R)]
    mr = [f"ds_read_b128 {v(M+4*t,4)}, v{LM} offset:{MB_(t) - LDS_MISC} ;@m{t}" for t in range(2, 8)]
    add = lambda q, b: f"v_add_f32 v{q+b}, v{q+b}, v{q+2+b}"
    qr = [f"ds_read_b128 {v(M+4*x,4)}, v{QR} offset:{1152*x} ;@qr" for x in range(4)]
    kr = [f"ds_read_b128 {v(M+16+4*x,4)}, v{KR} offset:{1152*x} ;@kr{x}" for x in range(4)]
    ost = stage_reads(G_O)
    qfin = [add(A[0], 0), add(A[0], 1), add(A[1], 0), add(A[1], 1),
            f"v_cvt_pk_bf16_f32 v{A[0]+2}, v{A[0]}, v{A[1]}", f"v_cvt_pk_bf16_f32 v{A[0]+3}, v{A[0]+1}, v{A[1]+1}",
            f"ds_write_b32 v{QW}, v{A[0]+2} ;@qw", f"ds_write_b32 v{QW}, v{A[0]+3} offset:16 ;@qw"]
    kfin = [add(A[2], 0), add(A[2], 1), add(A[3], 0), add(A[3], 1),
            f"v_cvt_pk_bf16_f32 v{A[3]}, v{A[2]}, v{A[3]}", f"v_cvt_pk_bf16_f32 v{A[3]+1}, v{A[2]+1}, v{A[3]+1}",
            f"ds_write_b32 v{QW}, v{A[3]} offset:576 ;@kw", f"ds_write_b32 v{QW}, v{A[3]+1} offset:592 ;@kw"]
    F = Gaps()
    F.put("v", 0, f"v_max3_u32 v{PA}, v{M}, v{M+1}, v{M+2}")
    F.put("v", 1, f"v_max_u32 v{PA}, v{PA}, v{M+3}")
    F.put("v", 2, f"v_cmp_eq_u32 vcc, -1, v{PA}")
    F.put("s", 4, f"s_cbranch_vccnz {L('retry')}", f"{L('go')}:")
    for j in range(4): F.put("d", 4 + j, rs[1][j])
    F.put("x", 5, "@wait vm=c1")
    F.put("x", 7, "@wait vm=dma", "s_barrier", *stamp(), mr[0])
    for j in range(1, 6): F.put("d", 7 + j, mr[j])
    for i, t in ((11, 2), (13, 3), (15, 4), (17, 7)): F.put("s", i, f"@wait lg=m{t}")
    F.put("s", 19, "s_barrier")
    if kvpos >= 0:
        for j, x in enumerate(kvl): F.put("x", kvpos + j, x)
    for r_, i, u in ((2, 14, 22), (3, 22, 30), (4, 31, 38), (5, 38, 46)):
        for j in range(4): F.put("d", i + j, rs[r_][j] + "ab"[j >> 1])
        F.put("s", u - 1, f"@wait lg=r{r_}a"); F.put("s", u, f"@wait lg=r{r_}b")
    for j in range(6):
        F.put("v", 24 + j, qfin[j]); F.put("v", 36 + j, kfin[j])
    F.put("d", 29, qfin[6]); F.put("d", 30, qfin[7])
    F.put("v", 31, f"v_cmp_u_f32 vcc, v{A[0]}, v{A[0]+1}")
    F.put("x", 33, f"s_cbranch_vccnz {L('nan')}", f"{L('nanok')}:")
    F.put("s", 34, "@wait lg=qw" + (" vm=h2rs" if w == 3 else ""))
    F.put("s", 35, "s_barrier"); F.put("d", 35, qr[0])
    F.put("d", 36, qr[1])
    F.put("d", 42, kfin[6]); F.put("d", 43, kfin[7]); F.put("d", 44, qr[2]); F.put("d", 45, qr[3])
    F.put("s", 47, "@wait lg=kw", "s_barrier")
    E(F.emit(mm))
    E(stamp())
    S0, S1, SM = A[0], A[1], A[2]
    sx = []
    for x in range(4):
        sx += [mf(S0, POOL + 4*x, M + 4*x, None if x == 0 else S0), mf(S1, POOL + 16 + 4*x, M + 4*x, None if x == 0 else S1)]
    sm = [mf(SM, M + 16 + 4*x, M + 4*x, None if x == 0 else SM) for x in range(4)]
    cv = lambda d, q: f"v_cvt_pk_bf16_f32 v{d}, v{q}, v{q+1}"
    cnd = lambda d, x, y: f"v_cndmask_b32 v{d}, v{x}, v{y}, s[{S_HF}:{S_HF+1}]"
    pub = f"buffer_store_dwordx4 {v(A[3],4)}, v{LM}, {WSD}, s{S_PUB} offen sc1"
    MX, MY = S1, S1 + 1
    z = zero(A[4], 8)
    E([sx[0], kr[0], sx[1], kr[1], add(A[4], 0),
       sx[2], kr[2], add(A[4], 1),
       sx[3], "@wait lg=qr", kr[3], add(A[5], 0),
       sx[4], add(A[5], 1), cv(VX + 2, A[4]),
       sx[5], cv(VX + 10, A[5]), cv(A[3] + 2, A[4]),
       sx[6], f"s_cmp_eq_u32 s{S_STEP}, {NSEG-1}", cv(A[3] + 3, A[5]), f"v_add_u32 v{FV}, 1, v{FV}",
       sx[7], "@wait lg=kr3", f"v_permlane16_swap_b32 v{VX+2}, v{VX+6}",
       sm[0], f"s_cbranch_scc1 {L('done')}", f"v_permlane16_swap_b32 v{VX+10}, v{VX+14}",
       sm[1], cnd(S0, S0, S1), cnd(S0 + 1, S0 + 1, S1 + 1),
       sm[2], cnd(S0 + 2, S0 + 2, S1 + 2), cnd(S0 + 3, S0 + 3, S1 + 3),
       sm[3], f"v_max3_f32 v{MX}, v{S0}, v{S0+1}, v{S0+2}", f"v_max_f32 v{MX}, v{MX}, v{S0+3}",
       z[2], z[3],
       f"v_max_f32_dpp v{MX}, v{MX}, v{MX} quad_perm:[2,3,0,1] row_mask:0xf bank_mask:0xf",
       f"v_mov_b32 v{MY}, v{MX}",
       f"v_mov_b64 {v(POOL,2)}, s[{S_ONE}:{S_ONE+1}]",
       f"v_max3_f32 v{S1+2}, v{SM}, v{SM+1}, v{SM+2}",
       f"v_permlane16_swap_b32 v{MX}, v{MY}",
       f"v_max3_f32 v{MX}, v{MX}, v{MY}, v{SM+3}",
       f"v_max_f32 v{MY}, v{MX}, v{S1+2}",
       f"v_max_f32 v{MX}, v{MX}, v{S1+2}",
       cnd(SM, SM, SM + 1), f"v_mov_b64 {v(POOL+2,2)}, s[{S_ONE}:{S_ONE+1}]",
       f"v_permlane32_swap_b32 v{MX}, v{MY}",
       f"v_max_f32 v{MX}, v{MX}, v{MY}",
       f"v_mul_f32 v{MX}, s{S_SC}, v{MX}"])
    for r in (S0, S0 + 1, S0 + 2, S0 + 3, SM):
        E([f"v_fma_f32 v{r}, v{r}, s{S_SC}, -v{MX}"])
    E([f"v_exp_f32 v{S0}, v{S0}", f"v_exp_f32 v{S0+1}, v{S0+1}", f"v_exp_f32 v{S0+2}, v{S0+2}", cv(PA, S0),
       f"v_exp_f32 v{S0+3}, v{S0+3}", f"v_exp_f32 v{SM}, v{SM}", cv(PA + 2, S0 + 2),
       f"v_cvt_pk_bf16_f32 v{PA+1}, v{SM}, v{PA+3}"])
    E(stamp())
    LQ = A[1]
    ring = [f"s_and_b32 s{S_TAG}, s{S_STEP}, 1", f"s_add_u32 s{S_STEP}, s{S_STEP}, 1",
            f"s_lshl_b32 s{S_T0}, s{S_TAG}, 13", f"s_sub_u32 s{S_H2LD}, {WS_H2 + 8192}, s{S_T0}",
            f"s_add_u32 s{S_H2LD2}, s{S_H2LD}, 4096"]
    ring2 = list(nxt)
    if w == 3:
        ring += [f"s_add_u32 s{S_H2RS}, s{S_T0}, {WS_H2}", f"s_xor_b32 s{S_H2ST}, s{S_H2RS}, 8192"]
    E([z[0], z[1],
       mf(LQ, PA, POOL, None), ost[8],
       smf(A[4], PA, v(VX, 8), 1), ost[9],
       smf(A[5], PA, v(VX + 8, 8), 1), ost[10], add(LQ, 0),
       add(LQ, 1), f"v_rcp_f32 v{LQ}, v{LQ}", f"v_rcp_f32 v{LQ+1}, v{LQ+1}",
       f"v_pk_add_f32 {v(A[4],2)}, {v(A[4],2)}, {v(A[4]+2,2)}",
       f"v_pk_mul_f32 {v(A[4],2)}, {v(A[4],2)}, {v(LQ,2)}",
       f"v_pk_add_f32 {v(A[5],2)}, {v(A[5],2)}, {v(A[5]+2,2)}",
       f"v_pk_mul_f32 {v(A[5],2)}, {v(A[5],2)}, {v(LQ,2)}",
       f"v_cvt_pk_bf16_f32 v{A[4]+2}, v{A[4]}, v{A[5]}", f"v_cvt_pk_bf16_f32 v{A[4]+3}, v{A[4]+1}, v{A[5]+1}",
       mzero(M + 16, 4),
       f"ds_write2_b32 v{OW}, v{A[4]+2}, v{A[4]+3} offset0:0 offset1:4", mzero(M, 16)] + ring +
      ["s_waitcnt lgkmcnt(0)", "s_barrier",
       f"ds_read_b128 {v(A[0],4)}, v{LM} offset:{L_O - LDS_MISC} ;@o0", mzero(M + 20, 4),
       f"ds_read_b128 {v(A[1],4)}, v{LM} offset:{L_O - LDS_MISC + 1024} ;@o1", mzero(M + 24, 4)] + [mzero(M + 28, 4)])
    E(stamp())
    oo = [(0, 0), (1, 0), (0, 1), (1, 1)] + [(tau, tp) for tau in range(2, 8) for tp in range(2)]
    om = [smf(M + 4*tau, A[tp], ("o", tau, tp)) for tau, tp in oo]
    D0, D1 = A[2], A[4]
    pk = lambda d, ta, b: f"v_cvt_pk_bf16_f32 v{d}, v{M+4*ta+b}, v{M+4*ta+4+b}"
    ad = lambda ta: [add(M + 4*ta, 0), add(M + 4*ta, 1)]
    G = Gaps()
    G.put("s", 1, "@wait lg=o1")
    for j, x in enumerate(tagged([ost[11]], "o5") + tagged(ost[:4], "o6") + tagged(ost[4:8], "o7")): G.put("d", 1 + j, x)
    G.put("s", 9, "@wait lg=o5"); G.put("s", 11, "@wait lg=o6"); G.put("s", 13, "@wait lg=o7")
    poll1 = lambda d, tg: f"buffer_load_dword v{d}, v{FAD}, {WSD}, s{S_F12} offen sc1 ;@{tg}"
    if w == 1:
        f1 = f"buffer_store_dword v{FV}, v{FST}, {WSD}, s{S_F12} offen {st}"
        if opt.get("f1", -1) >= 0: G.put("d", opt["f1"], f1)
        else: body.insert(body.index(mzero(M, 16) if opt.get("f1", -1) == -1 else ost[9]) + 1, f1)
    pl = [poll1(FLG, "p1")] + nops("d7") + [poll1(TCH, "p2")]
    if w == 3 and opt.get("p1", 4) < 16:
        G.put("d", opt.get("p1", 4), pl[0]); G.put("d", opt.get("p2", 8), pl[-1]); pl = []
    st0 = f"buffer_store_dwordx4 {v(D0,4)}, v{H1ST}, {WSD}, s{S_H1ST} offen {st}"
    st1 = f"buffer_store_dwordx4 {v(D1,4)}, v{H1ST}, {WSD}, s{S_H1ST2} offen {st}"
    tg = lambda d: f"v_bfi_b32 v{d}, 1, s{S_TAG}, v{d}"
    first = ad(0) + ad(1) + [pk(D0, 0, 0), pk(D0 + 2, 0, 1), tg(D0)] + ad(2) + ad(3) + [pk(D0 + 1, 2, 0), pk(D0 + 3, 2, 1)]
    plan = {0: (2, 2, 2, 2, 1, 4), 1: (2, 2, 2, 2, 1, 2, 2), 2: (1, 2, 2, 2, 2, 2, 1, 1), 3: (1, 2, 2, 2, 2, 1, 1, 1, 1)}[w if opt.get("stag", 1) else 0]
    i = 4
    for n_ in plan:
        G.put("v", i, *first[:n_]); first = first[n_:]; i += 1
    G.put("d", i, st0)
    second = ad(4) + ad(5) + [pk(D1, 4, 0), pk(D1 + 2, 4, 1), tg(D1)] + ad(6)
    for j in range(max(i, 11), 15):
        if j < 13 and second[0] not in ad(4): continue
        G.put("v", j, second.pop(0))
    G.put("v", 15, *(second + ["s_nop 0"] * max(0, 6 - len(second)) + ad(7) + [pk(D1 + 1, 6, 0), pk(D1 + 3, 6, 1), st1]))
    E(["@wait lg=o0"] + G.emit(om))
    E(stamp())
    house = ring2 + rs[0] + [mzero(A[i], 4) for i in range(3)] + ([] if w == 3 else [mzero(ACC + 16, 4), mzero(ACC + 20, 4)])
    h1l = [f"buffer_load_dwordx4 {v(M+4*t,4)}, v{LM}, {WSD}, s{S_H1LD if t < 4 else S_H1LD2} offen offset:{(t & 3)*1024} sc1 ;@h{t}" for t in range(8)]
    if w == 3:
        E(nops("d8") + pl + house + [f"ds_read_b128 {v(SEL,4)}, v{LM} offset:{L_SEL - LDS_MISC} ;@sel", f"s_mov_b32 s{S_SPIN}, 0",
                   "@wait vm=p1", f"v_cmp_gt_u32 vcc, s{S_STEP}, v{FLG}", "s_barrier", f"s_cbranch_vccnz {L('p1no')}", f"{L('p1ok')}:"])
        f2 = [f"buffer_store_dword v{FV}, v{FST}, {WSD}, s{S_F12} offen offset:256 {st}"]
        f2p = opt.get("f2", 0)
        E((dump if opt.get("rt") else []) + nops("d1") + stamp() + h1l + kxr + v_moves(VN) + nops("d4") + f2 + ["s_waitcnt lgkmcnt(0)"])
        E([f"{L('h1red')}:"])
        for t in range(8):
            E([f"@wait vm=h{t}", mf(R, SEL, M + 4*t, None if t == 0 else R)])
            E([f"v_xor_b32 v{PA}, s{S_TAG}, v{M}" if t == 0 else f"v_bitop3_b32 v{PA}, v{PA}, v{M+4*t}, s{S_TAG} bitop3:0xf6"])
        E([f"v_and_b32 v{PA}, 1, v{PA}", f"v_cmp_eq_u32 vcc, 1, v{PA}", "s_nop 3", cv(R, R), f"v_cvt_pk_bf16_f32 v{R+1}, v{R+2}, v{R+3}",
           f"s_cbranch_vccnz {L('h1retry')}", f"{L('h1ok')}:",
           f"buffer_store_dwordx2 {v(R,2)}, v{H2ST}, {WSD}, s{S_H2ST} offen {st}"] + stamp() + [f"s_branch {L('top')}"])
    else:
        E(house + ["@wait vm=kv", "s_barrier"] + kxr + v_moves(VN))
        if w == 0:
            E([f"v_cmp_eq_u32 s[{S_RDY}:{S_RDY+1}], 1, v{FLG}", f"s_add_u32 s{S_T2}, s{S_STEP}, 1", "s_nop 3",
               f"s_bitcmp1_b64 s[{S_RDY}:{S_RDY+1}], s{S_T2}", f"s_cbranch_scc0 {L('flag')}", f"{L('flagok')}:"])
        E(["s_waitcnt lgkmcnt(0)"])
        if w != 2:
            E([f"s_branch {L('top')}"])
    if opt.get("free"):
        body = [x for x in body if not (x.startswith("s_cbranch_vccnz") or x.startswith("v_cmpx"))]
        body = [x.replace("s_cbranch_scc0 " + L('top'), "s_branch " + L('top')) for x in body]
        if w == 2: body.append(f"s_branch {L('top')}")
    if True:
        for pat in opt.get("drop", []):
            keep = lambda x: ("s_nop 0" if opt.get("keepslot") else None)
            tags = [x.split(";@")[1] for x in body if pat in x and ";@" in x]
            body = [x for x in body if pat not in x or x.endswith(":")]
            live = {x.split(";@")[1] for x in body if ";@" in x}
            nb = []
            for x in body:
                if x.startswith("@wait"):
                    t = [k for k in x.split()[1:] if k.split("=")[1] in live or k.split("=")[1] == "0"]
                    if t: nb.append("@wait " + " ".join(t))
                else: nb.append(x)
            body = nb
    body = resolve_waits(body)
    if opt.get("sw"):
        pos = [i for i, x in enumerate(body) if x.startswith(("v_mfma", "v_smfmac"))]
        for k, o_ in reversed(list(enumerate(opt["sw"]))):
            if o_ < len(pos): body.insert(pos[o_] + 1, f"s_memtime s[{74+2*k}:{75+2*k}]")
    for x in body: g(x)
    bad = hazard.check(body + body[:40], f"chain w{w}") if not opt.get("drop") else []
    m1 = g.mark()
    strip = lambda lst: [x.split(";@")[0] for x in lst]
    cnt = lambda out: f"s_add_u32 s{S_SPIN}, s{S_SPIN}, 1\ns_cmp_gt_u32 s{S_SPIN}, {SPIN_MAX}\ns_cbranch_scc1 {out}"
    dbg = lambda k: (f"s_add_u32 s{96+k}, s{96+k}, 1" if opt.get("count") else "")
    anysent = [f"v_mov_b32 v{PA}, 0"] + [f"v_max3_u32 v{PA}, v{PA}, v{M+2*i}, v{M+2*i+1}" for i in range(16)] + [f"v_cmp_eq_u32 vcc, -1, v{PA}"]
    if w == 2:
        nf = opt.get("nf", 4)
        poll2 = lambda i: f"buffer_load_dword v{M+28+i}, v{FAD}, {WSD}, s{S_F12} offen offset:256 sc1"
        for x in nops("d6"): g(x)
        g(f"s_mov_b32 s{S_SPIN}, 0")
        for i in range(nf - 1):
            g(poll2(i) + f"\ns_nop {opt.get('pg', 10)}")
        g(f"{L('poll')}:")
        for i in range(nf):
            g(f"{poll2((i + nf - 1) % nf)}\ns_waitcnt vmcnt({nf-1})\nv_cmp_gt_u32 vcc, s{S_STEP}, v{M+28+i}\n{dbg(3)}\ns_cbranch_vccz {L('top')}")
        g(f"{cnt(L('top'))}\ns_branch {L('poll')}")
    if w == 3:
        g(f"{L('h1retry')}:\n{dbg(2)}\n{cnt(L('h1ok'))}")
        for x in strip(h1l) + ["s_waitcnt vmcnt(0)", f"s_branch {L('h1red')}"]: g(x)
        g(f"""
        {L('p1no')}:
        {dbg(3)}
        {strip([poll1(FLG, '')])[0]}
        s_waitcnt vmcnt({1 if pl else 3 if opt.get('p2', 8) < 13 else 2})
        v_cmp_gt_u32 vcc, s{S_STEP}, v{TCH}
        s_cbranch_vccz {L('p1ok')}
        {L('p1l')}:
        {strip([poll1(TCH, '')])[0]}
        s_waitcnt vmcnt(1)
        v_cmp_gt_u32 vcc, s{S_STEP}, v{FLG}
        s_cbranch_vccz {L('p1ok')}
        {strip([poll1(FLG, '')])[0]}
        s_waitcnt vmcnt(1)
        v_cmp_gt_u32 vcc, s{S_STEP}, v{TCH}
        s_cbranch_vccz {L('p1ok')}
        {cnt(L('p1ok'))}
        s_branch {L('p1l')}
        """)
    g(f"{L('retry')}:\n{dbg(0)}\n{cnt(L('go'))}")
    for x in strip(gather) + ["s_nop 3"] + zero(ACC, 24): g(x)
    g(f"s_waitcnt vmcnt(0)\ns_branch {L('c0')}")
    g(f"{L('nan')}:\n{dbg(1)}")
    for x in anysent: g(x)
    g(f"s_cbranch_vccz {L('nanok')}\n{L('nanl')}:")
    for x in [mld(t) for t in range(8)] + ["s_waitcnt vmcnt(0)"] + anysent: g(x)
    g(f"s_cbranch_vccz {L('nanr')}\n{cnt(L('nanr'))}\ns_branch {L('nanl')}\n{L('nanr')}:\ns_waitcnt lgkmcnt(0)")
    for x in zero(ACC, 24): g(x)
    for i in range(34):
        for r_ in range(4):
            if order[i] == G_R[r_][0]:
                for x in strip(rs[r_]) + ["s_waitcnt lgkmcnt(0)"]: g(x)
        g(mm[i])
    for x in strip(rs[4][:3] + qfin) + ["s_waitcnt lgkmcnt(0)", f"s_branch {L('nanok')}"]: g(x)
    bad += hazard.check(g.lines[m1:], f"chain rare w{w}")
    if w == 0:
        g(f"{L('flag')}:")
        wait_flag(g, f"{tag}{w}_f1", S_T2)
        g(f"s_branch {L('flagok')}")
    g(f"{L('done')}:\n{pub}")
    if opt.get("count"):
        g(f"""
        s_memtime s[94:95]
        s_memrealtime s[74:75]
        s_waitcnt lgkmcnt(0)
        s_sub_u32 s74, s74, s14
        s_sub_u32 s12, s14, s12
        s_sub_u32 s94, s94, s92
        v_mov_b32 v40, s96
        v_mov_b32 v41, s97
        v_mov_b32 v42, s98
        v_mov_b32 v43, s94
        s_lshl_b32 s{S_T0}, s{S_TK}, 2
        s_add_u32 s{S_T0}, s{S_T0}, {w}
        s_lshl_b32 s{S_T0}, s{S_T0}, 12
        s_add_u32 s{S_T0}, s{S_T0}, {WS_STAMP}
        v_mov_b32 v44, 0
        v_mov_b32 v46, s99
        v_mov_b32 v47, s74
        v_mov_b32 v48, s12
        buffer_store_dwordx4 v[40:43], v44, {WSD}, s{S_T0} offen
        buffer_store_dwordx3 v[46:48], v44, {WSD}, s{S_T0} offen offset:16
        """)
    g("s_waitcnt vmcnt(0)\ns_endpgm")
    return bad


def chain_role(g, st, tag, opt):
    m0 = g.mark()
    if opt.get("count"):
        g("s_memrealtime s[12:13]\ns_waitcnt lgkmcnt(0)\ns_mov_b32 s96, 0\ns_mov_b32 s97, 0\ns_mov_b32 s98, 0\ns_mov_b32 s99, 0")
    setup_early(g, st)
    g(f"""
    s_waitcnt vmcnt(0)
    s_barrier
    s_cmp_lg_u32 s{S_WAVE}, 0
    s_cbranch_scc1 L_{tag}_arrived
    v_mov_b32 v56, 64
    v_mov_b32 v57, 1
    s_mov_b64 exec, 1
    global_atomic_add v56, v57, s[{P_DBG}:{P_DBG+1}]
    s_mov_b64 exec, -1
    s_waitcnt vmcnt(0)
    L_{tag}_arrived:
    """)
    load_weights(g)
    setup_late(g)
    g(f"""
    s_mov_b32 s{S_SPIN}, 0
    v_mov_b32 v56, 64
    L_{tag}_team:
    global_load_dword v57, v56, s[{P_DBG}:{P_DBG+1}] sc1
    s_add_u32 s{S_SPIN}, s{S_SPIN}, 1
    s_cmp_gt_u32 s{S_SPIN}, {SPIN_MAX}
    s_cbranch_scc1 L_{tag}_teamok
    s_waitcnt vmcnt(0)
    v_cmp_gt_u32 vcc, 32, v57
    s_cbranch_vccnz L_{tag}_team
    L_{tag}_teamok:
    s_waitcnt vmcnt(0)
    s_mov_b32 s{S_SPIN}, 0
    """)
    if not opt.get("chainonly"):
        g(f"""
        v_mov_b32 v56, {DBG_INIT}
        L_{tag}_init:
        global_load_dword v57, v56, s[{P_DBG}:{P_DBG+1}] sc1
        s_add_u32 s{S_SPIN}, s{S_SPIN}, 1
        s_cmp_gt_u32 s{S_SPIN}, {SPIN_MAX}
        s_cbranch_scc1 L_{tag}_initok
        s_waitcnt vmcnt(0)
        v_cmp_gt_u32 vcc, 224, v57
        s_cbranch_vccnz L_{tag}_init
        L_{tag}_initok:
        s_waitcnt vmcnt(0)
        s_mov_b32 s{S_SPIN}, 0
        """)
    bad = hazard.check(g.lines[m0:], "chain prologue")
    for w in range(1, 4):
        g(f"s_cmp_eq_u32 s{S_WAVE}, {w}\ns_cbranch_scc1 L_{tag}_w{w}")
    for w in range(4):
        g(f"L_{tag}_w{w}:")
        bad += wave_loop(g, w, st, tag, opt)
    return bad
```

```python
import sys
from asmlib import *
from layout import *
from chain import *
import workers

NAME = "recurrent_scan__memory_aug_recurrent_mem_tr__geglu_ffn__prompt_kernel"


def entry(g):
    g(f"""
    s_cmp_ge_u32 s2, 256
    s_cbranch_scc1 L_exit
    s_load_dwordx16 s[16:31], s[0:1], 0
    s_load_dwordx8 s[32:39], s[0:1], 64
    s_load_dwordx4 s[40:43], s[0:1], 96
    s_getreg_b32 s{S_XCC}, hwreg(HW_REG_XCC_ID, 0, 3)
    v_lshrrev_b32 v1, 6, v0
    s_nop 0
    v_readfirstlane_b32 s{S_WAVE}, v1
    s_waitcnt lgkmcnt(0)
    s_mov_b32 s{S_WS}, s{P_WSP}
    s_mov_b32 s{S_WS+1}, s{P_WSP+1}
    s_mov_b32 s{S_WS+2}, {WS_BYTES}
    s_mov_b32 s{S_WS+3}, 0x20000
    s_cmp_lg_u32 s{S_WAVE}, 0
    s_cbranch_scc1 L_ticket
    s_lshl_b32 s{S_T0}, s{S_XCC}, 2
    v_mov_b32 v1, s{S_T0}
    v_mov_b32 v2, 1
    s_mov_b64 exec, 1
    global_atomic_add v3, v1, v2, s[{P_DBG}:{P_DBG+1}] sc0
    v_mov_b32 v1, 0
    s_waitcnt vmcnt(0)
    ds_write_b32 v1, v3
    s_waitcnt lgkmcnt(0)
    s_mov_b64 exec, -1
    L_ticket:
    s_barrier
    v_mov_b32 v1, 0
    ds_read_b32 v3, v1
    s_waitcnt lgkmcnt(0)
    v_readfirstlane_b32 s{S_TK}, v3
    s_barrier
    """)


def build(opt):
    g = Asm()
    entry(g)
    bad = []
    g(f"s_cmp_eq_u32 s{S_XCC}, 0\ns_cbranch_scc1 L_chain")
    if not opt.get("chainonly"):
        bad += workers.worker_roles(g, opt)
    g("L_exit:\ns_endpgm\nL_chain:")
    bad += chain_role(g, opt.get("st", ""), "c", opt)
    for b in bad: print(b, file=sys.stderr)
    head = f"; @launch grid=(256,1,1) block=(256,1,1) lds=163840\n"
    head += '.amdgcn_target "amdgcn-amd-amdhsa--gfx950"\n.text\n'
    head += f".globl {NAME}\n.p2align 8\n.type {NAME},@function\n{NAME}:\n"
    tail = f"""
.section .rodata,"a"
.p2align 6
.amdhsa_kernel {NAME}
  .amdhsa_next_free_vgpr 512
  .amdhsa_next_free_sgpr 102
  .amdhsa_accum_offset 256
  .amdhsa_group_segment_fixed_size 0
  .amdhsa_kernarg_size 112
  .amdhsa_user_sgpr_count 2
  .amdhsa_user_sgpr_kernarg_segment_ptr 1
  .amdhsa_system_sgpr_workgroup_id_x 1
.end_amdhsa_kernel
"""
    return head + g.text() + tail, bad


if __name__ == "__main__":
    import mb
    t, bad = build({})
    co = mb.assemble(t, NAME, 14, "k")
    print(mb.cl.address_register_problem(co, NAME))
    print(len(t), "bytes", len(bad), "hazards")
```

```python
import re

REG = re.compile(r"^(-|\|)?(abs\()?([vas])(?:(\d+)|\[(\d+):(\d+)\])\)?\|?$")
TRANS = ("v_exp_", "v_log_", "v_rcp_", "v_rsq_", "v_sqrt_", "v_sin_", "v_cos_")


def regs(tok):
    tok = tok.strip()
    if tok in ("vcc", "exec", "m0"):
        return {tok}
    if tok in ("vcc_lo", "vcc_hi"):
        return {"vcc"}
    if tok in ("exec_lo", "exec_hi"):
        return {"exec"}
    m = REG.match(tok)
    if not m:
        return set()
    f = m.group(3)
    if m.group(4) is not None:
        return {f + m.group(4)}
    return {f + str(i) for i in range(int(m.group(5)), int(m.group(6)) + 1)}


class Ins:
    def __init__(self, line):
        self.line = line
        parts = line.split(None, 1)
        self.op = op = parts[0]
        rest = parts[1] if len(parts) > 1 else ""
        ops = [o.strip() for o in re.split(r",(?![^\[]*\])", rest)] if rest else []
        self.mods = ""
        if ops:
            last = ops[-1].split(None, 1)
            ops[-1] = last[0]
            self.mods = last[1] if len(last) > 1 else ""
        self.ops = ops
        R = [regs(o) for o in ops]
        self.rd, self.wr = set(), set()
        self.mc = set()
        self.mab = set()
        self.sdata = set()
        self.kind = "salu"
        self.passes = 0
        if op.startswith(("v_mfma", "v_smfmac")):
            self.kind = "mfma"
            self.passes = 2 if "4x4x" in op else 16 if "_2b_" in op else 8 if ("32x32" in op or "_4b_" in op) else 4
            self.wr = R[0]
            if op.startswith("v_smfmac"):
                self.mc = R[0]; self.mab = R[1] | R[2] | R[3]
            else:
                self.mc = R[3]; self.mab = R[1] | R[2]
            self.rd = self.mc | self.mab
        elif op.startswith("v_"):
            self.kind = "valu"
            if op.startswith("v_permlane") and "swap" in op:
                self.rd = R[0] | R[1]; self.wr = R[0] | R[1]
            elif op.startswith("v_cmpx"):
                self.wr = R[0] | {"exec"}; self.rd = set().union(*R[1:])
            elif op.startswith(("v_add_co", "v_sub_co", "v_addc_co", "v_subb_co", "v_div_scale", "v_mad_u64")):
                self.wr = R[0] | R[1]; self.rd = set().union(*R[2:])
            elif op == "v_nop":
                pass
            else:
                self.wr = R[0]; self.rd = set().union(*R[1:]) if len(R) > 1 else set()
                if op.startswith(("v_fmac", "v_dot2c", "v_writelane")) or "_dpp" in op:
                    self.rd |= R[0]
        elif op.startswith("ds_"):
            self.kind = "ds"
            if op.startswith(("ds_read", "ds_bpermute", "ds_permute", "ds_swizzle")) or "_rtn" in op:
                self.wr = R[0]; self.rd = set().union(*R[1:])
            else:
                self.rd = set().union(*R)
        elif op.startswith(("buffer_", "global_")):
            self.kind = "vmem"
            lds = " lds" in " " + self.mods or "_lds_" in op
            if op in ("buffer_wbl2", "buffer_inv"):
                pass
            elif lds:
                self.rd = set().union(*R) | {"m0"}
            elif "_load" in op:
                self.wr = R[0]; self.rd = set().union(*R[1:])
            elif "atomic" in op and "sc0" in self.mods:
                self.wr = R[0]; self.rd = set().union(*R[1:]) | (R[0] if op.startswith("buffer") else set())
            else:
                self.rd = set().union(*R)
                if op.endswith(("x3", "x4")):
                    self.sdata = R[0] if op.startswith("buffer") else R[1]
        else:
            if op.startswith(("s_cmp", "s_bitcmp", "s_waitcnt", "s_nop", "s_barrier", "s_branch", "s_cbranch", "s_sleep",
                              "s_endpgm", "s_setprio")):
                self.rd = set().union(*R) if R else set()
            elif R:
                self.wr = R[0]; self.rd = set().union(*R[1:]) if len(R) > 1 else set()
                if "saveexec" in op:
                    self.wr |= {"exec"}
        self.trans = op.startswith(TRANS)
        self.dpp = "_dpp" in op
        self.perm = op.startswith("v_permlane")
        self.rdlane = op.startswith(("v_readlane", "v_readfirstlane", "v_writelane"))


def isv(s):
    return {r for r in s if r[0] in "va" and r != "vcc"}


def iss(s):
    return {r for r in s if r[0] == "s" or r == "vcc"}


D2V = {2: 5, 4: 8, 8: 12, 16: 20}
D2C = {2: 4, 4: 6, 8: 10, 16: 18}
WARC = {2: 1, 4: 3, 8: 7, 16: 15}


def vblock(x):
    return 12 if x.op.startswith("v_smfmac") else 4 if x.op.endswith("_f32") else 8


def need(p, c):
    n = -1
    if p.kind == "valu":
        pv, ps = isv(p.wr), iss(p.wr)
        if c.kind == "mfma" and pv & c.rd: n = max(n, 2)
        if c.kind == "mfma" and "exec" in p.wr: n = max(n, 4)
        if c.kind == "valu":
            if (c.dpp or c.perm) and pv & c.rd: n = max(n, 2)
            if c.rdlane and "write" not in c.op and pv & c.rd: n = max(n, 1)
            if p.trans and not c.trans and pv & c.rd: n = max(n, 1)
            if ps & c.rd: n = max(n, 4 if c.rdlane else 2)
            if "exec" in p.wr and c.dpp: n = max(n, 5)
            if "exec" in p.wr and (c.perm or c.rdlane): n = max(n, 4)
            if ("sdwa" in p.op or "op_sel" in p.mods) and not p.op.startswith("v_pk") and pv & c.rd: n = max(n, 1)
        if c.kind == "vmem" and ps & c.rd: n = max(n, 5)
    if p.kind == "mfma":
        if c.kind == "mfma":
            if p.wr & c.mab: n = max(n, D2V[p.passes])
            if p.wr & c.mc and not (p.wr == c.mc and p.passes == c.passes): n = max(n, D2C[p.passes])
            if p.wr & c.wr and not (p.wr & c.mc) and p.passes != c.passes: n = max(n, D2V[p.passes])
        elif c.kind in ("valu", "ds", "vmem"):
            if p.wr & (c.rd | c.wr): n = max(n, D2V[p.passes])
            if c.kind == "valu" and p.mc & c.wr: n = max(n, WARC[p.passes])
    if p.sdata and p.sdata & c.wr: n = max(n, 2 if c.kind == "valu" else 1)
    if p.kind == "salu" and "m0" in p.wr and c.kind == "vmem" and "m0" in c.rd: n = max(n, 1)
    return n


def check(lines, name="", strict=False):
    ins = []
    for ln in lines:
        ln = ln.split(";")[0].strip()
        if not ln or ln.endswith(":") or ln.startswith("."):
            continue
        ins.append(Ins(ln))
    bad = []
    for j, c in enumerate(ins):
        for i in range(max(0, j - 24), j):
            n = need(ins[i], c)
            if n < 0:
                continue
            t = 0; tm = None; blk = 0; pace = 0
            if ins[i].kind == "mfma":
                tm = 0; pace = 4 * ins[i].passes; blk = vblock(ins[i])
            dur = lambda x: 4 * (int(x.ops[0], 0) + 1) if x.op == "s_nop" else (8 if (x.trans or x.perm) and not strict and x is not ins[i] else 4)
            prev = ins[i]
            for k in range(i + 1, j + 1):
                x = ins[k]
                t += dur(prev)
                if not strict and tm is not None:
                    if x.kind == "mfma": t = max(t, tm + pace)
                    if x.kind == "valu": t = max(t, tm + blk)
                if x.kind == "mfma":
                    tm = t; pace = 4 * x.passes; blk = vblock(x)
                prev = x
            if t < 4 * (n + 1):
                bad.append(f"{name}: need {n} wait states, have {t//4-1}:\n    {ins[i].line}\n    {c.line}")
    return bad
```

```python
KB = 1024
MB = 1024 * KB

WS_FLAGS = 1 * MB
WS_H1 = 2 * MB
WS_H2 = 3 * MB
WS_STAMP = 3 * MB + 512 * KB
WS_XN = 4 * MB
WS_KV = 8 * MB
WS_Q = 40 * MB
WS_PUB = 57 * MB
WS_O = 72 * MB
WS_HMID = 88 * MB
WS_HF = WS_FLAGS + 8 * KB
WS_OF = WS_FLAGS + 16 * KB
WS_PF = WS_FLAGS + 32 * KB
DBG_TEAM, DBG_LN, DBG_INIT, DBG_ADONE = 4, 132, 8, 136
HM_SEG = 88 * KB
WS_BYTES = 256 * MB

NSEG = 64


def mem_col(t, ga, hf, c, u):
    return 128 * ga + 64 * hf + 32 * (c & 1) + 16 * u + 2 * t + (c >> 1)


def kx_index(T, w, lane, j):
    m, kg = lane & 15, lane >> 4
    return m, 32 * w + 16 * (j & 1) + 4 * kg + (j >> 1)


def vx_index(w, sg, lane, ri, u):
    n, gb = lane & 15, lane >> 4
    return ri & 1, 8 * (ri >> 1) + 2 * gb + u, 32 * w + 16 * sg + n


def kmem_row(m):
    g, r = m >> 2, m & 3
    g ^= r >> 1
    return 4 * (g & 1) + 2 * (g >> 1) + (r & 1)
```

```python
from asmlib import *
from layout import *
from chain import (S_WS, S_W, P_X, P_WQ, P_WK, P_WV, P_WO, P_WG, P_WU, P_WD, P_OUT, P_DBG, S_XCC, S_TK, S_WAVE,
                   S_T0, S_T1, S_T2, S_T3, SPIN_MAX, set_srd)

WSD = f"s[{S_WS}:{S_WS+3}]"
WD = f"s[{S_W}:{S_W+3}]"
S_WI, S_COL, S_SEG, S_HD, S_SPIN, S_XO, S_O1, S_O2, S_FA, S_PREV, S_LB, S_C0, S_C1, S_C2 = range(51, 65)
S_OUT = 68
S_MK = 72
RING = 65536
NROWG = 5


def rg(f, b, n):
    return a(b, n) if f == "a" else v(b, n)


def mf32(d, x, y, first):
    return f"v_mfma_f32_32x32x16_bf16 {v(d,16)}, {x}, {y}, " + ("0" if first else v(d, 16))


def mf16(d, x, y, first):
    return f"v_mfma_f32_16x16x32_bf16 {v(d,4)}, {x}, {y}, " + ("0" if first else v(d, 4))


def spin_counter(g, tag, off, target):
    g(f"""
    s_mov_b32 s{S_SPIN}, 0
    v_mov_b32 v10, {off}
    L_{tag}:
    global_load_dword v11, v10, s[{P_DBG}:{P_DBG+1}] sc1
    s_add_u32 s{S_SPIN}, s{S_SPIN}, 1
    s_cmp_gt_u32 s{S_SPIN}, {SPIN_MAX}
    s_cbranch_scc1 L_{tag}_out
    s_waitcnt vmcnt(0)
    v_cmp_gt_u32 vcc, {target}, v11
    s_cbranch_vccz L_{tag}_out
    s_sleep 2
    s_branch L_{tag}
    L_{tag}_out:
    s_waitcnt vmcnt(0)
    """)


def spin_flags(g, tag, vaddr, soff, sleep=1):
    g(f"""
    s_mov_b32 s{S_SPIN}, 0
    L_{tag}:
    buffer_load_dword v11, v{vaddr}, {WSD}, s{soff} offen sc1
    s_add_u32 s{S_SPIN}, s{S_SPIN}, 1
    s_cmp_gt_u32 s{S_SPIN}, {SPIN_MAX}
    s_cbranch_scc1 L_{tag}_out
    s_waitcnt vmcnt(0)
    v_cmp_ne_u32 vcc, 1, v11
    s_cbranch_vccz L_{tag}_out
    {f's_sleep {sleep}' if sleep else ''}
    s_branch L_{tag}
    L_{tag}_out:
    s_waitcnt vmcnt(0)
    """)


def count_up(g, tag, off):
    g(f"""
    s_waitcnt vmcnt(0)
    s_barrier
    s_cmp_lg_u32 s{S_WAVE}, 0
    s_cbranch_scc1 L_{tag}
    v_mov_b32 v10, {off}
    v_mov_b32 v11, 1
    s_mov_b64 exec, 1
    global_atomic_add v10, v11, s[{P_DBG}:{P_DBG+1}]
    s_mov_b64 exec, -1
    L_{tag}:
    """)


def set_flag(g, tag, soff):
    g(f"""
    s_cmp_lg_u32 s{S_WAVE}, 0
    s_cbranch_scc1 L_{tag}
    v_mov_b32 v10, 0
    v_mov_b32 v11, 1
    s_mov_b64 exec, 1
    buffer_store_dword v11, v10, {WSD}, s{soff} offen sc1
    s_mov_b64 exec, -1
    L_{tag}:
    """)


def worker_init(g):
    g(f"""
    s_sub_u32 s{S_T0}, s{S_XCC}, 1
    s_lshl_b32 s{S_WI}, s{S_T0}, 5
    s_add_u32 s{S_WI}, s{S_WI}, s{S_TK}
    v_mov_b64 v[12:13], -1
    v_mov_b64 v[14:15], -1
    v_lshlrev_b32 v10, 4, v0
    s_lshl_b32 s{S_T1}, s{S_T0}, 17
    s_lshl_b32 s{S_T2}, s{S_TK}, 12
    s_add_u32 s{S_T1}, s{S_T1}, s{S_T2}
    s_add_u32 s{S_T1}, s{S_T1}, {WS_PUB}
    """)
    for i in range(10):
        g(f"buffer_store_dwordx4 v[12:15], v10, {WSD}, s{S_T1} offen sc1\ns_add_u32 s{S_T1}, s{S_T1}, {7*128*KB}")
    g(f"""
    v_mov_b32 v11, 0
    v_mul_u32_u24 v10, 7, v0
    v_add_u32 v10, s{S_T0}, v10
    v_cmp_gt_u32 vcc, 64, v10
    v_lshlrev_b32 v10, 7, v10
    s_lshl_b32 s{S_T1}, s{S_TK}, 2
    s_add_u32 s{S_T1}, s{S_T1}, {WS_OF}
    v_mov_b32 v12, 0x40000000
    v_cndmask_b32 v10, v12, v10, vcc
    buffer_store_dword v11, v10, {WSD}, s{S_T1} offen sc1
    """)


def clear_flags(g, shift):
    g(f"""
    v_mov_b32 v11, 0
    v_mul_u32_u24 v10, {NROWG}, v0
    v_add_u32 v10, s{S_SEG}, v10
    v_cmp_gt_u32 vcc, 64, v10
    v_lshlrev_b32 v10, {shift}, v10
    v_mov_b32 v12, 0x40000000
    v_cndmask_b32 v10, v12, v10, vcc
    buffer_store_dword v11, v10, {WSD}, s{S_FA} offen sc1
    """)


def layernorm(g, seg):
    X, T = 16, 80
    set_srd(g, P_X, 2 * MB)
    g(f"""
    v_lshrrev_b32 v1, 3, v0
    v_and_b32 v2, 7, v0
    v_lshlrev_b32 v3, 10, v1
    v_lshl_add_u32 v3, v2, 4, v3
    s_lshl_b32 s{S_T0}, s{seg}, 15
    """)
    for j in range(8):
        g(f"buffer_load_dwordx4 {v(T+4*j,4)}, v3, {WD}, s{S_T0} offen offset:{128*j}")
    g(f"""
    v_lshrrev_b32 v4, 1, v2
    v_lshlrev_b32 v4, 10, v4
    v_and_b32 v5, 1, v2
    v_lshl_add_u32 v4, v5, 9, v4
    v_lshl_add_u32 v4, v1, 4, v4
    s_add_u32 s{S_T0}, s{S_T0}, {WS_XN}
    s_mov_b32 s{S_T1}, 0xffff0000
    s_waitcnt vmcnt(0)
    """)
    for i in range(32):
        g(f"v_lshlrev_b32 v{X+2*i}, 16, v{T+i}\nv_and_b32 v{X+2*i+1}, s{S_T1}, v{T+i}")

    def reduce8(r):
        for m in ("quad_perm:[1,0,3,2]", "quad_perm:[2,3,0,1]", "row_half_mirror"):
            g(f"s_nop 1\nv_add_f32_dpp v{r}, v{r}, v{r} {m} row_mask:0xf bank_mask:0xf")

    g(f"v_pk_add_f32 v[6:7], {v(X,2)}, {v(X+2,2)}")
    for i in range(2, 32):
        g(f"v_pk_add_f32 v[6:7], v[6:7], {v(X+2*i,2)}")
    g("v_add_f32 v6, v6, v7")
    reduce8(6)
    g(f"v_mul_f32 v6, 0x3b000000, v6\nv_mov_b32 v8, 0\nv_mov_b32 v9, 0")
    for i in range(64):
        g(f"v_sub_f32 v7, v{X+i}, v6\nv_fmac_f32 v{8+(i&1)}, v7, v7")
    g("v_add_f32 v8, v8, v9")
    reduce8(8)
    g(f"""
    v_mul_f32 v8, 0x3b000000, v8
    v_cvt_pk_bf16_f32 v6, v6, v8
    v_and_b32 v8, s{S_T1}, v6
    v_lshlrev_b32 v6, 16, v6
    v_add_f32 v8, 0x3727c5ac, v8
    v_cvt_pk_bf16_f32 v8, v8, v8
    v_and_b32 v8, s{S_T1}, v8
    v_sqrt_f32 v8, v8
    s_nop 0
    v_cvt_pk_bf16_f32 v8, v8, v8
    v_and_b32 v8, s{S_T1}, v8
    v_rcp_f32 v8, v8
    """)
    for i in range(32):
        p = X + 2 * i
        g(f"""
        v_sub_f32 v{p}, v{p}, v6
        v_sub_f32 v{p+1}, v{p+1}, v6
        v_cvt_pk_bf16_f32 v{p}, v{p}, v{p+1}
        v_and_b32 v{p+1}, s{S_T1}, v{p}
        v_lshlrev_b32 v{p}, 16, v{p}
        v_mul_f32 v{p}, v{p}, v8
        v_mul_f32 v{p+1}, v{p+1}, v8
        v_cvt_pk_bf16_f32 v{T+i}, v{p}, v{p+1}
        """)
        if i % 4 == 3:
            g(f"buffer_store_dwordx4 {v(T+i-3,4)}, v4, {WSD}, s{S_T0} offen sc1\ns_add_u32 s{S_T0}, s{S_T0}, 4096")


def load_w32(g, mats, stride):
    DM, RT, RN = 1, 2, 3
    g(f"""
    v_and_b32 v4, 63, v0
    v_lshrrev_b32 v5, 4, v4
    v_and_b32 v6, 15, v4
    v_lshlrev_b32 v7, 2, v5
    v_xor_b32 v6, v6, v7
    v_lshlrev_b32 v{DM}, 4, v6
    s_lshl_b32 s{S_T0}, s{S_WAVE}, 4
    v_add_u32 v6, s{S_T0}, v5
    v_mul_u32_u24 v6, {stride}, v6
    v_add3_u32 v{DM}, v{DM}, v6, s{S_COL}
    v_bfe_u32 v6, v4, 2, 2
    v_xor_b32 v7, s{S_WAVE}, v6
    v_lshlrev_b32 v7, 6, v7
    v_lshl_add_u32 v7, v6, 8, v7
    v_lshrrev_b32 v6, 5, v4
    v_lshl_add_u32 v7, v6, 11, v7
    v_add_u32 v7, {RING}, v7
    v_and_b32 v5, 1, v5
    v_and_b32 v6, 3, v4
    v_lshl_add_u32 v{RN}, v5, 5, v7
    v_lshl_add_u32 v{RN}, v6, 3, v{RN}
    v_lshl_add_u32 v{RT}, v5, 4, v7
    v_and_b32 v6, 1, v4
    v_lshl_add_u32 v{RT}, v6, 3, v{RT}
    v_bfe_u32 v6, v4, 1, 1
    v_lshl_add_u32 v{RT}, v6, 5, v{RT}
    s_lshl_b32 s{S_T3}, s{S_WAVE}, 12
    s_add_u32 s{S_T3}, s{S_T3}, {RING}
    """)
    stages = [(m, S) for m in mats for S in range(8)]

    def issue(i):
        m, S = stages[i]
        if S == 0: set_srd(g, m[0], m[1])
        for x in range(4):
            g(f"s_add_u32 m0, s{S_T3}, {(i % 4) * 16384 + x * 1024}\ns_mov_b32 s{S_T0}, {(64 * S + 4 * x) * stride}")
            g(f"buffer_load_dwordx4 v{DM}, {WD}, s{S_T0} offen lds")

    for i in range(3): issue(i)
    for i, (m, S) in enumerate(stages):
        g(f"s_waitcnt vmcnt({4 * min(2, len(stages) - 1 - i)}) lgkmcnt(0)\ns_barrier")
        if i + 3 < len(stages): issue(i + 3)
        for ks in range(4):
            for x in range(2):
                g(f"ds_read_b64_tr_b16 {rg(m[2], m[3] + 4*(4*S+ks) + 2*x, 2)}, v{RT if m[4] else RN} offset:{(i % 4)*16384 + ks*4096 + x*1024}")
    g("s_waitcnt lgkmcnt(0)")


def xn_dma(g, seg_sgpr_plus):
    g(f"s_add_u32 s{S_T0}, s{S_SEG}, {seg_sgpr_plus}\ns_lshl_b32 s{S_T0}, s{S_T0}, 15\ns_add_u32 s{S_T0}, s{S_T0}, s{S_XO}")
    for hh in range(2):
        g(f"s_add_u32 m0, s{S_LB}, {hh*4096}\ns_add_u32 s{S_T1}, s{S_T0}, {hh*4096}")
        for x in range(4):
            g(f"buffer_load_dwordx4 v1, {WSD}, s{S_T1} offen offset:{x*1024} sc1 lds")
    g(f"s_xor_b32 s{S_LB}, s{S_LB}, 32768")


def gemm_loop(g, tag, mats, nst, epilogue, fshift):
    XF, ACC = 16, 32
    g(f"""
    v_and_b32 v4, 63, v0
    v_lshlrev_b32 v1, 4, v4
    v_mov_b32 v2, v1
    s_lshl_b32 s{S_LB}, s{S_WAVE}, 13
    s_add_u32 s{S_XO}, s{S_LB}, {WS_XN}
    s_mov_b32 s{S_PREV}, -1
    """)
    spin_counter(g, f"{tag}_ln", DBG_LN, 64)
    xn_dma(g, 0)
    g(f"s_waitcnt vmcnt(0)\nL_{tag}_seg:")
    m0 = g.mark()
    g(f"s_waitcnt vmcnt({nst})\ns_barrier")
    xn_dma(g, NROWG)
    rd = lambda ks: f"ds_read_b128 {v(XF+4*(ks%4),4)}, v2 offset:{ks*1024}"
    for ks in range(3): g(rd(ks))
    for ks in range(32):
        g(f"s_waitcnt lgkmcnt({min(2, 31-ks)})")
        for j, m in enumerate(mats):
            w_, x_ = rg(m[2], m[3] + 4*ks, 4), v(XF + 4*(ks % 4), 4)
            g(mf32(ACC + 16*j, w_, x_, ks == 0) if m[4] else mf32(ACC + 16*j, x_, w_, ks == 0))
            if j == 0 and ks + 3 < 32: g(rd(ks + 3))
        if ks == 12:
            g(f"s_cmp_lt_i32 s{S_PREV}, 0\ns_cbranch_scc1 L_{tag}_nf\ns_waitcnt vmcnt(8)\ns_barrier")
            set_flag(g, f"{tag}_nf", S_PREV)
    g("v_xor_b32 v2, 0x8000, v2\ns_nop 7\ns_nop 1")
    epilogue(ACC)
    g(f"""
    s_lshl_b32 s{S_PREV}, s{S_SEG}, {fshift}
    s_add_u32 s{S_PREV}, s{S_PREV}, s{S_FA}
    s_add_u32 s{S_SEG}, s{S_SEG}, {NROWG}
    s_cmp_lt_u32 s{S_SEG}, {NSEG}
    s_cbranch_scc1 L_{tag}_seg
    """)
    bad = hazard.check(g.lines[m0:] + g.lines[m0:m0 + 40], tag)
    g("s_waitcnt vmcnt(0)\ns_barrier")
    set_flag(g, f"{tag}_lf", S_PREV)
    return bad


def tile_addr(g, dst, tshift):
    g(f"""
    v_bfe_u32 v5, v0, 4, 1
    v_mul_u32_u24 v{dst}, {tshift}, v5
    v_bfe_u32 v5, v0, 5, 1
    v_lshl_add_u32 v{dst}, v5, 8, v{dst}
    v_and_b32 v5, 15, v0
    v_lshl_add_u32 v{dst}, v5, 4, v{dst}
    s_lshl_b32 s{S_T0}, s{S_WAVE}, 10
    v_add_u32 v{dst}, s{S_T0}, v{dst}
    """)


def qkv_role(g):
    mats = [(P_WK, 4*MB, "a", 0, 1), (P_WV, 4*MB, "a", 128, 0), (P_WQ, 4*MB, "v", 128, 1)]
    m0 = g.mark()
    g(f"""
    s_mul_i32 s{S_HD}, s{S_WI}, 52429
    s_lshr_b32 s{S_HD}, s{S_HD}, 18
    s_mul_i32 s{S_T0}, s{S_HD}, {NROWG}
    s_sub_u32 s{S_SEG}, s{S_WI}, s{S_T0}
    s_lshl_b32 s{S_COL}, s{S_HD}, 8
    s_add_u32 s{S_FA}, s{S_COL}, {WS_FLAGS}
    """)
    clear_flags(g, 2)
    count_up(g, "qkv_in", DBG_INIT)
    load_w32(g, mats, 8192)
    tile_addr(g, 8, 4096)
    g(f"""
    v_bfe_u32 v5, v0, 4, 1
    v_lshlrev_b32 v9, 10, v5
    v_bfe_u32 v5, v0, 5, 1
    v_lshl_add_u32 v9, v5, 9, v9
    v_and_b32 v5, 15, v0
    v_lshl_add_u32 v9, v5, 4, v9
    s_lshl_b32 s{S_T0}, s{S_WAVE}, 11
    s_add_u32 s{S_T0}, s{S_T0}, 8192
    v_add_u32 v9, s{S_T0}, v9
    """)
    bad = hazard.check(g.lines[m0:], "qkv prologue")

    def epi(ACC):
        P = 80
        g(f"""
        s_lshl_b32 s{S_O1}, s{S_SEG}, 5
        s_add_u32 s{S_O1}, s{S_O1}, s{S_HD}
        s_lshl_b32 s{S_O2}, s{S_O1}, 13
        s_add_u32 s{S_O2}, s{S_O2}, {WS_Q}
        s_lshl_b32 s{S_O1}, s{S_O1}, 14
        s_add_u32 s{S_O1}, s{S_O1}, {WS_KV}
        """)
        for rho in range(2):
            for x in range(4): g(f"v_cvt_pk_bf16_f32 v{P+4*rho+x}, v{ACC+8*rho+x}, v{ACC+8*rho+4+x}")
            g(f"buffer_store_dwordx4 {v(P+4*rho,4)}, v8, {WSD}, s{S_O1} offen offset:{512*rho} sc1")
        for be in range(2):
            for ri in range(4):
                r = ACC + 16 + 8*(ri & 1) + 4*(ri >> 1) + 2*be
                g(f"v_cvt_pk_bf16_f32 v{P+8+4*be+ri}, v{r}, v{r+1}")
            g(f"buffer_store_dwordx4 {v(P+8+4*be,4)}, v9, {WSD}, s{S_O1} offen offset:{256*be} sc1")
        for rho in range(2):
            for x in range(4): g(f"v_cvt_pk_bf16_f32 v{P+16+4*rho+x}, v{ACC+32+8*rho+x}, v{ACC+32+8*rho+4+x}")
            g(f"buffer_store_dwordx4 {v(P+16+4*rho,4)}, v8, {WSD}, s{S_O2} offen offset:{512*rho} sc1")

    return bad + gemm_loop(g, "qkv", mats, 6, epi, 2)


def ffn_role(g):
    mats = [(P_WG, 512*2752, "a", 0, 1), (P_WU, 512*2752, "a", 128, 1)]
    m0 = g.mark()
    g(f"""
    s_sub_u32 s{S_O1}, s{S_WI}, 160
    s_mul_i32 s{S_HD}, s{S_O1}, 52429
    s_lshr_b32 s{S_HD}, s{S_HD}, 18
    s_mul_i32 s{S_T0}, s{S_HD}, {NROWG}
    s_sub_u32 s{S_SEG}, s{S_O1}, s{S_T0}
    s_lshl_b32 s{S_COL}, s{S_HD}, 8
    s_lshl_b32 s{S_FA}, s{S_HD}, 2
    s_add_u32 s{S_FA}, s{S_FA}, {WS_HF}
    """)
    layernorm(g, S_O1)
    count_up(g, "ffn_lnup", DBG_LN)
    clear_flags(g, 6)
    count_up(g, "ffn_in", DBG_INIT)
    g(f"s_cmp_ge_u32 s{S_HD}, 11\ns_cbranch_scc1 L_p3")
    load_w32(g, mats, 2752)
    tile_addr(g, 8, HM_SEG // 2)
    g(f"s_mov_b32 s{S_C0}, 0xffff0000\ns_mov_b32 s{S_C1}, 0xbdd2d3e8\ns_mov_b32 s{S_C2}, 0xc0135761")
    bad = hazard.check(g.lines[m0:], "ffn prologue")

    def epi(ACC):
        P, T = 80, 96
        U = ACC + 16
        g(f"""
        s_mul_i32 s{S_O1}, s{S_SEG}, {HM_SEG}
        s_lshl_b32 s{S_T0}, s{S_HD}, 12
        s_add_u32 s{S_O1}, s{S_O1}, s{S_T0}
        s_add_u32 s{S_O1}, s{S_O1}, {WS_HMID}
        v_mov_b32 v{T+16}, s{S_C2}
        """)

        def rnd(x, y):
            g(f"v_cvt_pk_bf16_f32 v{x}, v{x}, v{y}\nv_and_b32 v{y}, s{S_C0}, v{x}\nv_lshlrev_b32 v{x}, 16, v{x}")
        for rho in range(2):
            idx = [8*rho + i for i in range(8)]
            for x in range(4):
                rnd(ACC + 8*rho + x, ACC + 8*rho + 4 + x); rnd(U + 8*rho + x, U + 8*rho + 4 + x)
            for i in idx: g(f"v_mul_f32 v{T+i}, v{ACC+i}, v{ACC+i}")
            for i in idx: g(f"v_fma_f32 v{T+i}, v{T+i}, s{S_C1}, v{T+16}")
            for i in idx: g(f"v_mul_f32 v{T+i}, v{T+i}, v{ACC+i}")
            for i in idx: g(f"v_exp_f32 v{T+i}, v{T+i}")
            for i in idx: g(f"v_add_f32 v{T+i}, 1.0, v{T+i}")
            for i in idx: g(f"v_rcp_f32 v{T+i}, v{T+i}")
            for i in idx: g(f"v_mul_f32 v{ACC+i}, v{ACC+i}, v{T+i}")
            for x in range(4): rnd(ACC + 8*rho + x, ACC + 8*rho + 4 + x)
            for i in idx: g(f"v_mul_f32 v{ACC+i}, v{ACC+i}, v{U+i}")
            for x in range(4): g(f"v_cvt_pk_bf16_f32 v{P+4*rho+x}, v{ACC+8*rho+x}, v{ACC+8*rho+4+x}")
            g(f"buffer_store_dwordx4 {v(P+4*rho,4)}, v8, {WSD}, s{S_O1} offen offset:{512*rho} sc1")

    return bad + gemm_loop(g, "ffn", mats, 2, epi, 6)


def p3_role(g, opt):
    LN16, KPA, RWA, RRA, XA, KMW, KMR, VMW, VMR, HFA, OFA = 1, 2, 3, 4, 5, 6, 7, 8, 9, 12, 13
    GV, XV = 14, 16
    ACC, SC, PB, OA, KM, VM = 20, 28, 44, 52, 68, 84
    ST = 92
    WDR = 168
    L_RED, L_KM, L_VM = 0, 8192, 12288
    S_TH, S_SCL, S_QO, S_KO, S_PO, S_HO = S_HD, S_C1, S_O1, S_O2, S_FA, S_PREV
    m0 = g.mark()
    DM, RA = 1, 2
    g(f"""
    s_lshr_b32 s{S_TH}, s{S_TK}, 4
    s_and_b32 s{S_COL}, s{S_TK}, 15
    s_lshl_b32 s{S_COL}, s{S_COL}, 6
    v_and_b32 v4, 63, v0
    v_lshrrev_b32 v5, 4, v4
    v_bfe_u32 v6, v4, 2, 2
    v_and_b32 v7, 1, v6
    v_lshlrev_b32 v{DM}, 4, v7
    v_lshl_add_u32 v{DM}, v5, 2, v{DM}
    v_lshrrev_b32 v7, 1, v6
    v_add_u32 v{DM}, v{DM}, v7
    v_lshlrev_b32 v{DM}, 10, v{DM}
    v_and_b32 v7, 1, v5
    v_lshlrev_b32 v7, 1, v7
    v_and_b32 v8, 3, v4
    v_xor_b32 v8, v8, v7
    v_lshl_add_u32 v{DM}, v8, 4, v{DM}
    v_add_u32 v{DM}, s{S_COL}, v{DM}
    v_lshrrev_b32 v8, 2, v4
    v_lshlrev_b32 v{RA}, 6, v8
    v_lshl_add_u32 v{RA}, v7, 4, v{RA}
    v_and_b32 v8, 3, v4
    v_lshl_add_u32 v{RA}, v8, 3, v{RA}
    s_lshl_b32 s{S_T3}, s{S_WAVE}, 15
    v_add_u32 v{RA}, s{S_T3}, v{RA}
    v_xor_b32 v{RA+1}, 32, v{RA}
    s_lshl_b32 s{S_T1}, s{S_WAVE}, 20
    s_mul_i32 s{S_T2}, s{S_WAVE}, {11*32768}
    """)
    steps = [("o", k) for k in range(32)] + [("d", k) for k in range(11)]
    AH = 12

    def issue(i):
        m, k = steps[i]
        if k == 0: set_srd(g, P_WO if m == "o" else P_WD, 4*MB if m == "o" else 1376*1024)
        for x in range(2):
            g(f"s_add_u32 m0, s{S_T3}, {(i % 16)*2048 + x*1024}\ns_add_u32 s{S_T0}, s{S_T1 if m == 'o' else S_T2}, {k*32768 + x*2048}")
            g(f"buffer_load_dwordx4 v{DM}, {WD}, s{S_T0} offen lds")

    wreg = lambda m, k, t, o=0, n=4: a(8*k + 4*t + o, n) if m == "o" else v(WDR + 8*k + 4*t + o, n)
    for i in range(AH): issue(i)
    for i, (m, k) in enumerate(steps):
        g(f"s_waitcnt vmcnt({2*min(AH - 1, len(steps) - 1 - i)}) lgkmcnt(8)")
        if i + AH < len(steps): issue(i + AH)
        for t in range(2):
            for x in range(2):
                g(f"ds_read_b64_tr_b16 {wreg(m, k, t, 2*x, 2)}, v{RA+t} offset:{(i % 16)*2048 + x*1024}")
    g("s_waitcnt lgkmcnt(0)\ns_barrier")
    g(f"""
    v_and_b32 v20, 63, v0
    v_lshrrev_b32 v21, 4, v20
    v_and_b32 v22, 15, v20
    v_lshlrev_b32 v{LN16}, 4, v20
    v_bfe_u32 v23, v22, 1, 1
    v_lshlrev_b32 v{KPA}, 3, v23
    v_lshrrev_b32 v23, 2, v22
    v_lshl_add_u32 v{KPA}, v23, 1, v{KPA}
    v_and_b32 v24, 1, v22
    v_add_u32 v{KPA}, v{KPA}, v24
    v_lshl_add_u32 v{KPA}, v21, 4, v{KPA}
    v_lshlrev_b32 v{KPA}, 4, v{KPA}
    v_lshl_add_u32 v{KMR}, v23, 1, v24
    v_lshlrev_b32 v{KMR}, 4, v{KMR}
    v_mul_u32_u24 v24, 144, v21
    v_add_u32 v{KMR}, v{KMR}, v24
    v_add_u32 v{KMR}, {L_KM}, v{KMR}
    v_mul_u32_u24 v{KMW}, 144, v23
    v_lshl_add_u32 v{KMW}, v21, 5, v{KMW}
    v_and_b32 v24, 3, v22
    v_lshl_add_u32 v{KMW}, v24, 2, v{KMW}
    s_mul_i32 s{S_T0}, s{S_WAVE}, 576
    s_add_u32 s{S_T0}, s{S_T0}, {L_KM}
    v_add_u32 v{KMW}, s{S_T0}, v{KMW}
    v_lshlrev_b32 v{VMW}, 3, v0
    v_add_u32 v{VMW}, {L_VM}, v{VMW}
    s_lshr_b32 s{S_T0}, s{S_WAVE}, 1
    s_lshl_b32 s{S_T0}, s{S_T0}, 10
    s_add_u32 s{S_T0}, s{S_T0}, {L_VM}
    v_lshlrev_b32 v{VMR}, 3, v20
    v_add_u32 v{VMR}, s{S_T0}, v{VMR}
    s_lshl_b32 s{S_T0}, s{S_WAVE}, 11
    v_lshlrev_b32 v{RWA}, 7, v22
    v_lshl_add_u32 v{RWA}, v21, 4, v{RWA}
    v_add_u32 v{RWA}, s{S_T0}, v{RWA}
    v_lshlrev_b32 v{RRA}, 3, v0
    v_lshrrev_b32 v24, 4, v0
    v_lshlrev_b32 v{XA}, 10, v24
    v_lshl_add_u32 v{XA}, v22, 2, v{XA}
    s_lshl_b32 s{S_T0}, s{S_TH}, 14
    s_add_u32 s{S_T0}, s{S_T0}, s{S_COL}
    v_add_u32 v{XA}, s{S_T0}, v{XA}
    v_min_u32 v{HFA}, 10, v20
    v_lshlrev_b32 v{HFA}, 2, v{HFA}
    v_and_b32 v{OFA}, 7, v20
    s_lshl_b32 s{S_T0}, s{S_WAVE}, 3
    v_add_u32 v{OFA}, s{S_T0}, v{OFA}
    v_lshlrev_b32 v{OFA}, 2, v{OFA}
    s_and_b32 s{S_T0}, s{S_WAVE}, 1
    s_lshl_b32 s{S_T0}, s{S_T0}, 4
    v_add_u32 v22, s{S_T0}, v22
    v_lshlrev_b32 v21, 1, v21
    v_sub_u32 v22, v22, v21
    """)
    for T in range(2):
        for r in range(4):
            g(f"v_cmp_le_i32 s[{S_MK+2*(4*T+r)}:{S_MK+2*(4*T+r)+1}], {16*T + 8*(r >> 1) + (r & 1)}, v22")
    g(f"""
    s_mov_b32 s{S_OUT}, s{P_OUT}
    s_mov_b32 s{S_OUT+1}, s{P_OUT+1}
    s_mov_b32 s{S_OUT+2}, {2*MB}
    s_mov_b32 s{S_OUT+3}, 0x20000
    s_mov_b32 s{S_SCL}, 0x3e0293ee
    s_mov_b32 s{S_C0}, 0xffff0000
    s_mov_b32 s{S_C2}, 0xbfb8aa3b
    s_sub_u32 s{S_SEG}, s{S_XCC}, 1
    v_mov_b32 v{PB+5}, 0
    v_mov_b32 v{PB+6}, 0
    """)
    set_srd(g, P_X, 2 * MB)
    spin_counter(g, "p3_init", DBG_INIT, 224)
    bad = hazard.check(g.lines[m0:], "p3 prologue")

    def reduce(dst):
        g("s_nop 7")
        for t in range(2): g(f"ds_write_b128 v{RWA}, {v(ACC+4*t,4)} offset:{L_RED + 64*t}")
        g("s_waitcnt lgkmcnt(0)\ns_barrier")
        for x in range(4): g(f"ds_read_b64 {v(ACC+2*x,2)}, v{RRA} offset:{L_RED + 2048*x}")
        g(f"""
        s_waitcnt lgkmcnt(0)
        v_pk_add_f32 {v(ACC,2)}, {v(ACC,2)}, {v(ACC+2,2)}
        v_pk_add_f32 {v(ACC+4,2)}, {v(ACC+4,2)}, {v(ACC+6,2)}
        v_pk_add_f32 {v(ACC,2)}, {v(ACC,2)}, {v(ACC+4,2)}
        v_cvt_pk_bf16_f32 v{dst}, v{ACC}, v{ACC+1}
        v_and_b32 v{dst+1}, s{S_C0}, v{dst}
        v_lshlrev_b32 v{dst}, 16, v{dst}
        """)

    g("L_p3_seg:")
    m1 = g.mark()
    g(f"s_lshl_b32 s{S_T0}, s{S_SEG}, 6\ns_add_u32 s{S_T2}, s{S_T0}, {WS_HF}")
    spin_flags(g, "p3_hf", HFA, S_T2)
    g(f"""
    s_lshl_b32 s{S_T0}, s{S_SEG}, 1
    s_add_u32 s{S_T0}, s{S_T0}, s{S_TH}
    s_mul_i32 s{S_HO}, s{S_T0}, {HM_SEG // 2}
    s_mul_i32 s{S_T1}, s{S_WAVE}, {11*1024}
    s_add_u32 s{S_HO}, s{S_HO}, s{S_T1}
    s_add_u32 s{S_HO}, s{S_HO}, {WS_HMID}
    s_cmp_eq_u32 s{S_WAVE}, 3
    s_cselect_b32 s{S_T1}, 0x40000000, 0
    """)
    for k in range(11):
        if k == 10: g(f"s_add_u32 s{S_HO}, s{S_HO}, s{S_T1}")
        g(f"buffer_load_dwordx4 {v(ST+4*k,4)}, v{LN16}, {WSD}, s{S_HO} offen offset:{(k & 3)*1024} sc1")
        if k & 3 == 3: g(f"s_add_u32 s{S_HO}, s{S_HO}, 4096")
    g(f"s_lshl_b32 s{S_XO}, s{S_SEG}, 15\nbuffer_load_dword v{XV}, v{XA}, {WD}, s{S_XO} offen")
    for k in range(11):
        g(f"s_waitcnt vmcnt({11-k})")
        for t in range(2): g(mf16(ACC + 4*t, wreg("d", k, t), v(ST + 4*k, 4), k == 0))
    reduce(GV)
    g(f"""
    v_mul_f32 v{ACC}, s{S_C2}, v{GV}
    v_mul_f32 v{ACC+1}, s{S_C2}, v{GV+1}
    v_exp_f32 v{ACC}, v{ACC}
    v_exp_f32 v{ACC+1}, v{ACC+1}
    s_nop 0
    v_add_f32 v{ACC}, 1.0, v{ACC}
    v_add_f32 v{ACC+1}, 1.0, v{ACC+1}
    v_rcp_f32 v{ACC}, v{ACC}
    v_rcp_f32 v{ACC+1}, v{ACC+1}
    s_waitcnt vmcnt(0)
    v_pk_mul_f32 {v(GV,2)}, {v(GV,2)}, {v(ACC,2)}
    v_cvt_pk_bf16_f32 v{GV}, v{GV}, v{GV+1}
    v_and_b32 v{GV+1}, s{S_C0}, v{GV}
    v_lshlrev_b32 v{GV}, 16, v{GV}
    v_and_b32 v{XV+1}, s{S_C0}, v{XV}
    v_lshlrev_b32 v{XV}, 16, v{XV}
    """)
    QR_, KR_, VR_ = ST, ST + 16, ST + 48
    g(f"""
    s_lshl_b32 s{S_T0}, s{S_TK}, 6
    s_add_u32 s{S_T0}, s{S_T0}, s{S_SEG}
    s_lshl_b32 s{S_T0}, s{S_T0}, 2
    s_add_u32 s{S_T2}, s{S_T0}, {WS_FLAGS}
    v_mov_b32 v10, 0
    """)
    spin_flags(g, "p3_kv", 10, S_T2)
    g(f"""
    s_lshl_b32 s{S_T0}, s{S_SEG}, 5
    s_add_u32 s{S_T0}, s{S_T0}, s{S_TK}
    s_lshl_b32 s{S_QO}, s{S_T0}, 13
    s_and_b32 s{S_T1}, s{S_WAVE}, 1
    s_lshl_b32 s{S_T1}, s{S_T1}, 12
    s_add_u32 s{S_QO}, s{S_QO}, s{S_T1}
    s_add_u32 s{S_QO}, s{S_QO}, {WS_Q}
    s_lshl_b32 s{S_KO}, s{S_T0}, 14
    s_add_u32 s{S_KO}, s{S_KO}, {WS_KV}
    s_lshl_b32 s{S_PO}, s{S_T0}, 2
    s_add_u32 s{S_PO}, s{S_PO}, s{S_WAVE}
    s_lshl_b32 s{S_PO}, s{S_PO}, 10
    s_add_u32 s{S_PO}, s{S_PO}, {WS_PUB}
    s_add_u32 s{S_T1}, s{S_KO}, 4096
    s_lshr_b32 s{S_T2}, s{S_WAVE}, 1
    s_lshl_b32 s{S_T2}, s{S_T2}, 12
    s_add_u32 s{S_T2}, s{S_T2}, s{S_KO}
    s_add_u32 s{S_T2}, s{S_T2}, 8192
    """)
    for x in range(4):
        g(f"buffer_load_dwordx4 {v(QR_+4*x,4)}, v{LN16}, {WSD}, s{S_QO} offen offset:{x*1024} sc1")
        g(f"buffer_load_dwordx4 {v(KR_+4*x,4)}, v{KPA}, {WSD}, s{S_KO} offen offset:{x*1024} sc1")
        g(f"buffer_load_dwordx4 {v(KR_+16+4*x,4)}, v{KPA}, {WSD}, s{S_T1} offen offset:{x*1024} sc1")
    for x in range(4):
        g(f"buffer_load_dwordx4 {v(VR_+4*x,4)}, v{LN16}, {WSD}, s{S_T2} offen offset:{x*1024} sc1")
    for x in range(4):
        g(f"s_waitcnt vmcnt({4 + 3*(3-x)})")
        for T in range(2): g(mf16(SC + 4*T, v(KR_ + 16*T + 4*x, 4), v(QR_ + 4*x, 4), x == 0))
    MX, MY = SC + 12, SC + 13
    g(f"v_mov_b32 v{MY}, 0xd028965f\ns_nop 7")
    for i in range(8): g(f"v_cndmask_b32 v{SC+i}, v{MY}, v{SC+i}, s[{S_MK+2*i}:{S_MK+2*i+1}]")
    g(f"v_max3_f32 v{MX}, v{SC}, v{SC+1}, v{SC+2}\nv_max3_f32 v{MX}, v{MX}, v{SC+3}, v{SC+4}\nv_max3_f32 v{MX}, v{MX}, v{SC+5}, v{SC+6}\nv_max_f32 v{MX}, v{MX}, v{SC+7}")
    g(f"""
    s_mov_b32 s{S_SPIN}, 0
    L_p3_pub:
    buffer_load_dwordx4 {v(OA,4)}, v{LN16}, {WSD}, s{S_PO} offen sc1
    s_add_u32 s{S_SPIN}, s{S_SPIN}, 1
    s_cmp_gt_u32 s{S_SPIN}, {SPIN_MAX}
    s_cbranch_scc1 L_p3_pub_out
    s_waitcnt vmcnt(0)
    v_max3_u32 v11, v{OA}, v{OA+1}, v{OA+2}
    v_max_u32 v11, v11, v{OA+3}
    v_cmp_eq_u32 vcc, -1, v11
    s_cbranch_vccz L_p3_pub_out
    s_sleep {opt.get('psleep', 2)}
    s_branch L_p3_pub
    L_p3_pub_out:
    s_waitcnt vmcnt(0)
    ds_write2_b32 v{KMW}, v{OA}, v{OA+1} offset0:0 offset1:4
    ds_write_b64 v{VMW}, {v(OA+2,2)}
    s_waitcnt lgkmcnt(0)
    s_barrier
    """)
    for x in range(4): g(f"ds_read_b128 {v(KM+4*x,4)}, v{KMR} offset:{576*x}")
    for x in range(2): g(f"ds_read_b64 {v(VM+2*x,2)}, v{VMR} offset:{512*x}")
    for x in range(4):
        g(f"s_waitcnt lgkmcnt({5-x})")
        g(mf16(SC + 8, v(KM + 4*x, 4), v(QR_ + 4*x, 4), x == 0))
    g(f"""
    s_lshl_b32 s{S_T0}, s{S_SEG}, 1
    s_and_b32 s{S_T1}, s{S_WAVE}, 1
    s_add_u32 s{S_T0}, s{S_T0}, s{S_T1}
    s_lshl_b32 s{S_T0}, s{S_T0}, 5
    s_add_u32 s{S_T0}, s{S_T0}, s{S_TK}
    s_lshl_b32 s{S_T0}, s{S_T0}, 2
    s_and_b32 s{S_T1}, s{S_WAVE}, 2
    s_add_u32 s{S_T0}, s{S_T0}, s{S_T1}
    s_lshl_b32 s{S_T0}, s{S_T0}, 10
    s_add_u32 s{S_T0}, s{S_T0}, {WS_O}
    v_max3_f32 v{MX}, v{MX}, v{SC+8}, v{SC+9}
    """)

    def cross(r, t, op):
        for sw in (16, 32):
            g(f"v_mov_b32 v{t}, v{r}\ns_nop 1\nv_permlane{sw}_swap_b32 v{r}, v{t}\n{op} v{r}, v{r}, v{t}")
    cross(MX, MY, "v_max_f32")
    g(f"v_mul_f32 v{MX}, s{S_SCL}, v{MX}")
    for i in range(10): g(f"v_fma_f32 v{SC+i}, v{SC+i}, s{S_SCL}, -v{MX}")
    for i in range(10): g(f"v_exp_f32 v{SC+i}, v{SC+i}")
    for ri in range(4):
        r = SC + 4*(ri & 1) + 2*(ri >> 1)
        g(f"v_cvt_pk_bf16_f32 v{PB+ri}, v{r}, v{r+1}")
    g(f"v_cvt_pk_bf16_f32 v{PB+4}, v{SC+8}, v{SC+9}\nv_cvt_pk_bf16_f32 v{PB+7}, v{SC+8}, v{SC+9}\ns_waitcnt lgkmcnt(0)")
    for e in range(4):
        g(mf16(OA + 4*e, v(VR_ + 4*e, 4), v(PB, 4), True))
        g(f"v_add_f32 v{SC+2*e}, v{SC+2*e}, v{SC+2*e+1}")
    sums = [f"v_add_f32 v{SC+8}, v{SC+8}, v{SC+9}", f"v_add_f32 v{SC}, v{SC}, v{SC+2}", f"v_add_f32 v{SC+4}, v{SC+4}, v{SC+6}", f"v_add_f32 v{SC}, v{SC}, v{SC+8}"]
    for e in range(4):
        g(f"v_mfma_f32_16x16x16_bf16 {v(OA+4*e,4)}, {v(VM+2*(e >> 1),2)}, {v(PB+4+2*(e & 1),2)}, {v(OA+4*e,4)}")
        g(sums[e])
    g(f"v_add_f32 v{SC}, v{SC}, v{SC+4}")
    cross(SC, SC + 1, "v_add_f32")
    g(f"v_rcp_f32 v{SC}, v{SC}\ns_nop 0")
    for x in range(2):
        for i in range(8): g(f"v_mul_f32 v{OA+8*x+i}, v{OA+8*x+i}, v{SC}")
        for r in range(4): g(f"v_cvt_pk_bf16_f32 v{KM+4*x+r}, v{OA+8*x+r}, v{OA+8*x+4+r}")
        g(f"buffer_store_dwordx4 {v(KM+4*x,4)}, v{LN16}, {WSD}, s{S_T0} offen offset:{x*1024} sc1")
    g(f"""
    s_lshl_b32 s{S_T2}, s{S_SEG}, 7
    s_add_u32 s{S_T2}, s{S_T2}, {WS_OF}
    s_lshl_b32 s{S_T1}, s{S_TK}, 2
    s_add_u32 s{S_T1}, s{S_T1}, s{S_T2}
    s_lshl_b32 s{S_T0}, s{S_SEG}, 1
    s_add_u32 s{S_T0}, s{S_T0}, s{S_TH}
    s_lshl_b32 s{S_T0}, s{S_T0}, 2
    s_add_u32 s{S_T0}, s{S_T0}, s{S_WAVE}
    s_lshl_b32 s{S_T0}, s{S_T0}, 15
    s_add_u32 s{S_HO}, s{S_T0}, {WS_O}
    s_waitcnt vmcnt(0)
    s_barrier
    """)
    set_flag(g, "p3_of", S_T1)
    spin_flags(g, "p3_ow", OFA, S_T2, 0)
    NB = 16

    def old(k):
        g(f"buffer_load_dwordx4 {v(ST+4*(k % NB),4)}, v{LN16}, {WSD}, s{S_HO} offen offset:{(k & 3)*1024} sc1")
        if k & 3 == 3: g(f"s_add_u32 s{S_HO}, s{S_HO}, 4096")
    for k in range(NB): old(k)
    for k in range(32):
        g(f"s_waitcnt vmcnt({min(NB - 1, 31 - k)})")
        for t in range(2): g(mf16(ACC + 4*t, wreg("o", k, t), v(ST + 4*(k % NB), 4), k == 0))
        if k + NB < 32: old(k + NB)
    reduce(SC)
    g(f"""
    v_pk_mul_f32 {v(SC,2)}, {v(SC,2)}, {v(GV,2)}
    v_cvt_pk_bf16_f32 v{SC}, v{SC}, v{SC+1}
    v_and_b32 v{SC+1}, s{S_C0}, v{SC}
    v_lshlrev_b32 v{SC}, 16, v{SC}
    v_pk_add_f32 {v(SC,2)}, {v(SC,2)}, {v(XV,2)}
    v_cvt_pk_bf16_f32 v{SC}, v{SC}, v{SC+1}
    buffer_store_dword v{SC}, v{XA}, s[{S_OUT}:{S_OUT+3}], s{S_XO} offen
    s_add_u32 s{S_SEG}, s{S_SEG}, 7
    s_cmp_lt_u32 s{S_SEG}, {NSEG}
    s_barrier
    s_cbranch_scc1 L_p3_seg
    """)
    bad += hazard.check(g.lines[m1:], "p3 loop")
    g("s_waitcnt vmcnt(0)\ns_endpgm")
    return bad


def worker_roles(g, opt):
    m0 = g.mark()
    worker_init(g)
    bad = hazard.check(g.lines[m0:], "worker init")
    g(f"s_cmp_ge_u32 s{S_WI}, 160\ns_cbranch_scc1 L_ffn")
    bad += qkv_role(g)
    g("s_branch L_p3\nL_ffn:")
    bad += ffn_role(g)
    g("L_p3:")
    bad += p3_role(g, opt)
    return bad
```

```python
from asmlib import *
from layout import *

S_WS = 4
S_W = 8
P_X, P_MEM0, P_WQ, P_WK, P_WV, P_WO, P_SEG, P_BX, P_WG, P_WU, P_WD, P_OUT, P_DBG, P_WSP = range(16, 44, 2)
S_XCC, S_TK, S_WAVE = 44, 45, 46
S_SPIN = 3
S_SENT = 12
SENT = 0xffbfffbf
S_T0, S_T1, S_T2, S_T3 = 47, 48, 49, 50
S_STEP, S_H1ST, S_H1ST2, S_H1LD, S_H1LD2, S_TAG, S_H2LD, S_H2LD2, S_H2ST, S_KV, S_PUB, S_FREE0, S_SC, S_FL, S_FREE1 = range(51, 66)
S_HF = 66
S_RDY = 68
S_ONE = 70
S_H2RS, S_F12 = 72, 73
S_KV2, S_VV = 100, 101
IDX, LW, LM, H1ST, H2ST, QW, QR, KR, OW, FLG, TCH = range(1, 12)
VN, PA, VX, ACC, M, POOL, WRES = 12, 20, 24, 40, 64, 96, 144
FV, GM, FAD, FST = VX + 3, VX + 7, VX + 11, VX + 15
A = [ACC + 4 * i for i in range(6)]
LDS_WAVE = 36864
LDS_MISC = 147456
L_KX = LDS_MISC
L_QK = LDS_MISC + 8192
L_O = L_QK + 4096
SPIN_MAX = 1 << 13

G_R = [[(m, 0, t), (m, 1, t)] for m, t in (("q", 0), ("v", 1), ("k", 3), ("q", 7), ("k", 7), ("v", 7))]
G_M = G_R[1] + G_R[2] + G_R[3]
G_QK = G_R[4] + G_R[5] + G_R[0]
G_O = [("o", 6, 0), ("o", 6, 1), ("o", 7, 0), ("o", 7, 1), ("o", 5, 0), ("o", 5, 1)]
LDS_IDX = {k: i for i, k in enumerate(G_M + G_O + G_QK)}
LOC = {}
for i, k in enumerate(G_O):
    LOC[k] = ("v", POOL + 8 * i)
for k in G_M + G_QK:
    LOC[k] = ("v", POOL + 32 + 8 * k[1])
_n = 0
for k in [(m, x, t) for m in "qkv" for t in range(8) for x in range(2)] + [("o", x, t) for x in range(8) for t in range(2)]:
    if k in LOC: continue
    LOC[k] = ("a", 8 * _n) if _n < 32 else ("v", WRES + 8 * (_n - 32))
    _n += 1
assert _n == 46


def rng(f, b, n):
    return a(b, n) if f == "a" else v(b, n)


def wop(k):
    return rng(LOC[k][0], LOC[k][1], 8)


def smf(d, aop, k, abid=0):
    b = wop(k) if isinstance(k, tuple) else k
    return f"v_smfmac_f32_16x16x64_bf16 {v(d,4)}, {v(aop,4)}, {b}, {v(IDX)}" + (" abid:1" if abid else "")


def mf(d, x, y, c):
    return f"v_mfma_f32_16x16x32_bf16 {v(d,4)}, {v(x,4)}, {v(y,4)}, " + ("0" if c is None else v(c, 4))


def stage_reads(grp):
    return [f"ds_read_b128 {v(LOC[k][1]+4*hh,4)}, {v(LW)} offset:{LDS_IDX[k]*2048+hh*1024}" for k in grp for hh in range(2)]


def zero(base, n):
    return [f"v_mov_b64 {v(base+2*i,2)}, 0" for i in range(n // 2)]


def set_srd(g, ptr, nbytes):
    g(f"s_mov_b32 s{S_W}, s{ptr}\ns_mov_b32 s{S_W+1}, s{ptr+1}\ns_mov_b32 s{S_W+2}, {nbytes}\ns_mov_b32 s{S_W+3}, 0x20000")


def load_weights(g, hooks):
    RA, RO, DQ, DO = 10, 12, 20, 21
    T0, T1, T2, T3 = 56, 57, 58, 59
    g(f"""
    v_and_b32 v{T0}, 63, v0
    v_lshrrev_b32 v{T1}, 4, v{T0}
    v_and_b32 v{T2}, 15, v{T0}
    s_and_b32 s{S_T0}, s{S_WAVE}, 1
    s_lshr_b32 s{S_T1}, s{S_WAVE}, 1
    s_lshl_b32 s{S_T1}, s{S_T1}, 6
    s_add_u32 s{S_T1}, s{S_T1}, s{S_T0}
    s_lshl_b32 s{S_T1}, s{S_T1}, 14
    s_lshl_b32 s{S_T2}, s{S_TK}, 8
    s_add_u32 s{S_T1}, s{S_T1}, s{S_T2}
    s_lshl_b32 s{S_T0}, s{S_T0}, 3
    v_lshlrev_b32 v{T3}, 1, v{T1}
    v_xor_b32 v{T3}, v{T3}, v{T2}
    v_xor_b32 v{DQ}, s{S_T0}, v{T3}
    v_lshlrev_b32 v{DQ}, 4, v{DQ}
    v_lshlrev_b32 v{DO}, 4, v{T3}
    v_lshrrev_b32 v{T2}, 1, v{T1}
    v_and_b32 v{T3}, 1, v{T1}
    v_lshl_add_u32 v{DQ}, v{T2}, 16, v{DQ}
    v_lshl_add_u32 v{DQ}, v{T3}, 17, v{DQ}
    v_add_u32 v{DQ}, s{S_T1}, v{DQ}
    v_lshl_add_u32 v{DO}, v{T2}, 12, v{DO}
    v_lshl_add_u32 v{DO}, v{T3}, 14, v{DO}
    s_lshl_b32 s{S_T1}, s{S_TK}, 17
    s_lshl_b32 s{S_T2}, s{S_WAVE}, 8
    s_add_u32 s{S_T1}, s{S_T1}, s{S_T2}
    v_add_u32 v{DO}, s{S_T1}, v{DO}
    v_xor_b32 v{DO+1}, 0x80, v{DO}
    """)
    g(f"""
    v_bfe_u32 v{T2}, v{T0}, 2, 2
    v_and_b32 v{T3}, 1, v{T1}
    v_lshl_add_u32 v{T3}, v{T3}, 2, v{T2}
    v_lshlrev_b32 v{T3}, 5, v{T3}
    v_lshl_add_u32 v{T3}, v{T2}, 8, v{T3}
    v_and_b32 v{T2}, 3, v{T0}
    v_lshl_add_u32 v{T3}, v{T2}, 3, v{T3}
    s_lshl_b32 s{S_T0}, s{S_WAVE}, 6
    v_xor_b32 v{RA}, s{S_T0}, v{T3}
    s_mov_b32 s{S_T0}, {LDS_WAVE}
    v_mul_lo_u32 v{T2}, s{S_T0}, v{T1}
    v_add_u32 v{RA}, v{RA}, v{T2}
    v_xor_b32 v{RA+1}, 32, v{RA}
    s_mul_i32 s{S_T3}, s{S_WAVE}, {LDS_WAVE}
    v_lshl_add_u32 v{RO}, v{T1}, 10, v{T3}
    v_add_u32 v{RO}, s{S_T3}, v{RO}
    """)
    for tau in range(1, 8):
        g(f"v_xor_b32 v{RO+tau}, {32*tau}, v{RO}")
    stages = [(m, t) for m in "qkv" for t in range(8)] + [("o", t) for t in range(8)]
    park = {}
    for i, k in enumerate(G_QK): park[k] = ("v", POOL + 8 * i)
    for i, k in enumerate(G_O): park[k] = ("v", M + 8 * i) if i < 4 else ("v", VX + 8 * (i - 4))
    for k in G_M: park[k] = ("v", ACC + 8 * k[1])

    def issue(i):
        m, t = stages[i]
        if t == 0:
            set_srd(g, {"q": P_WQ, "k": P_WK, "v": P_WV, "o": P_WO}[m], 4 * MB)
        for x in range(4):
            if m == "o":
                row = 64 * (t >> 2) + 32 * ((t >> 1) & 1) + (t & 1) + 8 * (x >> 1) + 2 * (x & 1)
                so, vo = row * 1024, DO + (x & 1)
            else:
                so, vo = (256 * (x >> 1) + (x & 1) + 64 * (t >> 2) + 32 * ((t >> 1) & 1) + 4 * (t & 1)) * 8192, DQ
            g(f"s_add_u32 m0, s{S_T3}, {16384 + (i % 5) * 4096 + x * 1024}")
            g(f"s_mov_b32 s{S_T0}, {so}")
            g(f"buffer_load_dwordx4 v{vo}, s[{S_W}:{S_W+3}], s{S_T0} offen lds")

    for i in range(4):
        issue(i)
    for i, (m, t) in enumerate(stages):
        g(f"s_waitcnt vmcnt({4 * min(3, len(stages) - 1 - i)}) lgkmcnt(0)\ns_barrier")
        if i in hooks: hooks[i]()
        if i + 4 < len(stages):
            issue(i + 4)
        base = 16384 + (i % 5) * 4096
        for x in range(8):
            if m == "o":
                k, rho, ad, off = ("o", x, t >> 2), t & 3, RO + x, base
            else:
                k, rho, ad, off = (m, x >> 2, t), x & 3, RA + (x >> 2), base + (x & 3) * 1024
            f, b = park.get(k, LOC[k])
            g(f"ds_read_b64_tr_b16 {rng(f, b + 2*rho, 2)}, v{ad} offset:{off}")
        if (m, 0, t) in G_M:
            g("s_waitcnt lgkmcnt(0)")
            for sg in range(2):
                for hh in range(2):
                    g(f"ds_write_b128 v{LW}, {v(ACC+8*sg+4*hh,4)} offset:{LDS_IDX[(m,sg,t)]*2048+hh*1024}")
    g("s_waitcnt lgkmcnt(0)\ns_barrier")
    for k in G_O + G_QK:
        for hh in range(2):
            g(f"ds_write_b128 v{LW}, {v(park[k][1]+4*hh,4)} offset:{LDS_IDX[k]*2048+hh*1024}")
    g("s_waitcnt lgkmcnt(0)")


def setup_early(g, st):
    T0, T1, T2, T3 = 56, 57, 58, 59
    g(f"""
    v_and_b32 v{T0}, 63, v0
    v_lshlrev_b32 v{LM}, 4, v{T0}
    s_mul_i32 s{S_T0}, s{S_WAVE}, {LDS_WAVE}
    v_add_u32 v{LW}, s{S_T0}, v{LM}
    v_add_u32 v{LM}, {LDS_MISC}, v{LM}
    v_lshrrev_b32 v{T1}, 4, v{T0}
    v_and_b32 v{T2}, 15, v{T0}
    s_lshl_b32 s{S_T0}, s{S_WAVE}, 3
    v_lshrrev_b32 v{T3}, 3, v{T0}
    v_add_u32 v{T3}, s{S_T0}, v{T3}
    v_lshlrev_b32 v{H1ST}, 13, v{T3}
    v_lshl_add_u32 v{T3}, v{T3}, 1, s{S_TK}
    v_and_b32 v{T3}, 31, v{T3}
    v_lshl_add_u32 v{H1ST}, v{T3}, 7, v{H1ST}
    v_and_b32 v{T3}, 7, v{T0}
    v_lshl_add_u32 v{H1ST}, v{T3}, 3, v{H1ST}
    v_lshrrev_b32 v{T3}, 3, v{T2}
    v_lshlrev_b32 v{H2ST}, 29, v{T3}
    v_bfe_u32 v{T3}, v{T2}, 1, 1
    v_lshl_add_u32 v{H2ST}, v{T3}, 11, v{H2ST}
    v_bfe_u32 v{T3}, v{T2}, 2, 1
    v_lshl_add_u32 v{H2ST}, v{T3}, 7, v{H2ST}
    v_and_b32 v{T3}, 1, v{T2}
    v_lshl_add_u32 v{H2ST}, v{T3}, 3, v{H2ST}
    v_and_b32 v{T3}, 1, v{T1}
    v_lshl_add_u32 v{H2ST}, v{T3}, 4, v{H2ST}
    v_lshrrev_b32 v{T3}, 1, v{T1}
    v_lshl_add_u32 v{H2ST}, v{T3}, 30, v{H2ST}
    s_and_b32 s{S_T0}, s{S_TK}, 3
    s_lshl_b32 s{S_T0}, s{S_T0}, 5
    s_lshr_b32 s{S_T1}, s{S_TK}, 2
    s_lshl_b32 s{S_T1}, s{S_T1}, 8
    s_add_u32 s{S_T0}, s{S_T0}, s{S_T1}
    s_and_b32 s{S_T2}, s{S_WAVE}, 1
    s_lshl_b32 s{S_T2}, s{S_T2}, 12
    s_add_u32 s{S_T0}, s{S_T0}, s{S_T2}
    v_add_u32 v{H2ST}, s{S_T0}, v{H2ST}
    """)
    g(f"""
    s_mov_b32 s{S_STEP}, 0
    s_lshl_b32 s{S_T0}, s{S_TK}, 13
    s_add_u32 s{S_H1LD}, s{S_T0}, {WS_H1 - LDS_MISC}
    s_mov_b32 s{S_H1ST}, {WS_H1}
    s_mov_b32 s{S_H1ST2}, {WS_H1 + 4096}
    s_mov_b32 s{S_H2LD}, {WS_H2}
    s_mov_b32 s{S_H2LD2}, {WS_H2 + 4096}
    s_lshl_b32 s{S_T0}, s{S_TK}, 14
    s_add_u32 s{S_KV}, s{S_T0}, {WS_KV - LDS_MISC}
    s_lshl_b32 s{S_T0}, s{S_TK}, 2
    s_add_u32 s{S_T0}, s{S_T0}, s{S_WAVE}
    s_lshl_b32 s{S_T0}, s{S_T0}, 10
    s_add_u32 s{S_PUB}, s{S_T0}, {WS_PUB - LDS_MISC - 128*KB}
    s_lshl_b32 s{S_T0}, s{S_TK}, 8
    s_add_u32 s{S_FL}, s{S_T0}, {WS_FLAGS}
    s_mov_b32 s{S_HF}, 0xcccccccc
    s_mov_b32 s{S_HF+1}, 0xcccccccc
    s_mov_b32 s{S_SC}, 0x3e0293ee
    s_mov_b32 s{S_SC-1}, 0x3e0293ee
    v_mov_b64 v[60:61], -1
    v_mov_b64 v[62:63], -1
    s_lshl_b32 s{S_T1}, s{S_WAVE}, 11
    s_add_u32 s{S_T1}, s{S_T1}, s{S_H1LD}
    s_add_u32 s{S_H1LD}, s{S_H1LD}, s{S_T2}
    """)
    for x in range(2):
        g(f"buffer_store_dwordx4 v[60:63], v{LM}, s[{S_WS}:{S_WS+3}], s{S_T1} offen offset:{x*1024} {st}")
    g(f"""
    s_mov_b32 s{S_H2RS}, {WS_H2 + 8192}
    s_mov_b32 s{S_F12}, {WS_H2 + 16384}
    s_lshl_b32 s{S_T0}, s{S_TK}, 2
    v_mov_b32 v50, s{S_T0}
    v_mov_b32 v51, 0
    buffer_store_dword v51, v50, s[{S_WS}:{S_WS+3}], s{S_F12} offen {st}
    buffer_store_dword v51, v50, s[{S_WS}:{S_WS+3}], s{S_F12} offen offset:256 {st}
    """)
    set_srd(g, P_MEM0, 8192)
    g(f"""
    s_lshr_b32 s{S_T0}, s{S_TK}, 3
    s_lshl_b32 s{S_T0}, s{S_T0}, 8
    s_and_b32 s{S_T1}, s{S_TK}, 1
    s_lshl_b32 s{S_T1}, s{S_T1}, 4
    s_add_u32 s{S_T0}, s{S_T0}, s{S_T1}
    s_lshr_b32 s{S_T1}, s{S_T2}, 5
    s_add_u32 s{S_T0}, s{S_T0}, s{S_T1}
    s_and_b32 s{S_T1}, s{S_TK}, 6
    s_lshl_b32 s{S_T1}, s{S_T1}, 10
    s_add_u32 s{S_T0}, s{S_T0}, s{S_T1}
    v_and_b32 v{T3}, 1, v{T1}
    v_lshlrev_b32 v{T3}, 10, v{T3}
    v_and_b32 v52, 3, v{T2}
    v_lshl_add_u32 v{T3}, v52, 2, v{T3}
    v_bfe_u32 v52, v{T2}, 2, 1
    v_lshl_add_u32 v{T3}, v52, 6, v{T3}
    buffer_load_ushort v52, v{T3}, s[{S_W}:{S_W+3}], s{S_T0} offen
    buffer_load_ushort v53, v{T3}, s[{S_W}:{S_W+3}], s{S_T0} offen offset:32
    buffer_load_ushort v54, v{T3}, s[{S_W}:{S_W+3}], s{S_T0} offen offset:2
    buffer_load_ushort v55, v{T3}, s[{S_W}:{S_W+3}], s{S_T0} offen offset:34
    """)


def store_mem0(g, st):
    g(f"""
    s_mov_b32 s{S_T0}, {WS_H2}
    v_lshl_or_b32 v52, v53, 16, v52
    v_lshl_or_b32 v53, v55, 16, v54
    v_cmp_ne_u32 vcc, s{S_SENT}, v52
    s_nop 1
    v_cndmask_b32 v52, -1, v52, vcc
    v_cmp_ne_u32 vcc, s{S_SENT}, v53
    s_nop 1
    v_cndmask_b32 v53, -1, v53, vcc
    buffer_store_dwordx2 v[52:53], v{H2ST}, s[{S_WS}:{S_WS+3}], s{S_T0} offen {st}
    """)


def setup_late(g):
    T0, T1, T2, T3 = 56, 57, 58, 59
    g(f"""
    v_and_b32 v{T0}, 63, v0
    v_lshrrev_b32 v{T1}, 4, v{T0}
    v_and_b32 v{T2}, 15, v{T0}
    v_mov_b32 v{IDX}, 0x44444444
    v_mov_b32 v{T3}, 0x4e1eeeee
    v_cndmask_b32 v{IDX}, v{IDX}, v{T3}, s[{S_HF}:{S_HF+1}]
    s_lshl_b32 s{S_T0}, s{S_WAVE}, 10
    s_add_u32 s{S_T0}, s{S_T0}, {L_QK}
    v_lshrrev_b32 v{T3}, 2, v{T2}
    v_lshlrev_b32 v{QW}, 7, v{T3}
    v_lshl_add_u32 v{QW}, v{T1}, 5, v{QW}
    v_and_b32 v{T3}, 1, v{T3}
    v_lshlrev_b32 v{T3}, 6, v{T3}
    v_xor_b32 v{QW}, v{QW}, v{T3}
    v_and_b32 v{T3}, 3, v{T2}
    v_lshl_add_u32 v{QW}, v{T3}, 2, v{QW}
    v_add_u32 v{QW}, s{S_T0}, v{QW}
    v_lshlrev_b32 v{QR}, 7, v{T1}
    v_add_u32 v{QR}, {L_QK}, v{QR}
    v_and_b32 v{T3}, 1, v{T2}
    v_lshl_add_u32 v{QR}, v{T3}, 4, v{QR}
    v_add_u32 v{KR}, 512, v{QR}
    v_lshrrev_b32 v{T3}, 2, v{T2}
    v_lshl_add_u32 v{QR}, v{T3}, 5, v{QR}
    v_lshrrev_b32 v{T3}, 3, v{T2}
    v_lshl_add_u32 v{KR}, v{T3}, 5, v{KR}
    v_lshrrev_b32 v{T3}, 1, v{T2}
    v_xor_b32 v{T3}, v{T3}, v{T2}
    v_and_b32 v{T3}, 2, v{T3}
    v_lshl_add_u32 v{KR}, v{T3}, 5, v{KR}
    v_and_b32 v{T3}, 1, v{T1}
    v_lshlrev_b32 v{T3}, 6, v{T3}
    v_xor_b32 v{QR}, v{QR}, v{T3}
    v_xor_b32 v{KR}, v{KR}, v{T3}
    s_lshl_b32 s{S_T0}, s{S_WAVE}, 9
    s_add_u32 s{S_T0}, s{S_T0}, {L_O}
    v_lshrrev_b32 v{T3}, 3, v{T2}
    v_lshlrev_b32 v{OW}, 8, v{T3}
    v_lshl_add_u32 v{OW}, v{T1}, 6, v{OW}
    v_bfe_u32 v{T3}, v{T2}, 2, 1
    v_lshl_add_u32 v{OW}, v{T3}, 5, v{OW}
    v_and_b32 v{T3}, 3, v{T2}
    v_lshl_add_u32 v{OW}, v{T3}, 2, v{OW}
    v_add_u32 v{OW}, s{S_T0}, v{OW}
    """)
    g(f"s_mov_b32 s{S_ONE}, 0x3f803f80\ns_mov_b32 s{S_ONE+1}, 0x3f803f80")
    for x in zero(PA, 4) + zero(VX, 16) + zero(ACC, 16): g(x)
    g(f"""
    v_lshrrev_b32 v{T3}, 3, v{T0}
    v_lshlrev_b32 v{GM}, 8, v{T3}
    v_and_b32 v{T3}, 7, v{T0}
    v_lshl_add_u32 v{GM}, v{T3}, 4, v{GM}
    v_and_b32 v{FAD}, 31, v0
    v_lshlrev_b32 v{FAD}, 2, v{FAD}
    s_lshl_b32 s{S_T0}, s{S_TK}, 2
    v_min_u32 v{FST}, 1, v{T0}
    v_lshlrev_b32 v{FST}, 30, v{FST}
    v_add_u32 v{FST}, s{S_T0}, v{FST}
    """)


def kv_addr(w):
    return [f"s_add_u32 s{S_KV2}, s{S_KV}, 4096", f"s_add_u32 s{S_VV}, s{S_KV}, {8192 + w*2048}"]


def k_load(w, hi):
    return [f"s_mov_b32 m0, {L_KX + hi*4096}",
            f"buffer_load_dwordx4 v{LM}, s[{S_WS}:{S_WS+3}], s{S_KV2 if hi else S_KV} offen offset:{w*1024} lds ;@kv"]


def v_loads():
    return [f"buffer_load_dwordx4 {v(VN+4*sg,4)}, v{LM}, s[{S_WS}:{S_WS+3}], s{S_VV} offen offset:{sg*1024} ;@kv" for sg in range(2)]


def mzero(base, n):
    op = {4: "4x4x1_16b", 16: "16x16x1_4b"}[n]
    return f"v_mfma_f32_{op}_f32 {v(base,n)}, v{PA+3}, v{PA+3}, 0"


def v_moves(src_):
    return [f"v_mov_b64 {v(VX+4*i,2)}, {v(src_+2*i,2)}" for i in range(4)]


def wait_flag(g, tag, seg_sgpr):
    g(f"""
    L_{tag}:
    buffer_load_dword v{FLG}, v{TCH}, s[{S_WS}:{S_WS+3}], s{S_FL} offen sc1
    s_add_u32 s{S_SPIN}, s{S_SPIN}, 1
    s_cmp_gt_u32 s{S_SPIN}, {SPIN_MAX}
    s_cbranch_scc1 L_{tag}_out
    s_waitcnt vmcnt(0)
    v_cmp_eq_u32 s[{S_RDY}:{S_RDY+1}], 1, v{FLG}
    s_nop 4
    s_bitcmp1_b64 s[{S_RDY}:{S_RDY+1}], s{seg_sgpr}
    s_cbranch_scc0 L_{tag}
    L_{tag}_out:
    s_waitcnt vmcnt(0)
    """)


def wave_loop(g, w, st, tag, opt):
    stamps = opt.get("stamps")
    WSD = f"s[{S_WS}:{S_WS+3}]"
    nst = [0]

    def stamp():
        if not stamps: return []
        i = nst[0]; nst[0] += 1
        if isinstance(stamps, list) and i not in stamps: return []
        if opt.get("rt") and w + 1 != opt["rt"]: return []
        return [f"s_mem{'real' if opt.get('rt') and not opt.get('cyc') else ''}time s[{74+2*i}:{75+2*i}]"]

    L = lambda x: f"L_{tag}{w}_{x}"
    T0 = 56
    KR_, OW_, SEL = (FAD, FST, KR) if w >= 2 else (KR, OW, None)
    kxr = [f"ds_read_b128 {v(POOL+4*c,4)}, v{LM} offset:{c*1024}" for c in range(8)]
    if w == 0:
        g(f"v_lshlrev_b32 v{TCH}, 2, v0")
        wait_flag(g, f"{tag}{w}_f0", S_STEP)
        g(f"s_mov_b32 s{S_T2}, 1")
        wait_flag(g, f"{tag}{w}_f2", S_T2)
    if w >= 2:
        g(f"""
        v_and_b32 v{T0}, 15, v0
        v_and_b32 v{T0+1}, 1, v0
        v_mov_b32 v{KR_}, v{KR}
        v_mov_b32 v{OW_}, v{OW}
        v_lshlrev_b32 v{T0+1}, 4, v{T0+1}
        v_mov_b32 v{T0+2}, 0x3f80
        v_lshlrev_b32 v{T0+1}, v{T0+1}, v{T0+2}
        v_lshrrev_b32 v{T0}, 1, v{T0}
        """)
        for i in range(4):
            g(f"v_cmp_eq_u32 vcc, {(0, 2, 1, 3)[i]}, v{T0}\ns_nop 1\nv_cndmask_b32 v{SEL+i}, 0, v{T0+1}, vcc")
    for x in zero(ACC + 16, 8): g(x)
    g("s_barrier")
    k0, k1 = k_load(w, 0), k_load(w, 1)
    nxt = [f"s_add_u32 s{S_KV}, s{S_KV}, {512*KB}"] + kv_addr(w)
    for x in [k0[0]] + kv_addr(w) + [k0[1], k1[0]] + v_loads() + [k1[1], "s_waitcnt vmcnt(0)"] + v_moves(VN) + ["s_barrier"] + kxr + nxt + ["s_waitcnt lgkmcnt(0)"]:
        g(x.split(";@")[0])
    if opt.get("count"):
        g("s_memtime s[92:93]\ns_memrealtime s[94:95]\ns_waitcnt lgkmcnt(0)\ns_mov_b32 s15, s94")
    body = []
    E = body.extend
    nops = lambda k: [f"s_nop {x}" for x in opt.get(k, [])]
    red = w >= 2
    MB_ = lambda t: L_O + (t - 4) * 1024
    mo = lambda t: (t & 1) * 2048 + ((t >> 1) & 1) * 128
    mld = lambda t: f"buffer_load_dwordx4 {v(M+4*t,4)}, v{GM}, {WSD}, s{S_H2LD if t < 4 else S_H2LD2} offen offset:{mo(t)} sc1"
    dma = f"buffer_load_dwordx4 v{GM}, {WSD}, s{S_H2LD2} offen offset:{mo(w)} sc1 lds ;@dma"
    SP, CK = M + 16 + 4 * w, PA + 2
    smp = mld(4 + w) + " ;@smp"
    R = A[5]
    pace = [f"s_nop {opt.get('pace', 10)}"]
    cl = [mld(t) + f" ;@c{t}" for t in range(4)]
    gather = [cl[0]] + pace + [cl[1]] + pace + [cl[2]] + pace + [cl[3]]
    nt = opt.get("nt", "")
    vl = v_loads()
    kvl = [x.replace(" lds ;@", f" {nt} lds ;@") if " lds" in x else x.replace(" ;@", f" {nt} ;@") for x in [k0[0], vl[0], k0[1], k1[0], vl[1], k1[1]]]
    cv = lambda d, q: f"v_cvt_pk_bf16_f32 v{d}, v{q}, v{q+1}"
    h1l = lambda HB: [f"buffer_load_dwordx4 {v(HB+4*t,4)}, v{LM}, {WSD}, s{S_H1LD} offen offset:{t*1024} sc1" for t in range(4)]
    two = opt.get("two", [1, 1])[w & 1]

    def reduce(HB, name):
        out = [f"{L(name)}:"]
        for t in range(4):
            out += [f"s_waitcnt vmcnt({3 - t + 4*two})", mf(R, SEL or 0, HB + 4*t, None if t == 0 else R)]
            out += [f"v_xor_b32 v{PA}, s{S_TAG}, v{HB}" if t == 0 else f"v_bitop3_b32 v{PA}, v{PA}, v{HB+4*t}, s{S_TAG} bitop3:0xf6",
                    f"v_bitop3_b32 v{PA}, v{PA}, v{HB+4*t+2}, s{S_TAG} bitop3:0xf6"]
        return out + ([f"v_and_b32 v{PA}, 1, v{PA}", f"v_cmp_eq_u32 vcc, 1, v{PA}", "s_nop 2"] +
                      [f"v_add_f32_dpp v{HB+r}, v{R+r}, v{R+r} row_ror:8 row_mask:0xf bank_mask:0xf" for r in range(4)] +
                      [cv(HB + 4, HB), cv(HB + 5, HB + 2), f"s_cbranch_vccnz {L(name + 'no')}", f"{L(name + 'ok')}:",
                       f"buffer_store_dwordx2 {v(HB+4,2)}, v{H2ST}, {WSD}, s{S_H2ST} offen {st}"])
    clean = [f"v_mov_b64 {v(PA,2)}, s[{S_SENT}:{S_SENT+1}]", mzero(R, 4)]
    h2rs = f"buffer_store_dwordx2 {v(PA,2)}, v{H2ST}, {WSD}, s{S_H2RS} offen {st} ;@h2rs"
    E([f"{L('top')}:", "s_barrier"] + (stamp() if opt.get("rt") else []) + [f"{L('again')}:"])
    gather = [cl[0], f"s_mov_b32 m0, {MB_(4 + w) - mo(w)}"] + gather[1:] + (nops("p5") + [dma] if opt.get("dtop") else [])
    if red:
        i = gather.index(pace[0])
        E(gather[:i] + clean + [f"s_nop {max(opt.get('pace', 10) - 3, 0)}"] + gather[i+1:])
    else:
        E(gather)
    pubv = f"buffer_store_dwordx4 {v(VN+4,4)}, v{LM}, {WSD}, s{S_PUB} offen sc1"
    dump = []
    DT = M + 18
    if stamps:
        dump.extend(["s_waitcnt lgkmcnt(0)"] + [f"v_writelane_b32 v{DT}, s{74+2*i}, {i}" for i in range(9)])
        dump.extend([f"v_subrev_u32 v{DT+1}, {LDS_MISC}, v{LM}", f"v_lshrrev_b32 v{DT+1}, 2, v{DT+1}",
           f"s_lshl_b32 s{S_T0}, s{S_TK}, 2", f"s_add_u32 s{S_T0}, s{S_T0}, {w}", f"s_lshl_b32 s{S_T0}, s{S_T0}, 6", f"s_add_u32 s{S_T0}, s{S_T0}, s{S_STEP}",
           f"s_lshl_b32 s{S_T0}, s{S_T0}, 6", f"s_add_u32 s{S_T0}, s{S_T0}, {WS_STAMP}", "s_mov_b64 exec, 0xffff",
           f"buffer_store_dword v{DT}, v{DT+1}, {WSD}, s{S_T0} offen", "s_mov_b64 exec, -1"])
    if red and opt.get('rt', w + 1) == w + 1: E(dump)
    top_part = list(body)
    c0stamp = stamp()
    order = [(m, sg, t) for t in range(4) for m in "qkv" for sg in range(2)]
    order += [(m, sg, t) for m in "qkv" for t in range(4, 8) for sg in range(2)]
    acc = lambda k: A["qkv".index(k[0]) * 2 + k[1]]
    mm = [smf(acc(k), M + 4 * k[2], k) for k in order]
    rs = [tagged(stage_reads(x), f"r{i}") for i, x in enumerate(G_R)]
    mr = [f"ds_read_b128 {v(M+4*t,4)}, v{LM} offset:{MB_(t) - LDS_MISC} ;@m{t}" for t in range(4, 8)]
    add = lambda q, b: f"v_add_f32 v{q+b}, v{q+b}, v{q+2+b}"
    qr = [f"ds_read_b128 {v(M+4*x,4)}, v{QR} offset:{1024*x} ;@qr{x}" for x in range(4)]
    kr = [f"ds_read_b128 {v(M+16+4*x,4)}, v{KR_} offset:{1024*x} ;@kr{x}" for x in range(4)]
    ost = stage_reads(G_O)
    qfin = [add(A[0], 0), add(A[0], 1), add(A[1], 0), add(A[1], 1),
            f"v_cvt_pk_bf16_f32 v{A[0]+2}, v{A[0]}, v{A[1]}", f"v_cvt_pk_bf16_f32 v{A[0]+3}, v{A[0]+1}, v{A[1]+1}",
            f"ds_write_b32 v{QW}, v{A[0]+2} ;@qw", f"ds_write_b32 v{QW}, v{A[0]+3} offset:16 ;@qw"]
    kfin = [add(A[2], 0), add(A[2], 1), add(A[3], 0), add(A[3], 1),
            f"v_cvt_pk_bf16_f32 v{A[3]}, v{A[2]}, v{A[3]}", f"v_cvt_pk_bf16_f32 v{A[3]+1}, v{A[2]+1}, v{A[3]+1}",
            f"ds_write_b32 v{QW}, v{A[3]} offset:512 ;@kw", f"ds_write_b32 v{QW}, v{A[3]+1} offset:528 ;@kw"]
    b0stamp = stamp()

    b0 = opt.get("b0", 19)

    def common():
        F = Gaps()
        if red: F.put("x", 4 + w, h2rs)
        seq = [pubv, kvl[2], kvl[1], kvl[5], kvl[4]] + ([f"buffer_load_dword v{FLG}, v{TCH}, {WSD}, s{S_FL} offen sc1 ;@kv"] if w == 0 else [])
        kgs = opt.get("kgs", [[15, 20, 24, 28, 34, 35], [16, 21, 25, 28, 35], [17, 22, 26, 29, 36], [18, 23, 27, 31, 36]])[w]
        for j, x in enumerate(seq): F.put("x" if kgs[j] < 32 else "d", kgs[j], x)
        F.put("s", 16, kvl[0]); F.put("s", 26, kvl[3])
        F.put("s", 28, f"s_add_u32 s{S_PUB}, s{S_PUB}, {128*KB}")
        F.put("s", b0, "@wait vm=dma", "s_barrier", *b0stamp)
        mg, r3g = {18: ((19, 20, 22, 24), (21, 23, 25, 26)), 19: ((20, 21, 23, 25), (22, 24, 26, 27)), 20: ((21, 22, 24, 25), (23, 23, 26, 27))}[b0]
        for j, i in enumerate(mg): F.put("d", i, mr[j])
        for i, t in ((23, 4), (25, 5), (27, 6), (29, 7)): F.put("s", i, f"@wait lg=m{t}")
        for r_, gs, u in ((3, r3g, 30), (4, (30, 31, 32, 33), 37), (5, (38, 39, 40, 42), 46)):
            for j in range(4): F.put("d", gs[j], rs[r_][j])
            F.put("s", u, f"@wait lg=r{r_}")
        for j, i in enumerate((32, 32, 33, 34, 35, 36)): F.put("v", i, qfin[j])
        for j, i in enumerate((40, 42, 43, 43, 44, 45)): F.put("v", i, kfin[j])
        F.put("d", 36, qfin[6]); F.put("d", 37, qfin[7])
        F.put("v", 37, f"v_cmp_u_f32 vcc, v{A[0]}, v{A[0]+1}")
        F.put("s", 40, f"s_cbranch_vccnz {L('nan')}", f"{L('nanok')}:")
        F.put("s", 41, "@wait lg=qw" + (" vm=h2rs" if red else ""), "s_barrier")
        F.put("s", 45, "@wait lg=r5x")
        for j, i in enumerate((43, 44, 47)): F.put("d", i, qr[j])
        F.put("d", 45, kfin[6]); F.put("d", 46, kfin[7])
        F.put("s", 47, "@wait lg=qr0")
        return F
    rs[5][1] += "x"

    pair = lambda m, t: [(m, 0, t), (m, 1, t)]
    HEAD = {0: ("q0 k0 v0 q1 k1 v1 q2 k2 v2 q3 k3 v3", ((1, (2, 3, 4, 5)), (2, (10, 11, 12, 13)))),
            1: ("q1 k1 v1 q2 k2 v2 k3 q3 v3 k0 q0 v0", ((2, (4, 5, 6, 7)), (0, (12, 13, 14, 15)))),
            2: ("q2 k2 v2 k3 q3 v3 k0 q0 v0 q1 v1 k1", ((0, (6, 7, 8, 9)), (1, (14, 15, 16, 17)))),
            3: ("q3 k3 v3 k0 v0 q0 q1 k1 v1 q2 k2 v2", ((0, (2, 3, 4, 5)), (1, (10, 11, 12, 13))))}
    cg = opt.get("cg", 12)

    def head(r, n=24):
        od = sum([pair(x[0], int(x[1])) for x in HEAD[r][0].split()], []) + order[24:]
        F = common()
        F.put("s", 1, f"s_cbranch_vccnz {L(f'no{r}')}", f"{L(f'go{r}')}:")
        if r or not opt.get("dtop"): F.put("x", opt.get("dg", 1), dma)
        seen = {r}
        c_ = cg if r == 0 else 15
        for i, k in enumerate(od[:24]):
            wt = []
            if k[2] not in seen:
                seen.add(k[2])
                if i <= c_: wt.append(f"vm=c{k[2]}")
            for r_ in range(3):
                if k == G_R[r_][0] and i: wt.append(f"lg=r{r_}")
            if wt: F.put("s", i - 1 - (1 if i - 1 == b0 else 0), "@wait " + " ".join(wt))
        F.put("s", c_, f"@wait vm=c{(r+3)&3}")
        F.put("v", c_, f"v_max3_u32 v{CK}, v{M+4*((r+1)&3)}, v{M+4*((r+2)&3)}, v{M+4*((r+3)&3)}")
        F.put("v", c_ + 1, f"v_cmp_eq_u32 vcc, s{S_SENT}, v{CK}")
        F.t.setdefault(c_ + 3, {"s": [], "d": [], "v": [], "x": []})["s"][:0] = [f"s_cbranch_vccnz {L(f'late{r}')}", f"{L(f'lok{r}')}:"]
        if r:
            for i in range(15, c_ + 3):
                if i in F.t: F.put("x", c_ + 3, *F.t[i]["x"]); F.t[i]["x"] = []
        for r_, gs in HEAD[r][1]:
            for j in range(4): F.put("d", gs[j], rs[r_][j])
        return ([f"{L(f'c{r}')}:", f"@wait vm=c{r}" + (" lg=0" if r == 0 else "")] + (c0stamp if r == 0 else []) +
                [f"v_cmp_eq_u32 vcc, s{S_SENT}, v{M+4*r}"] + F.emit([smf(acc(k), M + 4 * k[2], k) for k in od[:n]]))
    full = head(0, 48)
    i = full.index(mm[24])
    E(full[:i] + [f"{L('j20')}:"] + full[i:])
    E(stamp())
    S0, S1, SM = A[0], A[1], A[2]
    sx = []
    for x in range(4):
        sx += [mf(S0, POOL + 4*x, M + 4*x, None if x == 0 else S0), mf(S1, POOL + 16 + 4*x, M + 4*x, None if x == 0 else S1)]
    sm = [mf(SM, M + 16 + 4*x, M + 4*x, None if x == 0 else SM) for x in range(4)]
    cv = lambda d, q: f"v_cvt_pk_bf16_f32 v{d}, v{q}, v{q+1}"
    cnd = lambda d, x, y: f"v_cndmask_b32 v{d}, v{x}, v{y}, s[{S_HF}:{S_HF+1}]"
    pub = f"buffer_store_dwordx4 {v(A[3],4)}, v{LM}, {WSD}, s{S_PUB} offen sc1"
    MX, MY = S1, S1 + 1
    z = zero(A[4], 8)
    E([sx[0], f"s_cmp_eq_u32 s{S_STEP}, {NSEG-1}", qr[3],
       sx[1], "@wait lg=qr1", add(A[4], 0), add(A[4], 1),
       sx[2], "@wait lg=kw", "s_barrier",
       sx[3], "@wait lg=qr2", kr[0], add(A[5], 0),
       sx[4], kr[1], add(A[5], 1),
       sx[5], "@wait lg=qr3", kr[2], cv(VX + 2, A[4]),
       sx[6], kr[3], cv(VX + 10, A[5]),
       sx[7], "@wait lg=kr0", cv(A[3] + 2, A[4]), cv(A[3] + 3, A[5]),
       sm[0], "@wait lg=kr2", f"v_permlane16_swap_b32 v{VX+2}, v{VX+6}",
       sm[1], f"s_cbranch_scc1 {L('done')}", cnd(S0, S0, S1), cnd(S0 + 1, S0 + 1, S1 + 1),
       sm[2], "@wait lg=kr3", cnd(S0 + 2, S0 + 2, S1 + 2), cnd(S0 + 3, S0 + 3, S1 + 3),
       sm[3], f"v_max3_f32 v{MX}, v{S0}, v{S0+1}, v{S0+2}", f"v_max_f32 v{MX}, v{MX}, v{S0+3}",
       f"v_permlane16_swap_b32 v{VX+10}, v{VX+14}",
       f"v_max_f32_dpp v{MX}, v{MX}, v{MX} quad_perm:[2,3,0,1] row_mask:0xf bank_mask:0xf",
       f"v_mov_b32 v{MY}, v{MX}",
       f"v_mov_b64 {v(POOL,2)}, s[{S_ONE}:{S_ONE+1}]",
       f"v_max3_f32 v{S1+2}, v{SM}, v{SM+1}, v{SM+2}",
       f"v_permlane16_swap_b32 v{MX}, v{MY}",
       f"v_max3_f32 v{MX}, v{MX}, v{MY}, v{SM+3}",
       f"v_max_f32 v{MY}, v{MX}, v{S1+2}",
       f"v_max_f32 v{MX}, v{MX}, v{S1+2}",
       cnd(SM, SM, SM + 1), f"v_mov_b64 {v(POOL+2,2)}, s[{S_ONE}:{S_ONE+1}]",
       f"v_permlane32_swap_b32 v{MX}, v{MY}",
       f"v_max_f32 v{MX}, v{MX}, v{MY}",
       f"v_mul_f32 v{MX}, s{S_SC}, v{MX}"])
    for r in (S0, S0 + 2):
        E([f"v_pk_fma_f32 {v(r,2)}, {v(r,2)}, s[{S_SC-1}:{S_SC}], {v(MX,2)} op_sel_hi:[1,1,0] neg_lo:[0,0,1] neg_hi:[0,0,1]"])
    E([f"v_fma_f32 v{SM}, v{SM}, s{S_SC}, -v{MX}"])
    E([f"v_exp_f32 v{S0}, v{S0}", f"v_exp_f32 v{S0+1}, v{S0+1}", f"v_exp_f32 v{S0+2}, v{S0+2}", cv(PA, S0),
       f"v_exp_f32 v{S0+3}, v{S0+3}", f"v_exp_f32 v{SM}, v{SM}", cv(PA + 2, S0 + 2),
       f"v_cvt_pk_bf16_f32 v{PA+1}, v{SM}, v{PA+3}"])
    E(stamp())
    LQ = A[1]
    ring = [f"s_and_b32 s{S_TAG}, s{S_STEP}, 1", f"s_add_u32 s{S_STEP}, s{S_STEP}, 1",
            f"s_lshl_b32 s{S_T0}, s{S_TAG}, 13", f"s_sub_u32 s{S_H2LD}, {WS_H2 + 8192}, s{S_T0}",
            f"s_add_u32 s{S_H2LD2}, s{S_H2LD}, 4096"]
    ring2 = list(nxt)
    if red:
        ring += [f"s_add_u32 s{S_H2RS}, s{S_T0}, {WS_H2}", f"s_xor_b32 s{S_H2ST}, s{S_H2RS}, 8192"]
    E([z[0], z[1],
       mf(LQ, PA, POOL, None), z[2], z[3],
       smf(A[4], PA, v(VX, 8), 1), ost[8],
       smf(A[5], PA, v(VX + 8, 8), 1), ost[9], add(LQ, 0),
       add(LQ, 1), f"v_rcp_f32 v{LQ}, v{LQ}", f"v_rcp_f32 v{LQ+1}, v{LQ+1}",
       f"v_pk_add_f32 {v(A[4],2)}, {v(A[4],2)}, {v(A[4]+2,2)}",
       f"v_pk_mul_f32 {v(A[4],2)}, {v(A[4],2)}, {v(LQ,2)}",
       f"v_pk_add_f32 {v(A[5],2)}, {v(A[5],2)}, {v(A[5]+2,2)}",
       f"v_pk_mul_f32 {v(A[5],2)}, {v(A[5],2)}, {v(LQ,2)}",
       f"v_cvt_pk_bf16_f32 v{A[4]+2}, v{A[4]}, v{A[5]}", f"v_cvt_pk_bf16_f32 v{A[4]+3}, v{A[4]+1}, v{A[5]+1}",
       mzero(M + 16, 4),
       f"ds_write2_b32 v{OW_}, v{A[4]+2}, v{A[4]+3} offset0:0 offset1:4", mzero(M, 16)] + ring +
      ["s_waitcnt lgkmcnt(0)", "s_barrier",
       f"ds_read_b128 {v(A[0],4)}, v{LM} offset:{L_O - LDS_MISC} ;@o0", mzero(M + 20, 4),
       f"ds_read_b128 {v(A[1],4)}, v{LM} offset:{L_O - LDS_MISC + 1024} ;@o1", mzero(M + 24, 4)] + [mzero(M + 28, 4)])
    E(stamp())
    oo = [(0, 0), (1, 0), (0, 1), (1, 1)] + [(tau, tp) for tau in range(2, 8) for tp in range(2)]
    om = [smf(M + 4*tau, A[tp], ("o", tau, tp)) for tau, tp in oo]
    D0, D1 = A[2], A[4]
    pk = lambda d, ta, b: f"v_cvt_pk_bf16_f32 v{d}, v{M+4*ta+b}, v{M+4*ta+4+b}"
    ad = lambda ta: [add(M + 4*ta, 0), add(M + 4*ta, 1)]
    G = Gaps()
    G.put("s", 1, "@wait lg=o1")
    for j, x in enumerate(tagged(ost[10:], "o5") + tagged(ost[:4], "o6") + tagged(ost[4:8], "o7")): G.put("d", j, x)
    G.put("s", 9, "@wait lg=o5"); G.put("s", 11, "@wait lg=o6"); G.put("s", 13, "@wait lg=o7")
    tg = lambda d: f"v_bfi_b32 v{d}, 1, s{S_TAG}, v{d}"
    for q in range(4):
        D = (D0, D0 + 2, D1, D1 + 2)[q]
        e, o_ = ad(2 * q), ad(2 * q + 1)
        stq = f"buffer_store_dwordx2 {v(D,2)}, v{H1ST}, {WSD}, s{S_H1ST2 if q >> 1 else S_H1ST} offen offset:{64 * (q & 1)} {st}"
        rest = [o_[0], o_[1], pk(D, 2 * q, 0), pk(D + 1, 2 * q, 1), tg(D)]
        if q == 0:
            G.put("v", 4, *e)
        elif q < 3:
            G.put("v", 4 * q + 3, e[0]); G.put("v", 4 * q + 4, e[1])
        if q < 3:
            n1 = opt.get("wo1", 2)
            G.put("v", 4 * q + 5, *rest[:n1]); G.put("v", 4 * q + 6, *rest[n1:])
            G.put("s", 4 * q + 7, stq)
        else:
            G.put("v", 15, *(e + ["s_nop 3"] + rest + [stq]))
    E(["@wait lg=o0"] + G.emit(om))
    E(stamp())
    house = ring2 + rs[0] + [mzero(A[i], 4) for i in (0, 1, 2)]
    mv = v_moves(VN) + [f"v_mov_b64 {v(VN+4,2)}, {v(A[3],2)}", f"v_mov_b64 {v(VN+6,2)}, {v(A[3]+2,2)}", mzero(A[3], 4), mzero(A[4], 4)]
    after = kxr + mv
    E(house[:3] + ["@wait vm=kv", "s_barrier"])
    if red:
        shots = h1l(M + 16) + (nops("d4") + h1l(M) if two else [])
        if w == 2:
            E(nops("d1") + stamp() + shots + house[3:] + after + ["s_waitcnt lgkmcnt(0)"] + reduce(M + 16, "ra") + [f"{L('rdone')}:"] + stamp() + nops("d2"))
        else:
            E(house[3:] + after + nops("d3") + stamp() + shots + ["s_waitcnt lgkmcnt(0)"] + reduce(M + 16, "ra") + [f"{L('rdone')}:"] + stamp())
    else:
        E(stamp() + house[3:] + after + stamp() + (dump if opt.get('rt', w + 1) == w + 1 else []))
    if w < 2:
        E([mzero(A[5], 4)])
    if w == 0:
        E([f"v_cmp_eq_u32 s[{S_RDY}:{S_RDY+1}], 1, v{FLG}", f"s_add_u32 s{S_T2}, s{S_STEP}, 1", "s_nop 3",
           f"s_bitcmp1_b64 s[{S_RDY}:{S_RDY+1}], s{S_T2}", f"s_cbranch_scc0 {L('flag')}", f"{L('flagok')}:"])
    E(([] if red else ["s_waitcnt lgkmcnt(0)"]) + [f"s_branch {L('top')}"])
    if opt.get("free"):
        body = [x for x in body if not (x.startswith("s_cbranch_vccnz") or x.startswith("v_cmpx"))]
        body = [x.replace("s_cbranch_scc0 " + L('top'), "s_branch " + L('top')) for x in body]
    if True:
        for pat in opt.get("drop", []):
            keep = lambda x: ("s_nop 0" if opt.get("keepslot") else None)
            tags = [x.split(";@")[1] for x in body if pat in x and ";@" in x]
            body = [x for x in body if pat not in x or x.endswith(":")]
            live = {x.split(";@")[1] for x in body if ";@" in x}
            nb = []
            for x in body:
                if x.startswith("@wait"):
                    t = [k for k in x.split()[1:] if k.split("=")[1] in live or k.split("=")[1] == "0"]
                    if t: nb.append("@wait " + " ".join(t))
                else: nb.append(x)
            body = nb
    body = resolve_waits(body)
    if opt.get("seg"):
        pos = [i for i, x in enumerate(body) if x.startswith(("v_mfma_f32_16x16x32", "v_smfmac"))]
        i0, i1 = opt["seg"]
        labels = [x for x in body if x.endswith(":")]
        cut = [x for x in body[pos[i0]:pos[i1]] if not x.endswith(":") and f"s{S_STEP}" not in x and "branch" not in x]
        body = labels + cut[:1] + [f"s_add_u32 s{S_STEP}, s{S_STEP}, 1", f"s_cmp_eq_u32 s{S_STEP}, 64", f"s_cbranch_scc1 {L('done')}"] + cut[1:] + [f"s_branch {L('top')}"]
    if opt.get("sw"):
        pos = [i for i, x in enumerate(body) if x.startswith(("v_mfma", "v_smfmac"))]
        for k, o_ in reversed(list(enumerate(opt["sw"]))):
            if o_ < len(pos): body.insert(pos[o_] + 1, f"s_memtime s[{74+2*k}:{75+2*k}]")
    if opt.get("align", 1):
        body, left = align_body(body)
        if opt.get("verbose"): print("wave", w, "remaining straddles", left)
        g(".p2align 5")
    for x in body: g(x)
    bad = hazard.check(body + body[:40], f"chain w{w}") if not (opt.get("drop") or opt.get("seg")) else []
    m1 = g.mark()
    strip = lambda lst: [x.split(";@")[0] for x in lst]
    cnt = lambda out: f"s_add_u32 s{S_SPIN}, s{S_SPIN}, 1\ns_cmp_gt_u32 s{S_SPIN}, {SPIN_MAX}\ns_cbranch_scc1 {out}"
    dbg = lambda k: (f"s_add_u32 s{96+k}, s{96+k}, 1" if opt.get("count") else "")
    anysent = [f"v_mov_b32 v{PA}, 0"] + [f"v_max3_u32 v{PA}, v{PA}, v{M+2*i}, v{M+2*i+1}" for i in range(16)] + [f"v_cmp_eq_u32 vcc, s{S_SENT}, v{PA}"]
    if red:
        g(f"{L('rano')}:\n{dbg(2)}\n{cnt(L('raok'))}")
        for x in h1l(M + 16): g(x)
        if two:
            for x in reduce(M, "rb") + [f"s_branch {L('rdone')}", f"{L('rbno')}:", dbg(3)] + h1l(M): g(x)
        g(f"s_branch {L('ra')}")
    for r in range(4):
        g(f"{L(f'late{r}')}:\n{cnt(L(f'lok{r}'))}\ns_branch {L('restart')}")
    g(f"{L('restart')}:\n{dbg(1)}\ns_waitcnt lgkmcnt(0)")
    for x in strip(rs[0]) + [mzero(A[i], 4) for i in range(6)] + [f"s_branch {L('again')}"]: g(x)
    path = rs[0] + top_part
    for r in range(4):
        part = ([f"{L(f'no{r}')}:"] + ([dbg(0)] if opt.get("count") else []) + (cnt(L("go3")).split("\n") if r == 3 else []) + [cl[r], dma if r == 3 and opt.get("dtop") else "s_nop 0"] +
                {0: rs[1], 1: rs[2], 2: ["s_nop 3"], 3: rs[0]}[r] + [mzero(A[0], 4), mzero(A[1], 4), "s_nop 0"])
        hd = head(r + 1) + [f"s_branch {L('j20')}"] if r < 3 else [f"s_branch {L('c0')}"]
        res = resolve_waits(path + part + hd, loop=False)[len(path):]
        path = path + part
        bad += hazard.check(mm[:2] + ["s_branch x"] + res + (mm[24:28] if r < 3 else mm[:2]), f"chain head {r} w{w}")
        res, _ = align_body(res)
        g(".p2align 5")
        for x in res: g(x)
    m1 = g.mark()
    g(f"{L('nan')}:\n" + ("s_add_u32 s97, s97, 0x10000" if opt.get("count") else ""))
    for x in anysent: g(x)
    g(f"s_cbranch_vccz {L('nanok')}\n{L('nanl')}:")
    for x in [mld(t) for t in range(8)] + ["s_waitcnt vmcnt(0)"] + anysent: g(x)
    g(f"s_cbranch_vccz {L('nanr')}\n{cnt(L('nanr'))}\ns_branch {L('nanl')}\n{L('nanr')}:\ns_waitcnt lgkmcnt(0)")
    for x in zero(ACC, 24): g(x)
    for i in range(41):
        for r_ in range(5):
            if order[i] == G_R[r_][0]:
                for x in strip(rs[r_]) + ["s_waitcnt lgkmcnt(0)"]: g(x)
        g(mm[i])
    for x in strip(rs[5][:2] + qfin) + ["s_waitcnt lgkmcnt(0)", f"s_branch {L('nanok')}"]: g(x)
    bad += hazard.check(g.lines[m1:], f"chain rare w{w}")
    if w == 0:
        g(f"{L('flag')}:")
        wait_flag(g, f"{tag}{w}_f1", S_T2)
        g(f"s_branch {L('flagok')}")
    g(f"{L('done')}:\n{pub}")
    if opt.get("count"):
        g(f"""
        s_memtime s[94:95]
        s_memrealtime s[74:75]
        s_waitcnt lgkmcnt(0)
        
        s_sub_u32 s94, s94, s92
        v_mov_b32 v40, s96
        v_mov_b32 v41, s97
        v_mov_b32 v42, s98
        v_mov_b32 v43, s94
        s_lshl_b32 s{S_T0}, s{S_TK}, 2
        s_add_u32 s{S_T0}, s{S_T0}, {w}
        s_lshl_b32 s{S_T0}, s{S_T0}, 12
        s_add_u32 s{S_T0}, s{S_T0}, {WS_STAMP}
        v_mov_b32 v44, 0
        v_mov_b32 v46, s99
        v_mov_b32 v47, s14
        v_mov_b32 v48, s15
        v_mov_b32 v49, s74
        buffer_store_dwordx4 v[40:43], v44, {WSD}, s{S_T0} offen
        buffer_store_dwordx4 v[46:49], v44, {WSD}, s{S_T0} offen offset:16
        """)
    g("s_waitcnt vmcnt(0)\ns_endpgm")
    return bad


def chain_role(g, st, tag, opt):
    m0 = g.mark()
    if opt.get("count"):
        g("s_mov_b32 s96, 0\ns_mov_b32 s97, 0\ns_mov_b32 s98, 0\ns_mov_b32 s99, 0")
    setup_early(g, st)
    arrive = lambda: g(f"""
    s_cmp_lg_u32 s{S_WAVE}, 0
    s_cbranch_scc1 L_{tag}_arrived
    v_mov_b32 v56, {DBG_TEAM}
    v_mov_b32 v57, 1
    s_mov_b64 exec, 1
    global_atomic_add v56, v57, s[{P_DBG}:{P_DBG+1}]
    s_mov_b64 exec, -1
    L_{tag}_arrived:
    """)
    load_weights(g, {0: lambda: store_mem0(g, st), 5: arrive})
    setup_late(g)
    g(f"""
    v_mov_b32 v56, 64
    L_{tag}_team:
    global_load_dword v57, v56, s[{P_DBG}:{P_DBG+1}] sc1
    s_add_u32 s{S_SPIN}, s{S_SPIN}, 1
    s_cmp_gt_u32 s{S_SPIN}, {SPIN_MAX}
    s_cbranch_scc1 L_{tag}_teamok
    s_waitcnt vmcnt(0)
    v_cmp_gt_u32 vcc, 32, v57
    s_cbranch_vccnz L_{tag}_team
    L_{tag}_teamok:
    s_waitcnt vmcnt(0)
    """)
    if not opt.get("chainonly"):
        g(f"""
        v_mov_b32 v56, {DBG_INIT}
        L_{tag}_init:
        global_load_dword v57, v56, s[{P_DBG}:{P_DBG+1}] sc1
        s_add_u32 s{S_SPIN}, s{S_SPIN}, 1
        s_cmp_gt_u32 s{S_SPIN}, {SPIN_MAX}
        s_cbranch_scc1 L_{tag}_initok
        s_waitcnt vmcnt(0)
        v_cmp_gt_u32 vcc, 224, v57
        s_cbranch_vccnz L_{tag}_init
        L_{tag}_initok:
        s_waitcnt vmcnt(0)
        """)
    bad = hazard.check(g.lines[m0:], "chain prologue")
    for w in range(1, 4):
        g(f"s_cmp_eq_u32 s{S_WAVE}, {w}\ns_cbranch_scc1 L_{tag}_w{w}")
    for w in range(4):
        g(f"L_{tag}_w{w}:")
        bad += wave_loop(g, w, st, tag, opt)
    return bad
```

```python
import sys
from asmlib import *
from layout import *
from chain import *
import workers

NAME = "recurrent_scan__memory_aug_recurrent_mem_tr__geglu_ffn__prompt_kernel"


def entry(g, opt):
    if opt.get('count'): g('s_memrealtime s[14:15]')
    g(f"""
    s_cmp_ge_u32 s2, 256
    s_cbranch_scc1 L_exit
    s_load_dwordx16 s[16:31], s[0:1], 0
    s_load_dwordx8 s[32:39], s[0:1], 64
    s_load_dwordx4 s[40:43], s[0:1], 96
    s_getreg_b32 s{S_XCC}, hwreg(HW_REG_XCC_ID, 0, 3)
    v_lshrrev_b32 v1, 6, v0
    s_mov_b32 s{S_SPIN}, 0
    s_mov_b32 s{S_SENT}, {SENT}
    s_mov_b32 s{S_SENT+1}, {SENT}
    v_readfirstlane_b32 s{S_WAVE}, v1
    s_waitcnt lgkmcnt(0)
    s_mov_b32 s{S_WS}, s{P_WSP}
    s_mov_b32 s{S_WS+1}, s{P_WSP+1}
    s_mov_b32 s{S_WS+2}, {WS_BYTES}
    s_mov_b32 s{S_WS+3}, 0x20000
    s_cmp_lg_u32 s{S_WAVE}, 0
    s_cbranch_scc1 L_ticket
    s_lshl_b32 s{S_T0}, s{S_XCC}, 2
    v_mov_b32 v1, s{S_T0}
    v_mov_b32 v2, 1
    s_mov_b64 exec, 1
    global_atomic_add v3, v1, v2, s[{P_DBG}:{P_DBG+1}] sc0
    v_mov_b32 v1, 0
    s_waitcnt vmcnt(0)
    ds_write_b32 v1, v3
    s_waitcnt lgkmcnt(0)
    s_mov_b64 exec, -1
    L_ticket:
    s_barrier
    v_mov_b32 v1, 0
    ds_read_b32 v3, v1
    s_waitcnt lgkmcnt(0)
    v_readfirstlane_b32 s{S_TK}, v3
    s_barrier
    """)


def build(opt):
    g = Asm()
    entry(g, opt)
    bad = []
    g(f"s_cmp_eq_u32 s{S_XCC}, 0\ns_cbranch_scc1 L_chain")
    if not opt.get("chainonly"):
        bad += workers.worker_roles(g, opt)
    g("L_exit:\ns_endpgm\nL_chain:")
    bad += chain_role(g, opt.get("st", ""), "c", opt)
    for b in bad: print(b, file=sys.stderr)
    head = f"; @launch grid=(256,1,1) block=(256,1,1) lds=163840\n"
    head += '.amdgcn_target "amdgcn-amd-amdhsa--gfx950"\n.text\n'
    head += f".globl {NAME}\n.p2align 8\n.type {NAME},@function\n{NAME}:\n"
    tail = f"""
.section .rodata,"a"
.p2align 6
.amdhsa_kernel {NAME}
  .amdhsa_next_free_vgpr 512
  .amdhsa_next_free_sgpr 102
  .amdhsa_accum_offset 256
  .amdhsa_group_segment_fixed_size 0
  .amdhsa_kernarg_size 112
  .amdhsa_user_sgpr_count 2
  .amdhsa_user_sgpr_kernarg_segment_ptr 1
  .amdhsa_system_sgpr_workgroup_id_x 1
.end_amdhsa_kernel
"""
    return head + g.text() + tail, bad


if __name__ == "__main__":
    import mb
    t, bad = build({})
    co = mb.assemble(t, NAME, 14, "k")
    print(mb.cl.address_register_problem(co, NAME))
    print(len(t), "bytes", len(bad), "hazards")
```

```python
from asmlib import *
from layout import *
from chain import (S_WS, S_W, P_X, P_WQ, P_WK, P_WV, P_WO, P_WG, P_WU, P_WD, P_OUT, P_DBG, S_XCC, S_TK, S_WAVE,
                   S_T0, S_T1, S_T2, S_T3, SPIN_MAX, set_srd, S_SPIN, S_SENT)

WSD = f"s[{S_WS}:{S_WS+3}]"
WD = f"s[{S_W}:{S_W+3}]"
S_WI, S_COL, S_SEG, S_HD, S_FREE, S_XO, S_O1, S_O2, S_FA, S_PREV, S_LB, S_C0, S_C1, S_C2 = range(51, 65)
S_OUT = 68
S_MK = 72
RING = 65536
NROWG = 5


def rg(f, b, n):
    return a(b, n) if f == "a" else v(b, n)


def mf32(d, x, y, first):
    return f"v_mfma_f32_32x32x16_bf16 {v(d,16)}, {x}, {y}, " + ("0" if first else v(d, 16))


def mf16(d, x, y, first):
    return f"v_mfma_f32_16x16x32_bf16 {v(d,4)}, {x}, {y}, " + ("0" if first else v(d, 4))


def spin_counter(g, tag, off, target):
    g(f"""
    v_mov_b32 v10, {off}
    L_{tag}:
    global_load_dword v11, v10, s[{P_DBG}:{P_DBG+1}] sc1
    s_add_u32 s{S_SPIN}, s{S_SPIN}, 1
    s_cmp_gt_u32 s{S_SPIN}, {SPIN_MAX}
    s_cbranch_scc1 L_{tag}_out
    s_waitcnt vmcnt(0)
    v_cmp_gt_u32 vcc, {target}, v11
    s_cbranch_vccz L_{tag}_out
    s_sleep 2
    s_branch L_{tag}
    L_{tag}_out:
    s_waitcnt vmcnt(0)
    """)


def spin_flags(g, tag, vaddr, soff, sleep=1):
    g(f"""
    L_{tag}:
    buffer_load_dword v11, v{vaddr}, {WSD}, s{soff} offen sc1
    s_add_u32 s{S_SPIN}, s{S_SPIN}, 1
    s_cmp_gt_u32 s{S_SPIN}, {SPIN_MAX}
    s_cbranch_scc1 L_{tag}_out
    s_waitcnt vmcnt(0)
    v_cmp_ne_u32 vcc, 1, v11
    s_cbranch_vccz L_{tag}_out
    {f's_sleep {sleep}' if sleep else ''}
    s_branch L_{tag}
    L_{tag}_out:
    s_waitcnt vmcnt(0)
    """)


def count_up(g, tag, off):
    g(f"""
    s_waitcnt vmcnt(0)
    s_barrier
    s_cmp_lg_u32 s{S_WAVE}, 0
    s_cbranch_scc1 L_{tag}
    v_mov_b32 v10, {off}
    v_mov_b32 v11, 1
    s_mov_b64 exec, 1
    global_atomic_add v10, v11, s[{P_DBG}:{P_DBG+1}]
    s_mov_b64 exec, -1
    L_{tag}:
    """)


def set_flag(g, tag, soff):
    g(f"""
    s_cmp_lg_u32 s{S_WAVE}, 0
    s_cbranch_scc1 L_{tag}
    v_mov_b32 v10, 0
    v_mov_b32 v11, 1
    s_mov_b64 exec, 1
    buffer_store_dword v11, v10, {WSD}, s{soff} offen sc1
    s_mov_b64 exec, -1
    L_{tag}:
    """)


def wstamp(g, opt, i, dump=False):
    if not opt.get("count"): return
    g(f"s_waitcnt vmcnt(0)" if dump else "")
    g(f"s_memrealtime s[88:89]\ns_waitcnt lgkmcnt(0)\ns_mov_b32 s{90+i}, s88")
    if dump:
        for k in range(5): g(f"v_mov_b32 v{21+k}, s{90+k}")
        g(f"""
        v_mov_b32 v20, s14
        s_lshl_b32 s{S_T0}, s{S_WI}, 5
        s_add_u32 s{S_T0}, s{S_T0}, {WS_STAMP - 8192}
        v_mov_b32 v10, 0
        buffer_store_dwordx4 v[20:23], v10, {WSD}, s{S_T0} offen
        buffer_store_dwordx2 v[24:25], v10, {WSD}, s{S_T0} offen offset:16
        """)


def worker_init(g):
    g(f"""
    s_sub_u32 s{S_T0}, s{S_XCC}, 1
    s_lshl_b32 s{S_WI}, s{S_T0}, 5
    s_add_u32 s{S_WI}, s{S_WI}, s{S_TK}
    v_mov_b64 v[12:13], s[{S_SENT}:{S_SENT+1}]
    v_mov_b64 v[14:15], s[{S_SENT}:{S_SENT+1}]
    v_lshlrev_b32 v10, 4, v0
    s_lshl_b32 s{S_T1}, s{S_T0}, 17
    s_lshl_b32 s{S_T2}, s{S_TK}, 12
    s_add_u32 s{S_T1}, s{S_T1}, s{S_T2}
    s_add_u32 s{S_T1}, s{S_T1}, {WS_PUB}
    """)
    for i in range(10):
        g(f"buffer_store_dwordx4 v[12:15], v10, {WSD}, s{S_T1} offen sc1\ns_add_u32 s{S_T1}, s{S_T1}, {7*128*KB}")
    g(f"""
    v_mov_b32 v11, 0
    v_mul_u32_u24 v10, 7, v0
    v_add_u32 v10, s{S_T0}, v10
    v_cmp_gt_u32 vcc, 64, v10
    v_lshlrev_b32 v10, 7, v10
    s_lshl_b32 s{S_T1}, s{S_TK}, 2
    s_add_u32 s{S_T1}, s{S_T1}, {WS_OF}
    v_mov_b32 v12, 0x40000000
    v_cndmask_b32 v10, v12, v10, vcc
    buffer_store_dword v11, v10, {WSD}, s{S_T1} offen sc1
    """)


def clear_flags(g, shift):
    g(f"""
    v_mov_b32 v11, 0
    v_mul_u32_u24 v10, {NROWG}, v0
    v_add_u32 v10, s{S_SEG}, v10
    v_cmp_gt_u32 vcc, 64, v10
    v_lshlrev_b32 v10, {shift}, v10
    v_mov_b32 v12, 0x40000000
    v_cndmask_b32 v10, v12, v10, vcc
    buffer_store_dword v11, v10, {WSD}, s{S_FA} offen sc1
    """)


def layernorm(g, seg):
    X, T = 16, 80
    set_srd(g, P_X, 2 * MB)
    g(f"""
    v_lshrrev_b32 v1, 3, v0
    v_and_b32 v2, 7, v0
    v_lshlrev_b32 v3, 10, v1
    v_lshl_add_u32 v3, v2, 4, v3
    s_lshl_b32 s{S_T0}, s{seg}, 15
    """)
    for j in range(8):
        g(f"buffer_load_dwordx4 {v(T+4*j,4)}, v3, {WD}, s{S_T0} offen offset:{128*j}")
    g(f"""
    v_lshrrev_b32 v4, 1, v2
    v_lshlrev_b32 v4, 10, v4
    v_and_b32 v5, 1, v2
    v_lshl_add_u32 v4, v5, 9, v4
    v_lshl_add_u32 v4, v1, 4, v4
    s_add_u32 s{S_T0}, s{S_T0}, {WS_XN}
    s_mov_b32 s{S_T1}, 0xffff0000
    s_waitcnt vmcnt(0)
    """)
    for i in range(32):
        g(f"v_lshlrev_b32 v{X+2*i}, 16, v{T+i}\nv_and_b32 v{X+2*i+1}, s{S_T1}, v{T+i}")

    def reduce8(r):
        for m in ("quad_perm:[1,0,3,2]", "quad_perm:[2,3,0,1]", "row_half_mirror"):
            g(f"s_nop 1\nv_add_f32_dpp v{r}, v{r}, v{r} {m} row_mask:0xf bank_mask:0xf")

    g(f"v_pk_add_f32 v[6:7], {v(X,2)}, {v(X+2,2)}")
    for i in range(2, 32):
        g(f"v_pk_add_f32 v[6:7], v[6:7], {v(X+2*i,2)}")
    g("v_add_f32 v6, v6, v7")
    reduce8(6)
    g(f"v_mul_f32 v6, 0x3b000000, v6\nv_mov_b32 v8, 0\nv_mov_b32 v9, 0")
    for i in range(64):
        g(f"v_sub_f32 v7, v{X+i}, v6\nv_fmac_f32 v{8+(i&1)}, v7, v7")
    g("v_add_f32 v8, v8, v9")
    reduce8(8)
    g(f"""
    v_mul_f32 v8, 0x3b000000, v8
    v_cvt_pk_bf16_f32 v6, v6, v8
    v_and_b32 v8, s{S_T1}, v6
    v_lshlrev_b32 v6, 16, v6
    v_add_f32 v8, 0x3727c5ac, v8
    v_cvt_pk_bf16_f32 v8, v8, v8
    v_and_b32 v8, s{S_T1}, v8
    v_sqrt_f32 v8, v8
    s_nop 0
    v_cvt_pk_bf16_f32 v8, v8, v8
    v_and_b32 v8, s{S_T1}, v8
    v_rcp_f32 v8, v8
    """)
    for i in range(32):
        p = X + 2 * i
        g(f"""
        v_sub_f32 v{p}, v{p}, v6
        v_sub_f32 v{p+1}, v{p+1}, v6
        v_cvt_pk_bf16_f32 v{p}, v{p}, v{p+1}
        v_and_b32 v{p+1}, s{S_T1}, v{p}
        v_lshlrev_b32 v{p}, 16, v{p}
        v_mul_f32 v{p}, v{p}, v8
        v_mul_f32 v{p+1}, v{p+1}, v8
        v_cvt_pk_bf16_f32 v{T+i}, v{p}, v{p+1}
        """)
        if i % 4 == 3:
            g(f"buffer_store_dwordx4 {v(T+i-3,4)}, v4, {WSD}, s{S_T0} offen sc1\ns_add_u32 s{S_T0}, s{S_T0}, 4096")


def load_w32(g, mats, stride):
    DM, RT, RN = 1, 2, 3
    g(f"""
    v_and_b32 v4, 63, v0
    v_lshrrev_b32 v5, 4, v4
    v_and_b32 v6, 15, v4
    v_lshlrev_b32 v7, 2, v5
    v_xor_b32 v6, v6, v7
    v_lshlrev_b32 v{DM}, 4, v6
    s_lshl_b32 s{S_T0}, s{S_WAVE}, 4
    v_add_u32 v6, s{S_T0}, v5
    v_mul_u32_u24 v6, {stride}, v6
    v_add3_u32 v{DM}, v{DM}, v6, s{S_COL}
    v_bfe_u32 v6, v4, 2, 2
    v_xor_b32 v7, s{S_WAVE}, v6
    v_lshlrev_b32 v7, 6, v7
    v_lshl_add_u32 v7, v6, 8, v7
    v_lshrrev_b32 v6, 5, v4
    v_lshl_add_u32 v7, v6, 11, v7
    v_add_u32 v7, {RING}, v7
    v_and_b32 v5, 1, v5
    v_and_b32 v6, 3, v4
    v_lshl_add_u32 v{RN}, v5, 5, v7
    v_lshl_add_u32 v{RN}, v6, 3, v{RN}
    v_lshl_add_u32 v{RT}, v5, 4, v7
    v_and_b32 v6, 1, v4
    v_lshl_add_u32 v{RT}, v6, 3, v{RT}
    v_bfe_u32 v6, v4, 1, 1
    v_lshl_add_u32 v{RT}, v6, 5, v{RT}
    s_lshl_b32 s{S_T3}, s{S_WAVE}, 12
    s_add_u32 s{S_T3}, s{S_T3}, {RING}
    """)
    stages = [(m, S) for m in mats for S in range(8)]

    def issue(i):
        m, S = stages[i]
        if S == 0: set_srd(g, m[0], m[1])
        for x in range(4):
            g(f"s_add_u32 m0, s{S_T3}, {(i % 4) * 16384 + x * 1024}\ns_mov_b32 s{S_T0}, {(64 * S + 4 * x) * stride}")
            g(f"buffer_load_dwordx4 v{DM}, {WD}, s{S_T0} offen lds")

    for i in range(3): issue(i)
    for i, (m, S) in enumerate(stages):
        g(f"s_waitcnt vmcnt({4 * min(2, len(stages) - 1 - i)}) lgkmcnt(0)\ns_barrier")
        if i + 3 < len(stages): issue(i + 3)
        for ks in range(4):
            for x in range(2):
                g(f"ds_read_b64_tr_b16 {rg(m[2], m[3] + 4*(4*S+ks) + 2*x, 2)}, v{RT if m[4] else RN} offset:{(i % 4)*16384 + ks*4096 + x*1024}")
    g("s_waitcnt lgkmcnt(0)")


def xn_dma(g, seg_sgpr_plus):
    g(f"s_add_u32 s{S_T0}, s{S_SEG}, {seg_sgpr_plus}\ns_lshl_b32 s{S_T0}, s{S_T0}, 15\ns_add_u32 s{S_T0}, s{S_T0}, s{S_XO}")
    for hh in range(2):
        g(f"s_add_u32 m0, s{S_LB}, {hh*4096}\ns_add_u32 s{S_T1}, s{S_T0}, {hh*4096}")
        for x in range(4):
            g(f"buffer_load_dwordx4 v1, {WSD}, s{S_T1} offen offset:{x*1024} sc1 lds")
    g(f"s_xor_b32 s{S_LB}, s{S_LB}, 32768")


def gemm_loop(g, tag, mats, nst, epilogue, fshift):
    XF, ACC = 16, 32
    g(f"""
    v_and_b32 v4, 63, v0
    v_lshlrev_b32 v1, 4, v4
    v_mov_b32 v2, v1
    s_lshl_b32 s{S_LB}, s{S_WAVE}, 13
    s_add_u32 s{S_XO}, s{S_LB}, {WS_XN}
    s_mov_b32 s{S_PREV}, -1
    """)
    spin_counter(g, f"{tag}_ln", DBG_LN, 64)
    xn_dma(g, 0)
    g(f"s_waitcnt vmcnt(0)\nL_{tag}_seg:")
    m0 = g.mark()
    g(f"s_waitcnt vmcnt({nst})\ns_barrier")
    xn_dma(g, NROWG)
    rd = lambda ks: f"ds_read_b128 {v(XF+4*(ks%4),4)}, v2 offset:{ks*1024}"
    for ks in range(3): g(rd(ks))
    for ks in range(32):
        g(f"s_waitcnt lgkmcnt({min(2, 31-ks)})")
        for j, m in enumerate(mats):
            w_, x_ = rg(m[2], m[3] + 4*ks, 4), v(XF + 4*(ks % 4), 4)
            g(mf32(ACC + 16*j, w_, x_, ks == 0) if m[4] else mf32(ACC + 16*j, x_, w_, ks == 0))
            if j == 0 and ks + 3 < 32: g(rd(ks + 3))
        if ks == 12:
            g(f"s_cmp_lt_i32 s{S_PREV}, 0\ns_cbranch_scc1 L_{tag}_nf\ns_waitcnt vmcnt(8)\ns_barrier")
            set_flag(g, f"{tag}_nf", S_PREV)
    g("v_xor_b32 v2, 0x8000, v2\ns_nop 7\ns_nop 1")
    epilogue(ACC)
    g(f"""
    s_lshl_b32 s{S_PREV}, s{S_SEG}, {fshift}
    s_add_u32 s{S_PREV}, s{S_PREV}, s{S_FA}
    s_add_u32 s{S_SEG}, s{S_SEG}, {NROWG}
    s_cmp_lt_u32 s{S_SEG}, {NSEG}
    s_cbranch_scc1 L_{tag}_seg
    """)
    bad = hazard.check(g.lines[m0:] + g.lines[m0:m0 + 40], tag)
    g("s_waitcnt vmcnt(0)\ns_barrier")
    set_flag(g, f"{tag}_lf", S_PREV)
    return bad


def tile_addr(g, dst, tshift):
    g(f"""
    v_bfe_u32 v5, v0, 4, 1
    v_mul_u32_u24 v{dst}, {tshift}, v5
    v_bfe_u32 v5, v0, 5, 1
    v_lshl_add_u32 v{dst}, v5, 8, v{dst}
    v_and_b32 v5, 15, v0
    v_lshl_add_u32 v{dst}, v5, 4, v{dst}
    s_lshl_b32 s{S_T0}, s{S_WAVE}, 10
    v_add_u32 v{dst}, s{S_T0}, v{dst}
    """)


def qkv_role(g, opt):
    mats = [(P_WK, 4*MB, "a", 0, 1), (P_WV, 4*MB, "a", 128, 0), (P_WQ, 4*MB, "v", 128, 1)]
    m0 = g.mark()
    g(f"""
    s_mul_i32 s{S_HD}, s{S_WI}, 52429
    s_lshr_b32 s{S_HD}, s{S_HD}, 18
    s_mul_i32 s{S_T0}, s{S_HD}, {NROWG}
    s_sub_u32 s{S_SEG}, s{S_WI}, s{S_T0}
    s_lshl_b32 s{S_COL}, s{S_HD}, 8
    s_add_u32 s{S_FA}, s{S_COL}, {WS_FLAGS}
    """)
    clear_flags(g, 2)
    count_up(g, "qkv_in", DBG_INIT)
    wstamp(g, opt, 0)
    load_w32(g, mats, 8192)
    wstamp(g, opt, 1)
    tile_addr(g, 8, 4096)
    g(f"""
    v_bfe_u32 v5, v0, 4, 1
    v_lshlrev_b32 v9, 10, v5
    v_bfe_u32 v5, v0, 5, 1
    v_lshl_add_u32 v9, v5, 9, v9
    v_and_b32 v5, 15, v0
    v_lshl_add_u32 v9, v5, 4, v9
    s_lshl_b32 s{S_T0}, s{S_WAVE}, 11
    s_add_u32 s{S_T0}, s{S_T0}, 8192
    v_add_u32 v9, s{S_T0}, v9
    """)
    bad = hazard.check(g.lines[m0:], "qkv prologue")

    def epi(ACC):
        P = 80
        g(f"""
        s_lshl_b32 s{S_O1}, s{S_SEG}, 5
        s_add_u32 s{S_O1}, s{S_O1}, s{S_HD}
        s_lshl_b32 s{S_O2}, s{S_O1}, 13
        s_add_u32 s{S_O2}, s{S_O2}, {WS_Q}
        s_lshl_b32 s{S_O1}, s{S_O1}, 14
        s_add_u32 s{S_O1}, s{S_O1}, {WS_KV}
        """)
        for rho in range(2):
            for x in range(4): g(f"v_cvt_pk_bf16_f32 v{P+4*rho+x}, v{ACC+8*rho+x}, v{ACC+8*rho+4+x}")
            g(f"buffer_store_dwordx4 {v(P+4*rho,4)}, v8, {WSD}, s{S_O1} offen offset:{512*rho} sc1")
        for be in range(2):
            for ri in range(4):
                r = ACC + 16 + 8*(ri & 1) + 4*(ri >> 1) + 2*be
                g(f"v_cvt_pk_bf16_f32 v{P+8+4*be+ri}, v{r}, v{r+1}")
            g(f"buffer_store_dwordx4 {v(P+8+4*be,4)}, v9, {WSD}, s{S_O1} offen offset:{256*be} sc1")
        for rho in range(2):
            for x in range(4): g(f"v_cvt_pk_bf16_f32 v{P+16+4*rho+x}, v{ACC+32+8*rho+x}, v{ACC+32+8*rho+4+x}")
            g(f"buffer_store_dwordx4 {v(P+16+4*rho,4)}, v8, {WSD}, s{S_O2} offen offset:{512*rho} sc1")

    return bad + gemm_loop(g, "qkv", mats, 6, epi, 2)


def ffn_role(g, opt):
    mats = [(P_WG, 512*2752, "a", 0, 1), (P_WU, 512*2752, "a", 128, 1)]
    m0 = g.mark()
    g(f"""
    s_sub_u32 s{S_O1}, s{S_WI}, 160
    s_mul_i32 s{S_HD}, s{S_O1}, 52429
    s_lshr_b32 s{S_HD}, s{S_HD}, 18
    s_mul_i32 s{S_T0}, s{S_HD}, {NROWG}
    s_sub_u32 s{S_SEG}, s{S_O1}, s{S_T0}
    s_lshl_b32 s{S_COL}, s{S_HD}, 8
    s_lshl_b32 s{S_FA}, s{S_HD}, 2
    s_add_u32 s{S_FA}, s{S_FA}, {WS_HF}
    """)
    layernorm(g, S_O1)
    count_up(g, "ffn_lnup", DBG_LN)
    wstamp(g, opt, 0)
    clear_flags(g, 6)
    count_up(g, "ffn_in", DBG_INIT)
    g(f"s_cmp_ge_u32 s{S_HD}, 11\ns_cbranch_scc1 L_p3")
    load_w32(g, mats, 2752)
    wstamp(g, opt, 1)
    tile_addr(g, 8, HM_SEG // 2)
    g(f"s_mov_b32 s{S_C0}, 0xffff0000\ns_mov_b32 s{S_C1}, 0xbdd2d3e8\ns_mov_b32 s{S_C2}, 0xc0135761")
    bad = hazard.check(g.lines[m0:], "ffn prologue")

    def epi(ACC):
        P, T = 80, 96
        U = ACC + 16
        g(f"""
        s_mul_i32 s{S_O1}, s{S_SEG}, {HM_SEG}
        s_lshl_b32 s{S_T0}, s{S_HD}, 12
        s_add_u32 s{S_O1}, s{S_O1}, s{S_T0}
        s_add_u32 s{S_O1}, s{S_O1}, {WS_HMID}
        v_mov_b32 v{T+16}, s{S_C2}
        """)

        def rnd(x, y):
            g(f"v_cvt_pk_bf16_f32 v{x}, v{x}, v{y}\nv_and_b32 v{y}, s{S_C0}, v{x}\nv_lshlrev_b32 v{x}, 16, v{x}")
        for rho in range(2):
            idx = [8*rho + i for i in range(8)]
            for x in range(4):
                rnd(ACC + 8*rho + x, ACC + 8*rho + 4 + x); rnd(U + 8*rho + x, U + 8*rho + 4 + x)
            for i in idx: g(f"v_mul_f32 v{T+i}, v{ACC+i}, v{ACC+i}")
            for i in idx: g(f"v_fma_f32 v{T+i}, v{T+i}, s{S_C1}, v{T+16}")
            for i in idx: g(f"v_mul_f32 v{T+i}, v{T+i}, v{ACC+i}")
            for i in idx: g(f"v_exp_f32 v{T+i}, v{T+i}")
            for i in idx: g(f"v_add_f32 v{T+i}, 1.0, v{T+i}")
            for i in idx: g(f"v_rcp_f32 v{T+i}, v{T+i}")
            for i in idx: g(f"v_mul_f32 v{ACC+i}, v{ACC+i}, v{T+i}")
            for x in range(4): rnd(ACC + 8*rho + x, ACC + 8*rho + 4 + x)
            for i in idx: g(f"v_mul_f32 v{ACC+i}, v{ACC+i}, v{U+i}")
            for x in range(4): g(f"v_cvt_pk_bf16_f32 v{P+4*rho+x}, v{ACC+8*rho+x}, v{ACC+8*rho+4+x}")
            g(f"buffer_store_dwordx4 {v(P+4*rho,4)}, v8, {WSD}, s{S_O1} offen offset:{512*rho} sc1")

    return bad + gemm_loop(g, "ffn", mats, 2, epi, 6)


def p3_role(g, opt):
    LN16, KPA, RWA, RRA, XA, KMW, KMR, VMW, VMR, HFA, OFA = 1, 2, 3, 4, 5, 6, 7, 8, 9, 12, 13
    GV, XV = 14, 16
    ACC, SC, PB, OA, KM, VM = 20, 28, 44, 52, 68, 84
    ST = 92
    WDR = 168
    L_RED, L_KM, L_VM = 0, 8192, 12288
    S_TH, S_SCL, S_QO, S_KO, S_PO, S_HO = S_HD, S_C1, S_O1, S_O2, S_FA, S_PREV
    m0 = g.mark()
    DM, RA = 1, 2
    g(f"""
    s_lshr_b32 s{S_TH}, s{S_TK}, 4
    s_and_b32 s{S_COL}, s{S_TK}, 15
    s_lshl_b32 s{S_COL}, s{S_COL}, 6
    v_and_b32 v4, 63, v0
    v_lshrrev_b32 v5, 4, v4
    v_bfe_u32 v6, v4, 2, 2
    v_and_b32 v7, 1, v6
    v_lshlrev_b32 v{DM}, 4, v7
    v_lshl_add_u32 v{DM}, v5, 2, v{DM}
    v_lshrrev_b32 v7, 1, v6
    v_add_u32 v{DM}, v{DM}, v7
    v_lshlrev_b32 v{DM}, 10, v{DM}
    v_and_b32 v7, 1, v5
    v_lshlrev_b32 v7, 1, v7
    v_and_b32 v8, 3, v4
    v_xor_b32 v8, v8, v7
    v_lshl_add_u32 v{DM}, v8, 4, v{DM}
    v_add_u32 v{DM}, s{S_COL}, v{DM}
    v_lshrrev_b32 v8, 2, v4
    v_lshlrev_b32 v{RA}, 6, v8
    v_lshl_add_u32 v{RA}, v7, 4, v{RA}
    v_and_b32 v8, 3, v4
    v_lshl_add_u32 v{RA}, v8, 3, v{RA}
    s_lshl_b32 s{S_T3}, s{S_WAVE}, 15
    v_add_u32 v{RA}, s{S_T3}, v{RA}
    v_xor_b32 v{RA+1}, 32, v{RA}
    s_lshl_b32 s{S_T1}, s{S_WAVE}, 20
    s_mul_i32 s{S_T2}, s{S_WAVE}, {11*32768}
    """)
    steps = [("o", k) for k in range(32)] + [("d", k) for k in range(11)]
    AH = 12

    def issue(i):
        m, k = steps[i]
        if k == 0: set_srd(g, P_WO if m == "o" else P_WD, 4*MB if m == "o" else 1376*1024)
        for x in range(2):
            g(f"s_add_u32 m0, s{S_T3}, {(i % 16)*2048 + x*1024}\ns_add_u32 s{S_T0}, s{S_T1 if m == 'o' else S_T2}, {k*32768 + x*2048}")
            g(f"buffer_load_dwordx4 v{DM}, {WD}, s{S_T0} offen lds")

    wreg = lambda m, k, t, o=0, n=4: a(8*k + 4*t + o, n) if m == "o" else v(WDR + 8*k + 4*t + o, n)
    for i in range(AH): issue(i)
    for i, (m, k) in enumerate(steps):
        g(f"s_waitcnt vmcnt({2*min(AH - 1, len(steps) - 1 - i)}) lgkmcnt(8)")
        if i + AH < len(steps): issue(i + AH)
        for t in range(2):
            for x in range(2):
                g(f"ds_read_b64_tr_b16 {wreg(m, k, t, 2*x, 2)}, v{RA+t} offset:{(i % 16)*2048 + x*1024}")
    g("s_waitcnt lgkmcnt(0)\ns_barrier")
    g(f"""
    v_and_b32 v20, 63, v0
    v_lshrrev_b32 v21, 4, v20
    v_and_b32 v22, 15, v20
    v_lshlrev_b32 v{LN16}, 4, v20
    v_bfe_u32 v23, v22, 1, 1
    v_lshlrev_b32 v{KPA}, 3, v23
    v_lshrrev_b32 v23, 2, v22
    v_lshl_add_u32 v{KPA}, v23, 1, v{KPA}
    v_and_b32 v24, 1, v22
    v_add_u32 v{KPA}, v{KPA}, v24
    v_lshl_add_u32 v{KPA}, v21, 4, v{KPA}
    v_lshlrev_b32 v{KPA}, 4, v{KPA}
    v_lshl_add_u32 v{KMR}, v23, 1, v24
    v_lshlrev_b32 v{KMR}, 4, v{KMR}
    v_mul_u32_u24 v24, 144, v21
    v_add_u32 v{KMR}, v{KMR}, v24
    v_add_u32 v{KMR}, {L_KM}, v{KMR}
    v_mul_u32_u24 v{KMW}, 144, v23
    v_lshl_add_u32 v{KMW}, v21, 5, v{KMW}
    v_and_b32 v24, 3, v22
    v_lshl_add_u32 v{KMW}, v24, 2, v{KMW}
    s_mul_i32 s{S_T0}, s{S_WAVE}, 576
    s_add_u32 s{S_T0}, s{S_T0}, {L_KM}
    v_add_u32 v{KMW}, s{S_T0}, v{KMW}
    v_lshlrev_b32 v{VMW}, 3, v0
    v_add_u32 v{VMW}, {L_VM}, v{VMW}
    s_lshr_b32 s{S_T0}, s{S_WAVE}, 1
    s_lshl_b32 s{S_T0}, s{S_T0}, 10
    s_add_u32 s{S_T0}, s{S_T0}, {L_VM}
    v_lshlrev_b32 v{VMR}, 3, v20
    v_add_u32 v{VMR}, s{S_T0}, v{VMR}
    s_lshl_b32 s{S_T0}, s{S_WAVE}, 11
    v_lshlrev_b32 v{RWA}, 7, v22
    v_lshl_add_u32 v{RWA}, v21, 4, v{RWA}
    v_add_u32 v{RWA}, s{S_T0}, v{RWA}
    v_lshlrev_b32 v{RRA}, 3, v0
    v_lshrrev_b32 v24, 4, v0
    v_lshlrev_b32 v{XA}, 10, v24
    v_lshl_add_u32 v{XA}, v22, 2, v{XA}
    s_lshl_b32 s{S_T0}, s{S_TH}, 14
    s_add_u32 s{S_T0}, s{S_T0}, s{S_COL}
    v_add_u32 v{XA}, s{S_T0}, v{XA}
    v_min_u32 v{HFA}, 10, v20
    v_lshlrev_b32 v{HFA}, 2, v{HFA}
    v_and_b32 v{OFA}, 7, v20
    s_lshl_b32 s{S_T0}, s{S_WAVE}, 3
    v_add_u32 v{OFA}, s{S_T0}, v{OFA}
    v_lshlrev_b32 v{OFA}, 2, v{OFA}
    s_and_b32 s{S_T0}, s{S_WAVE}, 1
    s_lshl_b32 s{S_T0}, s{S_T0}, 4
    v_add_u32 v22, s{S_T0}, v22
    v_lshlrev_b32 v21, 1, v21
    v_sub_u32 v22, v22, v21
    """)
    for T in range(2):
        for r in range(4):
            g(f"v_cmp_le_i32 s[{S_MK+2*(4*T+r)}:{S_MK+2*(4*T+r)+1}], {16*T + 8*(r >> 1) + (r & 1)}, v22")
    g(f"""
    s_mov_b32 s{S_OUT}, s{P_OUT}
    s_mov_b32 s{S_OUT+1}, s{P_OUT+1}
    s_mov_b32 s{S_OUT+2}, {2*MB}
    s_mov_b32 s{S_OUT+3}, 0x20000
    s_mov_b32 s{S_SCL}, 0x3e0293ee
    s_mov_b32 s{S_C0}, 0xffff0000
    s_mov_b32 s{S_C2}, 0xbfb8aa3b
    s_sub_u32 s{S_SEG}, s{S_XCC}, 1
    v_mov_b32 v{PB+5}, 0
    v_mov_b32 v{PB+6}, 0
    """)
    set_srd(g, P_X, 2 * MB)
    spin_counter(g, "p3_init", DBG_INIT, 224)
    bad = hazard.check(g.lines[m0:], "p3 prologue")

    def reduce(dst):
        g("s_nop 7")
        for t in range(2): g(f"ds_write_b128 v{RWA}, {v(ACC+4*t,4)} offset:{L_RED + 64*t}")
        g("s_waitcnt lgkmcnt(0)\ns_barrier")
        for x in range(4): g(f"ds_read_b64 {v(ACC+2*x,2)}, v{RRA} offset:{L_RED + 2048*x}")
        g(f"""
        s_waitcnt lgkmcnt(0)
        v_pk_add_f32 {v(ACC,2)}, {v(ACC,2)}, {v(ACC+2,2)}
        v_pk_add_f32 {v(ACC+4,2)}, {v(ACC+4,2)}, {v(ACC+6,2)}
        v_pk_add_f32 {v(ACC,2)}, {v(ACC,2)}, {v(ACC+4,2)}
        v_cvt_pk_bf16_f32 v{dst}, v{ACC}, v{ACC+1}
        v_and_b32 v{dst+1}, s{S_C0}, v{dst}
        v_lshlrev_b32 v{dst}, 16, v{dst}
        """)

    wstamp(g, opt, 3)
    g("L_p3_seg:")
    m1 = g.mark()
    g(f"s_lshl_b32 s{S_T0}, s{S_SEG}, 6\ns_add_u32 s{S_T2}, s{S_T0}, {WS_HF}")
    spin_flags(g, "p3_hf", HFA, S_T2)
    g(f"""
    s_lshl_b32 s{S_T0}, s{S_SEG}, 1
    s_add_u32 s{S_T0}, s{S_T0}, s{S_TH}
    s_mul_i32 s{S_HO}, s{S_T0}, {HM_SEG // 2}
    s_mul_i32 s{S_T1}, s{S_WAVE}, {11*1024}
    s_add_u32 s{S_HO}, s{S_HO}, s{S_T1}
    s_add_u32 s{S_HO}, s{S_HO}, {WS_HMID}
    s_cmp_eq_u32 s{S_WAVE}, 3
    s_cselect_b32 s{S_T1}, 0x40000000, 0
    """)
    for k in range(11):
        if k == 10: g(f"s_add_u32 s{S_HO}, s{S_HO}, s{S_T1}")
        g(f"buffer_load_dwordx4 {v(ST+4*k,4)}, v{LN16}, {WSD}, s{S_HO} offen offset:{(k & 3)*1024} sc1")
        if k & 3 == 3: g(f"s_add_u32 s{S_HO}, s{S_HO}, 4096")
    g(f"s_lshl_b32 s{S_XO}, s{S_SEG}, 15\nbuffer_load_dword v{XV}, v{XA}, {WD}, s{S_XO} offen")
    for k in range(11):
        g(f"s_waitcnt vmcnt({11-k})")
        for t in range(2): g(mf16(ACC + 4*t, wreg("d", k, t), v(ST + 4*k, 4), k == 0))
    reduce(GV)
    g(f"""
    v_mul_f32 v{ACC}, s{S_C2}, v{GV}
    v_mul_f32 v{ACC+1}, s{S_C2}, v{GV+1}
    v_exp_f32 v{ACC}, v{ACC}
    v_exp_f32 v{ACC+1}, v{ACC+1}
    s_nop 0
    v_add_f32 v{ACC}, 1.0, v{ACC}
    v_add_f32 v{ACC+1}, 1.0, v{ACC+1}
    v_rcp_f32 v{ACC}, v{ACC}
    v_rcp_f32 v{ACC+1}, v{ACC+1}
    s_waitcnt vmcnt(0)
    v_pk_mul_f32 {v(GV,2)}, {v(GV,2)}, {v(ACC,2)}
    v_cvt_pk_bf16_f32 v{GV}, v{GV}, v{GV+1}
    v_and_b32 v{GV+1}, s{S_C0}, v{GV}
    v_lshlrev_b32 v{GV}, 16, v{GV}
    v_and_b32 v{XV+1}, s{S_C0}, v{XV}
    v_lshlrev_b32 v{XV}, 16, v{XV}
    """)
    QR_, KR_, VR_ = ST, ST + 16, ST + 48
    g(f"""
    s_lshl_b32 s{S_T0}, s{S_TK}, 6
    s_add_u32 s{S_T0}, s{S_T0}, s{S_SEG}
    s_lshl_b32 s{S_T0}, s{S_T0}, 2
    s_add_u32 s{S_T2}, s{S_T0}, {WS_FLAGS}
    v_mov_b32 v10, 0
    """)
    spin_flags(g, "p3_kv", 10, S_T2)
    g(f"""
    s_lshl_b32 s{S_T0}, s{S_SEG}, 5
    s_add_u32 s{S_T0}, s{S_T0}, s{S_TK}
    s_lshl_b32 s{S_QO}, s{S_T0}, 13
    s_and_b32 s{S_T1}, s{S_WAVE}, 1
    s_lshl_b32 s{S_T1}, s{S_T1}, 12
    s_add_u32 s{S_QO}, s{S_QO}, s{S_T1}
    s_add_u32 s{S_QO}, s{S_QO}, {WS_Q}
    s_lshl_b32 s{S_KO}, s{S_T0}, 14
    s_add_u32 s{S_KO}, s{S_KO}, {WS_KV}
    s_lshl_b32 s{S_PO}, s{S_T0}, 2
    s_add_u32 s{S_PO}, s{S_PO}, s{S_WAVE}
    s_lshl_b32 s{S_PO}, s{S_PO}, 10
    s_add_u32 s{S_PO}, s{S_PO}, {WS_PUB}
    s_add_u32 s{S_T1}, s{S_KO}, 4096
    s_lshr_b32 s{S_T2}, s{S_WAVE}, 1
    s_lshl_b32 s{S_T2}, s{S_T2}, 12
    s_add_u32 s{S_T2}, s{S_T2}, s{S_KO}
    s_add_u32 s{S_T2}, s{S_T2}, 8192
    """)
    for x in range(4):
        g(f"buffer_load_dwordx4 {v(QR_+4*x,4)}, v{LN16}, {WSD}, s{S_QO} offen offset:{x*1024} sc1")
        g(f"buffer_load_dwordx4 {v(KR_+4*x,4)}, v{KPA}, {WSD}, s{S_KO} offen offset:{x*1024} sc1")
        g(f"buffer_load_dwordx4 {v(KR_+16+4*x,4)}, v{KPA}, {WSD}, s{S_T1} offen offset:{x*1024} sc1")
    for x in range(4):
        g(f"buffer_load_dwordx4 {v(VR_+4*x,4)}, v{LN16}, {WSD}, s{S_T2} offen offset:{x*1024} sc1")
    for x in range(4):
        g(f"s_waitcnt vmcnt({4 + 3*(3-x)})")
        for T in range(2): g(mf16(SC + 4*T, v(KR_ + 16*T + 4*x, 4), v(QR_ + 4*x, 4), x == 0))
    MX, MY = SC + 12, SC + 13
    g(f"v_mov_b32 v{MY}, 0xd028965f\ns_nop 7")
    for i in range(8): g(f"v_cndmask_b32 v{SC+i}, v{MY}, v{SC+i}, s[{S_MK+2*i}:{S_MK+2*i+1}]")
    g(f"v_max3_f32 v{MX}, v{SC}, v{SC+1}, v{SC+2}\nv_max3_f32 v{MX}, v{MX}, v{SC+3}, v{SC+4}\nv_max3_f32 v{MX}, v{MX}, v{SC+5}, v{SC+6}\nv_max_f32 v{MX}, v{MX}, v{SC+7}")
    g(f"""
    L_p3_pub:
    buffer_load_dwordx4 {v(OA,4)}, v{LN16}, {WSD}, s{S_PO} offen sc1
    s_add_u32 s{S_SPIN}, s{S_SPIN}, 1
    s_cmp_gt_u32 s{S_SPIN}, {SPIN_MAX}
    s_cbranch_scc1 L_p3_pub_out
    s_waitcnt vmcnt(0)
    v_max3_u32 v11, v{OA}, v{OA+1}, v{OA+2}
    v_max_u32 v11, v11, v{OA+3}
    v_cmp_eq_u32 vcc, s{S_SENT}, v11
    s_cbranch_vccz L_p3_pub_out
    s_sleep {opt.get('psleep', 2)}
    s_branch L_p3_pub
    L_p3_pub_out:
    s_waitcnt vmcnt(0)
    ds_write2_b32 v{KMW}, v{OA}, v{OA+1} offset0:0 offset1:4
    ds_write_b64 v{VMW}, {v(OA+2,2)}
    s_waitcnt lgkmcnt(0)
    s_barrier
    """)
    for x in range(4): g(f"ds_read_b128 {v(KM+4*x,4)}, v{KMR} offset:{576*x}")
    for x in range(2): g(f"ds_read_b64 {v(VM+2*x,2)}, v{VMR} offset:{512*x}")
    for x in range(4):
        g(f"s_waitcnt lgkmcnt({5-x})")
        g(mf16(SC + 8, v(KM + 4*x, 4), v(QR_ + 4*x, 4), x == 0))
    g(f"""
    s_lshl_b32 s{S_T0}, s{S_SEG}, 1
    s_and_b32 s{S_T1}, s{S_WAVE}, 1
    s_add_u32 s{S_T0}, s{S_T0}, s{S_T1}
    s_lshl_b32 s{S_T0}, s{S_T0}, 5
    s_add_u32 s{S_T0}, s{S_T0}, s{S_TK}
    s_lshl_b32 s{S_T0}, s{S_T0}, 2
    s_and_b32 s{S_T1}, s{S_WAVE}, 2
    s_add_u32 s{S_T0}, s{S_T0}, s{S_T1}
    s_lshl_b32 s{S_T0}, s{S_T0}, 10
    s_add_u32 s{S_T0}, s{S_T0}, {WS_O}
    v_max3_f32 v{MX}, v{MX}, v{SC+8}, v{SC+9}
    """)

    def cross(r, t, op):
        for sw in (16, 32):
            g(f"v_mov_b32 v{t}, v{r}\ns_nop 1\nv_permlane{sw}_swap_b32 v{r}, v{t}\n{op} v{r}, v{r}, v{t}")
    cross(MX, MY, "v_max_f32")
    g(f"v_mul_f32 v{MX}, s{S_SCL}, v{MX}")
    for i in range(10): g(f"v_fma_f32 v{SC+i}, v{SC+i}, s{S_SCL}, -v{MX}")
    for i in range(10): g(f"v_exp_f32 v{SC+i}, v{SC+i}")
    for ri in range(4):
        r = SC + 4*(ri & 1) + 2*(ri >> 1)
        g(f"v_cvt_pk_bf16_f32 v{PB+ri}, v{r}, v{r+1}")
    g(f"v_cvt_pk_bf16_f32 v{PB+4}, v{SC+8}, v{SC+9}\nv_cvt_pk_bf16_f32 v{PB+7}, v{SC+8}, v{SC+9}\ns_waitcnt lgkmcnt(0)")
    for e in range(4):
        g(mf16(OA + 4*e, v(VR_ + 4*e, 4), v(PB, 4), True))
        g(f"v_add_f32 v{SC+2*e}, v{SC+2*e}, v{SC+2*e+1}")
    sums = [f"v_add_f32 v{SC+8}, v{SC+8}, v{SC+9}", f"v_add_f32 v{SC}, v{SC}, v{SC+2}", f"v_add_f32 v{SC+4}, v{SC+4}, v{SC+6}", f"v_add_f32 v{SC}, v{SC}, v{SC+8}"]
    for e in range(4):
        g(f"v_mfma_f32_16x16x16_bf16 {v(OA+4*e,4)}, {v(VM+2*(e >> 1),2)}, {v(PB+4+2*(e & 1),2)}, {v(OA+4*e,4)}")
        g(sums[e])
    g(f"v_add_f32 v{SC}, v{SC}, v{SC+4}")
    cross(SC, SC + 1, "v_add_f32")
    g(f"v_rcp_f32 v{SC}, v{SC}\ns_nop 0")
    for x in range(2):
        for i in range(8): g(f"v_mul_f32 v{OA+8*x+i}, v{OA+8*x+i}, v{SC}")
        for r in range(4): g(f"v_cvt_pk_bf16_f32 v{KM+4*x+r}, v{OA+8*x+r}, v{OA+8*x+4+r}")
        g(f"buffer_store_dwordx4 {v(KM+4*x,4)}, v{LN16}, {WSD}, s{S_T0} offen offset:{x*1024} sc1")
    g(f"""
    s_lshl_b32 s{S_T2}, s{S_SEG}, 7
    s_add_u32 s{S_T2}, s{S_T2}, {WS_OF}
    s_lshl_b32 s{S_T1}, s{S_TK}, 2
    s_add_u32 s{S_T1}, s{S_T1}, s{S_T2}
    s_lshl_b32 s{S_T0}, s{S_SEG}, 1
    s_add_u32 s{S_T0}, s{S_T0}, s{S_TH}
    s_lshl_b32 s{S_T0}, s{S_T0}, 2
    s_add_u32 s{S_T0}, s{S_T0}, s{S_WAVE}
    s_lshl_b32 s{S_T0}, s{S_T0}, 15
    s_add_u32 s{S_HO}, s{S_T0}, {WS_O}
    s_waitcnt vmcnt(0)
    s_barrier
    """)
    set_flag(g, "p3_of", S_T1)
    spin_flags(g, "p3_ow", OFA, S_T2, 0)
    NB = 16

    def old(k):
        g(f"buffer_load_dwordx4 {v(ST+4*(k % NB),4)}, v{LN16}, {WSD}, s{S_HO} offen offset:{(k & 3)*1024} sc1")
        if k & 3 == 3: g(f"s_add_u32 s{S_HO}, s{S_HO}, 4096")
    for k in range(NB): old(k)
    for k in range(32):
        g(f"s_waitcnt vmcnt({min(NB - 1, 31 - k)})")
        for t in range(2): g(mf16(ACC + 4*t, wreg("o", k, t), v(ST + 4*(k % NB), 4), k == 0))
        if k + NB < 32: old(k + NB)
    reduce(SC)
    g(f"""
    v_pk_mul_f32 {v(SC,2)}, {v(SC,2)}, {v(GV,2)}
    v_cvt_pk_bf16_f32 v{SC}, v{SC}, v{SC+1}
    v_and_b32 v{SC+1}, s{S_C0}, v{SC}
    v_lshlrev_b32 v{SC}, 16, v{SC}
    v_pk_add_f32 {v(SC,2)}, {v(SC,2)}, {v(XV,2)}
    v_cvt_pk_bf16_f32 v{SC}, v{SC}, v{SC+1}
    buffer_store_dword v{SC}, v{XA}, s[{S_OUT}:{S_OUT+3}], s{S_XO} offen
    s_add_u32 s{S_SEG}, s{S_SEG}, 7
    s_cmp_lt_u32 s{S_SEG}, {NSEG}
    s_barrier
    s_cbranch_scc1 L_p3_seg
    """)
    bad += hazard.check(g.lines[m1:], "p3 loop")
    wstamp(g, opt, 4, True)
    g("s_waitcnt vmcnt(0)\ns_endpgm")
    return bad


def worker_roles(g, opt):
    m0 = g.mark()
    worker_init(g)
    bad = hazard.check(g.lines[m0:], "worker init")
    g(f"s_cmp_ge_u32 s{S_WI}, 160\ns_cbranch_scc1 L_ffn")
    bad += qkv_role(g, opt)
    g("s_branch L_p3\nL_ffn:")
    bad += ffn_role(g, opt)
    g("L_p3:")
    wstamp(g, opt, 2)
    bad += p3_role(g, opt)
    return bad
```

```python
import sys, json
import gen
opt = json.loads(sys.argv[1]) if len(sys.argv) > 1 else {}
dst = sys.argv[2] if len(sys.argv) > 2 else "recurrent_scan__memory_aug_recurrent_mem_tr__geglu_ffn__prompt.s"
t, bad = gen.build(opt)
assert not bad
ref = open("recurrent_scan__memory_aug_recurrent_mem_tr__geglu_ffn__prompt.s.ref").read().split("\n")
head = [l for l in ref if l.startswith(";") and "@launch" not in l]
open(dst, "w").write("\n".join(head) + "\n" + t)
print(dst, len(t))
```

```python
from asmlib import *
from layout import *

S_WS = 4
S_W = 8
P_X, P_MEM0, P_WQ, P_WK, P_WV, P_WO, P_SEG, P_BX, P_WG, P_WU, P_WD, P_OUT, P_DBG, P_WSP = range(16, 44, 2)
S_XCC, S_TK, S_WAVE = 44, 45, 46
S_SPIN = 3
S_SENT = 12
SENT = 0xffbfffbf
S_T0, S_T1, S_T2, S_T3 = 47, 48, 49, 50
S_STEP, S_H1ST, S_H1ST2, S_H1LD, S_H1LD2, S_TAG, S_H2LD, S_H2LD2, S_H2ST, S_KV, S_PUB, S_FREE0, S_SC, S_FL, S_FREE1 = range(51, 66)
S_HF = 66
S_RDY = 68
S_ONE = 70
S_H2RS, S_F12 = 72, 73
S_KV2, S_VV = 100, 101
IDX, LW, LM, H1ST, H2ST, QW, QR, KR, OW, FLG, TCH = range(1, 12)
VN, PA, VX, ACC, M, POOL, WRES = 12, 20, 24, 40, 64, 96, 144
FV, GM, FAD, FST = VX + 3, VX + 7, VX + 11, VX + 15
A = [ACC + 4 * i for i in range(6)]
LDS_WAVE = 36864
LDS_MISC = 147456
L_KX = LDS_MISC
L_QK = LDS_MISC + 8192
L_O = L_QK + 4096
SPIN_MAX = 1 << 13

G_R = [[(m, 0, t), (m, 1, t)] for m, t in (("q", 0), ("v", 1), ("k", 3), ("q", 7), ("k", 7), ("v", 7))]
G_M = G_R[1] + G_R[2] + G_R[3]
G_QK = G_R[4] + G_R[5] + G_R[0]
G_O = [("o", 6, 0), ("o", 6, 1), ("o", 7, 0), ("o", 7, 1), ("o", 5, 0), ("o", 5, 1)]
LDS_IDX = {k: i for i, k in enumerate(G_M + G_O + G_QK)}
LOC = {}
for i, k in enumerate(G_O):
    LOC[k] = ("v", POOL + 8 * i)
for k in G_M + G_QK:
    LOC[k] = ("v", POOL + 32 + 8 * k[1])
_n = 0
for k in [(m, x, t) for m in "qkv" for t in range(8) for x in range(2)] + [("o", x, t) for x in range(8) for t in range(2)]:
    if k in LOC: continue
    LOC[k] = ("a", 8 * _n) if _n < 32 else ("v", WRES + 8 * (_n - 32))
    _n += 1
assert _n == 46


def rng(f, b, n):
    return a(b, n) if f == "a" else v(b, n)


def wop(k):
    return rng(LOC[k][0], LOC[k][1], 8)


def smf(d, aop, k, abid=0):
    b = wop(k) if isinstance(k, tuple) else k
    return f"v_smfmac_f32_16x16x64_bf16 {v(d,4)}, {v(aop,4)}, {b}, {v(IDX)}" + (" abid:1" if abid else "")


def mf(d, x, y, c):
    return f"v_mfma_f32_16x16x32_bf16 {v(d,4)}, {v(x,4)}, {v(y,4)}, " + ("0" if c is None else v(c, 4))


def stage_reads(grp):
    return [f"ds_read_b128 {v(LOC[k][1]+4*hh,4)}, {v(LW)} offset:{LDS_IDX[k]*2048+hh*1024}" for k in grp for hh in range(2)]


def zero(base, n):
    return [f"v_mov_b64 {v(base+2*i,2)}, 0" for i in range(n // 2)]


def set_srd(g, ptr, nbytes):
    g(f"s_mov_b32 s{S_W}, s{ptr}\ns_mov_b32 s{S_W+1}, s{ptr+1}\ns_mov_b32 s{S_W+2}, {nbytes}\ns_mov_b32 s{S_W+3}, 0x20000")


def load_weights(g, hooks, nt, order):
    RA, RO, DQ, DO = 10, 12, 20, 21
    T0, T1, T2, T3 = 56, 57, 58, 59
    g(f"""
    v_and_b32 v{T0}, 63, v0
    v_lshrrev_b32 v{T1}, 4, v{T0}
    v_and_b32 v{T2}, 15, v{T0}
    s_and_b32 s{S_T0}, s{S_WAVE}, 1
    s_lshr_b32 s{S_T1}, s{S_WAVE}, 1
    s_lshl_b32 s{S_T1}, s{S_T1}, 6
    s_add_u32 s{S_T1}, s{S_T1}, s{S_T0}
    s_lshl_b32 s{S_T1}, s{S_T1}, 14
    s_lshl_b32 s{S_T2}, s{S_TK}, 8
    s_add_u32 s{S_T1}, s{S_T1}, s{S_T2}
    s_lshl_b32 s{S_T0}, s{S_T0}, 3
    v_lshlrev_b32 v{T3}, 1, v{T1}
    v_xor_b32 v{T3}, v{T3}, v{T2}
    v_xor_b32 v{DQ}, s{S_T0}, v{T3}
    v_lshlrev_b32 v{DQ}, 4, v{DQ}
    v_lshlrev_b32 v{DO}, 4, v{T3}
    v_lshrrev_b32 v{T2}, 1, v{T1}
    v_and_b32 v{T3}, 1, v{T1}
    v_lshl_add_u32 v{DQ}, v{T2}, 16, v{DQ}
    v_lshl_add_u32 v{DQ}, v{T3}, 17, v{DQ}
    v_add_u32 v{DQ}, s{S_T1}, v{DQ}
    v_lshl_add_u32 v{DO}, v{T2}, 12, v{DO}
    v_lshl_add_u32 v{DO}, v{T3}, 14, v{DO}
    s_lshl_b32 s{S_T1}, s{S_TK}, 17
    s_lshl_b32 s{S_T2}, s{S_WAVE}, 8
    s_add_u32 s{S_T1}, s{S_T1}, s{S_T2}
    v_add_u32 v{DO}, s{S_T1}, v{DO}
    v_xor_b32 v{DO+1}, 0x80, v{DO}
    """)
    g(f"""
    v_bfe_u32 v{T2}, v{T0}, 2, 2
    v_and_b32 v{T3}, 1, v{T1}
    v_lshl_add_u32 v{T3}, v{T3}, 2, v{T2}
    v_lshlrev_b32 v{T3}, 5, v{T3}
    v_lshl_add_u32 v{T3}, v{T2}, 8, v{T3}
    v_and_b32 v{T2}, 3, v{T0}
    v_lshl_add_u32 v{T3}, v{T2}, 3, v{T3}
    s_lshl_b32 s{S_T0}, s{S_WAVE}, 6
    v_xor_b32 v{RA}, s{S_T0}, v{T3}
    s_mov_b32 s{S_T0}, {LDS_WAVE}
    v_mul_lo_u32 v{T2}, s{S_T0}, v{T1}
    v_add_u32 v{RA}, v{RA}, v{T2}
    v_xor_b32 v{RA+1}, 32, v{RA}
    s_mul_i32 s{S_T3}, s{S_WAVE}, {LDS_WAVE}
    v_lshl_add_u32 v{RO}, v{T1}, 10, v{T3}
    v_add_u32 v{RO}, s{S_T3}, v{RO}
    """)
    for tau in range(1, 8):
        g(f"v_xor_b32 v{RO+tau}, {32*tau}, v{RO}")
    stages = [(m, t) for m in order for t in range(8)]
    park = {}
    for i, k in enumerate(G_QK): park[k] = ("v", POOL + 8 * i)
    for i, k in enumerate(G_O): park[k] = ("v", M + 8 * i) if i < 4 else ("v", VX + 8 * (i - 4))
    for k in G_M: park[k] = ("v", ACC + 8 * k[1])

    def issue(i):
        m, t = stages[i]
        if t == 0:
            set_srd(g, {"q": P_WQ, "k": P_WK, "v": P_WV, "o": P_WO}[m], 4 * MB)
        for x in range(4):
            if m == "o":
                row = 64 * (t >> 2) + 32 * ((t >> 1) & 1) + (t & 1) + 8 * (x >> 1) + 2 * (x & 1)
                so, vo = row * 1024, DO + (x & 1)
            else:
                so, vo = (256 * (x >> 1) + (x & 1) + 64 * (t >> 2) + 32 * ((t >> 1) & 1) + 4 * (t & 1)) * 8192, DQ
            g(f"s_add_u32 m0, s{S_T3}, {16384 + (i % 5) * 4096 + x * 1024}")
            g(f"s_mov_b32 s{S_T0}, {so}")
            g(f"buffer_load_dwordx4 v{vo}, s[{S_W}:{S_W+3}], s{S_T0} offen {nt} lds")

    for i in range(4):
        issue(i)
    for i, (m, t) in enumerate(stages):
        g(f"s_waitcnt vmcnt({4 * min(3, len(stages) - 1 - i)}) lgkmcnt(0)\ns_barrier")
        if i in hooks: hooks[i]()
        if i + 4 < len(stages):
            issue(i + 4)
        base = 16384 + (i % 5) * 4096
        for x in range(8):
            if m == "o":
                k, rho, ad, off = ("o", x, t >> 2), t & 3, RO + x, base
            else:
                k, rho, ad, off = (m, x >> 2, t), x & 3, RA + (x >> 2), base + (x & 3) * 1024
            f, b = park.get(k, LOC[k])
            g(f"ds_read_b64_tr_b16 {rng(f, b + 2*rho, 2)}, v{ad} offset:{off}")
        if (m, 0, t) in G_M:
            g("s_waitcnt lgkmcnt(0)")
            for sg in range(2):
                for hh in range(2):
                    g(f"ds_write_b128 v{LW}, {v(ACC+8*sg+4*hh,4)} offset:{LDS_IDX[(m,sg,t)]*2048+hh*1024}")
    g("s_waitcnt lgkmcnt(0)\ns_barrier")
    for k in G_O + G_QK:
        for hh in range(2):
            g(f"ds_write_b128 v{LW}, {v(park[k][1]+4*hh,4)} offset:{LDS_IDX[k]*2048+hh*1024}")
    g("s_waitcnt lgkmcnt(0)")


def setup_early(g, st):
    T0, T1, T2, T3 = 56, 57, 58, 59
    g(f"""
    v_and_b32 v{T0}, 63, v0
    v_lshlrev_b32 v{LM}, 4, v{T0}
    s_mul_i32 s{S_T0}, s{S_WAVE}, {LDS_WAVE}
    v_add_u32 v{LW}, s{S_T0}, v{LM}
    v_add_u32 v{LM}, {LDS_MISC}, v{LM}
    v_lshrrev_b32 v{T1}, 4, v{T0}
    v_and_b32 v{T2}, 15, v{T0}
    s_lshl_b32 s{S_T0}, s{S_WAVE}, 3
    v_lshrrev_b32 v{T3}, 3, v{T0}
    v_add_u32 v{T3}, s{S_T0}, v{T3}
    v_lshlrev_b32 v{H1ST}, 13, v{T3}
    v_lshl_add_u32 v{T3}, v{T3}, 1, s{S_TK}
    v_and_b32 v{T3}, 31, v{T3}
    v_lshl_add_u32 v{H1ST}, v{T3}, 7, v{H1ST}
    v_and_b32 v{T3}, 7, v{T0}
    v_lshl_add_u32 v{H1ST}, v{T3}, 3, v{H1ST}
    v_lshrrev_b32 v{T3}, 3, v{T2}
    v_lshlrev_b32 v{H2ST}, 29, v{T3}
    v_bfe_u32 v{T3}, v{T2}, 1, 1
    v_lshl_add_u32 v{H2ST}, v{T3}, 11, v{H2ST}
    v_bfe_u32 v{T3}, v{T2}, 2, 1
    v_lshl_add_u32 v{H2ST}, v{T3}, 7, v{H2ST}
    v_and_b32 v{T3}, 1, v{T2}
    v_lshl_add_u32 v{H2ST}, v{T3}, 3, v{H2ST}
    v_and_b32 v{T3}, 1, v{T1}
    v_lshl_add_u32 v{H2ST}, v{T3}, 4, v{H2ST}
    v_lshrrev_b32 v{T3}, 1, v{T1}
    v_lshl_add_u32 v{H2ST}, v{T3}, 30, v{H2ST}
    s_and_b32 s{S_T0}, s{S_TK}, 3
    s_lshl_b32 s{S_T0}, s{S_T0}, 5
    s_lshr_b32 s{S_T1}, s{S_TK}, 2
    s_lshl_b32 s{S_T1}, s{S_T1}, 8
    s_add_u32 s{S_T0}, s{S_T0}, s{S_T1}
    s_and_b32 s{S_T2}, s{S_WAVE}, 1
    s_lshl_b32 s{S_T2}, s{S_T2}, 12
    s_add_u32 s{S_T0}, s{S_T0}, s{S_T2}
    v_add_u32 v{H2ST}, s{S_T0}, v{H2ST}
    """)
    g(f"""
    s_mov_b32 s{S_STEP}, 0
    s_lshl_b32 s{S_T0}, s{S_TK}, 13
    s_add_u32 s{S_H1LD}, s{S_T0}, {WS_H1 - LDS_MISC}
    s_mov_b32 s{S_H1ST}, {WS_H1}
    s_mov_b32 s{S_H1ST2}, {WS_H1 + 4096}
    s_mov_b32 s{S_H2LD}, {WS_H2}
    s_mov_b32 s{S_H2LD2}, {WS_H2 + 4096}
    s_lshl_b32 s{S_T0}, s{S_TK}, 14
    s_add_u32 s{S_KV}, s{S_T0}, {WS_KV - LDS_MISC}
    s_lshl_b32 s{S_T0}, s{S_TK}, 2
    s_add_u32 s{S_T0}, s{S_T0}, s{S_WAVE}
    s_lshl_b32 s{S_T0}, s{S_T0}, 10
    s_add_u32 s{S_PUB}, s{S_T0}, {WS_PUB - LDS_MISC - 128*KB}
    s_lshl_b32 s{S_T0}, s{S_TK}, 8
    s_add_u32 s{S_FL}, s{S_T0}, {WS_FLAGS}
    s_mov_b32 s{S_HF}, 0xcccccccc
    s_mov_b32 s{S_HF+1}, 0xcccccccc
    s_mov_b32 s{S_SC}, 0x3e0293ee
    s_mov_b32 s{S_SC-1}, 0x3e0293ee
    v_mov_b64 v[60:61], -1
    v_mov_b64 v[62:63], -1
    s_lshl_b32 s{S_T1}, s{S_WAVE}, 11
    s_add_u32 s{S_T1}, s{S_T1}, s{S_H1LD}
    s_add_u32 s{S_H1LD}, s{S_H1LD}, s{S_T2}
    """)
    for x in range(2):
        g(f"buffer_store_dwordx4 v[60:63], v{LM}, s[{S_WS}:{S_WS+3}], s{S_T1} offen offset:{x*1024} {st}")
    g(f"""
    s_mov_b32 s{S_H2RS}, {WS_H2 + 8192}
    s_lshl_b32 s{S_F12}, s{S_TK}, 7
    s_add_u32 s{S_F12}, s{S_F12}, {WS_PF}
    v_mov_b32 v51, 0
    buffer_store_dword v51, v51, s[{S_WS}:{S_WS+3}], s{S_F12} offen sc1
    """)
    set_srd(g, P_MEM0, 8192)
    g(f"""
    s_lshr_b32 s{S_T0}, s{S_TK}, 3
    s_lshl_b32 s{S_T0}, s{S_T0}, 8
    s_and_b32 s{S_T1}, s{S_TK}, 1
    s_lshl_b32 s{S_T1}, s{S_T1}, 4
    s_add_u32 s{S_T0}, s{S_T0}, s{S_T1}
    s_lshr_b32 s{S_T1}, s{S_T2}, 5
    s_add_u32 s{S_T0}, s{S_T0}, s{S_T1}
    s_and_b32 s{S_T1}, s{S_TK}, 6
    s_lshl_b32 s{S_T1}, s{S_T1}, 10
    s_add_u32 s{S_T0}, s{S_T0}, s{S_T1}
    v_and_b32 v{T3}, 1, v{T1}
    v_lshlrev_b32 v{T3}, 10, v{T3}
    v_and_b32 v52, 3, v{T2}
    v_lshl_add_u32 v{T3}, v52, 2, v{T3}
    v_bfe_u32 v52, v{T2}, 2, 1
    v_lshl_add_u32 v{T3}, v52, 6, v{T3}
    buffer_load_ushort v52, v{T3}, s[{S_W}:{S_W+3}], s{S_T0} offen
    buffer_load_ushort v53, v{T3}, s[{S_W}:{S_W+3}], s{S_T0} offen offset:32
    buffer_load_ushort v54, v{T3}, s[{S_W}:{S_W+3}], s{S_T0} offen offset:2
    buffer_load_ushort v55, v{T3}, s[{S_W}:{S_W+3}], s{S_T0} offen offset:34
    """)


def store_mem0(g, st):
    g(f"""
    s_mov_b32 s{S_T0}, {WS_H2}
    v_lshl_or_b32 v52, v53, 16, v52
    v_lshl_or_b32 v53, v55, 16, v54
    v_cmp_ne_u32 vcc, s{S_SENT}, v52
    s_nop 1
    v_cndmask_b32 v52, -1, v52, vcc
    v_cmp_ne_u32 vcc, s{S_SENT}, v53
    s_nop 1
    v_cndmask_b32 v53, -1, v53, vcc
    buffer_store_dwordx2 v[52:53], v{H2ST}, s[{S_WS}:{S_WS+3}], s{S_T0} offen {st}
    """)


def setup_late(g):
    T0, T1, T2, T3 = 56, 57, 58, 59
    g(f"""
    v_and_b32 v{T0}, 63, v0
    v_lshrrev_b32 v{T1}, 4, v{T0}
    v_and_b32 v{T2}, 15, v{T0}
    v_mov_b32 v{IDX}, 0x44444444
    v_mov_b32 v{T3}, 0x4e1eeeee
    v_cndmask_b32 v{IDX}, v{IDX}, v{T3}, s[{S_HF}:{S_HF+1}]
    s_lshl_b32 s{S_T0}, s{S_WAVE}, 10
    s_add_u32 s{S_T0}, s{S_T0}, {L_QK}
    v_lshrrev_b32 v{T3}, 2, v{T2}
    v_lshlrev_b32 v{QW}, 7, v{T3}
    v_lshl_add_u32 v{QW}, v{T1}, 5, v{QW}
    v_and_b32 v{T3}, 1, v{T3}
    v_lshlrev_b32 v{T3}, 6, v{T3}
    v_xor_b32 v{QW}, v{QW}, v{T3}
    v_and_b32 v{T3}, 3, v{T2}
    v_lshl_add_u32 v{QW}, v{T3}, 2, v{QW}
    v_add_u32 v{QW}, s{S_T0}, v{QW}
    v_lshlrev_b32 v{QR}, 7, v{T1}
    v_add_u32 v{QR}, {L_QK}, v{QR}
    v_and_b32 v{T3}, 1, v{T2}
    v_lshl_add_u32 v{QR}, v{T3}, 4, v{QR}
    v_add_u32 v{KR}, 512, v{QR}
    v_lshrrev_b32 v{T3}, 2, v{T2}
    v_lshl_add_u32 v{QR}, v{T3}, 5, v{QR}
    v_lshrrev_b32 v{T3}, 3, v{T2}
    v_lshl_add_u32 v{KR}, v{T3}, 5, v{KR}
    v_lshrrev_b32 v{T3}, 1, v{T2}
    v_xor_b32 v{T3}, v{T3}, v{T2}
    v_and_b32 v{T3}, 2, v{T3}
    v_lshl_add_u32 v{KR}, v{T3}, 5, v{KR}
    v_and_b32 v{T3}, 1, v{T1}
    v_lshlrev_b32 v{T3}, 6, v{T3}
    v_xor_b32 v{QR}, v{QR}, v{T3}
    v_xor_b32 v{KR}, v{KR}, v{T3}
    s_lshl_b32 s{S_T0}, s{S_WAVE}, 9
    s_add_u32 s{S_T0}, s{S_T0}, {L_O}
    v_lshrrev_b32 v{T3}, 3, v{T2}
    v_lshlrev_b32 v{OW}, 8, v{T3}
    v_lshl_add_u32 v{OW}, v{T1}, 6, v{OW}
    v_bfe_u32 v{T3}, v{T2}, 2, 1
    v_lshl_add_u32 v{OW}, v{T3}, 5, v{OW}
    v_and_b32 v{T3}, 3, v{T2}
    v_lshl_add_u32 v{OW}, v{T3}, 2, v{OW}
    v_add_u32 v{OW}, s{S_T0}, v{OW}
    """)
    g(f"s_mov_b32 s{S_ONE}, 0x3f803f80\ns_mov_b32 s{S_ONE+1}, 0x3f803f80")
    for x in zero(PA, 4) + zero(VX, 16) + zero(ACC, 16): g(x)
    g(f"""
    v_lshrrev_b32 v{T3}, 3, v{T0}
    v_lshlrev_b32 v{GM}, 8, v{T3}
    v_and_b32 v{T3}, 7, v{T0}
    v_lshl_add_u32 v{GM}, v{T3}, 4, v{GM}
    v_min_u32 v{FST}, 1, v{T0}
    v_lshlrev_b32 v{FST}, 30, v{FST}
    """)


def kv_addr(w):
    return [f"s_add_u32 s{S_KV2}, s{S_KV}, 4096", f"s_add_u32 s{S_VV}, s{S_KV}, {8192 + w*2048}"]


def k_load(w, hi):
    return [f"s_mov_b32 m0, {L_KX + hi*4096}",
            f"buffer_load_dwordx4 v{LM}, s[{S_WS}:{S_WS+3}], s{S_KV2 if hi else S_KV} offen offset:{w*1024} lds ;@kv"]


def v_loads():
    return [f"buffer_load_dwordx4 {v(VN+4*sg,4)}, v{LM}, s[{S_WS}:{S_WS+3}], s{S_VV} offen offset:{sg*1024} ;@kv" for sg in range(2)]


def mzero(base, n):
    op = {4: "4x4x1_16b", 16: "16x16x1_4b"}[n]
    return f"v_mfma_f32_{op}_f32 {v(base,n)}, v{PA+3}, v{PA+3}, 0"


def v_moves(src_):
    return [f"v_mov_b64 {v(VX+4*i,2)}, {v(src_+2*i,2)}" for i in range(4)]


def wait_flag(g, tag, seg_sgpr):
    g(f"""
    L_{tag}:
    buffer_load_dword v{FLG}, v{TCH}, s[{S_WS}:{S_WS+3}], s{S_FL} offen sc1
    s_add_u32 s{S_SPIN}, s{S_SPIN}, 1
    s_cmp_gt_u32 s{S_SPIN}, {SPIN_MAX}
    s_cbranch_scc1 L_{tag}_out
    s_waitcnt vmcnt(0)
    v_cmp_eq_u32 s[{S_RDY}:{S_RDY+1}], 1, v{FLG}
    s_nop 4
    s_bitcmp1_b64 s[{S_RDY}:{S_RDY+1}], s{seg_sgpr}
    s_cbranch_scc0 L_{tag}
    L_{tag}_out:
    s_waitcnt vmcnt(0)
    """)


def wave_loop(g, w, st, tag, opt):
    stamps = opt.get("stamps")
    WSD = f"s[{S_WS}:{S_WS+3}]"
    nst = [0]

    def stamp():
        if not stamps: return []
        i = nst[0]; nst[0] += 1
        if isinstance(stamps, list) and i not in stamps: return []
        if opt.get("rt") and w + 1 != opt["rt"]: return []
        return [f"s_mem{'real' if opt.get('rt') and not opt.get('cyc') else ''}time s[{74+2*i}:{75+2*i}]"]

    L = lambda x: f"L_{tag}{w}_{x}"
    T0 = 56
    KR_, OW_, SEL = (FAD, FST, KR) if w >= 2 else (KR, OW, None)
    kxr = [f"ds_read_b128 {v(POOL+4*c,4)}, v{LM} offset:{c*1024}" for c in range(8)]
    if w == 0:
        g(f"v_lshlrev_b32 v{TCH}, 2, v0")
        wait_flag(g, f"{tag}{w}_f0", S_STEP)
        g(f"s_mov_b32 s{S_T2}, 1")
        wait_flag(g, f"{tag}{w}_f2", S_T2)
    if w >= 2:
        g(f"""
        v_and_b32 v{T0}, 15, v0
        v_and_b32 v{T0+1}, 1, v0
        v_mov_b32 v{KR_}, v{KR}
        v_mov_b32 v{OW_}, v{OW}
        v_lshlrev_b32 v{T0+1}, 4, v{T0+1}
        v_mov_b32 v{T0+2}, 0x3f80
        v_lshlrev_b32 v{T0+1}, v{T0+1}, v{T0+2}
        v_lshrrev_b32 v{T0}, 1, v{T0}
        """)
        for i in range(4):
            g(f"v_cmp_eq_u32 vcc, {(0, 2, 1, 3)[i]}, v{T0}\ns_nop 1\nv_cndmask_b32 v{SEL+i}, 0, v{T0+1}, vcc")
    for x in zero(ACC + 16, 8): g(x)
    g("s_barrier")
    k0, k1 = k_load(w, 0), k_load(w, 1)
    nxt = [f"s_add_u32 s{S_KV}, s{S_KV}, {512*KB}"] + kv_addr(w)
    for x in [k0[0]] + kv_addr(w) + [k0[1], k1[0]] + v_loads() + [k1[1], "s_waitcnt vmcnt(0)"] + v_moves(VN) + ["s_barrier"] + kxr + nxt + ["s_waitcnt lgkmcnt(0)"]:
        g(x.split(";@")[0])
    if opt.get("count"):
        g("s_memtime s[92:93]\ns_memrealtime s[94:95]\ns_waitcnt lgkmcnt(0)\ns_mov_b32 s15, s94")
    body = []
    E = body.extend
    nops = lambda k: [f"s_nop {x}" for x in opt.get(k, [])]
    red = w >= 2
    MB_ = lambda t: L_O + (t - 4) * 1024
    mo = lambda t: (t & 1) * 2048 + ((t >> 1) & 1) * 128
    mld = lambda t: f"buffer_load_dwordx4 {v(M+4*t,4)}, v{GM}, {WSD}, s{S_H2LD if t < 4 else S_H2LD2} offen offset:{mo(t)} sc1"
    dma = f"buffer_load_dwordx4 v{GM}, {WSD}, s{S_H2LD2} offen offset:{mo(w)} sc1 lds ;@dma"
    SP, CK = M + 16 + 4 * w, PA + 2
    smp = mld(4 + w) + " ;@smp"
    R = A[5]
    pace = [f"s_nop {opt.get('pace', 10)}"]
    cl = [mld(t) + f" ;@c{t}" for t in range(4)]
    gather = [cl[0]] + pace + [cl[1]] + pace + [cl[2]] + pace + [cl[3]]
    nt = opt.get("nt", "")
    vl = v_loads()
    kvl = [x.replace(" lds ;@", f" {nt} lds ;@") if " lds" in x else x.replace(" ;@", f" {nt} ;@") for x in [k0[0], vl[0], k0[1], k1[0], vl[1], k1[1]]]
    cv = lambda d, q: f"v_cvt_pk_bf16_f32 v{d}, v{q}, v{q+1}"
    h1l = lambda HB: [f"buffer_load_dwordx4 {v(HB+4*t,4)}, v{LM}, {WSD}, s{S_H1LD} offen offset:{t*1024} sc1" for t in range(4)]
    two = opt.get("two", [1, 1])[w & 1]

    def reduce(HB, name):
        out = [f"{L(name)}:"]
        for t in range(4):
            out += [f"s_waitcnt vmcnt({3 - t + 4*two})", mf(R, SEL or 0, HB + 4*t, None if t == 0 else R)]
            out += [f"v_xor_b32 v{PA}, s{S_TAG}, v{HB}" if t == 0 else f"v_bitop3_b32 v{PA}, v{PA}, v{HB+4*t}, s{S_TAG} bitop3:0xf6",
                    f"v_bitop3_b32 v{PA}, v{PA}, v{HB+4*t+2}, s{S_TAG} bitop3:0xf6"]
        return out + ([f"v_and_b32 v{PA}, 1, v{PA}", f"v_cmp_eq_u32 vcc, 1, v{PA}", "s_nop 2"] +
                      [f"v_add_f32_dpp v{HB+r}, v{R+r}, v{R+r} row_ror:8 row_mask:0xf bank_mask:0xf" for r in range(4)] +
                      [cv(HB + 4, HB), cv(HB + 5, HB + 2), f"s_cbranch_vccnz {L(name + 'no')}", f"{L(name + 'ok')}:",
                       f"buffer_store_dwordx2 {v(HB+4,2)}, v{H2ST}, {WSD}, s{S_H2ST} offen {st}"])
    clean = [f"v_mov_b64 {v(PA,2)}, s[{S_SENT}:{S_SENT+1}]", mzero(R, 4)]
    h2rs = f"buffer_store_dwordx2 {v(PA,2)}, v{H2ST}, {WSD}, s{S_H2RS} offen {st} ;@h2rs"
    E([f"{L('top')}:", "s_barrier"] + (stamp() if opt.get("rt") else []) + [f"{L('again')}:"])
    gather = [cl[0], f"s_mov_b32 m0, {MB_(4 + w) - mo(w)}"] + gather[1:] + (nops("p5") + [dma] if opt.get("dtop") else [])
    if red:
        i = gather.index(pace[0])
        E(gather[:i] + clean + [f"s_nop {max(opt.get('pace', 10) - 3, 0)}"] + gather[i+1:])
    else:
        E(gather)
    pubv = f"buffer_store_dwordx4 {v(VN+4,4)}, v{LM}, {WSD}, s{S_PUB} offen sc1"
    dump = []
    DT = M + 18
    if stamps:
        dump.extend(["s_waitcnt lgkmcnt(0)"] + [f"v_writelane_b32 v{DT}, s{74+2*i}, {i}" for i in range(9)])
        dump.extend([f"v_subrev_u32 v{DT+1}, {LDS_MISC}, v{LM}", f"v_lshrrev_b32 v{DT+1}, 2, v{DT+1}",
           f"s_lshl_b32 s{S_T0}, s{S_TK}, 2", f"s_add_u32 s{S_T0}, s{S_T0}, {w}", f"s_lshl_b32 s{S_T0}, s{S_T0}, 6", f"s_add_u32 s{S_T0}, s{S_T0}, s{S_STEP}",
           f"s_lshl_b32 s{S_T0}, s{S_T0}, 6", f"s_add_u32 s{S_T0}, s{S_T0}, {WS_STAMP}", "s_mov_b64 exec, 0xffff",
           f"buffer_store_dword v{DT}, v{DT+1}, {WSD}, s{S_T0} offen", "s_mov_b64 exec, -1"])
    if red and opt.get('rt', w + 1) == w + 1: E(dump)
    top_part = list(body)
    c0stamp = stamp()
    order = [(m, sg, t) for t in range(4) for m in "qkv" for sg in range(2)]
    order += [(m, sg, t) for m in "qkv" for t in range(4, 8) for sg in range(2)]
    acc = lambda k: A["qkv".index(k[0]) * 2 + k[1]]
    mm = [smf(acc(k), M + 4 * k[2], k) for k in order]
    rs = [tagged(stage_reads(x), f"r{i}") for i, x in enumerate(G_R)]
    mr = [f"ds_read_b128 {v(M+4*t,4)}, v{LM} offset:{MB_(t) - LDS_MISC} ;@m{t}" for t in range(4, 8)]
    add = lambda q, b: f"v_add_f32 v{q+b}, v{q+b}, v{q+2+b}"
    qr = [f"ds_read_b128 {v(M+4*x,4)}, v{QR} offset:{1024*x} ;@qr{x}" for x in range(4)]
    kr = [f"ds_read_b128 {v(M+16+4*x,4)}, v{KR_} offset:{1024*x} ;@kr{x}" for x in range(4)]
    ost = stage_reads(G_O)
    qfin = [add(A[0], 0), add(A[0], 1), add(A[1], 0), add(A[1], 1),
            f"v_cvt_pk_bf16_f32 v{A[0]+2}, v{A[0]}, v{A[1]}", f"v_cvt_pk_bf16_f32 v{A[0]+3}, v{A[0]+1}, v{A[1]+1}",
            f"ds_write_b32 v{QW}, v{A[0]+2} ;@qw", f"ds_write_b32 v{QW}, v{A[0]+3} offset:16 ;@qw"]
    kfin = [add(A[2], 0), add(A[2], 1), add(A[3], 0), add(A[3], 1),
            f"v_cvt_pk_bf16_f32 v{A[3]}, v{A[2]}, v{A[3]}", f"v_cvt_pk_bf16_f32 v{A[3]+1}, v{A[2]+1}, v{A[3]+1}",
            f"ds_write_b32 v{QW}, v{A[3]} offset:512 ;@kw", f"ds_write_b32 v{QW}, v{A[3]+1} offset:528 ;@kw"]
    b0stamp = stamp()

    b0 = opt.get("b0", 19)

    def common():
        F = Gaps()
        if red: F.put("x", 4 + w, h2rs)
        seq = [pubv, kvl[2], kvl[1], kvl[5], kvl[4]] + ([f"buffer_load_dword v{FLG}, v{TCH}, {WSD}, s{S_FL} offen sc1 ;@kv"] if w == 0 else [])
        if w == 1: F.put("x", 17, f"buffer_store_dword v{FV}, v{FST}, {WSD}, s{S_F12} offen sc1")
        kgs = opt.get("kgs", [[15, 20, 24, 28, 34, 35], [16, 21, 25, 28, 35], [17, 22, 26, 29, 36], [18, 23, 27, 31, 36]])[w]
        for j, x in enumerate(seq): F.put("x" if kgs[j] < 32 else "d", kgs[j], x)
        F.put("s", 16, kvl[0]); F.put("s", 26, kvl[3])
        F.put("s", 28, f"s_add_u32 s{S_PUB}, s{S_PUB}, {128*KB}")
        F.put("s", b0, "@wait vm=dma", "s_barrier", *b0stamp)
        mg, r3g = {18: ((19, 20, 22, 24), (21, 23, 25, 26)), 19: ((20, 21, 23, 25), (22, 24, 26, 27)), 20: ((21, 22, 24, 25), (23, 23, 26, 27))}[b0]
        for j, i in enumerate(mg): F.put("d", i, mr[j])
        for i, t in ((23, 4), (25, 5), (27, 6), (29, 7)): F.put("s", i, f"@wait lg=m{t}")
        for r_, gs, u in ((3, r3g, 30), (4, (30, 31, 32, 33), 37), (5, (38, 39, 40, 42), 46)):
            for j in range(4): F.put("d", gs[j], rs[r_][j])
            F.put("s", u, f"@wait lg=r{r_}")
        for j, i in enumerate((32, 32, 33, 34, 35, 36)): F.put("v", i, qfin[j])
        for j, i in enumerate((40, 42, 43, 43, 44, 45)): F.put("v", i, kfin[j])
        F.put("d", 36, qfin[6]); F.put("d", 37, qfin[7])
        F.put("v", 37, f"v_cmp_u_f32 vcc, v{A[0]}, v{A[0]+1}")
        F.put("s", 40, f"s_cbranch_vccnz {L('nan')}", f"{L('nanok')}:")
        F.put("s", 41, "@wait lg=qw" + (" vm=h2rs" if red else ""), "s_barrier")
        F.put("s", 45, "@wait lg=r5x")
        for j, i in enumerate((43, 44, 47)): F.put("d", i, qr[j])
        F.put("d", 45, kfin[6]); F.put("d", 46, kfin[7])
        F.put("s", 47, "@wait lg=qr0")
        return F
    rs[5][1] += "x"

    pair = lambda m, t: [(m, 0, t), (m, 1, t)]
    HEAD = {0: ("q0 k0 v0 q1 k1 v1 q2 k2 v2 q3 k3 v3", ((1, (2, 3, 4, 5)), (2, (10, 11, 12, 13)))),
            1: ("q1 k1 v1 q2 k2 v2 k3 q3 v3 k0 q0 v0", ((2, (4, 5, 6, 7)), (0, (12, 13, 14, 15)))),
            2: ("q2 k2 v2 k3 q3 v3 k0 q0 v0 q1 v1 k1", ((0, (6, 7, 8, 9)), (1, (14, 15, 16, 17)))),
            3: ("q3 k3 v3 k0 v0 q0 q1 k1 v1 q2 k2 v2", ((0, (2, 3, 4, 5)), (1, (10, 11, 12, 13))))}
    cg = opt.get("cg", 12)

    def head(r, n=24):
        od = sum([pair(x[0], int(x[1])) for x in HEAD[r][0].split()], []) + order[24:]
        F = common()
        F.put("s", 1, f"s_cbranch_vccnz {L(f'no{r}')}", f"{L(f'go{r}')}:")
        if r or not opt.get("dtop"): F.put("x", opt.get("dg", 1), dma)
        seen = {r}
        c_ = cg if r == 0 else 15
        for i, k in enumerate(od[:24]):
            wt = []
            if k[2] not in seen:
                seen.add(k[2])
                if i <= c_: wt.append(f"vm=c{k[2]}")
            for r_ in range(3):
                if k == G_R[r_][0] and i: wt.append(f"lg=r{r_}")
            if wt: F.put("s", i - 1 - (1 if i - 1 == b0 else 0), "@wait " + " ".join(wt))
        F.put("s", c_, f"@wait vm=c{(r+3)&3}")
        F.put("v", c_, f"v_max3_u32 v{CK}, v{M+4*((r+1)&3)}, v{M+4*((r+2)&3)}, v{M+4*((r+3)&3)}")
        F.put("v", c_ + 1, f"v_cmp_eq_u32 vcc, s{S_SENT}, v{CK}")
        F.t.setdefault(c_ + 3, {"s": [], "d": [], "v": [], "x": []})["s"][:0] = [f"s_cbranch_vccnz {L(f'late{r}')}", f"{L(f'lok{r}')}:"]
        if r:
            for i in range(15, c_ + 3):
                if i in F.t: F.put("x", c_ + 3, *F.t[i]["x"]); F.t[i]["x"] = []
        for r_, gs in HEAD[r][1]:
            for j in range(4): F.put("d", gs[j], rs[r_][j])
        return ([f"{L(f'c{r}')}:", f"@wait vm=c{r}" + (" lg=0" if r == 0 else "")] + (c0stamp if r == 0 else []) +
                [f"v_cmp_eq_u32 vcc, s{S_SENT}, v{M+4*r}"] + F.emit([smf(acc(k), M + 4 * k[2], k) for k in od[:n]]))
    full = head(0, 48)
    i = full.index(mm[24])
    E(full[:i] + [f"{L('j20')}:"] + full[i:])
    E(stamp())
    S0, S1, SM = A[0], A[1], A[2]
    sx = []
    for x in range(4):
        sx += [mf(S0, POOL + 4*x, M + 4*x, None if x == 0 else S0), mf(S1, POOL + 16 + 4*x, M + 4*x, None if x == 0 else S1)]
    sm = [mf(SM, M + 16 + 4*x, M + 4*x, None if x == 0 else SM) for x in range(4)]
    cv = lambda d, q: f"v_cvt_pk_bf16_f32 v{d}, v{q}, v{q+1}"
    cnd = lambda d, x, y: f"v_cndmask_b32 v{d}, v{x}, v{y}, s[{S_HF}:{S_HF+1}]"
    pub = f"buffer_store_dwordx4 {v(A[3],4)}, v{LM}, {WSD}, s{S_PUB} offen sc1"
    MX, MY = S1, S1 + 1
    z = zero(A[4], 8)
    E([sx[0], f"s_cmp_eq_u32 s{S_STEP}, {NSEG-1}", qr[3],
       sx[1], "@wait lg=qr1", add(A[4], 0), add(A[4], 1),
       sx[2], "@wait lg=kw", "s_barrier",
       sx[3], "@wait lg=qr2", kr[0], add(A[5], 0),
       sx[4], kr[1], add(A[5], 1),
       sx[5], "@wait lg=qr3", kr[2], cv(VX + 2, A[4]),
       sx[6], kr[3], cv(VX + 10, A[5]),
       sx[7], "@wait lg=kr0", cv(A[3] + 2, A[4]), cv(A[3] + 3, A[5]),
       sm[0], "@wait lg=kr2", f"v_permlane16_swap_b32 v{VX+2}, v{VX+6}",
       sm[1], f"s_cbranch_scc1 {L('done')}", cnd(S0, S0, S1), cnd(S0 + 1, S0 + 1, S1 + 1),
       sm[2], "@wait lg=kr3", cnd(S0 + 2, S0 + 2, S1 + 2), cnd(S0 + 3, S0 + 3, S1 + 3),
       sm[3], f"v_max3_f32 v{MX}, v{S0}, v{S0+1}, v{S0+2}", f"v_max_f32 v{MX}, v{MX}, v{S0+3}",
       f"v_permlane16_swap_b32 v{VX+10}, v{VX+14}",
       f"v_max_f32_dpp v{MX}, v{MX}, v{MX} quad_perm:[2,3,0,1] row_mask:0xf bank_mask:0xf",
       f"v_mov_b32 v{MY}, v{MX}",
       f"v_mov_b64 {v(POOL,2)}, s[{S_ONE}:{S_ONE+1}]",
       f"v_max3_f32 v{S1+2}, v{SM}, v{SM+1}, v{SM+2}",
       f"v_permlane16_swap_b32 v{MX}, v{MY}",
       f"v_max3_f32 v{MX}, v{MX}, v{MY}, v{SM+3}",
       f"v_max_f32 v{MY}, v{MX}, v{S1+2}",
       f"v_max_f32 v{MX}, v{MX}, v{S1+2}",
       cnd(SM, SM, SM + 1), f"v_mov_b64 {v(POOL+2,2)}, s[{S_ONE}:{S_ONE+1}]",
       f"v_permlane32_swap_b32 v{MX}, v{MY}",
       f"v_max_f32 v{MX}, v{MX}, v{MY}",
       f"v_mul_f32 v{MX}, s{S_SC}, v{MX}"])
    for r in (S0, S0 + 2):
        E([f"v_pk_fma_f32 {v(r,2)}, {v(r,2)}, s[{S_SC-1}:{S_SC}], {v(MX,2)} op_sel_hi:[1,1,0] neg_lo:[0,0,1] neg_hi:[0,0,1]"])
    E([f"v_fma_f32 v{SM}, v{SM}, s{S_SC}, -v{MX}"])
    E([f"v_exp_f32 v{S0}, v{S0}", f"v_exp_f32 v{S0+1}, v{S0+1}", f"v_exp_f32 v{S0+2}, v{S0+2}", cv(PA, S0),
       f"v_exp_f32 v{S0+3}, v{S0+3}", f"v_exp_f32 v{SM}, v{SM}", cv(PA + 2, S0 + 2),
       f"v_cvt_pk_bf16_f32 v{PA+1}, v{SM}, v{PA+3}"])
    E(stamp())
    LQ = A[1]
    ring = [f"s_and_b32 s{S_TAG}, s{S_STEP}, 1", f"s_add_u32 s{S_STEP}, s{S_STEP}, 1",
            f"s_lshl_b32 s{S_T0}, s{S_TAG}, 13", f"s_sub_u32 s{S_H2LD}, {WS_H2 + 8192}, s{S_T0}",
            f"s_add_u32 s{S_H2LD2}, s{S_H2LD}, 4096"]
    ring2 = list(nxt)
    if red:
        ring += [f"s_add_u32 s{S_H2RS}, s{S_T0}, {WS_H2}", f"s_xor_b32 s{S_H2ST}, s{S_H2RS}, 8192"]
    E([z[0], z[1],
       mf(LQ, PA, POOL, None), z[2], z[3],
       smf(A[4], PA, v(VX, 8), 1), ost[8],
       smf(A[5], PA, v(VX + 8, 8), 1), ost[9], add(LQ, 0),
       add(LQ, 1), f"v_rcp_f32 v{LQ}, v{LQ}", f"v_rcp_f32 v{LQ+1}, v{LQ+1}",
       f"v_pk_add_f32 {v(A[4],2)}, {v(A[4],2)}, {v(A[4]+2,2)}",
       f"v_pk_mul_f32 {v(A[4],2)}, {v(A[4],2)}, {v(LQ,2)}",
       f"v_pk_add_f32 {v(A[5],2)}, {v(A[5],2)}, {v(A[5]+2,2)}",
       f"v_pk_mul_f32 {v(A[5],2)}, {v(A[5],2)}, {v(LQ,2)}",
       f"v_cvt_pk_bf16_f32 v{A[4]+2}, v{A[4]}, v{A[5]}", f"v_cvt_pk_bf16_f32 v{A[4]+3}, v{A[4]+1}, v{A[5]+1}",
       mzero(M + 16, 4),
       f"ds_write2_b32 v{OW_}, v{A[4]+2}, v{A[4]+3} offset0:0 offset1:4", mzero(M, 16)] + ring +
      ["s_waitcnt lgkmcnt(0)", "s_barrier",
       f"ds_read_b128 {v(A[0],4)}, v{LM} offset:{L_O - LDS_MISC} ;@o0", mzero(M + 20, 4),
       f"ds_read_b128 {v(A[1],4)}, v{LM} offset:{L_O - LDS_MISC + 1024} ;@o1", mzero(M + 24, 4)] + [mzero(M + 28, 4)])
    E(stamp())
    oo = [(0, 0), (1, 0), (0, 1), (1, 1)] + [(tau, tp) for tau in range(2, 8) for tp in range(2)]
    om = [smf(M + 4*tau, A[tp], ("o", tau, tp)) for tau, tp in oo]
    D0, D1 = A[2], A[4]
    pk = lambda d, ta, b: f"v_cvt_pk_bf16_f32 v{d}, v{M+4*ta+b}, v{M+4*ta+4+b}"
    ad = lambda ta: [add(M + 4*ta, 0), add(M + 4*ta, 1)]
    G = Gaps()
    G.put("s", 1, "@wait lg=o1")
    for j, x in enumerate(tagged(ost[10:], "o5") + tagged(ost[:4], "o6") + tagged(ost[4:8], "o7")): G.put("d", j, x)
    G.put("s", 9, "@wait lg=o5"); G.put("s", 11, "@wait lg=o6"); G.put("s", 13, "@wait lg=o7")
    tg = lambda d: f"v_bfi_b32 v{d}, 1, s{S_TAG}, v{d}"
    for q in range(4):
        D = (D0, D0 + 2, D1, D1 + 2)[q]
        e, o_ = ad(2 * q), ad(2 * q + 1)
        stq = f"buffer_store_dwordx2 {v(D,2)}, v{H1ST}, {WSD}, s{S_H1ST2 if q >> 1 else S_H1ST} offen offset:{64 * (q & 1)} {st}"
        rest = [o_[0], o_[1], pk(D, 2 * q, 0), pk(D + 1, 2 * q, 1), tg(D)]
        if q == 0:
            G.put("v", 4, *e)
        elif q < 3:
            G.put("v", 4 * q + 3, e[0]); G.put("v", 4 * q + 4, e[1])
        if q < 3:
            n1 = opt.get("wo1", 2)
            G.put("v", 4 * q + 5, *rest[:n1]); G.put("v", 4 * q + 6, *rest[n1:])
            G.put("s", 4 * q + 7, stq)
        else:
            G.put("v", 15, *(e + ["s_nop 3"] + rest + [stq]))
    E(["@wait lg=o0"] + G.emit(om))
    E(stamp())
    house = ring2 + rs[0] + [mzero(A[i], 4) for i in (0, 1, 2)]
    mv = v_moves(VN) + [f"v_mov_b64 {v(VN+4,2)}, {v(A[3],2)}", f"v_mov_b64 {v(VN+6,2)}, {v(A[3]+2,2)}", mzero(A[3], 4), mzero(A[4], 4)]
    after = kxr + mv
    E(house[:3] + ["@wait vm=kv", "s_barrier"])
    if red:
        shots = h1l(M + 16) + (nops("d4") + h1l(M) if two else [])
        if w == 2:
            E(nops("d1") + stamp() + shots + house[3:] + after + ["s_waitcnt lgkmcnt(0)"] + reduce(M + 16, "ra") + [f"{L('rdone')}:"] + stamp() + nops("d2"))
        else:
            E(house[3:] + after + nops("d3") + stamp() + shots + ["s_waitcnt lgkmcnt(0)"] + reduce(M + 16, "ra") + [f"{L('rdone')}:"] + stamp())
    else:
        E(stamp() + house[3:] + after + stamp() + (dump if opt.get('rt', w + 1) == w + 1 else []))
    if w < 2:
        E([mzero(A[5], 4)])
    if w == 1:
        E([f"v_mov_b32 v{FV}, s{S_STEP}"])
    if w == 0:
        E([f"v_cmp_eq_u32 s[{S_RDY}:{S_RDY+1}], 1, v{FLG}", f"s_add_u32 s{S_T2}, s{S_STEP}, 1", "s_nop 3",
           f"s_bitcmp1_b64 s[{S_RDY}:{S_RDY+1}], s{S_T2}", f"s_cbranch_scc0 {L('flag')}", f"{L('flagok')}:"])
    E(([] if red else ["s_waitcnt lgkmcnt(0)"]) + [f"s_branch {L('top')}"])
    if opt.get("free"):
        body = [x for x in body if not (x.startswith("s_cbranch_vccnz") or x.startswith("v_cmpx"))]
        body = [x.replace("s_cbranch_scc0 " + L('top'), "s_branch " + L('top')) for x in body]
    if True:
        for pat in opt.get("drop", []):
            keep = lambda x: ("s_nop 0" if opt.get("keepslot") else None)
            tags = [x.split(";@")[1] for x in body if pat in x and ";@" in x]
            body = [x for x in body if pat not in x or x.endswith(":")]
            live = {x.split(";@")[1] for x in body if ";@" in x}
            nb = []
            for x in body:
                if x.startswith("@wait"):
                    t = [k for k in x.split()[1:] if k.split("=")[1] in live or k.split("=")[1] == "0"]
                    if t: nb.append("@wait " + " ".join(t))
                else: nb.append(x)
            body = nb
    body = resolve_waits(body)
    if opt.get("seg"):
        pos = [i for i, x in enumerate(body) if x.startswith(("v_mfma_f32_16x16x32", "v_smfmac"))]
        i0, i1 = opt["seg"]
        labels = [x for x in body if x.endswith(":")]
        cut = [x for x in body[pos[i0]:pos[i1]] if not x.endswith(":") and f"s{S_STEP}" not in x and "branch" not in x]
        body = labels + cut[:1] + [f"s_add_u32 s{S_STEP}, s{S_STEP}, 1", f"s_cmp_eq_u32 s{S_STEP}, 64", f"s_cbranch_scc1 {L('done')}"] + cut[1:] + [f"s_branch {L('top')}"]
    if opt.get("sw"):
        pos = [i for i, x in enumerate(body) if x.startswith(("v_mfma", "v_smfmac"))]
        for k, o_ in reversed(list(enumerate(opt["sw"]))):
            if o_ < len(pos): body.insert(pos[o_] + 1, f"s_memtime s[{74+2*k}:{75+2*k}]")
    if opt.get("align", 1):
        body, left = align_body(body)
        if opt.get("verbose"): print("wave", w, "remaining straddles", left)
        g(".p2align 5")
    for x in body: g(x)
    bad = hazard.check(body + body[:40], f"chain w{w}") if not (opt.get("drop") or opt.get("seg")) else []
    m1 = g.mark()
    strip = lambda lst: [x.split(";@")[0] for x in lst]
    cnt = lambda out: f"s_add_u32 s{S_SPIN}, s{S_SPIN}, 1\ns_cmp_gt_u32 s{S_SPIN}, {SPIN_MAX}\ns_cbranch_scc1 {out}"
    dbg = lambda k: (f"s_add_u32 s{96+k}, s{96+k}, 1" if opt.get("count") else "")
    anysent = [f"v_mov_b32 v{PA}, 0"] + [f"v_max3_u32 v{PA}, v{PA}, v{M+2*i}, v{M+2*i+1}" for i in range(16)] + [f"v_cmp_eq_u32 vcc, s{S_SENT}, v{PA}"]
    if red:
        g(f"{L('rano')}:\n{dbg(2)}\n{cnt(L('raok'))}")
        for x in h1l(M + 16): g(x)
        if two:
            for x in reduce(M, "rb") + [f"s_branch {L('rdone')}", f"{L('rbno')}:", dbg(3)] + h1l(M): g(x)
        g(f"s_branch {L('ra')}")
    for r in range(4):
        g(f"{L(f'late{r}')}:\n{cnt(L(f'lok{r}'))}\ns_branch {L('restart')}")
    g(f"{L('restart')}:\n{dbg(1)}\ns_waitcnt lgkmcnt(0)")
    for x in strip(rs[0]) + [mzero(A[i], 4) for i in range(6)] + [f"s_branch {L('again')}"]: g(x)
    path = rs[0] + top_part
    for r in range(4):
        part = ([f"{L(f'no{r}')}:"] + ([dbg(0)] if opt.get("count") else []) + (cnt(L("go3")).split("\n") if r == 3 else []) + [cl[r], dma if r == 3 and opt.get("dtop") else "s_nop 0"] +
                {0: rs[1], 1: rs[2], 2: ["s_nop 3"], 3: rs[0]}[r] + [mzero(A[0], 4), mzero(A[1], 4), "s_nop 0"])
        hd = head(r + 1) + [f"s_branch {L('j20')}"] if r < 3 else [f"s_branch {L('c0')}"]
        res = resolve_waits(path + part + hd, loop=False)[len(path):]
        path = path + part
        bad += hazard.check(mm[:2] + ["s_branch x"] + res + (mm[24:28] if r < 3 else mm[:2]), f"chain head {r} w{w}")
        res, _ = align_body(res)
        g(".p2align 5")
        for x in res: g(x)
    m1 = g.mark()
    g(f"{L('nan')}:\n" + ("s_add_u32 s97, s97, 0x10000" if opt.get("count") else ""))
    for x in anysent: g(x)
    g(f"s_cbranch_vccz {L('nanok')}\n{L('nanl')}:")
    for x in [mld(t) for t in range(8)] + ["s_waitcnt vmcnt(0)"] + anysent: g(x)
    g(f"s_cbranch_vccz {L('nanr')}\n{cnt(L('nanr'))}\ns_branch {L('nanl')}\n{L('nanr')}:\ns_waitcnt lgkmcnt(0)")
    for x in zero(ACC, 24): g(x)
    for i in range(41):
        for r_ in range(5):
            if order[i] == G_R[r_][0]:
                for x in strip(rs[r_]) + ["s_waitcnt lgkmcnt(0)"]: g(x)
        g(mm[i])
    for x in strip(rs[5][:2] + qfin) + ["s_waitcnt lgkmcnt(0)", f"s_branch {L('nanok')}"]: g(x)
    bad += hazard.check(g.lines[m1:], f"chain rare w{w}")
    if w == 0:
        g(f"{L('flag')}:")
        wait_flag(g, f"{tag}{w}_f1", S_T2)
        g(f"s_branch {L('flagok')}")
    g(f"{L('done')}:\n{pub}")
    if opt.get("count"):
        g(f"""
        s_memtime s[94:95]
        s_memrealtime s[74:75]
        s_waitcnt lgkmcnt(0)
        
        s_sub_u32 s94, s94, s92
        v_mov_b32 v40, s96
        v_mov_b32 v41, s97
        v_mov_b32 v42, s98
        v_mov_b32 v43, s94
        s_lshl_b32 s{S_T0}, s{S_TK}, 2
        s_add_u32 s{S_T0}, s{S_T0}, {w}
        s_lshl_b32 s{S_T0}, s{S_T0}, 12
        s_add_u32 s{S_T0}, s{S_T0}, {WS_STAMP}
        v_mov_b32 v44, 0
        v_mov_b32 v46, s99
        v_mov_b32 v47, s14
        v_mov_b32 v48, s15
        v_mov_b32 v49, s74
        buffer_store_dwordx4 v[40:43], v44, {WSD}, s{S_T0} offen
        buffer_store_dwordx4 v[46:49], v44, {WSD}, s{S_T0} offen offset:16
        """)
    g("s_waitcnt vmcnt(0)\ns_endpgm")
    return bad


def chain_role(g, st, tag, opt):
    m0 = g.mark()
    if opt.get("count"):
        g("s_mov_b32 s96, 0\ns_mov_b32 s97, 0\ns_mov_b32 s98, 0\ns_mov_b32 s99, 0")
    setup_early(g, st)
    arrive = lambda: g(f"""
    s_cmp_lg_u32 s{S_WAVE}, 0
    s_cbranch_scc1 L_{tag}_arrived
    v_mov_b32 v56, {DBG_TEAM}
    v_mov_b32 v57, 1
    s_mov_b64 exec, 1
    global_atomic_add v56, v57, s[{P_DBG}:{P_DBG+1}]
    s_mov_b64 exec, -1
    L_{tag}_arrived:
    """)
    load_weights(g, {0: lambda: store_mem0(g, st), 5: arrive}, opt.get("wnt", ""), opt.get("word", "oqkv"))
    setup_late(g)
    g(f"""
    v_mov_b32 v56, {DBG_TEAM}
    L_{tag}_team:
    global_load_dword v57, v56, s[{P_DBG}:{P_DBG+1}] sc1
    s_add_u32 s{S_SPIN}, s{S_SPIN}, 1
    s_cmp_gt_u32 s{S_SPIN}, {SPIN_MAX}
    s_cbranch_scc1 L_{tag}_teamok
    s_waitcnt vmcnt(0)
    v_cmp_gt_u32 vcc, 32, v57
    s_cbranch_vccnz L_{tag}_team
    L_{tag}_teamok:
    s_waitcnt vmcnt(0)
    """)
    if not opt.get("chainonly"):
        g(f"""
        v_mov_b32 v56, {DBG_INIT}
        L_{tag}_init:
        global_load_dword v57, v56, s[{P_DBG}:{P_DBG+1}] sc1
        s_add_u32 s{S_SPIN}, s{S_SPIN}, 1
        s_cmp_gt_u32 s{S_SPIN}, {SPIN_MAX}
        s_cbranch_scc1 L_{tag}_initok
        s_waitcnt vmcnt(0)
        v_cmp_gt_u32 vcc, 224, v57
        s_cbranch_vccnz L_{tag}_init
        L_{tag}_initok:
        s_waitcnt vmcnt(0)
        """)
    bad = hazard.check(g.lines[m0:], "chain prologue")
    for w in range(1, 4):
        g(f"s_cmp_eq_u32 s{S_WAVE}, {w}\ns_cbranch_scc1 L_{tag}_w{w}")
    for w in range(4):
        g(f"L_{tag}_w{w}:")
        bad += wave_loop(g, w, st, tag, opt)
    return bad
```

```python
import sys
from asmlib import *
from layout import *
from chain import *
import workers

NAME = "recurrent_scan__memory_aug_recurrent_mem_tr__geglu_ffn__prompt_kernel"


def entry(g, opt):
    if opt.get('count') or opt.get('dbgt'): g('s_memrealtime s[14:15]')
    g(f"""
    s_cmp_ge_u32 s2, 256
    s_cbranch_scc1 L_exit
    s_load_dwordx16 s[16:31], s[0:1], 0
    s_load_dwordx8 s[32:39], s[0:1], 64
    s_load_dwordx4 s[40:43], s[0:1], 96
    s_getreg_b32 s{S_XCC}, hwreg(HW_REG_XCC_ID, 0, 3)
    v_lshrrev_b32 v1, 6, v0
    s_mov_b32 s{S_SPIN}, 0
    s_mov_b32 s{S_SENT}, {SENT}
    s_mov_b32 s{S_SENT+1}, {SENT}
    v_readfirstlane_b32 s{S_WAVE}, v1
    s_waitcnt lgkmcnt(0)
    s_mov_b32 s{S_WS}, s{P_WSP}
    s_mov_b32 s{S_WS+1}, s{P_WSP+1}
    s_mov_b32 s{S_WS+2}, {WS_BYTES}
    s_mov_b32 s{S_WS+3}, 0x20000
    s_cmp_lg_u32 s{S_WAVE}, 0
    s_cbranch_scc1 L_asked
    s_lshl_b32 s{S_T0}, s{S_XCC}, 5
    v_mov_b32 v1, s{S_T0}
    v_mov_b32 v2, 1
    s_mov_b64 exec, 1
    global_atomic_add v3, v1, v2, s[{P_DBG}:{P_DBG+1}] sc0
    s_mov_b64 exec, -1
    L_asked:
    """)
    pf = opt.get("pf", 0)
    if pf:
        g(f"s_barrier\ns_cmp_eq_u32 s{S_XCC}, 0\ns_cbranch_scc1 L_touched\nv_and_b32 v4, 63, v0\nv_lshlrev_b32 v4, 7, v4")
        for w, (p1, p2, n2, sl2) in enumerate(((P_WQ, P_X, 2*MB, 8192), (P_WK, P_WG, 512*2752, 5504), (P_WV, P_WU, 512*2752, 5504), (P_WO, None, 0, 0))):
            g(f"s_cmp_lg_u32 s{S_WAVE}, {w}\ns_cbranch_scc1 L_touch{w}")
            if p2:
                set_srd(g, p2, n2)
                g(f"s_mul_i32 s{S_T0}, s2, {sl2}\nbuffer_load_dword v127, v4, s[{S_W}:{S_W+3}], s{S_T0} offen")
            set_srd(g, p1, 4 * MB)
            g(f"s_lshl_b32 s{S_T0}, s2, 14\nbuffer_load_dword v127, v4, s[{S_W}:{S_W+3}], s{S_T0} offen")
            g(f"s_add_u32 s{S_T0}, s{S_T0}, 8192\nbuffer_load_dword v127, v4, s[{S_W}:{S_W+3}], s{S_T0} offen")
            if w == 0: g("s_waitcnt vmcnt(3)\ns_branch L_got")
            g(f"L_touch{w}:")
        g("L_touched:")
    g(f"""
    s_cmp_lg_u32 s{S_WAVE}, 0
    s_cbranch_scc1 L_ticket
    s_waitcnt vmcnt(0)
    L_got:
    v_mov_b32 v1, 0
    s_mov_b64 exec, 1
    ds_write_b32 v1, v3
    s_waitcnt lgkmcnt(0)
    s_mov_b64 exec, -1
    L_ticket:
    s_barrier
    v_mov_b32 v1, 0
    ds_read_b32 v3, v1
    s_waitcnt lgkmcnt(0)
    v_readfirstlane_b32 s{S_TK}, v3
    s_barrier
    s_and_b32 s{S_TK}, s{S_TK}, 31
    """)


def build(opt):
    g = Asm()
    entry(g, opt)
    bad = []
    g(f"s_cmp_eq_u32 s{S_XCC}, 0\ns_cbranch_scc1 L_chain")
    if not opt.get("chainonly"):
        bad += workers.worker_roles(g, opt)
    g("L_exit:\ns_endpgm\nL_chain:")
    bad += chain_role(g, opt.get("st", ""), "c", opt)
    for b in bad: print(b, file=sys.stderr)
    head = f"; @launch grid=(256,1,1) block=(256,1,1) lds=163840\n"
    head += '.amdgcn_target "amdgcn-amd-amdhsa--gfx950"\n.text\n'
    head += f".globl {NAME}\n.p2align 8\n.type {NAME},@function\n{NAME}:\n"
    tail = f"""
.section .rodata,"a"
.p2align 6
.amdhsa_kernel {NAME}
  .amdhsa_next_free_vgpr 512
  .amdhsa_next_free_sgpr 102
  .amdhsa_accum_offset 256
  .amdhsa_group_segment_fixed_size 0
  .amdhsa_kernarg_size 112
  .amdhsa_user_sgpr_count 2
  .amdhsa_user_sgpr_kernarg_segment_ptr 1
  .amdhsa_system_sgpr_workgroup_id_x 1
.end_amdhsa_kernel
"""
    return head + g.text() + tail, bad


if __name__ == "__main__":
    import mb
    t, bad = build({})
    co = mb.assemble(t, NAME, 14, "k")
    print(mb.cl.address_register_problem(co, NAME))
    print(len(t), "bytes", len(bad), "hazards")
```

```python
from asmlib import *
from layout import *
from chain import (S_WS, S_W, P_X, P_WQ, P_WK, P_WV, P_WO, P_WG, P_WU, P_WD, P_OUT, P_DBG, S_XCC, S_TK, S_WAVE,
                   S_T0, S_T1, S_T2, S_T3, SPIN_MAX, set_srd, S_SPIN, S_SENT)

WSD = f"s[{S_WS}:{S_WS+3}]"
WD = f"s[{S_W}:{S_W+3}]"
S_WI, S_COL, S_SEG, S_HD, S_FREE, S_XO, S_O1, S_O2, S_FA, S_PREV, S_LB, S_C0, S_C1, S_C2 = range(51, 65)
S_OUT = 68
S_MK = 72
RING = 65536
NROWG = 5


def rg(f, b, n):
    return a(b, n) if f == "a" else v(b, n)


def mf32(d, x, y, first):
    return f"v_mfma_f32_32x32x16_bf16 {v(d,16)}, {x}, {y}, " + ("0" if first else v(d, 16))


def mf16(d, x, y, first):
    return f"v_mfma_f32_16x16x32_bf16 {v(d,4)}, {x}, {y}, " + ("0" if first else v(d, 4))


def spin_counter(g, tag, off, target):
    g(f"""
    v_mov_b32 v10, {off}
    L_{tag}:
    global_load_dword v11, v10, s[{P_DBG}:{P_DBG+1}] sc1
    s_add_u32 s{S_SPIN}, s{S_SPIN}, 1
    s_cmp_gt_u32 s{S_SPIN}, {SPIN_MAX}
    s_cbranch_scc1 L_{tag}_out
    s_waitcnt vmcnt(0)
    v_cmp_gt_u32 vcc, {target}, v11
    s_cbranch_vccz L_{tag}_out
    s_sleep 2
    s_branch L_{tag}
    L_{tag}_out:
    s_waitcnt vmcnt(0)
    """)


def spin_flags(g, tag, vaddr, soff, sleep=1):
    g(f"""
    L_{tag}:
    buffer_load_dword v11, v{vaddr}, {WSD}, s{soff} offen sc1
    s_add_u32 s{S_SPIN}, s{S_SPIN}, 1
    s_cmp_gt_u32 s{S_SPIN}, {SPIN_MAX}
    s_cbranch_scc1 L_{tag}_out
    s_waitcnt vmcnt(0)
    v_cmp_ne_u32 vcc, 1, v11
    s_cbranch_vccz L_{tag}_out
    {f's_sleep {sleep}' if sleep else ''}
    s_branch L_{tag}
    L_{tag}_out:
    s_waitcnt vmcnt(0)
    """)


def count_up(g, tag, off):
    g(f"""
    s_waitcnt vmcnt(0)
    s_barrier
    s_cmp_lg_u32 s{S_WAVE}, 0
    s_cbranch_scc1 L_{tag}
    v_mov_b32 v10, {off}
    v_mov_b32 v11, 1
    s_mov_b64 exec, 1
    global_atomic_add v10, v11, s[{P_DBG}:{P_DBG+1}]
    s_mov_b64 exec, -1
    L_{tag}:
    """)


def set_flag(g, tag, soff, st="sc1"):
    g(f"""
    s_cmp_lg_u32 s{S_WAVE}, 0
    s_cbranch_scc1 L_{tag}
    v_mov_b32 v10, 0
    v_mov_b32 v11, 1
    s_mov_b64 exec, 1
    buffer_store_dword v11, v10, {WSD}, s{soff} offen {st}
    s_mov_b64 exec, -1
    L_{tag}:
    """)


def wstamp(g, opt, i, dump=False):
    if not opt.get("count"): return
    g(f"s_waitcnt vmcnt(0)" if dump else "")
    g(f"s_memrealtime s[88:89]\ns_waitcnt lgkmcnt(0)\ns_mov_b32 s{90+i}, s88")
    if dump:
        for k in range(5): g(f"v_mov_b32 v{21+k}, s{90+k}")
        g(f"""
        v_mov_b32 v20, s14
        s_lshl_b32 s{S_T0}, s{S_WI}, 5
        s_add_u32 s{S_T0}, s{S_T0}, {WS_STAMP - 8192}
        v_mov_b32 v10, 0
        buffer_store_dwordx4 v[20:23], v10, {WSD}, s{S_T0} offen
        buffer_store_dwordx2 v[24:25], v10, {WSD}, s{S_T0} offen offset:16
        """)


def pstamp(g, opt, i):
    if not opt.get("pst"): return
    g(f"""
    s_memrealtime s[88:89]
    s_lshl_b32 s96, s{S_XCC}, 5
    s_add_u32 s96, s96, s{S_TK}
    s_sub_u32 s96, s96, 32
    s_lshl_b32 s96, s96, 6
    s_add_u32 s96, s96, s{S_SEG}
    s_lshl_b32 s96, s96, 6
    s_add_u32 s96, s96, {96*MB + 4*i}
    s_waitcnt lgkmcnt(0)
    v_mov_b32 v18, s88
    v_mov_b32 v19, 0
    s_mov_b64 exec, 1
    buffer_store_dword v18, v19, {WSD}, s96 offen
    s_mov_b64 exec, -1
    s_waitcnt vmcnt(0)
    """)


def worker_init(g):
    g(f"""
    s_sub_u32 s{S_T0}, s{S_XCC}, 1
    s_min_u32 s{S_T1}, s{S_T0}, 4
    s_mul_i32 s{S_T1}, s{S_T1}, 5
    s_mul_i32 s{S_T2}, s{S_T0}, 20
    s_add_u32 s{S_T2}, s{S_T2}, s{S_T1}
    s_cmp_lt_u32 s{S_T0}, 4
    s_cselect_b32 s{S_T3}, 25, 20
    s_add_u32 s{S_WI}, s{S_T2}, s{S_TK}
    s_cmp_lt_u32 s{S_TK}, s{S_T3}
    s_cbranch_scc1 L_wi
    s_sub_u32 s{S_T1}, s{S_TK}, s{S_T3}
    s_sub_u32 s{S_T3}, 30, s{S_T3}
    s_mul_i32 s{S_WI}, s{S_T0}, 30
    s_sub_u32 s{S_WI}, s{S_WI}, s{S_T2}
    s_add_u32 s{S_WI}, s{S_WI}, s{S_T1}
    s_add_u32 s{S_WI}, s{S_WI}, 160
    s_cmp_lt_u32 s{S_T1}, s{S_T3}
    s_cbranch_scc1 L_wi
    s_lshl_b32 s{S_WI}, s{S_T0}, 1
    s_add_u32 s{S_WI}, s{S_WI}, s{S_TK}
    s_add_u32 s{S_WI}, s{S_WI}, {210 - 30}
    L_wi:
    """)


def worker_fill(g):
    g(f"""
    s_sub_u32 s{S_T0}, s{S_XCC}, 1
    v_mov_b64 v[12:13], s[{S_SENT}:{S_SENT+1}]
    v_mov_b64 v[14:15], s[{S_SENT}:{S_SENT+1}]
    v_lshlrev_b32 v10, 4, v0
    s_cmp_eq_u32 s{S_T0}, 0
    s_cselect_b32 s{S_T1}, 63, 64
    s_cmp_eq_u32 s{S_T0}, 6
    s_cselect_b32 s{S_T1}, 62, s{S_T1}
    s_lshl_b32 s{S_T1}, s{S_T1}, 17
    s_lshl_b32 s{S_T2}, s{S_TK}, 12
    s_add_u32 s{S_T1}, s{S_T1}, s{S_T2}
    s_add_u32 s{S_T1}, s{S_T1}, {WS_PUB}
    buffer_store_dwordx4 v[12:15], v10, {WSD}, s{S_T1} offen sc1
    """)
    g(f"""
    v_mov_b32 v11, 0
    v_mul_u32_u24 v10, 7, v0
    v_add_u32 v10, s{S_T0}, v10
    v_cmp_gt_u32 vcc, 64, v10
    v_lshlrev_b32 v10, 7, v10
    s_lshl_b32 s{S_T1}, s{S_TK}, 2
    s_add_u32 s{S_T1}, s{S_T1}, {WS_OF}
    v_mov_b32 v12, 0x40000000
    v_cndmask_b32 v10, v12, v10, vcc
    buffer_store_dword v11, v10, {WSD}, s{S_T1} offen sc1
    """)


def clear_flags(g, shift):
    g(f"""
    v_mov_b32 v11, 0
    v_mul_u32_u24 v10, {NROWG}, v0
    v_add_u32 v10, s{S_SEG}, v10
    v_cmp_gt_u32 vcc, 64, v10
    v_lshlrev_b32 v10, {shift}, v10
    v_mov_b32 v12, 0x40000000
    v_cndmask_b32 v10, v12, v10, vcc
    buffer_store_dword v11, v10, {WSD}, s{S_FA} offen sc1
    """)


def layernorm(g, seg):
    X, T = 16, 80
    set_srd(g, P_X, 2 * MB)
    g(f"""
    v_lshrrev_b32 v1, 3, v0
    v_and_b32 v2, 7, v0
    v_lshlrev_b32 v3, 10, v1
    v_lshl_add_u32 v3, v2, 4, v3
    s_lshl_b32 s{S_T0}, s{seg}, 15
    """)
    for j in range(8):
        g(f"buffer_load_dwordx4 {v(T+4*j,4)}, v3, {WD}, s{S_T0} offen offset:{128*j}")
    g(f"""
    v_lshrrev_b32 v4, 1, v2
    v_lshlrev_b32 v4, 10, v4
    v_and_b32 v5, 1, v2
    v_lshl_add_u32 v4, v5, 9, v4
    v_lshl_add_u32 v4, v1, 4, v4
    s_add_u32 s{S_T0}, s{S_T0}, {WS_XN}
    s_mov_b32 s{S_T1}, 0xffff0000
    s_waitcnt vmcnt(0)
    """)
    for i in range(32):
        g(f"v_lshlrev_b32 v{X+2*i}, 16, v{T+i}\nv_and_b32 v{X+2*i+1}, s{S_T1}, v{T+i}")

    def reduce8(r):
        for m in ("quad_perm:[1,0,3,2]", "quad_perm:[2,3,0,1]", "row_half_mirror"):
            g(f"s_nop 1\nv_add_f32_dpp v{r}, v{r}, v{r} {m} row_mask:0xf bank_mask:0xf")

    g(f"v_pk_add_f32 v[6:7], {v(X,2)}, {v(X+2,2)}")
    for i in range(2, 32):
        g(f"v_pk_add_f32 v[6:7], v[6:7], {v(X+2*i,2)}")
    g("v_add_f32 v6, v6, v7")
    reduce8(6)
    g(f"v_mul_f32 v6, 0x3b000000, v6\nv_mov_b32 v8, 0\nv_mov_b32 v9, 0")
    for i in range(64):
        g(f"v_sub_f32 v7, v{X+i}, v6\nv_fmac_f32 v{8+(i&1)}, v7, v7")
    g("v_add_f32 v8, v8, v9")
    reduce8(8)
    g(f"""
    v_mul_f32 v8, 0x3b000000, v8
    v_cvt_pk_bf16_f32 v6, v6, v8
    v_and_b32 v8, s{S_T1}, v6
    v_lshlrev_b32 v6, 16, v6
    v_add_f32 v8, 0x3727c5ac, v8
    v_cvt_pk_bf16_f32 v8, v8, v8
    v_and_b32 v8, s{S_T1}, v8
    v_sqrt_f32 v8, v8
    s_nop 0
    v_cvt_pk_bf16_f32 v8, v8, v8
    v_and_b32 v8, s{S_T1}, v8
    v_rcp_f32 v8, v8
    """)
    for i in range(32):
        p = X + 2 * i
        g(f"""
        v_sub_f32 v{p}, v{p}, v6
        v_sub_f32 v{p+1}, v{p+1}, v6
        v_cvt_pk_bf16_f32 v{p}, v{p}, v{p+1}
        v_and_b32 v{p+1}, s{S_T1}, v{p}
        v_lshlrev_b32 v{p}, 16, v{p}
        v_mul_f32 v{p}, v{p}, v8
        v_mul_f32 v{p+1}, v{p+1}, v8
        v_cvt_pk_bf16_f32 v{T+i}, v{p}, v{p+1}
        """)
        if i % 4 == 3:
            g(f"buffer_store_dwordx4 {v(T+i-3,4)}, v4, {WSD}, s{S_T0} offen sc1\ns_add_u32 s{S_T0}, s{S_T0}, 4096")


def load_w32(g, mats, stride, touch, hook=None):
    DM, RT, RN = 1, 2, 3
    g(f"""
    v_and_b32 v4, 63, v0
    v_lshrrev_b32 v5, 4, v4
    v_and_b32 v6, 15, v4
    v_lshlrev_b32 v7, 2, v5
    v_xor_b32 v6, v6, v7
    v_lshlrev_b32 v{DM}, 4, v6
    s_lshl_b32 s{S_T0}, s{S_WAVE}, 4
    v_add_u32 v6, s{S_T0}, v5
    v_mul_u32_u24 v6, {stride}, v6
    v_add3_u32 v{DM}, v{DM}, v6, s{S_COL}
    v_bfe_u32 v6, v4, 2, 2
    v_xor_b32 v7, s{S_WAVE}, v6
    v_lshlrev_b32 v7, 6, v7
    v_lshl_add_u32 v7, v6, 8, v7
    v_lshrrev_b32 v6, 5, v4
    v_lshl_add_u32 v7, v6, 11, v7
    v_add_u32 v7, {RING}, v7
    v_and_b32 v5, 1, v5
    v_and_b32 v6, 3, v4
    v_lshl_add_u32 v{RN}, v5, 5, v7
    v_lshl_add_u32 v{RN}, v6, 3, v{RN}
    v_lshl_add_u32 v{RT}, v5, 4, v7
    v_and_b32 v6, 1, v4
    v_lshl_add_u32 v{RT}, v6, 3, v{RT}
    v_bfe_u32 v6, v4, 1, 1
    v_lshl_add_u32 v{RT}, v6, 5, v{RT}
    s_lshl_b32 s{S_T3}, s{S_WAVE}, 12
    s_add_u32 s{S_T3}, s{S_T3}, {RING}
    """)
    if touch is not None:
        g(f"""
        s_mul_i32 s{S_T1}, s{S_SEG}, 104
        s_mul_i32 s{S_T2}, s{S_WAVE}, 26
        s_add_u32 s{S_T1}, s{S_T1}, s{S_T2}
        v_lshrrev_b32 v5, 1, v4
        v_min_u32 v5, 25, v5
        v_add_u32 v5, s{S_T1}, v5
        v_mul_u32_u24 v5, {stride}, v5
        v_and_b32 v6, 1, v4
        v_lshl_add_u32 v5, v6, 7, v5
        """)
        for m in mats:
            set_srd(g, m[0], m[1])
            g(f"buffer_load_dword v127, v5, {WD}, s{S_COL} offen {touch}")
    stages = [(m, S) for m in mats for S in range(8)]

    def issue(i):
        m, S = stages[i]
        if S == 0: set_srd(g, m[0], m[1])
        for x in range(4):
            g(f"s_add_u32 m0, s{S_T3}, {(i % 4) * 16384 + x * 1024}\ns_mov_b32 s{S_T0}, {(64 * S + 4 * x) * stride}")
            g(f"buffer_load_dwordx4 v{DM}, {WD}, s{S_T0} offen lds")

    for i in range(3): issue(i)
    for i, (m, S) in enumerate(stages):
        extra = 3 if hook and i + 4 > len(stages) else 0
        g(f"s_waitcnt vmcnt({4 * min(2, len(stages) - 1 - i) + extra}) lgkmcnt(0)\ns_barrier")
        if i + 3 < len(stages): issue(i + 3)
        if hook and i + 4 == len(stages): hook()
        for ks in range(4):
            for x in range(2):
                g(f"ds_read_b64_tr_b16 {rg(m[2], m[3] + 4*(4*S+ks) + 2*x, 2)}, v{RT if m[4] else RN} offset:{(i % 4)*16384 + ks*4096 + x*1024}")
    g("s_waitcnt lgkmcnt(0)")


def xn_dma(plus):
    out = [[f"s_add_u32 s{S_T2}, s{S_SEG}, {plus}", f"s_lshl_b32 s{S_T2}, s{S_T2}, 15", f"s_add_u32 s{S_T2}, s{S_T2}, s{S_XO}"]]
    for hh in range(2):
        out[-1] += [f"s_add_u32 m0, s{S_LB}, {hh*4096}", f"s_add_u32 s{S_T1}, s{S_T2}, {hh*4096}"]
        for x in range(4):
            out[-1] += [f"buffer_load_dwordx4 v1, {WSD}, s{S_T1} offen offset:{x*1024} sc1 lds"]
            out.append([])
    out[-1] += [f"s_xor_b32 s{S_LB}, s{S_LB}, 32768"]
    return out


def gemm_loop(g, tag, mats, stores, epilogue, fshift):
    XF, ACC = 16, 32
    nst = len(stores)
    g(f"""
    v_and_b32 v4, 63, v0
    v_lshlrev_b32 v1, 4, v4
    v_mov_b32 v2, v1
    s_lshl_b32 s{S_LB}, s{S_WAVE}, 13
    s_add_u32 s{S_XO}, s{S_LB}, {WS_XN}
    s_mov_b32 s{S_PREV}, -1
    s_mov_b32 s{S_O1}, 0x40000000
    s_mov_b32 s{S_O2}, 0x40000000
    """)
    spin_counter(g, f"{tag}_ln", DBG_LN, 64)
    for x in sum(xn_dma(0), []): g(x)
    g(f"L_{tag}_seg:")
    m0 = g.mark()
    g("s_waitcnt vmcnt(0)\ns_barrier")
    rd = lambda ks: f"ds_read_b128 {v(XF+4*(ks%4),4)}, v2 offset:{ks*1024}"
    for ks in range(3): g(rd(ks))
    side = [[x] for x in stores] + xn_dma(NROWG)
    for ks in range(32):
        g(f"s_waitcnt lgkmcnt({min(2, 31-ks)})")
        for j, m in enumerate(mats):
            w_, x_ = rg(m[2], m[3] + 4*ks, 4), v(XF + 4*(ks % 4), 4)
            g(mf32(ACC + 16*j, w_, x_, ks == 0) if m[4] else mf32(ACC + 16*j, x_, w_, ks == 0))
            if j == 0 and ks + 3 < 32: g(rd(ks + 3))
            if j == 1 and side:
                for x in side.pop(0): g(x)
        if ks == 27:
            g(f"s_cmp_lt_i32 s{S_PREV}, 0\ns_cbranch_scc1 L_{tag}_nf\ns_waitcnt vmcnt(8)\ns_barrier")
            set_flag(g, f"{tag}_nf", S_PREV)
    g("v_xor_b32 v2, 0x8000, v2\ns_nop 7\ns_nop 1")
    epilogue(ACC)
    g(f"""
    s_lshl_b32 s{S_PREV}, s{S_SEG}, {fshift}
    s_add_u32 s{S_PREV}, s{S_PREV}, s{S_FA}
    s_add_u32 s{S_SEG}, s{S_SEG}, {NROWG}
    s_cmp_lt_u32 s{S_SEG}, {NSEG}
    s_cbranch_scc1 L_{tag}_seg
    """)
    bad = hazard.check(g.lines[m0:] + g.lines[m0:m0 + 40], tag)
    for x in stores: g(x)
    g("s_waitcnt vmcnt(0)\ns_barrier")
    set_flag(g, f"{tag}_lf", S_PREV)
    return bad


def tile_addr(g, dst, tshift):
    g(f"""
    v_bfe_u32 v5, v0, 4, 1
    v_mul_u32_u24 v{dst}, {tshift}, v5
    v_bfe_u32 v5, v0, 5, 1
    v_lshl_add_u32 v{dst}, v5, 8, v{dst}
    v_and_b32 v5, 15, v0
    v_lshl_add_u32 v{dst}, v5, 4, v{dst}
    s_lshl_b32 s{S_T0}, s{S_WAVE}, 10
    v_add_u32 v{dst}, s{S_T0}, v{dst}
    """)


def qkv_role(g, opt):
    mats = [(P_WK, 4*MB, "a", 0, 1), (P_WV, 4*MB, "a", 128, 0), (P_WQ, 4*MB, "v", 128, 1)]
    m0 = g.mark()
    g(f"""
    s_mul_i32 s{S_HD}, s{S_WI}, 52429
    s_lshr_b32 s{S_HD}, s{S_HD}, 18
    s_mul_i32 s{S_T0}, s{S_HD}, {NROWG}
    s_sub_u32 s{S_SEG}, s{S_WI}, s{S_T0}
    s_lshl_b32 s{S_COL}, s{S_HD}, 8
    s_add_u32 s{S_FA}, s{S_COL}, {WS_FLAGS}
    """)
    wstamp(g, opt, 0)
    load_w32(g, mats, 8192, opt.get("touch", ""), lambda: (worker_fill(g), clear_flags(g, 2)))
    count_up(g, "qkv_in", DBG_INIT)
    wstamp(g, opt, 1)
    tile_addr(g, 8, 4096)
    g(f"""
    v_bfe_u32 v5, v0, 4, 1
    v_lshlrev_b32 v9, 10, v5
    v_bfe_u32 v5, v0, 5, 1
    v_lshl_add_u32 v9, v5, 9, v9
    v_and_b32 v5, 15, v0
    v_lshl_add_u32 v9, v5, 4, v9
    s_lshl_b32 s{S_T0}, s{S_WAVE}, 11
    s_add_u32 s{S_T0}, s{S_T0}, 8192
    v_add_u32 v9, s{S_T0}, v9
    """)
    bad = hazard.check(g.lines[m0:], "qkv prologue")

    def epi(ACC):
        P = 80
        g(f"""
        s_lshl_b32 s{S_O1}, s{S_SEG}, 5
        s_add_u32 s{S_O1}, s{S_O1}, s{S_HD}
        s_lshl_b32 s{S_O2}, s{S_O1}, 13
        s_add_u32 s{S_O2}, s{S_O2}, {WS_Q}
        s_lshl_b32 s{S_O1}, s{S_O1}, 14
        s_add_u32 s{S_O1}, s{S_O1}, {WS_KV}
        """)
        for rho in range(2):
            for x in range(4): g(f"v_cvt_pk_bf16_f32 v{P+4*rho+x}, v{ACC+8*rho+x}, v{ACC+8*rho+4+x}")
        for be in range(2):
            for ri in range(4):
                r = ACC + 16 + 8*(ri & 1) + 4*(ri >> 1) + 2*be
                g(f"v_cvt_pk_bf16_f32 v{P+8+4*be+ri}, v{r}, v{r+1}")
        for rho in range(2):
            for x in range(4): g(f"v_cvt_pk_bf16_f32 v{P+16+4*rho+x}, v{ACC+32+8*rho+x}, v{ACC+32+8*rho+4+x}")

    stores = ([f"buffer_store_dwordx4 {v(80+4*x,4)}, v8, {WSD}, s{S_O1} offen offset:{512*x} sc1" for x in range(2)] +
              [f"buffer_store_dwordx4 {v(88+4*x,4)}, v9, {WSD}, s{S_O1} offen offset:{256*x} sc1" for x in range(2)] +
              [f"buffer_store_dwordx4 {v(96+4*x,4)}, v8, {WSD}, s{S_O2} offen offset:{512*x} sc1" for x in range(2)])
    return bad + gemm_loop(g, "qkv", mats, stores, epi, 2)


def ffn_role(g, opt):
    mats = [(P_WG, 512*2752, "a", 0, 1), (P_WU, 512*2752, "a", 128, 1)]
    m0 = g.mark()
    g(f"""
    s_sub_u32 s{S_O1}, s{S_WI}, 160
    s_mul_i32 s{S_HD}, s{S_O1}, 52429
    s_lshr_b32 s{S_HD}, s{S_HD}, 18
    s_mul_i32 s{S_T0}, s{S_HD}, {NROWG}
    s_sub_u32 s{S_SEG}, s{S_O1}, s{S_T0}
    s_lshl_b32 s{S_COL}, s{S_HD}, 8
    s_lshl_b32 s{S_FA}, s{S_HD}, 2
    s_add_u32 s{S_FA}, s{S_FA}, {WS_HF}
    """)
    layernorm(g, S_O1)
    count_up(g, "ffn_lnup", DBG_LN)
    wstamp(g, opt, 0)
    worker_fill(g)
    clear_flags(g, 6)
    count_up(g, "ffn_in", DBG_INIT)
    g(f"s_cmp_ge_u32 s{S_HD}, 11\ns_cbranch_scc1 L_p3")
    load_w32(g, mats, 2752, opt.get("touch", ""))
    wstamp(g, opt, 1)
    tile_addr(g, 8, HM_SEG // 2)
    g(f"s_mov_b32 s{S_C0}, 0xffff0000\ns_mov_b32 s{S_C1}, 0xbdd2d3e8\ns_mov_b32 s{S_C2}, 0xc0135761")
    bad = hazard.check(g.lines[m0:], "ffn prologue")

    def epi(ACC):
        P, T = 80, 96
        U = ACC + 16
        g(f"""
        s_mul_i32 s{S_O1}, s{S_SEG}, {HM_SEG}
        s_lshl_b32 s{S_T0}, s{S_HD}, 12
        s_add_u32 s{S_O1}, s{S_O1}, s{S_T0}
        s_add_u32 s{S_O1}, s{S_O1}, {WS_HMID}
        v_mov_b32 v{T+16}, s{S_C2}
        """)

        def rnd(x, y):
            g(f"v_cvt_pk_bf16_f32 v{x}, v{x}, v{y}\nv_and_b32 v{y}, s{S_C0}, v{x}\nv_lshlrev_b32 v{x}, 16, v{x}")
        for rho in range(2):
            idx = [8*rho + i for i in range(8)]
            for x in range(4):
                rnd(ACC + 8*rho + x, ACC + 8*rho + 4 + x); rnd(U + 8*rho + x, U + 8*rho + 4 + x)
            for i in idx: g(f"v_mul_f32 v{T+i}, v{ACC+i}, v{ACC+i}")
            for i in idx: g(f"v_fma_f32 v{T+i}, v{T+i}, s{S_C1}, v{T+16}")
            for i in idx: g(f"v_mul_f32 v{T+i}, v{T+i}, v{ACC+i}")
            for i in idx: g(f"v_exp_f32 v{T+i}, v{T+i}")
            for i in idx: g(f"v_add_f32 v{T+i}, 1.0, v{T+i}")
            for i in idx: g(f"v_rcp_f32 v{T+i}, v{T+i}")
            for i in idx: g(f"v_mul_f32 v{ACC+i}, v{ACC+i}, v{T+i}")
            for x in range(4): rnd(ACC + 8*rho + x, ACC + 8*rho + 4 + x)
            for i in idx: g(f"v_mul_f32 v{ACC+i}, v{ACC+i}, v{U+i}")
            for x in range(4): g(f"v_cvt_pk_bf16_f32 v{P+4*rho+x}, v{ACC+8*rho+x}, v{ACC+8*rho+4+x}")

    stores = [f"buffer_store_dwordx4 {v(80+4*x,4)}, v8, {WSD}, s{S_O1} offen offset:{512*x} sc1" for x in range(2)]
    return bad + gemm_loop(g, "ffn", mats, stores, epi, 6)


def p3_role(g, opt):
    LN16, KPA, RWA, RRA, XA, KMW, KMR, VMW, VMR, HFA, OFA = 1, 2, 3, 4, 5, 6, 7, 8, 9, 12, 13
    GV, XV = 14, 16
    ACC, SC, PB, OA, KM, VM = 20, 28, 44, 52, 68, 84
    ST = 92
    WDR = 168
    L_RED, L_KM, L_VM = 0, 8192, 12288
    S_TH, S_SCL, S_QO, S_KO, S_PO, S_HO = S_HD, S_C1, S_O1, S_O2, S_FA, S_PREV
    st = opt.get("st", "")
    S_OB = S_LB
    m0 = g.mark()
    DM, RA = 1, 2
    g(f"""
    s_lshr_b32 s{S_TH}, s{S_TK}, 4
    s_and_b32 s{S_COL}, s{S_TK}, 15
    s_lshl_b32 s{S_COL}, s{S_COL}, 6
    v_and_b32 v4, 63, v0
    v_lshrrev_b32 v5, 4, v4
    v_bfe_u32 v6, v4, 2, 2
    v_and_b32 v7, 1, v6
    v_lshlrev_b32 v{DM}, 4, v7
    v_lshl_add_u32 v{DM}, v5, 2, v{DM}
    v_lshrrev_b32 v7, 1, v6
    v_add_u32 v{DM}, v{DM}, v7
    v_lshlrev_b32 v{DM}, 10, v{DM}
    v_and_b32 v7, 1, v5
    v_lshlrev_b32 v7, 1, v7
    v_and_b32 v8, 3, v4
    v_xor_b32 v8, v8, v7
    v_lshl_add_u32 v{DM}, v8, 4, v{DM}
    v_add_u32 v{DM}, s{S_COL}, v{DM}
    v_lshrrev_b32 v8, 2, v4
    v_lshlrev_b32 v{RA}, 6, v8
    v_lshl_add_u32 v{RA}, v7, 4, v{RA}
    v_and_b32 v8, 3, v4
    v_lshl_add_u32 v{RA}, v8, 3, v{RA}
    s_lshl_b32 s{S_T3}, s{S_WAVE}, 15
    v_add_u32 v{RA}, s{S_T3}, v{RA}
    v_xor_b32 v{RA+1}, 32, v{RA}
    s_lshl_b32 s{S_T1}, s{S_WAVE}, 20
    s_mul_i32 s{S_T2}, s{S_WAVE}, {11*32768}
    """)
    steps = [("o", k) for k in range(32)] + [("d", k) for k in range(11)]
    AH = 12

    def issue(i):
        m, k = steps[i]
        if k == 0: set_srd(g, P_WO if m == "o" else P_WD, 4*MB if m == "o" else 1376*1024)
        for x in range(2):
            g(f"s_add_u32 m0, s{S_T3}, {(i % 16)*2048 + x*1024}\ns_add_u32 s{S_T0}, s{S_T1 if m == 'o' else S_T2}, {k*32768 + x*2048}")
            g(f"buffer_load_dwordx4 v{DM}, {WD}, s{S_T0} offen lds")

    wreg = lambda m, k, t, o=0, n=4: a(8*k + 4*t + o, n) if m == "o" else v(WDR + 8*k + 4*t + o, n)
    for i in range(AH): issue(i)
    for i, (m, k) in enumerate(steps):
        g(f"s_waitcnt vmcnt({2*min(AH - 1, len(steps) - 1 - i)}) lgkmcnt(8)")
        if i + AH < len(steps): issue(i + AH)
        for t in range(2):
            for x in range(2):
                g(f"ds_read_b64_tr_b16 {wreg(m, k, t, 2*x, 2)}, v{RA+t} offset:{(i % 16)*2048 + x*1024}")
    g("s_waitcnt lgkmcnt(0)\ns_barrier")
    g(f"""
    v_and_b32 v20, 63, v0
    v_lshrrev_b32 v21, 4, v20
    v_and_b32 v22, 15, v20
    v_lshlrev_b32 v{LN16}, 4, v20
    v_bfe_u32 v23, v22, 1, 1
    v_lshlrev_b32 v{KPA}, 3, v23
    v_lshrrev_b32 v23, 2, v22
    v_lshl_add_u32 v{KPA}, v23, 1, v{KPA}
    v_and_b32 v24, 1, v22
    v_add_u32 v{KPA}, v{KPA}, v24
    v_lshl_add_u32 v{KPA}, v21, 4, v{KPA}
    v_lshlrev_b32 v{KPA}, 4, v{KPA}
    v_lshl_add_u32 v{KMR}, v23, 1, v24
    v_lshlrev_b32 v{KMR}, 4, v{KMR}
    v_mul_u32_u24 v24, 144, v21
    v_add_u32 v{KMR}, v{KMR}, v24
    v_add_u32 v{KMR}, {L_KM}, v{KMR}
    v_mul_u32_u24 v{KMW}, 144, v23
    v_lshl_add_u32 v{KMW}, v21, 5, v{KMW}
    v_and_b32 v24, 3, v22
    v_lshl_add_u32 v{KMW}, v24, 2, v{KMW}
    s_mul_i32 s{S_T0}, s{S_WAVE}, 576
    s_add_u32 s{S_T0}, s{S_T0}, {L_KM}
    v_add_u32 v{KMW}, s{S_T0}, v{KMW}
    v_lshlrev_b32 v{VMW}, 3, v0
    v_add_u32 v{VMW}, {L_VM}, v{VMW}
    s_lshr_b32 s{S_T0}, s{S_WAVE}, 1
    s_lshl_b32 s{S_T0}, s{S_T0}, 10
    s_add_u32 s{S_T0}, s{S_T0}, {L_VM}
    v_lshlrev_b32 v{VMR}, 3, v20
    v_add_u32 v{VMR}, s{S_T0}, v{VMR}
    s_lshl_b32 s{S_T0}, s{S_WAVE}, 11
    v_lshlrev_b32 v{RWA}, 7, v22
    v_lshl_add_u32 v{RWA}, v21, 4, v{RWA}
    v_add_u32 v{RWA}, s{S_T0}, v{RWA}
    v_lshlrev_b32 v{RRA}, 3, v0
    v_lshrrev_b32 v24, 4, v0
    v_lshlrev_b32 v{XA}, 10, v24
    v_lshl_add_u32 v{XA}, v22, 2, v{XA}
    s_lshl_b32 s{S_T0}, s{S_TH}, 14
    s_add_u32 s{S_T0}, s{S_T0}, s{S_COL}
    v_add_u32 v{XA}, s{S_T0}, v{XA}
    v_min_u32 v{HFA}, 10, v20
    v_lshlrev_b32 v{HFA}, 2, v{HFA}
    v_and_b32 v{OFA}, 7, v20
    s_lshl_b32 s{S_T0}, s{S_WAVE}, 3
    v_add_u32 v{OFA}, s{S_T0}, v{OFA}
    v_lshlrev_b32 v{OFA}, 2, v{OFA}
    s_and_b32 s{S_T0}, s{S_WAVE}, 1
    s_lshl_b32 s{S_T0}, s{S_T0}, 4
    v_add_u32 v22, s{S_T0}, v22
    v_lshlrev_b32 v21, 1, v21
    v_sub_u32 v22, v22, v21
    """)
    for T in range(2):
        for r in range(4):
            g(f"v_cmp_le_i32 s[{S_MK+2*(4*T+r)}:{S_MK+2*(4*T+r)+1}], {16*T + 8*(r >> 1) + (r & 1)}, v22")
    g(f"""
    s_mov_b32 s{S_OUT}, s{P_OUT}
    s_mov_b32 s{S_OUT+1}, s{P_OUT+1}
    s_mov_b32 s{S_OUT+2}, {2*MB}
    s_mov_b32 s{S_OUT+3}, 0x20000
    s_mov_b32 s{S_SCL}, 0x3e0293ee
    s_mov_b32 s{S_C0}, 0xffff0000
    s_mov_b32 s{S_C2}, 0xbfb8aa3b
    s_sub_u32 s{S_SEG}, s{S_XCC}, 1
    s_lshl_b32 s{S_OB}, s{S_SEG}, 1
    v_mov_b32 v{PB+5}, 0
    v_mov_b32 v{PB+6}, 0
    """)
    set_srd(g, P_X, 2 * MB)
    spin_counter(g, "p3_init", DBG_INIT, 224)
    spin_counter(g, "p3_team", DBG_TEAM, 32)
    bad = hazard.check(g.lines[m0:], "p3 prologue")

    def reduce(dst):
        g("s_nop 7")
        for t in range(2): g(f"ds_write_b128 v{RWA}, {v(ACC+4*t,4)} offset:{L_RED + 64*t}")
        g("s_waitcnt lgkmcnt(0)\ns_barrier")
        for x in range(4): g(f"ds_read_b64 {v(ACC+2*x,2)}, v{RRA} offset:{L_RED + 2048*x}")
        g(f"""
        s_waitcnt lgkmcnt(0)
        v_pk_add_f32 {v(ACC,2)}, {v(ACC,2)}, {v(ACC+2,2)}
        v_pk_add_f32 {v(ACC+4,2)}, {v(ACC+4,2)}, {v(ACC+6,2)}
        v_pk_add_f32 {v(ACC,2)}, {v(ACC,2)}, {v(ACC+4,2)}
        v_cvt_pk_bf16_f32 v{dst}, v{ACC}, v{ACC+1}
        v_and_b32 v{dst+1}, s{S_C0}, v{dst}
        v_lshlrev_b32 v{dst}, 16, v{dst}
        """)

    wstamp(g, opt, 3)
    g("L_p3_seg:")
    m1 = g.mark()
    pstamp(g, opt, 0)
    g(f"s_lshl_b32 s{S_T0}, s{S_SEG}, 6\ns_add_u32 s{S_T2}, s{S_T0}, {WS_HF}")
    spin_flags(g, "p3_hf", HFA, S_T2)
    pstamp(g, opt, 1)
    g(f"""
    s_lshl_b32 s{S_T0}, s{S_SEG}, 1
    s_add_u32 s{S_T0}, s{S_T0}, s{S_TH}
    s_mul_i32 s{S_HO}, s{S_T0}, {HM_SEG // 2}
    s_mul_i32 s{S_T1}, s{S_WAVE}, {11*1024}
    s_add_u32 s{S_HO}, s{S_HO}, s{S_T1}
    s_add_u32 s{S_HO}, s{S_HO}, {WS_HMID}
    s_cmp_eq_u32 s{S_WAVE}, 3
    s_cselect_b32 s{S_T1}, 0x40000000, 0
    """)
    for k in range(11):
        if k == 10: g(f"s_add_u32 s{S_HO}, s{S_HO}, s{S_T1}")
        g(f"buffer_load_dwordx4 {v(ST+4*k,4)}, v{LN16}, {WSD}, s{S_HO} offen offset:{(k & 3)*1024} sc1")
        if k & 3 == 3: g(f"s_add_u32 s{S_HO}, s{S_HO}, 4096")
    g(f"s_lshl_b32 s{S_XO}, s{S_SEG}, 15\nbuffer_load_dword v{XV}, v{XA}, {WD}, s{S_XO} offen")
    for k in range(11):
        g(f"s_waitcnt vmcnt({11-k})")
        for t in range(2): g(mf16(ACC + 4*t, wreg("d", k, t), v(ST + 4*k, 4), k == 0))
    reduce(GV)
    g(f"""
    v_mul_f32 v{ACC}, s{S_C2}, v{GV}
    v_mul_f32 v{ACC+1}, s{S_C2}, v{GV+1}
    v_exp_f32 v{ACC}, v{ACC}
    v_exp_f32 v{ACC+1}, v{ACC+1}
    s_nop 0
    v_add_f32 v{ACC}, 1.0, v{ACC}
    v_add_f32 v{ACC+1}, 1.0, v{ACC+1}
    v_rcp_f32 v{ACC}, v{ACC}
    v_rcp_f32 v{ACC+1}, v{ACC+1}
    s_waitcnt vmcnt(0)
    v_pk_mul_f32 {v(GV,2)}, {v(GV,2)}, {v(ACC,2)}
    v_cvt_pk_bf16_f32 v{GV}, v{GV}, v{GV+1}
    v_and_b32 v{GV+1}, s{S_C0}, v{GV}
    v_lshlrev_b32 v{GV}, 16, v{GV}
    v_and_b32 v{XV+1}, s{S_C0}, v{XV}
    v_lshlrev_b32 v{XV}, 16, v{XV}
    """)
    pstamp(g, opt, 2)
    QR_, KR_, VR_ = ST, ST + 16, ST + 48
    g(f"""
    s_lshl_b32 s{S_T0}, s{S_TK}, 6
    s_add_u32 s{S_T0}, s{S_T0}, s{S_SEG}
    s_lshl_b32 s{S_T0}, s{S_T0}, 2
    s_add_u32 s{S_T2}, s{S_T0}, {WS_FLAGS}
    v_mov_b32 v10, 0
    """)
    spin_flags(g, "p3_kv", 10, S_T2)
    g(f"""
    s_lshl_b32 s{S_T0}, s{S_SEG}, 5
    s_add_u32 s{S_T0}, s{S_T0}, s{S_TK}
    s_lshl_b32 s{S_QO}, s{S_T0}, 13
    s_and_b32 s{S_T1}, s{S_WAVE}, 1
    s_lshl_b32 s{S_T1}, s{S_T1}, 12
    s_add_u32 s{S_QO}, s{S_QO}, s{S_T1}
    s_add_u32 s{S_QO}, s{S_QO}, {WS_Q}
    s_lshl_b32 s{S_KO}, s{S_T0}, 14
    s_add_u32 s{S_KO}, s{S_KO}, {WS_KV}
    s_lshl_b32 s{S_PO}, s{S_T0}, 2
    s_add_u32 s{S_PO}, s{S_PO}, s{S_WAVE}
    s_lshl_b32 s{S_PO}, s{S_PO}, 10
    s_add_u32 s{S_PO}, s{S_PO}, {WS_PUB}
    s_add_u32 s{S_T1}, s{S_KO}, 4096
    s_lshr_b32 s{S_T2}, s{S_WAVE}, 1
    s_lshl_b32 s{S_T2}, s{S_T2}, 12
    s_add_u32 s{S_T2}, s{S_T2}, s{S_KO}
    s_add_u32 s{S_T2}, s{S_T2}, 8192
    """)
    for x in range(4):
        g(f"buffer_load_dwordx4 {v(QR_+4*x,4)}, v{LN16}, {WSD}, s{S_QO} offen offset:{x*1024} sc1")
        g(f"buffer_load_dwordx4 {v(KR_+4*x,4)}, v{KPA}, {WSD}, s{S_KO} offen offset:{x*1024} sc1")
        g(f"buffer_load_dwordx4 {v(KR_+16+4*x,4)}, v{KPA}, {WSD}, s{S_T1} offen offset:{x*1024} sc1")
    for x in range(4):
        g(f"buffer_load_dwordx4 {v(VR_+4*x,4)}, v{LN16}, {WSD}, s{S_T2} offen offset:{x*1024} sc1")
    for x in range(4):
        g(f"s_waitcnt vmcnt({4 + 3*(3-x)})")
        for T in range(2): g(mf16(SC + 4*T, v(KR_ + 16*T + 4*x, 4), v(QR_ + 4*x, 4), x == 0))
    MX, MY = SC + 12, SC + 13
    g(f"v_mov_b32 v{MY}, 0xd028965f\ns_nop 7")
    for i in range(8): g(f"v_cndmask_b32 v{SC+i}, v{MY}, v{SC+i}, s[{S_MK+2*i}:{S_MK+2*i+1}]")
    g(f"v_max3_f32 v{MX}, v{SC}, v{SC+1}, v{SC+2}\nv_max3_f32 v{MX}, v{MX}, v{SC+3}, v{SC+4}\nv_max3_f32 v{MX}, v{MX}, v{SC+5}, v{SC+6}\nv_max_f32 v{MX}, v{MX}, v{SC+7}")
    pstamp(g, opt, 3)
    g(f"""
    s_lshl_b32 s{S_T2}, s{S_TK}, 7
    s_add_u32 s{S_T2}, s{S_T2}, {WS_PF}
    s_add_u32 s{S_T1}, s{S_SEG}, 2
    s_cmp_lt_u32 s{S_SEG}, 62
    s_cselect_b32 s{S_T1}, s{S_T1}, 62
    L_p3_pf:
    buffer_load_dword v11, v10, {WSD}, s{S_T2} offen sc1
    s_add_u32 s{S_SPIN}, s{S_SPIN}, 1
    s_cmp_gt_u32 s{S_SPIN}, {SPIN_MAX}
    s_cbranch_scc1 L_p3_pub
    s_waitcnt vmcnt(0)
    v_cmp_gt_u32 vcc, s{S_T1}, v11
    s_cbranch_vccz L_p3_pub
    s_sleep 4
    s_branch L_p3_pf
    L_p3_pub:
    buffer_load_dwordx4 {v(OA,4)}, v{LN16}, {WSD}, s{S_PO} offen sc1
    s_add_u32 s{S_SPIN}, s{S_SPIN}, 1
    s_cmp_gt_u32 s{S_SPIN}, {SPIN_MAX}
    s_cbranch_scc1 L_p3_pub_out
    s_waitcnt vmcnt(0)
    v_max3_u32 v11, v{OA}, v{OA+1}, v{OA+2}
    v_max_u32 v11, v11, v{OA+3}
    v_cmp_eq_u32 vcc, s{S_SENT}, v11
    s_cbranch_vccz L_p3_pub_out
    s_sleep {opt.get('psleep', 2)}
    s_branch L_p3_pub
    L_p3_pub_out:
    s_waitcnt vmcnt(0)
    ds_write2_b32 v{KMW}, v{OA}, v{OA+1} offset0:0 offset1:4
    ds_write_b64 v{VMW}, {v(OA+2,2)}
    s_waitcnt lgkmcnt(0)
    s_barrier
    """)
    pstamp(g, opt, 4)
    for x in range(4): g(f"ds_read_b128 {v(KM+4*x,4)}, v{KMR} offset:{576*x}")
    for x in range(2): g(f"ds_read_b64 {v(VM+2*x,2)}, v{VMR} offset:{512*x}")
    for x in range(4):
        g(f"s_waitcnt lgkmcnt({5-x})")
        g(mf16(SC + 8, v(KM + 4*x, 4), v(QR_ + 4*x, 4), x == 0))
    g(f"""
    s_lshl_b32 s{S_T0}, s{S_OB}, 1
    s_and_b32 s{S_T1}, s{S_WAVE}, 1
    s_add_u32 s{S_T0}, s{S_T0}, s{S_T1}
    s_lshl_b32 s{S_T0}, s{S_T0}, 5
    s_add_u32 s{S_T0}, s{S_T0}, s{S_TK}
    s_lshl_b32 s{S_T0}, s{S_T0}, 2
    s_and_b32 s{S_T1}, s{S_WAVE}, 2
    s_add_u32 s{S_T0}, s{S_T0}, s{S_T1}
    s_lshl_b32 s{S_T0}, s{S_T0}, 10
    s_add_u32 s{S_T0}, s{S_T0}, {WS_O}
    v_max3_f32 v{MX}, v{MX}, v{SC+8}, v{SC+9}
    """)

    def cross(r, t, op):
        for sw in (16, 32):
            g(f"v_mov_b32 v{t}, v{r}\ns_nop 1\nv_permlane{sw}_swap_b32 v{r}, v{t}\n{op} v{r}, v{r}, v{t}")
    cross(MX, MY, "v_max_f32")
    g(f"v_mul_f32 v{MX}, s{S_SCL}, v{MX}")
    for i in range(10): g(f"v_fma_f32 v{SC+i}, v{SC+i}, s{S_SCL}, -v{MX}")
    for i in range(10): g(f"v_exp_f32 v{SC+i}, v{SC+i}")
    for ri in range(4):
        r = SC + 4*(ri & 1) + 2*(ri >> 1)
        g(f"v_cvt_pk_bf16_f32 v{PB+ri}, v{r}, v{r+1}")
    g(f"v_cvt_pk_bf16_f32 v{PB+4}, v{SC+8}, v{SC+9}\nv_cvt_pk_bf16_f32 v{PB+7}, v{SC+8}, v{SC+9}\ns_waitcnt lgkmcnt(0)")
    for e in range(4):
        g(mf16(OA + 4*e, v(VR_ + 4*e, 4), v(PB, 4), True))
        g(f"v_add_f32 v{SC+2*e}, v{SC+2*e}, v{SC+2*e+1}")
    sums = [f"v_add_f32 v{SC+8}, v{SC+8}, v{SC+9}", f"v_add_f32 v{SC}, v{SC}, v{SC+2}", f"v_add_f32 v{SC+4}, v{SC+4}, v{SC+6}", f"v_add_f32 v{SC}, v{SC}, v{SC+8}"]
    for e in range(4):
        g(f"v_mfma_f32_16x16x16_bf16 {v(OA+4*e,4)}, {v(VM+2*(e >> 1),2)}, {v(PB+4+2*(e & 1),2)}, {v(OA+4*e,4)}")
        g(sums[e])
    g(f"v_add_f32 v{SC}, v{SC}, v{SC+4}")
    cross(SC, SC + 1, "v_add_f32")
    g(f"v_rcp_f32 v{SC}, v{SC}\ns_nop 0")
    for x in range(2):
        for i in range(8): g(f"v_mul_f32 v{OA+8*x+i}, v{OA+8*x+i}, v{SC}")
        for r in range(4): g(f"v_cvt_pk_bf16_f32 v{KM+4*x+r}, v{OA+8*x+r}, v{OA+8*x+4+r}")
        g(f"buffer_store_dwordx4 {v(KM+4*x,4)}, v{LN16}, {WSD}, s{S_T0} offen offset:{x*1024} {st}")
    g(f"""
    s_lshl_b32 s{S_T2}, s{S_SEG}, 7
    s_add_u32 s{S_T2}, s{S_T2}, {WS_OF}
    s_lshl_b32 s{S_T1}, s{S_TK}, 2
    s_add_u32 s{S_T1}, s{S_T1}, s{S_T2}
    s_lshl_b32 s{S_T0}, s{S_OB}, 1
    s_add_u32 s{S_T0}, s{S_T0}, s{S_TH}
    s_lshl_b32 s{S_T0}, s{S_T0}, 2
    s_add_u32 s{S_T0}, s{S_T0}, s{S_WAVE}
    s_lshl_b32 s{S_T0}, s{S_T0}, 15
    s_add_u32 s{S_HO}, s{S_T0}, {WS_O}
    s_waitcnt vmcnt(0)
    s_barrier
    """)
    pstamp(g, opt, 5)
    set_flag(g, "p3_of", S_T1, st)
    spin_flags(g, "p3_ow", OFA, S_T2, 0)
    pstamp(g, opt, 6)
    NB = 16

    def old(k):
        g(f"buffer_load_dwordx4 {v(ST+4*(k % NB),4)}, v{LN16}, {WSD}, s{S_HO} offen offset:{(k & 3)*1024} sc1")
        if k & 3 == 3: g(f"s_add_u32 s{S_HO}, s{S_HO}, 4096")
    for k in range(NB): old(k)
    for k in range(32):
        g(f"s_waitcnt vmcnt({min(NB - 1, 31 - k)})")
        for t in range(2): g(mf16(ACC + 4*t, wreg("o", k, t), v(ST + 4*(k % NB), 4), k == 0))
        if k + NB < 32: old(k + NB)
    pstamp(g, opt, 7)
    reduce(SC)
    pstamp(g, opt, 8)
    g(f"""
    v_pk_mul_f32 {v(SC,2)}, {v(SC,2)}, {v(GV,2)}
    v_cvt_pk_bf16_f32 v{SC}, v{SC}, v{SC+1}
    v_and_b32 v{SC+1}, s{S_C0}, v{SC}
    v_lshlrev_b32 v{SC}, 16, v{SC}
    v_pk_add_f32 {v(SC,2)}, {v(SC,2)}, {v(XV,2)}
    v_cvt_pk_bf16_f32 v{SC}, v{SC}, v{SC+1}
    buffer_store_dword v{SC}, v{XA}, s[{S_OUT}:{S_OUT+3}], s{S_XO} offen
    s_xor_b32 s{S_OB}, s{S_OB}, 1
    s_add_u32 s{S_SEG}, s{S_SEG}, 7
    s_cmp_lt_u32 s{S_SEG}, {NSEG}
    s_barrier
    s_cbranch_scc1 L_p3_seg
    """)
    bad += hazard.check(g.lines[m1:], "p3 loop")
    wstamp(g, opt, 4, True)
    g("s_waitcnt vmcnt(0)\ns_endpgm")
    return bad


def worker_roles(g, opt):
    m0 = g.mark()
    worker_init(g)
    bad = hazard.check(g.lines[m0:], "worker init")
    g(f"s_cmp_ge_u32 s{S_WI}, 160\ns_cbranch_scc1 L_ffn")
    bad += qkv_role(g, opt)
    g("s_branch L_p3\nL_ffn:")
    bad += ffn_role(g, opt)
    g("L_p3:")
    wstamp(g, opt, 2)
    bad += p3_role(g, opt)
    return bad
```

```python
from asmlib import *
from layout import *

S_WS = 4
S_W = 8
P_X, P_MEM0, P_WQ, P_WK, P_WV, P_WO, P_SEG, P_BX, P_WG, P_WU, P_WD, P_OUT, P_DBG, P_WSP = range(16, 44, 2)
S_XCC, S_TK, S_WAVE = 44, 45, 46
S_SPIN = 3
S_SENT = 12
SENT = 0xffbfffbf
S_T0, S_T1, S_T2, S_T3 = 47, 48, 49, 50
S_STEP, S_H1ST, S_H1ST2, S_H1LD, S_H1LD2, S_TAG, S_H2LD, S_H2LD2, S_H2ST, S_KV, S_PUB, S_FREE0, S_SC, S_FL, S_FREE1 = range(51, 66)
S_HF = 66
S_RDY = 68
S_ONE = 70
S_H2RS, S_F12 = 72, 73
S_KV2, S_VV = 100, 101
IDX, LW, LM, H1ST, H2ST, QW, QR, KR, OW, FLG, TCH = range(1, 12)
VN, PA, VX, ACC, M, POOL, WRES = 12, 20, 24, 40, 64, 96, 144
FV, GM, FAD, FST = VX + 3, VX + 7, VX + 11, VX + 15
A = [ACC + 4 * i for i in range(6)]
LDS_WAVE = 36864
LDS_MISC = 147456
L_KX = LDS_MISC
L_QK = LDS_MISC + 8192
L_O = L_QK + 4096
SPIN_MAX = 1 << 13

G_R = [[(m, 0, t), (m, 1, t)] for m, t in (("q", 0), ("v", 1), ("k", 3), ("q", 7), ("k", 7), ("v", 7))]
G_M = G_R[1] + G_R[2] + G_R[3]
G_QK = G_R[4] + G_R[5] + G_R[0]
G_O = [("o", 6, 0), ("o", 6, 1), ("o", 7, 0), ("o", 7, 1), ("o", 5, 0), ("o", 5, 1)]
LDS_IDX = {k: i for i, k in enumerate(G_M + G_O + G_QK)}
LOC = {}
for i, k in enumerate(G_O):
    LOC[k] = ("v", POOL + 8 * i)
for k in G_M + G_QK:
    LOC[k] = ("v", POOL + 32 + 8 * k[1])
_n = 0
for k in [(m, x, t) for m in "qkv" for t in range(8) for x in range(2)] + [("o", x, t) for x in range(8) for t in range(2)]:
    if k in LOC: continue
    LOC[k] = ("a", 8 * _n) if _n < 32 else ("v", WRES + 8 * (_n - 32))
    _n += 1
assert _n == 46


def rng(f, b, n):
    return a(b, n) if f == "a" else v(b, n)


def wop(k):
    return rng(LOC[k][0], LOC[k][1], 8)


def smf(d, aop, k, abid=0):
    b = wop(k) if isinstance(k, tuple) else k
    return f"v_smfmac_f32_16x16x64_bf16 {v(d,4)}, {v(aop,4)}, {b}, {v(IDX)}" + (" abid:1" if abid else "")


def mf(d, x, y, c):
    return f"v_mfma_f32_16x16x32_bf16 {v(d,4)}, {v(x,4)}, {v(y,4)}, " + ("0" if c is None else v(c, 4))


def stage_reads(grp):
    return [f"ds_read_b128 {v(LOC[k][1]+4*hh,4)}, {v(LW)} offset:{LDS_IDX[k]*2048+hh*1024}" for k in grp for hh in range(2)]


def zero(base, n):
    return [f"v_mov_b64 {v(base+2*i,2)}, 0" for i in range(n // 2)]


def set_srd(g, ptr, nbytes):
    g(f"s_mov_b32 s{S_W}, s{ptr}\ns_mov_b32 s{S_W+1}, s{ptr+1}\ns_mov_b32 s{S_W+2}, {nbytes}\ns_mov_b32 s{S_W+3}, 0x20000")


def dbg_time(g, opt, slot, neg=False):
    if not opt.get("dbgt"): return
    g(f"""
    s_memrealtime s[88:89]
    s_waitcnt lgkmcnt(0)
    {'s_not_b32 s88, s88' if neg else ''}
    v_mov_b32 v90, {4*slot}
    v_mov_b32 v91, s88
    s_mov_b64 exec, 1
    global_atomic_umax v90, v91, s[{P_DBG}:{P_DBG+1}]
    s_mov_b64 exec, -1
    """)


def load_weights(g, hooks, nt, order):
    RA, RO, DQ, DO = 10, 12, 20, 21
    T0, T1, T2, T3 = 56, 57, 58, 59
    g(f"""
    v_and_b32 v{T0}, 63, v0
    v_lshrrev_b32 v{T1}, 4, v{T0}
    v_and_b32 v{T2}, 15, v{T0}
    s_and_b32 s{S_T0}, s{S_WAVE}, 1
    s_lshr_b32 s{S_T1}, s{S_WAVE}, 1
    s_lshl_b32 s{S_T1}, s{S_T1}, 6
    s_add_u32 s{S_T1}, s{S_T1}, s{S_T0}
    s_lshl_b32 s{S_T1}, s{S_T1}, 14
    s_lshl_b32 s{S_T2}, s{S_TK}, 8
    s_add_u32 s{S_T1}, s{S_T1}, s{S_T2}
    s_lshl_b32 s{S_T0}, s{S_T0}, 3
    v_lshlrev_b32 v{T3}, 1, v{T1}
    v_xor_b32 v{T3}, v{T3}, v{T2}
    v_xor_b32 v{DQ}, s{S_T0}, v{T3}
    v_lshlrev_b32 v{DQ}, 4, v{DQ}
    v_lshlrev_b32 v{DO}, 4, v{T3}
    v_lshrrev_b32 v{T2}, 1, v{T1}
    v_and_b32 v{T3}, 1, v{T1}
    v_lshl_add_u32 v{DQ}, v{T2}, 16, v{DQ}
    v_lshl_add_u32 v{DQ}, v{T3}, 17, v{DQ}
    v_add_u32 v{DQ}, s{S_T1}, v{DQ}
    v_lshl_add_u32 v{DO}, v{T2}, 12, v{DO}
    v_lshl_add_u32 v{DO}, v{T3}, 14, v{DO}
    s_lshl_b32 s{S_T1}, s{S_TK}, 17
    s_lshl_b32 s{S_T2}, s{S_WAVE}, 8
    s_add_u32 s{S_T1}, s{S_T1}, s{S_T2}
    v_add_u32 v{DO}, s{S_T1}, v{DO}
    v_xor_b32 v{DO+1}, 0x80, v{DO}
    """)
    g(f"""
    v_bfe_u32 v{T2}, v{T0}, 2, 2
    v_and_b32 v{T3}, 1, v{T1}
    v_lshl_add_u32 v{T3}, v{T3}, 2, v{T2}
    v_lshlrev_b32 v{T3}, 5, v{T3}
    v_lshl_add_u32 v{T3}, v{T2}, 8, v{T3}
    v_and_b32 v{T2}, 3, v{T0}
    v_lshl_add_u32 v{T3}, v{T2}, 3, v{T3}
    s_lshl_b32 s{S_T0}, s{S_WAVE}, 6
    v_xor_b32 v{RA}, s{S_T0}, v{T3}
    s_mov_b32 s{S_T0}, {LDS_WAVE}
    v_mul_lo_u32 v{T2}, s{S_T0}, v{T1}
    v_add_u32 v{RA}, v{RA}, v{T2}
    v_xor_b32 v{RA+1}, 32, v{RA}
    s_mul_i32 s{S_T3}, s{S_WAVE}, {LDS_WAVE}
    v_lshl_add_u32 v{RO}, v{T1}, 10, v{T3}
    v_add_u32 v{RO}, s{S_T3}, v{RO}
    """)
    for tau in range(1, 8):
        g(f"v_xor_b32 v{RO+tau}, {32*tau}, v{RO}")
    stages = [(m, t) for m in order for t in range(8)]
    park = {}
    for i, k in enumerate(G_QK): park[k] = ("v", POOL + 8 * i)
    for i, k in enumerate(G_O): park[k] = ("v", M + 8 * i) if i < 4 else ("v", VX + 8 * (i - 4))
    for k in G_M: park[k] = ("v", ACC + 8 * k[1])

    def issue(i):
        m, t = stages[i]
        if t == 0:
            set_srd(g, {"q": P_WQ, "k": P_WK, "v": P_WV, "o": P_WO}[m], 4 * MB)
        for x in range(4):
            if m == "o":
                row = 64 * (t >> 2) + 32 * ((t >> 1) & 1) + (t & 1) + 8 * (x >> 1) + 2 * (x & 1)
                so, vo = row * 1024, DO + (x & 1)
            else:
                so, vo = (256 * (x >> 1) + (x & 1) + 64 * (t >> 2) + 32 * ((t >> 1) & 1) + 4 * (t & 1)) * 8192, DQ
            g(f"s_add_u32 m0, s{S_T3}, {16384 + (i % 5) * 4096 + x * 1024}")
            g(f"s_mov_b32 s{S_T0}, {so}")
            g(f"buffer_load_dwordx4 v{vo}, s[{S_W}:{S_W+3}], s{S_T0} offen {nt} lds")

    for i in range(4):
        issue(i)
    for i, (m, t) in enumerate(stages):
        g(f"s_waitcnt vmcnt({4 * min(3, len(stages) - 1 - i)}) lgkmcnt(0)\ns_barrier")
        if i in hooks: hooks[i]()
        if i + 4 < len(stages):
            issue(i + 4)
        base = 16384 + (i % 5) * 4096
        for x in range(8):
            if m == "o":
                k, rho, ad, off = ("o", x, t >> 2), t & 3, RO + x, base
            else:
                k, rho, ad, off = (m, x >> 2, t), x & 3, RA + (x >> 2), base + (x & 3) * 1024
            f, b = park.get(k, LOC[k])
            g(f"ds_read_b64_tr_b16 {rng(f, b + 2*rho, 2)}, v{ad} offset:{off}")
        if (m, 0, t) in G_M:
            g("s_waitcnt lgkmcnt(0)")
            for sg in range(2):
                for hh in range(2):
                    g(f"ds_write_b128 v{LW}, {v(ACC+8*sg+4*hh,4)} offset:{LDS_IDX[(m,sg,t)]*2048+hh*1024}")
    g("s_waitcnt lgkmcnt(0)\ns_barrier")
    for k in G_O + G_QK:
        for hh in range(2):
            g(f"ds_write_b128 v{LW}, {v(park[k][1]+4*hh,4)} offset:{LDS_IDX[k]*2048+hh*1024}")
    g("s_waitcnt lgkmcnt(0)")


def setup_early(g, st):
    T0, T1, T2, T3 = 56, 57, 58, 59
    g(f"""
    v_and_b32 v{T0}, 63, v0
    v_lshlrev_b32 v{LM}, 4, v{T0}
    s_mul_i32 s{S_T0}, s{S_WAVE}, {LDS_WAVE}
    v_add_u32 v{LW}, s{S_T0}, v{LM}
    v_add_u32 v{LM}, {LDS_MISC}, v{LM}
    v_lshrrev_b32 v{T1}, 4, v{T0}
    v_and_b32 v{T2}, 15, v{T0}
    s_lshl_b32 s{S_T0}, s{S_WAVE}, 3
    v_lshrrev_b32 v{T3}, 3, v{T0}
    v_add_u32 v{T3}, s{S_T0}, v{T3}
    v_lshlrev_b32 v{H1ST}, 13, v{T3}
    v_lshl_add_u32 v{T3}, v{T3}, 1, s{S_TK}
    v_and_b32 v{T3}, 31, v{T3}
    v_lshl_add_u32 v{H1ST}, v{T3}, 7, v{H1ST}
    v_and_b32 v{T3}, 7, v{T0}
    v_lshl_add_u32 v{H1ST}, v{T3}, 3, v{H1ST}
    v_lshrrev_b32 v{T3}, 3, v{T2}
    v_lshlrev_b32 v{H2ST}, 29, v{T3}
    v_bfe_u32 v{T3}, v{T2}, 1, 1
    v_lshl_add_u32 v{H2ST}, v{T3}, 11, v{H2ST}
    v_bfe_u32 v{T3}, v{T2}, 2, 1
    v_lshl_add_u32 v{H2ST}, v{T3}, 7, v{H2ST}
    v_and_b32 v{T3}, 1, v{T2}
    v_lshl_add_u32 v{H2ST}, v{T3}, 3, v{H2ST}
    v_and_b32 v{T3}, 1, v{T1}
    v_lshl_add_u32 v{H2ST}, v{T3}, 4, v{H2ST}
    v_lshrrev_b32 v{T3}, 1, v{T1}
    v_lshl_add_u32 v{H2ST}, v{T3}, 30, v{H2ST}
    s_and_b32 s{S_T0}, s{S_TK}, 3
    s_lshl_b32 s{S_T0}, s{S_T0}, 5
    s_lshr_b32 s{S_T1}, s{S_TK}, 2
    s_lshl_b32 s{S_T1}, s{S_T1}, 8
    s_add_u32 s{S_T0}, s{S_T0}, s{S_T1}
    s_and_b32 s{S_T2}, s{S_WAVE}, 1
    s_lshl_b32 s{S_T2}, s{S_T2}, 12
    s_add_u32 s{S_T0}, s{S_T0}, s{S_T2}
    v_add_u32 v{H2ST}, s{S_T0}, v{H2ST}
    """)
    g(f"""
    s_mov_b32 s{S_STEP}, 0
    s_lshl_b32 s{S_T0}, s{S_TK}, 13
    s_add_u32 s{S_H1LD}, s{S_T0}, {WS_H1 - LDS_MISC}
    s_mov_b32 s{S_H1ST}, {WS_H1}
    s_mov_b32 s{S_H1ST2}, {WS_H1 + 4096}
    s_mov_b32 s{S_H2LD}, {WS_H2}
    s_mov_b32 s{S_H2LD2}, {WS_H2 + 4096}
    s_lshl_b32 s{S_T0}, s{S_TK}, 14
    s_add_u32 s{S_KV}, s{S_T0}, {WS_KV - LDS_MISC}
    s_lshl_b32 s{S_T0}, s{S_TK}, 2
    s_add_u32 s{S_T0}, s{S_T0}, s{S_WAVE}
    s_lshl_b32 s{S_T0}, s{S_T0}, 10
    s_add_u32 s{S_PUB}, s{S_T0}, {WS_PUB - LDS_MISC - 128*KB}
    s_lshl_b32 s{S_T0}, s{S_TK}, 8
    s_add_u32 s{S_FL}, s{S_T0}, {WS_FLAGS}
    s_mov_b32 s{S_HF}, 0xcccccccc
    s_mov_b32 s{S_HF+1}, 0xcccccccc
    s_mov_b32 s{S_SC}, 0x3e0293ee
    s_mov_b32 s{S_SC-1}, 0x3e0293ee
    v_mov_b64 v[60:61], -1
    v_mov_b64 v[62:63], -1
    s_lshl_b32 s{S_T1}, s{S_WAVE}, 11
    s_add_u32 s{S_T1}, s{S_T1}, s{S_H1LD}
    s_add_u32 s{S_H1LD}, s{S_H1LD}, s{S_T2}
    """)
    for x in range(2):
        g(f"buffer_store_dwordx4 v[60:63], v{LM}, s[{S_WS}:{S_WS+3}], s{S_T1} offen offset:{x*1024} {st}")
    g(f"""
    s_mov_b32 s{S_H2RS}, {WS_H2 + 8192}
    s_lshl_b32 s{S_F12}, s{S_TK}, 7
    s_add_u32 s{S_F12}, s{S_F12}, {WS_PF}
    v_mov_b32 v51, 0
    buffer_store_dword v51, v51, s[{S_WS}:{S_WS+3}], s{S_F12} offen sc1
    """)
    set_srd(g, P_MEM0, 8192)
    g(f"""
    s_lshr_b32 s{S_T0}, s{S_TK}, 3
    s_lshl_b32 s{S_T0}, s{S_T0}, 8
    s_and_b32 s{S_T1}, s{S_TK}, 1
    s_lshl_b32 s{S_T1}, s{S_T1}, 4
    s_add_u32 s{S_T0}, s{S_T0}, s{S_T1}
    s_lshr_b32 s{S_T1}, s{S_T2}, 5
    s_add_u32 s{S_T0}, s{S_T0}, s{S_T1}
    s_and_b32 s{S_T1}, s{S_TK}, 6
    s_lshl_b32 s{S_T1}, s{S_T1}, 10
    s_add_u32 s{S_T0}, s{S_T0}, s{S_T1}
    v_and_b32 v{T3}, 1, v{T1}
    v_lshlrev_b32 v{T3}, 10, v{T3}
    v_and_b32 v52, 3, v{T2}
    v_lshl_add_u32 v{T3}, v52, 2, v{T3}
    v_bfe_u32 v52, v{T2}, 2, 1
    v_lshl_add_u32 v{T3}, v52, 6, v{T3}
    buffer_load_ushort v52, v{T3}, s[{S_W}:{S_W+3}], s{S_T0} offen
    buffer_load_ushort v53, v{T3}, s[{S_W}:{S_W+3}], s{S_T0} offen offset:32
    buffer_load_ushort v54, v{T3}, s[{S_W}:{S_W+3}], s{S_T0} offen offset:2
    buffer_load_ushort v55, v{T3}, s[{S_W}:{S_W+3}], s{S_T0} offen offset:34
    """)


def store_mem0(g, st):
    g(f"""
    s_mov_b32 s{S_T0}, {WS_H2}
    v_lshl_or_b32 v52, v53, 16, v52
    v_lshl_or_b32 v53, v55, 16, v54
    v_cmp_ne_u32 vcc, s{S_SENT}, v52
    s_nop 1
    v_cndmask_b32 v52, -1, v52, vcc
    v_cmp_ne_u32 vcc, s{S_SENT}, v53
    s_nop 1
    v_cndmask_b32 v53, -1, v53, vcc
    buffer_store_dwordx2 v[52:53], v{H2ST}, s[{S_WS}:{S_WS+3}], s{S_T0} offen {st}
    """)


def setup_late(g):
    T0, T1, T2, T3 = 56, 57, 58, 59
    g(f"""
    v_and_b32 v{T0}, 63, v0
    v_lshrrev_b32 v{T1}, 4, v{T0}
    v_and_b32 v{T2}, 15, v{T0}
    v_mov_b32 v{IDX}, 0x44444444
    v_mov_b32 v{T3}, 0x4e1eeeee
    v_cndmask_b32 v{IDX}, v{IDX}, v{T3}, s[{S_HF}:{S_HF+1}]
    s_lshl_b32 s{S_T0}, s{S_WAVE}, 10
    s_add_u32 s{S_T0}, s{S_T0}, {L_QK}
    v_lshrrev_b32 v{T3}, 2, v{T2}
    v_lshlrev_b32 v{QW}, 7, v{T3}
    v_lshl_add_u32 v{QW}, v{T1}, 5, v{QW}
    v_and_b32 v{T3}, 1, v{T3}
    v_lshlrev_b32 v{T3}, 6, v{T3}
    v_xor_b32 v{QW}, v{QW}, v{T3}
    v_and_b32 v{T3}, 3, v{T2}
    v_lshl_add_u32 v{QW}, v{T3}, 2, v{QW}
    v_add_u32 v{QW}, s{S_T0}, v{QW}
    v_lshlrev_b32 v{QR}, 7, v{T1}
    v_add_u32 v{QR}, {L_QK}, v{QR}
    v_and_b32 v{T3}, 1, v{T2}
    v_lshl_add_u32 v{QR}, v{T3}, 4, v{QR}
    v_add_u32 v{KR}, 512, v{QR}
    v_lshrrev_b32 v{T3}, 2, v{T2}
    v_lshl_add_u32 v{QR}, v{T3}, 5, v{QR}
    v_lshrrev_b32 v{T3}, 3, v{T2}
    v_lshl_add_u32 v{KR}, v{T3}, 5, v{KR}
    v_lshrrev_b32 v{T3}, 1, v{T2}
    v_xor_b32 v{T3}, v{T3}, v{T2}
    v_and_b32 v{T3}, 2, v{T3}
    v_lshl_add_u32 v{KR}, v{T3}, 5, v{KR}
    v_and_b32 v{T3}, 1, v{T1}
    v_lshlrev_b32 v{T3}, 6, v{T3}
    v_xor_b32 v{QR}, v{QR}, v{T3}
    v_xor_b32 v{KR}, v{KR}, v{T3}
    s_lshl_b32 s{S_T0}, s{S_WAVE}, 9
    s_add_u32 s{S_T0}, s{S_T0}, {L_O}
    v_lshrrev_b32 v{T3}, 3, v{T2}
    v_lshlrev_b32 v{OW}, 8, v{T3}
    v_lshl_add_u32 v{OW}, v{T1}, 6, v{OW}
    v_bfe_u32 v{T3}, v{T2}, 2, 1
    v_lshl_add_u32 v{OW}, v{T3}, 5, v{OW}
    v_and_b32 v{T3}, 3, v{T2}
    v_lshl_add_u32 v{OW}, v{T3}, 2, v{OW}
    v_add_u32 v{OW}, s{S_T0}, v{OW}
    """)
    g(f"s_mov_b32 s{S_ONE}, 0x3f803f80\ns_mov_b32 s{S_ONE+1}, 0x3f803f80")
    for x in zero(PA, 4) + zero(VX, 16) + zero(ACC, 16): g(x)
    g(f"""
    v_lshrrev_b32 v{T3}, 3, v{T0}
    v_lshlrev_b32 v{GM}, 8, v{T3}
    v_and_b32 v{T3}, 7, v{T0}
    v_lshl_add_u32 v{GM}, v{T3}, 4, v{GM}
    v_min_u32 v{FST}, 1, v{T0}
    v_lshlrev_b32 v{FST}, 30, v{FST}
    """)


def kv_addr(w):
    return [f"s_add_u32 s{S_KV2}, s{S_KV}, 4096", f"s_add_u32 s{S_VV}, s{S_KV}, {8192 + w*2048}"]


def k_load(w, hi):
    return [f"s_mov_b32 m0, {L_KX + hi*4096}",
            f"buffer_load_dwordx4 v{LM}, s[{S_WS}:{S_WS+3}], s{S_KV2 if hi else S_KV} offen offset:{w*1024} lds ;@kv"]


def v_loads():
    return [f"buffer_load_dwordx4 {v(VN+4*sg,4)}, v{LM}, s[{S_WS}:{S_WS+3}], s{S_VV} offen offset:{sg*1024} ;@kv" for sg in range(2)]


def mzero(base, n):
    op = {4: "4x4x1_16b", 16: "16x16x1_4b"}[n]
    return f"v_mfma_f32_{op}_f32 {v(base,n)}, v{PA+3}, v{PA+3}, 0"


def v_moves(src_):
    return [f"v_mov_b64 {v(VX+4*i,2)}, {v(src_+2*i,2)}" for i in range(4)]


def wait_flag(g, tag, seg_sgpr):
    g(f"""
    L_{tag}:
    buffer_load_dword v{FLG}, v{TCH}, s[{S_WS}:{S_WS+3}], s{S_FL} offen sc1
    s_add_u32 s{S_SPIN}, s{S_SPIN}, 1
    s_cmp_gt_u32 s{S_SPIN}, {SPIN_MAX}
    s_cbranch_scc1 L_{tag}_out
    s_waitcnt vmcnt(0)
    v_cmp_eq_u32 s[{S_RDY}:{S_RDY+1}], 1, v{FLG}
    s_nop 4
    s_bitcmp1_b64 s[{S_RDY}:{S_RDY+1}], s{seg_sgpr}
    s_cbranch_scc0 L_{tag}
    L_{tag}_out:
    s_waitcnt vmcnt(0)
    """)


def wave_loop(g, w, st, tag, opt):
    stamps = opt.get("stamps")
    WSD = f"s[{S_WS}:{S_WS+3}]"
    nst = [0]

    def stamp():
        if not stamps: return []
        i = nst[0]; nst[0] += 1
        if isinstance(stamps, list) and i not in stamps: return []
        if opt.get("rt") and w + 1 != opt["rt"]: return []
        return [f"s_mem{'real' if opt.get('rt') and not opt.get('cyc') else ''}time s[{74+2*i}:{75+2*i}]"]

    L = lambda x: f"L_{tag}{w}_{x}"
    T0 = 56
    KR_, OW_, SEL = (FAD, FST, KR) if w >= 2 else (KR, OW, None)
    kxr = [f"ds_read_b128 {v(POOL+4*c,4)}, v{LM} offset:{c*1024}" for c in range(8)]
    if w == 0:
        g(f"v_lshlrev_b32 v{TCH}, 2, v0")
        wait_flag(g, f"{tag}{w}_f0", S_STEP)
        g(f"s_mov_b32 s{S_T2}, 1")
        wait_flag(g, f"{tag}{w}_f2", S_T2)
    if w >= 2:
        g(f"""
        v_and_b32 v{T0}, 15, v0
        v_and_b32 v{T0+1}, 1, v0
        v_mov_b32 v{KR_}, v{KR}
        v_mov_b32 v{OW_}, v{OW}
        v_lshlrev_b32 v{T0+1}, 4, v{T0+1}
        v_mov_b32 v{T0+2}, 0x3f80
        v_lshlrev_b32 v{T0+1}, v{T0+1}, v{T0+2}
        v_lshrrev_b32 v{T0}, 1, v{T0}
        """)
        for i in range(4):
            g(f"v_cmp_eq_u32 vcc, {(0, 2, 1, 3)[i]}, v{T0}\ns_nop 1\nv_cndmask_b32 v{SEL+i}, 0, v{T0+1}, vcc")
    for x in zero(ACC + 16, 8): g(x)
    g("s_barrier")
    k0, k1 = k_load(w, 0), k_load(w, 1)
    nxt = [f"s_add_u32 s{S_KV}, s{S_KV}, {512*KB}"] + kv_addr(w)
    for x in [k0[0]] + kv_addr(w) + [k0[1], k1[0]] + v_loads() + [k1[1], "s_waitcnt vmcnt(0)"] + v_moves(VN) + ["s_barrier"] + kxr + nxt + ["s_waitcnt lgkmcnt(0)"]:
        g(x.split(";@")[0])
    if w == 0: dbg_time(g, opt, 4)
    if opt.get("count"):
        g("s_memtime s[92:93]\ns_memrealtime s[94:95]\ns_waitcnt lgkmcnt(0)\ns_mov_b32 s15, s94")
    body = []
    E = body.extend
    nops = lambda k: [f"s_nop {x}" for x in opt.get(k, [])]
    red = w >= 2
    MB_ = lambda t: L_O + (t - 4) * 1024
    mo = lambda t: (t & 1) * 2048 + ((t >> 1) & 1) * 128
    mld = lambda t: f"buffer_load_dwordx4 {v(M+4*t,4)}, v{GM}, {WSD}, s{S_H2LD if t < 4 else S_H2LD2} offen offset:{mo(t)} sc1"
    dma = f"buffer_load_dwordx4 v{GM}, {WSD}, s{S_H2LD2} offen offset:{mo(w)} sc1 lds ;@dma"
    SP, CK = M + 16 + 4 * w, PA + 2
    smp = mld(4 + w) + " ;@smp"
    R = A[5]
    pace = [f"s_nop {opt.get('pace', 10)}"]
    cl = [mld(t) + f" ;@c{t}" for t in range(4)]
    gather = [cl[0]] + pace + [cl[1]] + pace + [cl[2]] + pace + [cl[3]]
    nt = opt.get("nt", "")
    vl = v_loads()
    kvl = [x.replace(" lds ;@", f" {nt} lds ;@") if " lds" in x else x.replace(" ;@", f" {nt} ;@") for x in [k0[0], vl[0], k0[1], k1[0], vl[1], k1[1]]]
    cv = lambda d, q: f"v_cvt_pk_bf16_f32 v{d}, v{q}, v{q+1}"
    h1l = lambda HB: [f"buffer_load_dwordx4 {v(HB+4*t,4)}, v{LM}, {WSD}, s{S_H1LD} offen offset:{t*1024} sc1" for t in range(4)]
    two = opt.get("two", [1, 1])[w & 1]

    def reduce(HB, name):
        out = [f"{L(name)}:"]
        for t in range(4):
            out += [f"s_waitcnt vmcnt({3 - t + 4*two})", mf(R, SEL or 0, HB + 4*t, None if t == 0 else R)]
            out += [f"v_xor_b32 v{PA}, s{S_TAG}, v{HB}" if t == 0 else f"v_bitop3_b32 v{PA}, v{PA}, v{HB+4*t}, s{S_TAG} bitop3:0xf6",
                    f"v_bitop3_b32 v{PA}, v{PA}, v{HB+4*t+2}, s{S_TAG} bitop3:0xf6"]
        return out + ([f"v_and_b32 v{PA}, 1, v{PA}", f"v_cmp_eq_u32 vcc, 1, v{PA}", "s_nop 2"] +
                      [f"v_add_f32_dpp v{HB+r}, v{R+r}, v{R+r} row_ror:8 row_mask:0xf bank_mask:0xf" for r in range(4)] +
                      [cv(HB + 4, HB), cv(HB + 5, HB + 2), f"s_cbranch_vccnz {L(name + 'no')}", f"{L(name + 'ok')}:",
                       f"buffer_store_dwordx2 {v(HB+4,2)}, v{H2ST}, {WSD}, s{S_H2ST} offen {st}"])
    clean = [f"v_mov_b64 {v(PA,2)}, s[{S_SENT}:{S_SENT+1}]", mzero(R, 4)]
    h2rs = f"buffer_store_dwordx2 {v(PA,2)}, v{H2ST}, {WSD}, s{S_H2RS} offen {st} ;@h2rs"
    E([f"{L('top')}:", "s_barrier"] + (stamp() if opt.get("rt") else []) + [f"{L('again')}:"])
    gather = [cl[0], f"s_mov_b32 m0, {MB_(4 + w) - mo(w)}"] + gather[1:] + (nops("p5") + [dma] if opt.get("dtop") else [])
    if red:
        i = gather.index(pace[0])
        E(gather[:i] + clean + [f"s_nop {max(opt.get('pace', 10) - 3, 0)}"] + gather[i+1:])
    else:
        E(gather)
    pubv = f"buffer_store_dwordx4 {v(VN+4,4)}, v{LM}, {WSD}, s{S_PUB} offen sc1"
    dump = []
    DT = M + 18
    if stamps:
        dump.extend(["s_waitcnt lgkmcnt(0)"] + [f"v_writelane_b32 v{DT}, s{74+2*i}, {i}" for i in range(9)])
        dump.extend([f"v_subrev_u32 v{DT+1}, {LDS_MISC}, v{LM}", f"v_lshrrev_b32 v{DT+1}, 2, v{DT+1}",
           f"s_lshl_b32 s{S_T0}, s{S_TK}, 2", f"s_add_u32 s{S_T0}, s{S_T0}, {w}", f"s_lshl_b32 s{S_T0}, s{S_T0}, 6", f"s_add_u32 s{S_T0}, s{S_T0}, s{S_STEP}",
           f"s_lshl_b32 s{S_T0}, s{S_T0}, 6", f"s_add_u32 s{S_T0}, s{S_T0}, {WS_STAMP}", "s_mov_b64 exec, 0xffff",
           f"buffer_store_dword v{DT}, v{DT+1}, {WSD}, s{S_T0} offen", "s_mov_b64 exec, -1"])
    if red and opt.get('rt', w + 1) == w + 1: E(dump)
    top_part = list(body)
    c0stamp = stamp()
    order = [(m, sg, t) for t in range(4) for m in "qkv" for sg in range(2)]
    order += [(m, sg, t) for m in "qkv" for t in range(4, 8) for sg in range(2)]
    acc = lambda k: A["qkv".index(k[0]) * 2 + k[1]]
    mm = [smf(acc(k), M + 4 * k[2], k) for k in order]
    rs = [tagged(stage_reads(x), f"r{i}") for i, x in enumerate(G_R)]
    mr = [f"ds_read_b128 {v(M+4*t,4)}, v{LM} offset:{MB_(t) - LDS_MISC} ;@m{t}" for t in range(4, 8)]
    add = lambda q, b: f"v_add_f32 v{q+b}, v{q+b}, v{q+2+b}"
    qr = [f"ds_read_b128 {v(M+4*x,4)}, v{QR} offset:{1024*x} ;@qr{x}" for x in range(4)]
    kr = [f"ds_read_b128 {v(M+16+4*x,4)}, v{KR_} offset:{1024*x} ;@kr{x}" for x in range(4)]
    ost = stage_reads(G_O)
    qfin = [add(A[0], 0), add(A[0], 1), add(A[1], 0), add(A[1], 1),
            f"v_cvt_pk_bf16_f32 v{A[0]+2}, v{A[0]}, v{A[1]}", f"v_cvt_pk_bf16_f32 v{A[0]+3}, v{A[0]+1}, v{A[1]+1}",
            f"ds_write_b32 v{QW}, v{A[0]+2} ;@qw", f"ds_write_b32 v{QW}, v{A[0]+3} offset:16 ;@qw"]
    kfin = [add(A[2], 0), add(A[2], 1), add(A[3], 0), add(A[3], 1),
            f"v_cvt_pk_bf16_f32 v{A[3]}, v{A[2]}, v{A[3]}", f"v_cvt_pk_bf16_f32 v{A[3]+1}, v{A[2]+1}, v{A[3]+1}",
            f"ds_write_b32 v{QW}, v{A[3]} offset:512 ;@kw", f"ds_write_b32 v{QW}, v{A[3]+1} offset:528 ;@kw"]
    b0stamp = stamp()

    b0 = opt.get("b0", 19)

    def common():
        F = Gaps()
        if red: F.put("x", 4 + w, h2rs)
        seq = [pubv, kvl[2], kvl[1], kvl[5], kvl[4]] + ([f"buffer_load_dword v{FLG}, v{TCH}, {WSD}, s{S_FL} offen sc1 ;@kv"] if w == 0 else [])
        if w == 1: F.put("x", 17, f"buffer_store_dword v{FV}, v{FST}, {WSD}, s{S_F12} offen sc1")
        kgs = opt.get("kgs", [[15, 20, 24, 28, 34, 35], [16, 21, 25, 28, 35], [17, 22, 26, 29, 36], [18, 23, 27, 31, 36]])[w]
        for j, x in enumerate(seq): F.put("x" if kgs[j] < 32 else "d", kgs[j], x)
        F.put("s", 16, kvl[0]); F.put("s", 26, kvl[3])
        F.put("s", 28, f"s_add_u32 s{S_PUB}, s{S_PUB}, {128*KB}")
        F.put("s", b0, "@wait vm=dma", "s_barrier", *b0stamp)
        mg, r3g = {18: ((19, 20, 22, 24), (21, 23, 25, 26)), 19: ((20, 21, 23, 25), (22, 24, 26, 27)), 20: ((21, 22, 24, 25), (23, 23, 26, 27))}[b0]
        for j, i in enumerate(mg): F.put("d", i, mr[j])
        for i, t in ((23, 4), (25, 5), (27, 6), (29, 7)): F.put("s", i, f"@wait lg=m{t}")
        for r_, gs, u in ((3, r3g, 30), (4, (30, 31, 32, 33), 37), (5, (38, 39, 40, 42), 46)):
            for j in range(4): F.put("d", gs[j], rs[r_][j])
            F.put("s", u, f"@wait lg=r{r_}")
        for j, i in enumerate((32, 32, 33, 34, 35, 36)): F.put("v", i, qfin[j])
        for j, i in enumerate((40, 42, 43, 43, 44, 45)): F.put("v", i, kfin[j])
        F.put("d", 36, qfin[6]); F.put("d", 37, qfin[7])
        F.put("v", 37, f"v_cmp_u_f32 vcc, v{A[0]}, v{A[0]+1}")
        F.put("s", 40, f"s_cbranch_vccnz {L('nan')}", f"{L('nanok')}:")
        F.put("s", 41, "@wait lg=qw" + (" vm=h2rs" if red else ""), "s_barrier")
        F.put("s", 45, "@wait lg=r5x")
        for j, i in enumerate((43, 44, 47)): F.put("d", i, qr[j])
        F.put("d", 45, kfin[6]); F.put("d", 46, kfin[7])
        F.put("s", 47, "@wait lg=qr0")
        return F
    rs[5][1] += "x"

    pair = lambda m, t: [(m, 0, t), (m, 1, t)]
    HEAD = {0: ("q0 k0 v0 q1 k1 v1 q2 k2 v2 q3 k3 v3", ((1, (2, 3, 4, 5)), (2, (10, 11, 12, 13)))),
            1: ("q1 k1 v1 q2 k2 v2 k3 q3 v3 k0 q0 v0", ((2, (4, 5, 6, 7)), (0, (12, 13, 14, 15)))),
            2: ("q2 k2 v2 k3 q3 v3 k0 q0 v0 q1 v1 k1", ((0, (6, 7, 8, 9)), (1, (14, 15, 16, 17)))),
            3: ("q3 k3 v3 k0 v0 q0 q1 k1 v1 q2 k2 v2", ((0, (2, 3, 4, 5)), (1, (10, 11, 12, 13))))}
    cg = opt.get("cg", 12)

    def head(r, n=24):
        od = sum([pair(x[0], int(x[1])) for x in HEAD[r][0].split()], []) + order[24:]
        F = common()
        F.put("s", 1, f"s_cbranch_vccnz {L(f'no{r}')}", f"{L(f'go{r}')}:")
        if r or not opt.get("dtop"): F.put("x", opt.get("dg", 1), dma)
        seen = {r}
        c_ = cg if r == 0 else 15
        for i, k in enumerate(od[:24]):
            wt = []
            if k[2] not in seen:
                seen.add(k[2])
                if i <= c_: wt.append(f"vm=c{k[2]}")
            for r_ in range(3):
                if k == G_R[r_][0] and i: wt.append(f"lg=r{r_}")
            if wt: F.put("s", i - 1 - (1 if i - 1 == b0 else 0), "@wait " + " ".join(wt))
        F.put("s", c_, f"@wait vm=c{(r+3)&3}")
        F.put("v", c_, f"v_max3_u32 v{CK}, v{M+4*((r+1)&3)}, v{M+4*((r+2)&3)}, v{M+4*((r+3)&3)}")
        F.put("v", c_ + 1, f"v_cmp_eq_u32 vcc, s{S_SENT}, v{CK}")
        F.t.setdefault(c_ + 3, {"s": [], "d": [], "v": [], "x": []})["s"][:0] = [f"s_cbranch_vccnz {L(f'late{r}')}", f"{L(f'lok{r}')}:"]
        if r:
            for i in range(15, c_ + 3):
                if i in F.t: F.put("x", c_ + 3, *F.t[i]["x"]); F.t[i]["x"] = []
        for r_, gs in HEAD[r][1]:
            for j in range(4): F.put("d", gs[j], rs[r_][j])
        return ([f"{L(f'c{r}')}:", f"@wait vm=c{r}" + (" lg=0" if r == 0 else "")] + (c0stamp if r == 0 else []) +
                [f"v_cmp_eq_u32 vcc, s{S_SENT}, v{M+4*r}"] + F.emit([smf(acc(k), M + 4 * k[2], k) for k in od[:n]]))
    full = head(0, 48)
    i = full.index(mm[24])
    E(full[:i] + [f"{L('j20')}:"] + full[i:])
    E(stamp())
    S0, S1, SM = A[0], A[1], A[2]
    sx = []
    for x in range(4):
        sx += [mf(S0, POOL + 4*x, M + 4*x, None if x == 0 else S0), mf(S1, POOL + 16 + 4*x, M + 4*x, None if x == 0 else S1)]
    sm = [mf(SM, M + 16 + 4*x, M + 4*x, None if x == 0 else SM) for x in range(4)]
    cv = lambda d, q: f"v_cvt_pk_bf16_f32 v{d}, v{q}, v{q+1}"
    cnd = lambda d, x, y: f"v_cndmask_b32 v{d}, v{x}, v{y}, s[{S_HF}:{S_HF+1}]"
    pub = f"buffer_store_dwordx4 {v(A[3],4)}, v{LM}, {WSD}, s{S_PUB} offen sc1"
    MX, MY = S1, S1 + 1
    z = zero(A[4], 8)
    E([sx[0], f"s_cmp_eq_u32 s{S_STEP}, {NSEG-1}", qr[3],
       sx[1], "@wait lg=qr1", add(A[4], 0), add(A[4], 1),
       sx[2], "@wait lg=kw", "s_barrier",
       sx[3], "@wait lg=qr2", kr[0], add(A[5], 0),
       sx[4], kr[1], add(A[5], 1),
       sx[5], "@wait lg=qr3", kr[2], cv(VX + 2, A[4]),
       sx[6], kr[3], cv(VX + 10, A[5]),
       sx[7], "@wait lg=kr0", cv(A[3] + 2, A[4]), cv(A[3] + 3, A[5]),
       sm[0], "@wait lg=kr2", f"v_permlane16_swap_b32 v{VX+2}, v{VX+6}",
       sm[1], f"s_cbranch_scc1 {L('done')}", cnd(S0, S0, S1), cnd(S0 + 1, S0 + 1, S1 + 1),
       sm[2], "@wait lg=kr3", cnd(S0 + 2, S0 + 2, S1 + 2), cnd(S0 + 3, S0 + 3, S1 + 3),
       sm[3], f"v_max3_f32 v{MX}, v{S0}, v{S0+1}, v{S0+2}", f"v_max_f32 v{MX}, v{MX}, v{S0+3}",
       f"v_permlane16_swap_b32 v{VX+10}, v{VX+14}",
       f"v_max_f32_dpp v{MX}, v{MX}, v{MX} quad_perm:[2,3,0,1] row_mask:0xf bank_mask:0xf",
       f"v_mov_b32 v{MY}, v{MX}",
       f"v_mov_b64 {v(POOL,2)}, s[{S_ONE}:{S_ONE+1}]",
       f"v_max3_f32 v{S1+2}, v{SM}, v{SM+1}, v{SM+2}",
       f"v_permlane16_swap_b32 v{MX}, v{MY}",
       f"v_max3_f32 v{MX}, v{MX}, v{MY}, v{SM+3}",
       f"v_max_f32 v{MY}, v{MX}, v{S1+2}",
       f"v_max_f32 v{MX}, v{MX}, v{S1+2}",
       cnd(SM, SM, SM + 1), f"v_mov_b64 {v(POOL+2,2)}, s[{S_ONE}:{S_ONE+1}]",
       f"v_permlane32_swap_b32 v{MX}, v{MY}",
       f"v_max_f32 v{MX}, v{MX}, v{MY}",
       f"v_mul_f32 v{MX}, s{S_SC}, v{MX}"])
    for r in (S0, S0 + 2):
        E([f"v_pk_fma_f32 {v(r,2)}, {v(r,2)}, s[{S_SC-1}:{S_SC}], {v(MX,2)} op_sel_hi:[1,1,0] neg_lo:[0,0,1] neg_hi:[0,0,1]"])
    E([f"v_fma_f32 v{SM}, v{SM}, s{S_SC}, -v{MX}"])
    E([f"v_exp_f32 v{S0}, v{S0}", f"v_exp_f32 v{S0+1}, v{S0+1}", f"v_exp_f32 v{S0+2}, v{S0+2}", cv(PA, S0),
       f"v_exp_f32 v{S0+3}, v{S0+3}", f"v_exp_f32 v{SM}, v{SM}", cv(PA + 2, S0 + 2),
       f"v_cvt_pk_bf16_f32 v{PA+1}, v{SM}, v{PA+3}"])
    E(stamp())
    LQ = A[1]
    ring = [f"s_and_b32 s{S_TAG}, s{S_STEP}, 1", f"s_add_u32 s{S_STEP}, s{S_STEP}, 1",
            f"s_lshl_b32 s{S_T0}, s{S_TAG}, 13", f"s_sub_u32 s{S_H2LD}, {WS_H2 + 8192}, s{S_T0}",
            f"s_add_u32 s{S_H2LD2}, s{S_H2LD}, 4096"]
    ring2 = list(nxt)
    if red:
        ring += [f"s_add_u32 s{S_H2RS}, s{S_T0}, {WS_H2}", f"s_xor_b32 s{S_H2ST}, s{S_H2RS}, 8192"]
    E([z[0], z[1],
       mf(LQ, PA, POOL, None), z[2], z[3],
       smf(A[4], PA, v(VX, 8), 1), ost[8],
       smf(A[5], PA, v(VX + 8, 8), 1), ost[9], add(LQ, 0),
       add(LQ, 1), f"v_rcp_f32 v{LQ}, v{LQ}", f"v_rcp_f32 v{LQ+1}, v{LQ+1}",
       f"v_pk_add_f32 {v(A[4],2)}, {v(A[4],2)}, {v(A[4]+2,2)}",
       f"v_pk_mul_f32 {v(A[4],2)}, {v(A[4],2)}, {v(LQ,2)}",
       f"v_pk_add_f32 {v(A[5],2)}, {v(A[5],2)}, {v(A[5]+2,2)}",
       f"v_pk_mul_f32 {v(A[5],2)}, {v(A[5],2)}, {v(LQ,2)}",
       f"v_cvt_pk_bf16_f32 v{A[4]+2}, v{A[4]}, v{A[5]}", f"v_cvt_pk_bf16_f32 v{A[4]+3}, v{A[4]+1}, v{A[5]+1}",
       mzero(M + 16, 4),
       f"ds_write2_b32 v{OW_}, v{A[4]+2}, v{A[4]+3} offset0:0 offset1:4", mzero(M, 16)] + ring +
      ["s_waitcnt lgkmcnt(0)", "s_barrier",
       f"ds_read_b128 {v(A[0],4)}, v{LM} offset:{L_O - LDS_MISC} ;@o0", mzero(M + 20, 4),
       f"ds_read_b128 {v(A[1],4)}, v{LM} offset:{L_O - LDS_MISC + 1024} ;@o1", mzero(M + 24, 4)] + [mzero(M + 28, 4)])
    E(stamp())
    oo = [(0, 0), (1, 0), (0, 1), (1, 1)] + [(tau, tp) for tau in range(2, 8) for tp in range(2)]
    om = [smf(M + 4*tau, A[tp], ("o", tau, tp)) for tau, tp in oo]
    D0, D1 = A[2], A[4]
    pk = lambda d, ta, b: f"v_cvt_pk_bf16_f32 v{d}, v{M+4*ta+b}, v{M+4*ta+4+b}"
    ad = lambda ta: [add(M + 4*ta, 0), add(M + 4*ta, 1)]
    G = Gaps()
    G.put("s", 1, "@wait lg=o1")
    for j, x in enumerate(tagged(ost[10:], "o5") + tagged(ost[:4], "o6") + tagged(ost[4:8], "o7")): G.put("d", j, x)
    G.put("s", 9, "@wait lg=o5"); G.put("s", 11, "@wait lg=o6"); G.put("s", 13, "@wait lg=o7")
    tg = lambda d: f"v_bfi_b32 v{d}, 1, s{S_TAG}, v{d}"
    for q in range(4):
        D = (D0, D0 + 2, D1, D1 + 2)[q]
        e, o_ = ad(2 * q), ad(2 * q + 1)
        stq = f"buffer_store_dwordx2 {v(D,2)}, v{H1ST}, {WSD}, s{S_H1ST2 if q >> 1 else S_H1ST} offen offset:{64 * (q & 1)} {st}"
        rest = [o_[0], o_[1], pk(D, 2 * q, 0), pk(D + 1, 2 * q, 1), tg(D)]
        if q == 0:
            G.put("v", 4, *e)
        elif q < 3:
            G.put("v", 4 * q + 3, e[0]); G.put("v", 4 * q + 4, e[1])
        if q < 3:
            n1 = opt.get("wo1", 2)
            G.put("v", 4 * q + 5, *rest[:n1]); G.put("v", 4 * q + 6, *rest[n1:])
            G.put("s", 4 * q + 7, stq)
        else:
            G.put("v", 15, *(e + ["s_nop 3"] + rest + [stq]))
    E(["@wait lg=o0"] + G.emit(om))
    E(stamp())
    house = ring2 + rs[0] + [mzero(A[i], 4) for i in (0, 1, 2)]
    mv = v_moves(VN) + [f"v_mov_b64 {v(VN+4,2)}, {v(A[3],2)}", f"v_mov_b64 {v(VN+6,2)}, {v(A[3]+2,2)}", mzero(A[3], 4), mzero(A[4], 4)]
    after = kxr + mv
    E(house[:3] + ["@wait vm=kv", "s_barrier"])
    if red:
        shots = h1l(M + 16) + (nops("d4") + h1l(M) if two else [])
        if w == 2:
            E(nops("d1") + stamp() + shots + house[3:] + after + ["s_waitcnt lgkmcnt(0)"] + reduce(M + 16, "ra") + [f"{L('rdone')}:"] + stamp() + nops("d2"))
        else:
            E(house[3:] + after + nops("d3") + stamp() + shots + ["s_waitcnt lgkmcnt(0)"] + reduce(M + 16, "ra") + [f"{L('rdone')}:"] + stamp())
    else:
        E(stamp() + house[3:] + after + stamp() + (dump if opt.get('rt', w + 1) == w + 1 else []))
    if w < 2:
        E([mzero(A[5], 4)])
    if w == 1:
        E([f"v_mov_b32 v{FV}, s{S_STEP}"])
    if w == 0:
        E([f"v_cmp_eq_u32 s[{S_RDY}:{S_RDY+1}], 1, v{FLG}", f"s_add_u32 s{S_T2}, s{S_STEP}, 1", "s_nop 3",
           f"s_bitcmp1_b64 s[{S_RDY}:{S_RDY+1}], s{S_T2}", f"s_cbranch_scc0 {L('flag')}", f"{L('flagok')}:"])
    E(([] if red else ["s_waitcnt lgkmcnt(0)"]) + [f"s_branch {L('top')}"])
    if opt.get("free"):
        body = [x for x in body if not (x.startswith("s_cbranch_vccnz") or x.startswith("v_cmpx"))]
        body = [x.replace("s_cbranch_scc0 " + L('top'), "s_branch " + L('top')) for x in body]
    if True:
        for pat in opt.get("drop", []):
            keep = lambda x: ("s_nop 0" if opt.get("keepslot") else None)
            tags = [x.split(";@")[1] for x in body if pat in x and ";@" in x]
            body = [x for x in body if pat not in x or x.endswith(":")]
            live = {x.split(";@")[1] for x in body if ";@" in x}
            nb = []
            for x in body:
                if x.startswith("@wait"):
                    t = [k for k in x.split()[1:] if k.split("=")[1] in live or k.split("=")[1] == "0"]
                    if t: nb.append("@wait " + " ".join(t))
                else: nb.append(x)
            body = nb
    body = resolve_waits(body)
    if opt.get("seg"):
        pos = [i for i, x in enumerate(body) if x.startswith(("v_mfma_f32_16x16x32", "v_smfmac"))]
        i0, i1 = opt["seg"]
        labels = [x for x in body if x.endswith(":")]
        cut = [x for x in body[pos[i0]:pos[i1]] if not x.endswith(":") and f"s{S_STEP}" not in x and "branch" not in x]
        body = labels + cut[:1] + [f"s_add_u32 s{S_STEP}, s{S_STEP}, 1", f"s_cmp_eq_u32 s{S_STEP}, 64", f"s_cbranch_scc1 {L('done')}"] + cut[1:] + [f"s_branch {L('top')}"]
    if opt.get("sw"):
        pos = [i for i, x in enumerate(body) if x.startswith(("v_mfma", "v_smfmac"))]
        for k, o_ in reversed(list(enumerate(opt["sw"]))):
            if o_ < len(pos): body.insert(pos[o_] + 1, f"s_memtime s[{74+2*k}:{75+2*k}]")
    if opt.get("align", 1):
        body, left = align_body(body)
        if opt.get("verbose"): print("wave", w, "remaining straddles", left)
        g(".p2align 5")
    for x in body: g(x)
    bad = hazard.check(body + body[:40], f"chain w{w}") if not (opt.get("drop") or opt.get("seg")) else []
    m1 = g.mark()
    strip = lambda lst: [x.split(";@")[0] for x in lst]
    cnt = lambda out: f"s_add_u32 s{S_SPIN}, s{S_SPIN}, 1\ns_cmp_gt_u32 s{S_SPIN}, {SPIN_MAX}\ns_cbranch_scc1 {out}"
    dbg = lambda k: (f"s_add_u32 s{96+k}, s{96+k}, 1" if opt.get("count") else "")
    anysent = [f"v_mov_b32 v{PA}, 0"] + [f"v_max3_u32 v{PA}, v{PA}, v{M+2*i}, v{M+2*i+1}" for i in range(16)] + [f"v_cmp_eq_u32 vcc, s{S_SENT}, v{PA}"]
    if red:
        g(f"{L('rano')}:\n{dbg(2)}\n{cnt(L('raok'))}")
        for x in h1l(M + 16): g(x)
        if two:
            for x in reduce(M, "rb") + [f"s_branch {L('rdone')}", f"{L('rbno')}:", dbg(3)] + h1l(M): g(x)
        g(f"s_branch {L('ra')}")
    for r in range(4):
        g(f"{L(f'late{r}')}:\n{cnt(L(f'lok{r}'))}\ns_branch {L('restart')}")
    g(f"{L('restart')}:\n{dbg(1)}\ns_waitcnt lgkmcnt(0)")
    for x in strip(rs[0]) + [mzero(A[i], 4) for i in range(6)] + [f"s_branch {L('again')}"]: g(x)
    path = rs[0] + top_part
    for r in range(4):
        part = ([f"{L(f'no{r}')}:"] + ([dbg(0)] if opt.get("count") else []) + (cnt(L("go3")).split("\n") if r == 3 else []) + [cl[r], dma if r == 3 and opt.get("dtop") else "s_nop 0"] +
                {0: rs[1], 1: rs[2], 2: ["s_nop 3"], 3: rs[0]}[r] + [mzero(A[0], 4), mzero(A[1], 4), "s_nop 0"])
        hd = head(r + 1) + [f"s_branch {L('j20')}"] if r < 3 else [f"s_branch {L('c0')}"]
        res = resolve_waits(path + part + hd, loop=False)[len(path):]
        path = path + part
        bad += hazard.check(mm[:2] + ["s_branch x"] + res + (mm[24:28] if r < 3 else mm[:2]), f"chain head {r} w{w}")
        res, _ = align_body(res)
        g(".p2align 5")
        for x in res: g(x)
    m1 = g.mark()
    g(f"{L('nan')}:\n" + ("s_add_u32 s97, s97, 0x10000" if opt.get("count") else ""))
    for x in anysent: g(x)
    g(f"s_cbranch_vccz {L('nanok')}\n{L('nanl')}:")
    for x in [mld(t) for t in range(8)] + ["s_waitcnt vmcnt(0)"] + anysent: g(x)
    g(f"s_cbranch_vccz {L('nanr')}\n{cnt(L('nanr'))}\ns_branch {L('nanl')}\n{L('nanr')}:\ns_waitcnt lgkmcnt(0)")
    for x in zero(ACC, 24): g(x)
    for i in range(41):
        for r_ in range(5):
            if order[i] == G_R[r_][0]:
                for x in strip(rs[r_]) + ["s_waitcnt lgkmcnt(0)"]: g(x)
        g(mm[i])
    for x in strip(rs[5][:2] + qfin) + ["s_waitcnt lgkmcnt(0)", f"s_branch {L('nanok')}"]: g(x)
    bad += hazard.check(g.lines[m1:], f"chain rare w{w}")
    if w == 0:
        g(f"{L('flag')}:")
        wait_flag(g, f"{tag}{w}_f1", S_T2)
        g(f"s_branch {L('flagok')}")
    g(f"{L('done')}:\n{pub}")
    if w == 0: dbg_time(g, opt, 5)
    if opt.get("count"):
        g(f"""
        s_memtime s[94:95]
        s_memrealtime s[74:75]
        s_waitcnt lgkmcnt(0)
        
        s_sub_u32 s94, s94, s92
        v_mov_b32 v40, s96
        v_mov_b32 v41, s97
        v_mov_b32 v42, s98
        v_mov_b32 v43, s94
        s_lshl_b32 s{S_T0}, s{S_TK}, 2
        s_add_u32 s{S_T0}, s{S_T0}, {w}
        s_lshl_b32 s{S_T0}, s{S_T0}, 12
        s_add_u32 s{S_T0}, s{S_T0}, {WS_STAMP}
        v_mov_b32 v44, 0
        v_mov_b32 v46, s99
        v_mov_b32 v47, s14
        v_mov_b32 v48, s15
        v_mov_b32 v49, s74
        buffer_store_dwordx4 v[40:43], v44, {WSD}, s{S_T0} offen
        buffer_store_dwordx4 v[46:49], v44, {WSD}, s{S_T0} offen offset:16
        """)
    g("s_waitcnt vmcnt(0)\ns_endpgm")
    return bad


def chain_role(g, st, tag, opt):
    m0 = g.mark()
    if opt.get("count"):
        g("s_mov_b32 s96, 0\ns_mov_b32 s97, 0\ns_mov_b32 s98, 0\ns_mov_b32 s99, 0")
    g(f"s_cmp_lg_u32 s{S_WAVE}, 0\ns_cbranch_scc1 L_dt" if opt.get("dbgt") else "")
    if opt.get("dbgt"):
        g(f"s_not_b32 s88, s14\nv_mov_b32 v90, 12\nv_mov_b32 v91, s88\ns_mov_b64 exec, 1\nglobal_atomic_umax v90, v91, s[{P_DBG}:{P_DBG+1}]\ns_mov_b64 exec, -1\nL_dt:")
    setup_early(g, st)
    arrive = lambda: g(f"""
    s_cmp_lg_u32 s{S_WAVE}, 0
    s_cbranch_scc1 L_{tag}_arrived
    v_mov_b32 v56, {DBG_TEAM}
    v_mov_b32 v57, 1
    s_mov_b64 exec, 1
    global_atomic_add v56, v57, s[{P_DBG}:{P_DBG+1}]
    s_mov_b64 exec, -1
    L_{tag}_arrived:
    """)
    load_weights(g, {0: lambda: store_mem0(g, st), 5: arrive}, opt.get("wnt", ""), opt.get("word", "oqkv"))
    setup_late(g)
    g(f"""
    v_mov_b32 v56, {DBG_TEAM}
    L_{tag}_team:
    global_load_dword v57, v56, s[{P_DBG}:{P_DBG+1}] sc1
    s_add_u32 s{S_SPIN}, s{S_SPIN}, 1
    s_cmp_gt_u32 s{S_SPIN}, {SPIN_MAX}
    s_cbranch_scc1 L_{tag}_teamok
    s_waitcnt vmcnt(0)
    v_cmp_gt_u32 vcc, 32, v57
    s_cbranch_vccnz L_{tag}_team
    L_{tag}_teamok:
    s_waitcnt vmcnt(0)
    """)
    if not opt.get("chainonly"):
        g(f"""
        v_mov_b32 v56, {DBG_INIT}
        L_{tag}_init:
        global_load_dword v57, v56, s[{P_DBG}:{P_DBG+1}] sc1
        s_add_u32 s{S_SPIN}, s{S_SPIN}, 1
        s_cmp_gt_u32 s{S_SPIN}, {SPIN_MAX}
        s_cbranch_scc1 L_{tag}_initok
        s_waitcnt vmcnt(0)
        v_cmp_gt_u32 vcc, 224, v57
        s_cbranch_vccnz L_{tag}_init
        L_{tag}_initok:
        s_waitcnt vmcnt(0)
        """)
    bad = hazard.check(g.lines[m0:], "chain prologue")
    for w in range(1, 4):
        g(f"s_cmp_eq_u32 s{S_WAVE}, {w}\ns_cbranch_scc1 L_{tag}_w{w}")
    for w in range(4):
        g(f"L_{tag}_w{w}:")
        bad += wave_loop(g, w, st, tag, opt)
    return bad
```

```python
from asmlib import *
from layout import *
from chain import (S_WS, S_W, P_X, P_WQ, P_WK, P_WV, P_WO, P_WG, P_WU, P_WD, P_OUT, P_DBG, S_XCC, S_TK, S_WAVE,
                   S_T0, S_T1, S_T2, S_T3, SPIN_MAX, set_srd, S_SPIN, S_SENT, dbg_time)

WSD = f"s[{S_WS}:{S_WS+3}]"
WD = f"s[{S_W}:{S_W+3}]"
S_WI, S_COL, S_SEG, S_HD, S_FREE, S_XO, S_O1, S_O2, S_FA, S_PREV, S_LB, S_C0, S_C1, S_C2 = range(51, 65)
S_OUT = 68
S_MK = 72
RING = 65536
NROWG = 5


def rg(f, b, n):
    return a(b, n) if f == "a" else v(b, n)


def mf32(d, x, y, first):
    return f"v_mfma_f32_32x32x16_bf16 {v(d,16)}, {x}, {y}, " + ("0" if first else v(d, 16))


def mf16(d, x, y, first):
    return f"v_mfma_f32_16x16x32_bf16 {v(d,4)}, {x}, {y}, " + ("0" if first else v(d, 4))


def spin_counter(g, tag, off, target):
    g(f"""
    v_mov_b32 v10, {off}
    L_{tag}:
    global_load_dword v11, v10, s[{P_DBG}:{P_DBG+1}] sc1
    s_add_u32 s{S_SPIN}, s{S_SPIN}, 1
    s_cmp_gt_u32 s{S_SPIN}, {SPIN_MAX}
    s_cbranch_scc1 L_{tag}_out
    s_waitcnt vmcnt(0)
    v_cmp_gt_u32 vcc, {target}, v11
    s_cbranch_vccz L_{tag}_out
    s_sleep 2
    s_branch L_{tag}
    L_{tag}_out:
    s_waitcnt vmcnt(0)
    """)


def spin_flags(g, tag, vaddr, soff, sleep=1):
    g(f"""
    L_{tag}:
    buffer_load_dword v11, v{vaddr}, {WSD}, s{soff} offen sc1
    s_add_u32 s{S_SPIN}, s{S_SPIN}, 1
    s_cmp_gt_u32 s{S_SPIN}, {SPIN_MAX}
    s_cbranch_scc1 L_{tag}_out
    s_waitcnt vmcnt(0)
    v_cmp_ne_u32 vcc, 1, v11
    s_cbranch_vccz L_{tag}_out
    {f's_sleep {sleep}' if sleep else ''}
    s_branch L_{tag}
    L_{tag}_out:
    s_waitcnt vmcnt(0)
    """)


def count_up(g, tag, off):
    g(f"""
    s_waitcnt vmcnt(0)
    s_barrier
    s_cmp_lg_u32 s{S_WAVE}, 0
    s_cbranch_scc1 L_{tag}
    v_mov_b32 v10, {off}
    v_mov_b32 v11, 1
    s_mov_b64 exec, 1
    global_atomic_add v10, v11, s[{P_DBG}:{P_DBG+1}]
    s_mov_b64 exec, -1
    L_{tag}:
    """)


def set_flag(g, tag, soff, st="sc1"):
    g(f"""
    s_cmp_lg_u32 s{S_WAVE}, 0
    s_cbranch_scc1 L_{tag}
    v_mov_b32 v10, 0
    v_mov_b32 v11, 1
    s_mov_b64 exec, 1
    buffer_store_dword v11, v10, {WSD}, s{soff} offen {st}
    s_mov_b64 exec, -1
    L_{tag}:
    """)


def wstamp(g, opt, i, dump=False):
    if not opt.get("count"): return
    g(f"s_waitcnt vmcnt(0)" if dump else "")
    g(f"s_memrealtime s[88:89]\ns_waitcnt lgkmcnt(0)\ns_mov_b32 s{90+i}, s88")
    if dump:
        for k in range(5): g(f"v_mov_b32 v{21+k}, s{90+k}")
        g(f"""
        v_mov_b32 v20, s14
        s_lshl_b32 s{S_T0}, s{S_WI}, 5
        s_add_u32 s{S_T0}, s{S_T0}, {WS_STAMP - 8192}
        v_mov_b32 v10, 0
        buffer_store_dwordx4 v[20:23], v10, {WSD}, s{S_T0} offen
        buffer_store_dwordx2 v[24:25], v10, {WSD}, s{S_T0} offen offset:16
        """)


def pstamp(g, opt, i):
    if not opt.get("pst"): return
    g(f"""
    s_memrealtime s[88:89]
    s_lshl_b32 s96, s{S_XCC}, 5
    s_add_u32 s96, s96, s{S_TK}
    s_sub_u32 s96, s96, 32
    s_lshl_b32 s96, s96, 6
    s_add_u32 s96, s96, s{S_SEG}
    s_lshl_b32 s96, s96, 6
    s_add_u32 s96, s96, {96*MB + 4*i}
    s_waitcnt lgkmcnt(0)
    v_mov_b32 v18, s88
    v_mov_b32 v19, 0
    s_mov_b64 exec, 1
    buffer_store_dword v18, v19, {WSD}, s96 offen
    s_mov_b64 exec, -1
    s_waitcnt vmcnt(0)
    """)


def worker_init(g):
    g(f"""
    s_sub_u32 s{S_T0}, s{S_XCC}, 1
    s_min_u32 s{S_T1}, s{S_T0}, 4
    s_mul_i32 s{S_T1}, s{S_T1}, 5
    s_mul_i32 s{S_T2}, s{S_T0}, 20
    s_add_u32 s{S_T2}, s{S_T2}, s{S_T1}
    s_cmp_lt_u32 s{S_T0}, 4
    s_cselect_b32 s{S_T3}, 25, 20
    s_add_u32 s{S_WI}, s{S_T2}, s{S_TK}
    s_cmp_lt_u32 s{S_TK}, s{S_T3}
    s_cbranch_scc1 L_wi
    s_sub_u32 s{S_T1}, s{S_TK}, s{S_T3}
    s_sub_u32 s{S_T3}, 30, s{S_T3}
    s_mul_i32 s{S_WI}, s{S_T0}, 30
    s_sub_u32 s{S_WI}, s{S_WI}, s{S_T2}
    s_add_u32 s{S_WI}, s{S_WI}, s{S_T1}
    s_add_u32 s{S_WI}, s{S_WI}, 160
    s_cmp_lt_u32 s{S_T1}, s{S_T3}
    s_cbranch_scc1 L_wi
    s_lshl_b32 s{S_WI}, s{S_T0}, 1
    s_add_u32 s{S_WI}, s{S_WI}, s{S_TK}
    s_add_u32 s{S_WI}, s{S_WI}, {210 - 30}
    L_wi:
    """)


def worker_fill(g):
    g(f"""
    s_sub_u32 s{S_T0}, s{S_XCC}, 1
    v_mov_b64 v[12:13], s[{S_SENT}:{S_SENT+1}]
    v_mov_b64 v[14:15], s[{S_SENT}:{S_SENT+1}]
    v_lshlrev_b32 v10, 4, v0
    s_cmp_eq_u32 s{S_T0}, 0
    s_cselect_b32 s{S_T1}, 63, 64
    s_cmp_eq_u32 s{S_T0}, 6
    s_cselect_b32 s{S_T1}, 62, s{S_T1}
    s_lshl_b32 s{S_T1}, s{S_T1}, 17
    s_lshl_b32 s{S_T2}, s{S_TK}, 12
    s_add_u32 s{S_T1}, s{S_T1}, s{S_T2}
    s_add_u32 s{S_T1}, s{S_T1}, {WS_PUB}
    buffer_store_dwordx4 v[12:15], v10, {WSD}, s{S_T1} offen sc1
    """)
    g(f"""
    v_mov_b32 v11, 0
    v_mul_u32_u24 v10, 7, v0
    v_add_u32 v10, s{S_T0}, v10
    v_cmp_gt_u32 vcc, 64, v10
    v_lshlrev_b32 v10, 7, v10
    s_lshl_b32 s{S_T1}, s{S_TK}, 2
    s_add_u32 s{S_T1}, s{S_T1}, {WS_OF}
    v_mov_b32 v12, 0x40000000
    v_cndmask_b32 v10, v12, v10, vcc
    buffer_store_dword v11, v10, {WSD}, s{S_T1} offen sc1
    """)


def clear_flags(g, shift):
    g(f"""
    v_mov_b32 v11, 0
    v_mul_u32_u24 v10, {NROWG}, v0
    v_add_u32 v10, s{S_SEG}, v10
    v_cmp_gt_u32 vcc, 64, v10
    v_lshlrev_b32 v10, {shift}, v10
    v_mov_b32 v12, 0x40000000
    v_cndmask_b32 v10, v12, v10, vcc
    buffer_store_dword v11, v10, {WSD}, s{S_FA} offen sc1
    """)


def layernorm(g, seg):
    X, T = 16, 80
    set_srd(g, P_X, 2 * MB)
    g(f"""
    v_lshrrev_b32 v1, 3, v0
    v_and_b32 v2, 7, v0
    v_lshlrev_b32 v3, 10, v1
    v_lshl_add_u32 v3, v2, 4, v3
    s_lshl_b32 s{S_T0}, s{seg}, 15
    """)
    for j in range(8):
        g(f"buffer_load_dwordx4 {v(T+4*j,4)}, v3, {WD}, s{S_T0} offen offset:{128*j}")
    g(f"""
    v_lshrrev_b32 v4, 1, v2
    v_lshlrev_b32 v4, 10, v4
    v_and_b32 v5, 1, v2
    v_lshl_add_u32 v4, v5, 9, v4
    v_lshl_add_u32 v4, v1, 4, v4
    s_add_u32 s{S_T0}, s{S_T0}, {WS_XN}
    s_mov_b32 s{S_T1}, 0xffff0000
    s_waitcnt vmcnt(0)
    """)
    for i in range(32):
        g(f"v_lshlrev_b32 v{X+2*i}, 16, v{T+i}\nv_and_b32 v{X+2*i+1}, s{S_T1}, v{T+i}")

    def reduce8(r):
        for m in ("quad_perm:[1,0,3,2]", "quad_perm:[2,3,0,1]", "row_half_mirror"):
            g(f"s_nop 1\nv_add_f32_dpp v{r}, v{r}, v{r} {m} row_mask:0xf bank_mask:0xf")

    g(f"v_pk_add_f32 v[6:7], {v(X,2)}, {v(X+2,2)}")
    for i in range(2, 32):
        g(f"v_pk_add_f32 v[6:7], v[6:7], {v(X+2*i,2)}")
    g("v_add_f32 v6, v6, v7")
    reduce8(6)
    g(f"v_mul_f32 v6, 0x3b000000, v6\nv_mov_b32 v8, 0\nv_mov_b32 v9, 0")
    for i in range(64):
        g(f"v_sub_f32 v7, v{X+i}, v6\nv_fmac_f32 v{8+(i&1)}, v7, v7")
    g("v_add_f32 v8, v8, v9")
    reduce8(8)
    g(f"""
    v_mul_f32 v8, 0x3b000000, v8
    v_cvt_pk_bf16_f32 v6, v6, v8
    v_and_b32 v8, s{S_T1}, v6
    v_lshlrev_b32 v6, 16, v6
    v_add_f32 v8, 0x3727c5ac, v8
    v_cvt_pk_bf16_f32 v8, v8, v8
    v_and_b32 v8, s{S_T1}, v8
    v_sqrt_f32 v8, v8
    s_nop 0
    v_cvt_pk_bf16_f32 v8, v8, v8
    v_and_b32 v8, s{S_T1}, v8
    v_rcp_f32 v8, v8
    """)
    for i in range(32):
        p = X + 2 * i
        g(f"""
        v_sub_f32 v{p}, v{p}, v6
        v_sub_f32 v{p+1}, v{p+1}, v6
        v_cvt_pk_bf16_f32 v{p}, v{p}, v{p+1}
        v_and_b32 v{p+1}, s{S_T1}, v{p}
        v_lshlrev_b32 v{p}, 16, v{p}
        v_mul_f32 v{p}, v{p}, v8
        v_mul_f32 v{p+1}, v{p+1}, v8
        v_cvt_pk_bf16_f32 v{T+i}, v{p}, v{p+1}
        """)
        if i % 4 == 3:
            g(f"buffer_store_dwordx4 {v(T+i-3,4)}, v4, {WSD}, s{S_T0} offen sc1\ns_add_u32 s{S_T0}, s{S_T0}, 4096")


def load_w32(g, mats, stride, touch, hook=None):
    DM, RT, RN = 1, 2, 3
    g(f"""
    v_and_b32 v4, 63, v0
    v_lshrrev_b32 v5, 4, v4
    v_and_b32 v6, 15, v4
    v_lshlrev_b32 v7, 2, v5
    v_xor_b32 v6, v6, v7
    v_lshlrev_b32 v{DM}, 4, v6
    s_lshl_b32 s{S_T0}, s{S_WAVE}, 4
    v_add_u32 v6, s{S_T0}, v5
    v_mul_u32_u24 v6, {stride}, v6
    v_add3_u32 v{DM}, v{DM}, v6, s{S_COL}
    v_bfe_u32 v6, v4, 2, 2
    v_xor_b32 v7, s{S_WAVE}, v6
    v_lshlrev_b32 v7, 6, v7
    v_lshl_add_u32 v7, v6, 8, v7
    v_lshrrev_b32 v6, 5, v4
    v_lshl_add_u32 v7, v6, 11, v7
    v_add_u32 v7, {RING}, v7
    v_and_b32 v5, 1, v5
    v_and_b32 v6, 3, v4
    v_lshl_add_u32 v{RN}, v5, 5, v7
    v_lshl_add_u32 v{RN}, v6, 3, v{RN}
    v_lshl_add_u32 v{RT}, v5, 4, v7
    v_and_b32 v6, 1, v4
    v_lshl_add_u32 v{RT}, v6, 3, v{RT}
    v_bfe_u32 v6, v4, 1, 1
    v_lshl_add_u32 v{RT}, v6, 5, v{RT}
    s_lshl_b32 s{S_T3}, s{S_WAVE}, 12
    s_add_u32 s{S_T3}, s{S_T3}, {RING}
    """)
    if touch is not None:
        g(f"""
        s_mul_i32 s{S_T1}, s{S_SEG}, 104
        s_mul_i32 s{S_T2}, s{S_WAVE}, 26
        s_add_u32 s{S_T1}, s{S_T1}, s{S_T2}
        v_lshrrev_b32 v5, 1, v4
        v_min_u32 v5, 25, v5
        v_add_u32 v5, s{S_T1}, v5
        v_mul_u32_u24 v5, {stride}, v5
        v_and_b32 v6, 1, v4
        v_lshl_add_u32 v5, v6, 7, v5
        """)
        for m in mats:
            set_srd(g, m[0], m[1])
            g(f"buffer_load_dword v127, v5, {WD}, s{S_COL} offen {touch}")
    stages = [(m, S) for m in mats for S in range(8)]

    def issue(i):
        m, S = stages[i]
        if S == 0: set_srd(g, m[0], m[1])
        for x in range(4):
            g(f"s_add_u32 m0, s{S_T3}, {(i % 4) * 16384 + x * 1024}\ns_mov_b32 s{S_T0}, {(64 * S + 4 * x) * stride}")
            g(f"buffer_load_dwordx4 v{DM}, {WD}, s{S_T0} offen lds")

    for i in range(3): issue(i)
    for i, (m, S) in enumerate(stages):
        extra = 3 if hook and i + 4 > len(stages) else 0
        g(f"s_waitcnt vmcnt({4 * min(2, len(stages) - 1 - i) + extra}) lgkmcnt(0)\ns_barrier")
        if i + 3 < len(stages): issue(i + 3)
        if hook and i + 4 == len(stages): hook()
        for ks in range(4):
            for x in range(2):
                g(f"ds_read_b64_tr_b16 {rg(m[2], m[3] + 4*(4*S+ks) + 2*x, 2)}, v{RT if m[4] else RN} offset:{(i % 4)*16384 + ks*4096 + x*1024}")
    g("s_waitcnt lgkmcnt(0)")


def xn_dma(plus):
    out = [[f"s_add_u32 s{S_T2}, s{S_SEG}, {plus}", f"s_lshl_b32 s{S_T2}, s{S_T2}, 15", f"s_add_u32 s{S_T2}, s{S_T2}, s{S_XO}"]]
    for hh in range(2):
        out[-1] += [f"s_add_u32 m0, s{S_LB}, {hh*4096}", f"s_add_u32 s{S_T1}, s{S_T2}, {hh*4096}"]
        for x in range(4):
            out[-1] += [f"buffer_load_dwordx4 v1, {WSD}, s{S_T1} offen offset:{x*1024} sc1 lds"]
            out.append([])
    out[-1] += [f"s_xor_b32 s{S_LB}, s{S_LB}, 32768"]
    return out


def gemm_loop(g, tag, mats, stores, epilogue, fshift):
    XF, ACC = 16, 32
    nst = len(stores)
    g(f"""
    v_and_b32 v4, 63, v0
    v_lshlrev_b32 v1, 4, v4
    v_mov_b32 v2, v1
    s_lshl_b32 s{S_LB}, s{S_WAVE}, 13
    s_add_u32 s{S_XO}, s{S_LB}, {WS_XN}
    s_mov_b32 s{S_PREV}, -1
    s_mov_b32 s{S_O1}, 0x40000000
    s_mov_b32 s{S_O2}, 0x40000000
    """)
    spin_counter(g, f"{tag}_ln", DBG_LN, 64)
    for x in sum(xn_dma(0), []): g(x)
    g(f"L_{tag}_seg:")
    m0 = g.mark()
    g("s_waitcnt vmcnt(0)\ns_barrier")
    rd = lambda ks: f"ds_read_b128 {v(XF+4*(ks%4),4)}, v2 offset:{ks*1024}"
    for ks in range(3): g(rd(ks))
    side = [[x] for x in stores] + xn_dma(NROWG)
    for ks in range(32):
        g(f"s_waitcnt lgkmcnt({min(2, 31-ks)})")
        for j, m in enumerate(mats):
            w_, x_ = rg(m[2], m[3] + 4*ks, 4), v(XF + 4*(ks % 4), 4)
            g(mf32(ACC + 16*j, w_, x_, ks == 0) if m[4] else mf32(ACC + 16*j, x_, w_, ks == 0))
            if j == 0 and ks + 3 < 32: g(rd(ks + 3))
            if j == 1 and side:
                for x in side.pop(0): g(x)
        if ks == 27:
            g(f"s_cmp_lt_i32 s{S_PREV}, 0\ns_cbranch_scc1 L_{tag}_nf\ns_waitcnt vmcnt(8)\ns_barrier")
            set_flag(g, f"{tag}_nf", S_PREV)
    g("v_xor_b32 v2, 0x8000, v2\ns_nop 7\ns_nop 1")
    epilogue(ACC)
    g(f"""
    s_lshl_b32 s{S_PREV}, s{S_SEG}, {fshift}
    s_add_u32 s{S_PREV}, s{S_PREV}, s{S_FA}
    s_add_u32 s{S_SEG}, s{S_SEG}, {NROWG}
    s_cmp_lt_u32 s{S_SEG}, {NSEG}
    s_cbranch_scc1 L_{tag}_seg
    """)
    bad = hazard.check(g.lines[m0:] + g.lines[m0:m0 + 40], tag)
    for x in stores: g(x)
    g("s_waitcnt vmcnt(0)\ns_barrier")
    set_flag(g, f"{tag}_lf", S_PREV)
    return bad


def tile_addr(g, dst, tshift):
    g(f"""
    v_bfe_u32 v5, v0, 4, 1
    v_mul_u32_u24 v{dst}, {tshift}, v5
    v_bfe_u32 v5, v0, 5, 1
    v_lshl_add_u32 v{dst}, v5, 8, v{dst}
    v_and_b32 v5, 15, v0
    v_lshl_add_u32 v{dst}, v5, 4, v{dst}
    s_lshl_b32 s{S_T0}, s{S_WAVE}, 10
    v_add_u32 v{dst}, s{S_T0}, v{dst}
    """)


def qkv_role(g, opt):
    mats = [(P_WK, 4*MB, "a", 0, 1), (P_WV, 4*MB, "a", 128, 0), (P_WQ, 4*MB, "v", 128, 1)]
    m0 = g.mark()
    g(f"""
    s_mul_i32 s{S_HD}, s{S_WI}, 52429
    s_lshr_b32 s{S_HD}, s{S_HD}, 18
    s_mul_i32 s{S_T0}, s{S_HD}, {NROWG}
    s_sub_u32 s{S_SEG}, s{S_WI}, s{S_T0}
    s_lshl_b32 s{S_COL}, s{S_HD}, 8
    s_add_u32 s{S_FA}, s{S_COL}, {WS_FLAGS}
    """)
    wstamp(g, opt, 0)
    load_w32(g, mats, 8192, opt.get("touch", ""), lambda: (worker_fill(g), clear_flags(g, 2)))
    count_up(g, "qkv_in", DBG_INIT)
    wstamp(g, opt, 1)
    tile_addr(g, 8, 4096)
    g(f"""
    v_bfe_u32 v5, v0, 4, 1
    v_lshlrev_b32 v9, 10, v5
    v_bfe_u32 v5, v0, 5, 1
    v_lshl_add_u32 v9, v5, 9, v9
    v_and_b32 v5, 15, v0
    v_lshl_add_u32 v9, v5, 4, v9
    s_lshl_b32 s{S_T0}, s{S_WAVE}, 11
    s_add_u32 s{S_T0}, s{S_T0}, 8192
    v_add_u32 v9, s{S_T0}, v9
    """)
    bad = hazard.check(g.lines[m0:], "qkv prologue")

    def epi(ACC):
        P = 80
        g(f"""
        s_lshl_b32 s{S_O1}, s{S_SEG}, 5
        s_add_u32 s{S_O1}, s{S_O1}, s{S_HD}
        s_lshl_b32 s{S_O2}, s{S_O1}, 13
        s_add_u32 s{S_O2}, s{S_O2}, {WS_Q}
        s_lshl_b32 s{S_O1}, s{S_O1}, 14
        s_add_u32 s{S_O1}, s{S_O1}, {WS_KV}
        """)
        for rho in range(2):
            for x in range(4): g(f"v_cvt_pk_bf16_f32 v{P+4*rho+x}, v{ACC+8*rho+x}, v{ACC+8*rho+4+x}")
        for be in range(2):
            for ri in range(4):
                r = ACC + 16 + 8*(ri & 1) + 4*(ri >> 1) + 2*be
                g(f"v_cvt_pk_bf16_f32 v{P+8+4*be+ri}, v{r}, v{r+1}")
        for rho in range(2):
            for x in range(4): g(f"v_cvt_pk_bf16_f32 v{P+16+4*rho+x}, v{ACC+32+8*rho+x}, v{ACC+32+8*rho+4+x}")

    stores = ([f"buffer_store_dwordx4 {v(80+4*x,4)}, v8, {WSD}, s{S_O1} offen offset:{512*x} sc1" for x in range(2)] +
              [f"buffer_store_dwordx4 {v(88+4*x,4)}, v9, {WSD}, s{S_O1} offen offset:{256*x} sc1" for x in range(2)] +
              [f"buffer_store_dwordx4 {v(96+4*x,4)}, v8, {WSD}, s{S_O2} offen offset:{512*x} sc1" for x in range(2)])
    return bad + gemm_loop(g, "qkv", mats, stores, epi, 2)


def ffn_role(g, opt):
    mats = [(P_WG, 512*2752, "a", 0, 1), (P_WU, 512*2752, "a", 128, 1)]
    m0 = g.mark()
    g(f"""
    s_sub_u32 s{S_O1}, s{S_WI}, 160
    s_mul_i32 s{S_HD}, s{S_O1}, 52429
    s_lshr_b32 s{S_HD}, s{S_HD}, 18
    s_mul_i32 s{S_T0}, s{S_HD}, {NROWG}
    s_sub_u32 s{S_SEG}, s{S_O1}, s{S_T0}
    s_lshl_b32 s{S_COL}, s{S_HD}, 8
    s_lshl_b32 s{S_FA}, s{S_HD}, 2
    s_add_u32 s{S_FA}, s{S_FA}, {WS_HF}
    """)
    layernorm(g, S_O1)
    count_up(g, "ffn_lnup", DBG_LN)
    wstamp(g, opt, 0)
    worker_fill(g)
    clear_flags(g, 6)
    count_up(g, "ffn_in", DBG_INIT)
    g(f"s_cmp_ge_u32 s{S_HD}, 11\ns_cbranch_scc1 L_p3")
    load_w32(g, mats, 2752, opt.get("touch", ""))
    wstamp(g, opt, 1)
    tile_addr(g, 8, HM_SEG // 2)
    g(f"s_mov_b32 s{S_C0}, 0xffff0000\ns_mov_b32 s{S_C1}, 0xbdd2d3e8\ns_mov_b32 s{S_C2}, 0xc0135761")
    bad = hazard.check(g.lines[m0:], "ffn prologue")

    def epi(ACC):
        P, T = 80, 96
        U = ACC + 16
        g(f"""
        s_mul_i32 s{S_O1}, s{S_SEG}, {HM_SEG}
        s_lshl_b32 s{S_T0}, s{S_HD}, 12
        s_add_u32 s{S_O1}, s{S_O1}, s{S_T0}
        s_add_u32 s{S_O1}, s{S_O1}, {WS_HMID}
        v_mov_b32 v{T+16}, s{S_C2}
        """)

        def rnd(x, y):
            g(f"v_cvt_pk_bf16_f32 v{x}, v{x}, v{y}\nv_and_b32 v{y}, s{S_C0}, v{x}\nv_lshlrev_b32 v{x}, 16, v{x}")
        for rho in range(2):
            idx = [8*rho + i for i in range(8)]
            for x in range(4):
                rnd(ACC + 8*rho + x, ACC + 8*rho + 4 + x); rnd(U + 8*rho + x, U + 8*rho + 4 + x)
            for i in idx: g(f"v_mul_f32 v{T+i}, v{ACC+i}, v{ACC+i}")
            for i in idx: g(f"v_fma_f32 v{T+i}, v{T+i}, s{S_C1}, v{T+16}")
            for i in idx: g(f"v_mul_f32 v{T+i}, v{T+i}, v{ACC+i}")
            for i in idx: g(f"v_exp_f32 v{T+i}, v{T+i}")
            for i in idx: g(f"v_add_f32 v{T+i}, 1.0, v{T+i}")
            for i in idx: g(f"v_rcp_f32 v{T+i}, v{T+i}")
            for i in idx: g(f"v_mul_f32 v{ACC+i}, v{ACC+i}, v{T+i}")
            for x in range(4): rnd(ACC + 8*rho + x, ACC + 8*rho + 4 + x)
            for i in idx: g(f"v_mul_f32 v{ACC+i}, v{ACC+i}, v{U+i}")
            for x in range(4): g(f"v_cvt_pk_bf16_f32 v{P+4*rho+x}, v{ACC+8*rho+x}, v{ACC+8*rho+4+x}")

    stores = [f"buffer_store_dwordx4 {v(80+4*x,4)}, v8, {WSD}, s{S_O1} offen offset:{512*x} sc1" for x in range(2)]
    return bad + gemm_loop(g, "ffn", mats, stores, epi, 6)


def p3_role(g, opt):
    LN16, KPA, RWA, RRA, XA, KMW, KMR, VMW, VMR, HFA, OFA = 1, 2, 3, 4, 5, 6, 7, 8, 9, 12, 13
    GV, XV = 14, 16
    ACC, SC, PB, OA, KM, VM = 20, 28, 44, 52, 68, 84
    ST = 92
    WDR = 168
    L_RED, L_KM, L_VM = 0, 8192, 12288
    S_TH, S_SCL, S_QO, S_KO, S_PO, S_HO = S_HD, S_C1, S_O1, S_O2, S_FA, S_PREV
    st = opt.get("st", "")
    S_OB = S_LB
    m0 = g.mark()
    DM, RA = 1, 2
    g(f"""
    s_lshr_b32 s{S_TH}, s{S_TK}, 4
    s_and_b32 s{S_COL}, s{S_TK}, 15
    s_lshl_b32 s{S_COL}, s{S_COL}, 6
    v_and_b32 v4, 63, v0
    v_lshrrev_b32 v5, 4, v4
    v_bfe_u32 v6, v4, 2, 2
    v_and_b32 v7, 1, v6
    v_lshlrev_b32 v{DM}, 4, v7
    v_lshl_add_u32 v{DM}, v5, 2, v{DM}
    v_lshrrev_b32 v7, 1, v6
    v_add_u32 v{DM}, v{DM}, v7
    v_lshlrev_b32 v{DM}, 10, v{DM}
    v_and_b32 v7, 1, v5
    v_lshlrev_b32 v7, 1, v7
    v_and_b32 v8, 3, v4
    v_xor_b32 v8, v8, v7
    v_lshl_add_u32 v{DM}, v8, 4, v{DM}
    v_add_u32 v{DM}, s{S_COL}, v{DM}
    v_lshrrev_b32 v8, 2, v4
    v_lshlrev_b32 v{RA}, 6, v8
    v_lshl_add_u32 v{RA}, v7, 4, v{RA}
    v_and_b32 v8, 3, v4
    v_lshl_add_u32 v{RA}, v8, 3, v{RA}
    s_lshl_b32 s{S_T3}, s{S_WAVE}, 15
    v_add_u32 v{RA}, s{S_T3}, v{RA}
    v_xor_b32 v{RA+1}, 32, v{RA}
    s_lshl_b32 s{S_T1}, s{S_WAVE}, 20
    s_mul_i32 s{S_T2}, s{S_WAVE}, {11*32768}
    """)
    steps = [("o", k) for k in range(32)] + [("d", k) for k in range(11)]
    AH = 12

    def issue(i):
        m, k = steps[i]
        if k == 0: set_srd(g, P_WO if m == "o" else P_WD, 4*MB if m == "o" else 1376*1024)
        for x in range(2):
            g(f"s_add_u32 m0, s{S_T3}, {(i % 16)*2048 + x*1024}\ns_add_u32 s{S_T0}, s{S_T1 if m == 'o' else S_T2}, {k*32768 + x*2048}")
            g(f"buffer_load_dwordx4 v{DM}, {WD}, s{S_T0} offen lds")

    wreg = lambda m, k, t, o=0, n=4: a(8*k + 4*t + o, n) if m == "o" else v(WDR + 8*k + 4*t + o, n)
    for i in range(AH): issue(i)
    for i, (m, k) in enumerate(steps):
        g(f"s_waitcnt vmcnt({2*min(AH - 1, len(steps) - 1 - i)}) lgkmcnt(8)")
        if i + AH < len(steps): issue(i + AH)
        for t in range(2):
            for x in range(2):
                g(f"ds_read_b64_tr_b16 {wreg(m, k, t, 2*x, 2)}, v{RA+t} offset:{(i % 16)*2048 + x*1024}")
    g("s_waitcnt lgkmcnt(0)\ns_barrier")
    g(f"""
    v_and_b32 v20, 63, v0
    v_lshrrev_b32 v21, 4, v20
    v_and_b32 v22, 15, v20
    v_lshlrev_b32 v{LN16}, 4, v20
    v_bfe_u32 v23, v22, 1, 1
    v_lshlrev_b32 v{KPA}, 3, v23
    v_lshrrev_b32 v23, 2, v22
    v_lshl_add_u32 v{KPA}, v23, 1, v{KPA}
    v_and_b32 v24, 1, v22
    v_add_u32 v{KPA}, v{KPA}, v24
    v_lshl_add_u32 v{KPA}, v21, 4, v{KPA}
    v_lshlrev_b32 v{KPA}, 4, v{KPA}
    v_lshl_add_u32 v{KMR}, v23, 1, v24
    v_lshlrev_b32 v{KMR}, 4, v{KMR}
    v_mul_u32_u24 v24, 144, v21
    v_add_u32 v{KMR}, v{KMR}, v24
    v_add_u32 v{KMR}, {L_KM}, v{KMR}
    v_mul_u32_u24 v{KMW}, 144, v23
    v_lshl_add_u32 v{KMW}, v21, 5, v{KMW}
    v_and_b32 v24, 3, v22
    v_lshl_add_u32 v{KMW}, v24, 2, v{KMW}
    s_mul_i32 s{S_T0}, s{S_WAVE}, 576
    s_add_u32 s{S_T0}, s{S_T0}, {L_KM}
    v_add_u32 v{KMW}, s{S_T0}, v{KMW}
    v_lshlrev_b32 v{VMW}, 3, v0
    v_add_u32 v{VMW}, {L_VM}, v{VMW}
    s_lshr_b32 s{S_T0}, s{S_WAVE}, 1
    s_lshl_b32 s{S_T0}, s{S_T0}, 10
    s_add_u32 s{S_T0}, s{S_T0}, {L_VM}
    v_lshlrev_b32 v{VMR}, 3, v20
    v_add_u32 v{VMR}, s{S_T0}, v{VMR}
    s_lshl_b32 s{S_T0}, s{S_WAVE}, 11
    v_lshlrev_b32 v{RWA}, 7, v22
    v_lshl_add_u32 v{RWA}, v21, 4, v{RWA}
    v_add_u32 v{RWA}, s{S_T0}, v{RWA}
    v_lshlrev_b32 v{RRA}, 3, v0
    v_lshrrev_b32 v24, 4, v0
    v_lshlrev_b32 v{XA}, 10, v24
    v_lshl_add_u32 v{XA}, v22, 2, v{XA}
    s_lshl_b32 s{S_T0}, s{S_TH}, 14
    s_add_u32 s{S_T0}, s{S_T0}, s{S_COL}
    v_add_u32 v{XA}, s{S_T0}, v{XA}
    v_min_u32 v{HFA}, 10, v20
    v_lshlrev_b32 v{HFA}, 2, v{HFA}
    v_and_b32 v{OFA}, 7, v20
    s_lshl_b32 s{S_T0}, s{S_WAVE}, 3
    v_add_u32 v{OFA}, s{S_T0}, v{OFA}
    v_lshlrev_b32 v{OFA}, 2, v{OFA}
    s_and_b32 s{S_T0}, s{S_WAVE}, 1
    s_lshl_b32 s{S_T0}, s{S_T0}, 4
    v_add_u32 v22, s{S_T0}, v22
    v_lshlrev_b32 v21, 1, v21
    v_sub_u32 v22, v22, v21
    """)
    for T in range(2):
        for r in range(4):
            g(f"v_cmp_le_i32 s[{S_MK+2*(4*T+r)}:{S_MK+2*(4*T+r)+1}], {16*T + 8*(r >> 1) + (r & 1)}, v22")
    g(f"""
    s_mov_b32 s{S_OUT}, s{P_OUT}
    s_mov_b32 s{S_OUT+1}, s{P_OUT+1}
    s_mov_b32 s{S_OUT+2}, {2*MB}
    s_mov_b32 s{S_OUT+3}, 0x20000
    s_mov_b32 s{S_SCL}, 0x3e0293ee
    s_mov_b32 s{S_C0}, 0xffff0000
    s_mov_b32 s{S_C2}, 0xbfb8aa3b
    s_sub_u32 s{S_SEG}, s{S_XCC}, 1
    s_lshl_b32 s{S_OB}, s{S_SEG}, 1
    v_mov_b32 v{PB+5}, 0
    v_mov_b32 v{PB+6}, 0
    """)
    set_srd(g, P_X, 2 * MB)
    spin_counter(g, "p3_init", DBG_INIT, 224)
    spin_counter(g, "p3_team", DBG_TEAM, 32)
    bad = hazard.check(g.lines[m0:], "p3 prologue")

    def reduce(dst):
        g("s_nop 7")
        for t in range(2): g(f"ds_write_b128 v{RWA}, {v(ACC+4*t,4)} offset:{L_RED + 64*t}")
        g("s_waitcnt lgkmcnt(0)\ns_barrier")
        for x in range(4): g(f"ds_read_b64 {v(ACC+2*x,2)}, v{RRA} offset:{L_RED + 2048*x}")
        g(f"""
        s_waitcnt lgkmcnt(0)
        v_pk_add_f32 {v(ACC,2)}, {v(ACC,2)}, {v(ACC+2,2)}
        v_pk_add_f32 {v(ACC+4,2)}, {v(ACC+4,2)}, {v(ACC+6,2)}
        v_pk_add_f32 {v(ACC,2)}, {v(ACC,2)}, {v(ACC+4,2)}
        v_cvt_pk_bf16_f32 v{dst}, v{ACC}, v{ACC+1}
        v_and_b32 v{dst+1}, s{S_C0}, v{dst}
        v_lshlrev_b32 v{dst}, 16, v{dst}
        """)

    wstamp(g, opt, 3)
    g("L_p3_seg:")
    m1 = g.mark()
    pstamp(g, opt, 0)
    g(f"s_lshl_b32 s{S_T0}, s{S_SEG}, 6\ns_add_u32 s{S_T2}, s{S_T0}, {WS_HF}")
    spin_flags(g, "p3_hf", HFA, S_T2)
    pstamp(g, opt, 1)
    g(f"""
    s_lshl_b32 s{S_T0}, s{S_SEG}, 1
    s_add_u32 s{S_T0}, s{S_T0}, s{S_TH}
    s_mul_i32 s{S_HO}, s{S_T0}, {HM_SEG // 2}
    s_mul_i32 s{S_T1}, s{S_WAVE}, {11*1024}
    s_add_u32 s{S_HO}, s{S_HO}, s{S_T1}
    s_add_u32 s{S_HO}, s{S_HO}, {WS_HMID}
    s_cmp_eq_u32 s{S_WAVE}, 3
    s_cselect_b32 s{S_T1}, 0x40000000, 0
    """)
    for k in range(11):
        if k == 10: g(f"s_add_u32 s{S_HO}, s{S_HO}, s{S_T1}")
        g(f"buffer_load_dwordx4 {v(ST+4*k,4)}, v{LN16}, {WSD}, s{S_HO} offen offset:{(k & 3)*1024} sc1")
        if k & 3 == 3: g(f"s_add_u32 s{S_HO}, s{S_HO}, 4096")
    g(f"s_lshl_b32 s{S_XO}, s{S_SEG}, 15\nbuffer_load_dword v{XV}, v{XA}, {WD}, s{S_XO} offen")
    for k in range(11):
        g(f"s_waitcnt vmcnt({11-k})")
        for t in range(2): g(mf16(ACC + 4*t, wreg("d", k, t), v(ST + 4*k, 4), k == 0))
    reduce(GV)
    g(f"""
    v_mul_f32 v{ACC}, s{S_C2}, v{GV}
    v_mul_f32 v{ACC+1}, s{S_C2}, v{GV+1}
    v_exp_f32 v{ACC}, v{ACC}
    v_exp_f32 v{ACC+1}, v{ACC+1}
    s_nop 0
    v_add_f32 v{ACC}, 1.0, v{ACC}
    v_add_f32 v{ACC+1}, 1.0, v{ACC+1}
    v_rcp_f32 v{ACC}, v{ACC}
    v_rcp_f32 v{ACC+1}, v{ACC+1}
    s_waitcnt vmcnt(0)
    v_pk_mul_f32 {v(GV,2)}, {v(GV,2)}, {v(ACC,2)}
    v_cvt_pk_bf16_f32 v{GV}, v{GV}, v{GV+1}
    v_and_b32 v{GV+1}, s{S_C0}, v{GV}
    v_lshlrev_b32 v{GV}, 16, v{GV}
    v_and_b32 v{XV+1}, s{S_C0}, v{XV}
    v_lshlrev_b32 v{XV}, 16, v{XV}
    """)
    pstamp(g, opt, 2)
    QR_, KR_, VR_ = ST, ST + 16, ST + 48
    g(f"""
    s_lshl_b32 s{S_T0}, s{S_TK}, 6
    s_add_u32 s{S_T0}, s{S_T0}, s{S_SEG}
    s_lshl_b32 s{S_T0}, s{S_T0}, 2
    s_add_u32 s{S_T2}, s{S_T0}, {WS_FLAGS}
    v_mov_b32 v10, 0
    """)
    spin_flags(g, "p3_kv", 10, S_T2)
    g(f"""
    s_lshl_b32 s{S_T0}, s{S_SEG}, 5
    s_add_u32 s{S_T0}, s{S_T0}, s{S_TK}
    s_lshl_b32 s{S_QO}, s{S_T0}, 13
    s_and_b32 s{S_T1}, s{S_WAVE}, 1
    s_lshl_b32 s{S_T1}, s{S_T1}, 12
    s_add_u32 s{S_QO}, s{S_QO}, s{S_T1}
    s_add_u32 s{S_QO}, s{S_QO}, {WS_Q}
    s_lshl_b32 s{S_KO}, s{S_T0}, 14
    s_add_u32 s{S_KO}, s{S_KO}, {WS_KV}
    s_lshl_b32 s{S_PO}, s{S_T0}, 2
    s_add_u32 s{S_PO}, s{S_PO}, s{S_WAVE}
    s_lshl_b32 s{S_PO}, s{S_PO}, 10
    s_add_u32 s{S_PO}, s{S_PO}, {WS_PUB}
    s_add_u32 s{S_T1}, s{S_KO}, 4096
    s_lshr_b32 s{S_T2}, s{S_WAVE}, 1
    s_lshl_b32 s{S_T2}, s{S_T2}, 12
    s_add_u32 s{S_T2}, s{S_T2}, s{S_KO}
    s_add_u32 s{S_T2}, s{S_T2}, 8192
    """)
    for x in range(4):
        g(f"buffer_load_dwordx4 {v(QR_+4*x,4)}, v{LN16}, {WSD}, s{S_QO} offen offset:{x*1024} sc1")
        g(f"buffer_load_dwordx4 {v(KR_+4*x,4)}, v{KPA}, {WSD}, s{S_KO} offen offset:{x*1024} sc1")
        g(f"buffer_load_dwordx4 {v(KR_+16+4*x,4)}, v{KPA}, {WSD}, s{S_T1} offen offset:{x*1024} sc1")
    for x in range(4):
        g(f"buffer_load_dwordx4 {v(VR_+4*x,4)}, v{LN16}, {WSD}, s{S_T2} offen offset:{x*1024} sc1")
    for x in range(4):
        g(f"s_waitcnt vmcnt({4 + 3*(3-x)})")
        for T in range(2): g(mf16(SC + 4*T, v(KR_ + 16*T + 4*x, 4), v(QR_ + 4*x, 4), x == 0))
    MX, MY = SC + 12, SC + 13
    g(f"v_mov_b32 v{MY}, 0xd028965f\ns_nop 7")
    for i in range(8): g(f"v_cndmask_b32 v{SC+i}, v{MY}, v{SC+i}, s[{S_MK+2*i}:{S_MK+2*i+1}]")
    g(f"v_max3_f32 v{MX}, v{SC}, v{SC+1}, v{SC+2}\nv_max3_f32 v{MX}, v{MX}, v{SC+3}, v{SC+4}\nv_max3_f32 v{MX}, v{MX}, v{SC+5}, v{SC+6}\nv_max_f32 v{MX}, v{MX}, v{SC+7}")
    pstamp(g, opt, 3)
    g(f"""
    s_lshl_b32 s{S_T2}, s{S_TK}, 7
    s_add_u32 s{S_T2}, s{S_T2}, {WS_PF}
    s_add_u32 s{S_T1}, s{S_SEG}, 2
    s_cmp_lt_u32 s{S_SEG}, 62
    s_cselect_b32 s{S_T1}, s{S_T1}, 62
    L_p3_pf:
    buffer_load_dword v11, v10, {WSD}, s{S_T2} offen sc1
    s_add_u32 s{S_SPIN}, s{S_SPIN}, 1
    s_cmp_gt_u32 s{S_SPIN}, {SPIN_MAX}
    s_cbranch_scc1 L_p3_pub
    s_waitcnt vmcnt(0)
    v_cmp_gt_u32 vcc, s{S_T1}, v11
    s_cbranch_vccz L_p3_pub
    s_sleep 4
    s_branch L_p3_pf
    L_p3_pub:
    buffer_load_dwordx4 {v(OA,4)}, v{LN16}, {WSD}, s{S_PO} offen sc1
    s_add_u32 s{S_SPIN}, s{S_SPIN}, 1
    s_cmp_gt_u32 s{S_SPIN}, {SPIN_MAX}
    s_cbranch_scc1 L_p3_pub_out
    s_waitcnt vmcnt(0)
    v_max3_u32 v11, v{OA}, v{OA+1}, v{OA+2}
    v_max_u32 v11, v11, v{OA+3}
    v_cmp_eq_u32 vcc, s{S_SENT}, v11
    s_cbranch_vccz L_p3_pub_out
    s_sleep {opt.get('psleep', 2)}
    s_branch L_p3_pub
    L_p3_pub_out:
    s_waitcnt vmcnt(0)
    ds_write2_b32 v{KMW}, v{OA}, v{OA+1} offset0:0 offset1:4
    ds_write_b64 v{VMW}, {v(OA+2,2)}
    s_waitcnt lgkmcnt(0)
    s_barrier
    """)
    pstamp(g, opt, 4)
    for x in range(4): g(f"ds_read_b128 {v(KM+4*x,4)}, v{KMR} offset:{576*x}")
    for x in range(2): g(f"ds_read_b64 {v(VM+2*x,2)}, v{VMR} offset:{512*x}")
    for x in range(4):
        g(f"s_waitcnt lgkmcnt({5-x})")
        g(mf16(SC + 8, v(KM + 4*x, 4), v(QR_ + 4*x, 4), x == 0))
    g(f"""
    s_lshl_b32 s{S_T0}, s{S_OB}, 1
    s_and_b32 s{S_T1}, s{S_WAVE}, 1
    s_add_u32 s{S_T0}, s{S_T0}, s{S_T1}
    s_lshl_b32 s{S_T0}, s{S_T0}, 5
    s_add_u32 s{S_T0}, s{S_T0}, s{S_TK}
    s_lshl_b32 s{S_T0}, s{S_T0}, 2
    s_and_b32 s{S_T1}, s{S_WAVE}, 2
    s_add_u32 s{S_T0}, s{S_T0}, s{S_T1}
    s_lshl_b32 s{S_T0}, s{S_T0}, 10
    s_add_u32 s{S_T0}, s{S_T0}, {WS_O}
    v_max3_f32 v{MX}, v{MX}, v{SC+8}, v{SC+9}
    """)

    def cross(r, t, op):
        for sw in (16, 32):
            g(f"v_mov_b32 v{t}, v{r}\ns_nop 1\nv_permlane{sw}_swap_b32 v{r}, v{t}\n{op} v{r}, v{r}, v{t}")
    cross(MX, MY, "v_max_f32")
    g(f"v_mul_f32 v{MX}, s{S_SCL}, v{MX}")
    for i in range(10): g(f"v_fma_f32 v{SC+i}, v{SC+i}, s{S_SCL}, -v{MX}")
    for i in range(10): g(f"v_exp_f32 v{SC+i}, v{SC+i}")
    for ri in range(4):
        r = SC + 4*(ri & 1) + 2*(ri >> 1)
        g(f"v_cvt_pk_bf16_f32 v{PB+ri}, v{r}, v{r+1}")
    g(f"v_cvt_pk_bf16_f32 v{PB+4}, v{SC+8}, v{SC+9}\nv_cvt_pk_bf16_f32 v{PB+7}, v{SC+8}, v{SC+9}\ns_waitcnt lgkmcnt(0)")
    for e in range(4):
        g(mf16(OA + 4*e, v(VR_ + 4*e, 4), v(PB, 4), True))
        g(f"v_add_f32 v{SC+2*e}, v{SC+2*e}, v{SC+2*e+1}")
    sums = [f"v_add_f32 v{SC+8}, v{SC+8}, v{SC+9}", f"v_add_f32 v{SC}, v{SC}, v{SC+2}", f"v_add_f32 v{SC+4}, v{SC+4}, v{SC+6}", f"v_add_f32 v{SC}, v{SC}, v{SC+8}"]
    for e in range(4):
        g(f"v_mfma_f32_16x16x16_bf16 {v(OA+4*e,4)}, {v(VM+2*(e >> 1),2)}, {v(PB+4+2*(e & 1),2)}, {v(OA+4*e,4)}")
        g(sums[e])
    g(f"v_add_f32 v{SC}, v{SC}, v{SC+4}")
    cross(SC, SC + 1, "v_add_f32")
    g(f"v_rcp_f32 v{SC}, v{SC}\ns_nop 0")
    for x in range(2):
        for i in range(8): g(f"v_mul_f32 v{OA+8*x+i}, v{OA+8*x+i}, v{SC}")
        for r in range(4): g(f"v_cvt_pk_bf16_f32 v{KM+4*x+r}, v{OA+8*x+r}, v{OA+8*x+4+r}")
        g(f"buffer_store_dwordx4 {v(KM+4*x,4)}, v{LN16}, {WSD}, s{S_T0} offen offset:{x*1024} {st}")
    g(f"""
    s_lshl_b32 s{S_T2}, s{S_SEG}, 7
    s_add_u32 s{S_T2}, s{S_T2}, {WS_OF}
    s_lshl_b32 s{S_T1}, s{S_TK}, 2
    s_add_u32 s{S_T1}, s{S_T1}, s{S_T2}
    s_lshl_b32 s{S_T0}, s{S_OB}, 1
    s_add_u32 s{S_T0}, s{S_T0}, s{S_TH}
    s_lshl_b32 s{S_T0}, s{S_T0}, 2
    s_add_u32 s{S_T0}, s{S_T0}, s{S_WAVE}
    s_lshl_b32 s{S_T0}, s{S_T0}, 15
    s_add_u32 s{S_HO}, s{S_T0}, {WS_O}
    s_waitcnt vmcnt(0)
    s_barrier
    """)
    pstamp(g, opt, 5)
    set_flag(g, "p3_of", S_T1, st)
    spin_flags(g, "p3_ow", OFA, S_T2, 0)
    pstamp(g, opt, 6)
    NB = 16

    def old(k):
        g(f"buffer_load_dwordx4 {v(ST+4*(k % NB),4)}, v{LN16}, {WSD}, s{S_HO} offen offset:{(k & 3)*1024} sc1")
        if k & 3 == 3: g(f"s_add_u32 s{S_HO}, s{S_HO}, 4096")
    for k in range(NB): old(k)
    for k in range(32):
        g(f"s_waitcnt vmcnt({min(NB - 1, 31 - k)})")
        for t in range(2): g(mf16(ACC + 4*t, wreg("o", k, t), v(ST + 4*(k % NB), 4), k == 0))
        if k + NB < 32: old(k + NB)
    pstamp(g, opt, 7)
    reduce(SC)
    pstamp(g, opt, 8)
    g(f"""
    v_pk_mul_f32 {v(SC,2)}, {v(SC,2)}, {v(GV,2)}
    v_cvt_pk_bf16_f32 v{SC}, v{SC}, v{SC+1}
    v_and_b32 v{SC+1}, s{S_C0}, v{SC}
    v_lshlrev_b32 v{SC}, 16, v{SC}
    v_pk_add_f32 {v(SC,2)}, {v(SC,2)}, {v(XV,2)}
    v_cvt_pk_bf16_f32 v{SC}, v{SC}, v{SC+1}
    buffer_store_dword v{SC}, v{XA}, s[{S_OUT}:{S_OUT+3}], s{S_XO} offen
    s_xor_b32 s{S_OB}, s{S_OB}, 1
    s_add_u32 s{S_SEG}, s{S_SEG}, 7
    s_cmp_lt_u32 s{S_SEG}, {NSEG}
    s_barrier
    s_cbranch_scc1 L_p3_seg
    """)
    bad += hazard.check(g.lines[m1:], "p3 loop")
    wstamp(g, opt, 4, True)
    if opt.get("dbgt"):
        g(f"s_cmp_lg_u32 s{S_WAVE}, 0\ns_cbranch_scc1 L_dt2\ns_cmp_lg_u32 s{S_XCC}, 1\ns_cbranch_scc1 L_dt2")
        dbg_time(g, opt, 6)
        g("L_dt2:")
    g("s_waitcnt vmcnt(0)\ns_endpgm")
    return bad


def worker_roles(g, opt):
    m0 = g.mark()
    worker_init(g)
    bad = hazard.check(g.lines[m0:], "worker init")
    g(f"s_cmp_ge_u32 s{S_WI}, 160\ns_cbranch_scc1 L_ffn")
    bad += qkv_role(g, opt)
    g("s_branch L_p3\nL_ffn:")
    bad += ffn_role(g, opt)
    g("L_p3:")
    wstamp(g, opt, 2)
    bad += p3_role(g, opt)
    return bad
```

```python
from asmlib import *
from layout import *

S_WS = 4
S_W = 8
P_X, P_MEM0, P_WQ, P_WK, P_WV, P_WO, P_SEG, P_BX, P_WG, P_WU, P_WD, P_OUT, P_DBG, P_WSP = range(16, 44, 2)
S_XCC, S_TK, S_WAVE = 44, 45, 46
S_SPIN = 3
S_SENT = 12
SENT = 0xffbfffbf
S_T0, S_T1, S_T2, S_T3 = 47, 48, 49, 50
S_STEP, S_H1ST, S_H1ST2, S_H1LD, S_H1LD2, S_TAG, S_H2LD, S_H2LD2, S_H2ST, S_KV, S_PUB, S_FREE0, S_SC, S_FL, S_FREE1 = range(51, 66)
S_HF = 66
S_RDY = 68
S_ONE = 70
S_H2RS, S_F12 = 72, 73
S_KV2, S_VV = 100, 101
IDX, LW, LM, H1ST, H2ST, QW, QR, KR, OW, FLG, TCH = range(1, 12)
VN, PA, VX, ACC, M, POOL, WRES = 12, 20, 24, 40, 64, 96, 144
FV, GM, FAD, FST = VX + 3, VX + 7, VX + 11, VX + 15
A = [ACC + 4 * i for i in range(6)]
LDS_WAVE = 36864
LDS_MISC = 147456
L_KX = LDS_MISC
L_QK = LDS_MISC + 8192
L_O = L_QK + 4096
SPIN_MAX = 1 << 13

G_R = [[(m, 0, t), (m, 1, t)] for m, t in (("q", 0), ("v", 1), ("k", 3), ("q", 7), ("k", 7), ("v", 7))]
G_M = G_R[1] + G_R[2] + G_R[3]
G_QK = G_R[4] + G_R[5] + G_R[0]
G_O = [("o", 6, 0), ("o", 6, 1), ("o", 7, 0), ("o", 7, 1), ("o", 5, 0), ("o", 5, 1)]
LDS_IDX = {k: i for i, k in enumerate(G_M + G_O + G_QK)}
LOC = {}
for i, k in enumerate(G_O):
    LOC[k] = ("v", POOL + 8 * i)
for k in G_M + G_QK:
    LOC[k] = ("v", POOL + 32 + 8 * k[1])
_n = 0
for k in [(m, x, t) for m in "qkv" for t in range(8) for x in range(2)] + [("o", x, t) for x in range(8) for t in range(2)]:
    if k in LOC: continue
    LOC[k] = ("a", 8 * _n) if _n < 32 else ("v", WRES + 8 * (_n - 32))
    _n += 1
assert _n == 46


def rng(f, b, n):
    return a(b, n) if f == "a" else v(b, n)


def wop(k):
    return rng(LOC[k][0], LOC[k][1], 8)


def smf(d, aop, k, abid=0):
    b = wop(k) if isinstance(k, tuple) else k
    return f"v_smfmac_f32_16x16x64_bf16 {v(d,4)}, {v(aop,4)}, {b}, {v(IDX)}" + (" abid:1" if abid else "")


def mf(d, x, y, c):
    return f"v_mfma_f32_16x16x32_bf16 {v(d,4)}, {v(x,4)}, {v(y,4)}, " + ("0" if c is None else v(c, 4))


def stage_reads(grp):
    return [f"ds_read_b128 {v(LOC[k][1]+4*hh,4)}, {v(LW)} offset:{LDS_IDX[k]*2048+hh*1024}" for k in grp for hh in range(2)]


def zero(base, n):
    return [f"v_mov_b64 {v(base+2*i,2)}, 0" for i in range(n // 2)]


def set_srd(g, ptr, nbytes):
    g(f"s_mov_b32 s{S_W}, s{ptr}\ns_mov_b32 s{S_W+1}, s{ptr+1}\ns_mov_b32 s{S_W+2}, {nbytes}\ns_mov_b32 s{S_W+3}, 0x20000")


def dbg_time(g, opt, slot, neg=False):
    if not opt.get("dbgt"): return
    g(f"""
    s_memrealtime s[88:89]
    s_waitcnt lgkmcnt(0)
    {'s_not_b32 s88, s88' if neg else ''}
    v_mov_b32 v90, {4*slot}
    v_mov_b32 v91, s88
    s_mov_b64 exec, 1
    global_atomic_umax v90, v91, s[{P_DBG}:{P_DBG+1}]
    s_mov_b64 exec, -1
    """)


def load_weights(g, hooks, nt, order):
    RA, RO, DQ, DO = 10, 12, 20, 21
    T0, T1, T2, T3 = 56, 57, 58, 59
    g(f"""
    v_and_b32 v{T0}, 63, v0
    v_lshrrev_b32 v{T1}, 4, v{T0}
    v_and_b32 v{T2}, 15, v{T0}
    s_and_b32 s{S_T0}, s{S_WAVE}, 1
    s_lshr_b32 s{S_T1}, s{S_WAVE}, 1
    s_lshl_b32 s{S_T1}, s{S_T1}, 6
    s_add_u32 s{S_T1}, s{S_T1}, s{S_T0}
    s_lshl_b32 s{S_T1}, s{S_T1}, 14
    s_lshl_b32 s{S_T2}, s{S_TK}, 8
    s_add_u32 s{S_T1}, s{S_T1}, s{S_T2}
    s_lshl_b32 s{S_T0}, s{S_T0}, 3
    v_lshlrev_b32 v{T3}, 1, v{T1}
    v_xor_b32 v{T3}, v{T3}, v{T2}
    v_xor_b32 v{DQ}, s{S_T0}, v{T3}
    v_lshlrev_b32 v{DQ}, 4, v{DQ}
    v_lshlrev_b32 v{DO}, 4, v{T3}
    v_lshrrev_b32 v{T2}, 1, v{T1}
    v_and_b32 v{T3}, 1, v{T1}
    v_lshl_add_u32 v{DQ}, v{T2}, 16, v{DQ}
    v_lshl_add_u32 v{DQ}, v{T3}, 17, v{DQ}
    v_add_u32 v{DQ}, s{S_T1}, v{DQ}
    v_lshl_add_u32 v{DO}, v{T2}, 12, v{DO}
    v_lshl_add_u32 v{DO}, v{T3}, 14, v{DO}
    s_lshl_b32 s{S_T1}, s{S_TK}, 17
    s_lshl_b32 s{S_T2}, s{S_WAVE}, 8
    s_add_u32 s{S_T1}, s{S_T1}, s{S_T2}
    v_add_u32 v{DO}, s{S_T1}, v{DO}
    v_xor_b32 v{DO+1}, 0x80, v{DO}
    """)
    g(f"""
    v_bfe_u32 v{T2}, v{T0}, 2, 2
    v_and_b32 v{T3}, 1, v{T1}
    v_lshl_add_u32 v{T3}, v{T3}, 2, v{T2}
    v_lshlrev_b32 v{T3}, 5, v{T3}
    v_lshl_add_u32 v{T3}, v{T2}, 8, v{T3}
    v_and_b32 v{T2}, 3, v{T0}
    v_lshl_add_u32 v{T3}, v{T2}, 3, v{T3}
    s_lshl_b32 s{S_T0}, s{S_WAVE}, 6
    v_xor_b32 v{RA}, s{S_T0}, v{T3}
    s_mov_b32 s{S_T0}, {LDS_WAVE}
    v_mul_lo_u32 v{T2}, s{S_T0}, v{T1}
    v_add_u32 v{RA}, v{RA}, v{T2}
    v_xor_b32 v{RA+1}, 32, v{RA}
    s_mul_i32 s{S_T3}, s{S_WAVE}, {LDS_WAVE}
    v_lshl_add_u32 v{RO}, v{T1}, 10, v{T3}
    v_add_u32 v{RO}, s{S_T3}, v{RO}
    """)
    for tau in range(1, 8):
        g(f"v_xor_b32 v{RO+tau}, {32*tau}, v{RO}")
    stages = [(m, t) for m in order for t in range(8)]
    park = {}
    for i, k in enumerate(G_QK): park[k] = ("v", POOL + 8 * i)
    for i, k in enumerate(G_O): park[k] = ("v", M + 8 * i) if i < 4 else ("v", VX + 8 * (i - 4))
    for k in G_M: park[k] = ("v", ACC + 8 * k[1])

    def issue(i):
        m, t = stages[i]
        if t == 0:
            set_srd(g, {"q": P_WQ, "k": P_WK, "v": P_WV, "o": P_WO}[m], 4 * MB)
        for x in range(4):
            if m == "o":
                row = 64 * (t >> 2) + 32 * ((t >> 1) & 1) + (t & 1) + 8 * (x >> 1) + 2 * (x & 1)
                so, vo = row * 1024, DO + (x & 1)
            else:
                so, vo = (256 * (x >> 1) + (x & 1) + 64 * (t >> 2) + 32 * ((t >> 1) & 1) + 4 * (t & 1)) * 8192, DQ
            g(f"s_add_u32 m0, s{S_T3}, {16384 + (i % 5) * 4096 + x * 1024}")
            g(f"s_mov_b32 s{S_T0}, {so}")
            g(f"buffer_load_dwordx4 v{vo}, s[{S_W}:{S_W+3}], s{S_T0} offen {'nt' if m in nt else ''} lds")

    for i in range(4):
        issue(i)
    for i, (m, t) in enumerate(stages):
        g(f"s_waitcnt vmcnt({4 * min(3, len(stages) - 1 - i)}) lgkmcnt(0)\ns_barrier")
        if i in hooks: hooks[i]()
        if i + 4 < len(stages):
            issue(i + 4)
        base = 16384 + (i % 5) * 4096
        for x in range(8):
            if m == "o":
                k, rho, ad, off = ("o", x, t >> 2), t & 3, RO + x, base
            else:
                k, rho, ad, off = (m, x >> 2, t), x & 3, RA + (x >> 2), base + (x & 3) * 1024
            f, b = park.get(k, LOC[k])
            g(f"ds_read_b64_tr_b16 {rng(f, b + 2*rho, 2)}, v{ad} offset:{off}")
        if (m, 0, t) in G_M:
            g("s_waitcnt lgkmcnt(0)")
            for sg in range(2):
                for hh in range(2):
                    g(f"ds_write_b128 v{LW}, {v(ACC+8*sg+4*hh,4)} offset:{LDS_IDX[(m,sg,t)]*2048+hh*1024}")
    g("s_waitcnt lgkmcnt(0)\ns_barrier")
    for k in G_O + G_QK:
        for hh in range(2):
            g(f"ds_write_b128 v{LW}, {v(park[k][1]+4*hh,4)} offset:{LDS_IDX[k]*2048+hh*1024}")
    g("s_waitcnt lgkmcnt(0)")


def setup_early(g, st):
    T0, T1, T2, T3 = 56, 57, 58, 59
    g(f"""
    v_and_b32 v{T0}, 63, v0
    v_lshlrev_b32 v{LM}, 4, v{T0}
    s_mul_i32 s{S_T0}, s{S_WAVE}, {LDS_WAVE}
    v_add_u32 v{LW}, s{S_T0}, v{LM}
    v_add_u32 v{LM}, {LDS_MISC}, v{LM}
    v_lshrrev_b32 v{T1}, 4, v{T0}
    v_and_b32 v{T2}, 15, v{T0}
    s_lshl_b32 s{S_T0}, s{S_WAVE}, 3
    v_lshrrev_b32 v{T3}, 3, v{T0}
    v_add_u32 v{T3}, s{S_T0}, v{T3}
    v_lshlrev_b32 v{H1ST}, 13, v{T3}
    v_lshl_add_u32 v{T3}, v{T3}, 1, s{S_TK}
    v_and_b32 v{T3}, 31, v{T3}
    v_lshl_add_u32 v{H1ST}, v{T3}, 7, v{H1ST}
    v_and_b32 v{T3}, 7, v{T0}
    v_lshl_add_u32 v{H1ST}, v{T3}, 3, v{H1ST}
    v_lshrrev_b32 v{T3}, 3, v{T2}
    v_lshlrev_b32 v{H2ST}, 29, v{T3}
    v_bfe_u32 v{T3}, v{T2}, 1, 1
    v_lshl_add_u32 v{H2ST}, v{T3}, 11, v{H2ST}
    v_bfe_u32 v{T3}, v{T2}, 2, 1
    v_lshl_add_u32 v{H2ST}, v{T3}, 7, v{H2ST}
    v_and_b32 v{T3}, 1, v{T2}
    v_lshl_add_u32 v{H2ST}, v{T3}, 3, v{H2ST}
    v_and_b32 v{T3}, 1, v{T1}
    v_lshl_add_u32 v{H2ST}, v{T3}, 4, v{H2ST}
    v_lshrrev_b32 v{T3}, 1, v{T1}
    v_lshl_add_u32 v{H2ST}, v{T3}, 30, v{H2ST}
    s_and_b32 s{S_T0}, s{S_TK}, 3
    s_lshl_b32 s{S_T0}, s{S_T0}, 5
    s_lshr_b32 s{S_T1}, s{S_TK}, 2
    s_lshl_b32 s{S_T1}, s{S_T1}, 8
    s_add_u32 s{S_T0}, s{S_T0}, s{S_T1}
    s_and_b32 s{S_T2}, s{S_WAVE}, 1
    s_lshl_b32 s{S_T2}, s{S_T2}, 12
    s_add_u32 s{S_T0}, s{S_T0}, s{S_T2}
    v_add_u32 v{H2ST}, s{S_T0}, v{H2ST}
    """)
    g(f"""
    s_mov_b32 s{S_STEP}, 0
    s_lshl_b32 s{S_T0}, s{S_TK}, 13
    s_add_u32 s{S_H1LD}, s{S_T0}, {WS_H1 - LDS_MISC}
    s_mov_b32 s{S_H1ST}, {WS_H1}
    s_mov_b32 s{S_H1ST2}, {WS_H1 + 4096}
    s_mov_b32 s{S_H2LD}, {WS_H2}
    s_mov_b32 s{S_H2LD2}, {WS_H2 + 4096}
    s_lshl_b32 s{S_T0}, s{S_TK}, 14
    s_add_u32 s{S_KV}, s{S_T0}, {WS_KV - LDS_MISC}
    s_lshl_b32 s{S_T0}, s{S_TK}, 2
    s_add_u32 s{S_T0}, s{S_T0}, s{S_WAVE}
    s_lshl_b32 s{S_T0}, s{S_T0}, 10
    s_add_u32 s{S_PUB}, s{S_T0}, {WS_PUB - LDS_MISC - 128*KB}
    s_lshl_b32 s{S_T0}, s{S_TK}, 8
    s_add_u32 s{S_FL}, s{S_T0}, {WS_FLAGS}
    s_mov_b32 s{S_HF}, 0xcccccccc
    s_mov_b32 s{S_HF+1}, 0xcccccccc
    s_mov_b32 s{S_SC}, 0x3e0293ee
    s_mov_b32 s{S_SC-1}, 0x3e0293ee
    v_mov_b64 v[60:61], -1
    v_mov_b64 v[62:63], -1
    s_lshl_b32 s{S_T1}, s{S_WAVE}, 11
    s_add_u32 s{S_T1}, s{S_T1}, s{S_H1LD}
    s_add_u32 s{S_H1LD}, s{S_H1LD}, s{S_T2}
    """)
    for x in range(2):
        g(f"buffer_store_dwordx4 v[60:63], v{LM}, s[{S_WS}:{S_WS+3}], s{S_T1} offen offset:{x*1024} {st}")
    g(f"""
    s_mov_b32 s{S_H2RS}, {WS_H2 + 8192}
    s_lshl_b32 s{S_F12}, s{S_TK}, 7
    s_add_u32 s{S_F12}, s{S_F12}, {WS_PF}
    v_mov_b32 v51, 0
    buffer_store_dword v51, v51, s[{S_WS}:{S_WS+3}], s{S_F12} offen sc1
    s_mov_b32 s{S_FREE1}, {WS_H2 + 16384}
    s_lshl_b32 s{S_H1LD2}, s{S_TK}, 2
    s_add_u32 s{S_H1LD2}, s{S_H1LD2}, s{S_FREE1}
    buffer_store_dword v51, v51, s[{S_WS}:{S_WS+3}], s{S_H1LD2} offen {st}
    """)
    set_srd(g, P_MEM0, 8192)
    g(f"""
    s_lshr_b32 s{S_T0}, s{S_TK}, 3
    s_lshl_b32 s{S_T0}, s{S_T0}, 8
    s_and_b32 s{S_T1}, s{S_TK}, 1
    s_lshl_b32 s{S_T1}, s{S_T1}, 4
    s_add_u32 s{S_T0}, s{S_T0}, s{S_T1}
    s_lshr_b32 s{S_T1}, s{S_T2}, 5
    s_add_u32 s{S_T0}, s{S_T0}, s{S_T1}
    s_and_b32 s{S_T1}, s{S_TK}, 6
    s_lshl_b32 s{S_T1}, s{S_T1}, 10
    s_add_u32 s{S_T0}, s{S_T0}, s{S_T1}
    v_and_b32 v{T3}, 1, v{T1}
    v_lshlrev_b32 v{T3}, 10, v{T3}
    v_and_b32 v52, 3, v{T2}
    v_lshl_add_u32 v{T3}, v52, 2, v{T3}
    v_bfe_u32 v52, v{T2}, 2, 1
    v_lshl_add_u32 v{T3}, v52, 6, v{T3}
    buffer_load_ushort v52, v{T3}, s[{S_W}:{S_W+3}], s{S_T0} offen
    buffer_load_ushort v53, v{T3}, s[{S_W}:{S_W+3}], s{S_T0} offen offset:32
    buffer_load_ushort v54, v{T3}, s[{S_W}:{S_W+3}], s{S_T0} offen offset:2
    buffer_load_ushort v55, v{T3}, s[{S_W}:{S_W+3}], s{S_T0} offen offset:34
    """)


def store_mem0(g, st):
    g(f"""
    s_mov_b32 s{S_T0}, {WS_H2}
    v_lshl_or_b32 v52, v53, 16, v52
    v_lshl_or_b32 v53, v55, 16, v54
    v_cmp_ne_u32 vcc, s{S_SENT}, v52
    s_nop 1
    v_cndmask_b32 v52, -1, v52, vcc
    v_cmp_ne_u32 vcc, s{S_SENT}, v53
    s_nop 1
    v_cndmask_b32 v53, -1, v53, vcc
    buffer_store_dwordx2 v[52:53], v{H2ST}, s[{S_WS}:{S_WS+3}], s{S_T0} offen {st}
    """)


def setup_late(g):
    T0, T1, T2, T3 = 56, 57, 58, 59
    g(f"""
    v_and_b32 v{T0}, 63, v0
    v_lshrrev_b32 v{T1}, 4, v{T0}
    v_and_b32 v{T2}, 15, v{T0}
    v_mov_b32 v{IDX}, 0x44444444
    v_mov_b32 v{T3}, 0x4e1eeeee
    v_cndmask_b32 v{IDX}, v{IDX}, v{T3}, s[{S_HF}:{S_HF+1}]
    s_lshl_b32 s{S_T0}, s{S_WAVE}, 10
    s_add_u32 s{S_T0}, s{S_T0}, {L_QK}
    v_lshrrev_b32 v{T3}, 2, v{T2}
    v_lshlrev_b32 v{QW}, 7, v{T3}
    v_lshl_add_u32 v{QW}, v{T1}, 5, v{QW}
    v_and_b32 v{T3}, 1, v{T3}
    v_lshlrev_b32 v{T3}, 6, v{T3}
    v_xor_b32 v{QW}, v{QW}, v{T3}
    v_and_b32 v{T3}, 3, v{T2}
    v_lshl_add_u32 v{QW}, v{T3}, 2, v{QW}
    v_add_u32 v{QW}, s{S_T0}, v{QW}
    v_lshlrev_b32 v{QR}, 7, v{T1}
    v_add_u32 v{QR}, {L_QK}, v{QR}
    v_and_b32 v{T3}, 1, v{T2}
    v_lshl_add_u32 v{QR}, v{T3}, 4, v{QR}
    v_add_u32 v{KR}, 512, v{QR}
    v_lshrrev_b32 v{T3}, 2, v{T2}
    v_lshl_add_u32 v{QR}, v{T3}, 5, v{QR}
    v_lshrrev_b32 v{T3}, 3, v{T2}
    v_lshl_add_u32 v{KR}, v{T3}, 5, v{KR}
    v_lshrrev_b32 v{T3}, 1, v{T2}
    v_xor_b32 v{T3}, v{T3}, v{T2}
    v_and_b32 v{T3}, 2, v{T3}
    v_lshl_add_u32 v{KR}, v{T3}, 5, v{KR}
    v_and_b32 v{T3}, 1, v{T1}
    v_lshlrev_b32 v{T3}, 6, v{T3}
    v_xor_b32 v{QR}, v{QR}, v{T3}
    v_xor_b32 v{KR}, v{KR}, v{T3}
    s_lshl_b32 s{S_T0}, s{S_WAVE}, 9
    s_add_u32 s{S_T0}, s{S_T0}, {L_O}
    v_lshrrev_b32 v{T3}, 3, v{T2}
    v_lshlrev_b32 v{OW}, 8, v{T3}
    v_lshl_add_u32 v{OW}, v{T1}, 6, v{OW}
    v_bfe_u32 v{T3}, v{T2}, 2, 1
    v_lshl_add_u32 v{OW}, v{T3}, 5, v{OW}
    v_and_b32 v{T3}, 3, v{T2}
    v_lshl_add_u32 v{OW}, v{T3}, 2, v{OW}
    v_add_u32 v{OW}, s{S_T0}, v{OW}
    """)
    g(f"s_mov_b32 s{S_ONE}, 0x3f803f80\ns_mov_b32 s{S_ONE+1}, 0x3f803f80")
    for x in zero(PA, 4) + zero(VX, 16) + zero(ACC, 16): g(x)
    g(f"""
    v_lshrrev_b32 v{T3}, 3, v{T0}
    v_lshlrev_b32 v{GM}, 8, v{T3}
    v_and_b32 v{T3}, 7, v{T0}
    v_lshl_add_u32 v{GM}, v{T3}, 4, v{GM}
    v_and_b32 v{FAD}, 31, v0
    v_lshlrev_b32 v{FAD}, 2, v{FAD}
    v_min_u32 v{FST}, 1, v{T0}
    v_lshlrev_b32 v{FST}, 30, v{FST}
    """)


def kv_addr(w):
    return [f"s_add_u32 s{S_KV2}, s{S_KV}, 4096", f"s_add_u32 s{S_VV}, s{S_KV}, {8192 + w*2048}"]


def k_load(w, hi):
    return [f"s_mov_b32 m0, {L_KX + hi*4096}",
            f"buffer_load_dwordx4 v{LM}, s[{S_WS}:{S_WS+3}], s{S_KV2 if hi else S_KV} offen offset:{w*1024} lds ;@kv"]


def v_loads():
    return [f"buffer_load_dwordx4 {v(VN+4*sg,4)}, v{LM}, s[{S_WS}:{S_WS+3}], s{S_VV} offen offset:{sg*1024} ;@kv" for sg in range(2)]


def mzero(base, n):
    op = {4: "4x4x1_16b", 16: "16x16x1_4b"}[n]
    return f"v_mfma_f32_{op}_f32 {v(base,n)}, v{PA+3}, v{PA+3}, 0"


def v_moves(src_):
    return [f"v_mov_b64 {v(VX+4*i,2)}, {v(src_+2*i,2)}" for i in range(4)]


def wait_flag(g, tag, seg_sgpr):
    g(f"""
    L_{tag}:
    buffer_load_dword v{FLG}, v{TCH}, s[{S_WS}:{S_WS+3}], s{S_FL} offen sc1
    s_add_u32 s{S_SPIN}, s{S_SPIN}, 1
    s_cmp_gt_u32 s{S_SPIN}, {SPIN_MAX}
    s_cbranch_scc1 L_{tag}_out
    s_waitcnt vmcnt(0)
    v_cmp_eq_u32 s[{S_RDY}:{S_RDY+1}], 1, v{FLG}
    s_nop 4
    s_bitcmp1_b64 s[{S_RDY}:{S_RDY+1}], s{seg_sgpr}
    s_cbranch_scc0 L_{tag}
    L_{tag}_out:
    s_waitcnt vmcnt(0)
    """)


def wave_loop(g, w, st, tag, opt):
    stamps = opt.get("stamps")
    WSD = f"s[{S_WS}:{S_WS+3}]"
    nst = [0]

    def stamp():
        if not stamps: return []
        i = nst[0]; nst[0] += 1
        if isinstance(stamps, list) and i not in stamps: return []
        if opt.get("rt") and w + 1 != opt["rt"]: return []
        return [f"s_mem{'real' if opt.get('rt') and not opt.get('cyc') else ''}time s[{74+2*i}:{75+2*i}]"]

    L = lambda x: f"L_{tag}{w}_{x}"
    T0 = 56
    KR_, OW_, SEL = (FAD, FST, KR) if w >= 2 else (KR, OW, None)
    kxr = [f"ds_read_b128 {v(POOL+4*c,4)}, v{LM} offset:{c*1024}" for c in range(8)]
    if w == 0:
        g(f"v_lshlrev_b32 v{TCH}, 2, v0\nv_mov_b32 v{FV}, 1")
    if w >= 2:
        g(f"""
        v_and_b32 v{T0}, 15, v0
        v_and_b32 v{T0+1}, 1, v0
        v_mov_b32 v{KR_}, v{KR}
        v_mov_b32 v{OW_}, v{OW}
        v_lshlrev_b32 v{T0+1}, 4, v{T0+1}
        v_mov_b32 v{T0+2}, 0x3f80
        v_lshlrev_b32 v{T0+1}, v{T0+1}, v{T0+2}
        v_lshrrev_b32 v{T0}, 1, v{T0}
        """)
        for i in range(4):
            g(f"v_cmp_eq_u32 vcc, {(0, 2, 1, 3)[i]}, v{T0}\ns_nop 1\nv_cndmask_b32 v{SEL+i}, 0, v{T0+1}, vcc")
    for x in zero(ACC + 16, 8): g(x)
    k0, k1 = k_load(w, 0), k_load(w, 1)
    nxt = [f"s_add_u32 s{S_KV}, s{S_KV}, {512*KB}"] + kv_addr(w)
    for x in ["s_waitcnt vmcnt(0)"] + v_moves(VN) + ["s_barrier"] + kxr + stage_reads(G_R[(0, 1, 2, 2)[opt.get("r0", [0, 1, 0, 1])[w]]]) + nxt + ["s_waitcnt lgkmcnt(0)"]:
        g(x.split(";@")[0])
    if w == 0: dbg_time(g, opt, 4)
    if opt.get("count"):
        g("s_memtime s[92:93]\ns_memrealtime s[94:95]\ns_waitcnt lgkmcnt(0)\ns_mov_b32 s15, s94")
    body = []
    E = body.extend
    nops = lambda k: [f"s_nop {x}" for x in opt.get(k, [])]
    red = w >= 2
    MB_ = lambda t: L_O + (t - 4) * 1024
    mo = lambda t: (t & 1) * 2048 + ((t >> 1) & 1) * 128
    mld = lambda t: f"buffer_load_dwordx4 {v(M+4*t,4)}, v{GM}, {WSD}, s{S_H2LD if t < 4 else S_H2LD2} offen offset:{mo(t)} sc1"
    dma = f"buffer_load_dwordx4 v{GM}, {WSD}, s{S_H2LD2} offen offset:{mo(w)} sc1 lds ;@dma"
    SP, CK = M + 16 + 4 * w, PA + 2
    smp = mld(4 + w) + " ;@smp"
    R = A[5]
    pc = opt.get("pace", 15)
    pace = [f"s_nop {min(pc, 15)}"] + ([f"s_nop {pc - 16}"] if pc > 15 else [])
    cl = [mld(t) + f" ;@c{t}" for t in range(4)]
    r0 = opt.get("r0", [0, 1, 0, 1])[w]
    PRE = (0, 1, 2, 2)
    gather = sum([[cl[(r0 + j) & 3]] + pace for j in range(4)], [])[:-len(pace)]
    nt = opt.get("nt", "")
    vl = v_loads()
    kvl = [x.replace(" lds ;@", f" {nt} lds ;@") if " lds" in x else x.replace(" ;@", f" {nt} ;@") for x in [k0[0], vl[0], k0[1], k1[0], vl[1], k1[1]]]
    cv = lambda d, q: f"v_cvt_pk_bf16_f32 v{d}, v{q}, v{q+1}"
    h1l = lambda HB: [f"buffer_load_dwordx4 {v(HB+4*t,4)}, v{LM}, {WSD}, s{S_H1LD} offen offset:{t*1024} sc1" for t in range(4)]
    two = opt.get("two", [1, 1])[w & 1]

    def reduce(HB, name):
        out = [f"{L(name)}:"]
        for t in range(4):
            out += [f"s_waitcnt vmcnt({3 - t + 4*two})", mf(R, SEL or 0, HB + 4*t, None if t == 0 else R)]
            out += [f"v_xor_b32 v{PA}, s{S_TAG}, v{HB}" if t == 0 else f"v_bitop3_b32 v{PA}, v{PA}, v{HB+4*t}, s{S_TAG} bitop3:0xf6",
                    f"v_bitop3_b32 v{PA}, v{PA}, v{HB+4*t+2}, s{S_TAG} bitop3:0xf6"]
        if opt.get("cp"):
            fold = [f"v_add_f32_dpp v{HB+r}, v{R+r}, v{R+r} row_ror:8 row_mask:0xf bank_mask:0xf" for r in range(4)] + [cv(HB + 4, HB), cv(HB + 5, HB + 2)]
            k_ = 2 if w == 3 else 6
            return out + ([f"v_and_b32 v{PA}, 1, v{PA}", f"v_cmp_eq_u32 vcc, 1, v{PA}", "s_nop 2"] + fold[:k_] +
                          [f"s_cbranch_vccnz {L(name + 'no')}", f"{L(name + 'ok')}:", "s_barrier"] + fold[k_:] + [h2st(HB)])
        return out + ([f"v_and_b32 v{PA}, 1, v{PA}", f"v_cmp_eq_u32 vcc, 1, v{PA}", "s_nop 2"] +
                      [f"v_add_f32_dpp v{HB+r}, v{R+r}, v{R+r} row_ror:8 row_mask:0xf bank_mask:0xf" for r in range(4)] +
                      [cv(HB + 4, HB), cv(HB + 5, HB + 2), f"s_cbranch_vccnz {L(name + 'no')}", f"{L(name + 'ok')}:"] +
                      ([h2st(HB)] if not late_st else [] if HB != M else [h2st(HB), f"s_mov_b32 s{S_H2ST}, 0x40000000"]))
    clean = [f"v_mov_b64 {v(PA,2)}, s[{S_SENT}:{S_SENT+1}]", mzero(R, 4)]
    h2rs = f"buffer_store_dwordx2 {v(PA,2)}, v{H2ST}, {WSD}, s{S_H2RS} offen {st} ;@h2rs"
    E([f"{L('top')}:", "s_barrier"] + (stamp() if opt.get("rt") else []) + [f"{L('again')}:"])
    gather = [cl[r0], f"s_mov_b32 m0, {MB_(4 + w) - mo(w)}"] + gather[1:] + (nops("p5") + [dma] if opt.get("dtop") else [])
    late_st = opt.get("ls", 0) and w == 3
    h2st = lambda HB: f"buffer_store_dwordx2 {v(HB+4,2)}, v{H2ST}, {WSD}, s{S_H2ST} offen {st}"
    if late_st:
        i = gather.index(pace[0])
        E(gather[:i] + nops("d5") + [h2st(M + 16), f"s_mov_b32 s{S_H2ST}, 0x40000000"] + clean + gather[i+1:])
        g(f"s_mov_b32 s{S_H2ST}, 0x40000000")
    elif red:
        i = gather.index(pace[0])
        E(gather[:i] + clean + [f"s_nop {max(min(pc, 15) - 3, 0)}"] + gather[i+1:])
    else:
        E(gather)
    pubv = f"buffer_store_dwordx4 {v(VN+4,4)}, v{LM}, {WSD}, s{S_PUB} offen sc1"
    dump = []
    DT = M + 18
    if stamps:
        dump.extend(["s_waitcnt lgkmcnt(0)"] + [f"v_writelane_b32 v{DT}, s{74+2*i}, {i}" for i in range(9)])
        dump.extend([f"v_subrev_u32 v{DT+1}, {LDS_MISC}, v{LM}", f"v_lshrrev_b32 v{DT+1}, 2, v{DT+1}",
           f"s_lshl_b32 s{S_T0}, s{S_TK}, 2", f"s_add_u32 s{S_T0}, s{S_T0}, {w}", f"s_lshl_b32 s{S_T0}, s{S_T0}, 6", f"s_add_u32 s{S_T0}, s{S_T0}, s{S_STEP}",
           f"s_lshl_b32 s{S_T0}, s{S_T0}, 6", f"s_add_u32 s{S_T0}, s{S_T0}, {WS_STAMP}", "s_mov_b64 exec, 0xffff",
           f"buffer_store_dword v{DT}, v{DT+1}, {WSD}, s{S_T0} offen", "s_mov_b64 exec, -1"])
    if red and opt.get('rt', w + 1) == w + 1: E(dump)
    top_part = list(body)
    c0stamp = stamp()
    order = [(m, sg, t) for t in range(4) for m in "qkv" for sg in range(2)]
    order += [(m, sg, t) for m in "qkv" for t in range(4, 8) for sg in range(2)]
    acc = lambda k: A["qkv".index(k[0]) * 2 + k[1]]
    mm = [smf(acc(k), M + 4 * k[2], k) for k in order]
    rs = [tagged(stage_reads(x), f"r{i}") for i, x in enumerate(G_R)]
    mr = [f"ds_read_b128 {v(M+4*t,4)}, v{LM} offset:{MB_(t) - LDS_MISC} ;@m{t}" for t in range(4, 8)]
    add = lambda q, b: f"v_add_f32 v{q+b}, v{q+b}, v{q+2+b}"
    qr = [f"ds_read_b128 {v(M+4*x,4)}, v{QR} offset:{1024*x} ;@qr{x}" for x in range(4)]
    kr = [f"ds_read_b128 {v(M+16+4*x,4)}, v{KR_} offset:{1024*x} ;@kr{x}" for x in range(4)]
    ost = stage_reads(G_O)
    qfin = [add(A[0], 0), add(A[0], 1), add(A[1], 0), add(A[1], 1),
            f"v_cvt_pk_bf16_f32 v{A[0]+2}, v{A[0]}, v{A[1]}", f"v_cvt_pk_bf16_f32 v{A[0]+3}, v{A[0]+1}, v{A[1]+1}",
            f"ds_write_b32 v{QW}, v{A[0]+2} ;@qw", f"ds_write_b32 v{QW}, v{A[0]+3} offset:16 ;@qw"]
    kfin = [add(A[2], 0), add(A[2], 1), add(A[3], 0), add(A[3], 1),
            f"v_cvt_pk_bf16_f32 v{A[3]}, v{A[2]}, v{A[3]}", f"v_cvt_pk_bf16_f32 v{A[3]+1}, v{A[2]+1}, v{A[3]+1}",
            f"ds_write_b32 v{QW}, v{A[3]} offset:512 ;@kw", f"ds_write_b32 v{QW}, v{A[3]+1} offset:528 ;@kw"]
    b0stamp = stamp()

    b0 = opt.get("b0", 18)
    cg = opt.get("cg", 17)

    pg2 = opt.get("pg2", [22, 24, 27, 29, 31, 34])
    PR2 = [FLG, TCH, H2ST, 0, FV, FST]

    def common():
        F = Gaps()
        if red: F.put("x", min(4 + w, opt.get("kb", 10) or 9), h2rs)
        if opt.get("kb", 10): F.put("x", opt.get("kb", 10), "s_barrier")
        po = opt.get("po", 0)
        seq = [kvl[2], kvl[1], kvl[5], kvl[4]]
        seq.insert(po, pubv)
        free = [i for i in range(opt.get("k0", 11), 32) if i not in (cg, cg + 1, b0)]
        kgs = [free[min(opt.get("ks", 4) * j + w * opt.get("ks", 4) // 4, len(free) - 1 - (3 - w))] for j in range(5)]
        for j, x in enumerate(seq):
            if not ((x == pubv and opt.get("nopub")) or (" lds" in x and opt.get("nok"))): F.put("x", kgs[j], x)
        if w == 0: F.put("d", 28, f"buffer_load_dword v{FLG}, v{TCH}, {WSD}, s{S_FL} offen sc1 ;@kv")
        if opt.get("al") == 2:
            if w == 0: F.put("x", opt.get("kb", 10), f"buffer_store_dword v{FV}, v{FST}, {WSD}, s{S_H1LD2} offen {st}")
            if w == 1:
                for j, i in enumerate(pg2): F.put("x" if i < 32 else "s", i, f"buffer_load_dword v{PR2[j]}, v{FAD}, {WSD}, s{S_FREE1} offen sc1 ;@p{j}")
        if w == 0 and opt.get("nopub") != 2: F.put("x", kgs[po] + 1, f"buffer_store_dword v{FV}, v{FST}, {WSD}, s{S_F12} offen sc1")
        F.put("s", min(8, kgs[seq.index(kvl[2])] - 1), kvl[0]); F.put("x", kgs[seq.index(kvl[2])], kvl[3])
        F.put("s", 34, f"s_add_u32 s{S_PUB}, s{S_PUB}, {128*KB}")
        F.put("s", b0, "@wait vm=dma", "s_barrier", *b0stamp)
        mg, r3g = {18: ((19, 20, 22, 24), (21, 23, 25, 26)), 19: ((20, 21, 23, 25), (22, 24, 26, 27)), 20: ((21, 22, 24, 25), (23, 23, 26, 27))}[b0]
        for j, i in enumerate(mg): F.put("d", i, mr[j])
        for i, t in ((23, 4), (25, 5), (27, 6), (29, 7)): F.put("s", i, f"@wait lg=m{t}")
        for r_, gs, u in ((3, r3g, 30), (4, (30, 31, 32, 33), 37), (5, (38, 39, 40, 42), 46)):
            for j in range(4): F.put("d", gs[j], rs[r_][j])
            F.put("s", u, f"@wait lg=r{r_}")
        for j, i in enumerate((32, 32, 33, 34, 35, 36)): F.put("v", i, qfin[j])
        for j, i in enumerate((40, 42, 43, 43, 44, 45)): F.put("v", i, kfin[j])
        F.put("d", 36, qfin[6]); F.put("d", 37, qfin[7])
        F.put("v", 37, f"v_cmp_u_f32 vcc, v{A[0]}, v{A[0]+1}")
        F.put("s", 40, f"s_cbranch_vccnz {L('nan')}", f"{L('nanok')}:")
        F.put("s", 41, "@wait lg=qw" + (" vm=h2rs" if red else ""), "s_barrier")
        F.put("s", 45, "@wait lg=r5x")
        for j, i in enumerate((43, 44, 47)): F.put("d", i, qr[j])
        F.put("d", 45, kfin[6]); F.put("d", 46, kfin[7])
        F.put("s", 47, "@wait lg=qr0")
        return F
    rs[5][1] += "x"

    pair = lambda m, t: [(m, 0, t), (m, 1, t)]
    HEAD = {0: ("q0 k0 v0 q1 k1 v1 q2 k2 v2 q3 k3 v3", ((1, (2, 3, 4, 5)), (2, (10, 11, 12, 13)))),
            1: ("q1 k1 v1 q2 k2 v2 k3 q3 v3 k0 q0 v0", ((2, (4, 5, 6, 7)), (0, (12, 13, 14, 15)))),
            2: ("q2 k2 v2 k3 q3 v3 k0 q0 v0 q1 v1 k1", ((0, (6, 7, 8, 9)), (1, (14, 15, 16, 17)))),
            3: ("q3 k3 v3 k0 v0 q0 q1 k1 v1 q2 k2 v2", ((0, (2, 3, 4, 5)), (1, (10, 11, 12, 13))))}
    cg = opt.get("cg", 17)

    def head(r, n=24):
        od = sum([pair(x[0], int(x[1])) for x in HEAD[r][0].split()], []) + order[24:]
        F = common()
        F.put("s", 1, f"s_cbranch_vccnz {L(f'no{r}')}", f"{L(f'go{r}')}:")
        if r != r0 or not opt.get("dtop"): F.put("x", opt.get("dg", 1), dma)
        seen = {r}
        c_ = cg
        for i, k in enumerate(od[:24]):
            wt = []
            if k[2] not in seen:
                seen.add(k[2])
                if i <= c_: wt.append(f"vm=c{k[2]}")
            for r_ in range(3):
                if k == G_R[r_][0] and i: wt.append(f"lg=r{r_}" if r_ != PRE[r] else "lg=0")
            if wt and i - 1 == b0: F.t[b0]["s"][0] += " " + " ".join(wt)
            elif wt: F.put("s", i - 1, "@wait " + " ".join(wt))
        F.put("s", c_, f"@wait vm=c{(r+3)&3}")
        if not opt.get("kb", 10):
            F.put("v", c_, f"v_max3_u32 v{CK}, v{M+4*((r+1)&3)}, v{M+4*((r+2)&3)}, v{M+4*((r+3)&3)}")
            F.put("v", c_ + 1, f"v_cmp_eq_u32 vcc, s{S_SENT}, v{CK}")
            F.t.setdefault(c_ + 3, {"s": [], "d": [], "v": [], "x": []})["s"][:0] = [f"s_cbranch_vccnz {L(f'late{r}')}", f"{L(f'lok{r}')}:"]
        e1 = opt.get("e1", 7)
        if e1:
            F.put("v", e1, f"v_cmp_eq_u32 vcc, s{S_SENT}, v{M+4*((r+1)&3)}")
            F.put("s", e1 + 3, f"s_cbranch_vccnz {L(f'soon{r}')}", f"{L(f'sok{r}')}:")
        for r_, gs in HEAD[r][1]:
            for j in range(4): F.put("d", gs[j], rs[r_][j])
        return ([f"{L(f'c{r}')}:", f"@wait vm=c{r}" + (" lg=0" if r == 0 else "")] + (c0stamp if r == r0 else []) +
                [f"v_cmp_eq_u32 vcc, s{S_SENT}, v{M+4*r}"] + F.emit([smf(acc(k), M + 4 * k[2], k) for k in od[:n]]))
    full = head(r0, 48)
    i = full.index(mm[24])
    E(full[:i] + [f"{L('j20')}:"] + full[i:])
    E(stamp())
    S0, S1, SM = A[0], A[1], A[2]
    sx = []
    for x in range(4):
        sx += [mf(S0, POOL + 4*x, M + 4*x, None if x == 0 else S0), mf(S1, POOL + 16 + 4*x, M + 4*x, None if x == 0 else S1)]
    sm = [mf(SM, M + 16 + 4*x, M + 4*x, None if x == 0 else SM) for x in range(4)]
    cv = lambda d, q: f"v_cvt_pk_bf16_f32 v{d}, v{q}, v{q+1}"
    cnd = lambda d, x, y: f"v_cndmask_b32 v{d}, v{x}, v{y}, s[{S_HF}:{S_HF+1}]"
    pub = f"buffer_store_dwordx4 {v(A[3],4)}, v{LM}, {WSD}, s{S_PUB} offen sc1"
    MX, MY = S1, S1 + 1
    z = zero(A[4], 8)
    E([sx[0], f"s_cmp_eq_u32 s{S_STEP}, {NSEG-1}", qr[3],
       sx[1], "@wait lg=qr1", add(A[4], 0), add(A[4], 1),
       sx[2], "@wait lg=kw", "s_barrier",
       sx[3], "@wait lg=qr2", kr[0], add(A[5], 0),
       sx[4], kr[1], add(A[5], 1),
       sx[5], "@wait lg=qr3", kr[2], cv(VX + 2, A[4]),
       sx[6], kr[3], cv(VX + 10, A[5]),
       sx[7], "@wait lg=kr0", cv(A[3] + 2, A[4]), cv(A[3] + 3, A[5]),
       sm[0], "@wait lg=kr2", f"v_permlane16_swap_b32 v{VX+2}, v{VX+6}",
       sm[1], f"s_cbranch_scc1 {L('done')}", cnd(S0, S0, S1), cnd(S0 + 1, S0 + 1, S1 + 1),
       sm[2], "@wait lg=kr3", cnd(S0 + 2, S0 + 2, S1 + 2), cnd(S0 + 3, S0 + 3, S1 + 3),
       sm[3], f"v_max3_f32 v{MX}, v{S0}, v{S0+1}, v{S0+2}", f"v_max_f32 v{MX}, v{MX}, v{S0+3}",
       f"v_permlane16_swap_b32 v{VX+10}, v{VX+14}",
       f"v_max_f32_dpp v{MX}, v{MX}, v{MX} quad_perm:[2,3,0,1] row_mask:0xf bank_mask:0xf",
       f"v_mov_b32 v{MY}, v{MX}",
       f"v_mov_b64 {v(POOL,2)}, s[{S_ONE}:{S_ONE+1}]",
       f"v_max3_f32 v{S1+2}, v{SM}, v{SM+1}, v{SM+2}",
       f"v_permlane16_swap_b32 v{MX}, v{MY}",
       f"v_max3_f32 v{MX}, v{MX}, v{MY}, v{SM+3}",
       f"v_max_f32 v{MY}, v{MX}, v{S1+2}",
       f"v_max_f32 v{MX}, v{MX}, v{S1+2}",
       cnd(SM, SM, SM + 1), f"v_mov_b64 {v(POOL+2,2)}, s[{S_ONE}:{S_ONE+1}]",
       f"v_permlane32_swap_b32 v{MX}, v{MY}",
       f"v_max_f32 v{MX}, v{MX}, v{MY}",
       f"v_mul_f32 v{MX}, s{S_SC}, v{MX}"])
    for r in (S0, S0 + 2):
        E([f"v_pk_fma_f32 {v(r,2)}, {v(r,2)}, s[{S_SC-1}:{S_SC}], {v(MX,2)} op_sel_hi:[1,1,0] neg_lo:[0,0,1] neg_hi:[0,0,1]"])
    E([f"v_fma_f32 v{SM}, v{SM}, s{S_SC}, -v{MX}"])
    E([f"v_exp_f32 v{S0}, v{S0}", f"v_exp_f32 v{S0+1}, v{S0+1}", f"v_exp_f32 v{S0+2}, v{S0+2}", cv(PA, S0),
       f"v_exp_f32 v{S0+3}, v{S0+3}", f"v_exp_f32 v{SM}, v{SM}", cv(PA + 2, S0 + 2),
       f"v_cvt_pk_bf16_f32 v{PA+1}, v{SM}, v{PA+3}"])
    E(stamp())
    LQ = A[1]
    ring = [f"s_and_b32 s{S_TAG}, s{S_STEP}, 1", f"s_add_u32 s{S_STEP}, s{S_STEP}, 1",
            f"s_lshl_b32 s{S_T0}, s{S_TAG}, 13", f"s_sub_u32 s{S_H2LD}, {WS_H2 + 8192}, s{S_T0}",
            f"s_add_u32 s{S_H2LD2}, s{S_H2LD}, 4096"]
    ring2 = list(nxt)
    if red:
        ring += [f"s_add_u32 s{S_H2RS}, s{S_T0}, {WS_H2}", f"s_xor_b32 s{S_H2ST}, s{S_H2RS}, 8192"]
    E([z[0], z[1],
       mf(LQ, PA, POOL, None), z[2], z[3],
       smf(A[4], PA, v(VX, 8), 1), ost[8],
       smf(A[5], PA, v(VX + 8, 8), 1), ost[9], add(LQ, 0),
       add(LQ, 1), f"v_rcp_f32 v{LQ}, v{LQ}", f"v_rcp_f32 v{LQ+1}, v{LQ+1}",
       f"v_pk_add_f32 {v(A[4],2)}, {v(A[4],2)}, {v(A[4]+2,2)}",
       f"v_pk_mul_f32 {v(A[4],2)}, {v(A[4],2)}, {v(LQ,2)}",
       f"v_pk_add_f32 {v(A[5],2)}, {v(A[5],2)}, {v(A[5]+2,2)}",
       f"v_pk_mul_f32 {v(A[5],2)}, {v(A[5],2)}, {v(LQ,2)}",
       f"v_cvt_pk_bf16_f32 v{A[4]+2}, v{A[4]}, v{A[5]}", f"v_cvt_pk_bf16_f32 v{A[4]+3}, v{A[4]+1}, v{A[5]+1}",
       mzero(M + 16, 4),
       f"ds_write2_b32 v{OW_}, v{A[4]+2}, v{A[4]+3} offset0:0 offset1:4", mzero(M, 16)] + ring +
      ["s_waitcnt lgkmcnt(0)", "s_barrier",
       f"ds_read_b128 {v(A[0],4)}, v{LM} offset:{L_O - LDS_MISC} ;@o0", mzero(M + 20, 4),
       f"ds_read_b128 {v(A[1],4)}, v{LM} offset:{L_O - LDS_MISC + 1024} ;@o1", mzero(M + 24, 4)] + [mzero(M + 28, 4)])
    E(stamp())
    oo = [(0, 0), (1, 0), (0, 1), (1, 1)] + [(tau, tp) for tau in range(2, 8) for tp in range(2)]
    om = [smf(M + 4*tau, A[tp], ("o", tau, tp)) for tau, tp in oo]
    D0, D1 = A[2], A[4]
    pk = lambda d, ta, b: f"v_cvt_pk_bf16_f32 v{d}, v{M+4*ta+b}, v{M+4*ta+4+b}"
    ad = lambda ta: [add(M + 4*ta, 0), add(M + 4*ta, 1)]
    G = Gaps()
    G.put("s", 1, "@wait lg=o1")
    for j, x in enumerate(tagged(ost[10:], "o5") + tagged(ost[:4], "o6") + tagged(ost[4:6], "o7") + tagged(ost[6:8], "o8")): G.put("d", j + (j >= 7), x)
    G.put("s", 14, "@wait lg=o8")
    G.put("s", 9, "@wait lg=o5"); G.put("s", 11, "@wait lg=o6"); G.put("s", 13, "@wait lg=o7")
    al = opt.get("al", 0)
    poll1 = lambda d, tg_: f"buffer_load_dword v{d}, v{FAD}, {WSD}, s{S_FREE1} offen sc1 ;@{tg_}"
    PR = [FLG, TCH, PA, PA + 1, PA + 2]
    if al == 1 and w == 0:
        body.insert(body.index({-3: sm[0], -2: sm[3], -1: z[0], 0: ost[8], 1: ost[9], 2: mzero(M, 16)}[opt.get("f1", 1)]) + 1, f"buffer_store_dword v{FV}, v{FST}, {WSD}, s{S_H1LD2} offen {st}")
    if al == 2: PR = PR2[:len(pg2)]
    if al == 1 and w == 1:
        body.insert(body.index(ring[-1]) + 1, poll1(PR[0], "p0"))
        body.insert(body.index(mzero(M + 24, 4)) + 1, poll1(PR[1], "p1"))
        for j, i in enumerate(opt.get("pg1", [0, 2, 4])): G.put("x" if i < 4 else "s", i, poll1(PR[j + 2], f"p{j+2}"))
    tg = lambda d: f"v_bfi_b32 v{d}, 1, s{S_TAG}, v{d}"
    if opt.get('wob', 0):
        stq = lambda q, D: f"buffer_store_dwordx2 {v(D,2)}, v{H1ST}, {WSD}, s{S_H1ST2 if q >> 1 else S_H1ST} offen offset:{64 * (q & 1)} {st}"
        for h, D in enumerate((D0, D1)):
            t0, g0 = 4 * h, 8 * h
            if h == 0: G.put("v", 4, *ad(0))
            else: G.put("v", 11, ad(4)[0]); G.put("v", 12, ad(4)[1])
            G.put("v", g0 + 5, *ad(t0 + 1))
            G.put("v", g0 + 6, pk(D, t0, 0))
            x = M + 4 * (t0 + 3)
            G.put("v", g0 + 7, pk(D + 1, t0, 1), tg(D), stq(2 * h, D), *ad(t0 + 2), "s_nop 0", f"v_pk_add_f32 {v(x,2)}, {v(x,2)}, {v(x+2,2)}",
                  pk(D + 2, t0 + 2, 0), pk(D + 3, t0 + 2, 1), tg(D + 2), stq(2 * h + 1, D + 2))
    else:
        for q in range(4):
            D = (D0, D0 + 2, D1, D1 + 2)[q]
            e, o_ = ad(2 * q), ad(2 * q + 1)
            stq = f"buffer_store_dwordx2 {v(D,2)}, v{H1ST}, {WSD}, s{S_H1ST2 if q >> 1 else S_H1ST} offen offset:{64 * (q & 1)} {st}"
            rest = [o_[0], o_[1], pk(D, 2 * q, 0), pk(D + 1, 2 * q, 1), tg(D)]
            if q == 0:
                G.put("v", 4, *e)
            elif q < 3:
                G.put("v", 4 * q + 3, e[0]); G.put("v", 4 * q + 4, e[1])
            if q < 3:
                n1 = opt.get("wo1", 2)
                G.put("v", 4 * q + 5, *rest[:n1]); G.put("v", 4 * q + 6, *rest[n1:])
                G.put("d", 4 * q + 7, stq)
            else:
                G.put("v", 15, *(e + ["s_nop 3"] + rest + [stq]))
    E(["@wait lg=o0"] + G.emit(om))
    E(stamp())
    house = ring2 + rs[PRE[r0]] + [mzero(A[i], 4) for i in (0, 1, 2)]
    mv = v_moves(VN) + [f"v_mov_b64 {v(VN+4,2)}, {v(A[3],2)}", f"v_mov_b64 {v(VN+6,2)}, {v(A[3]+2,2)}", mzero(A[3], 4), mzero(A[4], 4)]
    after = kxr + mv
    if al and w == 1:
        for j in range(len(PR)):
            E([f"@wait vm=p{j}" if al == 1 else f"@wait vm=p{len(PR)-1}" if j == 0 else "s_nop 0", f"v_cmp_gt_u32 vcc, s{S_STEP}, v{PR[j]}"] + (house[:3] if j == 0 else nops("d7")) +
              (["s_add_u32 s99, s99, 1"] if opt.get("count") else []) + [f"s_cbranch_vccz {L('al')}"])
        E(["s_nop 7", f"{L('al')}:", "s_barrier"])
    else:
        E(house[:3] + ["@wait vm=kv", "s_barrier"])
    if red:
        shots = h1l(M + 16) + (nops("d4") + h1l(M) if two else [])
        if w == 2:
            E(nops("d1") + stamp() + shots + house[3:] + after + ["s_waitcnt lgkmcnt(0)"] + reduce(M + 16, "ra") + [f"{L('rdone')}:"] + stamp() + nops("d2"))
        else:
            E((nops("d3") + stamp() + shots + house[3:] + after if opt.get("e3") else house[3:] + after + nops("d3") + stamp() + shots) + ["s_waitcnt lgkmcnt(0)"] + reduce(M + 16, "ra") + [f"{L('rdone')}:"] + stamp())
    else:
        E(stamp() + house[3:] + after + stamp() + (dump if opt.get('rt', w + 1) == w + 1 else []))
    if w < 2:
        E([mzero(A[5], 4)])
    if w == 0:
        E([f"v_add_u32 v{FV}, 1, v{FV}", f"v_cmp_eq_u32 s[{S_RDY}:{S_RDY+1}], 1, v{FLG}", f"s_add_u32 s{S_T2}, s{S_STEP}, 1", "s_nop 3",
           f"s_bitcmp1_b64 s[{S_RDY}:{S_RDY+1}], s{S_T2}", f"s_cbranch_scc0 {L('flag')}", f"{L('flagok')}:"])
    E(([] if red else ["s_waitcnt lgkmcnt(0)"] + ["s_barrier"] * opt.get("cp", 0)) + [f"s_branch {L('top')}"])
    if opt.get("free"):
        body = [x for x in body if not (x.startswith("s_cbranch_vccnz") or x.startswith("v_cmpx"))]
        body = [x.replace("s_cbranch_vccz " + L('al'), "s_branch " + L('al')) for x in body]
    if True:
        for pat in opt.get("drop", []):
            keep = lambda x: ("s_nop 0" if opt.get("keepslot") else None)
            tags = [x.split(";@")[1] for x in body if pat in x and ";@" in x]
            body = [x for x in body if pat not in x or x.endswith(":")]
            live = {x.split(";@")[1] for x in body if ";@" in x}
            nb = []
            for x in body:
                if x.startswith("@wait"):
                    t = [k for k in x.split()[1:] if k.split("=")[1] in live or k.split("=")[1] == "0"]
                    if t: nb.append("@wait " + " ".join(t))
                else: nb.append(x)
            body = nb
    body = resolve_waits(body)
    if opt.get("seg"):
        pos = [i for i, x in enumerate(body) if x.startswith(("v_mfma_f32_16x16x32", "v_smfmac"))]
        i0, i1 = opt["seg"]
        labels = [x for x in body if x.endswith(":")]
        cut = [x for x in body[pos[i0]:pos[i1]] if not x.endswith(":") and f"s{S_STEP}" not in x and "branch" not in x]
        body = labels + cut[:1] + [f"s_add_u32 s{S_STEP}, s{S_STEP}, 1", f"s_cmp_eq_u32 s{S_STEP}, 64", f"s_cbranch_scc1 {L('done')}"] + cut[1:] + [f"s_branch {L('top')}"]
    if opt.get("sw") and opt.get("rt") == w + 1:
        pos = [i for i, x in enumerate(body) if x.startswith(("v_mfma_f32_16x16x32", "v_smfmac"))]
        for k, o_ in reversed(list(enumerate(opt["sw"]))):
            if o_ < len(pos): body.insert(pos[o_] + 1, f"s_memtime s[{76+2*k}:{77+2*k}]")
    npad = [0]

    def pad(last=False):
        k = npad[0]; npad[0] += 1
        g(f"{L(f'pad{k}')}:\ns_branch " + (f"L_{tag}_warm1" if last else f"L_{tag}_warm0" if k == 3 else L(f"pad{k+1}")))
    if red and opt.get("rotl", 0) and not opt.get("seg"):
        i = body.index(f"{L('ra')}:")
        body = body[i:-1] + body[:i] + [f"s_branch {L('ra')}"]
    body, left = align_body(body)
    g(f"s_branch {L('top')}")
    pad()
    g(".p2align 5")
    for x in body: g(x)
    bad = hazard.check(body + body[:40], f"chain w{w}") if not (opt.get("drop") or opt.get("seg")) else []
    m1 = g.mark()
    strip = lambda lst: [x.split(";@")[0] for x in lst]
    cnt = lambda out: f"s_add_u32 s{S_SPIN}, s{S_SPIN}, 1\ns_cmp_gt_u32 s{S_SPIN}, {SPIN_MAX}\ns_cbranch_scc1 {out}"
    dbg = lambda k: (f"s_add_u32 s{96+k}, s{96+k}, 1" if opt.get("count") else "")
    anysent = [f"v_mov_b32 v{PA}, 0"] + [f"v_max3_u32 v{PA}, v{PA}, v{M+2*i}, v{M+2*i+1}" for i in range(16)] + [f"v_cmp_eq_u32 vcc, s{S_SENT}, v{PA}"]
    pad()
    if red:
        g(f"{L('rano')}:\n{dbg(2)}\n{cnt(L('raok'))}")
        for x in h1l(M + 16): g(x)
        if two:
            for x in reduce(M, "rb") + [f"s_branch {L('rdone')}", f"{L('rbno')}:", dbg(3)] + h1l(M): g(x)
        g(f"s_branch {L('ra')}")
    for r in range(4):
        if not opt.get("kb", 10): g(f"{L(f'late{r}')}:\n{cnt(L(f'lok{r}'))}\ns_branch {L('restart')}")
        if opt.get("e1", 7): g(f"{L(f'soon{r}')}:\n{cnt(L(f'sok{r}'))}\ns_branch {L('restart')}")
    g(f"{L('restart')}:\n{dbg(1)}\ns_waitcnt lgkmcnt(0)")
    for x in strip(rs[PRE[r0]]) + [mzero(A[i], 4) for i in range(6)] + [f"s_branch {L('again')}"]: g(x)
    path = list(top_part)
    for j in range(4):
        r, nx = (r0 + j) & 3, (r0 + j + 1) & 3
        part = ([f"{L(f'no{r}')}:"] + ([dbg(0)] if opt.get("count") else []) + (cnt(L(f"go{r}")).split("\n") if j == 3 else []) + [cl[r], dma if j == 3 and opt.get("dtop") else h2st(M + 16) if j == 0 and late_st else "s_nop 0"] +
                (rs[PRE[nx]] if PRE[nx] != PRE[r] else ["s_nop 3"]) + [mzero(A[0], 4), mzero(A[1], 4), "s_nop 0"])
        hd = head(nx) + [f"s_branch {L('j20')}"] if j < 3 else [f"s_branch {L(f'c{r0}')}"]
        res = resolve_waits(path + part + hd, loop=False)[len(path):]
        path = path + part
        bad += hazard.check(mm[:2] + ["s_branch x"] + res + (mm[24:28] if j < 3 else mm[:2]), f"chain head {r} w{w}")
        res, _ = align_body(res)
        pad()
        g(".p2align 5")
        for x in res: g(x)
    m1 = g.mark()
    g(f"{L('nan')}:\n" + ("s_add_u32 s97, s97, 0x10000" if opt.get("count") else ""))
    for x in anysent: g(x)
    g(f"s_cbranch_vccz {L('nanok')}\n{L('nanl')}:")
    for x in [mld(t) for t in range(8)] + ["s_waitcnt vmcnt(0)"] + anysent: g(x)
    g(f"s_cbranch_vccz {L('nanr')}\n{cnt(L('nanr'))}\ns_branch {L('nanl')}\n{L('nanr')}:\ns_waitcnt lgkmcnt(0)")
    for x in zero(ACC, 24): g(x)
    for i in range(41):
        for r_ in range(5):
            if order[i] == G_R[r_][0]:
                for x in strip(rs[r_]) + ["s_waitcnt lgkmcnt(0)"]: g(x)
        g(mm[i])
    for x in strip(rs[5][:2] + qfin) + ["s_waitcnt lgkmcnt(0)", f"s_branch {L('nanok')}"]: g(x)
    bad += hazard.check(g.lines[m1:], f"chain rare w{w}")
    pad(True)
    if w == 0:
        g(f"{L('flag')}:")
        wait_flag(g, f"{tag}{w}_f1", S_T2)
        g(f"s_branch {L('flagok')}")
    g(f"{L('done')}:\n{pub}")
    if w == 0: dbg_time(g, opt, 5)
    if opt.get("count"):
        g(f"""
        s_memtime s[94:95]
        s_memrealtime s[74:75]
        s_waitcnt lgkmcnt(0)
        
        s_sub_u32 s94, s94, s92
        v_mov_b32 v40, s96
        v_mov_b32 v41, s97
        v_mov_b32 v42, s98
        v_mov_b32 v43, s94
        s_lshl_b32 s{S_T0}, s{S_TK}, 2
        s_add_u32 s{S_T0}, s{S_T0}, {w}
        s_lshl_b32 s{S_T0}, s{S_T0}, 12
        s_add_u32 s{S_T0}, s{S_T0}, {WS_STAMP}
        v_mov_b32 v44, 0
        v_mov_b32 v46, s99
        v_mov_b32 v47, s14
        v_mov_b32 v48, s15
        v_mov_b32 v49, s74
        buffer_store_dwordx4 v[40:43], v44, {WSD}, s{S_T0} offen
        v_mov_b32 v50, s2
        buffer_store_dword v50, v44, {WSD}, s{S_T0} offen offset:32
        buffer_store_dwordx4 v[46:49], v44, {WSD}, s{S_T0} offen offset:16
        """)
    g("s_waitcnt vmcnt(0)\ns_endpgm")
    return bad


def chain_role(g, st, tag, opt):
    m0 = g.mark()
    if opt.get("count"):
        g("s_mov_b32 s96, 0\ns_mov_b32 s97, 0\ns_mov_b32 s98, 0\ns_mov_b32 s99, 0")
    g(f"s_cmp_lg_u32 s{S_WAVE}, 0\ns_cbranch_scc1 L_dt" if opt.get("dbgt") else "")
    if opt.get("dbgt"):
        g(f"s_not_b32 s88, s14\nv_mov_b32 v90, 12\nv_mov_b32 v91, s88\ns_mov_b64 exec, 1\nglobal_atomic_umax v90, v91, s[{P_DBG}:{P_DBG+1}]\ns_mov_b64 exec, -1\nL_dt:")
    setup_early(g, st)
    arrive = lambda off=DBG_TEAM: g(f"""
    s_cmp_lg_u32 s{S_WAVE}, 0
    s_cbranch_scc1 L_{tag}_arrived{off}
    v_mov_b32 v56, {off}
    v_mov_b32 v57, 1
    s_mov_b64 exec, 1
    global_atomic_add v56, v57, s[{P_DBG}:{P_DBG+1}]
    s_mov_b64 exec, -1
    L_{tag}_arrived{off}:
    """)
    def code_touch():
        g(f"""
        s_getpc_b64 s[{S_RDY}:{S_RDY+1}]
        L_{tag}_pc:
        s_add_u32 s{S_RDY}, s{S_RDY}, L_{tag}_w0-L_{tag}_pc
        s_addc_u32 s{S_RDY+1}, s{S_RDY+1}, 0
        v_lshlrev_b32 v56, 7, v0
        v_min_u32 v56, L_{tag}_end-L_{tag}_w0-4, v56
        global_load_dword v57, v56, s[{S_RDY}:{S_RDY+1}]
        """)

    def warm(k):
        for w in range(3):
            g(f"s_cmp_eq_u32 s{S_WAVE}, {w}\ns_cbranch_scc1 L_{tag}{w}_pad{4*k}")
        g(f"s_branch L_{tag}3_pad{4*k}\nL_{tag}_warm{k}:")

    assert DBG_INIT == DBG_TEAM + 4
    ask = f"global_load_dwordx2 v[60:61], v58, s[{P_DBG}:{P_DBG+1}] sc1"

    def counters():
        g(f"""
        L_{tag}_cnt:
        v_cmp_gt_u32 vcc, 32, v60
        v_cmp_gt_u32 s[{S_RDY}:{S_RDY+1}], s{S_T2}, v61
        s_add_u32 s{S_SPIN}, s{S_SPIN}, 1
        s_cmp_gt_u32 s{S_SPIN}, {SPIN_MAX}
        s_cbranch_scc1 L_{tag}_cntok
        s_or_b64 vcc, vcc, s[{S_RDY}:{S_RDY+1}]
        s_cbranch_scc0 L_{tag}_cntok
        {ask}
        s_waitcnt vmcnt(0)
        s_branch L_{tag}_cnt
        L_{tag}_cntok:
        v_and_b32 v58, 1, v0
        v_lshlrev_b32 v58, 2, v58
        """)
    flg = f"buffer_load_dword v59, v58, s[{S_WS}:{S_WS+3}], s{S_FL} offen sc1"

    def first_kv():
        g(f"""
        L_{tag}_fl:
        v_cmp_ne_u32 vcc, 1, v59
        s_add_u32 s{S_SPIN}, s{S_SPIN}, 1
        s_cmp_gt_u32 s{S_SPIN}, {SPIN_MAX}
        s_cbranch_scc1 L_{tag}_flok
        s_cbranch_vccz L_{tag}_flok
        {flg}
        s_waitcnt vmcnt(0)
        s_branch L_{tag}_fl
        L_{tag}_flok:
        s_lshl_b32 s{S_T0}, s{S_WAVE}, 11
        s_add_u32 m0, s{S_T0}, {L_KX}
        s_add_u32 s{S_T0}, s{S_T0}, s{S_KV}
        s_add_u32 s{S_T1}, s{S_T0}, 8192
        """)
        for x in range(2):
            g(f"buffer_load_dwordx4 v{LM}, s[{S_WS}:{S_WS+3}], s{S_T0} offen offset:{x*1024} lds")
            g(f"buffer_load_dwordx4 {v(VN+4*x,4)}, v{LM}, s[{S_WS}:{S_WS+3}], s{S_T1} offen offset:{x*1024}")
    hooks = {0: lambda: store_mem0(g, st), 2: code_touch, 5: arrive, 8: lambda: warm(0), 10: lambda: warm(1),
             22: lambda: g(f"v_mov_b32 v58, {DBG_TEAM}\ns_mov_b32 s{S_T2}, {0 if opt.get('chainonly') else 224}\n{ask}"),
             24: lambda: g(f"v_lshlrev_b32 v56, 6, v0\nbuffer_load_dword v57, v56, s[{S_WS}:{S_WS+3}], s{S_H2LD} offen sc1"),
             27: counters, 30: lambda: g(flg), 31: first_kv}
    load_weights(g, hooks, opt.get("wnt", ""), "oqkv")
    if opt.get("count"): g("s_memrealtime s[90:91]\ns_waitcnt lgkmcnt(0)\ns_mov_b32 s2, s90")
    setup_late(g)
    bad = hazard.check(g.lines[m0:], "chain prologue")
    for w in range(1, 4):
        g(f"s_cmp_eq_u32 s{S_WAVE}, {w}\ns_cbranch_scc1 L_{tag}_w{w}")
    for w in range(4):
        g(f"L_{tag}_w{w}:")
        bad += wave_loop(g, w, st, tag, opt)
    g(f"L_{tag}_end:")
    return bad
```

```python
from asmlib import *
from layout import *
from chain import (S_WS, S_W, P_X, P_WQ, P_WK, P_WV, P_WO, P_WG, P_WU, P_WD, P_OUT, P_DBG, S_XCC, S_TK, S_WAVE,
                   S_T0, S_T1, S_T2, S_T3, SPIN_MAX, set_srd, S_SPIN, S_SENT, dbg_time)

WSD = f"s[{S_WS}:{S_WS+3}]"
WD = f"s[{S_W}:{S_W+3}]"
S_WI, S_COL, S_SEG, S_HD, S_NXT, S_XO, S_O1, S_O2, S_FA, S_PREV, S_LB, S_C0, S_C1, S_C2 = range(51, 65)
S_R, S_IT = 65, 66
S_OUT = 68
S_MK = 72
RING = 65536
NROWG = 5


def rg(f, b, n):
    return a(b, n) if f == "a" else v(b, n)


def mf32(d, x, y, first):
    return f"v_mfma_f32_32x32x16_bf16 {v(d,16)}, {x}, {y}, " + ("0" if first else v(d, 16))


def mf16(d, x, y, first):
    return f"v_mfma_f32_16x16x32_bf16 {v(d,4)}, {x}, {y}, " + ("0" if first else v(d, 4))


def spin_counter(g, tag, off, target, sleep=2):
    g(f"""
    v_mov_b32 v10, {off}
    L_{tag}:
    global_load_dword v11, v10, s[{P_DBG}:{P_DBG+1}] sc1
    s_add_u32 s{S_SPIN}, s{S_SPIN}, 1
    s_cmp_gt_u32 s{S_SPIN}, {SPIN_MAX}
    s_cbranch_scc1 L_{tag}_out
    s_waitcnt vmcnt(0)
    v_cmp_gt_u32 vcc, {target}, v11
    s_cbranch_vccz L_{tag}_out
    s_sleep {sleep}
    s_branch L_{tag}
    L_{tag}_out:
    s_waitcnt vmcnt(0)
    """)


def spin_flags(g, tag, vaddr, soff, sleep=1):
    g(f"""
    L_{tag}:
    buffer_load_dword v11, v{vaddr}, {WSD}, s{soff} offen sc1
    s_add_u32 s{S_SPIN}, s{S_SPIN}, 1
    s_cmp_gt_u32 s{S_SPIN}, {SPIN_MAX}
    s_cbranch_scc1 L_{tag}_out
    s_waitcnt vmcnt(0)
    v_cmp_ne_u32 vcc, 1, v11
    s_cbranch_vccz L_{tag}_out
    {f's_sleep {sleep}' if sleep else ''}
    s_branch L_{tag}
    L_{tag}_out:
    s_waitcnt vmcnt(0)
    """)


def count_up(g, tag, off, wait=True):
    if wait: g("s_waitcnt vmcnt(0)\ns_barrier")
    g(f"""
    s_cmp_lg_u32 s{S_WAVE}, 0
    s_cbranch_scc1 L_{tag}
    v_mov_b32 v10, {off}
    v_mov_b32 v11, 1
    s_mov_b64 exec, 1
    global_atomic_add v10, v11, s[{P_DBG}:{P_DBG+1}]
    s_mov_b64 exec, -1
    L_{tag}:
    """)


def set_flag(g, tag, soff, st="sc1"):
    g(f"""
    s_cmp_lg_u32 s{S_WAVE}, 0
    s_cbranch_scc1 L_{tag}
    v_mov_b32 v10, 0
    v_mov_b32 v11, 1
    s_mov_b64 exec, 1
    buffer_store_dword v11, v10, {WSD}, s{soff} offen {st}
    s_mov_b64 exec, -1
    L_{tag}:
    """)


def wstamp(g, opt, i, dump=False):
    if not opt.get("count"): return
    g(f"s_waitcnt vmcnt(0)" if dump else "")
    g(f"s_memrealtime s[88:89]\ns_waitcnt lgkmcnt(0)\ns_mov_b32 s{90+i}, s88")
    if dump:
        for k in range(5): g(f"v_mov_b32 v{21+k}, s{90+k}")
        g(f"""
        v_mov_b32 v20, s14
        s_lshl_b32 s{S_T0}, s{S_WI}, 5
        s_add_u32 s{S_T0}, s{S_T0}, {WS_STAMP - 8192}
        v_mov_b32 v10, 0
        buffer_store_dwordx4 v[20:23], v10, {WSD}, s{S_T0} offen
        buffer_store_dwordx2 v[24:25], v10, {WSD}, s{S_T0} offen offset:16
        """)


def pstamp(g, opt, i):
    if not opt.get("pst"): return
    g(f"""
    s_memrealtime s[88:89]
    s_lshl_b32 s96, s{S_XCC}, 5
    s_add_u32 s96, s96, s{S_TK}
    s_sub_u32 s96, s96, 32
    s_lshl_b32 s96, s96, 6
    s_add_u32 s96, s96, s{S_SEG}
    s_lshl_b32 s96, s96, 6
    s_add_u32 s96, s96, {96*MB + 4*i}
    s_waitcnt lgkmcnt(0)
    v_mov_b32 v18, s88
    v_mov_b32 v19, 0
    s_mov_b64 exec, 1
    buffer_store_dword v18, v19, {WSD}, s96 offen
    s_mov_b64 exec, -1
    s_waitcnt vmcnt(0)
    """)


def worker_init(g):
    g(f"""
    s_sub_u32 s{S_T0}, s{S_XCC}, 1
    s_min_u32 s{S_T1}, s{S_T0}, 4
    s_mul_i32 s{S_T1}, s{S_T1}, 5
    s_mul_i32 s{S_T2}, s{S_T0}, 20
    s_add_u32 s{S_T2}, s{S_T2}, s{S_T1}
    s_cmp_lt_u32 s{S_T0}, 4
    s_cselect_b32 s{S_T3}, 25, 20
    s_add_u32 s{S_WI}, s{S_T2}, s{S_TK}
    s_cmp_lt_u32 s{S_TK}, s{S_T3}
    s_cbranch_scc1 L_wi
    s_sub_u32 s{S_T1}, s{S_TK}, s{S_T3}
    s_sub_u32 s{S_T3}, 30, s{S_T3}
    s_mul_i32 s{S_WI}, s{S_T0}, 30
    s_sub_u32 s{S_WI}, s{S_WI}, s{S_T2}
    s_add_u32 s{S_WI}, s{S_WI}, s{S_T1}
    s_add_u32 s{S_WI}, s{S_WI}, 160
    s_cmp_lt_u32 s{S_T1}, s{S_T3}
    s_cbranch_scc1 L_wi
    s_lshl_b32 s{S_WI}, s{S_T0}, 1
    s_add_u32 s{S_WI}, s{S_WI}, s{S_TK}
    s_add_u32 s{S_WI}, s{S_WI}, {210 - 30}
    L_wi:
    """)


def worker_fill(g):
    g(f"""
    s_sub_u32 s{S_T0}, s{S_XCC}, 1
    v_mov_b64 v[12:13], s[{S_SENT}:{S_SENT+1}]
    v_mov_b64 v[14:15], s[{S_SENT}:{S_SENT+1}]
    v_lshlrev_b32 v10, 4, v0
    s_cmp_eq_u32 s{S_T0}, 0
    s_cselect_b32 s{S_T1}, 63, 64
    s_cmp_eq_u32 s{S_T0}, 6
    s_cselect_b32 s{S_T1}, 62, s{S_T1}
    s_lshl_b32 s{S_T1}, s{S_T1}, 17
    s_lshl_b32 s{S_T2}, s{S_TK}, 12
    s_add_u32 s{S_T1}, s{S_T1}, s{S_T2}
    s_add_u32 s{S_T1}, s{S_T1}, {WS_PUB}
    buffer_store_dwordx4 v[12:15], v10, {WSD}, s{S_T1} offen sc1
    """)
    g(f"""
    v_mov_b32 v11, 0
    v_mul_u32_u24 v10, 7, v0
    v_add_u32 v10, s{S_T0}, v10
    v_cmp_gt_u32 vcc, 64, v10
    v_lshlrev_b32 v10, 7, v10
    s_lshl_b32 s{S_T1}, s{S_TK}, 2
    s_add_u32 s{S_T1}, s{S_T1}, {WS_OF}
    v_mov_b32 v12, 0x40000000
    v_cndmask_b32 v10, v12, v10, vcc
    buffer_store_dword v11, v10, {WSD}, s{S_T1} offen sc1
    """)


def clear_flags(g, shift):
    g(f"""
    v_mov_b32 v11, 0
    v_mul_u32_u24 v10, {NROWG}, v0
    v_add_u32 v10, s{S_SEG}, v10
    v_cmp_gt_u32 vcc, 64, v10
    v_lshlrev_b32 v10, {shift}, v10
    v_mov_b32 v12, 0x40000000
    v_cndmask_b32 v10, v12, v10, vcc
    buffer_store_dword v11, v10, {WSD}, s{S_FA} offen sc1
    """)


def layernorm(g, seg):
    X, T = 16, 80
    set_srd(g, P_X, 2 * MB)
    g(f"""
    v_lshrrev_b32 v1, 3, v0
    v_and_b32 v2, 7, v0
    v_lshlrev_b32 v3, 10, v1
    v_lshl_add_u32 v3, v2, 4, v3
    s_lshl_b32 s{S_T0}, s{seg}, 15
    """)
    for j in range(8):
        g(f"buffer_load_dwordx4 {v(T+4*j,4)}, v3, {WD}, s{S_T0} offen offset:{128*j}")
    g(f"""
    v_lshrrev_b32 v4, 1, v2
    v_lshlrev_b32 v4, 10, v4
    v_and_b32 v5, 1, v2
    v_lshl_add_u32 v4, v5, 9, v4
    v_lshl_add_u32 v4, v1, 4, v4
    s_add_u32 s{S_T0}, s{S_T0}, {WS_XN}
    s_mov_b32 s{S_T1}, 0xffff0000
    s_waitcnt vmcnt(0)
    """)
    for i in range(32):
        g(f"v_lshlrev_b32 v{X+2*i}, 16, v{T+i}\nv_and_b32 v{X+2*i+1}, s{S_T1}, v{T+i}")

    def reduce8(r):
        for m in ("quad_perm:[1,0,3,2]", "quad_perm:[2,3,0,1]", "row_half_mirror"):
            g(f"s_nop 1\nv_add_f32_dpp v{r}, v{r}, v{r} {m} row_mask:0xf bank_mask:0xf")

    g(f"v_pk_add_f32 v[6:7], {v(X,2)}, {v(X+2,2)}")
    for i in range(2, 32):
        g(f"v_pk_add_f32 v[6:7], v[6:7], {v(X+2*i,2)}")
    g("v_add_f32 v6, v6, v7")
    reduce8(6)
    g(f"v_mul_f32 v6, 0x3b000000, v6\nv_mov_b32 v8, 0\nv_mov_b32 v9, 0")
    for i in range(64):
        g(f"v_sub_f32 v7, v{X+i}, v6\nv_fmac_f32 v{8+(i&1)}, v7, v7")
    g("v_add_f32 v8, v8, v9")
    reduce8(8)
    g(f"""
    v_mul_f32 v8, 0x3b000000, v8
    v_cvt_pk_bf16_f32 v6, v6, v8
    v_and_b32 v8, s{S_T1}, v6
    v_lshlrev_b32 v6, 16, v6
    v_add_f32 v8, 0x3727c5ac, v8
    v_cvt_pk_bf16_f32 v8, v8, v8
    v_and_b32 v8, s{S_T1}, v8
    v_sqrt_f32 v8, v8
    s_nop 0
    v_cvt_pk_bf16_f32 v8, v8, v8
    v_and_b32 v8, s{S_T1}, v8
    v_rcp_f32 v8, v8
    """)
    for i in range(32):
        p = X + 2 * i
        g(f"""
        v_sub_f32 v{p}, v{p}, v6
        v_sub_f32 v{p+1}, v{p+1}, v6
        v_cvt_pk_bf16_f32 v{p}, v{p}, v{p+1}
        v_and_b32 v{p+1}, s{S_T1}, v{p}
        v_lshlrev_b32 v{p}, 16, v{p}
        v_mul_f32 v{p}, v{p}, v8
        v_mul_f32 v{p+1}, v{p+1}, v8
        v_cvt_pk_bf16_f32 v{T+i}, v{p}, v{p+1}
        """)
        if i % 4 == 3:
            g(f"buffer_store_dwordx4 {v(T+i-3,4)}, v4, {WSD}, s{S_T0} offen sc1\ns_add_u32 s{S_T0}, s{S_T0}, 4096")


def load_w32(g, mats, stride, touch, hook=None, setup=True):
    DM, RT, RN = 13, 14, 15
    if setup: g(f"""
    v_and_b32 v4, 63, v0
    v_lshrrev_b32 v5, 4, v4
    v_and_b32 v6, 15, v4
    v_lshlrev_b32 v7, 2, v5
    v_xor_b32 v6, v6, v7
    v_lshlrev_b32 v{DM}, 4, v6
    s_lshl_b32 s{S_T0}, s{S_WAVE}, 4
    v_add_u32 v6, s{S_T0}, v5
    v_mul_u32_u24 v6, {stride}, v6
    v_add3_u32 v{DM}, v{DM}, v6, s{S_COL}
    v_bfe_u32 v6, v4, 2, 2
    v_xor_b32 v7, s{S_WAVE}, v6
    v_lshlrev_b32 v7, 6, v7
    v_lshl_add_u32 v7, v6, 8, v7
    v_lshrrev_b32 v6, 5, v4
    v_lshl_add_u32 v7, v6, 11, v7
    v_add_u32 v7, {RING}, v7
    v_and_b32 v5, 1, v5
    v_and_b32 v6, 3, v4
    v_lshl_add_u32 v{RN}, v5, 5, v7
    v_lshl_add_u32 v{RN}, v6, 3, v{RN}
    v_lshl_add_u32 v{RT}, v5, 4, v7
    v_and_b32 v6, 1, v4
    v_lshl_add_u32 v{RT}, v6, 3, v{RT}
    v_bfe_u32 v6, v4, 1, 1
    v_lshl_add_u32 v{RT}, v6, 5, v{RT}
    s_lshl_b32 s{S_T3}, s{S_WAVE}, 12
    s_add_u32 s{S_T3}, s{S_T3}, {RING}
    """)
    if touch is not None:
        g(f"""
        s_mul_i32 s{S_T1}, s{S_SEG}, 104
        s_mul_i32 s{S_T2}, s{S_WAVE}, 26
        s_add_u32 s{S_T1}, s{S_T1}, s{S_T2}
        v_lshrrev_b32 v5, 1, v4
        v_min_u32 v5, 25, v5
        v_add_u32 v5, s{S_T1}, v5
        v_mul_u32_u24 v5, {stride}, v5
        v_and_b32 v6, 1, v4
        v_lshl_add_u32 v5, v6, 7, v5
        """)
        for m in mats:
            set_srd(g, m[0], m[1])
            g(f"buffer_load_dword v127, v5, {WD}, s{S_COL} offen {touch}")
    stages = [(m, S) for m in mats for S in range(8)]

    def issue(i):
        m, S = stages[i]
        if S == 0: set_srd(g, m[0], m[1])
        for x in range(4):
            g(f"s_add_u32 m0, s{S_T3}, {(i % 4) * 16384 + x * 1024}\ns_mov_b32 s{S_T0}, {(64 * S + 4 * x) * stride}")
            g(f"buffer_load_dwordx4 v{DM}, {WD}, s{S_T0} offen lds")

    for i in range(3): issue(i)
    for i, (m, S) in enumerate(stages):
        g(f"s_waitcnt vmcnt({4 * min(2, len(stages) - 1 - i)}) lgkmcnt(0)\ns_barrier")
        if hook and i == 0: hook()
        if i + 3 < len(stages): issue(i + 3)
        for ks in range(4):
            for x in range(2):
                g(f"ds_read_b64_tr_b16 {rg(m[2], m[3] + 4*(4*S+ks) + 2*x, 2)}, v{RT if m[4] else RN} offset:{(i % 4)*16384 + ks*4096 + x*1024}")
    g("s_waitcnt lgkmcnt(0)")


def xn_dma():
    out = [[f"s_lshl_b32 s{S_T2}, s{S_NXT}, 15", f"s_add_u32 s{S_T2}, s{S_T2}, s{S_XO}"]]
    for hh in range(2):
        out[-1] += [f"s_add_u32 m0, s{S_LB}, {hh*4096}", f"s_add_u32 s{S_T1}, s{S_T2}, {hh*4096}"]
        for x in range(4):
            out[-1] += [f"buffer_load_dwordx4 v1, {WSD}, s{S_T1} offen offset:{x*1024} sc1 lds"]
            out.append([])
    out[-1] += [f"s_xor_b32 s{S_LB}, s{S_LB}, 32768"]
    return out


def gemm_loop(g, tag, mats, stores, epilogue, first=None):
    XF, ACC = 16, 32
    g(f"""
    v_and_b32 v4, 63, v0
    v_lshlrev_b32 v1, 4, v4
    v_mov_b32 v2, v1
    s_lshl_b32 s{S_LB}, s{S_WAVE}, 13
    s_add_u32 s{S_XO}, s{S_LB}, {WS_XN}
    s_mov_b32 s{S_PREV}, -1
    s_mov_b32 s{S_O1}, 0x40000000
    s_mov_b32 s{S_O2}, 0x40000000
    s_mov_b32 s{S_NXT}, s{S_SEG}
    s_mov_b32 s{S_R}, s{S_SEG}
    s_mov_b32 s{S_IT}, 0
    """)
    spin_counter(g, f"{tag}_ln", DBG_LN, 64)
    for x in sum(xn_dma(), []): g(x)
    g(f"L_{tag}_seg:")
    m0 = g.mark()
    g(f"""
    s_add_u32 s{S_NXT}, s{S_SEG}, {NROWG}
    s_cmp_lt_u32 s{S_NXT}, {NSEG}
    s_cselect_b32 s{S_NXT}, s{S_NXT}, s{S_R}
    s_waitcnt vmcnt(0)
    s_barrier
    """)
    rd = lambda ks: f"ds_read_b128 {v(XF+4*(ks%4),4)}, v2 offset:{ks*1024}"
    for ks in range(3): g(rd(ks))
    side = [[x] for x in stores] + xn_dma()
    for ks in range(32):
        g(f"s_waitcnt lgkmcnt({min(2, 31-ks)})")
        for j, m in enumerate(mats):
            w_, x_ = rg(m[2], m[3] + 4*ks, 4), v(XF + 4*(ks % 4), 4)
            g(mf32(ACC + 16*j, w_, x_, ks == 0) if m[4] else mf32(ACC + 16*j, x_, w_, ks == 0))
            if j == 0 and ks + 3 < 32: g(rd(ks + 3))
            if j == 1 and side:
                for x in side.pop(0): g(x)
        if ks == 24 and first:
            g(f"s_cmp_lt_i32 s{S_PREV}, 0\ns_cbranch_scc1 L_{tag}_nf\ns_waitcnt vmcnt(8)\ns_barrier")
            set_flag(g, f"{tag}_nf", S_PREV)
    g("v_xor_b32 v2, 0x8000, v2\ns_nop 7\ns_nop 1")
    epilogue(ACC)
    bad = hazard.check(g.lines[m0:] + g.lines[m0:m0 + 40], tag)
    if first:
        g(f"""
        s_lshl_b32 s{S_PREV}, s{S_SEG}, 2
        s_add_u32 s{S_PREV}, s{S_PREV}, s{S_FA}
        s_cmp_eq_u32 s{S_SEG}, s{S_R}
        s_mov_b32 s{S_SEG}, s{S_NXT}
        s_cbranch_scc0 L_{tag}_seg
        s_cmp_lg_u32 s{S_IT}, 0
        s_cbranch_scc1 L_{tag}_last
        s_mov_b32 s{S_IT}, 1
        """)
        for x in stores[:4]: g(x)
        first(lambda: set_flag(g, f"{tag}_ff", S_PREV))
        g(f"s_mov_b32 s{S_PREV}, -1\ns_mov_b32 s{S_O1}, 0x40000000\ns_mov_b32 s{S_O2}, 0x40000000\ns_branch L_{tag}_seg\nL_{tag}_last:")
        for x in stores[4:]: g(x)
    else:
        g(f"s_mov_b32 s{S_SEG}, s{S_NXT}\ns_cmp_lg_u32 s{S_SEG}, s{S_R}\ns_cbranch_scc1 L_{tag}_seg")
        for x in stores: g(x)
    count_up(g, f"{tag}_done", DBG_ADONE)
    return bad


def tile_addr(g, dst, tshift):
    g(f"""
    v_bfe_u32 v5, v0, 4, 1
    v_mul_u32_u24 v{dst}, {tshift}, v5
    v_bfe_u32 v5, v0, 5, 1
    v_lshl_add_u32 v{dst}, v5, 8, v{dst}
    v_and_b32 v5, 15, v0
    v_lshl_add_u32 v{dst}, v5, 4, v{dst}
    s_lshl_b32 s{S_T0}, s{S_WAVE}, 10
    v_add_u32 v{dst}, s{S_T0}, v{dst}
    """)


def qkv_role(g, opt):
    mats = [(P_WK, 4*MB, "a", 0, 1), (P_WV, 4*MB, "a", 128, 0), (P_WQ, 4*MB, "v", 128, 1)]
    m0 = g.mark()
    g(f"""
    s_mul_i32 s{S_HD}, s{S_WI}, 52429
    s_lshr_b32 s{S_HD}, s{S_HD}, 18
    s_mul_i32 s{S_T0}, s{S_HD}, {NROWG}
    s_sub_u32 s{S_SEG}, s{S_WI}, s{S_T0}
    s_lshl_b32 s{S_COL}, s{S_HD}, 8
    s_add_u32 s{S_FA}, s{S_COL}, {WS_FLAGS}
    """)
    wstamp(g, opt, 0)
    worker_fill(g)
    clear_flags(g, 2)
    load_w32(g, mats[:2], 8192, opt.get("touch"), lambda: count_up(g, "qkv_in", DBG_INIT, False))
    wstamp(g, opt, 1)
    tile_addr(g, 8, 4096)
    g(f"""
    v_bfe_u32 v5, v0, 4, 1
    v_lshlrev_b32 v9, 10, v5
    v_bfe_u32 v5, v0, 5, 1
    v_lshl_add_u32 v9, v5, 9, v9
    v_and_b32 v5, 15, v0
    v_lshl_add_u32 v9, v5, 4, v9
    s_lshl_b32 s{S_T0}, s{S_WAVE}, 11
    s_add_u32 s{S_T0}, s{S_T0}, 8192
    v_add_u32 v9, s{S_T0}, v9
    """)
    bad = hazard.check(g.lines[m0:], "qkv prologue")

    def epi(ACC):
        P = 80
        g(f"""
        s_lshl_b32 s{S_O1}, s{S_SEG}, 5
        s_add_u32 s{S_O1}, s{S_O1}, s{S_HD}
        s_lshl_b32 s{S_O2}, s{S_O1}, 13
        s_add_u32 s{S_O2}, s{S_O2}, {WS_Q}
        s_lshl_b32 s{S_O1}, s{S_O1}, 14
        s_add_u32 s{S_O1}, s{S_O1}, {WS_KV}
        """)
        for rho in range(2):
            for x in range(4): g(f"v_cvt_pk_bf16_f32 v{P+4*rho+x}, v{ACC+8*rho+x}, v{ACC+8*rho+4+x}")
        for be in range(2):
            for ri in range(4):
                r = ACC + 16 + 8*(ri & 1) + 4*(ri >> 1) + 2*be
                g(f"v_cvt_pk_bf16_f32 v{P+8+4*be+ri}, v{r}, v{r+1}")
        for rho in range(2):
            for x in range(4): g(f"v_cvt_pk_bf16_f32 v{P+16+4*rho+x}, v{ACC+32+8*rho+x}, v{ACC+32+8*rho+4+x}")

    stores = ([f"buffer_store_dwordx4 {v(80+4*x,4)}, v8, {WSD}, s{S_O1} offen offset:{512*x} sc1" for x in range(2)] +
              [f"buffer_store_dwordx4 {v(88+4*x,4)}, v9, {WSD}, s{S_O1} offen offset:{256*x} sc1" for x in range(2)] +
              [f"buffer_store_dwordx4 {v(96+4*x,4)}, v8, {WSD}, s{S_O2} offen offset:{512*x} sc1" for x in range(2)])
    return bad + gemm_loop(g, "qkv", mats, stores, epi, lambda hook: load_w32(g, mats[2:], 8192, None, hook, False))


def ffn_role(g, opt):
    mats = [(P_WG, 512*2752, "a", 0, 1), (P_WU, 512*2752, "a", 128, 1)]
    m0 = g.mark()
    g(f"""
    s_sub_u32 s{S_O1}, s{S_WI}, 160
    s_mul_i32 s{S_HD}, s{S_O1}, 52429
    s_lshr_b32 s{S_HD}, s{S_HD}, 18
    s_mul_i32 s{S_T0}, s{S_HD}, {NROWG}
    s_sub_u32 s{S_SEG}, s{S_O1}, s{S_T0}
    s_lshl_b32 s{S_COL}, s{S_HD}, 8
    """)
    worker_fill(g)
    layernorm(g, S_O1)
    count_up(g, "ffn_lnup", DBG_LN)
    count_up(g, "ffn_in", DBG_INIT, False)
    wstamp(g, opt, 0)
    if opt.get("pf2"):
        set_srd(g, P_WQ, 4 * MB)
        g(f"v_lshlrev_b32 v4, 7, v0\ns_lshl_b32 s{S_T0}, s{S_O1}, 16")
        for x in range(2): g(f"buffer_load_dword v127, v4, {WD}, s{S_T0} offen\ns_add_u32 s{S_T0}, s{S_T0}, 32768")
    g(f"s_cmp_ge_u32 s{S_HD}, 11\ns_cbranch_scc1 L_p3")
    load_w32(g, mats, 2752, opt.get("touch"))
    wstamp(g, opt, 1)
    tile_addr(g, 8, HM_SEG // 2)
    g(f"s_mov_b32 s{S_C0}, 0xffff0000\ns_mov_b32 s{S_C1}, 0xbdd2d3e8\ns_mov_b32 s{S_C2}, 0xc0135761")
    bad = hazard.check(g.lines[m0:], "ffn prologue")

    def epi(ACC):
        P, T = 80, 96
        U = ACC + 16
        g(f"""
        s_mul_i32 s{S_O1}, s{S_SEG}, {HM_SEG}
        s_lshl_b32 s{S_T0}, s{S_HD}, 12
        s_add_u32 s{S_O1}, s{S_O1}, s{S_T0}
        s_add_u32 s{S_O1}, s{S_O1}, {WS_HMID}
        v_mov_b32 v{T+16}, s{S_C2}
        """)

        def rnd(x, y):
            g(f"v_cvt_pk_bf16_f32 v{x}, v{x}, v{y}\nv_and_b32 v{y}, s{S_C0}, v{x}\nv_lshlrev_b32 v{x}, 16, v{x}")
        for rho in range(2):
            idx = [8*rho + i for i in range(8)]
            for x in range(4):
                rnd(ACC + 8*rho + x, ACC + 8*rho + 4 + x); rnd(U + 8*rho + x, U + 8*rho + 4 + x)
            for i in idx: g(f"v_mul_f32 v{T+i}, v{ACC+i}, v{ACC+i}")
            for i in idx: g(f"v_fma_f32 v{T+i}, v{T+i}, s{S_C1}, v{T+16}")
            for i in idx: g(f"v_mul_f32 v{T+i}, v{T+i}, v{ACC+i}")
            for i in idx: g(f"v_exp_f32 v{T+i}, v{T+i}")
            for i in idx: g(f"v_add_f32 v{T+i}, 1.0, v{T+i}")
            for i in idx: g(f"v_rcp_f32 v{T+i}, v{T+i}")
            for i in idx: g(f"v_mul_f32 v{ACC+i}, v{ACC+i}, v{T+i}")
            for x in range(4): rnd(ACC + 8*rho + x, ACC + 8*rho + 4 + x)
            for i in idx: g(f"v_mul_f32 v{ACC+i}, v{ACC+i}, v{U+i}")
            for x in range(4): g(f"v_cvt_pk_bf16_f32 v{P+4*rho+x}, v{ACC+8*rho+x}, v{ACC+8*rho+4+x}")

    stores = [f"buffer_store_dwordx4 {v(80+4*x,4)}, v8, {WSD}, s{S_O1} offen offset:{512*x} sc1" for x in range(2)]
    return bad + gemm_loop(g, "ffn", mats, stores, epi)


def p3_role(g, opt):
    LN16, KPA, RWA, RRA, XA, KMW, KMR, VMW, VMR, HFA, OFA = 1, 2, 3, 4, 5, 6, 7, 8, 9, 12, 13
    GV, XV = 14, 16
    ACC, SC, PB, OA, KM, VM = 20, 28, 44, 52, 68, 84
    ST = 92
    WDR = 168
    L_RED, L_KM, L_VM = 0, 8192, 12288
    S_TH, S_SCL, S_QO, S_KO, S_PO, S_HO = S_HD, S_C1, S_O1, S_O2, S_FA, S_PREV
    st = opt.get("st", "")
    S_OB = S_LB
    m0 = g.mark()
    DM, RA = 1, 2
    g(f"""
    s_lshr_b32 s{S_TH}, s{S_TK}, 4
    s_and_b32 s{S_COL}, s{S_TK}, 15
    s_lshl_b32 s{S_COL}, s{S_COL}, 6
    v_and_b32 v4, 63, v0
    v_lshrrev_b32 v5, 4, v4
    v_bfe_u32 v6, v4, 2, 2
    v_and_b32 v7, 1, v6
    v_lshlrev_b32 v{DM}, 4, v7
    v_lshl_add_u32 v{DM}, v5, 2, v{DM}
    v_lshrrev_b32 v7, 1, v6
    v_add_u32 v{DM}, v{DM}, v7
    v_lshlrev_b32 v{DM}, 10, v{DM}
    v_and_b32 v7, 1, v5
    v_lshlrev_b32 v7, 1, v7
    v_and_b32 v8, 3, v4
    v_xor_b32 v8, v8, v7
    v_lshl_add_u32 v{DM}, v8, 4, v{DM}
    v_add_u32 v{DM}, s{S_COL}, v{DM}
    v_lshrrev_b32 v8, 2, v4
    v_lshlrev_b32 v{RA}, 6, v8
    v_lshl_add_u32 v{RA}, v7, 4, v{RA}
    v_and_b32 v8, 3, v4
    v_lshl_add_u32 v{RA}, v8, 3, v{RA}
    s_lshl_b32 s{S_T3}, s{S_WAVE}, 15
    v_add_u32 v{RA}, s{S_T3}, v{RA}
    v_xor_b32 v{RA+1}, 32, v{RA}
    s_lshl_b32 s{S_T1}, s{S_WAVE}, 20
    s_mul_i32 s{S_T2}, s{S_WAVE}, {11*32768}
    """)
    steps = [("o", k) for k in range(32)] + [("d", k) for k in range(11)]
    AH = 12

    def issue(i):
        m, k = steps[i]
        if k == 0: set_srd(g, P_WO if m == "o" else P_WD, 4*MB if m == "o" else 1376*1024)
        for x in range(2):
            g(f"s_add_u32 m0, s{S_T3}, {(i % 16)*2048 + x*1024}\ns_add_u32 s{S_T0}, s{S_T1 if m == 'o' else S_T2}, {k*32768 + x*2048}")
            g(f"buffer_load_dwordx4 v{DM}, {WD}, s{S_T0} offen lds")

    wreg = lambda m, k, t, o=0, n=4: a(8*k + 4*t + o, n) if m == "o" else v(WDR + 8*k + 4*t + o, n)
    for i in range(AH): issue(i)
    for i, (m, k) in enumerate(steps):
        g(f"s_waitcnt vmcnt({2*min(AH - 1, len(steps) - 1 - i)}) lgkmcnt(8)")
        if i + AH < len(steps): issue(i + AH)
        for t in range(2):
            for x in range(2):
                g(f"ds_read_b64_tr_b16 {wreg(m, k, t, 2*x, 2)}, v{RA+t} offset:{(i % 16)*2048 + x*1024}")
    g("s_waitcnt lgkmcnt(0)\ns_barrier")
    g(f"""
    v_and_b32 v20, 63, v0
    v_lshrrev_b32 v21, 4, v20
    v_and_b32 v22, 15, v20
    v_lshlrev_b32 v{LN16}, 4, v20
    v_bfe_u32 v23, v22, 1, 1
    v_lshlrev_b32 v{KPA}, 3, v23
    v_lshrrev_b32 v23, 2, v22
    v_lshl_add_u32 v{KPA}, v23, 1, v{KPA}
    v_and_b32 v24, 1, v22
    v_add_u32 v{KPA}, v{KPA}, v24
    v_lshl_add_u32 v{KPA}, v21, 4, v{KPA}
    v_lshlrev_b32 v{KPA}, 4, v{KPA}
    v_lshl_add_u32 v{KMR}, v23, 1, v24
    v_lshlrev_b32 v{KMR}, 4, v{KMR}
    v_mul_u32_u24 v24, 144, v21
    v_add_u32 v{KMR}, v{KMR}, v24
    v_add_u32 v{KMR}, {L_KM}, v{KMR}
    v_mul_u32_u24 v{KMW}, 144, v23
    v_lshl_add_u32 v{KMW}, v21, 5, v{KMW}
    v_and_b32 v24, 3, v22
    v_lshl_add_u32 v{KMW}, v24, 2, v{KMW}
    s_mul_i32 s{S_T0}, s{S_WAVE}, 576
    s_add_u32 s{S_T0}, s{S_T0}, {L_KM}
    v_add_u32 v{KMW}, s{S_T0}, v{KMW}
    v_lshlrev_b32 v{VMW}, 3, v0
    v_add_u32 v{VMW}, {L_VM}, v{VMW}
    s_lshr_b32 s{S_T0}, s{S_WAVE}, 1
    s_lshl_b32 s{S_T0}, s{S_T0}, 10
    s_add_u32 s{S_T0}, s{S_T0}, {L_VM}
    v_lshlrev_b32 v{VMR}, 3, v20
    v_add_u32 v{VMR}, s{S_T0}, v{VMR}
    s_lshl_b32 s{S_T0}, s{S_WAVE}, 11
    v_lshlrev_b32 v{RWA}, 7, v22
    v_lshl_add_u32 v{RWA}, v21, 4, v{RWA}
    v_add_u32 v{RWA}, s{S_T0}, v{RWA}
    v_lshlrev_b32 v{RRA}, 3, v0
    v_lshrrev_b32 v24, 4, v0
    v_lshlrev_b32 v{XA}, 10, v24
    v_lshl_add_u32 v{XA}, v22, 2, v{XA}
    s_lshl_b32 s{S_T0}, s{S_TH}, 14
    s_add_u32 s{S_T0}, s{S_T0}, s{S_COL}
    v_add_u32 v{XA}, s{S_T0}, v{XA}
    v_min_u32 v{HFA}, 10, v20
    v_lshlrev_b32 v{HFA}, 2, v{HFA}
    v_and_b32 v{OFA}, 7, v20
    s_lshl_b32 s{S_T0}, s{S_WAVE}, 3
    v_add_u32 v{OFA}, s{S_T0}, v{OFA}
    v_lshlrev_b32 v{OFA}, 2, v{OFA}
    s_and_b32 s{S_T0}, s{S_WAVE}, 1
    s_lshl_b32 s{S_T0}, s{S_T0}, 4
    v_add_u32 v22, s{S_T0}, v22
    v_lshlrev_b32 v21, 1, v21
    v_sub_u32 v22, v22, v21
    """)
    for T in range(2):
        for r in range(4):
            g(f"v_cmp_le_i32 s[{S_MK+2*(4*T+r)}:{S_MK+2*(4*T+r)+1}], {16*T + 8*(r >> 1) + (r & 1)}, v22")
    g(f"""
    s_mov_b32 s{S_OUT}, s{P_OUT}
    s_mov_b32 s{S_OUT+1}, s{P_OUT+1}
    s_mov_b32 s{S_OUT+2}, {2*MB}
    s_mov_b32 s{S_OUT+3}, 0x20000
    s_mov_b32 s{S_SCL}, 0x3e0293ee
    s_mov_b32 s{S_C0}, 0xffff0000
    s_mov_b32 s{S_C2}, 0xbfb8aa3b
    s_sub_u32 s{S_SEG}, s{S_XCC}, 1
    s_lshl_b32 s{S_OB}, s{S_SEG}, 1
    v_mov_b32 v{PB+5}, 0
    v_mov_b32 v{PB+6}, 0
    """)
    set_srd(g, P_X, 2 * MB)
    spin_counter(g, "p3_init", DBG_INIT, 224)
    spin_counter(g, "p3_team", DBG_TEAM, 32)
    spin_counter(g, "p3_adone", DBG_ADONE, 215, 8)
    bad = hazard.check(g.lines[m0:], "p3 prologue")

    def reduce(dst):
        g("s_nop 7")
        for t in range(2): g(f"ds_write_b128 v{RWA}, {v(ACC+4*t,4)} offset:{L_RED + 64*t}")
        g("s_waitcnt lgkmcnt(0)\ns_barrier")
        for x in range(4): g(f"ds_read_b64 {v(ACC+2*x,2)}, v{RRA} offset:{L_RED + 2048*x}")
        g(f"""
        s_waitcnt lgkmcnt(0)
        v_pk_add_f32 {v(ACC,2)}, {v(ACC,2)}, {v(ACC+2,2)}
        v_pk_add_f32 {v(ACC+4,2)}, {v(ACC+4,2)}, {v(ACC+6,2)}
        v_pk_add_f32 {v(ACC,2)}, {v(ACC,2)}, {v(ACC+4,2)}
        v_cvt_pk_bf16_f32 v{dst}, v{ACC}, v{ACC+1}
        v_and_b32 v{dst+1}, s{S_C0}, v{dst}
        v_lshlrev_b32 v{dst}, 16, v{dst}
        """)

    wstamp(g, opt, 3)
    g("L_p3_seg:")
    m1 = g.mark()
    pstamp(g, opt, 0)
    QR_, KR_, VR_, HM = ST, ST + 16, ST + 48, SC
    g(f"""
    s_lshl_b32 s{S_T0}, s{S_SEG}, 1
    s_add_u32 s{S_T0}, s{S_T0}, s{S_TH}
    s_mul_i32 s{S_HO}, s{S_T0}, {HM_SEG // 2}
    s_mul_i32 s{S_T1}, s{S_WAVE}, {11*1024}
    s_add_u32 s{S_HO}, s{S_HO}, s{S_T1}
    s_add_u32 s{S_HO}, s{S_HO}, {WS_HMID}
    s_cmp_eq_u32 s{S_WAVE}, 3
    s_cselect_b32 s{S_T1}, 0x40000000, 0
    """)
    for k in range(11):
        if k == 10: g(f"s_add_u32 s{S_HO}, s{S_HO}, s{S_T1}")
        g(f"buffer_load_dwordx4 {v(HM+4*k,4)}, v{LN16}, {WSD}, s{S_HO} offen offset:{(k & 3)*1024} sc1")
        if k & 3 == 3: g(f"s_add_u32 s{S_HO}, s{S_HO}, 4096")
    g(f"s_lshl_b32 s{S_XO}, s{S_SEG}, 15\nbuffer_load_dword v{XV}, v{XA}, {WD}, s{S_XO} offen")
    g(f"""
    s_lshl_b32 s{S_T0}, s{S_SEG}, 5
    s_add_u32 s{S_T0}, s{S_T0}, s{S_TK}
    s_lshl_b32 s{S_QO}, s{S_T0}, 13
    s_and_b32 s{S_T1}, s{S_WAVE}, 1
    s_lshl_b32 s{S_T1}, s{S_T1}, 12
    s_add_u32 s{S_QO}, s{S_QO}, s{S_T1}
    s_add_u32 s{S_QO}, s{S_QO}, {WS_Q}
    s_lshl_b32 s{S_KO}, s{S_T0}, 14
    s_add_u32 s{S_KO}, s{S_KO}, {WS_KV}
    s_lshl_b32 s{S_PO}, s{S_T0}, 2
    s_add_u32 s{S_PO}, s{S_PO}, s{S_WAVE}
    s_lshl_b32 s{S_PO}, s{S_PO}, 10
    s_add_u32 s{S_PO}, s{S_PO}, {WS_PUB}
    s_add_u32 s{S_T1}, s{S_KO}, 4096
    s_lshr_b32 s{S_T2}, s{S_WAVE}, 1
    s_lshl_b32 s{S_T2}, s{S_T2}, 12
    s_add_u32 s{S_T2}, s{S_T2}, s{S_KO}
    s_add_u32 s{S_T2}, s{S_T2}, 8192
    """)
    for x in range(4):
        g(f"buffer_load_dwordx4 {v(QR_+4*x,4)}, v{LN16}, {WSD}, s{S_QO} offen offset:{x*1024} sc1")
        g(f"buffer_load_dwordx4 {v(KR_+4*x,4)}, v{KPA}, {WSD}, s{S_KO} offen offset:{x*1024} sc1")
        g(f"buffer_load_dwordx4 {v(KR_+16+4*x,4)}, v{KPA}, {WSD}, s{S_T1} offen offset:{x*1024} sc1")
    for x in range(4):
        g(f"buffer_load_dwordx4 {v(VR_+4*x,4)}, v{LN16}, {WSD}, s{S_T2} offen offset:{x*1024} sc1")
    for k in range(11):
        g(f"s_waitcnt vmcnt({27-k})")
        for t in range(2): g(mf16(ACC + 4*t, wreg("d", k, t), v(HM + 4*k, 4), k == 0))
    reduce(GV)
    g(f"""
    v_mul_f32 v{ACC}, s{S_C2}, v{GV}
    v_mul_f32 v{ACC+1}, s{S_C2}, v{GV+1}
    v_exp_f32 v{ACC}, v{ACC}
    v_exp_f32 v{ACC+1}, v{ACC+1}
    s_nop 0
    v_add_f32 v{ACC}, 1.0, v{ACC}
    v_add_f32 v{ACC+1}, 1.0, v{ACC+1}
    v_rcp_f32 v{ACC}, v{ACC}
    v_rcp_f32 v{ACC+1}, v{ACC+1}
    s_waitcnt vmcnt(16)
    v_pk_mul_f32 {v(GV,2)}, {v(GV,2)}, {v(ACC,2)}
    v_cvt_pk_bf16_f32 v{GV}, v{GV}, v{GV+1}
    v_and_b32 v{GV+1}, s{S_C0}, v{GV}
    v_lshlrev_b32 v{GV}, 16, v{GV}
    v_and_b32 v{XV+1}, s{S_C0}, v{XV}
    v_lshlrev_b32 v{XV}, 16, v{XV}
    """)
    g(f"v_mov_b32 v{PB+5}, 0\nv_mov_b32 v{PB+6}, 0\nv_mov_b32 v10, 0")
    for x in range(4):
        g(f"s_waitcnt vmcnt({4 + 3*(3-x)})")
        for T in range(2): g(mf16(SC + 4*T, v(KR_ + 16*T + 4*x, 4), v(QR_ + 4*x, 4), x == 0))
    MX, MY = SC + 12, SC + 13
    g(f"v_mov_b32 v{MY}, 0xd028965f\ns_nop 7")
    for i in range(8): g(f"v_cndmask_b32 v{SC+i}, v{MY}, v{SC+i}, s[{S_MK+2*i}:{S_MK+2*i+1}]")
    g(f"v_max3_f32 v{MX}, v{SC}, v{SC+1}, v{SC+2}\nv_max3_f32 v{MX}, v{MX}, v{SC+3}, v{SC+4}\nv_max3_f32 v{MX}, v{MX}, v{SC+5}, v{SC+6}\nv_max_f32 v{MX}, v{MX}, v{SC+7}")
    pstamp(g, opt, 3)
    g(f"""
    s_lshl_b32 s{S_T2}, s{S_TK}, 7
    s_add_u32 s{S_T2}, s{S_T2}, {WS_PF}
    s_add_u32 s{S_T1}, s{S_SEG}, 3
    s_cmp_lt_u32 s{S_SEG}, 62
    s_cselect_b32 s{S_T1}, s{S_T1}, 63
    L_p3_pf:
    buffer_load_dword v11, v10, {WSD}, s{S_T2} offen sc1
    s_add_u32 s{S_SPIN}, s{S_SPIN}, 1
    s_cmp_gt_u32 s{S_SPIN}, {SPIN_MAX}
    s_cbranch_scc1 L_p3_pub
    s_waitcnt vmcnt(0)
    v_cmp_gt_u32 vcc, s{S_T1}, v11
    s_cbranch_vccz L_p3_pub
    s_sleep 4
    s_branch L_p3_pf
    L_p3_pub:
    buffer_load_dwordx4 {v(OA,4)}, v{LN16}, {WSD}, s{S_PO} offen sc1
    s_add_u32 s{S_SPIN}, s{S_SPIN}, 1
    s_cmp_gt_u32 s{S_SPIN}, {SPIN_MAX}
    s_cbranch_scc1 L_p3_pub_out
    s_waitcnt vmcnt(0)
    v_max3_u32 v11, v{OA}, v{OA+1}, v{OA+2}
    v_max_u32 v11, v11, v{OA+3}
    v_cmp_eq_u32 vcc, s{S_SENT}, v11
    s_cbranch_vccz L_p3_pub_out
    s_sleep {opt.get('psleep', 2)}
    s_branch L_p3_pub
    L_p3_pub_out:
    s_waitcnt vmcnt(0)
    ds_write2_b32 v{KMW}, v{OA}, v{OA+1} offset0:0 offset1:4
    ds_write_b64 v{VMW}, {v(OA+2,2)}
    s_waitcnt lgkmcnt(0)
    s_barrier
    """)
    pstamp(g, opt, 4)
    for x in range(4): g(f"ds_read_b128 {v(KM+4*x,4)}, v{KMR} offset:{576*x}")
    for x in range(2): g(f"ds_read_b64 {v(VM+2*x,2)}, v{VMR} offset:{512*x}")
    for x in range(4):
        g(f"s_waitcnt lgkmcnt({5-x})")
        g(mf16(SC + 8, v(KM + 4*x, 4), v(QR_ + 4*x, 4), x == 0))
    g(f"""
    s_lshl_b32 s{S_T0}, s{S_OB}, 1
    s_and_b32 s{S_T1}, s{S_WAVE}, 1
    s_add_u32 s{S_T0}, s{S_T0}, s{S_T1}
    s_lshl_b32 s{S_T0}, s{S_T0}, 5
    s_add_u32 s{S_T0}, s{S_T0}, s{S_TK}
    s_lshl_b32 s{S_T0}, s{S_T0}, 2
    s_and_b32 s{S_T1}, s{S_WAVE}, 2
    s_add_u32 s{S_T0}, s{S_T0}, s{S_T1}
    s_lshl_b32 s{S_T0}, s{S_T0}, 10
    s_add_u32 s{S_T0}, s{S_T0}, {WS_O}
    v_max3_f32 v{MX}, v{MX}, v{SC+8}, v{SC+9}
    """)

    def cross(r, t, op):
        for sw in (16, 32):
            g(f"v_mov_b32 v{t}, v{r}\ns_nop 1\nv_permlane{sw}_swap_b32 v{r}, v{t}\n{op} v{r}, v{r}, v{t}")
    cross(MX, MY, "v_max_f32")
    g(f"v_mul_f32 v{MX}, s{S_SCL}, v{MX}")
    for i in range(10): g(f"v_fma_f32 v{SC+i}, v{SC+i}, s{S_SCL}, -v{MX}")
    for i in range(10): g(f"v_exp_f32 v{SC+i}, v{SC+i}")
    for ri in range(4):
        r = SC + 4*(ri & 1) + 2*(ri >> 1)
        g(f"v_cvt_pk_bf16_f32 v{PB+ri}, v{r}, v{r+1}")
    g(f"v_cvt_pk_bf16_f32 v{PB+4}, v{SC+8}, v{SC+9}\nv_cvt_pk_bf16_f32 v{PB+7}, v{SC+8}, v{SC+9}\ns_waitcnt lgkmcnt(0)")
    for e in range(4):
        g(mf16(OA + 4*e, v(VR_ + 4*e, 4), v(PB, 4), True))
        g(f"v_add_f32 v{SC+2*e}, v{SC+2*e}, v{SC+2*e+1}")
    sums = [f"v_add_f32 v{SC+8}, v{SC+8}, v{SC+9}", f"v_add_f32 v{SC}, v{SC}, v{SC+2}", f"v_add_f32 v{SC+4}, v{SC+4}, v{SC+6}", f"v_add_f32 v{SC}, v{SC}, v{SC+8}"]
    for e in range(4):
        g(f"v_mfma_f32_16x16x16_bf16 {v(OA+4*e,4)}, {v(VM+2*(e >> 1),2)}, {v(PB+4+2*(e & 1),2)}, {v(OA+4*e,4)}")
        g(sums[e])
    g(f"v_add_f32 v{SC}, v{SC}, v{SC+4}")
    cross(SC, SC + 1, "v_add_f32")
    g(f"v_rcp_f32 v{SC}, v{SC}\ns_nop 0")
    for x in range(2):
        for i in range(8): g(f"v_mul_f32 v{OA+8*x+i}, v{OA+8*x+i}, v{SC}")
        for r in range(4): g(f"v_cvt_pk_bf16_f32 v{KM+4*x+r}, v{OA+8*x+r}, v{OA+8*x+4+r}")
        g(f"buffer_store_dwordx4 {v(KM+4*x,4)}, v{LN16}, {WSD}, s{S_T0} offen offset:{x*1024} {st}")
    g(f"""
    s_lshl_b32 s{S_T2}, s{S_SEG}, 7
    s_add_u32 s{S_T2}, s{S_T2}, {WS_OF}
    s_lshl_b32 s{S_T1}, s{S_TK}, 2
    s_add_u32 s{S_T1}, s{S_T1}, s{S_T2}
    s_lshl_b32 s{S_T0}, s{S_OB}, 1
    s_add_u32 s{S_T0}, s{S_T0}, s{S_TH}
    s_lshl_b32 s{S_T0}, s{S_T0}, 2
    s_add_u32 s{S_T0}, s{S_T0}, s{S_WAVE}
    s_lshl_b32 s{S_T0}, s{S_T0}, 15
    s_add_u32 s{S_HO}, s{S_T0}, {WS_O}
    s_waitcnt vmcnt(0)
    s_barrier
    """)
    pstamp(g, opt, 5)
    set_flag(g, "p3_of", S_T1, st)
    spin_flags(g, "p3_ow", OFA, S_T2, 0)
    pstamp(g, opt, 6)
    NB = 16

    def old(k):
        g(f"buffer_load_dwordx4 {v(ST+4*(k % NB),4)}, v{LN16}, {WSD}, s{S_HO} offen offset:{(k & 3)*1024} sc1")
        if k & 3 == 3: g(f"s_add_u32 s{S_HO}, s{S_HO}, 4096")
    for k in range(NB): old(k)
    for k in range(32):
        g(f"s_waitcnt vmcnt({min(NB - 1, 31 - k)})")
        for t in range(2): g(mf16(ACC + 4*t, wreg("o", k, t), v(ST + 4*(k % NB), 4), k == 0))
        if k + NB < 32: old(k + NB)
    pstamp(g, opt, 7)
    reduce(SC)
    pstamp(g, opt, 8)
    g(f"""
    v_pk_mul_f32 {v(SC,2)}, {v(SC,2)}, {v(GV,2)}
    v_cvt_pk_bf16_f32 v{SC}, v{SC}, v{SC+1}
    v_and_b32 v{SC+1}, s{S_C0}, v{SC}
    v_lshlrev_b32 v{SC}, 16, v{SC}
    v_pk_add_f32 {v(SC,2)}, {v(SC,2)}, {v(XV,2)}
    v_cvt_pk_bf16_f32 v{SC}, v{SC}, v{SC+1}
    buffer_store_dword v{SC}, v{XA}, s[{S_OUT}:{S_OUT+3}], s{S_XO} offen
    s_xor_b32 s{S_OB}, s{S_OB}, 1
    s_add_u32 s{S_SEG}, s{S_SEG}, 7
    s_cmp_lt_u32 s{S_SEG}, {NSEG}
    s_barrier
    s_cbranch_scc1 L_p3_seg
    """)
    bad += hazard.check(g.lines[m1:], "p3 loop")
    wstamp(g, opt, 4, True)
    if opt.get("dbgt"):
        g(f"s_cmp_lg_u32 s{S_WAVE}, 0\ns_cbranch_scc1 L_dt2\ns_cmp_lg_u32 s{S_XCC}, 1\ns_cbranch_scc1 L_dt2")
        dbg_time(g, opt, 6)
        g("L_dt2:")
    g("s_waitcnt vmcnt(0)\ns_endpgm")
    return bad


def worker_roles(g, opt):
    m0 = g.mark()
    worker_init(g)
    bad = hazard.check(g.lines[m0:], "worker init")
    g(f"s_cmp_ge_u32 s{S_WI}, 160\ns_cbranch_scc1 L_ffn")
    bad += qkv_role(g, opt)
    g("s_branch L_p3\nL_ffn:")
    bad += ffn_role(g, opt)
    g("L_p3:")
    wstamp(g, opt, 2)
    bad += p3_role(g, opt)
    return bad
```

```python
import sys
from asmlib import *
from layout import *
from chain import *
import workers

NAME = "recurrent_scan__memory_aug_recurrent_mem_tr__geglu_ffn__prompt_kernel"


def entry(g, opt):
    if opt.get('count') or opt.get('dbgt'): g('s_memrealtime s[14:15]')
    g(f"""
    s_cmp_ge_u32 s2, 256
    s_cbranch_scc1 L_exit
    s_load_dwordx16 s[16:31], s[0:1], 0
    s_load_dwordx8 s[32:39], s[0:1], 64
    s_load_dwordx4 s[40:43], s[0:1], 96
    s_getreg_b32 s{S_XCC}, hwreg(HW_REG_XCC_ID, 0, 3)
    v_lshrrev_b32 v1, 6, v0
    s_mov_b32 s{S_SPIN}, 0
    s_mov_b32 s{S_SENT}, {SENT}
    s_mov_b32 s{S_SENT+1}, {SENT}
    v_readfirstlane_b32 s{S_WAVE}, v1
    s_waitcnt lgkmcnt(0)
    s_mov_b32 s{S_WS}, s{P_WSP}
    s_mov_b32 s{S_WS+1}, s{P_WSP+1}
    s_mov_b32 s{S_WS+2}, {WS_BYTES}
    s_mov_b32 s{S_WS+3}, 0x20000
    s_cmp_lg_u32 s{S_WAVE}, 0
    s_cbranch_scc1 L_asked
    s_lshl_b32 s{S_T0}, s{S_XCC}, 5
    v_mov_b32 v1, s{S_T0}
    v_mov_b32 v2, 1
    s_mov_b64 exec, 1
    global_atomic_add v3, v1, v2, s[{P_DBG}:{P_DBG+1}] sc0
    s_mov_b64 exec, -1
    L_asked:
    """)
    if opt.get("ct"):
        g(f"s_barrier\ns_cmp_lg_u32 s{S_XCC}, 0\ns_cbranch_scc1 L_ct")
        set_srd(g, P_WO, 4 * MB)
        g(f"v_lshlrev_b32 v4, 7, v0\ns_lshr_b32 s{S_T0}, s2, 3\ns_lshl_b32 s{S_T0}, s{S_T0}, 17")
        for x in range(opt["ct"]):
            g(f"buffer_load_dword v23, v4, s[{S_W}:{S_W+3}], s{S_T0} offen\ns_add_u32 s{S_T0}, s{S_T0}, 32768")
        g(f"s_cmp_lg_u32 s{S_WAVE}, 0\ns_cbranch_scc1 L_ticket\ns_waitcnt vmcnt({opt['ct']})\ns_branch L_got\nL_ct:")
    pf = opt.get("pf", 0)
    if pf:
        g(f"s_barrier\ns_cmp_eq_u32 s{S_XCC}, 0\ns_cbranch_scc1 L_touched\nv_and_b32 v4, 63, v0\nv_lshlrev_b32 v4, 7, v4")
        for w, (p1, p2, n2, sl2) in enumerate(((P_WQ, P_X, 2*MB, 8192), (P_WK, P_WG, 512*2752, 5504), (P_WV, P_WU, 512*2752, 5504), (P_WO, None, 0, 0))):
            g(f"s_cmp_lg_u32 s{S_WAVE}, {w}\ns_cbranch_scc1 L_touch{w}")
            if p2:
                set_srd(g, p2, n2)
                g(f"s_mul_i32 s{S_T0}, s2, {sl2}\nbuffer_load_dword v127, v4, s[{S_W}:{S_W+3}], s{S_T0} offen")
            set_srd(g, p1, 4 * MB)
            g(f"s_lshl_b32 s{S_T0}, s2, 14\nbuffer_load_dword v127, v4, s[{S_W}:{S_W+3}], s{S_T0} offen")
            g(f"s_add_u32 s{S_T0}, s{S_T0}, 8192\nbuffer_load_dword v127, v4, s[{S_W}:{S_W+3}], s{S_T0} offen")
            if w == 0: g("s_waitcnt vmcnt(3)\ns_branch L_got")
            g(f"L_touch{w}:")
        g("L_touched:")
    g(f"""
    s_cmp_lg_u32 s{S_WAVE}, 0
    s_cbranch_scc1 L_ticket
    s_waitcnt vmcnt(0)
    L_got:
    v_mov_b32 v1, 0
    s_mov_b64 exec, 1
    ds_write_b32 v1, v3
    s_waitcnt lgkmcnt(0)
    s_mov_b64 exec, -1
    L_ticket:
    s_barrier
    v_mov_b32 v1, 0
    ds_read_b32 v3, v1
    s_waitcnt lgkmcnt(0)
    v_readfirstlane_b32 s{S_TK}, v3
    s_barrier
    s_and_b32 s{S_TK}, s{S_TK}, 31
    """)


def build(opt):
    g = Asm()
    entry(g, opt)
    bad = []
    g(f"s_cmp_eq_u32 s{S_XCC}, 0\ns_cbranch_scc1 L_chain")
    if not opt.get("chainonly"):
        bad += workers.worker_roles(g, opt)
    g("L_exit:\ns_endpgm\nL_chain:")
    bad += chain_role(g, opt.get("st", ""), "c", opt)
    for b in bad: print(b, file=sys.stderr)
    head = f"; @launch grid=(256,1,1) block=(256,1,1) lds=163840\n"
    head += '.amdgcn_target "amdgcn-amd-amdhsa--gfx950"\n.text\n'
    head += f".globl {NAME}\n.p2align 8\n.type {NAME},@function\n{NAME}:\n"
    tail = f"""
.section .rodata,"a"
.p2align 6
.amdhsa_kernel {NAME}
  .amdhsa_next_free_vgpr 512
  .amdhsa_next_free_sgpr 102
  .amdhsa_accum_offset 256
  .amdhsa_group_segment_fixed_size 0
  .amdhsa_kernarg_size 112
  .amdhsa_user_sgpr_count 2
  .amdhsa_user_sgpr_kernarg_segment_ptr 1
  .amdhsa_system_sgpr_workgroup_id_x 1
.end_amdhsa_kernel
"""
    return head + g.text() + tail, bad


if __name__ == "__main__":
    import mb
    t, bad = build({})
    co = mb.assemble(t, NAME, 14, "k")
    print(mb.cl.address_register_problem(co, NAME))
    print(len(t), "bytes", len(bad), "hazards")
```

```python
from asmlib import *
from layout import *
from chain import (S_WS, S_W, P_X, P_WQ, P_WK, P_WV, P_WO, P_WG, P_WU, P_WD, P_OUT, P_DBG, S_XCC, S_TK, S_WAVE,
                   S_T0, S_T1, S_T2, S_T3, SPIN_MAX, set_srd, S_SPIN, S_SENT, dbg_time)

WSD = f"s[{S_WS}:{S_WS+3}]"
WD = f"s[{S_W}:{S_W+3}]"
S_WI, S_COL, S_SEG, S_HD, S_NXT, S_XO, S_O1, S_O2, S_FA, S_PREV, S_LB, S_C0, S_C1, S_C2 = range(51, 65)
S_R, S_IT = 65, 66
S_OUT = 68
S_MK = 72
RING = 65536
NROWG = 5


def rg(f, b, n):
    return a(b, n) if f == "a" else v(b, n)


def mf32(d, x, y, first):
    return f"v_mfma_f32_32x32x16_bf16 {v(d,16)}, {x}, {y}, " + ("0" if first else v(d, 16))


def mf16(d, x, y, first):
    return f"v_mfma_f32_16x16x32_bf16 {v(d,4)}, {x}, {y}, " + ("0" if first else v(d, 4))


def spin_counter(g, tag, off, target, sleep=2):
    g(f"""
    v_mov_b32 v10, {off}
    L_{tag}:
    global_load_dword v11, v10, s[{P_DBG}:{P_DBG+1}] sc1
    s_add_u32 s{S_SPIN}, s{S_SPIN}, 1
    s_cmp_gt_u32 s{S_SPIN}, {SPIN_MAX}
    s_cbranch_scc1 L_{tag}_out
    s_waitcnt vmcnt(0)
    v_cmp_gt_u32 vcc, {target}, v11
    s_cbranch_vccz L_{tag}_out
    s_sleep {sleep}
    s_branch L_{tag}
    L_{tag}_out:
    s_waitcnt vmcnt(0)
    """)


def spin_flags(g, tag, vaddr, soff, sleep=1):
    g(f"""
    L_{tag}:
    buffer_load_dword v11, v{vaddr}, {WSD}, s{soff} offen sc1
    s_add_u32 s{S_SPIN}, s{S_SPIN}, 1
    s_cmp_gt_u32 s{S_SPIN}, {SPIN_MAX}
    s_cbranch_scc1 L_{tag}_out
    s_waitcnt vmcnt(0)
    v_cmp_ne_u32 vcc, 1, v11
    s_cbranch_vccz L_{tag}_out
    {f's_sleep {sleep}' if sleep else ''}
    s_branch L_{tag}
    L_{tag}_out:
    s_waitcnt vmcnt(0)
    """)


def count_up(g, tag, off, wait=True):
    if wait: g("s_waitcnt vmcnt(0)\ns_barrier")
    g(f"""
    s_cmp_lg_u32 s{S_WAVE}, 0
    s_cbranch_scc1 L_{tag}
    v_mov_b32 v10, {off}
    v_mov_b32 v11, 1
    s_mov_b64 exec, 1
    global_atomic_add v10, v11, s[{P_DBG}:{P_DBG+1}]
    s_mov_b64 exec, -1
    L_{tag}:
    """)


def set_flag(g, tag, soff, st="sc1"):
    g(f"""
    s_cmp_lg_u32 s{S_WAVE}, 0
    s_cbranch_scc1 L_{tag}
    v_mov_b32 v10, 0
    v_mov_b32 v11, 1
    s_mov_b64 exec, 1
    buffer_store_dword v11, v10, {WSD}, s{soff} offen {st}
    s_mov_b64 exec, -1
    L_{tag}:
    """)


def wstamp(g, opt, i, dump=False):
    if not opt.get("count"): return
    g(f"s_waitcnt vmcnt(0)" if dump else "")
    g(f"s_memrealtime s[88:89]\ns_waitcnt lgkmcnt(0)\ns_mov_b32 s{90+i}, s88")
    if dump:
        for k in range(5): g(f"v_mov_b32 v{21+k}, s{90+k}")
        g(f"""
        v_mov_b32 v20, s14
        s_lshl_b32 s{S_T0}, s{S_WI}, 5
        s_add_u32 s{S_T0}, s{S_T0}, {WS_STAMP - 8192}
        v_mov_b32 v10, 0
        buffer_store_dwordx4 v[20:23], v10, {WSD}, s{S_T0} offen
        buffer_store_dwordx2 v[24:25], v10, {WSD}, s{S_T0} offen offset:16
        """)


def pstamp(g, opt, i):
    if not opt.get("pst"): return
    g(f"""
    s_memrealtime s[88:89]
    s_lshl_b32 s96, s{S_XCC}, 5
    s_add_u32 s96, s96, s{S_TK}
    s_sub_u32 s96, s96, 32
    s_lshl_b32 s96, s96, 6
    s_add_u32 s96, s96, s{S_SEG}
    s_lshl_b32 s96, s96, 6
    s_add_u32 s96, s96, {96*MB + 4*i}
    s_waitcnt lgkmcnt(0)
    v_mov_b32 v18, s88
    v_mov_b32 v19, 0
    s_mov_b64 exec, 1
    buffer_store_dword v18, v19, {WSD}, s96 offen
    s_mov_b64 exec, -1
    s_waitcnt vmcnt(0)
    """)


def worker_init(g):
    g(f"""
    s_sub_u32 s{S_T0}, s{S_XCC}, 1
    s_min_u32 s{S_T1}, s{S_T0}, 4
    s_mul_i32 s{S_T1}, s{S_T1}, 5
    s_mul_i32 s{S_T2}, s{S_T0}, 20
    s_add_u32 s{S_T2}, s{S_T2}, s{S_T1}
    s_cmp_lt_u32 s{S_T0}, 4
    s_cselect_b32 s{S_T3}, 25, 20
    s_add_u32 s{S_WI}, s{S_T2}, s{S_TK}
    s_cmp_lt_u32 s{S_TK}, s{S_T3}
    s_cbranch_scc1 L_wi
    s_sub_u32 s{S_T1}, s{S_TK}, s{S_T3}
    s_sub_u32 s{S_T3}, 30, s{S_T3}
    s_mul_i32 s{S_WI}, s{S_T0}, 30
    s_sub_u32 s{S_WI}, s{S_WI}, s{S_T2}
    s_add_u32 s{S_WI}, s{S_WI}, s{S_T1}
    s_add_u32 s{S_WI}, s{S_WI}, 160
    s_cmp_lt_u32 s{S_T1}, s{S_T3}
    s_cbranch_scc1 L_wi
    s_lshl_b32 s{S_WI}, s{S_T0}, 1
    s_add_u32 s{S_WI}, s{S_WI}, s{S_TK}
    s_add_u32 s{S_WI}, s{S_WI}, {210 - 30}
    L_wi:
    """)


def worker_fill(g):
    g(f"""
    s_sub_u32 s{S_T0}, s{S_XCC}, 1
    v_mov_b64 v[12:13], s[{S_SENT}:{S_SENT+1}]
    v_mov_b64 v[14:15], s[{S_SENT}:{S_SENT+1}]
    v_lshlrev_b32 v10, 4, v0
    s_cmp_eq_u32 s{S_T0}, 0
    s_cselect_b32 s{S_T1}, 63, 64
    s_cmp_eq_u32 s{S_T0}, 6
    s_cselect_b32 s{S_T1}, 62, s{S_T1}
    s_lshl_b32 s{S_T1}, s{S_T1}, 17
    s_lshl_b32 s{S_T2}, s{S_TK}, 12
    s_add_u32 s{S_T1}, s{S_T1}, s{S_T2}
    s_add_u32 s{S_T1}, s{S_T1}, {WS_PUB}
    buffer_store_dwordx4 v[12:15], v10, {WSD}, s{S_T1} offen sc1
    """)
    g(f"""
    v_mov_b32 v11, 0
    v_mul_u32_u24 v10, 7, v0
    v_add_u32 v10, s{S_T0}, v10
    v_cmp_gt_u32 vcc, 64, v10
    v_lshlrev_b32 v10, 7, v10
    s_lshl_b32 s{S_T1}, s{S_TK}, 2
    s_add_u32 s{S_T1}, s{S_T1}, {WS_OF}
    v_mov_b32 v12, 0x40000000
    v_cndmask_b32 v10, v12, v10, vcc
    buffer_store_dword v11, v10, {WSD}, s{S_T1} offen sc1
    """)


def clear_flags(g, shift):
    g(f"""
    v_mov_b32 v11, 0
    v_mul_u32_u24 v10, {NROWG}, v0
    v_add_u32 v10, s{S_SEG}, v10
    v_cmp_gt_u32 vcc, 64, v10
    v_lshlrev_b32 v10, {shift}, v10
    v_mov_b32 v12, 0x40000000
    v_cndmask_b32 v10, v12, v10, vcc
    buffer_store_dword v11, v10, {WSD}, s{S_FA} offen sc1
    """)


def layernorm(g, seg, extra=None):
    X, T = 16, 80
    set_srd(g, P_X, 2 * MB)
    g(f"""
    v_lshrrev_b32 v1, 3, v0
    v_and_b32 v2, 7, v0
    v_lshlrev_b32 v3, 10, v1
    v_lshl_add_u32 v3, v2, 4, v3
    s_lshl_b32 s{S_T0}, s{seg}, 15
    """)
    for j in range(8):
        g(f"buffer_load_dwordx4 {v(T+4*j,4)}, v3, {WD}, s{S_T0} offen offset:{128*j}")
    if extra: extra[0]()
    g(f"""
    v_lshrrev_b32 v4, 1, v2
    v_lshlrev_b32 v4, 10, v4
    v_and_b32 v5, 1, v2
    v_lshl_add_u32 v4, v5, 9, v4
    v_lshl_add_u32 v4, v1, 4, v4
    s_add_u32 s{S_T0}, s{S_T0}, {WS_XN}
    s_mov_b32 s{S_T1}, 0xffff0000
    s_waitcnt vmcnt({extra[1] if extra else 0})
    """)
    for i in range(32):
        g(f"v_lshlrev_b32 v{X+2*i}, 16, v{T+i}\nv_and_b32 v{X+2*i+1}, s{S_T1}, v{T+i}")

    def reduce8(r):
        for m in ("quad_perm:[1,0,3,2]", "quad_perm:[2,3,0,1]", "row_half_mirror"):
            g(f"s_nop 1\nv_add_f32_dpp v{r}, v{r}, v{r} {m} row_mask:0xf bank_mask:0xf")

    g(f"v_pk_add_f32 v[6:7], {v(X,2)}, {v(X+2,2)}")
    for i in range(2, 32):
        g(f"v_pk_add_f32 v[6:7], v[6:7], {v(X+2*i,2)}")
    g("v_add_f32 v6, v6, v7")
    reduce8(6)
    g(f"v_mul_f32 v6, 0x3b000000, v6\nv_mov_b32 v8, 0\nv_mov_b32 v9, 0")
    for i in range(64):
        g(f"v_sub_f32 v7, v{X+i}, v6\nv_fmac_f32 v{8+(i&1)}, v7, v7")
    g("v_add_f32 v8, v8, v9")
    reduce8(8)
    g(f"""
    v_mul_f32 v8, 0x3b000000, v8
    v_cvt_pk_bf16_f32 v6, v6, v8
    v_and_b32 v8, s{S_T1}, v6
    v_lshlrev_b32 v6, 16, v6
    v_add_f32 v8, 0x3727c5ac, v8
    v_cvt_pk_bf16_f32 v8, v8, v8
    v_and_b32 v8, s{S_T1}, v8
    v_sqrt_f32 v8, v8
    s_nop 0
    v_cvt_pk_bf16_f32 v8, v8, v8
    v_and_b32 v8, s{S_T1}, v8
    v_rcp_f32 v8, v8
    """)
    for i in range(32):
        p = X + 2 * i
        g(f"""
        v_sub_f32 v{p}, v{p}, v6
        v_sub_f32 v{p+1}, v{p+1}, v6
        v_cvt_pk_bf16_f32 v{p}, v{p}, v{p+1}
        v_and_b32 v{p+1}, s{S_T1}, v{p}
        v_lshlrev_b32 v{p}, 16, v{p}
        v_mul_f32 v{p}, v{p}, v8
        v_mul_f32 v{p+1}, v{p+1}, v8
        v_cvt_pk_bf16_f32 v{T+i}, v{p}, v{p+1}
        """)
        if i % 4 == 3:
            g(f"buffer_store_dwordx4 {v(T+i-3,4)}, v4, {WSD}, s{S_T0} offen sc1\ns_add_u32 s{S_T0}, s{S_T0}, 4096")


def load_w32(g, mats, stride, touch, hook=None, setup=True):
    DM, RT, RN = 13, 14, 15
    if setup: g(f"""
    v_and_b32 v4, 63, v0
    v_lshrrev_b32 v5, 4, v4
    v_and_b32 v6, 15, v4
    v_lshlrev_b32 v7, 2, v5
    v_xor_b32 v6, v6, v7
    v_lshlrev_b32 v{DM}, 4, v6
    s_lshl_b32 s{S_T0}, s{S_WAVE}, 4
    v_add_u32 v6, s{S_T0}, v5
    v_mul_u32_u24 v6, {stride}, v6
    v_add3_u32 v{DM}, v{DM}, v6, s{S_COL}
    v_bfe_u32 v6, v4, 2, 2
    v_xor_b32 v7, s{S_WAVE}, v6
    v_lshlrev_b32 v7, 6, v7
    v_lshl_add_u32 v7, v6, 8, v7
    v_lshrrev_b32 v6, 5, v4
    v_lshl_add_u32 v7, v6, 11, v7
    v_add_u32 v7, {RING}, v7
    v_and_b32 v5, 1, v5
    v_and_b32 v6, 3, v4
    v_lshl_add_u32 v{RN}, v5, 5, v7
    v_lshl_add_u32 v{RN}, v6, 3, v{RN}
    v_lshl_add_u32 v{RT}, v5, 4, v7
    v_and_b32 v6, 1, v4
    v_lshl_add_u32 v{RT}, v6, 3, v{RT}
    v_bfe_u32 v6, v4, 1, 1
    v_lshl_add_u32 v{RT}, v6, 5, v{RT}
    s_lshl_b32 s{S_T3}, s{S_WAVE}, 12
    s_add_u32 s{S_T3}, s{S_T3}, {RING}
    """)
    if touch is not None:
        g(f"""
        s_mul_i32 s{S_T1}, s{S_SEG}, 104
        s_mul_i32 s{S_T2}, s{S_WAVE}, 26
        s_add_u32 s{S_T1}, s{S_T1}, s{S_T2}
        v_lshrrev_b32 v5, 1, v4
        v_min_u32 v5, 25, v5
        v_add_u32 v5, s{S_T1}, v5
        v_mul_u32_u24 v5, {stride}, v5
        v_and_b32 v6, 1, v4
        v_lshl_add_u32 v5, v6, 7, v5
        """)
        for m in mats:
            set_srd(g, m[0], m[1])
            g(f"buffer_load_dword v127, v5, {WD}, s{S_COL} offen {touch}")
    stages = [(m, S) for m in mats for S in range(8)]

    def issue(i):
        m, S = stages[i]
        if S == 0: set_srd(g, m[0], m[1])
        for x in range(4):
            g(f"s_add_u32 m0, s{S_T3}, {(i % 4) * 16384 + x * 1024}\ns_mov_b32 s{S_T0}, {(64 * S + 4 * x) * stride}")
            g(f"buffer_load_dwordx4 v{DM}, {WD}, s{S_T0} offen lds")

    for i in range(3): issue(i)
    for i, (m, S) in enumerate(stages):
        g(f"s_waitcnt vmcnt({4 * min(2, len(stages) - 1 - i)}) lgkmcnt(0)\ns_barrier")
        if hook and i == 0: hook()
        if i + 3 < len(stages): issue(i + 3)
        for ks in range(4):
            for x in range(2):
                g(f"ds_read_b64_tr_b16 {rg(m[2], m[3] + 4*(4*S+ks) + 2*x, 2)}, v{RT if m[4] else RN} offset:{(i % 4)*16384 + ks*4096 + x*1024}")
    g("s_waitcnt lgkmcnt(0)")


def xn_dma():
    out = [[f"s_lshl_b32 s{S_T2}, s{S_NXT}, 15", f"s_add_u32 s{S_T2}, s{S_T2}, s{S_XO}"]]
    for hh in range(2):
        out[-1] += [f"s_add_u32 m0, s{S_LB}, {hh*4096}", f"s_add_u32 s{S_T1}, s{S_T2}, {hh*4096}"]
        for x in range(4):
            out[-1] += [f"buffer_load_dwordx4 v1, {WSD}, s{S_T1} offen offset:{x*1024} sc1 lds"]
            out.append([])
    out[-1] += [f"s_xor_b32 s{S_LB}, s{S_LB}, 32768"]
    return out


def gemm_loop(g, tag, mats, stores, epilogue, first=None):
    XF, ACC = 16, 32
    g(f"""
    v_and_b32 v4, 63, v0
    v_lshlrev_b32 v1, 4, v4
    v_mov_b32 v2, v1
    s_lshl_b32 s{S_LB}, s{S_WAVE}, 13
    s_add_u32 s{S_XO}, s{S_LB}, {WS_XN}
    s_mov_b32 s{S_PREV}, -1
    s_mov_b32 s{S_O1}, 0x40000000
    s_mov_b32 s{S_O2}, 0x40000000
    s_mov_b32 s{S_NXT}, s{S_SEG}
    s_mov_b32 s{S_R}, s{S_SEG}
    s_mov_b32 s{S_IT}, 0
    """)
    spin_counter(g, f"{tag}_ln", DBG_LN, 64)
    for x in sum(xn_dma(), []): g(x)
    g(f"L_{tag}_seg:")
    m0 = g.mark()
    g(f"""
    s_add_u32 s{S_NXT}, s{S_SEG}, {NROWG}
    s_cmp_lt_u32 s{S_NXT}, {NSEG}
    s_cselect_b32 s{S_NXT}, s{S_NXT}, s{S_R}
    s_waitcnt vmcnt(0)
    s_barrier
    """)
    rd = lambda ks: f"ds_read_b128 {v(XF+4*(ks%4),4)}, v2 offset:{ks*1024}"
    for ks in range(3): g(rd(ks))
    side = [[x] for x in stores] + xn_dma()
    for ks in range(32):
        g(f"s_waitcnt lgkmcnt({min(2, 31-ks)})")
        for j, m in enumerate(mats):
            w_, x_ = rg(m[2], m[3] + 4*ks, 4), v(XF + 4*(ks % 4), 4)
            g(mf32(ACC + 16*j, w_, x_, ks == 0) if m[4] else mf32(ACC + 16*j, x_, w_, ks == 0))
            if j == 0 and ks + 3 < 32: g(rd(ks + 3))
            if j == 1 and side:
                for x in side.pop(0): g(x)
        if ks == 24 and first:
            g(f"s_cmp_lt_i32 s{S_PREV}, 0\ns_cbranch_scc1 L_{tag}_nf\ns_waitcnt vmcnt(8)\ns_barrier")
            set_flag(g, f"{tag}_nf", S_PREV)
    g("v_xor_b32 v2, 0x8000, v2\ns_nop 7\ns_nop 1")
    epilogue(ACC)
    bad = hazard.check(g.lines[m0:] + g.lines[m0:m0 + 40], tag)
    if first:
        g(f"""
        s_lshl_b32 s{S_PREV}, s{S_SEG}, 2
        s_add_u32 s{S_PREV}, s{S_PREV}, s{S_FA}
        s_cmp_eq_u32 s{S_SEG}, s{S_R}
        s_mov_b32 s{S_SEG}, s{S_NXT}
        s_cbranch_scc0 L_{tag}_seg
        s_cmp_lg_u32 s{S_IT}, 0
        s_cbranch_scc1 L_{tag}_last
        s_mov_b32 s{S_IT}, 1
        """)
        for x in stores[:4]: g(x)
        first(lambda: set_flag(g, f"{tag}_ff", S_PREV))
        g(f"s_mov_b32 s{S_PREV}, -1\ns_mov_b32 s{S_O1}, 0x40000000\ns_mov_b32 s{S_O2}, 0x40000000\ns_branch L_{tag}_seg\nL_{tag}_last:")
        for x in stores[4:]: g(x)
    else:
        g(f"s_mov_b32 s{S_SEG}, s{S_NXT}\ns_cmp_lg_u32 s{S_SEG}, s{S_R}\ns_cbranch_scc1 L_{tag}_seg")
        for x in stores: g(x)
    count_up(g, f"{tag}_done", DBG_ADONE)
    return bad


def tile_addr(g, dst, tshift):
    g(f"""
    v_bfe_u32 v5, v0, 4, 1
    v_mul_u32_u24 v{dst}, {tshift}, v5
    v_bfe_u32 v5, v0, 5, 1
    v_lshl_add_u32 v{dst}, v5, 8, v{dst}
    v_and_b32 v5, 15, v0
    v_lshl_add_u32 v{dst}, v5, 4, v{dst}
    s_lshl_b32 s{S_T0}, s{S_WAVE}, 10
    v_add_u32 v{dst}, s{S_T0}, v{dst}
    """)


def qkv_role(g, opt):
    mats = [(P_WK, 4*MB, "a", 0, 1), (P_WV, 4*MB, "a", 128, 0), (P_WQ, 4*MB, "v", 128, 1)]
    m0 = g.mark()
    g(f"""
    s_mul_i32 s{S_HD}, s{S_WI}, 52429
    s_lshr_b32 s{S_HD}, s{S_HD}, 18
    s_mul_i32 s{S_T0}, s{S_HD}, {NROWG}
    s_sub_u32 s{S_SEG}, s{S_WI}, s{S_T0}
    s_lshl_b32 s{S_COL}, s{S_HD}, 8
    s_add_u32 s{S_FA}, s{S_COL}, {WS_FLAGS}
    """)
    wstamp(g, opt, 0)
    worker_fill(g)
    clear_flags(g, 2)
    load_w32(g, mats[:2], 8192, opt.get("touch"), lambda: count_up(g, "qkv_in", DBG_INIT, False))
    wstamp(g, opt, 1)
    tile_addr(g, 8, 4096)
    g(f"""
    v_bfe_u32 v5, v0, 4, 1
    v_lshlrev_b32 v9, 10, v5
    v_bfe_u32 v5, v0, 5, 1
    v_lshl_add_u32 v9, v5, 9, v9
    v_and_b32 v5, 15, v0
    v_lshl_add_u32 v9, v5, 4, v9
    s_lshl_b32 s{S_T0}, s{S_WAVE}, 11
    s_add_u32 s{S_T0}, s{S_T0}, 8192
    v_add_u32 v9, s{S_T0}, v9
    """)
    bad = hazard.check(g.lines[m0:], "qkv prologue")

    def epi(ACC):
        P = 80
        g(f"""
        s_lshl_b32 s{S_O1}, s{S_SEG}, 5
        s_add_u32 s{S_O1}, s{S_O1}, s{S_HD}
        s_lshl_b32 s{S_O2}, s{S_O1}, 13
        s_add_u32 s{S_O2}, s{S_O2}, {WS_Q}
        s_lshl_b32 s{S_O1}, s{S_O1}, 14
        s_add_u32 s{S_O1}, s{S_O1}, {WS_KV}
        """)
        for rho in range(2):
            for x in range(4): g(f"v_cvt_pk_bf16_f32 v{P+4*rho+x}, v{ACC+8*rho+x}, v{ACC+8*rho+4+x}")
        for be in range(2):
            for ri in range(4):
                r = ACC + 16 + 8*(ri & 1) + 4*(ri >> 1) + 2*be
                g(f"v_cvt_pk_bf16_f32 v{P+8+4*be+ri}, v{r}, v{r+1}")
        for rho in range(2):
            for x in range(4): g(f"v_cvt_pk_bf16_f32 v{P+16+4*rho+x}, v{ACC+32+8*rho+x}, v{ACC+32+8*rho+4+x}")

    stores = ([f"buffer_store_dwordx4 {v(80+4*x,4)}, v8, {WSD}, s{S_O1} offen offset:{512*x} sc1" for x in range(2)] +
              [f"buffer_store_dwordx4 {v(88+4*x,4)}, v9, {WSD}, s{S_O1} offen offset:{256*x} sc1" for x in range(2)] +
              [f"buffer_store_dwordx4 {v(96+4*x,4)}, v8, {WSD}, s{S_O2} offen offset:{512*x} sc1" for x in range(2)])
    return bad + gemm_loop(g, "qkv", mats, stores, epi, lambda hook: load_w32(g, mats[2:], 8192, None, hook, False))


def ffn_role(g, opt):
    mats = [(P_WG, 512*2752, "a", 0, 1), (P_WU, 512*2752, "a", 128, 1)]
    m0 = g.mark()
    g(f"""
    s_sub_u32 s{S_O1}, s{S_WI}, 160
    s_mul_i32 s{S_HD}, s{S_O1}, 52429
    s_lshr_b32 s{S_HD}, s{S_HD}, 18
    s_mul_i32 s{S_T0}, s{S_HD}, {NROWG}
    s_sub_u32 s{S_SEG}, s{S_O1}, s{S_T0}
    s_lshl_b32 s{S_COL}, s{S_HD}, 8
    """)
    def pf2():
        g(f"v_lshlrev_b32 v126, 7, v0")
        if opt.get("pf3"):
            set_srd(g, P_WO, 4 * MB)
            g(f"s_lshr_b32 s{S_T2}, s{S_O1}, 1\ns_lshl_b32 s{S_T2}, s{S_T2}, 17\ns_and_b32 s{S_T3}, s{S_O1}, 1\ns_lshl_b32 s{S_T3}, s{S_T3}, 15")
            g(f"s_add_u32 s{S_T2}, s{S_T2}, s{S_T3}\ns_add_u32 s{S_T2}, s{S_T2}, 65536\nbuffer_load_dword v127, v126, {WD}, s{S_T2} offen")
        set_srd(g, P_WQ, 4 * MB)
        g(f"s_lshl_b32 s{S_T2}, s{S_O1}, 16")
        for x in range(2): g(f"buffer_load_dword v127, v126, {WD}, s{S_T2} offen\ns_add_u32 s{S_T2}, s{S_T2}, 32768")
    worker_fill(g)
    layernorm(g, S_O1, (pf2, 3 if opt.get("pf3") else 2) if opt.get("pf2") == 2 else None)
    count_up(g, "ffn_lnup", DBG_LN)
    count_up(g, "ffn_in", DBG_INIT, False)
    wstamp(g, opt, 0)
    if opt.get("pf2") == 1: pf2()
    g(f"s_cmp_ge_u32 s{S_HD}, 11\ns_cbranch_scc1 L_p3")
    load_w32(g, mats, 2752, opt.get("touch"))
    wstamp(g, opt, 1)
    tile_addr(g, 8, HM_SEG // 2)
    g(f"s_mov_b32 s{S_C0}, 0xffff0000\ns_mov_b32 s{S_C1}, 0xbdd2d3e8\ns_mov_b32 s{S_C2}, 0xc0135761")
    bad = hazard.check(g.lines[m0:], "ffn prologue")

    def epi(ACC):
        P, T = 80, 96
        U = ACC + 16
        g(f"""
        s_mul_i32 s{S_O1}, s{S_SEG}, {HM_SEG}
        s_lshl_b32 s{S_T0}, s{S_HD}, 12
        s_add_u32 s{S_O1}, s{S_O1}, s{S_T0}
        s_add_u32 s{S_O1}, s{S_O1}, {WS_HMID}
        v_mov_b32 v{T+16}, s{S_C2}
        """)

        def rnd(x, y):
            g(f"v_cvt_pk_bf16_f32 v{x}, v{x}, v{y}\nv_and_b32 v{y}, s{S_C0}, v{x}\nv_lshlrev_b32 v{x}, 16, v{x}")
        for rho in range(2):
            idx = [8*rho + i for i in range(8)]
            for x in range(4):
                rnd(ACC + 8*rho + x, ACC + 8*rho + 4 + x); rnd(U + 8*rho + x, U + 8*rho + 4 + x)
            for i in idx: g(f"v_mul_f32 v{T+i}, v{ACC+i}, v{ACC+i}")
            for i in idx: g(f"v_fma_f32 v{T+i}, v{T+i}, s{S_C1}, v{T+16}")
            for i in idx: g(f"v_mul_f32 v{T+i}, v{T+i}, v{ACC+i}")
            for i in idx: g(f"v_exp_f32 v{T+i}, v{T+i}")
            for i in idx: g(f"v_add_f32 v{T+i}, 1.0, v{T+i}")
            for i in idx: g(f"v_rcp_f32 v{T+i}, v{T+i}")
            for i in idx: g(f"v_mul_f32 v{ACC+i}, v{ACC+i}, v{T+i}")
            for x in range(4): rnd(ACC + 8*rho + x, ACC + 8*rho + 4 + x)
            for i in idx: g(f"v_mul_f32 v{ACC+i}, v{ACC+i}, v{U+i}")
            for x in range(4): g(f"v_cvt_pk_bf16_f32 v{P+4*rho+x}, v{ACC+8*rho+x}, v{ACC+8*rho+4+x}")

    stores = [f"buffer_store_dwordx4 {v(80+4*x,4)}, v8, {WSD}, s{S_O1} offen offset:{512*x} sc1" for x in range(2)]
    return bad + gemm_loop(g, "ffn", mats, stores, epi)


def p3_role(g, opt):
    LN16, KPA, RWA, RRA, XA, KMW, KMR, VMW, VMR, HFA, OFA = 1, 2, 3, 4, 5, 6, 7, 8, 9, 12, 13
    GV, XV = 14, 16
    ACC, SC, PB, OA, KM, VM = 20, 28, 44, 52, 68, 84
    ST = 92
    WDR = 168
    L_RED, L_KM, L_VM = 0, 8192, 12288
    S_TH, S_SCL, S_QO, S_KO, S_PO, S_HO = S_HD, S_C1, S_O1, S_O2, S_FA, S_PREV
    st = opt.get("st", "")
    S_OB = S_LB
    m0 = g.mark()
    DM, RA = 1, 2
    g(f"""
    s_lshr_b32 s{S_TH}, s{S_TK}, 4
    s_and_b32 s{S_COL}, s{S_TK}, 15
    s_lshl_b32 s{S_COL}, s{S_COL}, 6
    v_and_b32 v4, 63, v0
    v_lshrrev_b32 v5, 4, v4
    v_bfe_u32 v6, v4, 2, 2
    v_and_b32 v7, 1, v6
    v_lshlrev_b32 v{DM}, 4, v7
    v_lshl_add_u32 v{DM}, v5, 2, v{DM}
    v_lshrrev_b32 v7, 1, v6
    v_add_u32 v{DM}, v{DM}, v7
    v_lshlrev_b32 v{DM}, 10, v{DM}
    v_and_b32 v7, 1, v5
    v_lshlrev_b32 v7, 1, v7
    v_and_b32 v8, 3, v4
    v_xor_b32 v8, v8, v7
    v_lshl_add_u32 v{DM}, v8, 4, v{DM}
    v_add_u32 v{DM}, s{S_COL}, v{DM}
    v_lshrrev_b32 v8, 2, v4
    v_lshlrev_b32 v{RA}, 6, v8
    v_lshl_add_u32 v{RA}, v7, 4, v{RA}
    v_and_b32 v8, 3, v4
    v_lshl_add_u32 v{RA}, v8, 3, v{RA}
    s_lshl_b32 s{S_T3}, s{S_WAVE}, 15
    v_add_u32 v{RA}, s{S_T3}, v{RA}
    v_xor_b32 v{RA+1}, 32, v{RA}
    s_lshl_b32 s{S_T1}, s{S_WAVE}, 20
    s_mul_i32 s{S_T2}, s{S_WAVE}, {11*32768}
    """)
    steps = [("o", k) for k in range(32)] + [("d", k) for k in range(11)]
    AH = 12

    def issue(i):
        m, k = steps[i]
        if k == 0: set_srd(g, P_WO if m == "o" else P_WD, 4*MB if m == "o" else 1376*1024)
        for x in range(2):
            g(f"s_add_u32 m0, s{S_T3}, {(i % 16)*2048 + x*1024}\ns_add_u32 s{S_T0}, s{S_T1 if m == 'o' else S_T2}, {k*32768 + x*2048}")
            g(f"buffer_load_dwordx4 v{DM}, {WD}, s{S_T0} offen lds")

    wreg = lambda m, k, t, o=0, n=4: a(8*k + 4*t + o, n) if m == "o" else v(WDR + 8*k + 4*t + o, n)
    for i in range(AH): issue(i)
    for i, (m, k) in enumerate(steps):
        g(f"s_waitcnt vmcnt({2*min(AH - 1, len(steps) - 1 - i)}) lgkmcnt(8)")
        if i + AH < len(steps): issue(i + AH)
        for t in range(2):
            for x in range(2):
                g(f"ds_read_b64_tr_b16 {wreg(m, k, t, 2*x, 2)}, v{RA+t} offset:{(i % 16)*2048 + x*1024}")
    g("s_waitcnt lgkmcnt(0)\ns_barrier")
    g(f"""
    v_and_b32 v20, 63, v0
    v_lshrrev_b32 v21, 4, v20
    v_and_b32 v22, 15, v20
    v_lshlrev_b32 v{LN16}, 4, v20
    v_bfe_u32 v23, v22, 1, 1
    v_lshlrev_b32 v{KPA}, 3, v23
    v_lshrrev_b32 v23, 2, v22
    v_lshl_add_u32 v{KPA}, v23, 1, v{KPA}
    v_and_b32 v24, 1, v22
    v_add_u32 v{KPA}, v{KPA}, v24
    v_lshl_add_u32 v{KPA}, v21, 4, v{KPA}
    v_lshlrev_b32 v{KPA}, 4, v{KPA}
    v_lshl_add_u32 v{KMR}, v23, 1, v24
    v_lshlrev_b32 v{KMR}, 4, v{KMR}
    v_mul_u32_u24 v24, 144, v21
    v_add_u32 v{KMR}, v{KMR}, v24
    v_add_u32 v{KMR}, {L_KM}, v{KMR}
    v_mul_u32_u24 v{KMW}, 144, v23
    v_lshl_add_u32 v{KMW}, v21, 5, v{KMW}
    v_and_b32 v24, 3, v22
    v_lshl_add_u32 v{KMW}, v24, 2, v{KMW}
    s_mul_i32 s{S_T0}, s{S_WAVE}, 576
    s_add_u32 s{S_T0}, s{S_T0}, {L_KM}
    v_add_u32 v{KMW}, s{S_T0}, v{KMW}
    v_lshlrev_b32 v{VMW}, 3, v0
    v_add_u32 v{VMW}, {L_VM}, v{VMW}
    s_lshr_b32 s{S_T0}, s{S_WAVE}, 1
    s_lshl_b32 s{S_T0}, s{S_T0}, 10
    s_add_u32 s{S_T0}, s{S_T0}, {L_VM}
    v_lshlrev_b32 v{VMR}, 3, v20
    v_add_u32 v{VMR}, s{S_T0}, v{VMR}
    s_lshl_b32 s{S_T0}, s{S_WAVE}, 11
    v_lshlrev_b32 v{RWA}, 7, v22
    v_lshl_add_u32 v{RWA}, v21, 4, v{RWA}
    v_add_u32 v{RWA}, s{S_T0}, v{RWA}
    v_lshlrev_b32 v{RRA}, 3, v0
    v_lshrrev_b32 v24, 4, v0
    v_lshlrev_b32 v{XA}, 10, v24
    v_lshl_add_u32 v{XA}, v22, 2, v{XA}
    s_lshl_b32 s{S_T0}, s{S_TH}, 14
    s_add_u32 s{S_T0}, s{S_T0}, s{S_COL}
    v_add_u32 v{XA}, s{S_T0}, v{XA}
    v_min_u32 v{HFA}, 10, v20
    v_lshlrev_b32 v{HFA}, 2, v{HFA}
    v_and_b32 v{OFA}, 7, v20
    s_lshl_b32 s{S_T0}, s{S_WAVE}, 3
    v_add_u32 v{OFA}, s{S_T0}, v{OFA}
    v_lshlrev_b32 v{OFA}, 2, v{OFA}
    s_and_b32 s{S_T0}, s{S_WAVE}, 1
    s_lshl_b32 s{S_T0}, s{S_T0}, 4
    v_add_u32 v22, s{S_T0}, v22
    v_lshlrev_b32 v21, 1, v21
    v_sub_u32 v22, v22, v21
    """)
    for T in range(2):
        for r in range(4):
            g(f"v_cmp_le_i32 s[{S_MK+2*(4*T+r)}:{S_MK+2*(4*T+r)+1}], {16*T + 8*(r >> 1) + (r & 1)}, v22")
    g(f"""
    s_mov_b32 s{S_OUT}, s{P_OUT}
    s_mov_b32 s{S_OUT+1}, s{P_OUT+1}
    s_mov_b32 s{S_OUT+2}, {2*MB}
    s_mov_b32 s{S_OUT+3}, 0x20000
    s_mov_b32 s{S_SCL}, 0x3e0293ee
    s_mov_b32 s{S_C0}, 0xffff0000
    s_mov_b32 s{S_C2}, 0xbfb8aa3b
    s_sub_u32 s{S_SEG}, s{S_XCC}, 1
    s_lshl_b32 s{S_OB}, s{S_SEG}, 1
    v_mov_b32 v{PB+5}, 0
    v_mov_b32 v{PB+6}, 0
    """)
    set_srd(g, P_X, 2 * MB)
    spin_counter(g, "p3_init", DBG_INIT, 224)
    spin_counter(g, "p3_team", DBG_TEAM, 32)
    spin_counter(g, "p3_adone", DBG_ADONE, 215, 8)
    bad = hazard.check(g.lines[m0:], "p3 prologue")

    def reduce(dst):
        g("s_nop 7")
        for t in range(2): g(f"ds_write_b128 v{RWA}, {v(ACC+4*t,4)} offset:{L_RED + 64*t}")
        g("s_waitcnt lgkmcnt(0)\ns_barrier")
        for x in range(4): g(f"ds_read_b64 {v(ACC+2*x,2)}, v{RRA} offset:{L_RED + 2048*x}")
        g(f"""
        s_waitcnt lgkmcnt(0)
        v_pk_add_f32 {v(ACC,2)}, {v(ACC,2)}, {v(ACC+2,2)}
        v_pk_add_f32 {v(ACC+4,2)}, {v(ACC+4,2)}, {v(ACC+6,2)}
        v_pk_add_f32 {v(ACC,2)}, {v(ACC,2)}, {v(ACC+4,2)}
        v_cvt_pk_bf16_f32 v{dst}, v{ACC}, v{ACC+1}
        v_and_b32 v{dst+1}, s{S_C0}, v{dst}
        v_lshlrev_b32 v{dst}, 16, v{dst}
        """)

    wstamp(g, opt, 3)
    g("L_p3_seg:")
    m1 = g.mark()
    pstamp(g, opt, 0)
    QR_, KR_, VR_, HM = ST, ST + 16, ST + 48, SC
    g(f"""
    s_lshl_b32 s{S_T0}, s{S_SEG}, 1
    s_add_u32 s{S_T0}, s{S_T0}, s{S_TH}
    s_mul_i32 s{S_HO}, s{S_T0}, {HM_SEG // 2}
    s_mul_i32 s{S_T1}, s{S_WAVE}, {11*1024}
    s_add_u32 s{S_HO}, s{S_HO}, s{S_T1}
    s_add_u32 s{S_HO}, s{S_HO}, {WS_HMID}
    s_cmp_eq_u32 s{S_WAVE}, 3
    s_cselect_b32 s{S_T1}, 0x40000000, 0
    """)
    for k in range(11):
        if k == 10: g(f"s_add_u32 s{S_HO}, s{S_HO}, s{S_T1}")
        g(f"buffer_load_dwordx4 {v(HM+4*k,4)}, v{LN16}, {WSD}, s{S_HO} offen offset:{(k & 3)*1024} sc1")
        if k & 3 == 3: g(f"s_add_u32 s{S_HO}, s{S_HO}, 4096")
    g(f"s_lshl_b32 s{S_XO}, s{S_SEG}, 15\nbuffer_load_dword v{XV}, v{XA}, {WD}, s{S_XO} offen")
    g(f"""
    s_lshl_b32 s{S_T0}, s{S_SEG}, 5
    s_add_u32 s{S_T0}, s{S_T0}, s{S_TK}
    s_lshl_b32 s{S_QO}, s{S_T0}, 13
    s_and_b32 s{S_T1}, s{S_WAVE}, 1
    s_lshl_b32 s{S_T1}, s{S_T1}, 12
    s_add_u32 s{S_QO}, s{S_QO}, s{S_T1}
    s_add_u32 s{S_QO}, s{S_QO}, {WS_Q}
    s_lshl_b32 s{S_KO}, s{S_T0}, 14
    s_add_u32 s{S_KO}, s{S_KO}, {WS_KV}
    s_lshl_b32 s{S_PO}, s{S_T0}, 2
    s_add_u32 s{S_PO}, s{S_PO}, s{S_WAVE}
    s_lshl_b32 s{S_PO}, s{S_PO}, 10
    s_add_u32 s{S_PO}, s{S_PO}, {WS_PUB}
    s_add_u32 s{S_T1}, s{S_KO}, 4096
    s_lshr_b32 s{S_T2}, s{S_WAVE}, 1
    s_lshl_b32 s{S_T2}, s{S_T2}, 12
    s_add_u32 s{S_T2}, s{S_T2}, s{S_KO}
    s_add_u32 s{S_T2}, s{S_T2}, 8192
    """)
    for x in range(4):
        g(f"buffer_load_dwordx4 {v(QR_+4*x,4)}, v{LN16}, {WSD}, s{S_QO} offen offset:{x*1024} sc1")
        g(f"buffer_load_dwordx4 {v(KR_+4*x,4)}, v{KPA}, {WSD}, s{S_KO} offen offset:{x*1024} sc1")
        g(f"buffer_load_dwordx4 {v(KR_+16+4*x,4)}, v{KPA}, {WSD}, s{S_T1} offen offset:{x*1024} sc1")
    for x in range(4):
        g(f"buffer_load_dwordx4 {v(VR_+4*x,4)}, v{LN16}, {WSD}, s{S_T2} offen offset:{x*1024} sc1")
    for k in range(11):
        g(f"s_waitcnt vmcnt({27-k})")
        for t in range(2): g(mf16(ACC + 4*t, wreg("d", k, t), v(HM + 4*k, 4), k == 0))
    reduce(GV)
    g(f"""
    v_mul_f32 v{ACC}, s{S_C2}, v{GV}
    v_mul_f32 v{ACC+1}, s{S_C2}, v{GV+1}
    v_exp_f32 v{ACC}, v{ACC}
    v_exp_f32 v{ACC+1}, v{ACC+1}
    s_nop 0
    v_add_f32 v{ACC}, 1.0, v{ACC}
    v_add_f32 v{ACC+1}, 1.0, v{ACC+1}
    v_rcp_f32 v{ACC}, v{ACC}
    v_rcp_f32 v{ACC+1}, v{ACC+1}
    s_waitcnt vmcnt(16)
    v_pk_mul_f32 {v(GV,2)}, {v(GV,2)}, {v(ACC,2)}
    v_cvt_pk_bf16_f32 v{GV}, v{GV}, v{GV+1}
    v_and_b32 v{GV+1}, s{S_C0}, v{GV}
    v_lshlrev_b32 v{GV}, 16, v{GV}
    v_and_b32 v{XV+1}, s{S_C0}, v{XV}
    v_lshlrev_b32 v{XV}, 16, v{XV}
    """)
    g(f"v_mov_b32 v{PB+5}, 0\nv_mov_b32 v{PB+6}, 0\nv_mov_b32 v10, 0")
    for x in range(4):
        g(f"s_waitcnt vmcnt({4 + 3*(3-x)})")
        for T in range(2): g(mf16(SC + 4*T, v(KR_ + 16*T + 4*x, 4), v(QR_ + 4*x, 4), x == 0))
    MX, MY = SC + 12, SC + 13
    g(f"v_mov_b32 v{MY}, 0xd028965f\ns_nop 7")
    for i in range(8): g(f"v_cndmask_b32 v{SC+i}, v{MY}, v{SC+i}, s[{S_MK+2*i}:{S_MK+2*i+1}]")
    g(f"v_max3_f32 v{MX}, v{SC}, v{SC+1}, v{SC+2}\nv_max3_f32 v{MX}, v{MX}, v{SC+3}, v{SC+4}\nv_max3_f32 v{MX}, v{MX}, v{SC+5}, v{SC+6}\nv_max_f32 v{MX}, v{MX}, v{SC+7}")
    pstamp(g, opt, 3)
    g(f"""
    s_lshl_b32 s{S_T2}, s{S_TK}, 7
    s_add_u32 s{S_T2}, s{S_T2}, {WS_PF}
    s_add_u32 s{S_T1}, s{S_SEG}, 3
    s_cmp_lt_u32 s{S_SEG}, 62
    s_cselect_b32 s{S_T1}, s{S_T1}, 63
    L_p3_pf:
    buffer_load_dword v11, v10, {WSD}, s{S_T2} offen sc1
    s_add_u32 s{S_SPIN}, s{S_SPIN}, 1
    s_cmp_gt_u32 s{S_SPIN}, {SPIN_MAX}
    s_cbranch_scc1 L_p3_pub
    s_waitcnt vmcnt(0)
    v_cmp_gt_u32 vcc, s{S_T1}, v11
    s_cbranch_vccz L_p3_pub
    s_sleep 4
    s_branch L_p3_pf
    L_p3_pub:
    buffer_load_dwordx4 {v(OA,4)}, v{LN16}, {WSD}, s{S_PO} offen sc1
    s_add_u32 s{S_SPIN}, s{S_SPIN}, 1
    s_cmp_gt_u32 s{S_SPIN}, {SPIN_MAX}
    s_cbranch_scc1 L_p3_pub_out
    s_waitcnt vmcnt(0)
    v_max3_u32 v11, v{OA}, v{OA+1}, v{OA+2}
    v_max_u32 v11, v11, v{OA+3}
    v_cmp_eq_u32 vcc, s{S_SENT}, v11
    s_cbranch_vccz L_p3_pub_out
    s_sleep {opt.get('psleep', 2)}
    s_branch L_p3_pub
    L_p3_pub_out:
    s_waitcnt vmcnt(0)
    ds_write2_b32 v{KMW}, v{OA}, v{OA+1} offset0:0 offset1:4
    ds_write_b64 v{VMW}, {v(OA+2,2)}
    s_waitcnt lgkmcnt(0)
    s_barrier
    """)
    pstamp(g, opt, 4)
    for x in range(4): g(f"ds_read_b128 {v(KM+4*x,4)}, v{KMR} offset:{576*x}")
    for x in range(2): g(f"ds_read_b64 {v(VM+2*x,2)}, v{VMR} offset:{512*x}")
    for x in range(4):
        g(f"s_waitcnt lgkmcnt({5-x})")
        g(mf16(SC + 8, v(KM + 4*x, 4), v(QR_ + 4*x, 4), x == 0))
    g(f"""
    s_lshl_b32 s{S_T0}, s{S_OB}, 1
    s_and_b32 s{S_T1}, s{S_WAVE}, 1
    s_add_u32 s{S_T0}, s{S_T0}, s{S_T1}
    s_lshl_b32 s{S_T0}, s{S_T0}, 5
    s_add_u32 s{S_T0}, s{S_T0}, s{S_TK}
    s_lshl_b32 s{S_T0}, s{S_T0}, 2
    s_and_b32 s{S_T1}, s{S_WAVE}, 2
    s_add_u32 s{S_T0}, s{S_T0}, s{S_T1}
    s_lshl_b32 s{S_T0}, s{S_T0}, 10
    s_add_u32 s{S_T0}, s{S_T0}, {WS_O}
    v_max3_f32 v{MX}, v{MX}, v{SC+8}, v{SC+9}
    """)

    def cross(r, t, op):
        for sw in (16, 32):
            g(f"v_mov_b32 v{t}, v{r}\ns_nop 1\nv_permlane{sw}_swap_b32 v{r}, v{t}\n{op} v{r}, v{r}, v{t}")
    cross(MX, MY, "v_max_f32")
    g(f"v_mul_f32 v{MX}, s{S_SCL}, v{MX}")
    for i in range(10): g(f"v_fma_f32 v{SC+i}, v{SC+i}, s{S_SCL}, -v{MX}")
    for i in range(10): g(f"v_exp_f32 v{SC+i}, v{SC+i}")
    for ri in range(4):
        r = SC + 4*(ri & 1) + 2*(ri >> 1)
        g(f"v_cvt_pk_bf16_f32 v{PB+ri}, v{r}, v{r+1}")
    g(f"v_cvt_pk_bf16_f32 v{PB+4}, v{SC+8}, v{SC+9}\nv_cvt_pk_bf16_f32 v{PB+7}, v{SC+8}, v{SC+9}\ns_waitcnt lgkmcnt(0)")
    for e in range(4):
        g(mf16(OA + 4*e, v(VR_ + 4*e, 4), v(PB, 4), True))
        g(f"v_add_f32 v{SC+2*e}, v{SC+2*e}, v{SC+2*e+1}")
    sums = [f"v_add_f32 v{SC+8}, v{SC+8}, v{SC+9}", f"v_add_f32 v{SC}, v{SC}, v{SC+2}", f"v_add_f32 v{SC+4}, v{SC+4}, v{SC+6}", f"v_add_f32 v{SC}, v{SC}, v{SC+8}"]
    for e in range(4):
        g(f"v_mfma_f32_16x16x16_bf16 {v(OA+4*e,4)}, {v(VM+2*(e >> 1),2)}, {v(PB+4+2*(e & 1),2)}, {v(OA+4*e,4)}")
        g(sums[e])
    g(f"v_add_f32 v{SC}, v{SC}, v{SC+4}")
    cross(SC, SC + 1, "v_add_f32")
    g(f"v_rcp_f32 v{SC}, v{SC}\ns_nop 0")
    for x in range(2):
        for i in range(8): g(f"v_mul_f32 v{OA+8*x+i}, v{OA+8*x+i}, v{SC}")
        for r in range(4): g(f"v_cvt_pk_bf16_f32 v{KM+4*x+r}, v{OA+8*x+r}, v{OA+8*x+4+r}")
        g(f"buffer_store_dwordx4 {v(KM+4*x,4)}, v{LN16}, {WSD}, s{S_T0} offen offset:{x*1024} {st}")
    g(f"""
    s_lshl_b32 s{S_T2}, s{S_SEG}, 7
    s_add_u32 s{S_T2}, s{S_T2}, {WS_OF}
    s_lshl_b32 s{S_T1}, s{S_TK}, 2
    s_add_u32 s{S_T1}, s{S_T1}, s{S_T2}
    s_lshl_b32 s{S_T0}, s{S_OB}, 1
    s_add_u32 s{S_T0}, s{S_T0}, s{S_TH}
    s_lshl_b32 s{S_T0}, s{S_T0}, 2
    s_add_u32 s{S_T0}, s{S_T0}, s{S_WAVE}
    s_lshl_b32 s{S_T0}, s{S_T0}, 15
    s_add_u32 s{S_HO}, s{S_T0}, {WS_O}
    s_waitcnt vmcnt(0)
    s_barrier
    """)
    pstamp(g, opt, 5)
    set_flag(g, "p3_of", S_T1, st)
    spin_flags(g, "p3_ow", OFA, S_T2, 0)
    pstamp(g, opt, 6)
    NB = 16

    def old(k):
        g(f"buffer_load_dwordx4 {v(ST+4*(k % NB),4)}, v{LN16}, {WSD}, s{S_HO} offen offset:{(k & 3)*1024} sc1")
        if k & 3 == 3: g(f"s_add_u32 s{S_HO}, s{S_HO}, 4096")
    for k in range(NB): old(k)
    for k in range(32):
        g(f"s_waitcnt vmcnt({min(NB - 1, 31 - k)})")
        for t in range(2): g(mf16(ACC + 4*t, wreg("o", k, t), v(ST + 4*(k % NB), 4), k == 0))
        if k + NB < 32: old(k + NB)
    pstamp(g, opt, 7)
    reduce(SC)
    pstamp(g, opt, 8)
    g(f"""
    v_pk_mul_f32 {v(SC,2)}, {v(SC,2)}, {v(GV,2)}
    v_cvt_pk_bf16_f32 v{SC}, v{SC}, v{SC+1}
    v_and_b32 v{SC+1}, s{S_C0}, v{SC}
    v_lshlrev_b32 v{SC}, 16, v{SC}
    v_pk_add_f32 {v(SC,2)}, {v(SC,2)}, {v(XV,2)}
    v_cvt_pk_bf16_f32 v{SC}, v{SC}, v{SC+1}
    buffer_store_dword v{SC}, v{XA}, s[{S_OUT}:{S_OUT+3}], s{S_XO} offen
    s_xor_b32 s{S_OB}, s{S_OB}, 1
    s_add_u32 s{S_SEG}, s{S_SEG}, 7
    s_cmp_lt_u32 s{S_SEG}, {NSEG}
    s_barrier
    s_cbranch_scc1 L_p3_seg
    """)
    bad += hazard.check(g.lines[m1:], "p3 loop")
    wstamp(g, opt, 4, True)
    if opt.get("dbgt"):
        g(f"s_cmp_lg_u32 s{S_WAVE}, 0\ns_cbranch_scc1 L_dt2\ns_cmp_lg_u32 s{S_XCC}, 1\ns_cbranch_scc1 L_dt2")
        dbg_time(g, opt, 6)
        g("L_dt2:")
    g("s_waitcnt vmcnt(0)\ns_endpgm")
    return bad


def worker_roles(g, opt):
    m0 = g.mark()
    worker_init(g)
    bad = hazard.check(g.lines[m0:], "worker init")
    g(f"s_cmp_ge_u32 s{S_WI}, 160\ns_cbranch_scc1 L_ffn")
    bad += qkv_role(g, opt)
    g("s_branch L_p3\nL_ffn:")
    bad += ffn_role(g, opt)
    g("L_p3:")
    wstamp(g, opt, 2)
    bad += p3_role(g, opt)
    return bad
```

```python
from asmlib import *
from layout import *

S_WS = 4
S_W = 8
P_X, P_MEM0, P_WQ, P_WK, P_WV, P_WO, P_SEG, P_BX, P_WG, P_WU, P_WD, P_OUT, P_DBG, P_WSP = range(16, 44, 2)
S_XCC, S_TK, S_WAVE = 44, 45, 46
S_SPIN = 3
S_SENT = 12
SENT = 0xffbfffbf
S_T0, S_T1, S_T2, S_T3 = 47, 48, 49, 50
S_STEP, S_H1ST, S_H1ST2, S_H1LD, S_H1LD2, S_TAG, S_H2LD, S_H2LD2, S_H2ST, S_KV, S_PUB, S_FREE0, S_SC, S_FL, S_FREE1 = range(51, 66)
S_HF = 66
S_RDY = 68
S_ONE = 70
S_H2RS, S_F12 = 72, 73
S_KV2, S_VV = 100, 101
IDX, LW, LM, H1ST, H2ST, QW, QR, KR, OW, FLG, TCH = range(1, 12)
VN, PA, VX, ACC, M, POOL, KN, WRES = 12, 20, 24, 40, 64, 96, 144, 152
FV, GM, FAD, FST = VX + 3, VX + 7, VX + 11, VX + 15
A = [ACC + 4 * i for i in range(6)]
LDS_WAVE = 38912
LDS_MISC = 155648
L_KX = LDS_MISC
L_QK = LDS_MISC
L_O = L_QK + 4096
SPIN_MAX = 1 << 13

G_R = [[(m, 0, t), (m, 1, t)] for m, t in (("q", 0), ("v", 1), ("k", 3), ("q", 7), ("k", 7), ("v", 7))]
G_M = G_R[1] + G_R[2] + G_R[3]
G_QK = G_R[4] + G_R[5] + G_R[0]
G_O = [("o", 4, 1), ("o", 5, 0), ("o", 5, 1), ("o", 6, 0), ("o", 6, 1), ("o", 7, 0), ("o", 7, 1)]
LDS_IDX = {k: i for i, k in enumerate(G_M + G_O[:6] + G_QK + G_O[6:])}
LOC = {}
for k, i in zip(G_O, (4, 5, 1, 2, 3, 0, 4)):
    LOC[k] = ("v", POOL + 8 * i)
for k in G_M + G_QK:
    LOC[k] = ("v", POOL + 32 + 8 * k[1])
_n = 0
for k in [(m, x, t) for m in "qkv" for t in range(8) for x in range(2)] + [("o", x, t) for x in range(8) for t in range(2)]:
    if k in LOC: continue
    LOC[k] = ("a", 8 * _n) if _n < 32 else ("v", WRES + 8 * (_n - 32))
    _n += 1
assert _n == 45


def rng(f, b, n):
    return a(b, n) if f == "a" else v(b, n)


def wop(k):
    return rng(LOC[k][0], LOC[k][1], 8)


def smf(d, aop, k, abid=0):
    b = wop(k) if isinstance(k, tuple) else k
    return f"v_smfmac_f32_16x16x64_bf16 {v(d,4)}, {v(aop,4)}, {b}, {v(IDX)}" + (" abid:1" if abid else "")


def mf(d, x, y, c):
    return f"v_mfma_f32_16x16x32_bf16 {v(d,4)}, {v(x,4)}, {v(y,4)}, " + ("0" if c is None else v(c, 4))


def stage_reads(grp):
    return [f"ds_read_b128 {v(LOC[k][1]+4*hh,4)}, {v(LW)} offset:{LDS_IDX[k]*2048+hh*1024}" for k in grp for hh in range(2)]


def zero(base, n):
    return [f"v_mov_b64 {v(base+2*i,2)}, 0" for i in range(n // 2)]


def set_srd(g, ptr, nbytes):
    g(f"s_mov_b32 s{S_W}, s{ptr}\ns_mov_b32 s{S_W+1}, s{ptr+1}\ns_mov_b32 s{S_W+2}, {nbytes}\ns_mov_b32 s{S_W+3}, 0x20000")


def dbg_time(g, opt, slot, neg=False):
    if not opt.get("dbgt"): return
    g(f"""
    s_memrealtime s[88:89]
    s_waitcnt lgkmcnt(0)
    {'s_not_b32 s88, s88' if neg else ''}
    v_mov_b32 v90, {4*slot}
    v_mov_b32 v91, s88
    s_mov_b64 exec, 1
    global_atomic_umax v90, v91, s[{P_DBG}:{P_DBG+1}]
    s_mov_b64 exec, -1
    """)


def load_weights(g, hooks, nt, order):
    RA, RO, DQ, DO = 10, 12, 20, 21
    T0, T1, T2, T3 = 56, 57, 58, 59
    g(f"""
    v_and_b32 v{T0}, 63, v0
    v_lshrrev_b32 v{T1}, 4, v{T0}
    v_and_b32 v{T2}, 15, v{T0}
    s_and_b32 s{S_T0}, s{S_WAVE}, 1
    s_lshr_b32 s{S_T1}, s{S_WAVE}, 1
    s_lshl_b32 s{S_T1}, s{S_T1}, 6
    s_add_u32 s{S_T1}, s{S_T1}, s{S_T0}
    s_lshl_b32 s{S_T1}, s{S_T1}, 14
    s_lshl_b32 s{S_T2}, s{S_TK}, 8
    s_add_u32 s{S_T1}, s{S_T1}, s{S_T2}
    s_lshl_b32 s{S_T0}, s{S_T0}, 3
    v_lshlrev_b32 v{T3}, 1, v{T1}
    v_xor_b32 v{T3}, v{T3}, v{T2}
    v_xor_b32 v{DQ}, s{S_T0}, v{T3}
    v_lshlrev_b32 v{DQ}, 4, v{DQ}
    v_lshlrev_b32 v{DO}, 4, v{T3}
    v_lshrrev_b32 v{T2}, 1, v{T1}
    v_and_b32 v{T3}, 1, v{T1}
    v_lshl_add_u32 v{DQ}, v{T2}, 16, v{DQ}
    v_lshl_add_u32 v{DQ}, v{T3}, 17, v{DQ}
    v_add_u32 v{DQ}, s{S_T1}, v{DQ}
    v_lshl_add_u32 v{DO}, v{T2}, 12, v{DO}
    v_lshl_add_u32 v{DO}, v{T3}, 14, v{DO}
    s_lshl_b32 s{S_T1}, s{S_TK}, 17
    s_lshl_b32 s{S_T2}, s{S_WAVE}, 8
    s_add_u32 s{S_T1}, s{S_T1}, s{S_T2}
    v_add_u32 v{DO}, s{S_T1}, v{DO}
    v_xor_b32 v{DO+1}, 0x80, v{DO}
    """)
    g(f"""
    v_bfe_u32 v{T2}, v{T0}, 2, 2
    v_and_b32 v{T3}, 1, v{T1}
    v_lshl_add_u32 v{T3}, v{T3}, 2, v{T2}
    v_lshlrev_b32 v{T3}, 5, v{T3}
    v_lshl_add_u32 v{T3}, v{T2}, 8, v{T3}
    v_and_b32 v{T2}, 3, v{T0}
    v_lshl_add_u32 v{T3}, v{T2}, 3, v{T3}
    s_lshl_b32 s{S_T0}, s{S_WAVE}, 6
    v_xor_b32 v{RA}, s{S_T0}, v{T3}
    s_mov_b32 s{S_T0}, {LDS_WAVE}
    v_mul_lo_u32 v{T2}, s{S_T0}, v{T1}
    v_add_u32 v{RA}, v{RA}, v{T2}
    v_xor_b32 v{RA+1}, 32, v{RA}
    s_mul_i32 s{S_T3}, s{S_WAVE}, {LDS_WAVE}
    v_lshl_add_u32 v{RO}, v{T1}, 10, v{T3}
    v_add_u32 v{RO}, s{S_T3}, v{RO}
    """)
    for tau in range(1, 8):
        g(f"v_xor_b32 v{RO+tau}, {32*tau}, v{RO}")
    stages = [(m, t) for m in order for t in range(8)]
    park = {}
    for i, k in enumerate(G_QK): park[k] = ("v", POOL + 8 * i)
    for i, k in enumerate(G_O): park[k] = ("v", M + 8 * i) if i < 4 else ("v", VX + 8 * (i - 4)) if i < 6 else ("v", KN)
    for k in G_M: park[k] = ("v", ACC + 8 * k[1])

    def issue(i):
        m, t = stages[i]
        if t == 0:
            set_srd(g, {"q": P_WQ, "k": P_WK, "v": P_WV, "o": P_WO}[m], 4 * MB)
        for x in range(4):
            if m == "o":
                row = 64 * (t >> 2) + 32 * ((t >> 1) & 1) + (t & 1) + 8 * (x >> 1) + 2 * (x & 1)
                so, vo = row * 1024, DO + (x & 1)
            else:
                so, vo = (256 * (x >> 1) + (x & 1) + 64 * (t >> 2) + 32 * ((t >> 1) & 1) + 4 * (t & 1)) * 8192, DQ
            g(f"s_add_u32 m0, s{S_T3}, {16384 + (i % 5) * 4096 + x * 1024}")
            g(f"s_mov_b32 s{S_T0}, {so}")
            g(f"buffer_load_dwordx4 v{vo}, s[{S_W}:{S_W+3}], s{S_T0} offen {'nt' if m in nt else ''} lds")

    for i in range(4):
        issue(i)
    for i, (m, t) in enumerate(stages):
        g(f"s_waitcnt vmcnt({4 * min(3, len(stages) - 1 - i)}) lgkmcnt(0)\ns_barrier")
        if i and stages[i - 1] == ("o", 7):
            for hh in range(2): g(f"ds_write_b128 v{LW}, {v(KN+4*hh,4)} offset:{LDS_IDX[G_O[6]]*2048+hh*1024}")
        if i in hooks: hooks[i]()
        if i + 4 < len(stages):
            issue(i + 4)
        base = 16384 + (i % 5) * 4096
        for x in range(8):
            if m == "o":
                k, rho, ad, off = ("o", x, t >> 2), t & 3, RO + x, base
            else:
                k, rho, ad, off = (m, x >> 2, t), x & 3, RA + (x >> 2), base + (x & 3) * 1024
            f, b = park.get(k, LOC[k])
            g(f"ds_read_b64_tr_b16 {rng(f, b + 2*rho, 2)}, v{ad} offset:{off}")
        if (m, 0, t) in G_M:
            g("s_waitcnt lgkmcnt(0)")
            for sg in range(2):
                for hh in range(2):
                    g(f"ds_write_b128 v{LW}, {v(ACC+8*sg+4*hh,4)} offset:{LDS_IDX[(m,sg,t)]*2048+hh*1024}")
    g("s_waitcnt lgkmcnt(0)\ns_barrier")
    for k in G_O[:6] + G_QK:
        for hh in range(2):
            g(f"ds_write_b128 v{LW}, {v(park[k][1]+4*hh,4)} offset:{LDS_IDX[k]*2048+hh*1024}")
    g("s_waitcnt lgkmcnt(0)")


def setup_early(g, st):
    T0, T1, T2, T3 = 56, 57, 58, 59
    g(f"""
    v_and_b32 v{T0}, 63, v0
    v_lshlrev_b32 v{LM}, 4, v{T0}
    s_mul_i32 s{S_T0}, s{S_WAVE}, {LDS_WAVE}
    v_add_u32 v{LW}, s{S_T0}, v{LM}
    v_add_u32 v{LM}, {LDS_MISC}, v{LM}
    v_lshrrev_b32 v{T1}, 4, v{T0}
    v_and_b32 v{T2}, 15, v{T0}
    s_lshl_b32 s{S_T0}, s{S_WAVE}, 3
    v_lshrrev_b32 v{T3}, 3, v{T0}
    v_add_u32 v{T3}, s{S_T0}, v{T3}
    v_lshlrev_b32 v{H1ST}, 13, v{T3}
    v_lshl_add_u32 v{T3}, v{T3}, 1, s{S_TK}
    v_and_b32 v{T3}, 31, v{T3}
    v_lshl_add_u32 v{H1ST}, v{T3}, 7, v{H1ST}
    v_and_b32 v{T3}, 7, v{T0}
    v_lshl_add_u32 v{H1ST}, v{T3}, 3, v{H1ST}
    v_lshrrev_b32 v{T3}, 3, v{T2}
    v_lshlrev_b32 v{H2ST}, 29, v{T3}
    v_bfe_u32 v{T3}, v{T2}, 1, 1
    v_lshl_add_u32 v{H2ST}, v{T3}, 11, v{H2ST}
    v_bfe_u32 v{T3}, v{T2}, 2, 1
    v_lshl_add_u32 v{H2ST}, v{T3}, 7, v{H2ST}
    v_and_b32 v{T3}, 1, v{T2}
    v_lshl_add_u32 v{H2ST}, v{T3}, 3, v{H2ST}
    v_and_b32 v{T3}, 1, v{T1}
    v_lshl_add_u32 v{H2ST}, v{T3}, 4, v{H2ST}
    v_lshrrev_b32 v{T3}, 1, v{T1}
    v_lshl_add_u32 v{H2ST}, v{T3}, 30, v{H2ST}
    s_and_b32 s{S_T0}, s{S_TK}, 3
    s_lshl_b32 s{S_T0}, s{S_T0}, 5
    s_lshr_b32 s{S_T1}, s{S_TK}, 2
    s_lshl_b32 s{S_T1}, s{S_T1}, 8
    s_add_u32 s{S_T0}, s{S_T0}, s{S_T1}
    s_and_b32 s{S_T2}, s{S_WAVE}, 1
    s_lshl_b32 s{S_T2}, s{S_T2}, 12
    s_add_u32 s{S_T0}, s{S_T0}, s{S_T2}
    v_add_u32 v{H2ST}, s{S_T0}, v{H2ST}
    """)
    g(f"""
    s_mov_b32 s{S_STEP}, 0
    s_lshl_b32 s{S_T0}, s{S_TK}, 13
    s_add_u32 s{S_H1LD}, s{S_T0}, {WS_H1 - LDS_MISC}
    s_mov_b32 s{S_H1ST}, {WS_H1}
    s_mov_b32 s{S_H1ST2}, {WS_H1 + 4096}
    s_mov_b32 s{S_H2LD}, {WS_H2}
    s_mov_b32 s{S_H2LD2}, {WS_H2 + 4096}
    s_lshl_b32 s{S_T0}, s{S_TK}, 14
    s_add_u32 s{S_KV}, s{S_T0}, {WS_KV - LDS_MISC}
    s_lshl_b32 s{S_T0}, s{S_TK}, 2
    s_add_u32 s{S_T0}, s{S_T0}, s{S_WAVE}
    s_lshl_b32 s{S_T0}, s{S_T0}, 10
    s_add_u32 s{S_F12}, s{S_T0}, {WS_PUB - LDS_MISC}
    s_mov_b32 s{S_PUB}, 0x40000000
    s_lshl_b32 s{S_T0}, s{S_TK}, 8
    s_add_u32 s{S_FL}, s{S_T0}, {WS_FLAGS}
    s_mov_b32 s{S_HF}, 0xcccccccc
    s_mov_b32 s{S_HF+1}, 0xcccccccc
    s_mov_b32 s{S_SC}, 0x3e0293ee
    s_mov_b32 s{S_SC-1}, 0x3e0293ee
    v_mov_b64 v[60:61], -1
    v_mov_b64 v[62:63], -1
    s_lshl_b32 s{S_T1}, s{S_WAVE}, 11
    s_add_u32 s{S_T1}, s{S_T1}, s{S_H1LD}
    s_add_u32 s{S_H1LD}, s{S_H1LD}, s{S_T2}
    """)
    for x in range(2):
        g(f"buffer_store_dwordx4 v[60:63], v{LM}, s[{S_WS}:{S_WS+3}], s{S_T1} offen offset:{x*1024} {st}")
    g(f"""
    s_mov_b32 s{S_H2RS}, {WS_H2 + 8192}
    v_mov_b32 v51, 0
    s_mov_b32 s{S_FREE1}, {WS_H2 + 16384}
    s_lshl_b32 s{S_H1LD2}, s{S_TK}, 2
    s_add_u32 s{S_H1LD2}, s{S_H1LD2}, s{S_FREE1}
    buffer_store_dword v51, v51, s[{S_WS}:{S_WS+3}], s{S_H1LD2} offen {st}
    """)
    set_srd(g, P_MEM0, 8192)
    g(f"""
    s_lshr_b32 s{S_T0}, s{S_TK}, 3
    s_lshl_b32 s{S_T0}, s{S_T0}, 8
    s_and_b32 s{S_T1}, s{S_TK}, 1
    s_lshl_b32 s{S_T1}, s{S_T1}, 4
    s_add_u32 s{S_T0}, s{S_T0}, s{S_T1}
    s_lshr_b32 s{S_T1}, s{S_T2}, 5
    s_add_u32 s{S_T0}, s{S_T0}, s{S_T1}
    s_and_b32 s{S_T1}, s{S_TK}, 6
    s_lshl_b32 s{S_T1}, s{S_T1}, 10
    s_add_u32 s{S_T0}, s{S_T0}, s{S_T1}
    v_and_b32 v{T3}, 1, v{T1}
    v_lshlrev_b32 v{T3}, 10, v{T3}
    v_and_b32 v52, 3, v{T2}
    v_lshl_add_u32 v{T3}, v52, 2, v{T3}
    v_bfe_u32 v52, v{T2}, 2, 1
    v_lshl_add_u32 v{T3}, v52, 6, v{T3}
    buffer_load_ushort v52, v{T3}, s[{S_W}:{S_W+3}], s{S_T0} offen
    buffer_load_ushort v53, v{T3}, s[{S_W}:{S_W+3}], s{S_T0} offen offset:32
    buffer_load_ushort v54, v{T3}, s[{S_W}:{S_W+3}], s{S_T0} offen offset:2
    buffer_load_ushort v55, v{T3}, s[{S_W}:{S_W+3}], s{S_T0} offen offset:34
    """)


def store_mem0(g, st):
    g(f"""
    s_mov_b32 s{S_T0}, {WS_H2}
    v_lshl_or_b32 v52, v53, 16, v52
    v_lshl_or_b32 v53, v55, 16, v54
    v_cmp_ne_u32 vcc, s{S_SENT}, v52
    s_nop 1
    v_cndmask_b32 v52, -1, v52, vcc
    v_cmp_ne_u32 vcc, s{S_SENT}, v53
    s_nop 1
    v_cndmask_b32 v53, -1, v53, vcc
    buffer_store_dwordx2 v[52:53], v{H2ST}, s[{S_WS}:{S_WS+3}], s{S_T0} offen {st}
    """)


def setup_late(g):
    T0, T1, T2, T3 = 56, 57, 58, 59
    g(f"""
    v_and_b32 v{T0}, 63, v0
    v_lshrrev_b32 v{T1}, 4, v{T0}
    v_and_b32 v{T2}, 15, v{T0}
    v_mov_b32 v{IDX}, 0x44444444
    v_mov_b32 v{T3}, 0x4e1eeeee
    v_cndmask_b32 v{IDX}, v{IDX}, v{T3}, s[{S_HF}:{S_HF+1}]
    s_lshl_b32 s{S_T0}, s{S_WAVE}, 10
    s_add_u32 s{S_T0}, s{S_T0}, {L_QK}
    v_lshrrev_b32 v{T3}, 2, v{T2}
    v_lshlrev_b32 v{QW}, 7, v{T3}
    v_lshl_add_u32 v{QW}, v{T1}, 5, v{QW}
    v_and_b32 v{T3}, 1, v{T3}
    v_lshlrev_b32 v{T3}, 6, v{T3}
    v_xor_b32 v{QW}, v{QW}, v{T3}
    v_and_b32 v{T3}, 3, v{T2}
    v_lshl_add_u32 v{QW}, v{T3}, 2, v{QW}
    v_add_u32 v{QW}, s{S_T0}, v{QW}
    v_lshlrev_b32 v{QR}, 7, v{T1}
    v_add_u32 v{QR}, {L_QK}, v{QR}
    v_and_b32 v{T3}, 1, v{T2}
    v_lshl_add_u32 v{QR}, v{T3}, 4, v{QR}
    v_add_u32 v{KR}, 512, v{QR}
    v_lshrrev_b32 v{T3}, 2, v{T2}
    v_lshl_add_u32 v{QR}, v{T3}, 5, v{QR}
    v_lshrrev_b32 v{T3}, 3, v{T2}
    v_lshl_add_u32 v{KR}, v{T3}, 5, v{KR}
    v_lshrrev_b32 v{T3}, 1, v{T2}
    v_xor_b32 v{T3}, v{T3}, v{T2}
    v_and_b32 v{T3}, 2, v{T3}
    v_lshl_add_u32 v{KR}, v{T3}, 5, v{KR}
    v_and_b32 v{T3}, 1, v{T1}
    v_lshlrev_b32 v{T3}, 6, v{T3}
    v_xor_b32 v{QR}, v{QR}, v{T3}
    v_xor_b32 v{KR}, v{KR}, v{T3}
    s_lshl_b32 s{S_T0}, s{S_WAVE}, 9
    s_add_u32 s{S_T0}, s{S_T0}, {L_O}
    v_lshrrev_b32 v{T3}, 3, v{T2}
    v_lshlrev_b32 v{OW}, 8, v{T3}
    v_lshl_add_u32 v{OW}, v{T1}, 6, v{OW}
    v_bfe_u32 v{T3}, v{T2}, 2, 1
    v_lshl_add_u32 v{OW}, v{T3}, 5, v{OW}
    v_and_b32 v{T3}, 3, v{T2}
    v_lshl_add_u32 v{OW}, v{T3}, 2, v{OW}
    v_add_u32 v{OW}, s{S_T0}, v{OW}
    """)
    g(f"s_mov_b32 s{S_ONE}, 0x3f803f80\ns_mov_b32 s{S_ONE+1}, 0x3f803f80")
    for x in zero(PA, 4) + zero(VX, 16) + zero(ACC, 16): g(x)
    g(f"""
    v_lshrrev_b32 v{T3}, 3, v{T0}
    v_lshlrev_b32 v{GM}, 8, v{T3}
    v_and_b32 v{T3}, 7, v{T0}
    v_lshl_add_u32 v{GM}, v{T3}, 4, v{GM}
    v_and_b32 v{FAD}, 31, v0
    v_lshlrev_b32 v{FAD}, 2, v{FAD}
    v_min_u32 v{FST}, 1, v{T0}
    v_lshlrev_b32 v{FST}, 30, v{FST}
    """)


def kv_addr(w):
    return [f"s_add_u32 s{S_KV2}, s{S_KV}, {w*2048}", f"s_add_u32 s{S_VV}, s{S_KV}, {8192 + w*2048}"]


def k_loads():
    return [f"buffer_load_dwordx4 {v(KN+4*x,4)}, v{LM}, s[{S_WS}:{S_WS+3}], s{S_KV2} offen offset:{x*1024} ;@kv" for x in range(2)]


def v_loads():
    return [f"buffer_load_dwordx4 {v(VN+4*sg,4)}, v{LM}, s[{S_WS}:{S_WS+3}], s{S_VV} offen offset:{sg*1024} ;@kv" for sg in range(2)]


def mzero(base, n):
    op = {4: "4x4x1_16b", 16: "16x16x1_4b"}[n]
    return f"v_mfma_f32_{op}_f32 {v(base,n)}, v{PA+3}, v{PA+3}, 0"


def v_moves(src_):
    return [f"v_mov_b64 {v(VX+4*i,2)}, {v(src_+2*i,2)}" for i in range(4)]


def wait_flag(g, tag, seg_sgpr):
    g(f"""
    L_{tag}:
    buffer_load_dword v{FLG}, v{TCH}, s[{S_WS}:{S_WS+3}], s{S_FL} offen sc1
    s_add_u32 s{S_SPIN}, s{S_SPIN}, 1
    s_cmp_gt_u32 s{S_SPIN}, {SPIN_MAX}
    s_cbranch_scc1 L_{tag}_out
    s_waitcnt vmcnt(0)
    v_cmp_eq_u32 s[{S_RDY}:{S_RDY+1}], 1, v{FLG}
    s_nop 4
    s_bitcmp1_b64 s[{S_RDY}:{S_RDY+1}], s{seg_sgpr}
    s_cbranch_scc0 L_{tag}
    L_{tag}_out:
    s_waitcnt vmcnt(0)
    """)


def wave_loop(g, w, st, tag, opt):
    stamps = opt.get("stamps")
    WSD = f"s[{S_WS}:{S_WS+3}]"
    nst = [0]

    def stamp():
        if not stamps: return []
        i = nst[0]; nst[0] += 1
        if isinstance(stamps, list) and i not in stamps: return []
        if opt.get("rt") and w + 1 != opt["rt"]: return []
        return [f"s_mem{'real' if opt.get('rt') and not opt.get('cyc') else ''}time s[{74+2*i}:{75+2*i}]"]

    L = lambda x: f"L_{tag}{w}_{x}"
    T0 = 56
    KR_, OW_, SEL = (FAD, FST, KR) if w >= 2 else (KR, OW, None)
    kxr = [f"ds_read_b128 {v(POOL+4*c,4)}, v{LM} offset:{c*1024}" for c in range(8)]
    if w == 0:
        g(f"v_lshlrev_b32 v{TCH}, 2, v0\nv_mov_b32 v{FV}, 1")
    if w == 1 and opt.get("wb"):
        g(f"s_cmp_lt_u32 s{S_TK}, {opt['wb'][1]}\ns_cselect_b32 s{S_H1LD}, {opt['wb'][0]}, 64")
    if w >= 2:
        g(f"""
        v_and_b32 v{T0}, 15, v0
        v_and_b32 v{T0+1}, 1, v0
        v_mov_b32 v{KR_}, v{KR}
        v_mov_b32 v{OW_}, v{OW}
        v_lshlrev_b32 v{T0+1}, 4, v{T0+1}
        v_mov_b32 v{T0+2}, 0x3f80
        v_lshlrev_b32 v{T0+1}, v{T0+1}, v{T0+2}
        v_lshrrev_b32 v{T0}, 1, v{T0}
        """)
        for i in range(4):
            g(f"v_cmp_eq_u32 vcc, {(0, 2, 1, 3)[i]}, v{T0}\ns_nop 1\nv_cndmask_b32 v{SEL+i}, 0, v{T0+1}, vcc")
    for x in zero(ACC + 16, 8): g(x)
    kwr = [f"ds_write_b128 v{LM}, {v(KN+4*x,4)} offset:{(2*w + x)*1024} ;@kxw" for x in range(2)]
    nxt = [f"s_add_u32 s{S_KV}, s{S_KV}, {512*KB}"] + kv_addr(w)
    for x in ["s_waitcnt vmcnt(0)"] + kwr + v_moves(VN) + ["s_waitcnt lgkmcnt(0)", "s_barrier"] + kxr + stage_reads(G_R[(0, 1, 2, 2)[opt.get("r0", [0, 1, 0, 1])[w]]]) + nxt + ["s_waitcnt lgkmcnt(0)"]:
        g(x.split(";@")[0])
    if w == 0: dbg_time(g, opt, 4)
    if opt.get("count"):
        g("s_memtime s[92:93]\ns_memrealtime s[94:95]\ns_waitcnt lgkmcnt(0)\ns_mov_b32 s15, s94")
    body = []
    E = body.extend
    nops = lambda k: [f"s_nop {x}" for x in opt.get(k, [])]
    red = w >= 2
    MB_ = lambda t: L_O + (t - 4) * 1024
    mo = lambda t: (t & 1) * 2048 + ((t >> 1) & 1) * 128
    mld = lambda t: f"buffer_load_dwordx4 {v(M+4*t,4)}, v{GM}, {WSD}, s{S_H2LD if t < 4 else S_H2LD2} offen offset:{mo(t)} sc1"
    dma = f"buffer_load_dwordx4 v{GM}, {WSD}, s{S_H2LD2} offen offset:{mo(w)} sc1 lds ;@dma"
    SP, CK = M + 16 + 4 * w, PA + 2
    smp = mld(4 + w) + " ;@smp"
    R = A[5]
    pc = opt.get("pace", 15)
    pace = [f"s_nop {min(pc, 15)}"] + ([f"s_nop {pc - 16}"] if pc > 15 else [])
    cl = [mld(t) + f" ;@c{t}" for t in range(4)]
    r0 = opt.get("r0", [0, 1, 0, 1])[w]
    PRE = (0, 1, 2, 2)
    gather = sum([[cl[(r0 + j) & 3]] + pace for j in range(4)], [])[:-len(pace)]
    nt = opt.get("nt", "")
    vl = v_loads()
    kvl = [x.replace(" ;@", f" {nt} ;@") for x in k_loads() + vl]
    cv = lambda d, q: f"v_cvt_pk_bf16_f32 v{d}, v{q}, v{q+1}"
    h1l = lambda HB: [f"buffer_load_dwordx4 {v(HB+4*t,4)}, v{LM}, {WSD}, s{S_H1LD} offen offset:{t*1024} sc1" for t in range(4)]
    two = opt.get("two", [1, 1])[w & 1]

    def reduce(HB, name):
        out = [f"{L(name)}:"]
        for t in range(4):
            out += [f"s_waitcnt vmcnt({3 - t + 4*two})", mf(R, SEL or 0, HB + 4*t, None if t == 0 else R)]
            out += [f"v_xor_b32 v{PA}, s{S_TAG}, v{HB}" if t == 0 else f"v_bitop3_b32 v{PA}, v{PA}, v{HB+4*t}, s{S_TAG} bitop3:0xf6",
                    f"v_bitop3_b32 v{PA}, v{PA}, v{HB+4*t+2}, s{S_TAG} bitop3:0xf6"]
        if opt.get("cp"):
            fold = [f"v_add_f32_dpp v{HB+r}, v{R+r}, v{R+r} row_ror:8 row_mask:0xf bank_mask:0xf" for r in range(4)] + [cv(HB + 4, HB), cv(HB + 5, HB + 2)]
            k_ = 2 if w == 3 else 6
            return out + ([f"v_and_b32 v{PA}, 1, v{PA}", f"v_cmp_eq_u32 vcc, 1, v{PA}", "s_nop 2"] + fold[:k_] +
                          [f"s_cbranch_vccnz {L(name + 'no')}", f"{L(name + 'ok')}:", "s_barrier"] + fold[k_:] + [h2st(HB)])
        return out + ([f"v_and_b32 v{PA}, 1, v{PA}", f"v_cmp_eq_u32 vcc, 1, v{PA}", "s_nop 2"] +
                      [f"v_add_f32_dpp v{HB+r}, v{R+r}, v{R+r} row_ror:8 row_mask:0xf bank_mask:0xf" for r in range(4)] +
                      [cv(HB + 4, HB), cv(HB + 5, HB + 2), f"s_cbranch_vccnz {L(name + 'no')}", f"{L(name + 'ok')}:"] +
                      ([h2st(HB)] if not late_st else [] if HB != M else [h2st(HB), f"s_mov_b32 s{S_H2ST}, 0x40000000"]))
    clean = [f"v_mov_b64 {v(PA,2)}, s[{S_SENT}:{S_SENT+1}]", mzero(R, 4)]
    h2rs = f"buffer_store_dwordx2 {v(PA,2)}, v{H2ST}, {WSD}, s{S_H2RS} offen {st} ;@h2rs"
    E([f"{L('top')}:", "s_barrier"] + (stamp() if opt.get("rt") else []) + [f"{L('again')}:"])
    gather = [cl[r0], f"s_mov_b32 m0, {MB_(4 + w) - mo(w)}"] + gather[1:]
    dp = opt.get("dtop", 0)
    if dp: gather.insert(gather.index(cl[(r0 + dp - 1) & 3]) + (2 if dp == 1 else 1), dma)
    late_st = opt.get("ls", 0) and w == 3
    h2st = lambda HB: f"buffer_store_dwordx2 {v(HB+4,2)}, v{H2ST}, {WSD}, s{S_H2ST} offen {st}"
    if late_st:
        i = gather.index(pace[0])
        E(gather[:i] + nops("d5") + [h2st(M + 16), f"s_mov_b32 s{S_H2ST}, 0x40000000"] + clean + gather[i+1:])
        g(f"s_mov_b32 s{S_H2ST}, 0x40000000")
    elif red:
        i = gather.index(pace[0])
        E(gather[:i] + clean + [f"s_nop {max(min(pc, 15) - 3, 0)}"] + gather[i+1:])
    else:
        E(gather)
    pubv = f"buffer_store_dwordx4 {v(VN+4,4)}, v{LM}, {WSD}, s{S_PUB} offen {opt.get('pfl', 'sc1')}"
    dump = []
    DT = M + 18
    if stamps:
        dump.extend(["s_waitcnt lgkmcnt(0)"] + [f"v_writelane_b32 v{DT}, s{74+2*i}, {i}" for i in range(9)])
        dump.extend([f"v_subrev_u32 v{DT+1}, {LDS_MISC}, v{LM}", f"v_lshrrev_b32 v{DT+1}, 2, v{DT+1}",
           f"s_lshl_b32 s{S_T0}, s{S_TK}, 2", f"s_add_u32 s{S_T0}, s{S_T0}, {w}", f"s_lshl_b32 s{S_T0}, s{S_T0}, 6", f"s_add_u32 s{S_T0}, s{S_T0}, s{S_STEP}",
           f"s_lshl_b32 s{S_T0}, s{S_T0}, 6", f"s_add_u32 s{S_T0}, s{S_T0}, {WS_STAMP}", "s_mov_b64 exec, 0xffff",
           f"buffer_store_dword v{DT}, v{DT+1}, {WSD}, s{S_T0} offen", "s_mov_b64 exec, -1"])
    if red and opt.get('rt', w + 1) == w + 1: E(dump)
    top_part = list(body)
    c0stamp = stamp()
    order = [(m, sg, t) for t in range(4) for m in "qkv" for sg in range(2)]
    order += [(m, sg, t) for m in "qkv" for t in range(4, 8) for sg in range(2)]
    acc = lambda k: A["qkv".index(k[0]) * 2 + k[1]]
    mm = [smf(acc(k), M + 4 * k[2], k) for k in order]
    rs = [tagged(stage_reads(x), f"r{i}") for i, x in enumerate(G_R)]
    mr = [f"ds_read_b128 {v(M+4*t,4)}, v{LM} offset:{MB_(t) - LDS_MISC} ;@m{t}" for t in range(4, 8)]
    add = lambda q, b: f"v_add_f32 v{q+b}, v{q+b}, v{q+2+b}"
    qr = [f"ds_read_b128 {v(M+4*x,4)}, v{QR} offset:{1024*x} ;@qr{x}" for x in range(4)]
    kr = [f"ds_read_b128 {v(M+16+4*x,4)}, v{KR_} offset:{1024*x} ;@kr{x}" for x in range(4)]
    ost = stage_reads(G_O)
    qfin = [add(A[0], 0), add(A[0], 1), add(A[1], 0), add(A[1], 1),
            f"v_cvt_pk_bf16_f32 v{A[0]+2}, v{A[0]}, v{A[1]}", f"v_cvt_pk_bf16_f32 v{A[0]+3}, v{A[0]+1}, v{A[1]+1}",
            f"ds_write_b32 v{QW}, v{A[0]+2} ;@qw", f"ds_write_b32 v{QW}, v{A[0]+3} offset:16 ;@qw"]
    kfin = [add(A[2], 0), add(A[2], 1), add(A[3], 0), add(A[3], 1),
            f"v_cvt_pk_bf16_f32 v{A[3]}, v{A[2]}, v{A[3]}", f"v_cvt_pk_bf16_f32 v{A[3]+1}, v{A[2]+1}, v{A[3]+1}",
            f"ds_write_b32 v{QW}, v{A[3]} offset:512 ;@kw", f"ds_write_b32 v{QW}, v{A[3]+1} offset:528 ;@kw"]
    b0stamp = stamp()

    b0 = opt.get("b0", 18)
    cg = opt.get("cg", 17)

    nd = opt.get("nd", 0)
    pp = opt.get("pp", 0)
    pg2 = opt.get("pg2", [22, 24, 27, 29, 31, 34])
    PR2 = [FLG, TCH, H2ST, 0, FV, FST]

    def common():
        F = Gaps()
        if red: F.put("x", min(4 + w, opt.get("kb", 10) or 9), h2rs)
        if opt.get("kb", 10): F.put("x", opt.get("kb", 10), "s_barrier")
        po = opt.get("po", 0)
        seq = list(kvl)
        if not pp: seq.insert(po, pubv)
        free = [i for i in range(opt.get("k0", 11), 32) if i not in (cg, cg + 1, b0)]
        kgs = [free[min(opt.get("ks", 4) * j + w * opt.get("ks", 4) // 4, len(free) - 1 - (3 - w))] for j in range(5)]
        for j, x in enumerate(seq):
            if not ((x == pubv and opt.get("nopub")) or (x in kvl[:2] and opt.get("nok"))): F.put("x", kgs[j], x)
        if w == 0: F.put("d", 28, f"buffer_load_dword v{FLG}, v{TCH}, {WSD}, s{S_FL} offen sc1 ;@kv")
        if opt.get("al") == 2:
            if w == 0: F.put("x", opt.get("kb", 10), f"buffer_store_dword v{FV}, v{FST}, {WSD}, s{S_H1LD2} offen {st}")
            if w == 1:
                for j, i in enumerate(pg2): F.put("x" if i < 32 else "s", i, f"buffer_load_dword v{PR2[j]}, v{FAD}, {WSD}, s{S_FREE1} offen sc1 ;@p{j}")
        if opt.get("wb") and w == 1:
            F.put("s", 24, f"s_cmp_eq_u32 s{S_STEP}, s{S_H1LD}"); F.put("s", 26, f"s_cbranch_scc1 {L('wb')}", f"{L('wbok')}:")
        F.put("s", 34, f"s_mov_b32 s{S_PUB}, s{S_F12}"); F.put("s", 35, f"s_add_u32 s{S_F12}, s{S_F12}, {128*KB}")
        F.put("s", b0, "@wait vm=dma" if w >= nd else "@wait vm=c4", "s_barrier", *b0stamp)
        mg, r3g = {15: ((16, 17, 18, 19), (21, 22, 23, 24)), 16: ((17, 18, 19, 20), (21, 22, 23, 24)), 17: ((18, 19, 20, 22), (21, 23, 24, 25)), 18: ((19, 20, 22, 24), (21, 23, 25, 26)), 19: ((20, 21, 23, 25), (22, 24, 26, 27)), 20: ((21, 22, 24, 25), (23, 23, 26, 27))}.get(b0, (0, 0))
        if nd == 1: mg, r3g = {19: ((20, 22, 24), (21, 23, 25, 26)), 20: ((21, 23, 24), (22, 25, 26, 27)), 21: ((22, 23, 25), (20, 24, 26, 27))}[b0]
        if nd == 2: mg, r3g = {21: ((22, 24), (20, 23, 25, 26)), 22: ((23, 24), (20, 21, 25, 26)), 23: ((24, 25), (20, 21, 22, 26))}[b0]
        for j, i in enumerate(mg): F.put("d", i, mr[j + nd])
        for i, t in ((23, 4), (25, 5), (27, 6), (29, 7)):
            if t < 4 + nd: F.put("x" if i == b0 else "s", i, f"@wait vm=c{t}")
            elif nd and t == 7: F.put("s", i, "@wait lg=" + ("m7" if mg[-1] > r3g[1] else "r3x"))
            elif b0 >= 18 or t < 7: F.put("s", i, f"@wait lg=m{t}")
        for r_, gs, u in ((3, r3g, 30 if b0 >= 18 else 29), (4, (30, 31, 32, 33), 37), (5, (38, 39, 40, 42), 46)):
            for j in range(4): F.put("d", gs[j], rs[r_][j])
            F.put("s", u, f"@wait lg=r{r_}")
        for j, i in enumerate((32, 32, 33, 34, 35, 36)): F.put("v", i, qfin[j])
        for j, i in enumerate((40, 42, 43, 43, 44, 45)): F.put("v", i, kfin[j])
        F.put("d", 36, qfin[6]); F.put("d", 37, qfin[7])
        F.put("v", 37, f"v_cmp_u_f32 vcc, v{A[0]}, v{A[0]+1}")
        F.put("s", 40, f"s_cbranch_vccnz {L('nan')}", f"{L('nanok')}:")
        F.put("s", 41, "@wait lg=qw" + (" vm=h2rs" if red else ""), "s_barrier")
        F.put("s", 45, "@wait lg=r5x")
        for j, i in enumerate((43, 44, 47)): F.put("d", i, qr[j])
        F.put("d", 45, kfin[6]); F.put("d", 46, kfin[7])
        F.put("s", 47, "@wait lg=qr0")
        return F
    rs[5][1] += "x"
    rs[3][1] += "x"

    pair = lambda m, t: [(m, 0, t), (m, 1, t)]
    HEAD = {0: ("q0 k0 v0 q1 k1 v1 q2 k2 v2 q3 k3 v3", ((1, (2, 3, 4, 5)), (2, (10, 11, 12, 13)))),
            1: ("q1 k1 v1 q2 k2 v2 k3 q3 v3 k0 q0 v0", ((2, (4, 5, 6, 7)), (0, (12, 13, 14, 15)))),
            2: ("q2 k2 v2 k3 q3 v3 k0 q0 v0 q1 v1 k1", ((0, (6, 7, 8, 9)), (1, (14, 15, 16, 17)))),
            3: ("q3 k3 v3 k0 v0 q0 q1 k1 v1 q2 k2 v2", ((0, (2, 3, 4, 5)), (1, (10, 11, 12, 13))))}
    cg = opt.get("cg", 17)

    def head(r, n=24):
        od = sum([pair(x[0], int(x[1])) for x in HEAD[r][0].split()], []) + order[24:]
        F = common()
        F.put("s", 1, f"s_cbranch_vccnz {L(f'no{r}')}", f"{L(f'go{r}')}:")
        if nd:
            if w >= nd: F.put("x", 1, dma)
            for j in range(nd): F.put("x", (2 if w >= nd else 1) + 2 * j, mld(4 + j) + f" ;@c{4+j}")
        elif r != r0 or not opt.get("dtop"): F.put("x", opt.get("dg", 1), dma)
        seen = {r}
        c_ = cg
        for i, k in enumerate(od[:24]):
            wt = []
            if k[2] not in seen:
                seen.add(k[2])
                if i <= c_: wt.append(f"vm=c{k[2]}")
            for r_ in range(3):
                if k == G_R[r_][0] and i: wt.append(f"lg=r{r_}" if r_ != PRE[r] else "lg=0")
            if wt and i - 1 == b0: F.t[b0]["s"][0] += " " + " ".join(wt)
            elif wt: F.put("s", i - 1, "@wait " + " ".join(wt))
        F.put("x" if c_ == b0 else "s", c_, f"@wait vm=c{(r+3)&3}")
        if not opt.get("kb", 10):
            F.put("v", c_, f"v_max3_u32 v{CK}, v{M+4*((r+1)&3)}, v{M+4*((r+2)&3)}, v{M+4*((r+3)&3)}")
            F.put("v", c_ + 1, f"v_cmp_eq_u32 vcc, s{S_SENT}, v{CK}")
            F.t.setdefault(c_ + 3, {"s": [], "d": [], "v": [], "x": []})["s"][:0] = [f"s_cbranch_vccnz {L(f'late{r}')}", f"{L(f'lok{r}')}:"]
        e1 = opt.get("e1", 7)
        if e1:
            F.put("v", e1, f"v_cmp_eq_u32 vcc, s{S_SENT}, v{M+4*((r+1)&3)}")
            F.put("s", e1 + 3, f"s_cbranch_vccnz {L(f'soon{r}')}", f"{L(f'sok{r}')}:")
        for r_, gs in HEAD[r][1]:
            for j in range(4): F.put("d", gs[j], rs[r_][j])
        return ([f"{L(f'c{r}')}:", f"@wait vm=c{r}" + (" lg=0" if r == 0 else "")] + (c0stamp if r == r0 else []) +
                [f"v_cmp_eq_u32 vcc, s{S_SENT}, v{M+4*r}"] + F.emit([smf(acc(k), M + 4 * k[2], k) for k in od[:n]]))
    full = head(r0, 48)
    i = full.index(mm[24])
    E(full[:i] + [f"{L('j20')}:"] + full[i:])
    E(stamp())
    S0, S1, SM = A[0], A[1], A[2]
    sx = []
    for x in range(4):
        sx += [mf(S0, POOL + 4*x, M + 4*x, None if x == 0 else S0), mf(S1, POOL + 16 + 4*x, M + 4*x, None if x == 0 else S1)]
    sm = [mf(SM, M + 16 + 4*x, M + 4*x, None if x == 0 else SM) for x in range(4)]
    cv = lambda d, q: f"v_cvt_pk_bf16_f32 v{d}, v{q}, v{q+1}"
    cnd = lambda d, x, y: f"v_cndmask_b32 v{d}, v{x}, v{y}, s[{S_HF}:{S_HF+1}]"
    pub = f"buffer_store_dwordx4 {v(A[3],4)}, v{LM}, {WSD}, s{S_PUB} offen sc1"
    MX, MY = S1, S1 + 1
    z = zero(A[4], 8)
    E([sx[0], f"s_cmp_eq_u32 s{S_STEP}, {NSEG-1}", qr[3],
       sx[1], "@wait lg=qr1", add(A[4], 0), add(A[4], 1),
       sx[2], "@wait lg=kw", "s_barrier",
       sx[3], "@wait lg=qr2", kr[0], add(A[5], 0),
       sx[4], kr[1], add(A[5], 1),
       sx[5], "@wait lg=qr3", kr[2], cv(VX + 2, A[4]),
       sx[6], kr[3], cv(VX + 10, A[5]),
       sx[7], "@wait lg=kr0", cv(A[3] + 2, A[4]), cv(A[3] + 3, A[5]),
       sm[0], "@wait lg=kr2", f"v_permlane16_swap_b32 v{VX+2}, v{VX+6}",
       sm[1], f"s_cbranch_scc1 {L('done')}", cnd(S0, S0, S1), cnd(S0 + 1, S0 + 1, S1 + 1),
       sm[2], "@wait lg=kr3", cnd(S0 + 2, S0 + 2, S1 + 2), cnd(S0 + 3, S0 + 3, S1 + 3),
       sm[3], f"v_max3_f32 v{MX}, v{S0}, v{S0+1}, v{S0+2}", f"v_max_f32 v{MX}, v{MX}, v{S0+3}",
       f"v_permlane16_swap_b32 v{VX+10}, v{VX+14}",
       f"v_max_f32_dpp v{MX}, v{MX}, v{MX} quad_perm:[2,3,0,1] row_mask:0xf bank_mask:0xf",
       f"v_mov_b32 v{MY}, v{MX}",
       f"v_mov_b64 {v(POOL,2)}, s[{S_ONE}:{S_ONE+1}]",
       f"v_max3_f32 v{S1+2}, v{SM}, v{SM+1}, v{SM+2}",
       f"v_permlane16_swap_b32 v{MX}, v{MY}",
       f"v_max3_f32 v{MX}, v{MX}, v{MY}, v{SM+3}",
       f"v_max_f32 v{MY}, v{MX}, v{S1+2}",
       f"v_max_f32 v{MX}, v{MX}, v{S1+2}",
       cnd(SM, SM, SM + 1), f"v_mov_b64 {v(POOL+2,2)}, s[{S_ONE}:{S_ONE+1}]",
       f"v_permlane32_swap_b32 v{MX}, v{MY}",
       f"v_max_f32 v{MX}, v{MX}, v{MY}",
       f"v_mul_f32 v{MX}, s{S_SC}, v{MX}"])
    for r in (S0, S0 + 2):
        E([f"v_pk_fma_f32 {v(r,2)}, {v(r,2)}, s[{S_SC-1}:{S_SC}], {v(MX,2)} op_sel_hi:[1,1,0] neg_lo:[0,0,1] neg_hi:[0,0,1]"])
    E([f"v_fma_f32 v{SM}, v{SM}, s{S_SC}, -v{MX}"])
    E([f"v_exp_f32 v{S0}, v{S0}", f"v_exp_f32 v{S0+1}, v{S0+1}", f"v_exp_f32 v{S0+2}, v{S0+2}", cv(PA, S0),
       f"v_exp_f32 v{S0+3}, v{S0+3}", f"v_exp_f32 v{SM}, v{SM}", cv(PA + 2, S0 + 2),
       f"v_cvt_pk_bf16_f32 v{PA+1}, v{SM}, v{PA+3}"])
    E(stamp())
    LQ = A[1]
    ring = [f"s_and_b32 s{S_TAG}, s{S_STEP}, 1", f"s_add_u32 s{S_STEP}, s{S_STEP}, 1",
            f"s_lshl_b32 s{S_T0}, s{S_TAG}, 13", f"s_sub_u32 s{S_H2LD}, {WS_H2 + 8192}, s{S_T0}",
            f"s_add_u32 s{S_H2LD2}, s{S_H2LD}, 4096"]
    ring2 = nxt[:1] + [f"s_cmp_eq_u32 s{S_STEP}, {NSEG-1}", f"s_cselect_b32 s{S_KV}, 0x40000000, s{S_KV}"] + nxt[1:]
    if red:
        ring += [f"s_add_u32 s{S_H2RS}, s{S_T0}, {WS_H2}", f"s_xor_b32 s{S_H2ST}, s{S_H2RS}, 8192"]
    E([z[0], z[1],
       mf(LQ, PA, POOL, None), z[2], z[3],
       smf(A[4], PA, v(VX, 8), 1), ost[0],
       smf(A[5], PA, v(VX + 8, 8), 1), ost[1], add(LQ, 0),
       add(LQ, 1), f"v_rcp_f32 v{LQ}, v{LQ}", f"v_rcp_f32 v{LQ+1}, v{LQ+1}",
       f"v_pk_add_f32 {v(A[4],2)}, {v(A[4],2)}, {v(A[4]+2,2)}",
       f"v_pk_mul_f32 {v(A[4],2)}, {v(A[4],2)}, {v(LQ,2)}",
       f"v_pk_add_f32 {v(A[5],2)}, {v(A[5],2)}, {v(A[5]+2,2)}",
       f"v_pk_mul_f32 {v(A[5],2)}, {v(A[5],2)}, {v(LQ,2)}",
       f"v_cvt_pk_bf16_f32 v{A[4]+2}, v{A[4]}, v{A[5]}", f"v_cvt_pk_bf16_f32 v{A[4]+3}, v{A[4]+1}, v{A[5]+1}",
       mzero(M + 16, 4),
       f"ds_write2_b32 v{OW_}, v{A[4]+2}, v{A[4]+3} offset0:0 offset1:4", mzero(M, 16)] + ring +
      ["s_waitcnt lgkmcnt(0)", "s_barrier",
       f"ds_read_b128 {v(A[0],4)}, v{LM} offset:{L_O - LDS_MISC} ;@o0", mzero(M + 20, 4),
       f"ds_read_b128 {v(A[1],4)}, v{LM} offset:{L_O - LDS_MISC + 1024} ;@o1", mzero(M + 24, 4)] + [mzero(M + 28, 4)] + ost[2:2+opt.get("ow", 2)])
    E(stamp())
    if pp == 1: body.insert(body.index(mzero(M, 16)) + 1, pub.replace('sc1', opt.get('pfl', 'sc1')) + " ;@kv")
    if pp == 2: body.insert(body.index([sm[1], sm[2], sm[3], z[0]][w]) + (2 if w < 2 else 1), pub.replace('sc1', opt.get('pfl', 'sc1')))
    if pp == 3: body.insert(body.index([z[0], mf(LQ, PA, POOL, None), ost[0], ost[1]][w]) + 1, pub.replace('sc1', opt.get('pfl', 'sc1')))
    oo = [(0, 0), (1, 0), (0, 1), (1, 1)] + [(tau, tp) for tau in range(2, 8) for tp in range(2)]
    om = [smf(M + 4*tau, A[tp], ("o", tau, tp)) for tau, tp in oo]
    D0, D1 = A[2], A[4]
    pk = lambda d, ta, b: f"v_cvt_pk_bf16_f32 v{d}, v{M+4*ta+b}, v{M+4*ta+4+b}"
    ad = lambda ta: [add(M + 4*ta, 0), add(M + 4*ta, 1)]
    G = Gaps()
    G.put("s", 1, "@wait lg=o1")
    gs = {2: [0, 1, 2, 3, 4, 5, 6, 8, 9, 10], 1: [0, 1, 2, 3, 3, 4, 5, 6, 8, 9, 10], 0: [0, 1, 2, 2, 3, 3, 4, 5, 6, 8, 9, 10]}[opt.get("ow", 2)]
    for i, j in zip(gs, range(2 + opt.get("ow", 2), 14)): G.put("d", i, ost[j] + f" ;@w{j >> 1}")
    G.put("s", 8, "@wait lg=w2"); G.put("s", 11, "@wait lg=w4"); G.put("s", 13, "@wait lg=w5"); G.put("s", 14, "@wait lg=w6")
    al = opt.get("al", 0)
    poll1 = lambda d, tg_: f"buffer_load_dword v{d}, v{FAD}, {WSD}, s{S_FREE1} offen sc1 ;@{tg_}"
    PR = [FLG, TCH, PA, PA + 1, PA + 2]
    if al == 1 and w == 0:
        body.insert(body.index({-3: sm[0], -2: sm[3], -1: z[0], 0: ost[0], 1: ost[1], 2: mzero(M, 16)}[opt.get("f1", 1)]) + 1, f"buffer_store_dword v{FV}, v{FST}, {WSD}, s{S_H1LD2} offen {st}")
    if al == 2: PR = PR2[:len(pg2)]
    if al == 1 and w == 1:
        body.insert(body.index(ring[-1]) + 1, poll1(PR[0], "p0"))
        body.insert(body.index(mzero(M + 24, 4)) + 1, poll1(PR[1], "p1"))
        for j, i in enumerate(opt.get("pg1", [0, 2, 4])): G.put("x" if i < 4 else "s", i, poll1(PR[j + 2], f"p{j+2}"))
    tg = lambda d: f"v_bfi_b32 v{d}, 1, s{S_TAG}, v{d}"
    if opt.get('wob', 0):
        stq = lambda q, D: f"buffer_store_dwordx2 {v(D,2)}, v{H1ST}, {WSD}, s{S_H1ST2 if q >> 1 else S_H1ST} offen offset:{64 * (q & 1)} {st}"
        for h, D in enumerate((D0, D1)):
            t0, g0 = 4 * h, 8 * h
            if h == 0: G.put("v", 4, *ad(0))
            else: G.put("v", 11, ad(4)[0]); G.put("v", 12, ad(4)[1])
            G.put("v", g0 + 5, *ad(t0 + 1))
            G.put("v", g0 + 6, pk(D, t0, 0))
            x = M + 4 * (t0 + 3)
            G.put("v", g0 + 7, pk(D + 1, t0, 1), tg(D), stq(2 * h, D), *ad(t0 + 2), "s_nop 0", f"v_pk_add_f32 {v(x,2)}, {v(x,2)}, {v(x+2,2)}",
                  pk(D + 2, t0 + 2, 0), pk(D + 3, t0 + 2, 1), tg(D + 2), stq(2 * h + 1, D + 2))
    else:
        for q in range(4):
            D = (D0, D0 + 2, D1, D1 + 2)[q]
            e, o_ = ad(2 * q), ad(2 * q + 1)
            stq = f"buffer_store_dwordx2 {v(D,2)}, v{H1ST}, {WSD}, s{S_H1ST2 if q >> 1 else S_H1ST} offen offset:{64 * (q & 1)} {st}"
            rest = [o_[0], o_[1], pk(D, 2 * q, 0), pk(D + 1, 2 * q, 1), tg(D)]
            if q == 0:
                G.put("v", 4, *e)
            elif q < 3:
                G.put("v", 4 * q + 3, e[0]); G.put("v", 4 * q + 4, e[1])
            if q < 3:
                n1 = opt.get("wo1", 2)
                G.put("v", 4 * q + 5, *rest[:n1]); G.put("v", 4 * q + 6, *rest[n1:])
                G.put("d", 4 * q + 7, stq)
            else:
                G.put("v", 15, *(e + ["s_nop 3"] + rest + [stq]))
    E(["@wait lg=o0"] + G.emit(om))
    E(stamp())
    house = ring2 + rs[PRE[r0]] + [mzero(A[i], 4) for i in (0, 1, 2)]
    mv = v_moves(VN) + ([] if pp else [f"v_mov_b64 {v(VN+4,2)}, {v(A[3],2)}", f"v_mov_b64 {v(VN+6,2)}, {v(A[3]+2,2)}"]) + [mzero(A[3], 4), mzero(A[4], 4)]
    after = kxr + mv
    if al and w == 1:
        for j in range(len(PR)):
            E([f"@wait vm=p{j}" if al == 1 else f"@wait vm=p{len(PR)-1}" if j == 0 else "s_nop 0", f"v_cmp_gt_u32 vcc, s{S_STEP}, v{PR[j]}"] + (house[:5] if j == 0 else nops("d7")) +
              (["s_add_u32 s99, s99, 1"] if opt.get("count") else []) + [f"s_cbranch_vccz {L('al')}"])
        E(["s_nop 7", f"{L('al')}:", "s_barrier"])
    else:
        E(["@wait vm=kv", "s_barrier"])
    x2 = ["@wait lg=kxw", "s_barrier"]
    hs = house[5:] if al and w == 1 else house
    if red:
        shots = h1l(M + 16) + (nops("d4") + h1l(M) if two else [])
        e2, e3 = opt.get("e2", 8), opt.get("e3", 8)
        if w == 2:
            rest = kxr + mv
            E(nops("d1") + stamp() + shots + kwr + hs + x2 + rest[:e2] + reduce(M + 16, "ra") + [f"{L('rdone')}:"] + stamp() + rest[e2:] +
              ["s_waitcnt lgkmcnt(0)"] + nops("d2"))
        else:
            pre = kwr + hs + mv
            E(pre[:len(pre)-e3] + nops("d3") + stamp() + shots + pre[len(pre)-e3:] + x2 + kxr[:opt.get("e4", 8)] +
              reduce(M + 16, "ra") + [f"{L('rdone')}:"] + stamp() + kxr[opt.get("e4", 8):] + ["s_waitcnt lgkmcnt(0)"] + nops("d5"))
    else:
        E(stamp() + kwr + hs + mv + x2 + kxr + stamp() + (dump if opt.get('rt', w + 1) == w + 1 else []))
    if w < 2:
        E([mzero(A[5], 4)])
    if w == 0:
        E([f"v_add_u32 v{FV}, 1, v{FV}", f"v_cmp_eq_u32 s[{S_RDY}:{S_RDY+1}], 1, v{FLG}", f"s_add_u32 s{S_T2}, s{S_STEP}, 1", "s_nop 3",
           f"s_bitcmp1_b64 s[{S_RDY}:{S_RDY+1}], s{S_T2}", f"s_cbranch_scc0 {L('flag')}", f"{L('flagok')}:"])
    E(([] if red else ["s_waitcnt lgkmcnt(0)"] + ["s_barrier"] * opt.get("cp", 0)) + [f"s_branch {L('top')}"])
    if opt.get("free"):
        body = [x for x in body if not (x.startswith("s_cbranch_vccnz") or x.startswith("v_cmpx"))]
        body = [x.replace("s_cbranch_vccz " + L('al'), "s_branch " + L('al')) for x in body]
    if True:
        for pat in opt.get("drop", []):
            keep = lambda x: ("s_nop 0" if opt.get("keepslot") else None)
            tags = [x.split(";@")[1] for x in body if pat in x and ";@" in x]
            body = [x for x in body if pat not in x or x.endswith(":")]
            live = {x.split(";@")[1] for x in body if ";@" in x}
            nb = []
            for x in body:
                if x.startswith("@wait"):
                    t = [k for k in x.split()[1:] if k.split("=")[1] in live or k.split("=")[1] == "0"]
                    if t: nb.append("@wait " + " ".join(t))
                else: nb.append(x)
            body = nb
    body = resolve_waits(body)
    if opt.get("seg"):
        pos = [i for i, x in enumerate(body) if x.startswith(("v_mfma_f32_16x16x32", "v_smfmac"))]
        i0, i1 = opt["seg"]
        labels = [x for x in body if x.endswith(":")]
        cut = [x for x in body[pos[i0]:pos[i1]] if not x.endswith(":") and f"s{S_STEP}" not in x and "branch" not in x]
        body = labels + cut[:1] + [f"s_add_u32 s{S_STEP}, s{S_STEP}, 1", f"s_cmp_eq_u32 s{S_STEP}, 64", f"s_cbranch_scc1 {L('done')}"] + cut[1:] + [f"s_branch {L('top')}"]
    if opt.get("sw") and opt.get("rt") == w + 1:
        pos = [i for i, x in enumerate(body) if x.startswith(("v_mfma_f32_16x16x32", "v_smfmac"))]
        for k, o_ in reversed(list(enumerate(opt["sw"]))):
            if o_ < len(pos): body.insert(pos[o_] + 1, f"s_memtime s[{76+2*k}:{77+2*k}]")
    npad = [0]

    def pad(last=False):
        k = npad[0]; npad[0] += 1
        g(f"{L(f'pad{k}')}:\ns_branch " + (f"L_{tag}_warm1" if last else f"L_{tag}_warm0" if k == 3 else L(f"pad{k+1}")))
    if red and opt.get("rotl", 0) and not opt.get("seg"):
        i = body.index(f"{L('ra')}:")
        body = body[i:-1] + body[:i] + [f"s_branch {L('ra')}"]
    body, left = align_body(body)
    g(f"s_branch {L('top')}")
    pad()
    g(".p2align 5")
    for x in body: g(x)
    bad = hazard.check(body + body[:40], f"chain w{w}") if not (opt.get("drop") or opt.get("seg")) else []
    m1 = g.mark()
    strip = lambda lst: [x.split(";@")[0] for x in lst]
    cnt = lambda out: f"s_add_u32 s{S_SPIN}, s{S_SPIN}, 1\ns_cmp_gt_u32 s{S_SPIN}, {SPIN_MAX}\ns_cbranch_scc1 {out}"
    dbg = lambda k: (f"s_add_u32 s{96+k}, s{96+k}, 1" if opt.get("count") else "")
    anysent = [f"v_mov_b32 v{PA}, 0"] + [f"v_max3_u32 v{PA}, v{PA}, v{M+2*i}, v{M+2*i+1}" for i in range(16)] + [f"v_cmp_eq_u32 vcc, s{S_SENT}, v{PA}"]
    pad()
    if red:
        g(f"{L('rano')}:\n{dbg(2)}\n{cnt(L('raok'))}")
        for x in h1l(M + 16): g(x)
        if two:
            for x in reduce(M, "rb") + [f"s_branch {L('rdone')}", f"{L('rbno')}:", dbg(3)] + h1l(M): g(x)
        g(f"s_branch {L('ra')}")
    for r in range(4):
        if not opt.get("kb", 10): g(f"{L(f'late{r}')}:\n{cnt(L(f'lok{r}'))}\ns_branch {L('restart')}")
        if opt.get("e1", 7): g(f"{L(f'soon{r}')}:\n{cnt(L(f'sok{r}'))}\ns_branch {L('restart')}")
    g(f"{L('restart')}:\n{dbg(1)}\ns_waitcnt lgkmcnt(0)")
    for x in strip(rs[PRE[r0]]) + [mzero(A[i], 4) for i in range(6)] + [f"s_branch {L('again')}"]: g(x)
    path = list(top_part)
    for j in range(4):
        r, nx = (r0 + j) & 3, (r0 + j + 1) & 3
        part = ([f"{L(f'no{r}')}:"] + ([dbg(0)] if opt.get("count") else []) + (cnt(L(f"go{r}")).split("\n") if j == 3 else []) + [cl[r], dma if j == dp - 1 else h2st(M + 16) if j == 0 and late_st else "s_nop 0"] +
                (rs[PRE[nx]] if PRE[nx] != PRE[r] else ["s_nop 3"]) + [mzero(A[0], 4), mzero(A[1], 4), "s_nop 0"])
        hd = head(nx) + [f"s_branch {L('j20')}"] if j < 3 else [f"s_branch {L(f'c{r0}')}"]
        res = resolve_waits(path + part + hd, loop=False)[len(path):]
        path = path + part
        bad += hazard.check(mm[:2] + ["s_branch x"] + res + (mm[24:28] if j < 3 else mm[:2]), f"chain head {r} w{w}")
        res, _ = align_body(res)
        pad()
        g(".p2align 5")
        for x in res: g(x)
    m1 = g.mark()
    g(f"{L('nan')}:\n" + ("s_add_u32 s97, s97, 0x10000" if opt.get("count") else ""))
    for x in anysent: g(x)
    g(f"s_cbranch_vccz {L('nanok')}\n{L('nanl')}:")
    for x in [mld(t) for t in range(8)] + ["s_waitcnt vmcnt(0)"] + anysent: g(x)
    g(f"s_cbranch_vccz {L('nanr')}\n{cnt(L('nanr'))}\ns_branch {L('nanl')}\n{L('nanr')}:\ns_waitcnt lgkmcnt(0)")
    for x in zero(ACC, 24): g(x)
    for i in range(41):
        for r_ in range(5):
            if order[i] == G_R[r_][0]:
                for x in strip(rs[r_]) + ["s_waitcnt lgkmcnt(0)"]: g(x)
        g(mm[i])
    for x in strip(rs[5][:2] + qfin) + ["s_waitcnt lgkmcnt(0)", f"s_branch {L('nanok')}"]: g(x)
    bad += hazard.check(g.lines[m1:], f"chain rare w{w}")
    if opt.get("wb") and w == 1:
        g(f"{L('wb')}:\nbuffer_wbl2 sc1\ns_branch {L('wbok')}")
    pad(True)
    if w == 0:
        g(f"{L('flag')}:")
        wait_flag(g, f"{tag}{w}_f1", S_T2)
        g(f"s_branch {L('flagok')}")
    g(f"{L('done')}:\n{pub}")
    if w == 0: dbg_time(g, opt, 5)
    if opt.get("cal") and w + 1 == opt.get("rt"):
        g(f"""
        s_mov_b32 s90, 0
        v_mov_b32 v60, 0
        {L('cal')}:
        s_memrealtime s[74:75]
        s_waitcnt lgkmcnt(0)
        s_add_u32 s78, s74, 8
        s_or_b32 s78, s78, 31
        {L('cal2')}:
        s_memrealtime s[74:75]
        s_memtime s[76:77]
        s_waitcnt lgkmcnt(0)
        s_cmp_le_u32 s74, s78
        s_cbranch_scc1 {L('cal2')}
        s_mov_b32 m0, s90
        v_writelane_b32 v60, s78, m0
        s_add_u32 m0, s90, 1
        v_writelane_b32 v60, s76, m0
        s_add_u32 s90, s90, 2
        s_cmp_lt_u32 s90, 64
        s_cbranch_scc1 {L('cal')}
        v_subrev_u32 v61, {LDS_MISC}, v{LM}
        v_lshrrev_b32 v61, 2, v61
        s_lshl_b32 s{S_T0}, s{S_TK}, 8
        s_add_u32 s{S_T0}, s{S_T0}, {100*MB}
        buffer_store_dword v60, v61, {WSD}, s{S_T0} offen
        """)
    if opt.get("count"):
        g(f"""
        s_memtime s[94:95]
        s_memrealtime s[74:75]
        s_waitcnt lgkmcnt(0)
        
        s_sub_u32 s94, s94, s92
        v_mov_b32 v40, s96
        v_mov_b32 v41, s97
        v_mov_b32 v42, s98
        v_mov_b32 v43, s94
        s_lshl_b32 s{S_T0}, s{S_TK}, 2
        s_add_u32 s{S_T0}, s{S_T0}, {w}
        s_lshl_b32 s{S_T0}, s{S_T0}, 12
        s_add_u32 s{S_T0}, s{S_T0}, {WS_STAMP}
        v_mov_b32 v44, 0
        v_mov_b32 v46, s99
        v_mov_b32 v47, s14
        v_mov_b32 v48, s15
        v_mov_b32 v49, s74
        buffer_store_dwordx4 v[40:43], v44, {WSD}, s{S_T0} offen
        v_mov_b32 v50, s2
        buffer_store_dword v50, v44, {WSD}, s{S_T0} offen offset:32
        buffer_store_dwordx4 v[46:49], v44, {WSD}, s{S_T0} offen offset:16
        """)
    if opt.get("pfl", "sc1") != "sc1" and w == 0:
        g(f"s_cmp_ge_u32 s{S_TK}, {opt.get('nwb', 1)}\ns_cbranch_scc1 {L('fin')}\nbuffer_wbl2 sc1\n{L('fin')}:")
    g("s_waitcnt vmcnt(0)\ns_endpgm")
    return bad


def chain_role(g, st, tag, opt):
    m0 = g.mark()
    if opt.get("count"):
        g("s_mov_b32 s96, 0\ns_mov_b32 s97, 0\ns_mov_b32 s98, 0\ns_mov_b32 s99, 0")
    g(f"s_cmp_lg_u32 s{S_WAVE}, 0\ns_cbranch_scc1 L_dt" if opt.get("dbgt") else "")
    if opt.get("dbgt"):
        g(f"s_not_b32 s88, s14\nv_mov_b32 v90, 12\nv_mov_b32 v91, s88\ns_mov_b64 exec, 1\nglobal_atomic_umax v90, v91, s[{P_DBG}:{P_DBG+1}]\ns_mov_b64 exec, -1\nL_dt:")
    setup_early(g, st)
    arrive = lambda off=DBG_TEAM: g(f"""
    s_cmp_lg_u32 s{S_WAVE}, 0
    s_cbranch_scc1 L_{tag}_arrived{off}
    v_mov_b32 v56, {off}
    v_mov_b32 v57, 1
    s_mov_b64 exec, 1
    global_atomic_add v56, v57, s[{P_DBG}:{P_DBG+1}]
    s_mov_b64 exec, -1
    L_{tag}_arrived{off}:
    """)
    def code_touch():
        g(f"""
        s_getpc_b64 s[{S_RDY}:{S_RDY+1}]
        L_{tag}_pc:
        s_add_u32 s{S_RDY}, s{S_RDY}, L_{tag}_w0-L_{tag}_pc
        s_addc_u32 s{S_RDY+1}, s{S_RDY+1}, 0
        v_lshlrev_b32 v56, 7, v0
        v_min_u32 v56, L_{tag}_end-L_{tag}_w0-4, v56
        global_load_dword v57, v56, s[{S_RDY}:{S_RDY+1}]
        """)

    def warm(k):
        for w in range(3):
            g(f"s_cmp_eq_u32 s{S_WAVE}, {w}\ns_cbranch_scc1 L_{tag}{w}_pad{4*k}")
        g(f"s_branch L_{tag}3_pad{4*k}\nL_{tag}_warm{k}:")

    assert DBG_INIT == DBG_TEAM + 4
    ask = f"global_load_dwordx2 v[60:61], v58, s[{P_DBG}:{P_DBG+1}] sc1"

    def counters():
        g(f"""
        L_{tag}_cnt:
        v_cmp_gt_u32 vcc, 32, v60
        v_cmp_gt_u32 s[{S_RDY}:{S_RDY+1}], s{S_T2}, v61
        s_add_u32 s{S_SPIN}, s{S_SPIN}, 1
        s_cmp_gt_u32 s{S_SPIN}, {SPIN_MAX}
        s_cbranch_scc1 L_{tag}_cntok
        s_or_b64 vcc, vcc, s[{S_RDY}:{S_RDY+1}]
        s_cbranch_scc0 L_{tag}_cntok
        {ask}
        s_waitcnt vmcnt(0)
        s_branch L_{tag}_cnt
        L_{tag}_cntok:
        v_and_b32 v58, 1, v0
        v_lshlrev_b32 v58, 2, v58
        """)
    flg = f"buffer_load_dword v59, v58, s[{S_WS}:{S_WS+3}], s{S_FL} offen sc1"

    def first_kv():
        g(f"""
        L_{tag}_fl:
        v_cmp_ne_u32 vcc, 1, v59
        s_add_u32 s{S_SPIN}, s{S_SPIN}, 1
        s_cmp_gt_u32 s{S_SPIN}, {SPIN_MAX}
        s_cbranch_scc1 L_{tag}_flok
        s_cbranch_vccz L_{tag}_flok
        {flg}
        s_waitcnt vmcnt(0)
        s_branch L_{tag}_fl
        L_{tag}_flok:
        s_lshl_b32 s{S_T0}, s{S_WAVE}, 11
        s_add_u32 s{S_T0}, s{S_T0}, s{S_KV}
        s_add_u32 s{S_T1}, s{S_T0}, 8192
        """)
        for x in range(2):
            g(f"buffer_load_dwordx4 {v(KN+4*x,4)}, v{LM}, s[{S_WS}:{S_WS+3}], s{S_T0} offen offset:{x*1024}")
            g(f"buffer_load_dwordx4 {v(VN+4*x,4)}, v{LM}, s[{S_WS}:{S_WS+3}], s{S_T1} offen offset:{x*1024}")
    hooks = {0: lambda: store_mem0(g, st), 2: code_touch, 5: arrive, 8: lambda: warm(0), 10: lambda: warm(1),
             22: lambda: g(f"v_mov_b32 v58, {DBG_TEAM}\ns_mov_b32 s{S_T2}, {0 if opt.get('chainonly') else 224}\n{ask}"),
             24: lambda: g(f"v_lshlrev_b32 v56, 6, v0\nbuffer_load_dword v57, v56, s[{S_WS}:{S_WS+3}], s{S_H2LD} offen sc1"),
             27: counters, 30: lambda: g(flg), 31: first_kv}
    load_weights(g, hooks, opt.get("wnt", ""), "oqkv")
    if opt.get("count"): g("s_memrealtime s[90:91]\ns_waitcnt lgkmcnt(0)\ns_mov_b32 s2, s90")
    setup_late(g)
    bad = hazard.check(g.lines[m0:], "chain prologue")
    for w in range(1, 4):
        g(f"s_cmp_eq_u32 s{S_WAVE}, {w}\ns_cbranch_scc1 L_{tag}_w{w}")
    for w in range(4):
        g(f"L_{tag}_w{w}:")
        bad += wave_loop(g, w, st, tag, opt)
    g(f"L_{tag}_end:")
    return bad
```

```python
import sys
from asmlib import *
from layout import *
from chain import *
import workers

NAME = "recurrent_scan__memory_aug_recurrent_mem_tr__geglu_ffn__prompt_kernel"


def entry(g, opt):
    if opt.get('count') or opt.get('dbgt'): g('s_memrealtime s[14:15]')
    g(f"""
    s_cmp_ge_u32 s2, 256
    s_cbranch_scc1 L_exit
    s_load_dwordx16 s[16:31], s[0:1], 0
    s_load_dwordx8 s[32:39], s[0:1], 64
    s_load_dwordx4 s[40:43], s[0:1], 96
    s_getreg_b32 s{S_XCC}, hwreg(HW_REG_XCC_ID, 0, 3)
    v_lshrrev_b32 v1, 6, v0
    s_mov_b32 s{S_SPIN}, 0
    s_mov_b32 s{S_SENT}, {SENT}
    s_mov_b32 s{S_SENT+1}, {SENT}
    v_readfirstlane_b32 s{S_WAVE}, v1
    s_waitcnt lgkmcnt(0)
    s_mov_b32 s{S_WS}, s{P_WSP}
    s_mov_b32 s{S_WS+1}, s{P_WSP+1}
    s_mov_b32 s{S_WS+2}, {WS_BYTES}
    s_mov_b32 s{S_WS+3}, 0x20000
    s_cmp_lg_u32 s{S_WAVE}, 0
    s_cbranch_scc1 L_asked
    s_lshl_b32 s{S_T0}, s{S_XCC}, 5
    v_mov_b32 v1, s{S_T0}
    v_mov_b32 v2, 1
    s_mov_b64 exec, 1
    global_atomic_add v3, v1, v2, s[{P_DBG}:{P_DBG+1}] sc0
    s_mov_b64 exec, -1
    L_asked:
    """)
    if opt.get("ct"):
        g(f"s_barrier\ns_cmp_lg_u32 s{S_XCC}, 0\ns_cbranch_scc1 L_ct")
        set_srd(g, P_WO, 4 * MB)
        g(f"v_lshlrev_b32 v4, 7, v0\ns_lshr_b32 s{S_T0}, s2, 3\ns_lshl_b32 s{S_T0}, s{S_T0}, 17")
        for x in range(opt["ct"]):
            g(f"buffer_load_dword v23, v4, s[{S_W}:{S_W+3}], s{S_T0} offen\ns_add_u32 s{S_T0}, s{S_T0}, 32768")
        g(f"s_cmp_lg_u32 s{S_WAVE}, 0\ns_cbranch_scc1 L_ticket\ns_waitcnt vmcnt({opt['ct']})\ns_branch L_got\nL_ct:")
    pf = opt.get("pf", 0)
    if pf:
        g(f"s_barrier\ns_cmp_eq_u32 s{S_XCC}, 0\ns_cbranch_scc1 L_touched\nv_and_b32 v4, 63, v0\nv_lshlrev_b32 v4, 7, v4")
        for w, (p1, p2, n2, sl2) in enumerate(((P_WQ, P_X, 2*MB, 8192), (P_WK, P_WG, 512*2752, 5504), (P_WV, P_WU, 512*2752, 5504), (P_WO, None, 0, 0))):
            g(f"s_cmp_lg_u32 s{S_WAVE}, {w}\ns_cbranch_scc1 L_touch{w}")
            if p2:
                set_srd(g, p2, n2)
                g(f"s_mul_i32 s{S_T0}, s2, {sl2}\nbuffer_load_dword v127, v4, s[{S_W}:{S_W+3}], s{S_T0} offen")
            set_srd(g, p1, 4 * MB)
            g(f"s_lshl_b32 s{S_T0}, s2, 14\nbuffer_load_dword v127, v4, s[{S_W}:{S_W+3}], s{S_T0} offen")
            g(f"s_add_u32 s{S_T0}, s{S_T0}, 8192\nbuffer_load_dword v127, v4, s[{S_W}:{S_W+3}], s{S_T0} offen")
            if w == 0: g("s_waitcnt vmcnt(3)\ns_branch L_got")
            g(f"L_touch{w}:")
        g("L_touched:")
    g(f"""
    s_cmp_lg_u32 s{S_WAVE}, 0
    s_cbranch_scc1 L_ticket
    s_waitcnt vmcnt(0)
    L_got:
    v_mov_b32 v1, 0
    s_mov_b64 exec, 1
    ds_write_b32 v1, v3
    s_waitcnt lgkmcnt(0)
    s_mov_b64 exec, -1
    L_ticket:
    s_barrier
    v_mov_b32 v1, 0
    ds_read_b32 v3, v1
    s_waitcnt lgkmcnt(0)
    v_readfirstlane_b32 s{S_TK}, v3
    s_barrier
    s_and_b32 s{S_TK}, s{S_TK}, 31
    """)


DEFAULTS = {"d4": [3], "pace": 17, "wo1": 2, "d1": [15, 10], "d3": [9], "d5": [1], "e2": 0, "e3": 0, "dtop": 4, "kb": 2, "k0": 3, "e1": 0, "pf2": 2, "pf3": 2, "pfl": "nt", "pp": 1}


def build(opt):
    opt = dict(DEFAULTS, **opt)
    g = Asm()
    entry(g, opt)
    bad = []
    g(f"s_cmp_eq_u32 s{S_XCC}, 0\ns_cbranch_scc1 L_chain")
    if not opt.get("chainonly"):
        bad += workers.worker_roles(g, opt)
    g("L_exit:\ns_endpgm\nL_chain:")
    bad += chain_role(g, opt.get("st", ""), "c", opt)
    for b in bad: print(b, file=sys.stderr)
    head = f"; @launch grid=(256,1,1) block=(256,1,1) lds=163840\n"
    head += '.amdgcn_target "amdgcn-amd-amdhsa--gfx950"\n.text\n'
    head += f".globl {NAME}\n.p2align 8\n.type {NAME},@function\n{NAME}:\n"
    tail = f"""
.section .rodata,"a"
.p2align 6
.amdhsa_kernel {NAME}
  .amdhsa_next_free_vgpr 512
  .amdhsa_next_free_sgpr 102
  .amdhsa_accum_offset 256
  .amdhsa_group_segment_fixed_size 0
  .amdhsa_kernarg_size 112
  .amdhsa_user_sgpr_count 2
  .amdhsa_user_sgpr_kernarg_segment_ptr 1
  .amdhsa_system_sgpr_workgroup_id_x 1
.end_amdhsa_kernel
"""
    return head + g.text() + tail, bad


if __name__ == "__main__":
    import mb
    t, bad = build({})
    co = mb.assemble(t, NAME, 14, "k")
    print(mb.cl.address_register_problem(co, NAME))
    print(len(t), "bytes", len(bad), "hazards")
```

```python
from asmlib import *
from layout import *
from chain import (S_WS, S_W, P_X, P_WQ, P_WK, P_WV, P_WO, P_WG, P_WU, P_WD, P_OUT, P_DBG, S_XCC, S_TK, S_WAVE,
                   S_T0, S_T1, S_T2, S_T3, SPIN_MAX, set_srd, S_SPIN, S_SENT, dbg_time)

WSD = f"s[{S_WS}:{S_WS+3}]"
WD = f"s[{S_W}:{S_W+3}]"
S_WI, S_COL, S_SEG, S_HD, S_NXT, S_XO, S_O1, S_O2, S_FA, S_PREV, S_LB, S_C0, S_C1, S_C2 = range(51, 65)
S_R, S_IT, S_O3 = 65, 66, 67
S_OUT = 68
S_MK = 72
RING = 65536
NROWG = 5


def rg(f, b, n):
    return a(b, n) if f == "a" else v(b, n)


def mf32(d, x, y, first):
    return f"v_mfma_f32_32x32x16_bf16 {v(d,16)}, {x}, {y}, " + ("0" if first else v(d, 16))


def mf16(d, x, y, first):
    return f"v_mfma_f32_16x16x32_bf16 {v(d,4)}, {x}, {y}, " + ("0" if first else v(d, 4))


def spin_counter(g, tag, off, target, sleep=2):
    g(f"""
    v_mov_b32 v10, {off}
    L_{tag}:
    global_load_dword v11, v10, s[{P_DBG}:{P_DBG+1}] sc1
    s_add_u32 s{S_SPIN}, s{S_SPIN}, 1
    s_cmp_gt_u32 s{S_SPIN}, {SPIN_MAX}
    s_cbranch_scc1 L_{tag}_out
    s_waitcnt vmcnt(0)
    v_cmp_gt_u32 vcc, {target}, v11
    s_cbranch_vccz L_{tag}_out
    s_sleep {sleep}
    s_branch L_{tag}
    L_{tag}_out:
    s_waitcnt vmcnt(0)
    """)


def spin_flags(g, tag, vaddr, soff, sleep=1):
    g(f"""
    L_{tag}:
    buffer_load_dword v11, v{vaddr}, {WSD}, s{soff} offen sc1
    s_add_u32 s{S_SPIN}, s{S_SPIN}, 1
    s_cmp_gt_u32 s{S_SPIN}, {SPIN_MAX}
    s_cbranch_scc1 L_{tag}_out
    s_waitcnt vmcnt(0)
    v_cmp_ne_u32 vcc, 1, v11
    s_cbranch_vccz L_{tag}_out
    {f's_sleep {sleep}' if sleep else ''}
    s_branch L_{tag}
    L_{tag}_out:
    s_waitcnt vmcnt(0)
    """)


def count_up(g, tag, off, wait=True):
    if wait: g("s_waitcnt vmcnt(0)\ns_barrier")
    g(f"""
    s_cmp_lg_u32 s{S_WAVE}, 0
    s_cbranch_scc1 L_{tag}
    v_mov_b32 v10, {off}
    v_mov_b32 v11, 1
    s_mov_b64 exec, 1
    global_atomic_add v10, v11, s[{P_DBG}:{P_DBG+1}]
    s_mov_b64 exec, -1
    L_{tag}:
    """)


def set_flag(g, tag, soff, st="sc1"):
    g(f"""
    s_cmp_lg_u32 s{S_WAVE}, 0
    s_cbranch_scc1 L_{tag}
    v_mov_b32 v10, 0
    v_mov_b32 v11, 1
    s_mov_b64 exec, 1
    buffer_store_dword v11, v10, {WSD}, s{soff} offen {st}
    s_mov_b64 exec, -1
    L_{tag}:
    """)


def wstamp(g, opt, i, dump=False):
    if not opt.get("count"): return
    g(f"s_waitcnt vmcnt(0)" if dump else "")
    g(f"s_memrealtime s[88:89]\ns_waitcnt lgkmcnt(0)\ns_mov_b32 s{90+i}, s88")
    if dump:
        for k in range(5): g(f"v_mov_b32 v{21+k}, s{90+k}")
        g(f"""
        v_mov_b32 v20, s14
        s_lshl_b32 s{S_T0}, s{S_WI}, 5
        s_add_u32 s{S_T0}, s{S_T0}, {WS_STAMP - 8192}
        v_mov_b32 v10, 0
        buffer_store_dwordx4 v[20:23], v10, {WSD}, s{S_T0} offen
        buffer_store_dwordx2 v[24:25], v10, {WSD}, s{S_T0} offen offset:16
        """)


def pstamp(g, opt, i):
    if not opt.get("pst"): return
    g(f"""
    s_memrealtime s[88:89]
    s_lshl_b32 s96, s{S_XCC}, 5
    s_add_u32 s96, s96, s{S_TK}
    s_sub_u32 s96, s96, 32
    s_lshl_b32 s96, s96, 6
    s_add_u32 s96, s96, s{S_SEG}
    s_lshl_b32 s96, s96, 6
    s_add_u32 s96, s96, {96*MB + 4*i}
    s_waitcnt lgkmcnt(0)
    v_mov_b32 v18, s88
    v_mov_b32 v19, 0
    s_mov_b64 exec, 1
    buffer_store_dword v18, v19, {WSD}, s96 offen
    s_mov_b64 exec, -1
    s_waitcnt vmcnt(0)
    """)


def worker_init(g):
    g(f"""
    s_sub_u32 s{S_T0}, s{S_XCC}, 1
    s_min_u32 s{S_T1}, s{S_T0}, 4
    s_mul_i32 s{S_T1}, s{S_T1}, 5
    s_mul_i32 s{S_T2}, s{S_T0}, 20
    s_add_u32 s{S_T2}, s{S_T2}, s{S_T1}
    s_cmp_lt_u32 s{S_T0}, 4
    s_cselect_b32 s{S_T3}, 25, 20
    s_add_u32 s{S_WI}, s{S_T2}, s{S_TK}
    s_cmp_lt_u32 s{S_TK}, s{S_T3}
    s_cbranch_scc1 L_wi
    s_sub_u32 s{S_T1}, s{S_TK}, s{S_T3}
    s_sub_u32 s{S_T3}, 30, s{S_T3}
    s_mul_i32 s{S_WI}, s{S_T0}, 30
    s_sub_u32 s{S_WI}, s{S_WI}, s{S_T2}
    s_add_u32 s{S_WI}, s{S_WI}, s{S_T1}
    s_add_u32 s{S_WI}, s{S_WI}, 160
    s_cmp_lt_u32 s{S_T1}, s{S_T3}
    s_cbranch_scc1 L_wi
    s_lshl_b32 s{S_WI}, s{S_T0}, 1
    s_add_u32 s{S_WI}, s{S_WI}, s{S_TK}
    s_add_u32 s{S_WI}, s{S_WI}, {210 - 30}
    L_wi:
    """)


def worker_fill(g):
    g(f"""
    s_sub_u32 s{S_T0}, s{S_XCC}, 1
    """)
    g(f"""
    v_mov_b32 v11, 0
    v_mul_u32_u24 v10, 7, v0
    v_add_u32 v10, s{S_T0}, v10
    v_cmp_gt_u32 vcc, 64, v10
    v_lshlrev_b32 v10, 7, v10
    s_lshl_b32 s{S_T1}, s{S_TK}, 2
    s_add_u32 s{S_T1}, s{S_T1}, {WS_OF}
    v_mov_b32 v12, 0x40000000
    v_cndmask_b32 v10, v12, v10, vcc
    buffer_store_dword v11, v10, {WSD}, s{S_T1} offen sc1
    """)


def clear_flags(g, shift):
    g(f"""
    v_mov_b32 v11, 0
    v_mul_u32_u24 v10, {NROWG}, v0
    v_add_u32 v10, s{S_SEG}, v10
    v_cmp_gt_u32 vcc, 64, v10
    v_lshlrev_b32 v10, {shift}, v10
    v_mov_b32 v12, 0x40000000
    v_cndmask_b32 v10, v12, v10, vcc
    buffer_store_dword v11, v10, {WSD}, s{S_FA} offen sc1
    """)


def layernorm(g, seg, extra=None):
    X, T = 16, 80
    set_srd(g, P_X, 2 * MB)
    g(f"""
    v_lshrrev_b32 v1, 3, v0
    v_and_b32 v2, 7, v0
    v_lshlrev_b32 v3, 10, v1
    v_lshl_add_u32 v3, v2, 4, v3
    s_lshl_b32 s{S_T0}, s{seg}, 15
    """)
    for j in range(8):
        g(f"buffer_load_dwordx4 {v(T+4*j,4)}, v3, {WD}, s{S_T0} offen offset:{128*j}")
    if extra: extra[0]()
    g(f"""
    v_lshrrev_b32 v4, 1, v2
    v_lshlrev_b32 v4, 10, v4
    v_and_b32 v5, 1, v2
    v_lshl_add_u32 v4, v5, 9, v4
    v_lshl_add_u32 v4, v1, 4, v4
    s_add_u32 s{S_T0}, s{S_T0}, {WS_XN}
    s_mov_b32 s{S_T1}, 0xffff0000
    s_waitcnt vmcnt({extra[1] if extra else 0})
    """)
    for i in range(32):
        g(f"v_lshlrev_b32 v{X+2*i}, 16, v{T+i}\nv_and_b32 v{X+2*i+1}, s{S_T1}, v{T+i}")

    def reduce8(r):
        for m in ("quad_perm:[1,0,3,2]", "quad_perm:[2,3,0,1]", "row_half_mirror"):
            g(f"s_nop 1\nv_add_f32_dpp v{r}, v{r}, v{r} {m} row_mask:0xf bank_mask:0xf")

    g(f"v_pk_add_f32 v[6:7], {v(X,2)}, {v(X+2,2)}")
    for i in range(2, 32):
        g(f"v_pk_add_f32 v[6:7], v[6:7], {v(X+2*i,2)}")
    g("v_add_f32 v6, v6, v7")
    reduce8(6)
    g(f"v_mul_f32 v6, 0x3b000000, v6\nv_mov_b32 v8, 0\nv_mov_b32 v9, 0")
    for i in range(64):
        g(f"v_sub_f32 v7, v{X+i}, v6\nv_fmac_f32 v{8+(i&1)}, v7, v7")
    g("v_add_f32 v8, v8, v9")
    reduce8(8)
    g(f"""
    v_mul_f32 v8, 0x3b000000, v8
    v_cvt_pk_bf16_f32 v6, v6, v8
    v_and_b32 v8, s{S_T1}, v6
    v_lshlrev_b32 v6, 16, v6
    v_add_f32 v8, 0x3727c5ac, v8
    v_cvt_pk_bf16_f32 v8, v8, v8
    v_and_b32 v8, s{S_T1}, v8
    v_sqrt_f32 v8, v8
    s_nop 0
    v_cvt_pk_bf16_f32 v8, v8, v8
    v_and_b32 v8, s{S_T1}, v8
    v_rcp_f32 v8, v8
    """)
    for i in range(32):
        p = X + 2 * i
        g(f"""
        v_sub_f32 v{p}, v{p}, v6
        v_sub_f32 v{p+1}, v{p+1}, v6
        v_cvt_pk_bf16_f32 v{p}, v{p}, v{p+1}
        v_and_b32 v{p+1}, s{S_T1}, v{p}
        v_lshlrev_b32 v{p}, 16, v{p}
        v_mul_f32 v{p}, v{p}, v8
        v_mul_f32 v{p+1}, v{p+1}, v8
        v_cvt_pk_bf16_f32 v{T+i}, v{p}, v{p+1}
        """)
        if i % 4 == 3:
            g(f"buffer_store_dwordx4 {v(T+i-3,4)}, v4, {WSD}, s{S_T0} offen sc1\ns_add_u32 s{S_T0}, s{S_T0}, 4096")


def load_w32(g, mats, stride, touch, hook=None, setup=True):
    DM, RT, RN = 13, 14, 15
    if setup: g(f"""
    v_and_b32 v4, 63, v0
    v_lshrrev_b32 v5, 4, v4
    v_and_b32 v6, 15, v4
    v_lshlrev_b32 v7, 2, v5
    v_xor_b32 v6, v6, v7
    v_lshlrev_b32 v{DM}, 4, v6
    s_lshl_b32 s{S_T0}, s{S_WAVE}, 4
    v_add_u32 v6, s{S_T0}, v5
    v_mul_u32_u24 v6, {stride}, v6
    v_add3_u32 v{DM}, v{DM}, v6, s{S_COL}
    v_bfe_u32 v6, v4, 2, 2
    v_xor_b32 v7, s{S_WAVE}, v6
    v_lshlrev_b32 v7, 6, v7
    v_lshl_add_u32 v7, v6, 8, v7
    v_lshrrev_b32 v6, 5, v4
    v_lshl_add_u32 v7, v6, 11, v7
    v_add_u32 v7, {RING}, v7
    v_and_b32 v5, 1, v5
    v_and_b32 v6, 3, v4
    v_lshl_add_u32 v{RN}, v5, 5, v7
    v_lshl_add_u32 v{RN}, v6, 3, v{RN}
    v_lshl_add_u32 v{RT}, v5, 4, v7
    v_and_b32 v6, 1, v4
    v_lshl_add_u32 v{RT}, v6, 3, v{RT}
    v_bfe_u32 v6, v4, 1, 1
    v_lshl_add_u32 v{RT}, v6, 5, v{RT}
    s_lshl_b32 s{S_T3}, s{S_WAVE}, 12
    s_add_u32 s{S_T3}, s{S_T3}, {RING}
    """)
    if touch is not None:
        g(f"""
        s_mul_i32 s{S_T1}, s{S_SEG}, 104
        s_mul_i32 s{S_T2}, s{S_WAVE}, 26
        s_add_u32 s{S_T1}, s{S_T1}, s{S_T2}
        v_lshrrev_b32 v5, 1, v4
        v_min_u32 v5, 25, v5
        v_add_u32 v5, s{S_T1}, v5
        v_mul_u32_u24 v5, {stride}, v5
        v_and_b32 v6, 1, v4
        v_lshl_add_u32 v5, v6, 7, v5
        """)
        for m in mats:
            set_srd(g, m[0], m[1])
            g(f"buffer_load_dword v127, v5, {WD}, s{S_COL} offen {touch}")
    stages = [(m, S) for m in mats for S in range(8)]

    def issue(i):
        m, S = stages[i]
        if S == 0: set_srd(g, m[0], m[1])
        for x in range(4):
            g(f"s_add_u32 m0, s{S_T3}, {(i % 4) * 16384 + x * 1024}\ns_mov_b32 s{S_T0}, {(64 * S + 4 * x) * stride}")
            g(f"buffer_load_dwordx4 v{DM}, {WD}, s{S_T0} offen lds")

    for i in range(3): issue(i)
    for i, (m, S) in enumerate(stages):
        g(f"s_waitcnt vmcnt({4 * min(2, len(stages) - 1 - i)}) lgkmcnt(0)\ns_barrier")
        if hook and i == 0: hook()
        if i + 3 < len(stages): issue(i + 3)
        for ks in range(4):
            for x in range(2):
                g(f"ds_read_b64_tr_b16 {rg(m[2], m[3] + 4*(4*S+ks) + 2*x, 2)}, v{RT if m[4] else RN} offset:{(i % 4)*16384 + ks*4096 + x*1024}")
    g("s_waitcnt lgkmcnt(0)")


def xn_dma():
    out = [[f"s_lshl_b32 s{S_T2}, s{S_NXT}, 15", f"s_add_u32 s{S_T2}, s{S_T2}, s{S_XO}"]]
    for hh in range(2):
        out[-1] += [f"s_add_u32 m0, s{S_LB}, {hh*4096}", f"s_add_u32 s{S_T1}, s{S_T2}, {hh*4096}"]
        for x in range(4):
            out[-1] += [f"buffer_load_dwordx4 v1, {WSD}, s{S_T1} offen offset:{x*1024} sc1 lds"]
            out.append([])
    out[-1] += [f"s_xor_b32 s{S_LB}, s{S_LB}, 32768"]
    return out


def gemm_loop(g, tag, mats, stores, epilogue, first=None):
    XF, ACC = 16, 32
    g(f"""
    v_and_b32 v4, 63, v0
    v_lshlrev_b32 v1, 4, v4
    v_mov_b32 v2, v1
    s_lshl_b32 s{S_LB}, s{S_WAVE}, 13
    s_add_u32 s{S_XO}, s{S_LB}, {WS_XN}
    s_mov_b32 s{S_PREV}, -1
    s_mov_b32 s{S_O1}, 0x40000000
    s_mov_b32 s{S_O2}, 0x40000000
    s_mov_b32 s{S_O3}, 0x40000000
    s_mov_b32 s{S_NXT}, s{S_SEG}
    s_mov_b32 s{S_R}, s{S_SEG}
    s_mov_b32 s{S_IT}, 0
    """)
    spin_counter(g, f"{tag}_ln", DBG_LN, 64)
    for x in sum(xn_dma(), []): g(x)
    g(f"L_{tag}_seg:")
    m0 = g.mark()
    g(f"""
    s_add_u32 s{S_NXT}, s{S_SEG}, {NROWG}
    s_cmp_lt_u32 s{S_NXT}, {NSEG}
    s_cselect_b32 s{S_NXT}, s{S_NXT}, s{S_R}
    s_waitcnt vmcnt(0)
    s_barrier
    """)
    rd = lambda ks: f"ds_read_b128 {v(XF+4*(ks%4),4)}, v2 offset:{ks*1024}"
    for ks in range(3): g(rd(ks))
    side = [[x] for x in stores] + xn_dma()
    for ks in range(32):
        g(f"s_waitcnt lgkmcnt({min(2, 31-ks)})")
        for j, m in enumerate(mats):
            w_, x_ = rg(m[2], m[3] + 4*ks, 4), v(XF + 4*(ks % 4), 4)
            g(mf32(ACC + 16*j, w_, x_, ks == 0) if m[4] else mf32(ACC + 16*j, x_, w_, ks == 0))
            if j == 0 and ks + 3 < 32: g(rd(ks + 3))
            if j == 1 and side:
                for x in side.pop(0): g(x)
        if ks == 24 and first:
            g(f"s_cmp_lt_i32 s{S_PREV}, 0\ns_cbranch_scc1 L_{tag}_nf\ns_waitcnt vmcnt(8)\ns_barrier")
            set_flag(g, f"{tag}_nf", S_PREV)
    g("v_xor_b32 v2, 0x8000, v2\ns_nop 7\ns_nop 1")
    epilogue(ACC)
    bad = hazard.check(g.lines[m0:] + g.lines[m0:m0 + 40], tag)
    if first:
        g(f"""
        s_lshl_b32 s{S_PREV}, s{S_SEG}, 2
        s_add_u32 s{S_PREV}, s{S_PREV}, s{S_FA}
        s_cmp_eq_u32 s{S_SEG}, s{S_R}
        s_mov_b32 s{S_SEG}, s{S_NXT}
        s_cbranch_scc0 L_{tag}_seg
        s_cmp_lg_u32 s{S_IT}, 0
        s_cbranch_scc1 L_{tag}_last
        s_mov_b32 s{S_IT}, 1
        """)
        for x in stores[:5]: g(x)
        first(lambda: set_flag(g, f"{tag}_ff", S_PREV))
        g(f"s_mov_b32 s{S_PREV}, -1\ns_mov_b32 s{S_O1}, 0x40000000\ns_mov_b32 s{S_O2}, 0x40000000\ns_mov_b32 s{S_O3}, 0x40000000\ns_branch L_{tag}_seg\nL_{tag}_last:")
        for x in stores[5:]: g(x)
    else:
        g(f"s_mov_b32 s{S_SEG}, s{S_NXT}\ns_cmp_lg_u32 s{S_SEG}, s{S_R}\ns_cbranch_scc1 L_{tag}_seg")
        for x in stores: g(x)
    count_up(g, f"{tag}_done", DBG_ADONE)
    return bad


def tile_addr(g, dst, tshift):
    g(f"""
    v_bfe_u32 v5, v0, 4, 1
    v_mul_u32_u24 v{dst}, {tshift}, v5
    v_bfe_u32 v5, v0, 5, 1
    v_lshl_add_u32 v{dst}, v5, 8, v{dst}
    v_and_b32 v5, 15, v0
    v_lshl_add_u32 v{dst}, v5, 4, v{dst}
    s_lshl_b32 s{S_T0}, s{S_WAVE}, 10
    v_add_u32 v{dst}, s{S_T0}, v{dst}
    """)


def qkv_role(g, opt):
    mats = [(P_WK, 4*MB, "a", 0, 1), (P_WV, 4*MB, "a", 128, 0), (P_WQ, 4*MB, "v", 128, 1)]
    m0 = g.mark()
    g(f"""
    s_mul_i32 s{S_HD}, s{S_WI}, 52429
    s_lshr_b32 s{S_HD}, s{S_HD}, 18
    s_mul_i32 s{S_T0}, s{S_HD}, {NROWG}
    s_sub_u32 s{S_SEG}, s{S_WI}, s{S_T0}
    s_lshl_b32 s{S_COL}, s{S_HD}, 8
    s_add_u32 s{S_FA}, s{S_COL}, {WS_FLAGS}
    """)
    wstamp(g, opt, 0)
    worker_fill(g)
    clear_flags(g, 2)
    load_w32(g, mats[:2], 8192, opt.get("touch"), lambda: count_up(g, "qkv_in", DBG_INIT, False))
    wstamp(g, opt, 1)
    tile_addr(g, 8, 4096)
    g(f"""
    v_bfe_u32 v5, v0, 4, 1
    v_lshlrev_b32 v9, 10, v5
    v_bfe_u32 v5, v0, 5, 1
    v_lshl_add_u32 v9, v5, 9, v9
    v_and_b32 v5, 15, v0
    v_lshl_add_u32 v9, v5, 4, v9
    s_lshl_b32 s{S_T0}, s{S_WAVE}, 11
    s_add_u32 s{S_T0}, s{S_T0}, 8192
    v_add_u32 v9, s{S_T0}, v9
    v_lshlrev_b32 v7, 4, v0
    v_mov_b64 v[104:105], s[{S_SENT}:{S_SENT+1}]
    v_mov_b64 v[106:107], s[{S_SENT}:{S_SENT+1}]
    """)
    bad = hazard.check(g.lines[m0:], "qkv prologue")

    def epi(ACC):
        P = 80
        g(f"""
        s_lshl_b32 s{S_O1}, s{S_SEG}, 5
        s_add_u32 s{S_O1}, s{S_O1}, s{S_HD}
        s_lshl_b32 s{S_O3}, s{S_O1}, 12
        s_add_u32 s{S_O3}, s{S_O3}, {WS_PUB}
        s_lshl_b32 s{S_O2}, s{S_O1}, 13
        s_add_u32 s{S_O2}, s{S_O2}, {WS_Q}
        s_lshl_b32 s{S_O1}, s{S_O1}, 14
        s_add_u32 s{S_O1}, s{S_O1}, {WS_KV}
        """)
        for rho in range(2):
            for x in range(4): g(f"v_cvt_pk_bf16_f32 v{P+4*rho+x}, v{ACC+8*rho+x}, v{ACC+8*rho+4+x}")
        for be in range(2):
            for ri in range(4):
                r = ACC + 16 + 8*(ri & 1) + 4*(ri >> 1) + 2*be
                g(f"v_cvt_pk_bf16_f32 v{P+8+4*be+ri}, v{r}, v{r+1}")
        for rho in range(2):
            for x in range(4): g(f"v_cvt_pk_bf16_f32 v{P+16+4*rho+x}, v{ACC+32+8*rho+x}, v{ACC+32+8*rho+4+x}")

    stores = ([f"buffer_store_dwordx4 {v(80+4*x,4)}, v8, {WSD}, s{S_O1} offen offset:{512*x} sc1" for x in range(2)] +
              [f"buffer_store_dwordx4 {v(88+4*x,4)}, v9, {WSD}, s{S_O1} offen offset:{256*x} sc1" for x in range(2)] +
              [f"buffer_store_dwordx4 v[104:107], v7, {WSD}, s{S_O3} offen sc1"] +
              [f"buffer_store_dwordx4 {v(96+4*x,4)}, v8, {WSD}, s{S_O2} offen offset:{512*x} sc1" for x in range(2)])
    return bad + gemm_loop(g, "qkv", mats, stores, epi, lambda hook: load_w32(g, mats[2:], 8192, None, hook, False))


def ffn_role(g, opt):
    mats = [(P_WG, 512*2752, "a", 0, 1), (P_WU, 512*2752, "a", 128, 1)]
    m0 = g.mark()
    g(f"""
    s_sub_u32 s{S_O1}, s{S_WI}, 160
    s_mul_i32 s{S_HD}, s{S_O1}, 52429
    s_lshr_b32 s{S_HD}, s{S_HD}, 18
    s_mul_i32 s{S_T0}, s{S_HD}, {NROWG}
    s_sub_u32 s{S_SEG}, s{S_O1}, s{S_T0}
    s_lshl_b32 s{S_COL}, s{S_HD}, 8
    """)
    def pf2():
        g(f"v_lshlrev_b32 v126, 7, v0")
        if opt.get("pf3"):
            set_srd(g, P_WO, 4 * MB)
            g(f"s_lshr_b32 s{S_T2}, s{S_O1}, 1\ns_lshl_b32 s{S_T2}, s{S_T2}, 17\ns_and_b32 s{S_T3}, s{S_O1}, 1\ns_lshl_b32 s{S_T3}, s{S_T3}, 15")
            g(f"s_add_u32 s{S_T2}, s{S_T2}, s{S_T3}\ns_add_u32 s{S_T2}, s{S_T2}, 65536\nbuffer_load_dword v127, v126, {WD}, s{S_T2} offen")
            if opt["pf3"] == 2: g(f"s_sub_u32 s{S_T2}, s{S_T2}, 65536\nbuffer_load_dword v127, v126, {WD}, s{S_T2} offen")
        set_srd(g, P_WQ, 4 * MB)
        g(f"s_lshl_b32 s{S_T2}, s{S_O1}, 16")
        for x in range(2): g(f"buffer_load_dword v127, v126, {WD}, s{S_T2} offen\ns_add_u32 s{S_T2}, s{S_T2}, 32768")
    worker_fill(g)
    layernorm(g, S_O1, (pf2, 2 + opt.get("pf3", 0)) if opt.get("pf2") == 2 else None)
    count_up(g, "ffn_lnup", DBG_LN)
    count_up(g, "ffn_in", DBG_INIT, False)
    wstamp(g, opt, 0)
    if opt.get("pf2") == 1: pf2()
    g(f"s_cmp_ge_u32 s{S_HD}, 11\ns_cbranch_scc1 L_p3")
    load_w32(g, mats, 2752, opt.get("touch"))
    wstamp(g, opt, 1)
    tile_addr(g, 8, HM_SEG // 2)
    g(f"s_mov_b32 s{S_C0}, 0xffff0000\ns_mov_b32 s{S_C1}, 0xbdd2d3e8\ns_mov_b32 s{S_C2}, 0xc0135761")
    bad = hazard.check(g.lines[m0:], "ffn prologue")

    def epi(ACC):
        P, T = 80, 96
        U = ACC + 16
        g(f"""
        s_mul_i32 s{S_O1}, s{S_SEG}, {HM_SEG}
        s_lshl_b32 s{S_T0}, s{S_HD}, 12
        s_add_u32 s{S_O1}, s{S_O1}, s{S_T0}
        s_add_u32 s{S_O1}, s{S_O1}, {WS_HMID}
        v_mov_b32 v{T+16}, s{S_C2}
        """)

        def rnd(x, y):
            g(f"v_cvt_pk_bf16_f32 v{x}, v{x}, v{y}\nv_and_b32 v{y}, s{S_C0}, v{x}\nv_lshlrev_b32 v{x}, 16, v{x}")
        for rho in range(2):
            idx = [8*rho + i for i in range(8)]
            for x in range(4):
                rnd(ACC + 8*rho + x, ACC + 8*rho + 4 + x); rnd(U + 8*rho + x, U + 8*rho + 4 + x)
            for i in idx: g(f"v_mul_f32 v{T+i}, v{ACC+i}, v{ACC+i}")
            for i in idx: g(f"v_fma_f32 v{T+i}, v{T+i}, s{S_C1}, v{T+16}")
            for i in idx: g(f"v_mul_f32 v{T+i}, v{T+i}, v{ACC+i}")
            for i in idx: g(f"v_exp_f32 v{T+i}, v{T+i}")
            for i in idx: g(f"v_add_f32 v{T+i}, 1.0, v{T+i}")
            for i in idx: g(f"v_rcp_f32 v{T+i}, v{T+i}")
            for i in idx: g(f"v_mul_f32 v{ACC+i}, v{ACC+i}, v{T+i}")
            for x in range(4): rnd(ACC + 8*rho + x, ACC + 8*rho + 4 + x)
            for i in idx: g(f"v_mul_f32 v{ACC+i}, v{ACC+i}, v{U+i}")
            for x in range(4): g(f"v_cvt_pk_bf16_f32 v{P+4*rho+x}, v{ACC+8*rho+x}, v{ACC+8*rho+4+x}")

    stores = [f"buffer_store_dwordx4 {v(80+4*x,4)}, v8, {WSD}, s{S_O1} offen offset:{512*x} sc1" for x in range(2)]
    return bad + gemm_loop(g, "ffn", mats, stores, epi)


def p3_role(g, opt):
    LN16, KPA, RWA, RRA, XA, KMW, KMR, VMW, VMR, HFA, OFA = 1, 2, 3, 4, 5, 6, 7, 8, 9, 12, 13
    GV, XV = 14, 16
    ACC, SC, PB, OA, KM, VM = 20, 28, 44, 52, 68, 84
    ST = 92
    WDR = 168
    L_RED, L_KM, L_VM = 0, 8192, 12288
    S_TH, S_SCL, S_QO, S_KO, S_PO, S_HO = S_HD, S_C1, S_O1, S_O2, S_FA, S_PREV
    st = opt.get("st", "")
    S_OB = S_LB
    m0 = g.mark()
    DM, RA = 1, 2
    g(f"""
    s_lshr_b32 s{S_TH}, s{S_TK}, 4
    s_and_b32 s{S_COL}, s{S_TK}, 15
    s_lshl_b32 s{S_COL}, s{S_COL}, 6
    v_and_b32 v4, 63, v0
    v_lshrrev_b32 v5, 4, v4
    v_bfe_u32 v6, v4, 2, 2
    v_and_b32 v7, 1, v6
    v_lshlrev_b32 v{DM}, 4, v7
    v_lshl_add_u32 v{DM}, v5, 2, v{DM}
    v_lshrrev_b32 v7, 1, v6
    v_add_u32 v{DM}, v{DM}, v7
    v_lshlrev_b32 v{DM}, 10, v{DM}
    v_and_b32 v7, 1, v5
    v_lshlrev_b32 v7, 1, v7
    v_and_b32 v8, 3, v4
    v_xor_b32 v8, v8, v7
    v_lshl_add_u32 v{DM}, v8, 4, v{DM}
    v_add_u32 v{DM}, s{S_COL}, v{DM}
    v_lshrrev_b32 v8, 2, v4
    v_lshlrev_b32 v{RA}, 6, v8
    v_lshl_add_u32 v{RA}, v7, 4, v{RA}
    v_and_b32 v8, 3, v4
    v_lshl_add_u32 v{RA}, v8, 3, v{RA}
    s_lshl_b32 s{S_T3}, s{S_WAVE}, 15
    v_add_u32 v{RA}, s{S_T3}, v{RA}
    v_xor_b32 v{RA+1}, 32, v{RA}
    s_lshl_b32 s{S_T1}, s{S_WAVE}, 20
    s_mul_i32 s{S_T2}, s{S_WAVE}, {11*32768}
    """)
    steps = [("o", k) for k in range(32)] + [("d", k) for k in range(11)]
    AH = 12

    def issue(i):
        m, k = steps[i]
        if k == 0: set_srd(g, P_WO if m == "o" else P_WD, 4*MB if m == "o" else 1376*1024)
        for x in range(2):
            g(f"s_add_u32 m0, s{S_T3}, {(i % 16)*2048 + x*1024}\ns_add_u32 s{S_T0}, s{S_T1 if m == 'o' else S_T2}, {k*32768 + x*2048}")
            g(f"buffer_load_dwordx4 v{DM}, {WD}, s{S_T0} offen lds")

    wreg = lambda m, k, t, o=0, n=4: a(8*k + 4*t + o, n) if m == "o" else v(WDR + 8*k + 4*t + o, n)
    for i in range(AH): issue(i)
    for i, (m, k) in enumerate(steps):
        g(f"s_waitcnt vmcnt({2*min(AH - 1, len(steps) - 1 - i)}) lgkmcnt(8)")
        if i + AH < len(steps): issue(i + AH)
        for t in range(2):
            for x in range(2):
                g(f"ds_read_b64_tr_b16 {wreg(m, k, t, 2*x, 2)}, v{RA+t} offset:{(i % 16)*2048 + x*1024}")
    g("s_waitcnt lgkmcnt(0)\ns_barrier")
    g(f"""
    v_and_b32 v20, 63, v0
    v_lshrrev_b32 v21, 4, v20
    v_and_b32 v22, 15, v20
    v_lshlrev_b32 v{LN16}, 4, v20
    v_bfe_u32 v23, v22, 1, 1
    v_lshlrev_b32 v{KPA}, 3, v23
    v_lshrrev_b32 v23, 2, v22
    v_lshl_add_u32 v{KPA}, v23, 1, v{KPA}
    v_and_b32 v24, 1, v22
    v_add_u32 v{KPA}, v{KPA}, v24
    v_lshl_add_u32 v{KPA}, v21, 4, v{KPA}
    v_lshlrev_b32 v{KPA}, 4, v{KPA}
    v_lshl_add_u32 v{KMR}, v23, 1, v24
    v_lshlrev_b32 v{KMR}, 4, v{KMR}
    v_mul_u32_u24 v24, 144, v21
    v_add_u32 v{KMR}, v{KMR}, v24
    v_add_u32 v{KMR}, {L_KM}, v{KMR}
    v_mul_u32_u24 v{KMW}, 144, v23
    v_lshl_add_u32 v{KMW}, v21, 5, v{KMW}
    v_and_b32 v24, 3, v22
    v_lshl_add_u32 v{KMW}, v24, 2, v{KMW}
    s_mul_i32 s{S_T0}, s{S_WAVE}, 576
    s_add_u32 s{S_T0}, s{S_T0}, {L_KM}
    v_add_u32 v{KMW}, s{S_T0}, v{KMW}
    v_lshlrev_b32 v{VMW}, 3, v0
    v_add_u32 v{VMW}, {L_VM}, v{VMW}
    s_lshr_b32 s{S_T0}, s{S_WAVE}, 1
    s_lshl_b32 s{S_T0}, s{S_T0}, 10
    s_add_u32 s{S_T0}, s{S_T0}, {L_VM}
    v_lshlrev_b32 v{VMR}, 3, v20
    v_add_u32 v{VMR}, s{S_T0}, v{VMR}
    s_lshl_b32 s{S_T0}, s{S_WAVE}, 11
    v_lshlrev_b32 v{RWA}, 7, v22
    v_lshl_add_u32 v{RWA}, v21, 4, v{RWA}
    v_add_u32 v{RWA}, s{S_T0}, v{RWA}
    v_lshlrev_b32 v{RRA}, 3, v0
    v_lshrrev_b32 v24, 4, v0
    v_lshlrev_b32 v{XA}, 10, v24
    v_lshl_add_u32 v{XA}, v22, 2, v{XA}
    s_lshl_b32 s{S_T0}, s{S_TH}, 14
    s_add_u32 s{S_T0}, s{S_T0}, s{S_COL}
    v_add_u32 v{XA}, s{S_T0}, v{XA}
    v_min_u32 v{HFA}, 10, v20
    v_lshlrev_b32 v{HFA}, 2, v{HFA}
    v_and_b32 v{OFA}, 7, v20
    s_lshl_b32 s{S_T0}, s{S_WAVE}, 3
    v_add_u32 v{OFA}, s{S_T0}, v{OFA}
    v_lshlrev_b32 v{OFA}, 2, v{OFA}
    s_and_b32 s{S_T0}, s{S_WAVE}, 1
    s_lshl_b32 s{S_T0}, s{S_T0}, 4
    v_add_u32 v22, s{S_T0}, v22
    v_lshlrev_b32 v21, 1, v21
    v_sub_u32 v22, v22, v21
    """)
    for T in range(2):
        for r in range(4):
            g(f"v_cmp_le_i32 s[{S_MK+2*(4*T+r)}:{S_MK+2*(4*T+r)+1}], {16*T + 8*(r >> 1) + (r & 1)}, v22")
    g(f"""
    s_mov_b32 s{S_OUT}, s{P_OUT}
    s_mov_b32 s{S_OUT+1}, s{P_OUT+1}
    s_mov_b32 s{S_OUT+2}, {2*MB}
    s_mov_b32 s{S_OUT+3}, 0x20000
    s_mov_b32 s{S_SCL}, 0x3e0293ee
    s_mov_b32 s{S_C0}, 0xffff0000
    s_mov_b32 s{S_C2}, 0xbfb8aa3b
    s_sub_u32 s{S_SEG}, s{S_XCC}, 1
    s_lshl_b32 s{S_OB}, s{S_SEG}, 1
    v_mov_b32 v{PB+5}, 0
    v_mov_b32 v{PB+6}, 0
    """)
    set_srd(g, P_X, 2 * MB)
    spin_counter(g, "p3_init", DBG_INIT, 224)
    spin_counter(g, "p3_adone", DBG_ADONE, 215, 8)
    bad = hazard.check(g.lines[m0:], "p3 prologue")

    def reduce(dst):
        g("s_nop 7")
        for t in range(2): g(f"ds_write_b128 v{RWA}, {v(ACC+4*t,4)} offset:{L_RED + 64*t}")
        g("s_waitcnt lgkmcnt(0)\ns_barrier")
        for x in range(4): g(f"ds_read_b64 {v(ACC+2*x,2)}, v{RRA} offset:{L_RED + 2048*x}")
        g(f"""
        s_waitcnt lgkmcnt(0)
        v_pk_add_f32 {v(ACC,2)}, {v(ACC,2)}, {v(ACC+2,2)}
        v_pk_add_f32 {v(ACC+4,2)}, {v(ACC+4,2)}, {v(ACC+6,2)}
        v_pk_add_f32 {v(ACC,2)}, {v(ACC,2)}, {v(ACC+4,2)}
        v_cvt_pk_bf16_f32 v{dst}, v{ACC}, v{ACC+1}
        v_and_b32 v{dst+1}, s{S_C0}, v{dst}
        v_lshlrev_b32 v{dst}, 16, v{dst}
        """)

    wstamp(g, opt, 3)
    g("L_p3_seg:")
    m1 = g.mark()
    pstamp(g, opt, 0)
    QR_, KR_, VR_, HM = ST, ST + 16, ST + 48, SC
    g(f"""
    s_lshl_b32 s{S_T0}, s{S_SEG}, 1
    s_add_u32 s{S_T0}, s{S_T0}, s{S_TH}
    s_mul_i32 s{S_HO}, s{S_T0}, {HM_SEG // 2}
    s_mul_i32 s{S_T1}, s{S_WAVE}, {11*1024}
    s_add_u32 s{S_HO}, s{S_HO}, s{S_T1}
    s_add_u32 s{S_HO}, s{S_HO}, {WS_HMID}
    s_cmp_eq_u32 s{S_WAVE}, 3
    s_cselect_b32 s{S_T1}, 0x40000000, 0
    """)
    for k in range(11):
        if k == 10: g(f"s_add_u32 s{S_HO}, s{S_HO}, s{S_T1}")
        g(f"buffer_load_dwordx4 {v(HM+4*k,4)}, v{LN16}, {WSD}, s{S_HO} offen offset:{(k & 3)*1024} sc1")
        if k & 3 == 3: g(f"s_add_u32 s{S_HO}, s{S_HO}, 4096")
    g(f"s_lshl_b32 s{S_XO}, s{S_SEG}, 15\nbuffer_load_dword v{XV}, v{XA}, {WD}, s{S_XO} offen")
    g(f"""
    s_lshl_b32 s{S_T0}, s{S_SEG}, 5
    s_add_u32 s{S_T0}, s{S_T0}, s{S_TK}
    s_lshl_b32 s{S_QO}, s{S_T0}, 13
    s_and_b32 s{S_T1}, s{S_WAVE}, 1
    s_lshl_b32 s{S_T1}, s{S_T1}, 12
    s_add_u32 s{S_QO}, s{S_QO}, s{S_T1}
    s_add_u32 s{S_QO}, s{S_QO}, {WS_Q}
    s_lshl_b32 s{S_KO}, s{S_T0}, 14
    s_add_u32 s{S_KO}, s{S_KO}, {WS_KV}
    s_lshl_b32 s{S_PO}, s{S_T0}, 2
    s_add_u32 s{S_PO}, s{S_PO}, s{S_WAVE}
    s_lshl_b32 s{S_PO}, s{S_PO}, 10
    s_add_u32 s{S_PO}, s{S_PO}, {WS_PUB}
    s_add_u32 s{S_T1}, s{S_KO}, 4096
    s_lshr_b32 s{S_T2}, s{S_WAVE}, 1
    s_lshl_b32 s{S_T2}, s{S_T2}, 12
    s_add_u32 s{S_T2}, s{S_T2}, s{S_KO}
    s_add_u32 s{S_T2}, s{S_T2}, 8192
    """)
    for x in range(4):
        g(f"buffer_load_dwordx4 {v(QR_+4*x,4)}, v{LN16}, {WSD}, s{S_QO} offen offset:{x*1024} sc1")
        g(f"buffer_load_dwordx4 {v(KR_+4*x,4)}, v{KPA}, {WSD}, s{S_KO} offen offset:{x*1024} sc1")
        g(f"buffer_load_dwordx4 {v(KR_+16+4*x,4)}, v{KPA}, {WSD}, s{S_T1} offen offset:{x*1024} sc1")
    for x in range(4):
        g(f"buffer_load_dwordx4 {v(VR_+4*x,4)}, v{LN16}, {WSD}, s{S_T2} offen offset:{x*1024} sc1")
    for k in range(11):
        g(f"s_waitcnt vmcnt({27-k})")
        for t in range(2): g(mf16(ACC + 4*t, wreg("d", k, t), v(HM + 4*k, 4), k == 0))
    reduce(GV)
    g(f"""
    v_mul_f32 v{ACC}, s{S_C2}, v{GV}
    v_mul_f32 v{ACC+1}, s{S_C2}, v{GV+1}
    v_exp_f32 v{ACC}, v{ACC}
    v_exp_f32 v{ACC+1}, v{ACC+1}
    s_nop 0
    v_add_f32 v{ACC}, 1.0, v{ACC}
    v_add_f32 v{ACC+1}, 1.0, v{ACC+1}
    v_rcp_f32 v{ACC}, v{ACC}
    v_rcp_f32 v{ACC+1}, v{ACC+1}
    s_waitcnt vmcnt(16)
    v_pk_mul_f32 {v(GV,2)}, {v(GV,2)}, {v(ACC,2)}
    v_cvt_pk_bf16_f32 v{GV}, v{GV}, v{GV+1}
    v_and_b32 v{GV+1}, s{S_C0}, v{GV}
    v_lshlrev_b32 v{GV}, 16, v{GV}
    v_and_b32 v{XV+1}, s{S_C0}, v{XV}
    v_lshlrev_b32 v{XV}, 16, v{XV}
    """)
    g(f"v_mov_b32 v{PB+5}, 0\nv_mov_b32 v{PB+6}, 0\nv_mov_b32 v10, 0")
    for x in range(4):
        g(f"s_waitcnt vmcnt({4 + 3*(3-x)})")
        for T in range(2): g(mf16(SC + 4*T, v(KR_ + 16*T + 4*x, 4), v(QR_ + 4*x, 4), x == 0))
    MX, MY = SC + 12, SC + 13
    g(f"v_mov_b32 v{MY}, 0xd028965f\ns_nop 7")
    for i in range(8): g(f"v_cndmask_b32 v{SC+i}, v{MY}, v{SC+i}, s[{S_MK+2*i}:{S_MK+2*i+1}]")
    g(f"v_max3_f32 v{MX}, v{SC}, v{SC+1}, v{SC+2}\nv_max3_f32 v{MX}, v{MX}, v{SC+3}, v{SC+4}\nv_max3_f32 v{MX}, v{MX}, v{SC+5}, v{SC+6}\nv_max_f32 v{MX}, v{MX}, v{SC+7}")
    pstamp(g, opt, 3)
    g(f"""
    L_p3_pub:
    buffer_load_dwordx4 {v(OA,4)}, v{LN16}, {WSD}, s{S_PO} offen sc1
    s_add_u32 s{S_SPIN}, s{S_SPIN}, 1
    s_cmp_gt_u32 s{S_SPIN}, {SPIN_MAX}
    s_cbranch_scc1 L_p3_pub_out
    s_waitcnt vmcnt(0)
    v_max3_u32 v11, v{OA}, v{OA+1}, v{OA+2}
    v_max_u32 v11, v11, v{OA+3}
    v_cmp_eq_u32 vcc, s{S_SENT}, v11
    s_cbranch_vccz L_p3_pub_out
    s_cmp_ge_u32 s{S_SEG}, {NSEG - 2}
    s_cbranch_scc1 L_p3_pub
    s_sleep {opt.get('psleep', 6)}
    s_branch L_p3_pub
    L_p3_pub_out:
    s_waitcnt vmcnt(0)
    ds_write2_b32 v{KMW}, v{OA}, v{OA+1} offset0:0 offset1:4
    ds_write_b64 v{VMW}, {v(OA+2,2)}
    s_waitcnt lgkmcnt(0)
    s_barrier
    """)
    pstamp(g, opt, 4)
    for x in range(4): g(f"ds_read_b128 {v(KM+4*x,4)}, v{KMR} offset:{576*x}")
    for x in range(2): g(f"ds_read_b64 {v(VM+2*x,2)}, v{VMR} offset:{512*x}")
    for x in range(4):
        g(f"s_waitcnt lgkmcnt({5-x})")
        g(mf16(SC + 8, v(KM + 4*x, 4), v(QR_ + 4*x, 4), x == 0))
    g(f"""
    s_lshl_b32 s{S_T0}, s{S_OB}, 1
    s_and_b32 s{S_T1}, s{S_WAVE}, 1
    s_add_u32 s{S_T0}, s{S_T0}, s{S_T1}
    s_lshl_b32 s{S_T0}, s{S_T0}, 5
    s_add_u32 s{S_T0}, s{S_T0}, s{S_TK}
    s_lshl_b32 s{S_T0}, s{S_T0}, 2
    s_and_b32 s{S_T1}, s{S_WAVE}, 2
    s_add_u32 s{S_T0}, s{S_T0}, s{S_T1}
    s_lshl_b32 s{S_T0}, s{S_T0}, 10
    s_add_u32 s{S_T0}, s{S_T0}, {WS_O}
    v_max3_f32 v{MX}, v{MX}, v{SC+8}, v{SC+9}
    """)

    def cross(r, t, op):
        for sw in (16, 32):
            g(f"v_mov_b32 v{t}, v{r}\ns_nop 1\nv_permlane{sw}_swap_b32 v{r}, v{t}\n{op} v{r}, v{r}, v{t}")
    cross(MX, MY, "v_max_f32")
    g(f"v_mul_f32 v{MX}, s{S_SCL}, v{MX}")
    for i in range(10): g(f"v_fma_f32 v{SC+i}, v{SC+i}, s{S_SCL}, -v{MX}")
    for i in range(10): g(f"v_exp_f32 v{SC+i}, v{SC+i}")
    for ri in range(4):
        r = SC + 4*(ri & 1) + 2*(ri >> 1)
        g(f"v_cvt_pk_bf16_f32 v{PB+ri}, v{r}, v{r+1}")
    g(f"v_cvt_pk_bf16_f32 v{PB+4}, v{SC+8}, v{SC+9}\nv_cvt_pk_bf16_f32 v{PB+7}, v{SC+8}, v{SC+9}\ns_waitcnt lgkmcnt(0)")
    for e in range(4):
        g(mf16(OA + 4*e, v(VR_ + 4*e, 4), v(PB, 4), True))
        g(f"v_add_f32 v{SC+2*e}, v{SC+2*e}, v{SC+2*e+1}")
    sums = [f"v_add_f32 v{SC+8}, v{SC+8}, v{SC+9}", f"v_add_f32 v{SC}, v{SC}, v{SC+2}", f"v_add_f32 v{SC+4}, v{SC+4}, v{SC+6}", f"v_add_f32 v{SC}, v{SC}, v{SC+8}"]
    for e in range(4):
        g(f"v_mfma_f32_16x16x16_bf16 {v(OA+4*e,4)}, {v(VM+2*(e >> 1),2)}, {v(PB+4+2*(e & 1),2)}, {v(OA+4*e,4)}")
        g(sums[e])
    g(f"v_add_f32 v{SC}, v{SC}, v{SC+4}")
    cross(SC, SC + 1, "v_add_f32")
    g(f"v_rcp_f32 v{SC}, v{SC}\ns_nop 0")
    for x in range(2):
        for i in range(8): g(f"v_mul_f32 v{OA+8*x+i}, v{OA+8*x+i}, v{SC}")
        for r in range(4): g(f"v_cvt_pk_bf16_f32 v{KM+4*x+r}, v{OA+8*x+r}, v{OA+8*x+4+r}")
        g(f"buffer_store_dwordx4 {v(KM+4*x,4)}, v{LN16}, {WSD}, s{S_T0} offen offset:{x*1024} {st}")
    g(f"""
    s_lshl_b32 s{S_T2}, s{S_SEG}, 7
    s_add_u32 s{S_T2}, s{S_T2}, {WS_OF}
    s_lshl_b32 s{S_T1}, s{S_TK}, 2
    s_add_u32 s{S_T1}, s{S_T1}, s{S_T2}
    s_lshl_b32 s{S_T0}, s{S_OB}, 1
    s_add_u32 s{S_T0}, s{S_T0}, s{S_TH}
    s_lshl_b32 s{S_T0}, s{S_T0}, 2
    s_add_u32 s{S_T0}, s{S_T0}, s{S_WAVE}
    s_lshl_b32 s{S_T0}, s{S_T0}, 15
    s_add_u32 s{S_HO}, s{S_T0}, {WS_O}
    s_waitcnt vmcnt(0)
    s_barrier
    """)
    pstamp(g, opt, 5)
    set_flag(g, "p3_of", S_T1, st)
    spin_flags(g, "p3_ow", OFA, S_T2, 0)
    pstamp(g, opt, 6)
    NB = 16

    def old(k):
        g(f"buffer_load_dwordx4 {v(ST+4*(k % NB),4)}, v{LN16}, {WSD}, s{S_HO} offen offset:{(k & 3)*1024} sc1")
        if k & 3 == 3: g(f"s_add_u32 s{S_HO}, s{S_HO}, 4096")
    for k in range(NB): old(k)
    for k in range(32):
        g(f"s_waitcnt vmcnt({min(NB - 1, 31 - k)})")
        for t in range(2): g(mf16(ACC + 4*t, wreg("o", k, t), v(ST + 4*(k % NB), 4), k == 0))
        if k + NB < 32: old(k + NB)
    pstamp(g, opt, 7)
    reduce(SC)
    pstamp(g, opt, 8)
    g(f"""
    v_pk_mul_f32 {v(SC,2)}, {v(SC,2)}, {v(GV,2)}
    v_cvt_pk_bf16_f32 v{SC}, v{SC}, v{SC+1}
    v_and_b32 v{SC+1}, s{S_C0}, v{SC}
    v_lshlrev_b32 v{SC}, 16, v{SC}
    v_pk_add_f32 {v(SC,2)}, {v(SC,2)}, {v(XV,2)}
    v_cvt_pk_bf16_f32 v{SC}, v{SC}, v{SC+1}
    buffer_store_dword v{SC}, v{XA}, s[{S_OUT}:{S_OUT+3}], s{S_XO} offen
    s_xor_b32 s{S_OB}, s{S_OB}, 1
    s_add_u32 s{S_SEG}, s{S_SEG}, 7
    s_cmp_lt_u32 s{S_SEG}, {NSEG}
    s_barrier
    s_cbranch_scc1 L_p3_seg
    """)
    bad += hazard.check(g.lines[m1:], "p3 loop")
    wstamp(g, opt, 4, True)
    if opt.get("dbgt"):
        g(f"s_cmp_lg_u32 s{S_WAVE}, 0\ns_cbranch_scc1 L_dt2\ns_cmp_lg_u32 s{S_XCC}, 1\ns_cbranch_scc1 L_dt2")
        dbg_time(g, opt, 6)
        g("L_dt2:")
    g("s_waitcnt vmcnt(0)\ns_endpgm")
    return bad


def worker_roles(g, opt):
    m0 = g.mark()
    worker_init(g)
    bad = hazard.check(g.lines[m0:], "worker init")
    g(f"s_cmp_ge_u32 s{S_WI}, 160\ns_cbranch_scc1 L_ffn")
    bad += qkv_role(g, opt)
    g("s_branch L_p3\nL_ffn:")
    bad += ffn_role(g, opt)
    g("L_p3:")
    wstamp(g, opt, 2)
    bad += p3_role(g, opt)
    return bad
```

```python
from asmlib import *
from layout import *

S_WS = 4
S_W = 8
P_X, P_MEM0, P_WQ, P_WK, P_WV, P_WO, P_SEG, P_BX, P_WG, P_WU, P_WD, P_OUT, P_DBG, P_WSP = range(16, 44, 2)
S_XCC, S_TK, S_WAVE = 44, 45, 46
S_SPIN = 3
S_SENT = 12
SENT = 0xffbfffbf
S_T0, S_T1, S_T2, S_T3 = 47, 48, 49, 50
S_STEP, S_H1ST, S_H1ST2, S_H1LD, S_H1LD2, S_TAG, S_H2LD, S_H2LD2, S_H2ST, S_KV, S_PUB, S_FREE0, S_SC, S_FL, S_FREE1 = range(51, 66)
S_HF = 66
S_RDY = 68
S_ONE = 70
S_H2RS, S_F12 = 72, 73
S_KV2, S_VV = 100, 101
IDX, LW, LM, H1ST, H2ST, QW, QR, KR, OW, FLG, TCH = range(1, 12)
VN, PA, VX, ACC, M, POOL, KN, WRES = 12, 20, 24, 40, 64, 96, 144, 152
FV, GM, FAD, FST = VX + 3, VX + 7, VX + 11, VX + 15
A = [ACC + 4 * i for i in range(6)]
LDS_WAVE = 38912
LDS_MISC = 155648
L_KX = LDS_MISC
L_QK = LDS_MISC
L_O = L_QK + 4096
SPIN_MAX = 1 << 13

G_R = [[(m, 0, t), (m, 1, t)] for m, t in (("q", 0), ("v", 1), ("k", 3), ("q", 7), ("k", 7), ("v", 7))]
G_M = G_R[1] + G_R[2] + G_R[3]
G_QK = G_R[4] + G_R[5] + G_R[0]
G_O = [("o", 4, 1), ("o", 5, 0), ("o", 5, 1), ("o", 6, 0), ("o", 6, 1), ("o", 7, 0), ("o", 7, 1)]
LDS_IDX = {k: i for i, k in enumerate(G_M + G_O[:2] + G_O[4:6] + G_R[4] + G_R[0] + G_R[5] + G_O[2:4] + G_O[6:])}
LOC = {}
for k, i in zip(G_O, (4, 5, 1, 2, 3, 0, 4)):
    LOC[k] = ("v", POOL + 8 * i)
for k in G_M + G_QK:
    LOC[k] = ("v", POOL + 32 + 8 * k[1])
_n = 0
for k in [(m, x, t) for m in "qkv" for t in range(8) for x in range(2)] + [("o", x, t) for x in range(8) for t in range(2)]:
    if k in LOC: continue
    LOC[k] = ("a", 8 * _n) if _n < 32 else ("v", WRES + 8 * (_n - 32))
    _n += 1
assert _n == 45


def rng(f, b, n):
    return a(b, n) if f == "a" else v(b, n)


def wop(k):
    return rng(LOC[k][0], LOC[k][1], 8)


def smf(d, aop, k, abid=0):
    b = wop(k) if isinstance(k, tuple) else k
    return f"v_smfmac_f32_16x16x64_bf16 {v(d,4)}, {v(aop,4)}, {b}, {v(IDX)}" + (" abid:1" if abid else "")


def mf(d, x, y, c):
    return f"v_mfma_f32_16x16x32_bf16 {v(d,4)}, {v(x,4)}, {v(y,4)}, " + ("0" if c is None else v(c, 4))


def stage_reads(grp):
    return [f"ds_read_b128 {v(LOC[k][1]+4*hh,4)}, {v(LW)} offset:{LDS_IDX[k]*2048+hh*1024}" for k in grp for hh in range(2)]


def zero(base, n):
    return [f"v_mov_b64 {v(base+2*i,2)}, 0" for i in range(n // 2)]


def set_srd(g, ptr, nbytes):
    g(f"s_mov_b32 s{S_W}, s{ptr}\ns_mov_b32 s{S_W+1}, s{ptr+1}\ns_mov_b32 s{S_W+2}, {nbytes}\ns_mov_b32 s{S_W+3}, 0x20000")


def dbg_time(g, opt, slot, neg=False):
    if not opt.get("dbgt"): return
    g(f"""
    s_memrealtime s[88:89]
    s_waitcnt lgkmcnt(0)
    {'s_not_b32 s88, s88' if neg else ''}
    v_mov_b32 v90, {4*slot}
    v_mov_b32 v91, s88
    s_mov_b64 exec, 1
    global_atomic_umax v90, v91, s[{P_DBG}:{P_DBG+1}]
    s_mov_b64 exec, -1
    """)


def load_weights(g, hooks, nt, order, ahead=0, tfl='', depth=4):
    RA, RO, DQ, DO = 10, 12, 20, 21
    T0, T1, T2, T3 = 56, 57, 58, 59
    g(f"""
    v_and_b32 v{T0}, 63, v0
    v_lshrrev_b32 v{T1}, 4, v{T0}
    v_and_b32 v{T2}, 15, v{T0}
    s_and_b32 s{S_T0}, s{S_WAVE}, 1
    s_lshr_b32 s{S_T1}, s{S_WAVE}, 1
    s_lshl_b32 s{S_T1}, s{S_T1}, 6
    s_add_u32 s{S_T1}, s{S_T1}, s{S_T0}
    s_lshl_b32 s{S_T1}, s{S_T1}, 14
    s_lshl_b32 s{S_T2}, s{S_TK}, 8
    s_add_u32 s{S_T1}, s{S_T1}, s{S_T2}
    s_lshl_b32 s{S_T0}, s{S_T0}, 3
    v_lshlrev_b32 v{T3}, 1, v{T1}
    v_xor_b32 v{T3}, v{T3}, v{T2}
    v_xor_b32 v{DQ}, s{S_T0}, v{T3}
    v_lshlrev_b32 v{DQ}, 4, v{DQ}
    v_lshlrev_b32 v{DO}, 4, v{T3}
    v_lshrrev_b32 v{T2}, 1, v{T1}
    v_and_b32 v{T3}, 1, v{T1}
    v_lshl_add_u32 v{DQ}, v{T2}, 16, v{DQ}
    v_lshl_add_u32 v{DQ}, v{T3}, 17, v{DQ}
    v_add_u32 v{DQ}, s{S_T1}, v{DQ}
    v_lshl_add_u32 v{DO}, v{T2}, 12, v{DO}
    v_lshl_add_u32 v{DO}, v{T3}, 14, v{DO}
    s_lshl_b32 s{S_T1}, s{S_TK}, 17
    s_lshl_b32 s{S_T2}, s{S_WAVE}, 8
    s_add_u32 s{S_T1}, s{S_T1}, s{S_T2}
    v_add_u32 v{DO}, s{S_T1}, v{DO}
    v_xor_b32 v{DO+1}, 0x80, v{DO}
    """)
    g(f"""
    v_bfe_u32 v{T2}, v{T0}, 2, 2
    v_and_b32 v{T3}, 1, v{T1}
    v_lshl_add_u32 v{T3}, v{T3}, 2, v{T2}
    v_lshlrev_b32 v{T3}, 5, v{T3}
    v_lshl_add_u32 v{T3}, v{T2}, 8, v{T3}
    v_and_b32 v{T2}, 3, v{T0}
    v_lshl_add_u32 v{T3}, v{T2}, 3, v{T3}
    s_lshl_b32 s{S_T0}, s{S_WAVE}, 6
    v_xor_b32 v{RA}, s{S_T0}, v{T3}
    s_mov_b32 s{S_T0}, {LDS_WAVE}
    v_mul_lo_u32 v{T2}, s{S_T0}, v{T1}
    v_add_u32 v{RA}, v{RA}, v{T2}
    v_xor_b32 v{RA+1}, 32, v{RA}
    s_mul_i32 s{S_T3}, s{S_WAVE}, {LDS_WAVE}
    v_lshl_add_u32 v{RO}, v{T1}, 10, v{T3}
    v_add_u32 v{RO}, s{S_T3}, v{RO}
    """)
    for tau in range(1, 8):
        g(f"v_xor_b32 v{RO+tau}, {32*tau}, v{RO}")
    TA_, TD_, S_W2 = 23, 9, 92
    if ahead:
        g(f"""
        v_bfe_u32 v{T2}, v{T0}, 4, 1
        v_lshlrev_b32 v{TA_}, 16, v{T2}
        v_bfe_u32 v{T2}, v{T0}, 3, 1
        v_lshl_add_u32 v{TA_}, v{T2}, 17, v{TA_}
        v_lshrrev_b32 v{T2}, 5, v{T0}
        v_lshl_add_u32 v{TA_}, v{T2}, 15, v{TA_}
        v_and_b32 v{T2}, 7, v{T0}
        v_lshl_add_u32 v{TA_}, v{T2}, 7, v{TA_}
        s_lshr_b32 s{S_T0}, s{S_WAVE}, 1
        s_lshl_b32 s{S_T0}, s{S_T0}, 20
        s_and_b32 s{S_T1}, s{S_WAVE}, 1
        s_lshl_b32 s{S_T1}, s{S_T1}, 14
        s_add_u32 s{S_T0}, s{S_T0}, s{S_T1}
        s_and_b32 s{S_T1}, s{S_TK}, 2
        s_lshl_b32 s{S_T1}, s{S_T1}, 20
        s_add_u32 s{S_T0}, s{S_T0}, s{S_T1}
        s_and_b32 s{S_T1}, s{S_TK}, 1
        s_lshl_b32 s{S_T1}, s{S_T1}, 13
        s_add_u32 s{S_T0}, s{S_T0}, s{S_T1}
        s_and_b32 s{S_T1}, s{S_TK}, 28
        s_lshl_b32 s{S_T1}, s{S_T1}, 8
        s_add_u32 s{S_T0}, s{S_T0}, s{S_T1}
        v_add_u32 v{TA_}, s{S_T0}, v{TA_}
        """)
    ops = []
    stages = [(m, t) for m in order for t in range(8)]

    def touch(j):
        if not ahead or j >= len(stages) or stages[j][0] == "o" or stages[j][1] & 1: return
        m, t = stages[j]
        if t == 0:
            p = {"q": P_WQ, "k": P_WK, "v": P_WV}[m]
            g(f"s_mov_b32 s{S_W2}, s{p}\ns_mov_b32 s{S_W2+1}, s{p+1}\ns_mov_b32 s{S_W2+2}, {4*MB}\ns_mov_b32 s{S_W2+3}, 0x20000")
        g(f"s_mov_b32 s{S_T0}, {(64 * (t >> 2) + 32 * ((t >> 1) & 1)) * 8192}\nbuffer_load_dword v{TD_}, v{TA_}, s[{S_W2}:{S_W2+3}], s{S_T0} offen {tfl}")
        ops.append(-1)
    park = {}
    for i, k in enumerate(G_QK): park[k] = ("v", POOL + 8 * i)
    for i, k in enumerate(G_O): park[k] = ("v", M + 8 * i) if i < 4 else ("v", VX + 8 * (i - 4)) if i < 6 else ("v", KN)
    for k in G_M: park[k] = ("v", ACC + 8 * k[1])

    assert stages[-1] == G_R[5][0][::2] and depth <= 3

    def unpark(idx):
        for k in park:
            if LDS_IDX[k] in idx:
                for hh in range(2): g(f"ds_write_b128 v{LW}, {v(park[k][1]+4*hh,4)} offset:{LDS_IDX[k]*2048+hh*1024}")

    def issue(i):
        m, t = stages[i]
        if t == 0:
            set_srd(g, {"q": P_WQ, "k": P_WK, "v": P_WV, "o": P_WO}[m], 4 * MB)
        for x in range(4):
            if m == "o":
                row = 64 * (t >> 2) + 32 * ((t >> 1) & 1) + (t & 1) + 8 * (x >> 1) + 2 * (x & 1)
                so, vo = row * 1024, DO + (x & 1)
            else:
                so, vo = (256 * (x >> 1) + (x & 1) + 64 * (t >> 2) + 32 * ((t >> 1) & 1) + 4 * (t & 1)) * 8192, DQ
            g(f"s_add_u32 m0, s{S_T3}, {16384 + (i % 4) * 4096 + x * 1024}")
            g(f"s_mov_b32 s{S_T0}, {so}")
            g(f"buffer_load_dwordx4 v{vo}, s[{S_W}:{S_W+3}], s{S_T0} offen {'nt' if m in nt else ''} lds")
            ops.append(i)
        touch(i + ahead)

    for i in range(depth):
        issue(i)
    if -1 in hooks:
        hooks[-1]()
        ops.extend([-1] * 7)
    for i, (m, t) in enumerate(stages):
        g(f"s_waitcnt vmcnt({ops[::-1].index(i)}) lgkmcnt(0)\ns_barrier")
        if i and stages[i - 1] == ("o", 7): unpark((6, 7, 16, 17, 18))
        if i > len(stages) - 4: unpark((8 + 2 * ((i - 1) % 4), 9 + 2 * ((i - 1) % 4)))
        if i in hooks: hooks[i]()
        if i + depth < len(stages):
            issue(i + depth)
        base = 16384 + (i % 4) * 4096
        for x in range(8):
            if m == "o":
                k, rho, ad, off = ("o", x, t >> 2), t & 3, RO + x, base
            else:
                k, rho, ad, off = (m, x >> 2, t), x & 3, RA + (x >> 2), base + (x & 3) * 1024
            f, b = park.get(k, LOC[k])
            g(f"ds_read_b64_tr_b16 {rng(f, b + 2*rho, 2)}, v{ad} offset:{off}")
        if (m, 0, t) in G_M:
            g("s_waitcnt lgkmcnt(0)")
            for sg in range(2):
                for hh in range(2):
                    g(f"ds_write_b128 v{LW}, {v(ACC+8*sg+4*hh,4)} offset:{LDS_IDX[(m,sg,t)]*2048+hh*1024}")
    g("s_waitcnt lgkmcnt(0)\ns_barrier")
    unpark((14, 15))


def setup_early(g, st):
    T0, T1, T2, T3 = 56, 57, 58, 59
    g(f"""
    v_and_b32 v{T0}, 63, v0
    v_lshlrev_b32 v{LM}, 4, v{T0}
    s_mul_i32 s{S_T0}, s{S_WAVE}, {LDS_WAVE}
    v_add_u32 v{LW}, s{S_T0}, v{LM}
    v_add_u32 v{LM}, {LDS_MISC}, v{LM}
    v_lshrrev_b32 v{T1}, 4, v{T0}
    v_and_b32 v{T2}, 15, v{T0}
    s_lshl_b32 s{S_T0}, s{S_WAVE}, 3
    v_lshrrev_b32 v{T3}, 3, v{T0}
    v_add_u32 v{T3}, s{S_T0}, v{T3}
    v_lshlrev_b32 v{H1ST}, 13, v{T3}
    v_lshl_add_u32 v{T3}, v{T3}, 1, s{S_TK}
    v_and_b32 v{T3}, 31, v{T3}
    v_lshl_add_u32 v{H1ST}, v{T3}, 7, v{H1ST}
    v_and_b32 v{T3}, 7, v{T0}
    v_lshl_add_u32 v{H1ST}, v{T3}, 3, v{H1ST}
    v_lshrrev_b32 v{T3}, 3, v{T2}
    v_lshlrev_b32 v{H2ST}, 29, v{T3}
    v_bfe_u32 v{T3}, v{T2}, 1, 1
    v_lshl_add_u32 v{H2ST}, v{T3}, 11, v{H2ST}
    v_bfe_u32 v{T3}, v{T2}, 2, 1
    v_lshl_add_u32 v{H2ST}, v{T3}, 7, v{H2ST}
    v_and_b32 v{T3}, 1, v{T2}
    v_lshl_add_u32 v{H2ST}, v{T3}, 3, v{H2ST}
    v_and_b32 v{T3}, 1, v{T1}
    v_lshl_add_u32 v{H2ST}, v{T3}, 4, v{H2ST}
    v_lshrrev_b32 v{T3}, 1, v{T1}
    v_lshl_add_u32 v{H2ST}, v{T3}, 30, v{H2ST}
    s_and_b32 s{S_T0}, s{S_TK}, 3
    s_lshl_b32 s{S_T0}, s{S_T0}, 5
    s_lshr_b32 s{S_T1}, s{S_TK}, 2
    s_lshl_b32 s{S_T1}, s{S_T1}, 8
    s_add_u32 s{S_T0}, s{S_T0}, s{S_T1}
    s_and_b32 s{S_T2}, s{S_WAVE}, 1
    s_lshl_b32 s{S_T2}, s{S_T2}, 12
    s_add_u32 s{S_T0}, s{S_T0}, s{S_T2}
    v_add_u32 v{H2ST}, s{S_T0}, v{H2ST}
    """)
    g(f"""
    s_mov_b32 s{S_STEP}, 0
    s_lshl_b32 s{S_T0}, s{S_TK}, 13
    s_add_u32 s{S_H1LD}, s{S_T0}, {WS_H1 - LDS_MISC}
    s_mov_b32 s{S_H1ST}, {WS_H1}
    s_mov_b32 s{S_H1ST2}, {WS_H1 + 4096}
    s_mov_b32 s{S_H2LD}, {WS_H2}
    s_mov_b32 s{S_H2LD2}, {WS_H2 + 4096}
    s_lshl_b32 s{S_T0}, s{S_TK}, 14
    s_add_u32 s{S_KV}, s{S_T0}, {WS_KV - LDS_MISC}
    s_lshl_b32 s{S_T0}, s{S_TK}, 2
    s_add_u32 s{S_T0}, s{S_T0}, s{S_WAVE}
    s_lshl_b32 s{S_T0}, s{S_T0}, 10
    s_add_u32 s{S_F12}, s{S_T0}, {WS_PUB - LDS_MISC}
    s_mov_b32 s{S_PUB}, 0x40000000
    s_lshl_b32 s{S_T0}, s{S_TK}, 8
    s_add_u32 s{S_FL}, s{S_T0}, {WS_FLAGS}
    s_mov_b32 s{S_HF}, 0xcccccccc
    s_mov_b32 s{S_HF+1}, 0xcccccccc
    s_mov_b32 s{S_SC}, 0x3e0293ee
    s_mov_b32 s{S_SC-1}, 0x3e0293ee
    v_mov_b64 v[60:61], -1
    v_mov_b64 v[62:63], -1
    s_lshl_b32 s{S_T1}, s{S_WAVE}, 11
    s_add_u32 s{S_T1}, s{S_T1}, s{S_H1LD}
    s_add_u32 s{S_H1LD}, s{S_H1LD}, s{S_T2}
    """)
    for x in range(2):
        g(f"buffer_store_dwordx4 v[60:63], v{LM}, s[{S_WS}:{S_WS+3}], s{S_T1} offen offset:{x*1024} {st}")
    g(f"""
    s_mov_b32 s{S_H2RS}, {WS_H2 + 8192}
    v_mov_b32 v51, 0
    s_mov_b32 s{S_FREE1}, {WS_H2 + 16384}
    s_lshl_b32 s{S_H1LD2}, s{S_TK}, 2
    s_add_u32 s{S_H1LD2}, s{S_H1LD2}, s{S_FREE1}
    buffer_store_dword v51, v51, s[{S_WS}:{S_WS+3}], s{S_H1LD2} offen {st}
    """)
    set_srd(g, P_MEM0, 8192)
    g(f"""
    s_lshr_b32 s{S_T0}, s{S_TK}, 3
    s_lshl_b32 s{S_T0}, s{S_T0}, 8
    s_and_b32 s{S_T1}, s{S_TK}, 1
    s_lshl_b32 s{S_T1}, s{S_T1}, 4
    s_add_u32 s{S_T0}, s{S_T0}, s{S_T1}
    s_lshr_b32 s{S_T1}, s{S_T2}, 5
    s_add_u32 s{S_T0}, s{S_T0}, s{S_T1}
    s_and_b32 s{S_T1}, s{S_TK}, 6
    s_lshl_b32 s{S_T1}, s{S_T1}, 10
    s_add_u32 s{S_T0}, s{S_T0}, s{S_T1}
    v_and_b32 v{T3}, 1, v{T1}
    v_lshlrev_b32 v{T3}, 10, v{T3}
    v_and_b32 v52, 3, v{T2}
    v_lshl_add_u32 v{T3}, v52, 2, v{T3}
    v_bfe_u32 v52, v{T2}, 2, 1
    v_lshl_add_u32 v{T3}, v52, 6, v{T3}
    buffer_load_ushort v52, v{T3}, s[{S_W}:{S_W+3}], s{S_T0} offen
    buffer_load_ushort v53, v{T3}, s[{S_W}:{S_W+3}], s{S_T0} offen offset:32
    buffer_load_ushort v54, v{T3}, s[{S_W}:{S_W+3}], s{S_T0} offen offset:2
    buffer_load_ushort v55, v{T3}, s[{S_W}:{S_W+3}], s{S_T0} offen offset:34
    """)


def store_mem0(g, st):
    g(f"""
    s_mov_b32 s{S_T0}, {WS_H2}
    v_lshl_or_b32 v52, v53, 16, v52
    v_lshl_or_b32 v53, v55, 16, v54
    v_cmp_ne_u32 vcc, s{S_SENT}, v52
    s_nop 1
    v_cndmask_b32 v52, -1, v52, vcc
    v_cmp_ne_u32 vcc, s{S_SENT}, v53
    s_nop 1
    v_cndmask_b32 v53, -1, v53, vcc
    buffer_store_dwordx2 v[52:53], v{H2ST}, s[{S_WS}:{S_WS+3}], s{S_T0} offen {st}
    """)


def setup_late(g):
    T0, T1, T2, T3 = 56, 57, 58, 59
    g(f"""
    v_and_b32 v{T0}, 63, v0
    v_lshrrev_b32 v{T1}, 4, v{T0}
    v_and_b32 v{T2}, 15, v{T0}
    v_mov_b32 v{IDX}, 0x44444444
    v_mov_b32 v{T3}, 0x4e1eeeee
    v_cndmask_b32 v{IDX}, v{IDX}, v{T3}, s[{S_HF}:{S_HF+1}]
    s_lshl_b32 s{S_T0}, s{S_WAVE}, 10
    s_add_u32 s{S_T0}, s{S_T0}, {L_QK}
    v_lshrrev_b32 v{T3}, 2, v{T2}
    v_lshlrev_b32 v{QW}, 7, v{T3}
    v_lshl_add_u32 v{QW}, v{T1}, 5, v{QW}
    v_and_b32 v{T3}, 1, v{T3}
    v_lshlrev_b32 v{T3}, 6, v{T3}
    v_xor_b32 v{QW}, v{QW}, v{T3}
    v_and_b32 v{T3}, 3, v{T2}
    v_lshl_add_u32 v{QW}, v{T3}, 2, v{QW}
    v_add_u32 v{QW}, s{S_T0}, v{QW}
    v_lshlrev_b32 v{QR}, 7, v{T1}
    v_add_u32 v{QR}, {L_QK}, v{QR}
    v_and_b32 v{T3}, 1, v{T2}
    v_lshl_add_u32 v{QR}, v{T3}, 4, v{QR}
    v_add_u32 v{KR}, 512, v{QR}
    v_lshrrev_b32 v{T3}, 2, v{T2}
    v_lshl_add_u32 v{QR}, v{T3}, 5, v{QR}
    v_lshrrev_b32 v{T3}, 3, v{T2}
    v_lshl_add_u32 v{KR}, v{T3}, 5, v{KR}
    v_lshrrev_b32 v{T3}, 1, v{T2}
    v_xor_b32 v{T3}, v{T3}, v{T2}
    v_and_b32 v{T3}, 2, v{T3}
    v_lshl_add_u32 v{KR}, v{T3}, 5, v{KR}
    v_and_b32 v{T3}, 1, v{T1}
    v_lshlrev_b32 v{T3}, 6, v{T3}
    v_xor_b32 v{QR}, v{QR}, v{T3}
    v_xor_b32 v{KR}, v{KR}, v{T3}
    s_lshl_b32 s{S_T0}, s{S_WAVE}, 9
    s_add_u32 s{S_T0}, s{S_T0}, {L_O}
    v_lshrrev_b32 v{T3}, 3, v{T2}
    v_lshlrev_b32 v{OW}, 8, v{T3}
    v_lshl_add_u32 v{OW}, v{T1}, 6, v{OW}
    v_bfe_u32 v{T3}, v{T2}, 2, 1
    v_lshl_add_u32 v{OW}, v{T3}, 5, v{OW}
    v_and_b32 v{T3}, 3, v{T2}
    v_lshl_add_u32 v{OW}, v{T3}, 2, v{OW}
    v_add_u32 v{OW}, s{S_T0}, v{OW}
    """)
    g(f"s_mov_b32 s{S_ONE}, 0x3f803f80\ns_mov_b32 s{S_ONE+1}, 0x3f803f80")
    for x in zero(PA, 4) + zero(VX, 16) + zero(ACC, 16): g(x)
    g(f"""
    v_lshrrev_b32 v{T3}, 3, v{T0}
    v_lshlrev_b32 v{GM}, 8, v{T3}
    v_and_b32 v{T3}, 7, v{T0}
    v_lshl_add_u32 v{GM}, v{T3}, 4, v{GM}
    v_and_b32 v{FAD}, 31, v0
    v_lshlrev_b32 v{FAD}, 2, v{FAD}
    v_min_u32 v{FST}, 1, v{T0}
    v_lshlrev_b32 v{FST}, 30, v{FST}
    """)


def kv_addr(w):
    return [f"s_add_u32 s{S_KV2}, s{S_KV}, {w*2048}", f"s_add_u32 s{S_VV}, s{S_KV}, {8192 + w*2048}"]


def k_loads():
    return [f"buffer_load_dwordx4 {v(KN+4*x,4)}, v{LM}, s[{S_WS}:{S_WS+3}], s{S_KV2} offen offset:{x*1024} ;@kv" for x in range(2)]


def v_loads():
    return [f"buffer_load_dwordx4 {v(VN+4*sg,4)}, v{LM}, s[{S_WS}:{S_WS+3}], s{S_VV} offen offset:{sg*1024} ;@kv" for sg in range(2)]


def mzero(base, n):
    op = {4: "4x4x1_16b", 16: "16x16x1_4b"}[n]
    return f"v_mfma_f32_{op}_f32 {v(base,n)}, v{PA+3}, v{PA+3}, 0"


def v_moves(src_):
    return [f"v_mov_b64 {v(VX+4*i,2)}, {v(src_+2*i,2)}" for i in range(4)]


def wait_flag(g, tag, seg_sgpr):
    g(f"""
    L_{tag}:
    buffer_load_dword v{FLG}, v{TCH}, s[{S_WS}:{S_WS+3}], s{S_FL} offen sc1
    s_add_u32 s{S_SPIN}, s{S_SPIN}, 1
    s_cmp_gt_u32 s{S_SPIN}, {SPIN_MAX}
    s_cbranch_scc1 L_{tag}_out
    s_waitcnt vmcnt(0)
    v_cmp_eq_u32 s[{S_RDY}:{S_RDY+1}], 1, v{FLG}
    s_nop 4
    s_bitcmp1_b64 s[{S_RDY}:{S_RDY+1}], s{seg_sgpr}
    s_cbranch_scc0 L_{tag}
    L_{tag}_out:
    s_waitcnt vmcnt(0)
    """)


def wave_loop(g, w, st, tag, opt):
    stamps = opt.get("stamps")
    WSD = f"s[{S_WS}:{S_WS+3}]"
    nst = [0]

    def stamp():
        if not stamps: return []
        i = nst[0]; nst[0] += 1
        if isinstance(stamps, list) and i not in stamps: return []
        if opt.get("rt") and w + 1 != opt["rt"]: return []
        return [f"s_mem{'real' if opt.get('rt') and not opt.get('cyc') else ''}time s[{74+2*i}:{75+2*i}]"]

    L = lambda x: f"L_{tag}{w}_{x}"
    T0 = 56
    KR_, OW_, SEL = (FAD, FST, KR) if w >= 2 else (KR, OW, None)
    kpos = lambda c: ((6, 4, 0, 2)[c >> 1] + (c & 1)) * 1024
    kxr = [f"ds_read_b128 {v(POOL+4*c,4)}, v{LM} offset:{kpos(c)}" for c in range(8)]
    if w == 0:
        g(f"v_lshlrev_b32 v{TCH}, 2, v0\nv_mov_b32 v{FV}, 1")
    if w == 1 and opt.get("wb"):
        g(f"s_cmp_lt_u32 s{S_TK}, {opt['wb'][1]}\ns_cselect_b32 s{S_H1LD}, {opt['wb'][0]}, 64")
    if w >= 2:
        g(f"""
        v_and_b32 v{T0}, 15, v0
        v_and_b32 v{T0+1}, 1, v0
        v_mov_b32 v{KR_}, v{KR}
        v_mov_b32 v{OW_}, v{OW}
        v_lshlrev_b32 v{T0+1}, 4, v{T0+1}
        v_mov_b32 v{T0+2}, 0x3f80
        v_lshlrev_b32 v{T0+1}, v{T0+1}, v{T0+2}
        v_lshrrev_b32 v{T0}, 1, v{T0}
        """)
        for i in range(4):
            g(f"v_cmp_eq_u32 vcc, {(0, 2, 1, 3)[i]}, v{T0}\ns_nop 1\nv_cndmask_b32 v{SEL+i}, 0, v{T0+1}, vcc")
    for x in zero(ACC + 16, 8): g(x)
    kwr = [f"ds_write_b128 v{LM}, {v(KN+4*x,4)} offset:{kpos(2*w + x)} ;@kxw" for x in range(2)]
    nxt = [f"s_add_u32 s{S_KV}, s{S_KV}, {512*KB}"] + kv_addr(w)
    for x in ["s_waitcnt vmcnt(0)"] + kwr + v_moves(VN) + ["s_waitcnt lgkmcnt(0)", "s_barrier"] + kxr + stage_reads(G_R[(0, 1, 2, 2)[opt.get("r0", [0, 1, 0, 1])[w]]]) + nxt + ["s_waitcnt lgkmcnt(0)"]:
        g(x.split(";@")[0])
    if w == 0: dbg_time(g, opt, 4)
    if opt.get("count"):
        g("s_memtime s[92:93]\ns_memrealtime s[94:95]\ns_waitcnt lgkmcnt(0)\ns_mov_b32 s15, s94")
    body = []
    E = body.extend
    nops = lambda k: [f"s_nop {x}" for x in opt.get(k, [])]
    red = w >= 2
    MB_ = lambda t: L_O + (t - 4) * 1024
    mo = lambda t: (t & 1) * 2048 + ((t >> 1) & 1) * 128
    mld = lambda t: f"buffer_load_dwordx4 {v(M+4*t,4)}, v{GM}, {WSD}, s{S_H2LD if t < 4 else S_H2LD2} offen offset:{mo(t)} sc1"
    dma = f"buffer_load_dwordx4 v{GM}, {WSD}, s{S_H2LD2} offen offset:{mo(w)} sc1 lds ;@dma"
    SP, CK = M + 16 + 4 * w, PA + 2
    smp = mld(4 + w) + " ;@smp"
    R = A[5]
    pc = opt.get("pace", 15)
    pace = [f"s_nop {min(pc, 15)}"] + ([f"s_nop {pc - 16}"] if pc > 15 else [])
    cl = [mld(t) + f" ;@c{t}" for t in range(4)]
    r0 = opt.get("r0", [0, 1, 0, 1])[w]
    PRE = (0, 1, 2, 2)
    gap = lambda c: [f"s_nop {min(c, 15)}"] + ([f"s_nop {c - 16}"] if c > 15 else [])
    gather = [cl[r0]] + pace + [cl[(r0 + 1) & 3]] + gap(opt.get("pace2", pc)) + [cl[(r0 + 2) & 3]] + gap(opt.get("pace3", pc)) + [cl[(r0 + 3) & 3]]
    nt = opt.get("nt", "sc1")
    vl = v_loads()
    kvl = [x.replace(" ;@", f" {nt} ;@") for x in k_loads() + vl]
    cv = lambda d, q: f"v_cvt_pk_bf16_f32 v{d}, v{q}, v{q+1}"
    h1l = lambda HB: [f"buffer_load_dwordx4 {v(HB+4*t,4)}, v{LM}, {WSD}, s{S_H1LD} offen offset:{t*1024} sc1" for t in range(4)]
    two = opt.get("two", [1, 1])[w & 1]

    def reduce(HB, name, younger=None):
        out = [f"{L(name)}:"]
        for t in range(4):
            out += [f"s_waitcnt vmcnt({3 - t + (4*two if younger is None else younger)})", mf(R, SEL or 0, HB + 4*t, None if t == 0 else R)]
            out += [f"v_xor_b32 v{PA}, s{S_TAG}, v{HB}" if t == 0 else f"v_bitop3_b32 v{PA}, v{PA}, v{HB+4*t}, s{S_TAG} bitop3:0xf6",
                    f"v_bitop3_b32 v{PA}, v{PA}, v{HB+4*t+2}, s{S_TAG} bitop3:0xf6"]
        if opt.get("eb"):
            fold = [f"v_add_f32_dpp v{HB+r}, v{R+r}, v{R+r} row_ror:8 row_mask:0xf bank_mask:0xf" for r in range(4)] + [cv(HB + 4, HB), cv(HB + 5, HB + 2)]
            out = out[:-3] + out[-2:] + [f"v_and_b32 v{PA}, 1, v{PA}", out[-3]] if opt["eb"] == 2 else out + [f"v_and_b32 v{PA}, 1, v{PA}"]
            k_ = 0 if opt["eb"] == 2 else 3
            return out + ([f"v_cmp_eq_u32 vcc, 1, v{PA}", "s_nop 4" if opt["eb"] == 2 else "s_nop 2"] + fold[:k_] +
                          [f"s_cbranch_vccnz {L(name + 'no')}", f"{L(name + 'ok')}:"] + fold[k_:] + [h2st(HB)])
        if opt.get("cp"):
            fold = [f"v_add_f32_dpp v{HB+r}, v{R+r}, v{R+r} row_ror:8 row_mask:0xf bank_mask:0xf" for r in range(4)] + [cv(HB + 4, HB), cv(HB + 5, HB + 2)]
            k_ = 2 if w == 3 else 6
            return out + ([f"v_and_b32 v{PA}, 1, v{PA}", f"v_cmp_eq_u32 vcc, 1, v{PA}", "s_nop 2"] + fold[:k_] +
                          [f"s_cbranch_vccnz {L(name + 'no')}", f"{L(name + 'ok')}:", "s_barrier"] + fold[k_:] + [h2st(HB)])
        return out + ([f"v_and_b32 v{PA}, 1, v{PA}", f"v_cmp_eq_u32 vcc, 1, v{PA}", "s_nop 2"] +
                      [f"v_add_f32_dpp v{HB+r}, v{R+r}, v{R+r} row_ror:8 row_mask:0xf bank_mask:0xf" for r in range(4)] +
                      [cv(HB + 4, HB), cv(HB + 5, HB + 2), f"s_cbranch_vccnz {L(name + 'no')}", f"{L(name + 'ok')}:"] +
                      ([h2st(HB)] if not late_st else [] if HB != M else [h2st(HB), f"s_mov_b32 s{S_H2ST}, 0x40000000"]))
    clean = [f"v_mov_b64 {v(PA,2)}, s[{S_SENT}:{S_SENT+1}]", mzero(R, 4)]
    h2rs = f"buffer_store_dwordx2 {v(PA,2)}, v{H2ST}, {WSD}, s{S_H2RS} offen {st} ;@h2rs"
    E([f"{L('top')}:", "s_barrier"] + (stamp() if opt.get("rt") else []) + [f"{L('again')}:"])
    gather = [cl[r0], f"s_mov_b32 m0, {MB_(4 + w) - mo(w)}"] + gather[1:]
    dp = opt.get("dtop", 0)
    if dp:
        i = gather.index(cl[(r0 + dp - 1) & 3]) + (2 if dp == 1 else 1)
        gather[i:i] = nops("p5") + [dma]
    late_st = opt.get("ls", 0) and w == 3
    h2st = lambda HB: f"buffer_store_dwordx2 {v(HB+4,2)}, v{H2ST}, {WSD}, s{S_H2ST} offen {st}"
    if late_st:
        i = gather.index(pace[0])
        E(gather[:i] + nops("d6") + [h2st(M + 16), f"s_mov_b32 s{S_H2ST}, 0x40000000"] + clean + [f"s_nop {max(9 - sum(x + 1 for x in opt.get('d6', [])), 0)}"] + gather[i+1:])
        g(f"s_mov_b32 s{S_H2ST}, 0x40000000")
    elif red:
        i = gather.index(pace[0])
        E(gather[:i] + clean + [f"s_nop {max(min(pc, 15) - 3, 0)}"] + gather[i+1:])
    else:
        E(gather)
    pubv = f"buffer_store_dwordx4 {v(VN+4,4)}, v{LM}, {WSD}, s{S_PUB} offen {opt.get('pfl', 'sc1')}"
    dump = []
    DT = M + 18
    if stamps:
        dump.extend(["s_waitcnt lgkmcnt(0)"] + [f"v_writelane_b32 v{DT}, s{74+2*i}, {i}" for i in range(9)])
        dump.extend([f"v_subrev_u32 v{DT+1}, {LDS_MISC}, v{LM}", f"v_lshrrev_b32 v{DT+1}, 2, v{DT+1}",
           f"s_lshl_b32 s{S_T0}, s{S_TK}, 2", f"s_add_u32 s{S_T0}, s{S_T0}, {w}", f"s_lshl_b32 s{S_T0}, s{S_T0}, 6", f"s_add_u32 s{S_T0}, s{S_T0}, s{S_STEP}",
           f"s_lshl_b32 s{S_T0}, s{S_T0}, 6", f"s_add_u32 s{S_T0}, s{S_T0}, {WS_STAMP}", "s_mov_b64 exec, 0xffff",
           f"buffer_store_dword v{DT}, v{DT+1}, {WSD}, s{S_T0} offen", "s_mov_b64 exec, -1"])
    if red and opt.get('rt', w + 1) == w + 1: E(dump)
    top_part = list(body)
    c0stamp = stamp()
    order = [(m, sg, t) for t in range(4) for m in "qkv" for sg in range(2)]
    order += [(m, sg, t) for m in "qkv" for t in range(4, 8) for sg in range(2)]
    acc = lambda k: A["qkv".index(k[0]) * 2 + k[1]]
    mm = [smf(acc(k), M + 4 * k[2], k) for k in order]
    rs = [tagged(stage_reads(x), f"r{i}") for i, x in enumerate(G_R)]
    mr = [f"ds_read_b128 {v(M+4*t,4)}, v{LM} offset:{MB_(t) - LDS_MISC} ;@m{t}" for t in range(4, 8)]
    add = lambda q, b: f"v_add_f32 v{q+b}, v{q+b}, v{q+2+b}"
    qr = [f"ds_read_b128 {v(M+4*x,4)}, v{QR} offset:{1024*x} ;@qr{x}" for x in range(4)]
    kr = [f"ds_read_b128 {v(M+16+4*x,4)}, v{KR_} offset:{1024*x} ;@kr{x}" for x in range(4)]
    ost = stage_reads(G_O)
    qfin = [add(A[0], 0), add(A[0], 1), add(A[1], 0), add(A[1], 1),
            f"v_cvt_pk_bf16_f32 v{A[0]+2}, v{A[0]}, v{A[1]}", f"v_cvt_pk_bf16_f32 v{A[0]+3}, v{A[0]+1}, v{A[1]+1}",
            f"ds_write_b32 v{QW}, v{A[0]+2} ;@qw", f"ds_write_b32 v{QW}, v{A[0]+3} offset:16 ;@qw"]
    kfin = [add(A[2], 0), add(A[2], 1), add(A[3], 0), add(A[3], 1),
            f"v_cvt_pk_bf16_f32 v{A[3]}, v{A[2]}, v{A[3]}", f"v_cvt_pk_bf16_f32 v{A[3]+1}, v{A[2]+1}, v{A[3]+1}",
            f"ds_write_b32 v{QW}, v{A[3]} offset:512 ;@kw", f"ds_write_b32 v{QW}, v{A[3]+1} offset:528 ;@kw"]
    b0stamp = stamp()

    b0 = opt.get("b0", 18)
    cg = opt.get("cg", 17)

    nd = opt.get("nd", 0)
    pp = opt.get("pp", 0)
    pg2 = opt.get("pg2", [22, 24, 27, 29, 31, 34])
    PR2 = [FLG, TCH, H2ST, 0, FV, FST]

    def common():
        F = Gaps()
        if red: F.put("x", min(4 + w, opt.get("kb", 10) or 9), h2rs)
        if opt.get("kb", 10): F.put("x", opt.get("kb", 10), "s_barrier")
        po = opt.get("po", 0)
        seq = list(kvl)
        if not pp: seq.insert(po, pubv)
        free = [i for i in range(opt.get("k0", 11), 32) if i not in (cg, cg + 1, b0)]
        kgs = [free[min(opt.get("ks", 4) * j + w * opt.get("ks", 4) // 4, len(free) - 1 - (3 - w))] for j in range(5)]
        for j, x in enumerate(seq):
            if not ((x == pubv and opt.get("nopub")) or (x in kvl[:2] and opt.get("nok"))): F.put("x", kgs[j], x)
        if w == 0: F.put("d", 28, f"buffer_load_dword v{FLG}, v{TCH}, {WSD}, s{S_FL} offen sc1 ;@kv")
        if opt.get("al") == 2:
            if w == 0: F.put("x", opt.get("kb", 10), f"buffer_store_dword v{FV}, v{FST}, {WSD}, s{S_H1LD2} offen {st}")
            if w == 1:
                for j, i in enumerate(pg2): F.put("x" if i < 32 else "s", i, f"buffer_load_dword v{PR2[j]}, v{FAD}, {WSD}, s{S_FREE1} offen sc1 ;@p{j}")
        if opt.get("wb") and w == 1:
            F.put("s", 24, f"s_cmp_eq_u32 s{S_STEP}, s{S_H1LD}"); F.put("s", 26, f"s_cbranch_scc1 {L('wb')}", f"{L('wbok')}:")
        F.put("s", 34, f"s_mov_b32 s{S_PUB}, s{S_F12}"); F.put("s", 35, f"s_add_u32 s{S_F12}, s{S_F12}, {128*KB}")
        F.put("s", b0, "@wait vm=dma" if w >= nd else "@wait vm=c4", "s_barrier", *b0stamp)
        mg, r3g = {15: ((16, 17, 18, 19), (21, 22, 23, 24)), 16: ((17, 18, 19, 20), (21, 22, 23, 24)), 17: ((18, 19, 20, 22), (21, 23, 24, 25)), 18: ((19, 20, 22, 24), (21, 23, 25, 26)), 19: ((20, 21, 23, 25), (22, 24, 26, 27)), 20: ((21, 22, 24, 25), (23, 23, 26, 27))}.get(b0, (0, 0))
        if nd == 1: mg, r3g = {19: ((20, 22, 24), (21, 23, 25, 26)), 20: ((21, 23, 24), (22, 25, 26, 27)), 21: ((22, 23, 25), (20, 24, 26, 27))}[b0]
        if nd == 2: mg, r3g = {21: ((22, 24), (20, 23, 25, 26)), 22: ((23, 24), (20, 21, 25, 26)), 23: ((24, 25), (20, 21, 22, 26))}[b0]
        for j, i in enumerate(mg): F.put("d", i, mr[j + nd])
        for i, t in ((23, 4), (25, 5), (27, 6), (29, 7)):
            if t < 4 + nd: F.put("x" if i == b0 else "s", i, f"@wait vm=c{t}")
            elif nd and t == 7: F.put("s", i, "@wait lg=" + ("m7" if mg[-1] > r3g[1] else "r3x"))
            elif b0 >= 18 or t < 7: F.put("s", i, f"@wait lg=m{t}")
        for r_, gs, u in ((3, r3g, 30 if b0 >= 18 else 29), (4, (30, 31, 32, 33), 37), (5, (38, 39, 40, 42), 46)):
            for j in range(4): F.put("d", gs[j], rs[r_][j])
            F.put("s", u, f"@wait lg=r{r_}")
        for j, i in enumerate((32, 32, 33, 34, 35, 36)): F.put("v", i, qfin[j])
        for j, i in enumerate((40, 42, 43, 43, 44, 45)): F.put("v", i, kfin[j])
        F.put("d", 36, qfin[6]); F.put("d", 37, qfin[7])
        F.put("v", 37, f"v_cmp_u_f32 vcc, v{A[0]}, v{A[0]+1}")
        F.put("s", 40, f"s_cbranch_vccnz {L('nan')}", f"{L('nanok')}:")
        F.put("s", 41, "@wait lg=qw" + (" vm=h2rs" if red else ""), "s_barrier")
        F.put("s", 45, "@wait lg=r5x")
        for j, i in enumerate((43, 44, 47)): F.put("d", i, qr[j])
        F.put("d", 45, kfin[6]); F.put("d", 46, kfin[7])
        F.put("s", 47, "@wait lg=qr0")
        return F
    rs[5][1] += "x"
    rs[3][1] += "x"

    pair = lambda m, t: [(m, 0, t), (m, 1, t)]
    HEAD = {0: ("q0 k0 v0 q1 k1 v1 q2 k2 v2 q3 k3 v3", ((1, (2, 3, 4, 5)), (2, (10, 11, 12, 13)))),
            1: ("q1 k1 v1 q2 k2 v2 k3 q3 v3 k0 q0 v0", ((2, (4, 5, 6, 7)), (0, (12, 13, 14, 15)))),
            2: ("q2 k2 v2 k3 q3 v3 k0 q0 v0 q1 v1 k1", ((0, (6, 7, 8, 9)), (1, (14, 15, 16, 17)))),
            3: ("q3 k3 v3 k0 v0 q0 q1 k1 v1 q2 k2 v2", ((0, (2, 3, 4, 5)), (1, (10, 11, 12, 13))))}
    cg = opt.get("cg", 17)

    fast1 = opt.get("fast1", 0)
    if fast1:
        assert r0 == 0 and dp == 4
        HEAD[1] = ("k1 q1 q2 k2 v1 v2 q3 k3 v3 k0 q0 v0", ((1, (1, 2, 3, 4)), (2, (8, 9, 10, 11)), (0, (14, 15, 16, 17))))

    def head(r, n=24):
        od = sum([pair(x[0], int(x[1])) for x in HEAD[r][0].split()], []) + order[24:]
        F = common()
        f1_ = fast1 and r == 1
        if f1_: F.put("d", 0, dma); F.put("s", 1, cl[0])
        F.put("s", 1, f"s_cbranch_vccnz {L(f'no{r}')}", f"{L(f'go{r}')}:")
        if f1_:
            F.put("s", 1, mzero(A[0], 4), mzero(A[1], 4)); F.put("x", 1, "s_nop 0")
        elif nd:
            dg = opt.get("dg", 1)
            for j in range(nd): F.put("x", dg + 2 * j, mld(4 + j) + f" ;@c{4+j}")
            if w >= nd: F.put("x", dg + 1, dma)
        elif r != r0 or not opt.get("dtop"): F.put("x", opt.get("dg", 1), dma)
        seen = {r}
        c_ = cg
        for i, k in enumerate(od[:24]):
            wt = []
            if k[2] not in seen:
                seen.add(k[2])
                if i <= c_: wt.append(f"vm=c{k[2]}")
            for r_ in range(3):
                staged = r_ != PRE[r] or f1_
                if k == G_R[r_][0] and i: wt.append((f"lg=r{r_}x" if r != r0 else f"lg=r{r_}") if staged else "lg=0")
                if k == G_R[r_][1] and staged and r != r0: wt.append(f"lg=r{r_}")
            if wt and i - 1 == b0: F.t[b0]["s"][0] += " " + " ".join(wt)
            elif wt: F.put("s", i - 1, "@wait " + " ".join(wt))
        F.put("x" if c_ == b0 else "s", c_, f"@wait vm=c{(r+3)&3}")
        if not opt.get("kb", 10):
            F.put("v", c_, f"v_max3_u32 v{CK}, v{M+4*((r+1)&3)}, v{M+4*((r+2)&3)}, v{M+4*((r+3)&3)}")
            F.put("v", c_ + 1, f"v_cmp_eq_u32 vcc, s{S_SENT}, v{CK}")
            F.t.setdefault(c_ + 3, {"s": [], "d": [], "v": [], "x": []})["s"][:0] = [f"s_cbranch_vccnz {L(f'late{r}')}", f"{L(f'lok{r}')}:"]
        e1 = opt.get("e1", 7)
        if e1:
            F.put("v", e1, f"v_cmp_eq_u32 vcc, s{S_SENT}, v{M+4*((r+1)&3)}")
            F.put("s", e1 + 3, f"s_cbranch_vccnz {L(f'soon{r}')}", f"{L(f'sok{r}')}:")
        for r_, gs in HEAD[r][1]:
            for j in range(4): F.put("d", gs[j], rs[r_][j] + ("x" if j == 1 else ""))
        return ([f"{L(f'c{r}')}:", f"@wait vm=c{r}" + (" lg=0" if r == 0 else "")] + (c0stamp if r == r0 else []) +
                [f"v_cmp_eq_u32 vcc, s{S_SENT}, v{M+4*r}"] + F.emit([smf(acc(k), M + 4 * k[2], k) for k in od[:n]]))
    full = head(r0, 48)
    i = full.index(mm[24])
    E(full[:i] + [f"{L('j20')}:"] + full[i:])
    E(stamp())
    S0, S1, SM = A[0], A[1], A[2]
    sx = []
    for x in range(4):
        sx += [mf(S0, POOL + 4*x, M + 4*x, None if x == 0 else S0), mf(S1, POOL + 16 + 4*x, M + 4*x, None if x == 0 else S1)]
    sm = [mf(SM, M + 16 + 4*x, M + 4*x, None if x == 0 else SM) for x in range(4)]
    cv = lambda d, q: f"v_cvt_pk_bf16_f32 v{d}, v{q}, v{q+1}"
    cnd = lambda d, x, y: f"v_cndmask_b32 v{d}, v{x}, v{y}, s[{S_HF}:{S_HF+1}]"
    pub = f"buffer_store_dwordx4 {v(A[3],4)}, v{LM}, {WSD}, s{S_PUB} offen sc1"
    MX, MY = S1, S1 + 1
    z = zero(A[4], 8)
    E([sx[0], f"s_cmp_eq_u32 s{S_STEP}, {NSEG-1}", qr[3],
       sx[1], "@wait lg=qr1", add(A[4], 0), add(A[4], 1),
       sx[2], "@wait lg=kw", "s_barrier",
       sx[3], "@wait lg=qr2", kr[0], add(A[5], 0),
       sx[4], kr[1], add(A[5], 1),
       sx[5], "@wait lg=qr3", kr[2], cv(VX + 2, A[4]),
       sx[6], kr[3], cv(VX + 10, A[5]),
       sx[7], "@wait lg=kr0", cv(A[3] + 2, A[4]), cv(A[3] + 3, A[5]),
       sm[0], "@wait lg=kr2", f"v_permlane16_swap_b32 v{VX+2}, v{VX+6}",
       sm[1], f"s_cbranch_scc1 {L('done')}", cnd(S0, S0, S1), cnd(S0 + 1, S0 + 1, S1 + 1),
       sm[2], "@wait lg=kr3", cnd(S0 + 2, S0 + 2, S1 + 2), cnd(S0 + 3, S0 + 3, S1 + 3),
       sm[3], f"v_max3_f32 v{MX}, v{S0}, v{S0+1}, v{S0+2}", f"v_max_f32 v{MX}, v{MX}, v{S0+3}",
       f"v_permlane16_swap_b32 v{VX+10}, v{VX+14}",
       f"v_max_f32_dpp v{MX}, v{MX}, v{MX} quad_perm:[2,3,0,1] row_mask:0xf bank_mask:0xf",
       f"v_mov_b32 v{MY}, v{MX}",
       f"v_mov_b64 {v(POOL,2)}, s[{S_ONE}:{S_ONE+1}]",
       f"v_max3_f32 v{S1+2}, v{SM}, v{SM+1}, v{SM+2}",
       f"v_permlane16_swap_b32 v{MX}, v{MY}",
       f"v_max3_f32 v{MX}, v{MX}, v{MY}, v{SM+3}",
       f"v_max_f32 v{MY}, v{MX}, v{S1+2}",
       f"v_max_f32 v{MX}, v{MX}, v{S1+2}",
       cnd(SM, SM, SM + 1), f"v_mov_b64 {v(POOL+2,2)}, s[{S_ONE}:{S_ONE+1}]",
       f"v_permlane32_swap_b32 v{MX}, v{MY}",
       f"v_max_f32 v{MX}, v{MX}, v{MY}",
       f"v_mul_f32 v{MX}, s{S_SC}, v{MX}"])
    for r in (S0, S0 + 2):
        E([f"v_pk_fma_f32 {v(r,2)}, {v(r,2)}, s[{S_SC-1}:{S_SC}], {v(MX,2)} op_sel_hi:[1,1,0] neg_lo:[0,0,1] neg_hi:[0,0,1]"])
    E([f"v_fma_f32 v{SM}, v{SM}, s{S_SC}, -v{MX}"])
    E([f"v_exp_f32 v{S0}, v{S0}", f"v_exp_f32 v{S0+1}, v{S0+1}", f"v_exp_f32 v{S0+2}, v{S0+2}", cv(PA, S0),
       f"v_exp_f32 v{S0+3}, v{S0+3}", f"v_exp_f32 v{SM}, v{SM}", cv(PA + 2, S0 + 2),
       f"v_cvt_pk_bf16_f32 v{PA+1}, v{SM}, v{PA+3}"])
    E(stamp())
    LQ = A[1]
    ring = [f"s_and_b32 s{S_TAG}, s{S_STEP}, 1", f"s_add_u32 s{S_STEP}, s{S_STEP}, 1",
            f"s_lshl_b32 s{S_T0}, s{S_TAG}, 13", f"s_sub_u32 s{S_H2LD}, {WS_H2 + 8192}, s{S_T0}",
            f"s_add_u32 s{S_H2LD2}, s{S_H2LD}, 4096"]
    ring2 = nxt[:1] + [f"s_cmp_eq_u32 s{S_STEP}, {NSEG-1}", f"s_cselect_b32 s{S_KV}, 0x40000000, s{S_KV}"] + nxt[1:]
    if red:
        ring += [f"s_add_u32 s{S_H2RS}, s{S_T0}, {WS_H2}", f"s_xor_b32 s{S_H2ST}, s{S_H2RS}, 8192"]
    E([z[0], z[1],
       mf(LQ, PA, POOL, None), z[2], z[3],
       smf(A[4], PA, v(VX, 8), 1), ost[0],
       smf(A[5], PA, v(VX + 8, 8), 1), ost[1], add(LQ, 0),
       add(LQ, 1), f"v_rcp_f32 v{LQ}, v{LQ}", f"v_rcp_f32 v{LQ+1}, v{LQ+1}",
       f"v_pk_add_f32 {v(A[4],2)}, {v(A[4],2)}, {v(A[4]+2,2)}",
       f"v_pk_mul_f32 {v(A[4],2)}, {v(A[4],2)}, {v(LQ,2)}",
       f"v_pk_add_f32 {v(A[5],2)}, {v(A[5],2)}, {v(A[5]+2,2)}",
       f"v_pk_mul_f32 {v(A[5],2)}, {v(A[5],2)}, {v(LQ,2)}",
       f"v_cvt_pk_bf16_f32 v{A[4]+2}, v{A[4]}, v{A[5]}", f"v_cvt_pk_bf16_f32 v{A[4]+3}, v{A[4]+1}, v{A[5]+1}",
       mzero(M + 16, 4),
       f"ds_write2_b32 v{OW_}, v{A[4]+2}, v{A[4]+3} offset0:0 offset1:4", mzero(M, 16)] + ring +
      ["s_waitcnt lgkmcnt(0)", "s_barrier",
       f"ds_read_b128 {v(A[0],4)}, v{LM} offset:{L_O - LDS_MISC} ;@o0", mzero(M + 20, 4),
       f"ds_read_b128 {v(A[1],4)}, v{LM} offset:{L_O - LDS_MISC + 1024} ;@o1", mzero(M + 24, 4)] + [mzero(M + 28, 4)] + ost[2:2+opt.get("ow", 2)])
    E(stamp())
    if pp == 1: body.insert(body.index(mzero(M, 16)) + 1, pub.replace('sc1', opt.get('pfl', 'sc1')) + " ;@kv")
    if pp == 2: body.insert(body.index([sm[1], sm[2], sm[3], z[0]][w]) + (2 if w < 2 else 1), pub.replace('sc1', opt.get('pfl', 'sc1')))
    if pp == 3: body.insert(body.index([z[0], mf(LQ, PA, POOL, None), ost[0], ost[1]][w]) + 1, pub.replace('sc1', opt.get('pfl', 'sc1')))
    oo = [(0, 0), (1, 0), (0, 1), (1, 1)] + [(tau, tp) for tau in range(2, 8) for tp in range(2)]
    om = [smf(M + 4*tau, A[tp], ("o", tau, tp)) for tau, tp in oo]
    D0, D1 = A[2], A[4]
    pk = lambda d, ta, b: f"v_cvt_pk_bf16_f32 v{d}, v{M+4*ta+b}, v{M+4*ta+4+b}"
    ad = lambda ta: [add(M + 4*ta, 0), add(M + 4*ta, 1)]
    G = Gaps()
    G.put("s", 1, "@wait lg=o1")
    gs = {2: [0, 1, 2, 3, 4, 5, 6, 8, 9, 10], 1: [0, 1, 2, 3, 3, 4, 5, 6, 8, 9, 10], 0: [0, 1, 2, 2, 3, 3, 4, 5, 6, 8, 9, 10]}[opt.get("ow", 2)]
    for i, j in zip(gs, range(2 + opt.get("ow", 2), 14)): G.put("d", i, ost[j] + f" ;@w{j >> 1}")
    G.put("s", 8, "@wait lg=w2"); G.put("s", 11, "@wait lg=w4"); G.put("s", 13, "@wait lg=w5"); G.put("s", 14, "@wait lg=w6")
    al = opt.get("al", 0)
    poll1 = lambda d, tg_: f"buffer_load_dword v{d}, v{FAD}, {WSD}, s{S_FREE1} offen sc1 ;@{tg_}"
    PR = [FLG, TCH, PA, PA + 1, PA + 2]
    if al == 1 and w == 0:
        body.insert(body.index({-3: sm[0], -2: sm[3], -1: z[0], 0: ost[0], 1: ost[1], 2: mzero(M, 16)}[opt.get("f1", 1)]) + 1, f"buffer_store_dword v{FV}, v{FST}, {WSD}, s{S_H1LD2} offen {st}")
    if al == 2: PR = PR2[:len(pg2)]
    if al == 1 and w == 1:
        body.insert(body.index(ring[-1]) + 1, poll1(PR[0], "p0"))
        body.insert(body.index(mzero(M + 24, 4)) + 1, poll1(PR[1], "p1"))
        for j, i in enumerate(opt.get("pg1", [0, 2, 4])): G.put("x" if i < 4 else "s", i, poll1(PR[j + 2], f"p{j+2}"))
    tg = lambda d: f"v_bfi_b32 v{d}, 1, s{S_TAG}, v{d}"
    if opt.get('wob', 0):
        stq = lambda q, D: f"buffer_store_dwordx2 {v(D,2)}, v{H1ST}, {WSD}, s{S_H1ST2 if q >> 1 else S_H1ST} offen offset:{64 * (q & 1)} {st}"
        for h, D in enumerate((D0, D1)):
            t0, g0 = 4 * h, 8 * h
            if h == 0: G.put("v", 4, *ad(0))
            else: G.put("v", 11, ad(4)[0]); G.put("v", 12, ad(4)[1])
            G.put("v", g0 + 5, *ad(t0 + 1))
            G.put("v", g0 + 6, pk(D, t0, 0))
            x = M + 4 * (t0 + 3)
            G.put("v", g0 + 7, pk(D + 1, t0, 1), tg(D), stq(2 * h, D), *ad(t0 + 2), "s_nop 0", f"v_pk_add_f32 {v(x,2)}, {v(x,2)}, {v(x+2,2)}",
                  pk(D + 2, t0 + 2, 0), pk(D + 3, t0 + 2, 1), tg(D + 2), stq(2 * h + 1, D + 2))
    else:
        for q in range(4):
            D = (D0, D0 + 2, D1, D1 + 2)[q]
            e, o_ = ad(2 * q), ad(2 * q + 1)
            stq = f"buffer_store_dwordx2 {v(D,2)}, v{H1ST}, {WSD}, s{S_H1ST2 if q >> 1 else S_H1ST} offen offset:{64 * (q & 1)} {st}"
            rest = [o_[0], o_[1], pk(D, 2 * q, 0), pk(D + 1, 2 * q, 1), tg(D)]
            if q == 0:
                G.put("v", 4, *e)
            elif q < 3:
                G.put("v", 4 * q + 3, e[0]); G.put("v", 4 * q + 4, e[1])
            if q < 3:
                n1 = opt.get("wo1", 2)
                G.put("v", 4 * q + 5, *rest[:n1]); G.put("v", 4 * q + 6, *rest[n1:])
                G.put("d", 4 * q + 7, stq)
            else:
                G.put("v", 15, *(e + ["s_nop 3"] + rest + [stq]))
    E(["@wait lg=o0"] + G.emit(om))
    E(stamp())
    house = ring2 + rs[PRE[r0]] + [mzero(A[i], 4) for i in (0, 1, 2)]
    mv = v_moves(VN) + ([] if pp else [f"v_mov_b64 {v(VN+4,2)}, {v(A[3],2)}", f"v_mov_b64 {v(VN+6,2)}, {v(A[3]+2,2)}"]) + [mzero(A[3], 4), mzero(A[4], 4)]
    after = kxr + mv
    xo = opt.get("xo", 0)
    if al and w == 1:
        for j in range(len(PR)):
            E([f"@wait vm=p{j}" if al == 1 else f"@wait vm=p{len(PR)-1}" if j == 0 else "s_nop 0", f"v_cmp_gt_u32 vcc, s{S_STEP}, v{PR[j]}"] + (house[:5] if j == 0 else nops("d7")) +
              (["s_add_u32 s99, s99, 1"] if opt.get("count") else []) + [f"s_cbranch_vccz {L('al')}"])
        E(["s_nop 7", f"{L('al')}:", "s_barrier"])
    else:
        E(["@wait vm=kv"] + (kwr if xo and w == 2 else []) + ["s_barrier"])
    x2 = ["@wait lg=kxw", "s_barrier"]
    hs = house[5:] if al and w == 1 else house
    if red:
        shots = h1l(M + 16) + (nops("d4") + h1l(M) if two else [])
        e2, e3 = opt.get("e2", 8), opt.get("e3", 8)
        if xo and w == 2:
            rest = hs + kxr + mv
            E(nops("d1") + stamp() + shots[:4] + x2 + shots[4:] + rest[:e2] + reduce(M + 16, "ra") + [f"{L('rdone')}:"] + stamp() + rest[e2:] +
              ["s_waitcnt lgkmcnt(0)"] + nops("d2"))
        elif xo:
            pre = kxr + mv
            E(kwr + hs + x2 + pre[:len(pre)-e3] + nops("d3") + stamp() + shots + pre[len(pre)-e3:] +
              reduce(M + 16, "ra") + [f"{L('rdone')}:"] + stamp() + ["s_waitcnt lgkmcnt(0)"] + nops("d5"))
        elif w == 2:
            rest = kxr + mv
            E(nops("d1") + stamp() + shots + kwr + hs + x2 + rest[:e2] + reduce(M + 16, "ra") + [f"{L('rdone')}:"] + stamp() + rest[e2:] +
              ["s_waitcnt lgkmcnt(0)"] + nops("d2"))
        else:
            pre = kwr + hs + mv
            E(pre[:len(pre)-e3] + nops("d3") + stamp() + shots + pre[len(pre)-e3:] + x2 + kxr[:opt.get("e4", 8)] +
              reduce(M + 16, "ra") + [f"{L('rdone')}:"] + stamp() + kxr[opt.get("e4", 8):] + ["s_waitcnt lgkmcnt(0)"] + nops("d5"))
    else:
        E(stamp() + (kwr + x2 + nops("d8") + hs + mv + kxr if xo else kwr + hs + mv + x2 + kxr) + stamp() + (dump if opt.get('rt', w + 1) == w + 1 else []))
    if w < 2:
        E([mzero(A[5], 4)])
    if w == 0:
        E([f"v_add_u32 v{FV}, 1, v{FV}", f"v_cmp_eq_u32 s[{S_RDY}:{S_RDY+1}], 1, v{FLG}", f"s_add_u32 s{S_T2}, s{S_STEP}, 1", "s_nop 3",
           f"s_bitcmp1_b64 s[{S_RDY}:{S_RDY+1}], s{S_T2}", f"s_cbranch_scc0 {L('flag')}", f"{L('flagok')}:"])
    E(([] if red else ["s_waitcnt lgkmcnt(0)"] + ["s_barrier"] * opt.get("cp", 0)) + [f"s_branch {L('top')}"])
    if opt.get("free"):
        body = [x for x in body if not (x.startswith("s_cbranch_vccnz") or x.startswith("v_cmpx"))]
        body = [x.replace("s_cbranch_vccz " + L('al'), "s_branch " + L('al')) for x in body]
    if True:
        for pat in opt.get("drop", []):
            keep = lambda x: ("s_nop 0" if opt.get("keepslot") else None)
            tags = [x.split(";@")[1] for x in body if pat in x and ";@" in x]
            body = [x for x in body if pat not in x or x.endswith(":")]
            live = {x.split(";@")[1] for x in body if ";@" in x}
            nb = []
            for x in body:
                if x.startswith("@wait"):
                    t = [k for k in x.split()[1:] if k.split("=")[1] in live or k.split("=")[1] == "0"]
                    if t: nb.append("@wait " + " ".join(t))
                else: nb.append(x)
            body = nb
    body = resolve_waits(body)
    if opt.get("seg"):
        pos = [i for i, x in enumerate(body) if x.startswith(("v_mfma_f32_16x16x32", "v_smfmac"))]
        i0, i1 = opt["seg"]
        labels = [x for x in body if x.endswith(":")]
        cut = [x for x in body[pos[i0]:pos[i1]] if not x.endswith(":") and f"s{S_STEP}" not in x and "branch" not in x]
        body = labels + cut[:1] + [f"s_add_u32 s{S_STEP}, s{S_STEP}, 1", f"s_cmp_eq_u32 s{S_STEP}, 64", f"s_cbranch_scc1 {L('done')}"] + cut[1:] + [f"s_branch {L('top')}"]
    if opt.get("sw") and opt.get("rt") == w + 1:
        pos = [i for i, x in enumerate(body) if x.startswith(("v_mfma_f32_16x16x32", "v_smfmac"))]
        for k, o_ in reversed(list(enumerate(opt["sw"]))):
            if o_ < len(pos): body.insert(pos[o_] + 1, f"s_memtime s[{76+2*k}:{77+2*k}]")
    npad = [0]

    def pad(last=False):
        k = npad[0]; npad[0] += 1
        g(f"{L(f'pad{k}')}:\ns_branch " + (f"L_{tag}_warm1" if last else f"L_{tag}_warm0" if k == 3 else L(f"pad{k+1}")))
    if red and opt.get("rotl", 0) and not opt.get("seg"):
        i = body.index(f"{L('ra')}:")
        body = body[i:-1] + body[:i] + [f"s_branch {L('ra')}"]
    body, left = align_body(body)
    g(f"s_branch {L('top')}")
    pad()
    g(".p2align 5")
    for x in body: g(x)
    bad = hazard.check(body + body[:40], f"chain w{w}") if not (opt.get("drop") or opt.get("seg")) else []
    m1 = g.mark()
    strip = lambda lst: [x.split(";@")[0] for x in lst]
    cnt = lambda out: f"s_add_u32 s{S_SPIN}, s{S_SPIN}, 1\ns_cmp_gt_u32 s{S_SPIN}, {SPIN_MAX}\ns_cbranch_scc1 {out}"
    dbg = lambda k: (f"s_add_u32 s{96+k}, s{96+k}, 1" if opt.get("count") else "")
    anysent = [f"v_mov_b32 v{PA}, 0"] + [f"v_max3_u32 v{PA}, v{PA}, v{M+2*i}, v{M+2*i+1}" for i in range(16)] + [f"v_cmp_eq_u32 vcc, s{S_SENT}, v{PA}"]
    pad()
    if red:
        if opt.get("eb"):
            rb = reduce(M, "rb", 4)
            k_ = 0
            for x in [f"{L('rano')}:", dbg(2)] + rb[:1]: g(x)
            for t in range(4):
                i = [j for j, x in enumerate(rb) if x.startswith("s_waitcnt")][t]
                rb[i] = f"s_waitcnt vmcnt(3)"
                j = [j for j, x in enumerate(rb) if x.startswith("v_mfma")][t]
                rb.insert(j + 1, h1l(M + 16)[t])
            for x in rb[1:] + [f"s_branch {L('rdone')}", f"{L('rbno')}:", dbg(3)] + cnt(L("rbok")).split("\n") + h1l(M): g(x)
        else:
            g(f"{L('rano')}:\n{dbg(2)}\n{cnt(L('raok'))}")
            for x in h1l(M + 16): g(x)
        if two and not opt.get("eb"):
            for x in reduce(M, "rb") + [f"s_branch {L('rdone')}", f"{L('rbno')}:", dbg(3)] + h1l(M): g(x)
        g(f"s_branch {L('ra')}")
    for r in range(4):
        if not opt.get("kb", 10): g(f"{L(f'late{r}')}:\n{cnt(L(f'lok{r}'))}\ns_branch {L('restart')}")
        if opt.get("e1", 7): g(f"{L(f'soon{r}')}:\n{cnt(L(f'sok{r}'))}\ns_branch {L('restart')}")
    g(f"{L('restart')}:\n{dbg(1)}\ns_waitcnt lgkmcnt(0)")
    for x in strip(rs[PRE[r0]]) + [mzero(A[i], 4) for i in range(6)] + [f"s_branch {L('again')}"]: g(x)
    path = list(top_part)
    for j in range(4):
        r, nx = (r0 + j) & 3, (r0 + j + 1) & 3
        part = ([f"{L(f'no{r}')}:"] + ([dbg(0)] if opt.get("count") else []) + (cnt(L(f"go{r}")).split("\n") if j == 3 else []) + [cl[r], dma if j == dp - 1 else h2st(M + 16) if j == 0 and late_st else "s_nop 0"] +
                (rs[PRE[nx]] if PRE[nx] != PRE[r] else ["s_nop 3"]) + [mzero(A[0], 4), mzero(A[1], 4), "s_nop 0"])
        if fast1 and j == 0: part = part[:2 if opt.get("count") else 1]
        if fast1 and j == 1: part = part[:-1] + [mzero(A[2], 4), mzero(A[3], 4)]
        hd = head(nx) + [f"s_branch {L('j20')}"] if j < 3 else [f"s_branch {L(f'c{r0}')}"]
        res = resolve_waits(path + part + hd, loop=False)[len(path):]
        path = path + part + ([dma, cl[0]] if fast1 and j == 0 else [])
        bad += hazard.check((mm[2:4] if fast1 and j == 1 else mm[:2]) + ["s_branch x"] + res + (mm[24:28] if j < 3 else mm[:2]), f"chain head {r} w{w}")
        res, _ = align_body(res)
        pad()
        g(".p2align 5")
        for x in res: g(x)
    m1 = g.mark()
    g(f"{L('nan')}:\n" + ("s_add_u32 s97, s97, 0x10000" if opt.get("count") else ""))
    for x in anysent: g(x)
    g(f"s_cbranch_vccz {L('nanok')}\n{L('nanl')}:")
    for x in [mld(t) for t in range(8)] + ["s_waitcnt vmcnt(0)"] + anysent: g(x)
    g(f"s_cbranch_vccz {L('nanr')}\n{cnt(L('nanr'))}\ns_branch {L('nanl')}\n{L('nanr')}:\ns_waitcnt lgkmcnt(0)")
    for x in zero(ACC, 24): g(x)
    for i in range(41):
        for r_ in range(5):
            if order[i] == G_R[r_][0]:
                for x in strip(rs[r_]) + ["s_waitcnt lgkmcnt(0)"]: g(x)
        g(mm[i])
    for x in strip(rs[5][:2] + qfin) + ["s_waitcnt lgkmcnt(0)", f"s_branch {L('nanok')}"]: g(x)
    bad += hazard.check(g.lines[m1:], f"chain rare w{w}")
    if opt.get("wb") and w == 1:
        g(f"{L('wb')}:\nbuffer_wbl2 sc1\ns_branch {L('wbok')}")
    pad(True)
    if w == 0:
        g(f"{L('flag')}:")
        wait_flag(g, f"{tag}{w}_f1", S_T2)
        g(f"s_branch {L('flagok')}")
    g(f"{L('done')}:\n{pub}")
    if w == 0: dbg_time(g, opt, 5)
    if opt.get("cal") and w + 1 == opt.get("rt"):
        g(f"""
        s_mov_b32 s90, 0
        v_mov_b32 v60, 0
        {L('cal')}:
        s_memrealtime s[74:75]
        s_waitcnt lgkmcnt(0)
        s_add_u32 s78, s74, 8
        s_or_b32 s78, s78, 31
        {L('cal2')}:
        s_memrealtime s[74:75]
        s_memtime s[76:77]
        s_waitcnt lgkmcnt(0)
        s_cmp_le_u32 s74, s78
        s_cbranch_scc1 {L('cal2')}
        s_mov_b32 m0, s90
        v_writelane_b32 v60, s78, m0
        s_add_u32 m0, s90, 1
        v_writelane_b32 v60, s76, m0
        s_add_u32 s90, s90, 2
        s_cmp_lt_u32 s90, 64
        s_cbranch_scc1 {L('cal')}
        v_subrev_u32 v61, {LDS_MISC}, v{LM}
        v_lshrrev_b32 v61, 2, v61
        s_lshl_b32 s{S_T0}, s{S_TK}, 8
        s_add_u32 s{S_T0}, s{S_T0}, {100*MB}
        buffer_store_dword v60, v61, {WSD}, s{S_T0} offen
        """)
    if opt.get("count"):
        g(f"""
        s_memtime s[94:95]
        s_memrealtime s[74:75]
        s_waitcnt lgkmcnt(0)
        
        s_sub_u32 s94, s94, s92
        v_mov_b32 v40, s96
        v_mov_b32 v41, s97
        v_mov_b32 v42, s98
        v_mov_b32 v43, s94
        s_lshl_b32 s{S_T0}, s{S_TK}, 2
        s_add_u32 s{S_T0}, s{S_T0}, {w}
        s_lshl_b32 s{S_T0}, s{S_T0}, 12
        s_add_u32 s{S_T0}, s{S_T0}, {WS_STAMP}
        v_mov_b32 v44, 0
        v_mov_b32 v46, s99
        v_mov_b32 v47, s14
        v_mov_b32 v48, s15
        v_mov_b32 v49, s74
        buffer_store_dwordx4 v[40:43], v44, {WSD}, s{S_T0} offen
        v_mov_b32 v50, s2
        v_mov_b32 v52, s79
        v_mov_b32 v53, s80
        v_mov_b32 v54, s81
        v_mov_b32 v55, s82
        v_mov_b32 v56, s83
        v_mov_b32 v57, s84
        buffer_store_dwordx4 v[52:55], v44, {WSD}, s{S_T0} offen offset:36
        buffer_store_dwordx2 v[56:57], v44, {WSD}, s{S_T0} offen offset:52
        buffer_store_dword v50, v44, {WSD}, s{S_T0} offen offset:32
        buffer_store_dwordx4 v[46:49], v44, {WSD}, s{S_T0} offen offset:16
        """)
    if opt.get("pfl", "sc1") != "sc1" and w == 0:
        g(f"s_cmp_ge_u32 s{S_TK}, {opt.get('nwb', 1)}\ns_cbranch_scc1 {L('fin')}\nbuffer_wbl2 sc1\n{L('fin')}:")
    g("s_waitcnt vmcnt(0)\ns_endpgm")
    return bad


def chain_role(g, st, tag, opt):
    m0 = g.mark()
    if opt.get("count"):
        g("s_mov_b32 s96, 0\ns_mov_b32 s97, 0\ns_mov_b32 s98, 0\ns_mov_b32 s99, 0")
    g(f"s_cmp_lg_u32 s{S_WAVE}, 0\ns_cbranch_scc1 L_dt" if opt.get("dbgt") else "")
    if opt.get("dbgt"):
        g(f"s_not_b32 s88, s14\nv_mov_b32 v90, 12\nv_mov_b32 v91, s88\ns_mov_b64 exec, 1\nglobal_atomic_umax v90, v91, s[{P_DBG}:{P_DBG+1}]\ns_mov_b64 exec, -1\nL_dt:")
    late_setup = opt.get("les", 0)
    if not late_setup: setup_early(g, st)
    arrive = lambda off=DBG_TEAM: g(f"""
    s_cmp_lg_u32 s{S_WAVE}, 0
    s_cbranch_scc1 L_{tag}_arrived{off}
    v_mov_b32 v56, {off}
    v_mov_b32 v57, 1
    s_mov_b64 exec, 1
    global_atomic_add v56, v57, s[{P_DBG}:{P_DBG+1}]
    s_mov_b64 exec, -1
    L_{tag}_arrived{off}:
    """)
    def code_touch():
        g(f"""
        s_getpc_b64 s[{S_RDY}:{S_RDY+1}]
        L_{tag}_pc:
        s_add_u32 s{S_RDY}, s{S_RDY}, L_{tag}_w0-L_{tag}_pc
        s_addc_u32 s{S_RDY+1}, s{S_RDY+1}, 0
        v_lshlrev_b32 v56, 7, v0
        v_min_u32 v56, L_{tag}_end-L_{tag}_w0-4, v56
        global_load_dword v57, v56, s[{S_RDY}:{S_RDY+1}]
        """)

    def warm(k):
        for w in range(3):
            g(f"s_cmp_eq_u32 s{S_WAVE}, {w}\ns_cbranch_scc1 L_{tag}{w}_pad{4*k}")
        g(f"s_branch L_{tag}3_pad{4*k}\nL_{tag}_warm{k}:")

    assert DBG_INIT == DBG_TEAM + 4
    ask = f"global_load_dwordx2 v[60:61], v62, s[{P_DBG}:{P_DBG+1}] sc1"

    flg = f"buffer_load_dword v63, v62, s[{S_WS}:{S_WS+3}], s{S_FL} offen sc1"

    def counters():
        g(f"""
        L_{tag}_cnt:
        v_cmp_gt_u32 vcc, 32, v60
        v_cmp_gt_u32 s[{S_RDY}:{S_RDY+1}], s{S_T2}, v61
        s_add_u32 s{S_SPIN}, s{S_SPIN}, 1
        s_cmp_gt_u32 s{S_SPIN}, {SPIN_MAX}
        s_cbranch_scc1 L_{tag}_cntok
        s_or_b64 vcc, vcc, s[{S_RDY}:{S_RDY+1}]
        s_cbranch_scc0 L_{tag}_cntok
        {ask}
        s_waitcnt vmcnt(0)
        s_branch L_{tag}_cnt
        L_{tag}_cntok:
        v_and_b32 v62, 1, v0
        v_lshlrev_b32 v62, 2, v62
        s_mov_b32 s{S_TAG}, 0
        {flg}
        """)

    def kv_issue():
        g(f"s_lshl_b32 s{S_T0}, s{S_WAVE}, 11\ns_add_u32 s{S_T0}, s{S_T0}, s{S_KV}\ns_add_u32 s{S_T1}, s{S_T0}, 8192")
        for x in range(2):
            g(f"buffer_load_dwordx4 {v(KN+4*x,4)}, v{LM}, s[{S_WS}:{S_WS+3}], s{S_T0} offen offset:{x*1024} sc1")
            g(f"buffer_load_dwordx4 {v(VN+4*x,4)}, v{LM}, s[{S_WS}:{S_WS+3}], s{S_T1} offen offset:{x*1024} sc1")

    def try_kv():
        g(f"v_cmp_ne_u32 vcc, 1, v63\ns_cbranch_vccnz L_{tag}_notyet\ns_mov_b32 s{S_TAG}, 1")
        kv_issue()
        g(f"L_{tag}_notyet:")

    def first_kv():
        if opt.get("count"): g("s_memrealtime s[90:91]\ns_waitcnt lgkmcnt(0)\ns_mov_b32 s2, s90")
        g(f"""
        s_cmp_eq_u32 s{S_TAG}, 1
        s_cbranch_scc1 L_{tag}_kvok
        L_{tag}_fl:
        v_cmp_ne_u32 vcc, 1, v63
        s_add_u32 s{S_SPIN}, s{S_SPIN}, 1
        s_cmp_gt_u32 s{S_SPIN}, {SPIN_MAX}
        s_cbranch_scc1 L_{tag}_flok
        s_cbranch_vccz L_{tag}_flok
        {flg}
        s_waitcnt vmcnt(0)
        s_branch L_{tag}_fl
        L_{tag}_flok:
        """)
        kv_issue()
        g(f"L_{tag}_kvok:")
    hooks = {0: lambda: store_mem0(g, st), 2: code_touch, 5: arrive, 8: lambda: warm(0), 10: lambda: warm(1),
             19: lambda: g(f"v_mov_b32 v62, {DBG_TEAM}\ns_mov_b32 s{S_T2}, {0 if opt.get('chainonly') else 224}\n{ask}"),
             22: lambda: g(f"v_lshlrev_b32 v56, 6, v0\nbuffer_load_dword v57, v56, s[{S_WS}:{S_WS+3}], s{S_H2LD} offen sc1"),
             25: counters, 29: try_kv, 30: lambda: (g(flg), setup_late(g)), 31: first_kv}
    if late_setup:
        hooks.update({-1: lambda: (setup_early(g, st), set_srd(g, P_WO, 4 * MB)), 0: lambda: None, 3: hooks[0], 5: lambda: None, 7: hooks[5]})
    if opt.get("lst"):
        for j, i in enumerate(opt["lst"]):
            hooks[i] = lambda j=j, h=hooks.get(i): (g(f"s_memrealtime s[90:91]\ns_waitcnt lgkmcnt(0)\ns_mov_b32 s{80+j}, s90"), h and h())
        g("s_memrealtime s[90:91]\ns_waitcnt lgkmcnt(0)\ns_mov_b32 s79, s90")
    load_weights(g, hooks, opt.get("wnt", ""), opt.get("word", "oqkv"), opt.get("ahead", 0), opt.get("tfl", ""), opt.get("depth", 3))
    bad = hazard.check(g.lines[m0:], "chain prologue")
    for w in range(1, 4):
        g(f"s_cmp_eq_u32 s{S_WAVE}, {w}\ns_cbranch_scc1 L_{tag}_w{w}")
    for w in range(4):
        g(f"L_{tag}_w{w}:")
        bad += wave_loop(g, w, st, tag, opt)
    g(f"L_{tag}_end:")
    return bad
```

```python
import sys
from asmlib import *
from layout import *
from chain import *
import workers

NAME = "recurrent_scan__memory_aug_recurrent_mem_tr__geglu_ffn__prompt_kernel"


def entry(g, opt):
    tk = f"s_lshl_b32 s{S_T0}, s{S_XCC}, 5"
    if opt.get("tk"):
        n0 = opt["tk"]
        tk = f"s_lshl_b32 s{S_T0}, s{S_XCC}, 4\ns_cmp_lt_u32 s{S_XCC}, {n0}\ns_cselect_b32 s{S_T1}, 0, 128\ns_add_u32 s{S_T0}, s{S_T0}, s{S_T1}"
    if opt.get('count') or opt.get('dbgt') or opt.get('until'): g('s_memrealtime s[14:15]')
    g(f"""
    s_cmp_ge_u32 s2, 256
    s_cbranch_scc1 L_exit
    s_load_dwordx16 s[16:31], s[0:1], 0
    s_load_dwordx8 s[32:39], s[0:1], 64
    s_load_dwordx4 s[40:43], s[0:1], 96
    s_getreg_b32 s{S_XCC}, hwreg(HW_REG_XCC_ID, 0, 3)
    {f"s_xor_b32 s{S_XCC}, s{S_XCC}, {opt['cx']}" if opt.get('cx') else ''}
    v_lshrrev_b32 v1, 6, v0
    s_mov_b32 s{S_SPIN}, 0
    s_mov_b32 s{S_SENT}, {SENT}
    s_mov_b32 s{S_SENT+1}, {SENT}
    v_readfirstlane_b32 s{S_WAVE}, v1
    s_waitcnt lgkmcnt(0)
    s_mov_b32 s{S_WS}, s{P_WSP}
    s_mov_b32 s{S_WS+1}, s{P_WSP+1}
    s_mov_b32 s{S_WS+2}, {WS_BYTES}
    s_mov_b32 s{S_WS+3}, 0x20000
    s_cmp_lg_u32 s{S_WAVE}, 0
    s_cbranch_scc1 L_asked
    {tk}
    v_mov_b32 v1, s{S_T0}
    v_mov_b32 v2, 1
    s_mov_b64 exec, 1
    global_atomic_add v3, v1, v2, s[{P_DBG}:{P_DBG+1}] sc0
    s_mov_b64 exec, -1
    L_asked:
    """)
    if opt.get("ct"):
        g(f"s_barrier\ns_cmp_lg_u32 s{S_XCC}, 0\ns_cbranch_scc1 L_ct")
        set_srd(g, P_WO, 4 * MB)
        g(f"v_lshlrev_b32 v4, 7, v0\ns_lshr_b32 s{S_T0}, s2, 3\ns_lshl_b32 s{S_T0}, s{S_T0}, 17")
        for x in range(opt["ct"]):
            g(f"buffer_load_dword v23, v4, s[{S_W}:{S_W+3}], s{S_T0} offen\ns_add_u32 s{S_T0}, s{S_T0}, 32768")
        g(f"s_cmp_lg_u32 s{S_WAVE}, 0\ns_cbranch_scc1 L_ticket\ns_waitcnt vmcnt({opt['ct']})\ns_branch L_got\nL_ct:")
    if opt.get("pf6"):
        g(f"s_barrier\ns_cmp_eq_u32 s{S_XCC}, 0\ns_cbranch_scc1 L_pf6\ns_cmp_lt_u32 s{S_WAVE}, 2\ns_cbranch_scc1 L_pf6")
        set_srd(g, P_WO, 4 * MB)
        g(f"v_and_b32 v4, 127, v0\nv_lshlrev_b32 v4, 7, v4\ns_lshl_b32 s{S_T0}, s2, 14\nbuffer_load_dword v127, v4, s[{S_W}:{S_W+3}], s{S_T0} offen\nL_pf6:")
    pf = opt.get("pf", 0)
    if pf:
        g(f"s_barrier\ns_cmp_eq_u32 s{S_XCC}, 0\ns_cbranch_scc1 L_touched\nv_and_b32 v4, 63, v0\nv_lshlrev_b32 v4, 7, v4")
        for w, (p1, p2, n2, sl2) in enumerate(((P_WQ, P_X, 2*MB, 8192), (P_WK, P_WG, 512*2752, 5504), (P_WV, P_WU, 512*2752, 5504), (P_WO, None, 0, 0))):
            g(f"s_cmp_lg_u32 s{S_WAVE}, {w}\ns_cbranch_scc1 L_touch{w}")
            if p2:
                set_srd(g, p2, n2)
                g(f"s_mul_i32 s{S_T0}, s2, {sl2}\nbuffer_load_dword v127, v4, s[{S_W}:{S_W+3}], s{S_T0} offen")
            set_srd(g, p1, 4 * MB)
            g(f"s_lshl_b32 s{S_T0}, s2, 14\nbuffer_load_dword v127, v4, s[{S_W}:{S_W+3}], s{S_T0} offen")
            g(f"s_add_u32 s{S_T0}, s{S_T0}, 8192\nbuffer_load_dword v127, v4, s[{S_W}:{S_W+3}], s{S_T0} offen")
            if w == 0: g("s_waitcnt vmcnt(3)\ns_branch L_got")
            g(f"L_touch{w}:")
        g("L_touched:")
    g(f"""
    s_cmp_lg_u32 s{S_WAVE}, 0
    s_cbranch_scc1 L_ticket
    s_waitcnt vmcnt(0)
    L_got:
    v_mov_b32 v1, 0
    s_mov_b64 exec, 1
    ds_write_b32 v1, v3
    s_waitcnt lgkmcnt(0)
    s_mov_b64 exec, -1
    L_ticket:
    s_barrier
    v_mov_b32 v1, 0
    ds_read_b32 v3, v1
    s_waitcnt lgkmcnt(0)
    v_readfirstlane_b32 s{S_TK}, v3
    s_barrier
    s_and_b32 s{S_TK}, s{S_TK}, 31
    """)


DEFAULTS = {"xo": 1, "d1": [15, 1], "d3": [11], "d4": [], "d5": [2], "d8": [15], "e2": 21, "e3": 6, "pace": 17, "wo1": 2, "dtop": 4, "kb": 6, "k0": 7, "ow": 1, "e1": 0, "pf2": 2, "pf3": 0, "pf4": 1, "pfl": "nt", "pp": 8, "p8": [0, 2], "wbd": 1, "psleep": 12, "sto": "nt", "ofl": "nt", "les": 1, "tk": 2, "cx": 3, "ch": 1, "sf": 0, "hc": 3, "r0": [0, 0, 0, 0]}


def build(opt):
    opt = dict(DEFAULTS, **opt)
    g = Asm()
    entry(g, opt)
    bad = []
    g(f"s_cmp_eq_u32 s{S_XCC}, 0\ns_cbranch_scc1 L_chain")
    if not opt.get("chainonly"):
        bad += workers.worker_roles(g, opt)
    g("L_exit:\ns_endpgm\nL_chain:")
    bad += chain_role(g, opt.get("st", ""), "c", opt)
    for b in bad: print(b, file=sys.stderr)
    head = f"; @launch grid=(256,1,1) block=(256,1,1) lds=163840\n"
    head += '.amdgcn_target "amdgcn-amd-amdhsa--gfx950"\n.text\n'
    head += f".globl {NAME}\n.p2align 8\n.type {NAME},@function\n{NAME}:\n"
    tail = f"""
.section .rodata,"a"
.p2align 6
.amdhsa_kernel {NAME}
  .amdhsa_next_free_vgpr 512
  .amdhsa_next_free_sgpr 102
  .amdhsa_accum_offset 256
  .amdhsa_group_segment_fixed_size 0
  .amdhsa_kernarg_size 112
  .amdhsa_user_sgpr_count 2
  .amdhsa_user_sgpr_kernarg_segment_ptr 1
  .amdhsa_system_sgpr_workgroup_id_x 1
.end_amdhsa_kernel
"""
    return head + g.text() + tail, bad


if __name__ == "__main__":
    import mb
    t, bad = build({})
    co = mb.assemble(t, NAME, 14, "k")
    print(mb.cl.address_register_problem(co, NAME))
    print(len(t), "bytes", len(bad), "hazards")
```

```python
from asmlib import *
from layout import *
from chain import (S_WS, S_W, P_X, P_WQ, P_WK, P_WV, P_WO, P_WG, P_WU, P_WD, P_OUT, P_DBG, S_XCC, S_TK, S_WAVE,
                   S_T0, S_T1, S_T2, S_T3, SPIN_MAX, set_srd, S_SPIN, S_SENT, dbg_time)

WSD = f"s[{S_WS}:{S_WS+3}]"
WD = f"s[{S_W}:{S_W+3}]"
S_WI, S_COL, S_SEG, S_HD, S_NXT, S_XO, S_O1, S_O2, S_FA, S_PREV, S_LB, S_C0, S_C1, S_C2 = range(51, 65)
S_R, S_IT, S_O3 = 65, 66, 67
S_OUT = 68
S_MK = 72
RING = 65536
NROWG = 5


def rg(f, b, n):
    return a(b, n) if f == "a" else v(b, n)


def mf32(d, x, y, first):
    return f"v_mfma_f32_32x32x16_bf16 {v(d,16)}, {x}, {y}, " + ("0" if first else v(d, 16))


def mf16(d, x, y, first):
    return f"v_mfma_f32_16x16x32_bf16 {v(d,4)}, {x}, {y}, " + ("0" if first else v(d, 4))


def spin_counter(g, tag, off, target, sleep=8):
    g(f"""
    s_cmp_lg_u32 s{S_WAVE}, 0
    s_cbranch_scc1 L_{tag}_out
    v_mov_b32 v10, {off}
    L_{tag}:
    global_load_dword v11, v10, s[{P_DBG}:{P_DBG+1}] sc1
    s_add_u32 s{S_SPIN}, s{S_SPIN}, 1
    s_cmp_gt_u32 s{S_SPIN}, {SPIN_MAX}
    s_waitcnt vmcnt(0)
    s_cbranch_scc1 L_{tag}_out
    v_cmp_gt_u32 vcc, {target}, v11
    s_cbranch_vccz L_{tag}_out
    s_sleep {sleep}
    s_branch L_{tag}
    L_{tag}_out:
    s_barrier
    """)


def spin_flags(g, tag, vaddr, soff, sleep=1):
    g(f"""
    L_{tag}:
    buffer_load_dword v11, v{vaddr}, {WSD}, s{soff} offen sc1
    s_add_u32 s{S_SPIN}, s{S_SPIN}, 1
    s_cmp_gt_u32 s{S_SPIN}, {SPIN_MAX}
    s_cbranch_scc1 L_{tag}_out
    s_waitcnt vmcnt(0)
    v_cmp_ne_u32 vcc, 1, v11
    s_cbranch_vccz L_{tag}_out
    {f's_sleep {sleep}' if sleep else ''}
    s_branch L_{tag}
    L_{tag}_out:
    s_waitcnt vmcnt(0)
    """)


def count_up(g, tag, off, wait=True):
    if wait: g("s_waitcnt vmcnt(0)\ns_barrier")
    g(f"""
    s_cmp_lg_u32 s{S_WAVE}, 0
    s_cbranch_scc1 L_{tag}
    v_mov_b32 v10, {off}
    v_mov_b32 v11, 1
    s_mov_b64 exec, 1
    global_atomic_add v10, v11, s[{P_DBG}:{P_DBG+1}]
    s_mov_b64 exec, -1
    L_{tag}:
    """)


def set_flag(g, tag, soff, st="sc1"):
    g(f"""
    s_cmp_lg_u32 s{S_WAVE}, 0
    s_cbranch_scc1 L_{tag}
    v_mov_b32 v10, 0
    v_mov_b32 v11, 1
    s_mov_b64 exec, 1
    buffer_store_dword v11, v10, {WSD}, s{soff} offen {st}
    s_mov_b64 exec, -1
    L_{tag}:
    """)


def wstamp(g, opt, i, dump=False):
    if not opt.get("count"): return
    g(f"s_waitcnt vmcnt(0)" if dump else "")
    g(f"s_memrealtime s[88:89]\ns_waitcnt lgkmcnt(0)\ns_mov_b32 s{90+i}, s88")
    if dump:
        for k in range(5): g(f"v_mov_b32 v{21+k}, s{90+k}")
        g(f"""
        v_mov_b32 v20, s14
        s_lshl_b32 s{S_T0}, s{S_WI}, 5
        s_add_u32 s{S_T0}, s{S_T0}, {WS_STAMP - 8192}
        v_mov_b32 v10, 0
        buffer_store_dwordx4 v[20:23], v10, {WSD}, s{S_T0} offen
        buffer_store_dwordx2 v[24:25], v10, {WSD}, s{S_T0} offen offset:16
        """)


def pstamp(g, opt, i):
    if opt.get("tst") and 4 <= i <= 7:
        g(f"s_memrealtime s[88:89]\ns_waitcnt lgkmcnt(0)\ns_mov_b32 s{86+i}, s88")
    if not opt.get("pst"): return
    g(f"""
    s_memrealtime s[88:89]
    s_lshl_b32 s96, s{S_XCC}, 5
    s_add_u32 s96, s96, s{S_TK}
    s_sub_u32 s96, s96, 32
    s_lshl_b32 s96, s96, 6
    s_add_u32 s96, s96, s{S_SEG}
    s_lshl_b32 s96, s96, 6
    s_add_u32 s96, s96, {96*MB + 4*i}
    s_waitcnt lgkmcnt(0)
    v_mov_b32 v18, s88
    v_mov_b32 v19, 0
    s_mov_b64 exec, 1
    buffer_store_dword v18, v19, {WSD}, s96 offen
    s_mov_b64 exec, -1
    s_waitcnt vmcnt(0)
    """)


def worker_init(g):
    g(f"""
    s_sub_u32 s{S_T0}, s{S_XCC}, 1
    s_min_u32 s{S_T1}, s{S_T0}, 4
    s_mul_i32 s{S_T1}, s{S_T1}, 5
    s_mul_i32 s{S_T2}, s{S_T0}, 20
    s_add_u32 s{S_T2}, s{S_T2}, s{S_T1}
    s_cmp_lt_u32 s{S_T0}, 4
    s_cselect_b32 s{S_T3}, 25, 20
    s_add_u32 s{S_WI}, s{S_T2}, s{S_TK}
    s_cmp_lt_u32 s{S_TK}, s{S_T3}
    s_cbranch_scc1 L_wi
    s_sub_u32 s{S_T1}, s{S_TK}, s{S_T3}
    s_sub_u32 s{S_T3}, 30, s{S_T3}
    s_mul_i32 s{S_WI}, s{S_T0}, 30
    s_sub_u32 s{S_WI}, s{S_WI}, s{S_T2}
    s_add_u32 s{S_WI}, s{S_WI}, s{S_T1}
    s_add_u32 s{S_WI}, s{S_WI}, 160
    s_cmp_lt_u32 s{S_T1}, s{S_T3}
    s_cbranch_scc1 L_wi
    s_lshl_b32 s{S_WI}, s{S_T0}, 1
    s_add_u32 s{S_WI}, s{S_WI}, s{S_TK}
    s_add_u32 s{S_WI}, s{S_WI}, {210 - 30}
    L_wi:
    """)


def worker_fill(g):
    g(f"""
    s_sub_u32 s{S_T0}, s{S_XCC}, 1
    """)
    g(f"""
    v_mov_b32 v11, 0
    v_mul_u32_u24 v10, 7, v0
    v_add_u32 v10, s{S_T0}, v10
    v_cmp_gt_u32 vcc, 64, v10
    v_lshlrev_b32 v10, 7, v10
    s_lshl_b32 s{S_T1}, s{S_TK}, 2
    s_add_u32 s{S_T1}, s{S_T1}, {WS_OF}
    v_mov_b32 v12, 0x40000000
    v_cndmask_b32 v10, v12, v10, vcc
    buffer_store_dword v11, v10, {WSD}, s{S_T1} offen sc1
    """)


def clear_flags(g, shift):
    g(f"""
    v_mov_b32 v11, 0
    v_mul_u32_u24 v10, {NROWG}, v0
    v_add_u32 v10, s{S_SEG}, v10
    v_cmp_gt_u32 vcc, 64, v10
    v_lshlrev_b32 v10, {shift}, v10
    v_mov_b32 v12, 0x40000000
    v_cndmask_b32 v10, v12, v10, vcc
    buffer_store_dword v11, v10, {WSD}, s{S_FA} offen sc1
    """)


def layernorm(g, seg, extra=None):
    X, T = 16, 80
    set_srd(g, P_X, 2 * MB)
    g(f"""
    v_lshrrev_b32 v1, 3, v0
    v_and_b32 v2, 7, v0
    v_lshlrev_b32 v3, 10, v1
    v_lshl_add_u32 v3, v2, 4, v3
    s_lshl_b32 s{S_T0}, s{seg}, 15
    """)
    for j in range(8):
        g(f"buffer_load_dwordx4 {v(T+4*j,4)}, v3, {WD}, s{S_T0} offen offset:{128*j}")
    if extra: extra[0]()
    g(f"""
    v_lshrrev_b32 v4, 1, v2
    v_lshlrev_b32 v4, 10, v4
    v_and_b32 v5, 1, v2
    v_lshl_add_u32 v4, v5, 9, v4
    v_lshl_add_u32 v4, v1, 4, v4
    s_add_u32 s{S_T0}, s{S_T0}, {WS_XN}
    s_mov_b32 s{S_T1}, 0xffff0000
    s_waitcnt vmcnt({extra[1] if extra else 0})
    """)
    for i in range(32):
        g(f"v_lshlrev_b32 v{X+2*i}, 16, v{T+i}\nv_and_b32 v{X+2*i+1}, s{S_T1}, v{T+i}")

    def reduce8(r):
        for m in ("quad_perm:[1,0,3,2]", "quad_perm:[2,3,0,1]", "row_half_mirror"):
            g(f"s_nop 1\nv_add_f32_dpp v{r}, v{r}, v{r} {m} row_mask:0xf bank_mask:0xf")

    g(f"v_pk_add_f32 v[6:7], {v(X,2)}, {v(X+2,2)}")
    for i in range(2, 32):
        g(f"v_pk_add_f32 v[6:7], v[6:7], {v(X+2*i,2)}")
    g("v_add_f32 v6, v6, v7")
    reduce8(6)
    g(f"v_mul_f32 v6, 0x3b000000, v6\nv_mov_b32 v8, 0\nv_mov_b32 v9, 0")
    for i in range(64):
        g(f"v_sub_f32 v7, v{X+i}, v6\nv_fmac_f32 v{8+(i&1)}, v7, v7")
    g("v_add_f32 v8, v8, v9")
    reduce8(8)
    g(f"""
    v_mul_f32 v8, 0x3b000000, v8
    v_cvt_pk_bf16_f32 v6, v6, v8
    v_and_b32 v8, s{S_T1}, v6
    v_lshlrev_b32 v6, 16, v6
    v_add_f32 v8, 0x3727c5ac, v8
    v_cvt_pk_bf16_f32 v8, v8, v8
    v_and_b32 v8, s{S_T1}, v8
    v_sqrt_f32 v8, v8
    s_nop 0
    v_cvt_pk_bf16_f32 v8, v8, v8
    v_and_b32 v8, s{S_T1}, v8
    v_rcp_f32 v8, v8
    """)
    for i in range(32):
        p = X + 2 * i
        g(f"""
        v_sub_f32 v{p}, v{p}, v6
        v_sub_f32 v{p+1}, v{p+1}, v6
        v_cvt_pk_bf16_f32 v{p}, v{p}, v{p+1}
        v_and_b32 v{p+1}, s{S_T1}, v{p}
        v_lshlrev_b32 v{p}, 16, v{p}
        v_mul_f32 v{p}, v{p}, v8
        v_mul_f32 v{p+1}, v{p+1}, v8
        v_cvt_pk_bf16_f32 v{T+i}, v{p}, v{p+1}
        """)
        if i % 4 == 3:
            g(f"buffer_store_dwordx4 {v(T+i-3,4)}, v4, {WSD}, s{S_T0} offen sc1\ns_add_u32 s{S_T0}, s{S_T0}, 4096")


def load_w32(g, mats, stride, touch, hooks={}, late={}, strict={}):
    DM, RT, RN = 13, 14, 15
    g(f"""
    v_and_b32 v4, 63, v0
    v_lshrrev_b32 v5, 4, v4
    v_and_b32 v6, 15, v4
    v_lshlrev_b32 v7, 2, v5
    v_xor_b32 v6, v6, v7
    v_lshlrev_b32 v{DM}, 4, v6
    s_lshl_b32 s{S_T0}, s{S_WAVE}, 4
    v_add_u32 v6, s{S_T0}, v5
    v_mul_u32_u24 v6, {stride}, v6
    v_add3_u32 v{DM}, v{DM}, v6, s{S_COL}
    v_bfe_u32 v6, v4, 2, 2
    v_xor_b32 v7, s{S_WAVE}, v6
    v_lshlrev_b32 v7, 6, v7
    v_lshl_add_u32 v7, v6, 8, v7
    v_lshrrev_b32 v6, 5, v4
    v_lshl_add_u32 v7, v6, 11, v7
    v_add_u32 v7, {RING}, v7
    v_and_b32 v5, 1, v5
    v_and_b32 v6, 3, v4
    v_lshl_add_u32 v{RN}, v5, 5, v7
    v_lshl_add_u32 v{RN}, v6, 3, v{RN}
    v_lshl_add_u32 v{RT}, v5, 4, v7
    v_and_b32 v6, 1, v4
    v_lshl_add_u32 v{RT}, v6, 3, v{RT}
    v_bfe_u32 v6, v4, 1, 1
    v_lshl_add_u32 v{RT}, v6, 5, v{RT}
    s_lshl_b32 s{S_T3}, s{S_WAVE}, 12
    s_add_u32 s{S_T3}, s{S_T3}, {RING}
    """)
    if touch is not None:
        g(f"""
        s_mul_i32 s{S_T1}, s{S_SEG}, 104
        s_mul_i32 s{S_T2}, s{S_WAVE}, 26
        s_add_u32 s{S_T1}, s{S_T1}, s{S_T2}
        v_lshrrev_b32 v5, 1, v4
        v_min_u32 v5, 25, v5
        v_add_u32 v5, s{S_T1}, v5
        v_mul_u32_u24 v5, {stride}, v5
        v_and_b32 v6, 1, v4
        v_lshl_add_u32 v5, v6, 7, v5
        """)
        for m in mats:
            set_srd(g, m[0], m[1])
            g(f"buffer_load_dword v127, v5, {WD}, s{S_COL} offen {touch}")
    stages = [(m, S) for m in mats for S in range(8)]

    def issue(i):
        m, S = stages[i]
        if S == 0: set_srd(g, m[0], m[1])
        for x in range(4):
            g(f"s_add_u32 m0, s{S_T3}, {(i % 4) * 16384 + x * 1024}\ns_mov_b32 s{S_T0}, {(64 * S + 4 * x) * stride}")
            g(f"buffer_load_dwordx4 v{DM}, {WD}, s{S_T0} offen lds")

    for i in range(3): issue(i)
    for i, (m, S) in enumerate(stages):
        g(f"s_waitcnt vmcnt({strict.get(i, 4 * min(2, len(stages) - 1 - i))}) lgkmcnt(0)\ns_barrier")
        if i in hooks: hooks[i]()
        if i + 3 < len(stages): issue(i + 3)
        if i in late: late[i]()
        for ks in range(4):
            for x in range(2):
                g(f"ds_read_b64_tr_b16 {rg(m[2], m[3] + 4*(4*S+ks) + 2*x, 2)}, v{RT if m[4] else RN} offset:{(i % 4)*16384 + ks*4096 + x*1024}")
    g("s_waitcnt lgkmcnt(0)")


def xn_dma():
    out = [[f"s_lshl_b32 s{S_T2}, s{S_NXT}, 15", f"s_add_u32 s{S_T2}, s{S_T2}, s{S_XO}"]]
    for hh in range(2):
        out[-1] += [f"s_add_u32 m0, s{S_LB}, {hh*4096}", f"s_add_u32 s{S_T1}, s{S_T2}, {hh*4096}"]
        for x in range(4):
            out[-1] += [f"buffer_load_dwordx4 v1, {WSD}, s{S_T1} offen offset:{x*1024} sc1 lds"]
            out.append([])
    out[-1] += [f"s_xor_b32 s{S_LB}, s{S_LB}, 32768"]
    return out


XF, ACC = 16, 32


def gemm_setup(g):
    g(f"""
    v_and_b32 v4, 63, v0
    v_lshlrev_b32 v1, 4, v4
    v_mov_b32 v2, v1
    s_lshl_b32 s{S_LB}, s{S_WAVE}, 13
    s_add_u32 s{S_XO}, s{S_LB}, {WS_XN}
    s_mov_b32 s{S_PREV}, -1
    s_mov_b32 s{S_NXT}, s{S_SEG}
    """)


def k_steps(g, mats, k0, k1, side=None, mid=None):
    rd = lambda ks: f"ds_read_b128 {v(XF+4*(ks%4),4)}, v2 offset:{ks*1024}"
    for ks in range(k0, k0 + 3): g(rd(ks))
    for ks in range(k0, k1):
        g(f"s_waitcnt lgkmcnt({min(2, k1-1-ks)})")
        for n_, (j, m) in enumerate(mats):
            w_, x_ = rg(m[2], m[3] + 4*ks, 4), v(XF + 4*(ks % 4), 4)
            g(mf32(ACC + 16*j, w_, x_, ks == 0) if m[4] else mf32(ACC + 16*j, x_, w_, ks == 0))
            if n_ == 0 and ks + 3 < k1: g(rd(ks + 3))
            if n_ == 1 and side:
                for x in side.pop(0): g(x)
        if mid and ks == 24: mid()


def gemm_loop(g, tag, mats, stores, epilogue, flags):
    g(f"L_{tag}_seg:")
    m0 = g.mark()
    g(f"s_add_u32 s{S_NXT}, s{S_SEG}, {NROWG}\ns_waitcnt vmcnt(0)\ns_barrier")

    def mid():
        g(f"s_cmp_lt_i32 s{S_PREV}, 0\ns_cbranch_scc1 L_{tag}_nf\ns_waitcnt vmcnt(8)\ns_barrier")
        set_flag(g, f"{tag}_nf", S_PREV)
    k_steps(g, list(enumerate(mats)), 0, 32, [[x] for x in stores] + xn_dma(), mid if flags else None)
    g("v_xor_b32 v2, 0x8000, v2\ns_nop 7\ns_nop 1")
    epilogue()
    if flags: g(f"s_lshl_b32 s{S_PREV}, s{S_SEG}, 2\ns_add_u32 s{S_PREV}, s{S_PREV}, s{S_FA}")
    g(f"s_mov_b32 s{S_SEG}, s{S_NXT}\ns_cmp_lt_u32 s{S_SEG}, {NSEG}\ns_cbranch_scc1 L_{tag}_seg")
    bad = hazard.check(g.lines[m0:] + g.lines[m0:m0 + 40], tag)
    for x in stores: g(x)
    count_up(g, f"{tag}_done", DBG_ADONE)
    if flags: set_flag(g, f"{tag}_lf", S_PREV)
    return bad


def tile_addr(g, dst, tshift):
    g(f"""
    v_bfe_u32 v5, v0, 4, 1
    v_mul_u32_u24 v{dst}, {tshift}, v5
    v_bfe_u32 v5, v0, 5, 1
    v_lshl_add_u32 v{dst}, v5, 8, v{dst}
    v_and_b32 v5, 15, v0
    v_lshl_add_u32 v{dst}, v5, 4, v{dst}
    s_lshl_b32 s{S_T0}, s{S_WAVE}, 10
    v_add_u32 v{dst}, s{S_T0}, v{dst}
    """)


def qkv_role(g, opt):
    mats = [(P_WK, 4*MB, "a", 0, 1), (P_WV, 4*MB, "a", 128, 0), (P_WQ, 4*MB, "v", 128, 1)]
    m0 = g.mark()
    g(f"""
    s_mul_i32 s{S_HD}, s{S_WI}, 52429
    s_lshr_b32 s{S_HD}, s{S_HD}, 18
    s_mul_i32 s{S_T0}, s{S_HD}, {NROWG}
    s_sub_u32 s{S_SEG}, s{S_WI}, s{S_T0}
    s_lshl_b32 s{S_COL}, s{S_HD}, 8
    s_add_u32 s{S_FA}, s{S_COL}, {WS_FLAGS}
    """)
    wstamp(g, opt, 0)
    if opt.get("pf4"):
        set_srd(g, P_WO, 4 * MB)
        g(f"v_min_u32 v126, 207, v0\nv_lshlrev_b32 v126, 7, v126\ns_mul_i32 s{S_T2}, s{S_WI}, {208*128}\nbuffer_load_dword v127, v126, {WD}, s{S_T2} offen")
        if opt["pf4"] == 2: g("s_waitcnt vmcnt(0)")
        for m_ in opt.get("pf5", ""):
            if m_ == "w": g("s_waitcnt vmcnt(0)"); continue
            set_srd(g, {"k": P_WK, "v": P_WV, "q": P_WQ}[m_], 4 * MB)
            g(f"buffer_load_dword v127, v126, {WD}, s{S_T2} offen")
    worker_fill(g)
    clear_flags(g, 2)
    for _ in range(opt.get("xq", 0)): g("s_sleep 37")
    gemm_setup(g)
    tile_addr(g, 8, 4096)
    g(f"""
    v_bfe_u32 v5, v0, 4, 1
    v_lshlrev_b32 v9, 10, v5
    v_bfe_u32 v5, v0, 5, 1
    v_lshl_add_u32 v9, v5, 9, v9
    v_and_b32 v5, 15, v0
    v_lshl_add_u32 v9, v5, 4, v9
    s_lshl_b32 s{S_T0}, s{S_WAVE}, 11
    s_add_u32 s{S_T0}, s{S_T0}, 8192
    v_add_u32 v9, s{S_T0}, v9
    v_lshlrev_b32 v3, 4, v0
    v_mov_b64 v[104:105], s[{S_SENT}:{S_SENT+1}]
    v_mov_b64 v[106:107], s[{S_SENT}:{S_SENT+1}]
    """)
    P = 80

    def epi(parts="akq"):
        if "a" in parts: g(f"""
        s_lshl_b32 s{S_O1}, s{S_SEG}, 5
        s_add_u32 s{S_O1}, s{S_O1}, s{S_HD}
        s_lshl_b32 s{S_O3}, s{S_O1}, 12
        s_add_u32 s{S_O3}, s{S_O3}, {WS_PUB}
        s_lshl_b32 s{S_O2}, s{S_O1}, 13
        s_add_u32 s{S_O2}, s{S_O2}, {WS_Q}
        s_lshl_b32 s{S_O1}, s{S_O1}, 14
        s_add_u32 s{S_O1}, s{S_O1}, {WS_KV}
        """)
        for rho in range(2 if "k" in parts else 0):
            for x in range(4): g(f"v_cvt_pk_bf16_f32 v{P+4*rho+x}, v{ACC+8*rho+x}, v{ACC+8*rho+4+x}")
        for be in range(2 if "k" in parts else 0):
            for ri in range(4):
                r = ACC + 16 + 8*(ri & 1) + 4*(ri >> 1) + 2*be
                g(f"v_cvt_pk_bf16_f32 v{P+8+4*be+ri}, v{r}, v{r+1}")
        for rho in range(2 if "q" in parts else 0):
            for x in range(4): g(f"v_cvt_pk_bf16_f32 v{P+16+4*rho+x}, v{ACC+32+8*rho+x}, v{ACC+32+8*rho+4+x}")

    stores = ([f"buffer_store_dwordx4 {v(80+4*x,4)}, v8, {WSD}, s{S_O1} offen offset:{512*x} sc1" for x in range(2)] +
              [f"buffer_store_dwordx4 {v(88+4*x,4)}, v9, {WSD}, s{S_O1} offen offset:{256*x} sc1" for x in range(2)] +
              [f"buffer_store_dwordx4 v[104:107], v3, {WSD}, s{S_O3} offen sc1"] +
              [f"buffer_store_dwordx4 {v(96+4*x,4)}, v8, {WSD}, s{S_O2} offen offset:{512*x} sc1" for x in range(2)])
    em = list(enumerate(mats))

    def stage_x():
        spin_counter(g, "qkv_ln", DBG_LN, 64)
        for x in sum(xn_dma(), []): g(x)

    def hand_over():
        k_steps(g, em[:2], 28, 32)
        g("s_nop 3")
        epi("ak")
        for x in stores[:5]: g(x)

    def flag_first():
        g(f"s_lshl_b32 s{S_T1}, s{S_SEG}, 2\ns_add_u32 s{S_T1}, s{S_T1}, s{S_FA}")
        set_flag(g, "qkv_ff", S_T1)
        g(f"s_mov_b32 s{S_O1}, 0x40000000\ns_mov_b32 s{S_O3}, 0x40000000")

    def next_x():
        g(f"s_add_u32 s{S_NXT}, s{S_SEG}, {NROWG}")
        for x in sum(xn_dma(), []): g(x)
    sx = opt.get("sx", 10)
    hooks = {0: lambda: count_up(g, "qkv_in", DBG_INIT, False), sx: stage_x, 16: hand_over, 17: flag_first, 20: next_x}
    cuts = {8: (0, 8, 16, 20, 24, 28), 9: (0, 8, 16, 24, 28), 10: (0, 10, 20, 28), 11: (0, 14, 28)}[sx]
    late = {sx + 3 + j: (lambda a_=cuts[j], b_=cuts[j + 1]: k_steps(g, em[:2], a_, b_)) for j in range(len(cuts) - 1)}
    for i in range(17, 24): late[i] = lambda i=i: k_steps(g, em[2:], 4 * (i - 17), 4 * (i - 16))
    load_w32(g, mats, 8192, None, hooks, late, {17: 4})
    wstamp(g, opt, 1)
    k_steps(g, em[2:], 28, 32)
    g(f"v_xor_b32 v2, 0x8000, v2\ns_mov_b32 s{S_SEG}, s{S_NXT}\ns_nop 7\ns_nop 1")
    epi("q")
    bad = hazard.check(g.lines[m0:], "qkv prologue")
    return bad + gemm_loop(g, "qkv", mats, stores, epi, True)


def ffn_role(g, opt):
    mats = [(P_WG, 512*2752, "a", 0, 1), (P_WU, 512*2752, "a", 128, 1)]
    m0 = g.mark()
    g(f"""
    s_sub_u32 s{S_O1}, s{S_WI}, 160
    s_mul_i32 s{S_HD}, s{S_O1}, 52429
    s_lshr_b32 s{S_HD}, s{S_HD}, 18
    s_mul_i32 s{S_T0}, s{S_HD}, {NROWG}
    s_sub_u32 s{S_SEG}, s{S_O1}, s{S_T0}
    s_lshl_b32 s{S_COL}, s{S_HD}, 8
    """)
    def pf2():
        g(f"v_lshlrev_b32 v126, 7, v0")
        if opt.get("pf3"):
            set_srd(g, P_WO, 4 * MB)
            g(f"s_lshr_b32 s{S_T2}, s{S_O1}, 1\ns_lshl_b32 s{S_T2}, s{S_T2}, 17\ns_and_b32 s{S_T3}, s{S_O1}, 1\ns_lshl_b32 s{S_T3}, s{S_T3}, 15")
            g(f"s_add_u32 s{S_T2}, s{S_T2}, s{S_T3}\ns_add_u32 s{S_T2}, s{S_T2}, 65536\nbuffer_load_dword v127, v126, {WD}, s{S_T2} offen")
            if opt["pf3"] == 2: g(f"s_sub_u32 s{S_T2}, s{S_T2}, 65536\nbuffer_load_dword v127, v126, {WD}, s{S_T2} offen")
        set_srd(g, P_WQ, 4 * MB)
        g(f"s_lshl_b32 s{S_T2}, s{S_O1}, 16")
        for x in range(2): g(f"buffer_load_dword v127, v126, {WD}, s{S_T2} offen\ns_add_u32 s{S_T2}, s{S_T2}, 32768")
    worker_fill(g)
    layernorm(g, S_O1, (pf2, 2 + opt.get("pf3", 0)) if opt.get("pf2") == 2 else None)
    count_up(g, "ffn_lnup", DBG_LN)
    count_up(g, "ffn_in", DBG_INIT, False)
    wstamp(g, opt, 0)
    if opt.get("pf2") == 1: pf2()
    for _ in range(opt.get("xf", 0)): g("s_sleep 37")
    g(f"s_cmp_ge_u32 s{S_HD}, 11\ns_cbranch_scc1 L_p3")
    load_w32(g, mats, 2752, opt.get("touch"))
    wstamp(g, opt, 1)
    tile_addr(g, 8, HM_SEG // 2)
    g(f"s_mov_b32 s{S_C0}, 0xffff0000\ns_mov_b32 s{S_C1}, 0xbdd2d3e8\ns_mov_b32 s{S_C2}, 0xc0135761")
    bad = hazard.check(g.lines[m0:], "ffn prologue")

    def epi():
        P, T = 80, 96
        U = ACC + 16
        g(f"""
        s_mul_i32 s{S_O1}, s{S_SEG}, {HM_SEG}
        s_lshl_b32 s{S_T0}, s{S_HD}, 12
        s_add_u32 s{S_O1}, s{S_O1}, s{S_T0}
        s_add_u32 s{S_O1}, s{S_O1}, {WS_HMID}
        v_mov_b32 v{T+16}, s{S_C2}
        """)

        def rnd(x, y):
            g(f"v_cvt_pk_bf16_f32 v{x}, v{x}, v{y}\nv_and_b32 v{y}, s{S_C0}, v{x}\nv_lshlrev_b32 v{x}, 16, v{x}")
        for rho in range(2):
            idx = [8*rho + i for i in range(8)]
            for x in range(4):
                rnd(ACC + 8*rho + x, ACC + 8*rho + 4 + x); rnd(U + 8*rho + x, U + 8*rho + 4 + x)
            for i in idx: g(f"v_mul_f32 v{T+i}, v{ACC+i}, v{ACC+i}")
            for i in idx: g(f"v_fma_f32 v{T+i}, v{T+i}, s{S_C1}, v{T+16}")
            for i in idx: g(f"v_mul_f32 v{T+i}, v{T+i}, v{ACC+i}")
            for i in idx: g(f"v_exp_f32 v{T+i}, v{T+i}")
            for i in idx: g(f"v_add_f32 v{T+i}, 1.0, v{T+i}")
            for i in idx: g(f"v_rcp_f32 v{T+i}, v{T+i}")
            for i in idx: g(f"v_mul_f32 v{ACC+i}, v{ACC+i}, v{T+i}")
            for x in range(4): rnd(ACC + 8*rho + x, ACC + 8*rho + 4 + x)
            for i in idx: g(f"v_mul_f32 v{ACC+i}, v{ACC+i}, v{U+i}")
            for x in range(4): g(f"v_cvt_pk_bf16_f32 v{P+4*rho+x}, v{ACC+8*rho+x}, v{ACC+8*rho+4+x}")

    stores = [f"buffer_store_dwordx4 {v(80+4*x,4)}, v8, {WSD}, s{S_O1} offen offset:{512*x} sc1" for x in range(2)]
    gemm_setup(g)
    g(f"s_mov_b32 s{S_O1}, 0x40000000")
    spin_counter(g, "ffn_ln", DBG_LN, 64)
    for x in sum(xn_dma(), []): g(x)
    return bad + gemm_loop(g, "ffn", mats, stores, epi, False)


def p3_role(g, opt):
    LN16, KPA, RWA, RRA, XA, KMW, KMR, VMW, VMR, HFA, OFA = 1, 2, 3, 4, 5, 6, 7, 8, 9, 12, 13
    GV, XV = 14, 16
    ACC, SC, PB, OA, KM, VM = 20, 28, 44, 52, 68, 84
    ST = 92
    WDR = 168
    L_RED, L_KM, L_VM = 0, 8192, 12288
    S_TH, S_SCL, S_QO, S_KO, S_PO, S_HO = S_HD, S_C1, S_O1, S_O2, S_FA, S_PREV
    st = opt.get("st", "")
    sto = opt.get("sto", st)
    S_OB = S_LB
    m0 = g.mark()
    DM, RA = 1, 2
    g(f"""
    s_lshr_b32 s{S_TH}, s{S_TK}, 4
    s_and_b32 s{S_COL}, s{S_TK}, 15
    s_lshl_b32 s{S_COL}, s{S_COL}, 6
    v_and_b32 v4, 63, v0
    v_lshrrev_b32 v5, 4, v4
    v_bfe_u32 v6, v4, 2, 2
    v_and_b32 v7, 1, v6
    v_lshlrev_b32 v{DM}, 4, v7
    v_lshl_add_u32 v{DM}, v5, 2, v{DM}
    v_lshrrev_b32 v7, 1, v6
    v_add_u32 v{DM}, v{DM}, v7
    v_lshlrev_b32 v{DM}, 10, v{DM}
    v_and_b32 v7, 1, v5
    v_lshlrev_b32 v7, 1, v7
    v_and_b32 v8, 3, v4
    v_xor_b32 v8, v8, v7
    v_lshl_add_u32 v{DM}, v8, 4, v{DM}
    v_add_u32 v{DM}, s{S_COL}, v{DM}
    v_lshrrev_b32 v8, 2, v4
    v_lshlrev_b32 v{RA}, 6, v8
    v_lshl_add_u32 v{RA}, v7, 4, v{RA}
    v_and_b32 v8, 3, v4
    v_lshl_add_u32 v{RA}, v8, 3, v{RA}
    s_lshl_b32 s{S_T3}, s{S_WAVE}, 15
    v_add_u32 v{RA}, s{S_T3}, v{RA}
    v_xor_b32 v{RA+1}, 32, v{RA}
    s_lshl_b32 s{S_T1}, s{S_WAVE}, 20
    s_mul_i32 s{S_T2}, s{S_WAVE}, {11*32768}
    """)
    steps = [("o", k) for k in range(32)] + [("d", k) for k in range(11)]
    AH = 12

    def issue(i):
        m, k = steps[i]
        if k == 0: set_srd(g, P_WO if m == "o" else P_WD, 4*MB if m == "o" else 1376*1024)
        for x in range(2):
            g(f"s_add_u32 m0, s{S_T3}, {(i % 16)*2048 + x*1024}\ns_add_u32 s{S_T0}, s{S_T1 if m == 'o' else S_T2}, {k*32768 + x*2048}")
            g(f"buffer_load_dwordx4 v{DM}, {WD}, s{S_T0} offen lds")

    wreg = lambda m, k, t, o=0, n=4: a(8*k + 4*t + o, n) if m == "o" else v(WDR + 8*k + 4*t + o, n)
    for i in range(AH): issue(i)
    for i, (m, k) in enumerate(steps):
        g(f"s_waitcnt vmcnt({2*min(AH - 1, len(steps) - 1 - i)}) lgkmcnt(8)")
        if i + AH < len(steps): issue(i + AH)
        for t in range(2):
            for x in range(2):
                g(f"ds_read_b64_tr_b16 {wreg(m, k, t, 2*x, 2)}, v{RA+t} offset:{(i % 16)*2048 + x*1024}")
    g("s_waitcnt lgkmcnt(0)\ns_barrier")
    g(f"""
    v_and_b32 v20, 63, v0
    v_lshrrev_b32 v21, 4, v20
    v_and_b32 v22, 15, v20
    v_lshlrev_b32 v{LN16}, 4, v20
    v_bfe_u32 v23, v22, 1, 1
    v_lshlrev_b32 v{KPA}, 3, v23
    v_lshrrev_b32 v23, 2, v22
    v_lshl_add_u32 v{KPA}, v23, 1, v{KPA}
    v_and_b32 v24, 1, v22
    v_add_u32 v{KPA}, v{KPA}, v24
    v_lshl_add_u32 v{KPA}, v21, 4, v{KPA}
    v_lshlrev_b32 v{KPA}, 4, v{KPA}
    v_lshl_add_u32 v{KMR}, v23, 1, v24
    v_lshlrev_b32 v{KMR}, 4, v{KMR}
    v_mul_u32_u24 v24, 144, v21
    v_add_u32 v{KMR}, v{KMR}, v24
    v_add_u32 v{KMR}, {L_KM}, v{KMR}
    v_mul_u32_u24 v{KMW}, 144, v23
    v_lshl_add_u32 v{KMW}, v21, 5, v{KMW}
    v_and_b32 v24, 3, v22
    v_lshl_add_u32 v{KMW}, v24, 2, v{KMW}
    s_mul_i32 s{S_T0}, s{S_WAVE}, 576
    s_add_u32 s{S_T0}, s{S_T0}, {L_KM}
    v_add_u32 v{KMW}, s{S_T0}, v{KMW}
    v_lshlrev_b32 v{VMW}, 3, v0
    v_add_u32 v{VMW}, {L_VM}, v{VMW}
    s_lshr_b32 s{S_T0}, s{S_WAVE}, 1
    s_lshl_b32 s{S_T0}, s{S_T0}, 10
    s_add_u32 s{S_T0}, s{S_T0}, {L_VM}
    v_lshlrev_b32 v{VMR}, 3, v20
    v_add_u32 v{VMR}, s{S_T0}, v{VMR}
    s_lshl_b32 s{S_T0}, s{S_WAVE}, 11
    v_and_b32 v24, 7, v22
    v_xor_b32 v24, v24, v21
    v_lshlrev_b32 v{RWA}, 7, v22
    v_lshl_add_u32 v{RWA}, v24, 4, v{RWA}
    v_add_u32 v{RWA}, s{S_T0}, v{RWA}
    v_xor_b32 v{HFA}, 64, v{RWA}
    v_lshlrev_b32 v{RRA}, 3, v0
    v_lshrrev_b32 v24, 4, v0
    v_and_b32 v25, 7, v24
    v_lshlrev_b32 v25, 4, v25
    v_xor_b32 v{RRA}, v{RRA}, v25
    v_lshlrev_b32 v{XA}, 10, v24
    v_lshl_add_u32 v{XA}, v22, 2, v{XA}
    s_lshl_b32 s{S_T0}, s{S_TH}, 14
    s_add_u32 s{S_T0}, s{S_T0}, s{S_COL}
    v_add_u32 v{XA}, s{S_T0}, v{XA}
    v_and_b32 v{OFA}, 7, v20
    s_lshl_b32 s{S_T0}, s{S_WAVE}, 3
    v_add_u32 v{OFA}, s{S_T0}, v{OFA}
    v_lshlrev_b32 v{OFA}, 2, v{OFA}
    s_and_b32 s{S_T0}, s{S_WAVE}, 1
    s_lshl_b32 s{S_T0}, s{S_T0}, 4
    v_add_u32 v22, s{S_T0}, v22
    v_lshlrev_b32 v21, 1, v21
    v_sub_u32 v22, v22, v21
    """)
    for T in range(2):
        for r in range(4):
            g(f"v_cmp_le_i32 s[{S_MK+2*(4*T+r)}:{S_MK+2*(4*T+r)+1}], {16*T + 8*(r >> 1) + (r & 1)}, v22")
    g(f"""
    s_mov_b32 s{S_OUT}, s{P_OUT}
    s_mov_b32 s{S_OUT+1}, s{P_OUT+1}
    s_mov_b32 s{S_OUT+2}, {2*MB}
    s_mov_b32 s{S_OUT+3}, 0x20000
    s_mov_b32 s{S_SCL}, 0x3db504f3
    s_mov_b32 s{S_C0}, 0xffff0000
    s_mov_b32 s{S_C2}, 0xbfb8aa3b
    s_sub_u32 s{S_SEG}, s{S_XCC}, 1
    s_lshl_b32 s{S_OB}, s{S_SEG}, 1
    v_mov_b32 v{PB+5}, 0
    v_mov_b32 v{PB+6}, 0
    """)
    set_srd(g, P_X, 2 * MB)
    spin_counter(g, "p3_init", DBG_INIT, 224)
    spin_counter(g, "p3_adone", DBG_ADONE, 215, 32)
    bad = hazard.check(g.lines[m0:], "p3 prologue")

    def reduce(dst):
        g("s_nop 7")
        for t in range(2): g(f"ds_write_b128 v{HFA if t else RWA}, {v(ACC+4*t,4)} offset:{L_RED}")
        g("s_waitcnt lgkmcnt(0)\ns_barrier")
        for x in range(4): g(f"ds_read_b64 {v(ACC+2*x,2)}, v{RRA} offset:{L_RED + 2048*x}")
        g(f"""
        s_waitcnt lgkmcnt(0)
        v_pk_add_f32 {v(ACC,2)}, {v(ACC,2)}, {v(ACC+2,2)}
        v_pk_add_f32 {v(ACC+4,2)}, {v(ACC+4,2)}, {v(ACC+6,2)}
        v_pk_add_f32 {v(ACC,2)}, {v(ACC,2)}, {v(ACC+4,2)}
        v_cvt_pk_bf16_f32 v{dst}, v{ACC}, v{ACC+1}
        v_and_b32 v{dst+1}, s{S_C0}, v{dst}
        v_lshlrev_b32 v{dst}, 16, v{dst}
        """)

    wstamp(g, opt, 3)
    g("L_p3_seg:")
    m1 = g.mark()
    pstamp(g, opt, 0)
    QR_, KR_, VR_, HM = ST, ST + 16, ST + 48, SC
    g(f"""
    s_lshl_b32 s{S_T0}, s{S_SEG}, 1
    s_add_u32 s{S_T0}, s{S_T0}, s{S_TH}
    s_mul_i32 s{S_HO}, s{S_T0}, {HM_SEG // 2}
    s_mul_i32 s{S_T1}, s{S_WAVE}, {11*1024}
    s_add_u32 s{S_HO}, s{S_HO}, s{S_T1}
    s_add_u32 s{S_HO}, s{S_HO}, {WS_HMID}
    s_cmp_eq_u32 s{S_WAVE}, 3
    s_cselect_b32 s{S_T1}, 0x40000000, 0
    """)
    for k in range(11):
        if k == 10: g(f"s_add_u32 s{S_HO}, s{S_HO}, s{S_T1}")
        g(f"buffer_load_dwordx4 {v(HM+4*k,4)}, v{LN16}, {WSD}, s{S_HO} offen offset:{(k & 3)*1024} sc1")
        if k & 3 == 3: g(f"s_add_u32 s{S_HO}, s{S_HO}, 4096")
    g(f"s_lshl_b32 s{S_XO}, s{S_SEG}, 15\nbuffer_load_dword v{XV}, v{XA}, {WD}, s{S_XO} offen")
    g(f"""
    s_lshl_b32 s{S_T0}, s{S_SEG}, 5
    s_add_u32 s{S_T0}, s{S_T0}, s{S_TK}
    s_lshl_b32 s{S_QO}, s{S_T0}, 13
    s_and_b32 s{S_T1}, s{S_WAVE}, 1
    s_lshl_b32 s{S_T1}, s{S_T1}, 12
    s_add_u32 s{S_QO}, s{S_QO}, s{S_T1}
    s_add_u32 s{S_QO}, s{S_QO}, {WS_Q}
    s_lshl_b32 s{S_KO}, s{S_T0}, 14
    s_add_u32 s{S_KO}, s{S_KO}, {WS_KV}
    s_lshl_b32 s{S_PO}, s{S_T0}, 2
    s_add_u32 s{S_PO}, s{S_PO}, s{S_WAVE}
    s_lshl_b32 s{S_PO}, s{S_PO}, 10
    s_add_u32 s{S_PO}, s{S_PO}, {WS_PUB}
    s_add_u32 s{S_T1}, s{S_KO}, 4096
    s_lshr_b32 s{S_T2}, s{S_WAVE}, 1
    s_lshl_b32 s{S_T2}, s{S_T2}, 12
    s_add_u32 s{S_T2}, s{S_T2}, s{S_KO}
    s_add_u32 s{S_T2}, s{S_T2}, 8192
    """)
    for x in range(4):
        g(f"buffer_load_dwordx4 {v(QR_+4*x,4)}, v{LN16}, {WSD}, s{S_QO} offen offset:{x*1024} sc1")
        g(f"buffer_load_dwordx4 {v(KR_+4*x,4)}, v{KPA}, {WSD}, s{S_KO} offen offset:{x*1024} sc1")
        g(f"buffer_load_dwordx4 {v(KR_+16+4*x,4)}, v{KPA}, {WSD}, s{S_T1} offen offset:{x*1024} sc1")
    for x in range(4):
        g(f"buffer_load_dwordx4 {v(VR_+4*x,4)}, v{LN16}, {WSD}, s{S_T2} offen offset:{x*1024} sc1")
    for k in range(11):
        g(f"s_waitcnt vmcnt({27-k})")
        for t in range(2): g(mf16(ACC + 4*t, wreg("d", k, t), v(HM + 4*k, 4), k == 0))
    reduce(GV)
    g(f"""
    v_mul_f32 v{ACC}, s{S_C2}, v{GV}
    v_mul_f32 v{ACC+1}, s{S_C2}, v{GV+1}
    v_exp_f32 v{ACC}, v{ACC}
    v_exp_f32 v{ACC+1}, v{ACC+1}
    s_nop 0
    v_add_f32 v{ACC}, 1.0, v{ACC}
    v_add_f32 v{ACC+1}, 1.0, v{ACC+1}
    v_rcp_f32 v{ACC}, v{ACC}
    v_rcp_f32 v{ACC+1}, v{ACC+1}
    s_waitcnt vmcnt(16)
    v_pk_mul_f32 {v(GV,2)}, {v(GV,2)}, {v(ACC,2)}
    v_cvt_pk_bf16_f32 v{GV}, v{GV}, v{GV+1}
    v_and_b32 v{GV+1}, s{S_C0}, v{GV}
    v_lshlrev_b32 v{GV}, 16, v{GV}
    v_and_b32 v{XV+1}, s{S_C0}, v{XV}
    v_lshlrev_b32 v{XV}, 16, v{XV}
    """)
    g(f"v_mov_b32 v{PB+5}, 0\nv_mov_b32 v{PB+6}, 0\nv_mov_b32 v10, 0")
    for x in range(4):
        g(f"s_waitcnt vmcnt({4 + 3*(3-x)})")
        for T in range(2): g(mf16(SC + 4*T, v(KR_ + 16*T + 4*x, 4), v(QR_ + 4*x, 4), x == 0))
    MX, MY = SC + 12, SC + 13
    def scale(x):
        for k_ in range(2):
            g(f"v_cvt_pk_bf16_f32 v{x}, v{x}, v{x+1}\nv_and_b32 v{x+1}, s{S_C0}, v{x}\nv_lshlrev_b32 v{x}, 16, v{x}")
            if k_ == 0: g(f"v_mul_f32 v{x}, s{S_SCL}, v{x}\nv_mul_f32 v{x+1}, s{S_SCL}, v{x+1}")
    g(f"v_mov_b32 v{MY}, 0xce6e0000\ns_nop 7")
    for i in range(4): scale(SC + 2 * i)
    for i in range(8): g(f"v_cndmask_b32 v{SC+i}, v{MY}, v{SC+i}, s[{S_MK+2*i}:{S_MK+2*i+1}]")
    g(f"v_max3_f32 v{MX}, v{SC}, v{SC+1}, v{SC+2}\nv_max3_f32 v{MX}, v{MX}, v{SC+3}, v{SC+4}\nv_max3_f32 v{MX}, v{MX}, v{SC+5}, v{SC+6}\nv_max_f32 v{MX}, v{MX}, v{SC+7}")
    pstamp(g, opt, 3)
    if opt.get("p1l"):
        g(f"""
        L_p3_one:
        buffer_load_dword v11, v10, {WSD}, s{S_PO} offen offset:{opt['p1l']} sc1
        s_add_u32 s{S_SPIN}, s{S_SPIN}, 1
        s_cmp_gt_u32 s{S_SPIN}, {SPIN_MAX}
        s_cbranch_scc1 L_p3_pub
        s_waitcnt vmcnt(0)
        v_cmp_eq_u32 vcc, s{S_SENT}, v11
        s_cbranch_vccz L_p3_pub
        s_cmp_ge_u32 s{S_SEG}, {NSEG - 2}
        s_cbranch_scc1 L_p3_one
        s_sleep {opt.get('psleep', 6)}
        s_branch L_p3_one
        """)
    g(f"""
    L_p3_pub:
    buffer_load_dwordx4 {v(OA,4)}, v{LN16}, {WSD}, s{S_PO} offen sc1
    s_add_u32 s{S_SPIN}, s{S_SPIN}, 1
    s_cmp_gt_u32 s{S_SPIN}, {SPIN_MAX}
    s_cbranch_scc1 L_p3_pub_out
    s_waitcnt vmcnt(0)
    v_max3_u32 v11, v{OA}, v{OA+1}, v{OA+2}
    v_max_u32 v11, v11, v{OA+3}
    v_cmp_eq_u32 vcc, s{S_SENT}, v11
    s_cbranch_vccz L_p3_pub_out
    s_cmp_ge_u32 s{S_SEG}, {NSEG - 2}
    s_cbranch_scc1 L_p3_pub
    s_sleep {opt.get('psleep', 6)}
    s_branch L_p3_pub
    L_p3_pub_out:
    s_waitcnt vmcnt(0)
    ds_write2_b32 v{KMW}, v{OA}, v{OA+1} offset0:0 offset1:4
    ds_write_b64 v{VMW}, {v(OA+2,2)}
    s_waitcnt lgkmcnt(0)
    s_barrier
    """)
    pstamp(g, opt, 4)
    for x in range(4): g(f"ds_read_b128 {v(KM+4*x,4)}, v{KMR} offset:{576*x}")
    for x in range(2): g(f"ds_read_b64 {v(VM+2*x,2)}, v{VMR} offset:{512*x}")
    for x in range(4):
        g(f"s_waitcnt lgkmcnt({5-x})")
        g(mf16(SC + 8, v(KM + 4*x, 4), v(QR_ + 4*x, 4), x == 0))
    g(f"""
    s_lshl_b32 s{S_T0}, s{S_OB}, 1
    s_and_b32 s{S_T1}, s{S_WAVE}, 1
    s_add_u32 s{S_T0}, s{S_T0}, s{S_T1}
    s_lshl_b32 s{S_T0}, s{S_T0}, 5
    s_add_u32 s{S_T0}, s{S_T0}, s{S_TK}
    s_lshl_b32 s{S_T0}, s{S_T0}, 2
    s_and_b32 s{S_T1}, s{S_WAVE}, 2
    s_add_u32 s{S_T0}, s{S_T0}, s{S_T1}
    s_lshl_b32 s{S_T0}, s{S_T0}, 10
    s_add_u32 s{S_T0}, s{S_T0}, {WS_O}
    """)
    scale(SC + 8)
    g(f"v_max3_f32 v{MX}, v{MX}, v{SC+8}, v{SC+9}")

    def cross(r, t, op):
        for sw in (16, 32):
            g(f"v_mov_b32 v{t}, v{r}\ns_nop 1\nv_permlane{sw}_swap_b32 v{r}, v{t}\n{op} v{r}, v{r}, v{t}")
    cross(MX, MY, "v_max_f32")
    g(f"v_mul_f32 v{MX}, s{S_C2}, v{MX}")
    for i in range(10): g(f"v_fma_f32 v{SC+i}, -v{SC+i}, s{S_C2}, v{MX}")
    for i in range(10): g(f"v_exp_f32 v{SC+i}, v{SC+i}")
    g(f"v_pk_add_f32 {v(MX,2)}, {v(SC,2)}, {v(SC+2,2)}\nv_pk_add_f32 {v(MX+2,2)}, {v(SC+4,2)}, {v(SC+6,2)}")
    g(f"v_pk_add_f32 {v(MX,2)}, {v(MX,2)}, {v(SC+8,2)}\nv_pk_add_f32 {v(MX,2)}, {v(MX,2)}, {v(MX+2,2)}\nv_add_f32 v{MX}, v{MX}, v{MY}")
    cross(MX, MY, "v_add_f32")
    g(f"v_rcp_f32 v{MX}, v{MX}\ns_waitcnt lgkmcnt(0)")
    for i in range(5): g(f"v_pk_mul_f32 {v(SC+2*i,2)}, {v(SC+2*i,2)}, {v(MX,2)} op_sel_hi:[1,0]")
    for ri in range(4):
        r = SC + 4*(ri & 1) + 2*(ri >> 1)
        g(f"v_cvt_pk_bf16_f32 v{PB+ri}, v{r}, v{r+1}")
    g(f"v_cvt_pk_bf16_f32 v{PB+4}, v{SC+8}, v{SC+9}\nv_cvt_pk_bf16_f32 v{PB+7}, v{SC+8}, v{SC+9}")
    for x in range(2):
        for e in (2*x, 2*x + 1): g(mf16(OA + 4*e, v(VR_ + 4*e, 4), v(PB, 4), True))
        for e in (2*x, 2*x + 1): g(f"v_mfma_f32_16x16x16_bf16 {v(OA+4*e,4)}, {v(VM+2*(e >> 1),2)}, {v(PB+4+2*(e & 1),2)}, {v(OA+4*e,4)}")
    for x in range(2):
        if x: g("s_nop 2")
        for r in range(4): g(f"v_cvt_pk_bf16_f32 v{KM+4*x+r}, v{OA+8*x+r}, v{OA+8*x+4+r}")
        g(f"buffer_store_dwordx4 {v(KM+4*x,4)}, v{LN16}, {WSD}, s{S_T0} offen offset:{x*1024} {sto}")
    g(f"""
    s_lshl_b32 s{S_T2}, s{S_SEG}, 7
    s_add_u32 s{S_T2}, s{S_T2}, {WS_OF}
    s_lshl_b32 s{S_T1}, s{S_TK}, 2
    s_add_u32 s{S_T1}, s{S_T1}, s{S_T2}
    s_lshl_b32 s{S_T0}, s{S_OB}, 1
    s_add_u32 s{S_T0}, s{S_T0}, s{S_TH}
    s_lshl_b32 s{S_T0}, s{S_T0}, 2
    s_add_u32 s{S_T0}, s{S_T0}, s{S_WAVE}
    s_lshl_b32 s{S_T0}, s{S_T0}, 15
    s_add_u32 s{S_HO}, s{S_T0}, {WS_O}
    s_waitcnt vmcnt(0)
    s_barrier
    """)
    pstamp(g, opt, 5)
    set_flag(g, "p3_of", S_T1, st)
    spin_flags(g, "p3_ow", OFA, S_T2, 0)
    pstamp(g, opt, 6)
    NB = 16

    def old(k):
        g(f"buffer_load_dwordx4 {v(ST+4*(k % NB),4)}, v{LN16}, {WSD}, s{S_HO} offen offset:{(k & 3)*1024} sc1")
        if k & 3 == 3: g(f"s_add_u32 s{S_HO}, s{S_HO}, 4096")
    for k in range(NB): old(k)
    for k in range(32):
        g(f"s_waitcnt vmcnt({min(NB - 1, 31 - k)})")
        for t in range(2): g(mf16(ACC + 4*t, wreg("o", k, t), v(ST + 4*(k % NB), 4), k == 0))
        if k + NB < 32: old(k + NB)
    pstamp(g, opt, 7)
    reduce(SC)
    pstamp(g, opt, 8)
    g(f"""
    v_pk_mul_f32 {v(SC,2)}, {v(SC,2)}, {v(GV,2)}
    v_cvt_pk_bf16_f32 v{SC}, v{SC}, v{SC+1}
    v_and_b32 v{SC+1}, s{S_C0}, v{SC}
    v_lshlrev_b32 v{SC}, 16, v{SC}
    v_pk_add_f32 {v(SC,2)}, {v(SC,2)}, {v(XV,2)}
    v_cvt_pk_bf16_f32 v{SC}, v{SC}, v{SC+1}
    buffer_store_dword v{SC}, v{XA}, s[{S_OUT}:{S_OUT+3}], s{S_XO} offen {opt.get('ofl', '')}
    s_xor_b32 s{S_OB}, s{S_OB}, 1
    s_add_u32 s{S_SEG}, s{S_SEG}, 7
    s_cmp_lt_u32 s{S_SEG}, {NSEG}
    s_barrier
    s_cbranch_scc1 L_p3_seg
    """)
    bad += hazard.check(g.lines[m1:], "p3 loop")
    wstamp(g, opt, 4, True)
    if opt.get("dbgt"):
        g(f"s_cmp_lg_u32 s{S_WAVE}, 0\ns_cbranch_scc1 L_dt2\ns_cmp_lg_u32 s{S_XCC}, 1\ns_cbranch_scc1 L_dt2")
        dbg_time(g, opt, 6)
        g("L_dt2:")
    g("s_waitcnt vmcnt(0)\ns_endpgm")
    return bad


def worker_roles(g, opt):
    m0 = g.mark()
    worker_init(g)
    bad = hazard.check(g.lines[m0:], "worker init")
    g(f"s_cmp_ge_u32 s{S_WI}, 160\ns_cbranch_scc1 L_ffn")
    bad += qkv_role(g, opt)
    g("s_branch L_p3\nL_ffn:")
    bad += ffn_role(g, opt)
    g("L_p3:")
    wstamp(g, opt, 2)
    bad += p3_role(g, opt)
    return bad
```

```python
from asmlib import *
from layout import *
from chain import (S_WS, S_W, P_X, P_WQ, P_WK, P_WV, P_WO, P_WG, P_WU, P_WD, P_OUT, P_DBG, S_XCC, S_TK, S_WAVE,
                   S_T0, S_T1, S_T2, S_T3, SPIN_MAX, set_srd, S_SPIN, S_SENT, dbg_time)

WSD = f"s[{S_WS}:{S_WS+3}]"
WD = f"s[{S_W}:{S_W+3}]"
S_WI, S_COL, S_SEG, S_HD, S_NXT, S_XO, S_O1, S_O2, S_FA, S_PREV, S_LB, S_C0, S_C1, S_C2 = range(51, 65)
S_R, S_IT, S_O3 = 65, 66, 67
S_OUT = 68
S_MK = 72
RING = 65536
NROWG, NFFG, NTEAM = 5, 3, 6


def rg(f, b, n):
    return a(b, n) if f == "a" else v(b, n)


def mf32(d, x, y, first):
    return f"v_mfma_f32_32x32x16_bf16 {v(d,16)}, {x}, {y}, " + ("0" if first else v(d, 16))


def mf16(d, x, y, first):
    return f"v_mfma_f32_16x16x32_bf16 {v(d,4)}, {x}, {y}, " + ("0" if first else v(d, 4))


def spin_counter(g, tag, off, target, sleep=8):
    g(f"""
    s_cmp_lg_u32 s{S_WAVE}, 0
    s_cbranch_scc1 L_{tag}_out
    v_mov_b32 v10, {off}
    L_{tag}:
    global_load_dword v11, v10, s[{P_DBG}:{P_DBG+1}] sc1
    s_add_u32 s{S_SPIN}, s{S_SPIN}, 1
    s_cmp_gt_u32 s{S_SPIN}, {SPIN_MAX}
    s_waitcnt vmcnt(0)
    s_cbranch_scc1 L_{tag}_out
    v_cmp_gt_u32 vcc, {target}, v11
    s_cbranch_vccz L_{tag}_out
    s_sleep {sleep}
    s_branch L_{tag}
    L_{tag}_out:
    s_barrier
    """)


def spin_flags(g, tag, vaddr, soff, sleep=1):
    g(f"""
    L_{tag}:
    buffer_load_dword v11, v{vaddr}, {WSD}, s{soff} offen sc1
    s_add_u32 s{S_SPIN}, s{S_SPIN}, 1
    s_cmp_gt_u32 s{S_SPIN}, {SPIN_MAX}
    s_cbranch_scc1 L_{tag}_out
    s_waitcnt vmcnt(0)
    v_cmp_ne_u32 vcc, 1, v11
    s_cbranch_vccz L_{tag}_out
    {f's_sleep {sleep}' if sleep else ''}
    s_branch L_{tag}
    L_{tag}_out:
    s_waitcnt vmcnt(0)
    """)


def count_up(g, tag, off, wait=True, by=1):
    if wait: g("s_waitcnt vmcnt(0)\ns_barrier")
    g(f"""
    s_cmp_lg_u32 s{S_WAVE}, 0
    s_cbranch_scc1 L_{tag}
    v_mov_b32 v10, {off}
    v_mov_b32 v11, {by}
    s_mov_b64 exec, 1
    global_atomic_add v10, v11, s[{P_DBG}:{P_DBG+1}]
    s_mov_b64 exec, -1
    L_{tag}:
    """)


def set_flag(g, tag, soff, st="sc1"):
    g(f"""
    s_cmp_lg_u32 s{S_WAVE}, 0
    s_cbranch_scc1 L_{tag}
    v_mov_b32 v10, 0
    v_mov_b32 v11, 1
    s_mov_b64 exec, 1
    buffer_store_dword v11, v10, {WSD}, s{soff} offen {st}
    s_mov_b64 exec, -1
    L_{tag}:
    """)


def wstamp(g, opt, i, dump=False):
    if not opt.get("count"): return
    g(f"s_waitcnt vmcnt(0)" if dump else "")
    g(f"s_memrealtime s[88:89]\ns_waitcnt lgkmcnt(0)\ns_mov_b32 s{90+i}, s88")
    if dump:
        for k in range(5): g(f"v_mov_b32 v{21+k}, s{90+k}")
        g(f"""
        v_mov_b32 v20, s14
        s_lshl_b32 s{S_T0}, s{S_WI}, 5
        s_add_u32 s{S_T0}, s{S_T0}, {WS_STAMP - 8192}
        v_mov_b32 v10, 0
        buffer_store_dwordx4 v[20:23], v10, {WSD}, s{S_T0} offen
        buffer_store_dwordx2 v[24:25], v10, {WSD}, s{S_T0} offen offset:16
        """)


def pstamp(g, opt, i):
    if opt.get("tst") and 4 <= i <= 7:
        g(f"s_memrealtime s[88:89]\ns_waitcnt lgkmcnt(0)\ns_mov_b32 s{86+i}, s88")
    if not opt.get("pst"): return
    g(f"""
    s_memrealtime s[88:89]
    s_lshl_b32 s96, s{S_XCC}, 5
    s_add_u32 s96, s96, s{S_TK}
    s_sub_u32 s96, s96, 32
    s_lshl_b32 s96, s96, 6
    s_add_u32 s96, s96, s{S_SEG}
    s_lshl_b32 s96, s96, 6
    s_add_u32 s96, s96, {96*MB + 4*i}
    s_waitcnt lgkmcnt(0)
    v_mov_b32 v18, s88
    v_mov_b32 v19, 0
    s_mov_b64 exec, 1
    buffer_store_dword v18, v19, {WSD}, s96 offen
    s_mov_b64 exec, -1
    s_waitcnt vmcnt(0)
    """)


def worker_init(g):
    g(f"""
    s_add_u32 s{S_WI}, s{S_TK}, 192
    s_cmp_eq_u32 s{S_XCC}, 1
    s_cbranch_scc1 L_wi
    s_sub_u32 s{S_T0}, s{S_XCC}, 2
    s_min_u32 s{S_T1}, s{S_T0}, 2
    s_mul_i32 s{S_T1}, s{S_T1}, 5
    s_mul_i32 s{S_T2}, s{S_T0}, 25
    s_add_u32 s{S_T2}, s{S_T2}, s{S_T1}
    s_cmp_lt_u32 s{S_T0}, 2
    s_cselect_b32 s{S_T3}, 30, 25
    s_add_u32 s{S_WI}, s{S_T2}, s{S_TK}
    s_cmp_lt_u32 s{S_TK}, s{S_T3}
    s_cbranch_scc1 L_wi
    s_lshl_b32 s{S_WI}, s{S_T0}, 5
    s_sub_u32 s{S_WI}, s{S_WI}, s{S_T2}
    s_add_u32 s{S_WI}, s{S_WI}, s{S_TK}
    s_sub_u32 s{S_WI}, s{S_WI}, s{S_T3}
    s_add_u32 s{S_WI}, s{S_WI}, 160
    L_wi:
    """)


def worker_fill(g):
    g(f"""
    s_sub_u32 s{S_T0}, s{S_XCC}, 2
    s_cselect_b32 s{S_T0}, 64, s{S_T0}
    """)
    g(f"""
    v_mov_b32 v11, 0
    v_mul_u32_u24 v10, {NTEAM}, v0
    v_add_u32 v10, s{S_T0}, v10
    v_cmp_gt_u32 vcc, 64, v10
    v_lshlrev_b32 v10, 7, v10
    s_lshl_b32 s{S_T1}, s{S_TK}, 2
    s_add_u32 s{S_T1}, s{S_T1}, {WS_OF}
    v_mov_b32 v12, 0x40000000
    v_cndmask_b32 v10, v12, v10, vcc
    buffer_store_dword v11, v10, {WSD}, s{S_T1} offen sc1
    """)


def clear_flags(g, shift):
    g(f"""
    v_mov_b32 v11, 0
    v_mul_u32_u24 v10, {NROWG}, v0
    v_add_u32 v10, s{S_SEG}, v10
    v_cmp_gt_u32 vcc, 64, v10
    v_lshlrev_b32 v10, {shift}, v10
    v_mov_b32 v12, 0x40000000
    v_cndmask_b32 v10, v12, v10, vcc
    buffer_store_dword v11, v10, {WSD}, s{S_FA} offen sc1
    """)


def layernorm(g, seg, extra=None, seg2=None):
    X, T = 16, 80
    set_srd(g, P_X, 2 * MB)
    g(f"""
    v_lshrrev_b32 v1, 3, v0
    v_and_b32 v2, 7, v0
    v_lshlrev_b32 v3, 10, v1
    v_lshl_add_u32 v3, v2, 4, v3
    s_lshl_b32 s{S_T0}, s{seg}, 15
    """)
    for j in range(8):
        g(f"buffer_load_dwordx4 {v(T+4*j,4)}, v3, {WD}, s{S_T0} offen offset:{128*j}")
    if extra: extra[0]()
    if seg2:
        g(f"s_lshl_b32 s{S_T2}, s{seg2}, 15")
        for j in range(8): g(f"buffer_load_dwordx4 {v(128+4*j,4)}, v3, {WD}, s{S_T2} offen offset:{128*j}")
    g(f"""
    v_lshrrev_b32 v4, 1, v2
    v_lshlrev_b32 v4, 10, v4
    v_and_b32 v5, 1, v2
    v_lshl_add_u32 v4, v5, 9, v4
    v_lshl_add_u32 v4, v1, 4, v4
    s_add_u32 s{S_T0}, s{S_T0}, {WS_XN}
    s_mov_b32 s{S_T1}, 0xffff0000
    s_waitcnt vmcnt({extra[1] if extra else 8 if seg2 else 0})
    """)
    def rows(T):
        for i in range(32):
            g(f"v_lshlrev_b32 v{X+2*i}, 16, v{T+i}\nv_and_b32 v{X+2*i+1}, s{S_T1}, v{T+i}")

        def reduce8(r):
            for m in ("quad_perm:[1,0,3,2]", "quad_perm:[2,3,0,1]", "row_half_mirror"):
                g(f"s_nop 1\nv_add_f32_dpp v{r}, v{r}, v{r} {m} row_mask:0xf bank_mask:0xf")

        g(f"v_pk_add_f32 v[6:7], {v(X,2)}, {v(X+2,2)}")
        for i in range(2, 32):
            g(f"v_pk_add_f32 v[6:7], v[6:7], {v(X+2*i,2)}")
        g("v_add_f32 v6, v6, v7")
        reduce8(6)
        g(f"v_mul_f32 v6, 0x3b000000, v6\nv_mov_b32 v8, 0\nv_mov_b32 v9, 0")
        for i in range(64):
            g(f"v_sub_f32 v7, v{X+i}, v6\nv_fmac_f32 v{8+(i&1)}, v7, v7")
        g("v_add_f32 v8, v8, v9")
        reduce8(8)
        g(f"""
        v_mul_f32 v8, 0x3b000000, v8
        v_cvt_pk_bf16_f32 v6, v6, v8
        v_and_b32 v8, s{S_T1}, v6
        v_lshlrev_b32 v6, 16, v6
        v_add_f32 v8, 0x3727c5ac, v8
        v_cvt_pk_bf16_f32 v8, v8, v8
        v_and_b32 v8, s{S_T1}, v8
        v_sqrt_f32 v8, v8
        s_nop 0
        v_cvt_pk_bf16_f32 v8, v8, v8
        v_and_b32 v8, s{S_T1}, v8
        v_rcp_f32 v8, v8
        """)
        for i in range(32):
            p = X + 2 * i
            g(f"""
            v_sub_f32 v{p}, v{p}, v6
            v_sub_f32 v{p+1}, v{p+1}, v6
            v_cvt_pk_bf16_f32 v{p}, v{p}, v{p+1}
            v_and_b32 v{p+1}, s{S_T1}, v{p}
            v_lshlrev_b32 v{p}, 16, v{p}
            v_mul_f32 v{p}, v{p}, v8
            v_mul_f32 v{p+1}, v{p+1}, v8
            v_cvt_pk_bf16_f32 v{T+i}, v{p}, v{p+1}
            """)
            if i % 4 == 3:
                g(f"buffer_store_dwordx4 {v(T+i-3,4)}, v4, {WSD}, s{S_T0} offen sc1\ns_add_u32 s{S_T0}, s{S_T0}, 4096")
    rows(T)
    if seg2:
        g(f"s_add_u32 s{S_T0}, s{S_T2}, {WS_XN}\ns_waitcnt vmcnt(8)")
        rows(128)


def load_w32(g, mats, stride, touch, hooks={}, late={}, strict={}):
    DM, RT, RN = 13, 14, 15
    g(f"""
    v_and_b32 v4, 63, v0
    v_lshrrev_b32 v5, 4, v4
    v_and_b32 v6, 15, v4
    v_lshlrev_b32 v7, 2, v5
    v_xor_b32 v6, v6, v7
    v_lshlrev_b32 v{DM}, 4, v6
    s_lshl_b32 s{S_T0}, s{S_WAVE}, 4
    v_add_u32 v6, s{S_T0}, v5
    v_mul_u32_u24 v6, {stride}, v6
    v_add3_u32 v{DM}, v{DM}, v6, s{S_COL}
    v_bfe_u32 v6, v4, 2, 2
    v_xor_b32 v7, s{S_WAVE}, v6
    v_lshlrev_b32 v7, 6, v7
    v_lshl_add_u32 v7, v6, 8, v7
    v_lshrrev_b32 v6, 5, v4
    v_lshl_add_u32 v7, v6, 11, v7
    v_add_u32 v7, {RING}, v7
    v_and_b32 v5, 1, v5
    v_and_b32 v6, 3, v4
    v_lshl_add_u32 v{RN}, v5, 5, v7
    v_lshl_add_u32 v{RN}, v6, 3, v{RN}
    v_lshl_add_u32 v{RT}, v5, 4, v7
    v_and_b32 v6, 1, v4
    v_lshl_add_u32 v{RT}, v6, 3, v{RT}
    v_bfe_u32 v6, v4, 1, 1
    v_lshl_add_u32 v{RT}, v6, 5, v{RT}
    s_lshl_b32 s{S_T3}, s{S_WAVE}, 12
    s_add_u32 s{S_T3}, s{S_T3}, {RING}
    """)
    if touch is not None:
        g(f"""
        s_mul_i32 s{S_T1}, s{S_SEG}, 104
        s_mul_i32 s{S_T2}, s{S_WAVE}, 26
        s_add_u32 s{S_T1}, s{S_T1}, s{S_T2}
        v_lshrrev_b32 v5, 1, v4
        v_min_u32 v5, 25, v5
        v_add_u32 v5, s{S_T1}, v5
        v_mul_u32_u24 v5, {stride}, v5
        v_and_b32 v6, 1, v4
        v_lshl_add_u32 v5, v6, 7, v5
        """)
        for m in mats:
            set_srd(g, m[0], m[1])
            g(f"buffer_load_dword v127, v5, {WD}, s{S_COL} offen {touch}")
    stages = [(m, S) for m in mats for S in range(8)]

    def issue(i):
        m, S = stages[i]
        if S == 0: set_srd(g, m[0], m[1])
        for x in range(4):
            g(f"s_add_u32 m0, s{S_T3}, {(i % 4) * 16384 + x * 1024}\ns_mov_b32 s{S_T0}, {(64 * S + 4 * x) * stride}")
            g(f"buffer_load_dwordx4 v{DM}, {WD}, s{S_T0} offen lds")

    for i in range(3): issue(i)
    for i, (m, S) in enumerate(stages):
        g(f"s_waitcnt vmcnt({strict.get(i, 4 * min(2, len(stages) - 1 - i))}) lgkmcnt(0)\ns_barrier")
        if i in hooks: hooks[i]()
        if i + 3 < len(stages): issue(i + 3)
        if i in late: late[i]()
        for ks in range(4):
            for x in range(2):
                g(f"ds_read_b64_tr_b16 {rg(m[2], m[3] + 4*(4*S+ks) + 2*x, 2)}, v{RT if m[4] else RN} offset:{(i % 4)*16384 + ks*4096 + x*1024}")
    g("s_waitcnt lgkmcnt(0)")


def xn_dma():
    out = [[f"s_lshl_b32 s{S_T2}, s{S_NXT}, 15", f"s_add_u32 s{S_T2}, s{S_T2}, s{S_XO}"]]
    for hh in range(2):
        out[-1] += [f"s_add_u32 m0, s{S_LB}, {hh*4096}", f"s_add_u32 s{S_T1}, s{S_T2}, {hh*4096}"]
        for x in range(4):
            out[-1] += [f"buffer_load_dwordx4 v1, {WSD}, s{S_T1} offen offset:{x*1024} sc1 lds"]
            out.append([])
    out[-1] += [f"s_xor_b32 s{S_LB}, s{S_LB}, 32768"]
    return out


XF, ACC = 16, 32


def gemm_setup(g):
    g(f"""
    v_and_b32 v4, 63, v0
    v_lshlrev_b32 v1, 4, v4
    v_mov_b32 v2, v1
    s_lshl_b32 s{S_LB}, s{S_WAVE}, 13
    s_add_u32 s{S_XO}, s{S_LB}, {WS_XN}
    s_mov_b32 s{S_PREV}, -1
    s_mov_b32 s{S_NXT}, s{S_SEG}
    """)


def k_steps(g, mats, k0, k1, side=None, mid=None, fill=None):
    rd = lambda ks: f"ds_read_b128 {v(XF+4*(ks%4),4)}, v2 offset:{ks*1024}"
    for ks in range(k0, k0 + 3): g(rd(ks))
    for ks in range(k0, k1):
        g(f"s_waitcnt lgkmcnt({min(2, k1-1-ks)})")
        for n_, (j, m) in enumerate(mats):
            w_, x_ = rg(m[2], m[3] + 4*ks, 4), v(XF + 4*(ks % 4), 4)
            g(mf32(ACC + 16*j, w_, x_, ks == 0) if m[4] else mf32(ACC + 16*j, x_, w_, ks == 0))
            if n_ == 0 and ks + 3 < k1: g(rd(ks + 3))
            if n_ == 1 and side:
                for x in side.pop(0): g(x)
            room = 4
            while fill and room > 0:
                x = fill.pop(0); g(x)
                room -= 2 if x.startswith(("v_exp", "v_rcp", "buffer")) else 1
        if mid and ks == 24: mid()


def gemm_loop(g, tag, mats, stores, epilogue, flags, step=NROWG, fill=None):
    g(f"L_{tag}_seg:")
    m0 = g.mark()
    g(f"s_add_u32 s{S_NXT}, s{S_SEG}, {step}\ns_waitcnt vmcnt({2 if fill else 0})\ns_barrier")

    fl = list(fill or [])

    def mid():
        g(f"s_cmp_lt_i32 s{S_PREV}, 0\ns_cbranch_scc1 L_{tag}_nf\ns_waitcnt vmcnt(8)\ns_barrier")
        set_flag(g, f"{tag}_nf", S_PREV)
    k_steps(g, list(enumerate(mats)), 0, 32, [[x] for x in stores] + xn_dma(), mid if flags else None, fl)
    assert not fl
    g("v_xor_b32 v2, 0x8000, v2\ns_nop 7\ns_nop 1")
    epilogue()
    if flags: g(f"s_lshl_b32 s{S_PREV}, s{S_SEG}, 2\ns_add_u32 s{S_PREV}, s{S_PREV}, s{S_FA}")
    g(f"s_mov_b32 s{S_SEG}, s{S_NXT}\ns_cmp_lt_u32 s{S_SEG}, {NSEG}\ns_cbranch_scc1 L_{tag}_seg")
    bad = hazard.check(g.lines[m0:] + g.lines[m0:m0 + 40], tag)
    m1 = g.mark()
    for x in stores + (fill or []): g(x)
    bad += hazard.check(g.lines[m1 - 10:], tag + " end")
    count_up(g, f"{tag}_done", DBG_ADONE)
    if flags: set_flag(g, f"{tag}_lf", S_PREV)
    return bad


def tile_addr(g, dst, tshift):
    g(f"""
    v_bfe_u32 v5, v0, 4, 1
    v_mul_u32_u24 v{dst}, {tshift}, v5
    v_bfe_u32 v5, v0, 5, 1
    v_lshl_add_u32 v{dst}, v5, 8, v{dst}
    v_and_b32 v5, 15, v0
    v_lshl_add_u32 v{dst}, v5, 4, v{dst}
    s_lshl_b32 s{S_T0}, s{S_WAVE}, 10
    v_add_u32 v{dst}, s{S_T0}, v{dst}
    """)


def qkv_role(g, opt):
    mats = [(P_WK, 4*MB, "a", 0, 1), (P_WV, 4*MB, "a", 128, 0), (P_WQ, 4*MB, "v", 128, 1)]
    m0 = g.mark()
    g(f"""
    s_mul_i32 s{S_HD}, s{S_WI}, 52429
    s_lshr_b32 s{S_HD}, s{S_HD}, 18
    s_mul_i32 s{S_T0}, s{S_HD}, {NROWG}
    s_sub_u32 s{S_SEG}, s{S_WI}, s{S_T0}
    s_lshl_b32 s{S_COL}, s{S_HD}, 8
    s_add_u32 s{S_FA}, s{S_COL}, {WS_FLAGS}
    """)
    wstamp(g, opt, 0)
    if opt.get("pf4"):
        set_srd(g, P_WO, 4 * MB)
        g(f"v_min_u32 v126, 207, v0\nv_lshlrev_b32 v126, 7, v126\ns_mul_i32 s{S_T2}, s{S_WI}, {208*128}\nbuffer_load_dword v127, v126, {WD}, s{S_T2} offen")
        if opt["pf4"] == 2: g("s_waitcnt vmcnt(0)")
        for m_ in opt.get("pf5", ""):
            if m_ == "w": g("s_waitcnt vmcnt(0)"); continue
            set_srd(g, {"k": P_WK, "v": P_WV, "q": P_WQ}[m_], 4 * MB)
            g(f"buffer_load_dword v127, v126, {WD}, s{S_T2} offen")
    worker_fill(g)
    clear_flags(g, 2)
    for _ in range(opt.get("xq", 0)): g("s_sleep 37")
    gemm_setup(g)
    tile_addr(g, 8, 4096)
    g(f"""
    v_bfe_u32 v5, v0, 4, 1
    v_lshlrev_b32 v9, 10, v5
    v_bfe_u32 v5, v0, 5, 1
    v_lshl_add_u32 v9, v5, 9, v9
    v_and_b32 v5, 15, v0
    v_lshl_add_u32 v9, v5, 4, v9
    s_lshl_b32 s{S_T0}, s{S_WAVE}, 11
    s_add_u32 s{S_T0}, s{S_T0}, 8192
    v_add_u32 v9, s{S_T0}, v9
    v_lshlrev_b32 v3, 4, v0
    v_mov_b64 v[104:105], s[{S_SENT}:{S_SENT+1}]
    v_mov_b64 v[106:107], s[{S_SENT}:{S_SENT+1}]
    """)
    P = 80

    def epi(parts="akq"):
        if "a" in parts: g(f"""
        s_lshl_b32 s{S_O1}, s{S_SEG}, 5
        s_add_u32 s{S_O1}, s{S_O1}, s{S_HD}
        s_lshl_b32 s{S_O3}, s{S_O1}, 12
        s_add_u32 s{S_O3}, s{S_O3}, {WS_PUB}
        s_lshl_b32 s{S_O2}, s{S_O1}, 13
        s_add_u32 s{S_O2}, s{S_O2}, {WS_Q}
        s_lshl_b32 s{S_O1}, s{S_O1}, 14
        s_add_u32 s{S_O1}, s{S_O1}, {WS_KV}
        """)
        for rho in range(2 if "k" in parts else 0):
            for x in range(4): g(f"v_cvt_pk_bf16_f32 v{P+4*rho+x}, v{ACC+8*rho+x}, v{ACC+8*rho+4+x}")
        for be in range(2 if "k" in parts else 0):
            for ri in range(4):
                r = ACC + 16 + 8*(ri & 1) + 4*(ri >> 1) + 2*be
                g(f"v_cvt_pk_bf16_f32 v{P+8+4*be+ri}, v{r}, v{r+1}")
        for rho in range(2 if "q" in parts else 0):
            for x in range(4): g(f"v_cvt_pk_bf16_f32 v{P+16+4*rho+x}, v{ACC+32+8*rho+x}, v{ACC+32+8*rho+4+x}")

    stores = ([f"buffer_store_dwordx4 {v(80+4*x,4)}, v8, {WSD}, s{S_O1} offen offset:{512*x} sc1" for x in range(2)] +
              [f"buffer_store_dwordx4 {v(88+4*x,4)}, v9, {WSD}, s{S_O1} offen offset:{256*x} sc1" for x in range(2)] +
              [f"buffer_store_dwordx4 v[104:107], v3, {WSD}, s{S_O3} offen sc1"] +
              [f"buffer_store_dwordx4 {v(96+4*x,4)}, v8, {WSD}, s{S_O2} offen offset:{512*x} sc1" for x in range(2)])
    em = list(enumerate(mats))

    def stage_x():
        spin_counter(g, "qkv_ln", DBG_LN, 64)
        for x in sum(xn_dma(), []): g(x)

    def hand_over():
        k_steps(g, em[:2], 28, 32)
        g("s_nop 3")
        epi("ak")
        for x in stores[:5]: g(x)

    def flag_first():
        g(f"s_lshl_b32 s{S_T1}, s{S_SEG}, 2\ns_add_u32 s{S_T1}, s{S_T1}, s{S_FA}")
        set_flag(g, "qkv_ff", S_T1)
        g(f"s_mov_b32 s{S_O1}, 0x40000000\ns_mov_b32 s{S_O3}, 0x40000000")

    def next_x():
        g(f"s_add_u32 s{S_NXT}, s{S_SEG}, {NROWG}")
        for x in sum(xn_dma(), []): g(x)
    sx = opt.get("sx", 10)
    hooks = {0: lambda: count_up(g, "qkv_in", DBG_INIT, False), sx: stage_x, 16: hand_over, 17: flag_first, 20: next_x}
    cuts = {8: (0, 8, 16, 20, 24, 28), 9: (0, 8, 16, 24, 28), 10: (0, 10, 20, 28), 11: (0, 14, 28)}[sx]
    late = {sx + 3 + j: (lambda a_=cuts[j], b_=cuts[j + 1]: k_steps(g, em[:2], a_, b_)) for j in range(len(cuts) - 1)}
    for i in range(17, 24): late[i] = lambda i=i: k_steps(g, em[2:], 4 * (i - 17), 4 * (i - 16))
    load_w32(g, mats, 8192, None, hooks, late, {17: 4})
    wstamp(g, opt, 1)
    k_steps(g, em[2:], 28, 32)
    g(f"v_xor_b32 v2, 0x8000, v2\ns_mov_b32 s{S_SEG}, s{S_NXT}\ns_nop 7\ns_nop 1")
    epi("q")
    bad = hazard.check(g.lines[m0:], "qkv prologue")
    return bad + gemm_loop(g, "qkv", mats, stores, epi, True)


def ffn_role(g, opt):
    mats = [(P_WG, 512*2752, "a", 0, 1), (P_WU, 512*2752, "a", 128, 1)]
    m0 = g.mark()
    g(f"""
    s_sub_u32 s{S_O1}, s{S_WI}, 160
    s_mul_i32 s{S_HD}, s{S_O1}, 43691
    s_lshr_b32 s{S_HD}, s{S_HD}, 17
    s_mul_i32 s{S_T0}, s{S_HD}, {NFFG}
    s_sub_u32 s{S_SEG}, s{S_O1}, s{S_T0}
    s_lshl_b32 s{S_COL}, s{S_HD}, 8
    """)
    def pf2(n=2):
        g(f"v_lshlrev_b32 v126, 7, v0")
        if opt.get("pf3"):
            set_srd(g, P_WO, 4 * MB)
            g(f"s_lshr_b32 s{S_T2}, s{S_O1}, 1\ns_lshl_b32 s{S_T2}, s{S_T2}, 17\ns_and_b32 s{S_T3}, s{S_O1}, 1\ns_lshl_b32 s{S_T3}, s{S_T3}, 15")
            g(f"s_add_u32 s{S_T2}, s{S_T2}, s{S_T3}\ns_add_u32 s{S_T2}, s{S_T2}, 65536\nbuffer_load_dword v127, v126, {WD}, s{S_T2} offen")
            if opt["pf3"] == 2: g(f"s_sub_u32 s{S_T2}, s{S_T2}, 65536\nbuffer_load_dword v127, v126, {WD}, s{S_T2} offen")
        set_srd(g, P_WQ, 4 * MB)
        g(f"s_mul_i32 s{S_T2}, s{S_O1}, {n*32768}")
        for x in range(n): g(f"buffer_load_dword v127, v126, {WD}, s{S_T2} offen\ns_add_u32 s{S_T2}, s{S_T2}, 32768")
    worker_fill(g)
    if opt.get("ln2", 1):
        g(f"s_cmp_eq_u32 s{S_XCC}, 1\ns_cbranch_scc1 L_ln")
        if opt.get("pf2"): pf2(4)
        count_up(g, "ffn_in2", DBG_INIT)
        wstamp(g, opt, 0)
        g("s_branch L_ffn_w\nL_ln:")
        layernorm(g, S_TK, None, S_O1)
        count_up(g, "ffn_lnup", DBG_LN, True, 2)
    else:
        layernorm(g, S_O1, (pf2, 2 + opt.get("pf3", 0)) if opt.get("pf2") == 2 else None)
        count_up(g, "ffn_lnup", DBG_LN)
    count_up(g, "ffn_in", DBG_INIT, False)
    wstamp(g, opt, 0)
    if opt.get("pf2") == 1 and not opt.get("ln2", 1): pf2()
    for _ in range(opt.get("xf", 0)): g("s_sleep 37")
    g(f"s_cmp_ge_u32 s{S_HD}, 11\ns_cbranch_scc1 L_leave\nL_ffn_w:")
    load_w32(g, mats, 2752, opt.get("touch"))
    wstamp(g, opt, 1)
    tile_addr(g, 8, HM_SEG // 2)
    g(f"s_mov_b32 s{S_C0}, 0xffff0000\ns_mov_b32 s{S_C1}, 0xbdd2d3e8\ns_mov_b32 s{S_C2}, 0xc0135761")
    bad = hazard.check(g.lines[m0:], "ffn prologue")

    P, T, GA, U = 80, 96, 128, 144

    def epi():
        g(f"""
        s_mul_i32 s{S_O1}, s{S_SEG}, {HM_SEG}
        s_lshl_b32 s{S_T0}, s{S_HD}, 12
        s_add_u32 s{S_O1}, s{S_O1}, s{S_T0}
        s_add_u32 s{S_O1}, s{S_O1}, {WS_HMID}
        """)
        for j in range(4):
            for x in range(4): g(f"v_cvt_pk_bf16_f32 v{GA+8*j+x}, v{ACC+8*j+x}, v{ACC+8*j+4+x}")
    unp = lambda x: [f"v_and_b32 v{x+4}, s{S_C0}, v{x}", f"v_lshlrev_b32 v{x}, 16, v{x}"]
    fill = []
    for rho in range(2):
        idx = [8*rho + i for i in range(8)]
        for x in range(4): fill += unp(GA + 8*rho + x) + unp(U + 8*rho + x)
        fill += [f"v_mul_f32 v{T+i}, v{GA+i}, v{GA+i}" for i in idx]
        fill += [f"v_fma_f32 v{T+i}, v{T+i}, s{S_C1}, v{T+16}" for i in idx]
        fill += [f"v_mul_f32 v{T+i}, v{T+i}, v{GA+i}" for i in idx]
        fill += [f"v_exp_f32 v{T+i}, v{T+i}" for i in idx]
        fill += [f"v_add_f32 v{T+i}, 1.0, v{T+i}" for i in idx]
        fill += [f"v_rcp_f32 v{T+i}, v{T+i}" for i in idx]
        fill += [f"v_mul_f32 v{GA+i}, v{GA+i}, v{T+i}" for i in idx]
        for x in range(4): fill += [f"v_cvt_pk_bf16_f32 v{GA+8*rho+x}, v{GA+8*rho+x}, v{GA+8*rho+4+x}"] + unp(GA + 8*rho + x)
        fill += [f"v_mul_f32 v{GA+i}, v{GA+i}, v{U+i}" for i in idx]
        fill += [f"v_cvt_pk_bf16_f32 v{P+4*rho+x}, v{GA+8*rho+x}, v{GA+8*rho+4+x}" for x in range(4)]
        fill += [f"buffer_store_dwordx4 {v(P+4*rho,4)}, v8, {WSD}, s{S_O1} offen offset:{512*rho} sc1"]
    gemm_setup(g)
    g(f"s_mov_b32 s{S_O1}, 0x40000000\nv_mov_b32 v{T+16}, s{S_C2}")
    spin_counter(g, "ffn_ln", DBG_LN, 64)
    for x in sum(xn_dma(), []) + ["s_waitcnt vmcnt(0)"]: g(x)
    bad += gemm_loop(g, "ffn", mats, [], epi, False, NFFG, fill)
    g(f"s_cmp_lg_u32 s{S_XCC}, 1\ns_cbranch_scc1 L_p3\nL_leave:")
    spin_counter(g, "lv_init", DBG_INIT, 224, 32)
    spin_counter(g, "lv_team", DBG_TEAM, 32, 32)
    for i in (2, 3): wstamp(g, opt, i)
    wstamp(g, opt, 4, True)
    g("s_waitcnt vmcnt(0)\ns_endpgm")
    return bad


def p3_role(g, opt):
    LN16, KPA, RWA, RRA, XA, KMW, KMR, VMW, VMR, HFA, OFA = 1, 2, 3, 4, 5, 6, 7, 8, 9, 12, 13
    GV, XV = 14, 16
    ACC, SC, PB, OA, KM, VM = 20, 28, 44, 52, 68, 84
    ST = 92
    WDR = 168
    L_RED, L_KM, L_VM = 0, 8192, 12288
    S_TH, S_SCL, S_QO, S_KO, S_PO, S_HO = S_HD, S_C1, S_O1, S_O2, S_FA, S_PREV
    st = opt.get("st", "")
    sto = opt.get("sto", st)
    S_OB = S_LB
    m0 = g.mark()
    DM, RA = 1, 2
    g(f"""
    s_lshr_b32 s{S_TH}, s{S_TK}, 4
    s_and_b32 s{S_COL}, s{S_TK}, 15
    s_lshl_b32 s{S_COL}, s{S_COL}, 6
    v_and_b32 v4, 63, v0
    v_lshrrev_b32 v5, 4, v4
    v_bfe_u32 v6, v4, 2, 2
    v_and_b32 v7, 1, v6
    v_lshlrev_b32 v{DM}, 4, v7
    v_lshl_add_u32 v{DM}, v5, 2, v{DM}
    v_lshrrev_b32 v7, 1, v6
    v_add_u32 v{DM}, v{DM}, v7
    v_lshlrev_b32 v{DM}, 10, v{DM}
    v_and_b32 v7, 1, v5
    v_lshlrev_b32 v7, 1, v7
    v_and_b32 v8, 3, v4
    v_xor_b32 v8, v8, v7
    v_lshl_add_u32 v{DM}, v8, 4, v{DM}
    v_add_u32 v{DM}, s{S_COL}, v{DM}
    v_lshrrev_b32 v8, 2, v4
    v_lshlrev_b32 v{RA}, 6, v8
    v_lshl_add_u32 v{RA}, v7, 4, v{RA}
    v_and_b32 v8, 3, v4
    v_lshl_add_u32 v{RA}, v8, 3, v{RA}
    s_lshl_b32 s{S_T3}, s{S_WAVE}, 15
    v_add_u32 v{RA}, s{S_T3}, v{RA}
    v_xor_b32 v{RA+1}, 32, v{RA}
    s_lshl_b32 s{S_T1}, s{S_WAVE}, 20
    s_mul_i32 s{S_T2}, s{S_WAVE}, {11*32768}
    """)
    S_RHO, S_GB = S_R, S_IT
    g(f"s_and_b32 s{S_RHO}, s{S_TK}, 1\ns_lshl_b32 s{S_RHO}, s{S_RHO}, 1\ns_add_u32 s{S_RHO}, s{S_RHO}, s{S_TH}" if opt.get("rho", 1) else f"s_mov_b32 s{S_RHO}, 0")
    quarter = lambda j, sh, base: f"s_add_u32 s{S_GB}, s{S_RHO}, {j}\ns_and_b32 s{S_GB}, s{S_GB}, 3\ns_lshl_b32 s{S_GB}, s{S_GB}, {sh}\ns_add_u32 s{S_GB}, s{S_GB}, s{base}"
    steps = [("o", k) for k in range(32)] + [("d", k) for k in range(11)]
    AH = 12

    def issue(i):
        m, k = steps[i]
        if k == 0: set_srd(g, P_WO if m == "o" else P_WD, 4*MB if m == "o" else 1376*1024)
        if m == "o" and k & 7 == 0: g(quarter(k >> 3, 18, S_T1))
        for x in range(2):
            g(f"s_add_u32 m0, s{S_T3}, {(i % 16)*2048 + x*1024}\ns_add_u32 s{S_T0}, s{S_GB if m == 'o' else S_T2}, {(k & 7 if m == 'o' else k)*32768 + x*2048}")
            g(f"buffer_load_dwordx4 v{DM}, {WD}, s{S_T0} offen lds")

    wreg = lambda m, k, t, o=0, n=4: a(8*k + 4*t + o, n) if m == "o" else v(WDR + 8*k + 4*t + o, n)
    for i in range(AH): issue(i)
    for i, (m, k) in enumerate(steps):
        g(f"s_waitcnt vmcnt({2*min(AH - 1, len(steps) - 1 - i)}) lgkmcnt(8)")
        if i + AH < len(steps): issue(i + AH)
        for t in range(2):
            for x in range(2):
                g(f"ds_read_b64_tr_b16 {wreg(m, k, t, 2*x, 2)}, v{RA+t} offset:{(i % 16)*2048 + x*1024}")
    g("s_waitcnt lgkmcnt(0)\ns_barrier")
    g(f"""
    v_and_b32 v20, 63, v0
    v_lshrrev_b32 v21, 4, v20
    v_and_b32 v22, 15, v20
    v_lshlrev_b32 v{LN16}, 4, v20
    v_bfe_u32 v23, v22, 1, 1
    v_lshlrev_b32 v{KPA}, 3, v23
    v_lshrrev_b32 v23, 2, v22
    v_lshl_add_u32 v{KPA}, v23, 1, v{KPA}
    v_and_b32 v24, 1, v22
    v_add_u32 v{KPA}, v{KPA}, v24
    v_lshl_add_u32 v{KPA}, v21, 4, v{KPA}
    v_lshlrev_b32 v{KPA}, 4, v{KPA}
    v_lshl_add_u32 v{KMR}, v23, 1, v24
    v_lshlrev_b32 v{KMR}, 4, v{KMR}
    v_mul_u32_u24 v24, 144, v21
    v_add_u32 v{KMR}, v{KMR}, v24
    v_add_u32 v{KMR}, {L_KM}, v{KMR}
    v_mul_u32_u24 v{KMW}, 144, v23
    v_lshl_add_u32 v{KMW}, v21, 5, v{KMW}
    v_and_b32 v24, 3, v22
    v_lshl_add_u32 v{KMW}, v24, 2, v{KMW}
    s_mul_i32 s{S_T0}, s{S_WAVE}, 576
    s_add_u32 s{S_T0}, s{S_T0}, {L_KM}
    v_add_u32 v{KMW}, s{S_T0}, v{KMW}
    v_lshlrev_b32 v{VMW}, 3, v0
    v_add_u32 v{VMW}, {L_VM}, v{VMW}
    s_lshr_b32 s{S_T0}, s{S_WAVE}, 1
    s_lshl_b32 s{S_T0}, s{S_T0}, 10
    s_add_u32 s{S_T0}, s{S_T0}, {L_VM}
    v_lshlrev_b32 v{VMR}, 3, v20
    v_add_u32 v{VMR}, s{S_T0}, v{VMR}
    s_lshl_b32 s{S_T0}, s{S_WAVE}, 11
    v_and_b32 v24, 7, v22
    v_xor_b32 v24, v24, v21
    v_lshlrev_b32 v{RWA}, 7, v22
    v_lshl_add_u32 v{RWA}, v24, 4, v{RWA}
    v_add_u32 v{RWA}, s{S_T0}, v{RWA}
    v_xor_b32 v{HFA}, 64, v{RWA}
    v_lshlrev_b32 v{RRA}, 3, v0
    v_lshrrev_b32 v24, 4, v0
    v_and_b32 v25, 7, v24
    v_lshlrev_b32 v25, 4, v25
    v_xor_b32 v{RRA}, v{RRA}, v25
    v_lshlrev_b32 v{XA}, 10, v24
    v_lshl_add_u32 v{XA}, v22, 2, v{XA}
    s_lshl_b32 s{S_T0}, s{S_TH}, 14
    s_add_u32 s{S_T0}, s{S_T0}, s{S_COL}
    v_add_u32 v{XA}, s{S_T0}, v{XA}
    v_and_b32 v{OFA}, 7, v20
    s_lshl_b32 s{S_T0}, s{S_WAVE}, 3
    v_add_u32 v{OFA}, s{S_T0}, v{OFA}
    v_lshlrev_b32 v{OFA}, 2, v{OFA}
    s_and_b32 s{S_T0}, s{S_WAVE}, 1
    s_lshl_b32 s{S_T0}, s{S_T0}, 4
    v_add_u32 v22, s{S_T0}, v22
    v_lshlrev_b32 v21, 1, v21
    v_sub_u32 v22, v22, v21
    """)
    for T in range(2):
        for r in range(4):
            g(f"v_cmp_le_i32 s[{S_MK+2*(4*T+r)}:{S_MK+2*(4*T+r)+1}], {16*T + 8*(r >> 1) + (r & 1)}, v22")
    g(f"""
    s_mov_b32 s{S_OUT}, s{P_OUT}
    s_mov_b32 s{S_OUT+1}, s{P_OUT+1}
    s_mov_b32 s{S_OUT+2}, {2*MB}
    s_mov_b32 s{S_OUT+3}, 0x20000
    s_mov_b32 s{S_SCL}, 0x3db504f3
    s_mov_b32 s{S_C0}, 0xffff0000
    s_mov_b32 s{S_C2}, 0xbfb8aa3b
    s_sub_u32 s{S_SEG}, s{S_XCC}, 2
    s_lshl_b32 s{S_OB}, s{S_SEG}, 1
    v_mov_b32 v{PB+5}, 0
    v_mov_b32 v{PB+6}, 0
    """)
    set_srd(g, P_X, 2 * MB)
    spin_counter(g, "p3_init", DBG_INIT, 224)
    spin_counter(g, "p3_adone", DBG_ADONE, 193, 32)
    bad = hazard.check(g.lines[m0:], "p3 prologue")

    def reduce(dst):
        g("s_nop 7")
        for t in range(2): g(f"ds_write_b128 v{HFA if t else RWA}, {v(ACC+4*t,4)} offset:{L_RED}")
        g("s_waitcnt lgkmcnt(0)\ns_barrier")
        for x in range(4): g(f"ds_read_b64 {v(ACC+2*x,2)}, v{RRA} offset:{L_RED + 2048*x}")
        g(f"""
        s_waitcnt lgkmcnt(0)
        v_pk_add_f32 {v(ACC,2)}, {v(ACC,2)}, {v(ACC+2,2)}
        v_pk_add_f32 {v(ACC+4,2)}, {v(ACC+4,2)}, {v(ACC+6,2)}
        v_pk_add_f32 {v(ACC,2)}, {v(ACC,2)}, {v(ACC+4,2)}
        v_cvt_pk_bf16_f32 v{dst}, v{ACC}, v{ACC+1}
        v_and_b32 v{dst+1}, s{S_C0}, v{dst}
        v_lshlrev_b32 v{dst}, 16, v{dst}
        """)

    QR_, KR_, VR_, HM, PU = ST, ST + 16, ST + 48, SC, ST + 64
    L_KV, L_Q, L_HM = 16384, 32768, 40960
    QA, VA, HA = 88, 89, 90

    def stage_in(seg):
        g(f"""
        s_lshl_b32 s{S_T0}, s{seg}, 5
        s_add_u32 s{S_T0}, s{S_T0}, s{S_TK}
        s_lshl_b32 s{S_T0}, s{S_T0}, 2
        s_add_u32 s{S_T0}, s{S_T0}, s{S_WAVE}
        s_lshl_b32 s{S_T1}, s{S_WAVE}, 12
        s_add_u32 m0, s{S_T1}, {L_KV}
        s_lshl_b32 s{S_KO}, s{S_T0}, 12
        s_add_u32 s{S_KO}, s{S_KO}, {WS_KV}
        """)
        for x in range(4): g(f"buffer_load_dwordx4 v{LN16}, {WSD}, s{S_KO} offen offset:{x*1024} sc1 lds")
        g(f"s_lshl_b32 s{S_T1}, s{S_WAVE}, 11\ns_add_u32 m0, s{S_T1}, {L_Q}\ns_lshl_b32 s{S_QO}, s{S_T0}, 11\ns_add_u32 s{S_QO}, s{S_QO}, {WS_Q}")
        for x in range(2): g(f"buffer_load_dwordx4 v{LN16}, {WSD}, s{S_QO} offen offset:{x*1024} sc1 lds")
        g(f"""
        s_lshl_b32 s{S_T0}, s{seg}, 1
        s_add_u32 s{S_T0}, s{S_T0}, s{S_TH}
        s_mul_i32 s{S_QO}, s{S_T0}, {HM_SEG // 2}
        s_mul_i32 s{S_T1}, s{S_WAVE}, {11*1024}
        s_add_u32 s{S_QO}, s{S_QO}, s{S_T1}
        s_add_u32 s{S_QO}, s{S_QO}, {WS_HMID - 4096}
        s_cmp_eq_u32 s{S_WAVE}, 3
        s_cselect_b32 s{S_T2}, 0x40000000, 0
        """)
        for k in range(11):
            if k & 3 == 0: g(f"s_add_u32 m0, s{S_T1}, {L_HM + k*1024}\ns_add_u32 s{S_QO}, s{S_QO}, 4096")
            if k == 10: g(f"s_add_u32 s{S_QO}, s{S_QO}, s{S_T2}")
            g(f"buffer_load_dwordx4 v{LN16}, {WSD}, s{S_QO} offen offset:{(k & 3)*1024} sc1 lds")
    stage_in(S_SEG)
    g(f"""
    s_and_b32 s{S_T0}, s{S_WAVE}, 1
    s_lshl_b32 s{S_T0}, s{S_T0}, 12
    s_add_u32 s{S_T0}, s{S_T0}, {L_Q}
    v_add_u32 v{QA}, s{S_T0}, v{LN16}
    s_lshr_b32 s{S_T0}, s{S_WAVE}, 1
    s_lshl_b32 s{S_T0}, s{S_T0}, 12
    s_add_u32 s{S_T0}, s{S_T0}, {L_KV + 8192}
    v_add_u32 v{VA}, s{S_T0}, v{LN16}
    s_add_u32 s{S_T0}, s{S_T1}, {L_HM}
    v_add_u32 v{HA}, s{S_T0}, v{LN16}
    s_waitcnt vmcnt(0)
    s_barrier
    """)
    wstamp(g, opt, 3)
    g("L_p3_seg:")
    m1 = g.mark()
    pstamp(g, opt, 0)
    g(f"""
    s_lshl_b32 s{S_XO}, s{S_SEG}, 15
    buffer_load_dword v{XV}, v{XA}, {WD}, s{S_XO} offen
    s_lshl_b32 s{S_T0}, s{S_SEG}, 5
    s_add_u32 s{S_T0}, s{S_T0}, s{S_TK}
    s_lshl_b32 s{S_PO}, s{S_T0}, 2
    s_add_u32 s{S_PO}, s{S_PO}, s{S_WAVE}
    s_lshl_b32 s{S_PO}, s{S_PO}, 10
    s_add_u32 s{S_PO}, s{S_PO}, {WS_PUB}
    buffer_load_dwordx4 {v(PU,4)}, v{LN16}, {WSD}, s{S_PO} offen sc1
    """)
    for k in range(11): g(f"ds_read_b128 {v(HM+4*k,4)}, v{HA} offset:{k*1024}")
    more = ([f"ds_read_b128 {v(QR_+4*x,4)}, v{QA} offset:{x*1024}" for x in range(4)] +
            [f"ds_read_b128 {v(KR_+4*x,4)}, v{KPA} offset:{L_KV + x*1024}" for x in range(8)] +
            [f"ds_read_b128 {v(VR_+4*x,4)}, v{VA} offset:{x*1024}" for x in range(4)])
    issued = 0
    for k in range(11):
        g(f"s_waitcnt lgkmcnt({min(15, 10 - k + issued)})")
        for t in range(2):
            g(mf16(ACC + 4*t, wreg("d", k, t), v(HM + 4*k, 4), k == 0))
            if more and k >= 3: g(more.pop(0)); issued += 1
    reduce(GV)
    g(f"s_add_u32 s{S_NXT}, s{S_SEG}, {NTEAM}\ns_cmp_ge_u32 s{S_NXT}, {NSEG}\ns_waitcnt vmcnt(0)\ns_cbranch_scc1 L_p3_last")
    stage_in(S_NXT)
    g("L_p3_last:")
    g(f"""
    v_mul_f32 v{ACC}, s{S_C2}, v{GV}
    v_mul_f32 v{ACC+1}, s{S_C2}, v{GV+1}
    v_exp_f32 v{ACC}, v{ACC}
    v_exp_f32 v{ACC+1}, v{ACC+1}
    s_nop 0
    v_add_f32 v{ACC}, 1.0, v{ACC}
    v_add_f32 v{ACC+1}, 1.0, v{ACC+1}
    v_rcp_f32 v{ACC}, v{ACC}
    v_rcp_f32 v{ACC+1}, v{ACC+1}
    s_nop 0
    v_pk_mul_f32 {v(GV,2)}, {v(GV,2)}, {v(ACC,2)}
    v_cvt_pk_bf16_f32 v{GV}, v{GV}, v{GV+1}
    v_and_b32 v{GV+1}, s{S_C0}, v{GV}
    v_lshlrev_b32 v{GV}, 16, v{GV}
    v_and_b32 v{XV+1}, s{S_C0}, v{XV}
    v_lshlrev_b32 v{XV}, 16, v{XV}
    """)
    g(f"v_mov_b32 v{PB+5}, 0\nv_mov_b32 v{PB+6}, 0\nv_mov_b32 v10, 0")
    for x in range(4):
        for T in range(2): g(mf16(SC + 4*T, v(KR_ + 16*T + 4*x, 4), v(QR_ + 4*x, 4), x == 0))
    MX, MY = SC + 12, SC + 13
    def scale(x):
        for k_ in range(2):
            g(f"v_cvt_pk_bf16_f32 v{x}, v{x}, v{x+1}\nv_and_b32 v{x+1}, s{S_C0}, v{x}\nv_lshlrev_b32 v{x}, 16, v{x}")
            if k_ == 0: g(f"v_mul_f32 v{x}, s{S_SCL}, v{x}\nv_mul_f32 v{x+1}, s{S_SCL}, v{x+1}")
    g(f"v_mov_b32 v{MY}, 0xce6e0000\ns_nop 7")
    for i in range(4): scale(SC + 2 * i)
    for i in range(8): g(f"v_cndmask_b32 v{SC+i}, v{MY}, v{SC+i}, s[{S_MK+2*i}:{S_MK+2*i+1}]")
    g(f"v_max3_f32 v{MX}, v{SC}, v{SC+1}, v{SC+2}\nv_max3_f32 v{MX}, v{MX}, v{SC+3}, v{SC+4}\nv_max3_f32 v{MX}, v{MX}, v{SC+5}, v{SC+6}\nv_max_f32 v{MX}, v{MX}, v{SC+7}")
    pstamp(g, opt, 3)
    g(f"""
    L_p3_pub:
    s_add_u32 s{S_SPIN}, s{S_SPIN}, 1
    s_cmp_gt_u32 s{S_SPIN}, {SPIN_MAX}
    s_cbranch_scc1 L_p3_pub_out
    v_max3_u32 v11, v{PU}, v{PU+1}, v{PU+2}
    v_max_u32 v11, v11, v{PU+3}
    v_cmp_eq_u32 vcc, s{S_SENT}, v11
    s_cbranch_vccz L_p3_pub_out
    s_cmp_ge_u32 s{S_SEG}, {NSEG - 2}
    s_cbranch_scc1 L_p3_again
    s_sleep {opt.get('psleep', 6)}
    L_p3_again:
    buffer_load_dwordx4 {v(PU,4)}, v{LN16}, {WSD}, s{S_PO} offen sc1
    s_waitcnt vmcnt(0)
    s_branch L_p3_pub
    L_p3_pub_out:
    ds_write2_b32 v{KMW}, v{PU}, v{PU+1} offset0:0 offset1:4
    ds_write_b64 v{VMW}, {v(PU+2,2)}
    s_waitcnt lgkmcnt(0)
    s_barrier
    """)
    pstamp(g, opt, 4)
    for x in range(4): g(f"ds_read_b128 {v(KM+4*x,4)}, v{KMR} offset:{576*x}")
    for x in range(2): g(f"ds_read_b64 {v(VM+2*x,2)}, v{VMR} offset:{512*x}")
    for x in range(4):
        g(f"s_waitcnt lgkmcnt({5-x})")
        g(mf16(SC + 8, v(KM + 4*x, 4), v(QR_ + 4*x, 4), x == 0))
    g(f"""
    s_lshl_b32 s{S_T0}, s{S_OB}, 1
    s_and_b32 s{S_T1}, s{S_WAVE}, 1
    s_add_u32 s{S_T0}, s{S_T0}, s{S_T1}
    s_lshl_b32 s{S_T0}, s{S_T0}, 5
    s_add_u32 s{S_T0}, s{S_T0}, s{S_TK}
    s_lshl_b32 s{S_T0}, s{S_T0}, 2
    s_and_b32 s{S_T1}, s{S_WAVE}, 2
    s_add_u32 s{S_T0}, s{S_T0}, s{S_T1}
    s_lshl_b32 s{S_T0}, s{S_T0}, 10
    s_add_u32 s{S_T0}, s{S_T0}, {WS_O}
    """)
    scale(SC + 8)
    g(f"v_max3_f32 v{MX}, v{MX}, v{SC+8}, v{SC+9}")

    def cross(r, t, op):
        for sw in (16, 32):
            g(f"v_mov_b32 v{t}, v{r}\ns_nop 1\nv_permlane{sw}_swap_b32 v{r}, v{t}\n{op} v{r}, v{r}, v{t}")
    cross(MX, MY, "v_max_f32")
    g(f"v_mul_f32 v{MX}, s{S_C2}, v{MX}")
    for i in range(10): g(f"v_fma_f32 v{SC+i}, -v{SC+i}, s{S_C2}, v{MX}")
    for i in range(10): g(f"v_exp_f32 v{SC+i}, v{SC+i}")
    g(f"v_pk_add_f32 {v(MX,2)}, {v(SC,2)}, {v(SC+2,2)}\nv_pk_add_f32 {v(MX+2,2)}, {v(SC+4,2)}, {v(SC+6,2)}")
    g(f"v_pk_add_f32 {v(MX,2)}, {v(MX,2)}, {v(SC+8,2)}\nv_pk_add_f32 {v(MX,2)}, {v(MX,2)}, {v(MX+2,2)}\nv_add_f32 v{MX}, v{MX}, v{MY}")
    cross(MX, MY, "v_add_f32")
    g(f"v_rcp_f32 v{MX}, v{MX}\ns_waitcnt lgkmcnt(0)")
    for i in range(5): g(f"v_pk_mul_f32 {v(SC+2*i,2)}, {v(SC+2*i,2)}, {v(MX,2)} op_sel_hi:[1,0]")
    for ri in range(4):
        r = SC + 4*(ri & 1) + 2*(ri >> 1)
        g(f"v_cvt_pk_bf16_f32 v{PB+ri}, v{r}, v{r+1}")
    g(f"v_cvt_pk_bf16_f32 v{PB+4}, v{SC+8}, v{SC+9}\nv_cvt_pk_bf16_f32 v{PB+7}, v{SC+8}, v{SC+9}")
    for x in range(2):
        for e in (2*x, 2*x + 1): g(mf16(OA + 4*e, v(VR_ + 4*e, 4), v(PB, 4), True))
        for e in (2*x, 2*x + 1): g(f"v_mfma_f32_16x16x16_bf16 {v(OA+4*e,4)}, {v(VM+2*(e >> 1),2)}, {v(PB+4+2*(e & 1),2)}, {v(OA+4*e,4)}")
    for x in range(2):
        if x: g("s_nop 2")
        for r in range(4): g(f"v_cvt_pk_bf16_f32 v{KM+4*x+r}, v{OA+8*x+r}, v{OA+8*x+4+r}")
        g(f"buffer_store_dwordx4 {v(KM+4*x,4)}, v{LN16}, {WSD}, s{S_T0} offen offset:{x*1024} {sto}")
    g(f"""
    s_lshl_b32 s{S_T2}, s{S_SEG}, 7
    s_add_u32 s{S_T2}, s{S_T2}, {WS_OF}
    s_lshl_b32 s{S_T1}, s{S_TK}, 2
    s_add_u32 s{S_T1}, s{S_T1}, s{S_T2}
    s_lshl_b32 s{S_T0}, s{S_OB}, 1
    s_add_u32 s{S_T0}, s{S_T0}, s{S_TH}
    s_lshl_b32 s{S_T0}, s{S_T0}, 2
    s_add_u32 s{S_T0}, s{S_T0}, s{S_WAVE}
    s_lshl_b32 s{S_T0}, s{S_T0}, 15
    s_add_u32 s{S_HO}, s{S_T0}, {WS_O}
    s_waitcnt vmcnt(0)
    s_barrier
    """)
    pstamp(g, opt, 5)
    set_flag(g, "p3_of", S_T1, st)
    spin_flags(g, "p3_ow", OFA, S_T2, 0)
    pstamp(g, opt, 6)
    NB = 16

    def old(k):
        if k & 7 == 0: g(quarter(k >> 3, 13, S_HO))
        g(f"buffer_load_dwordx4 {v(ST+4*(k % NB),4)}, v{LN16}, {WSD}, s{S_GB} offen offset:{(k & 3)*1024} sc1")
        if k & 7 == 3: g(f"s_add_u32 s{S_GB}, s{S_GB}, 4096")
    for k in range(NB): old(k)
    for k in range(32):
        g(f"s_waitcnt vmcnt({min(NB - 1, 31 - k)})")
        for t in range(2): g(mf16(ACC + 4*t, wreg("o", k, t), v(ST + 4*(k % NB), 4), k == 0))
        if k + NB < 32: old(k + NB)
    pstamp(g, opt, 7)
    reduce(SC)
    pstamp(g, opt, 8)
    g(f"""
    v_pk_mul_f32 {v(SC,2)}, {v(SC,2)}, {v(GV,2)}
    v_cvt_pk_bf16_f32 v{SC}, v{SC}, v{SC+1}
    v_and_b32 v{SC+1}, s{S_C0}, v{SC}
    v_lshlrev_b32 v{SC}, 16, v{SC}
    v_pk_add_f32 {v(SC,2)}, {v(SC,2)}, {v(XV,2)}
    v_cvt_pk_bf16_f32 v{SC}, v{SC}, v{SC+1}
    buffer_store_dword v{SC}, v{XA}, s[{S_OUT}:{S_OUT+3}], s{S_XO} offen {opt.get('ofl', '')}
    s_xor_b32 s{S_OB}, s{S_OB}, 1
    s_add_u32 s{S_SEG}, s{S_SEG}, {NTEAM}
    s_cmp_lt_u32 s{S_SEG}, {NSEG}
    s_barrier
    s_cbranch_scc1 L_p3_seg
    """)
    bad += hazard.check(g.lines[m1:], "p3 loop")
    wstamp(g, opt, 4, True)
    if opt.get("dbgt"):
        g(f"s_cmp_lg_u32 s{S_WAVE}, 0\ns_cbranch_scc1 L_dt2\ns_cmp_lg_u32 s{S_XCC}, 5\ns_cbranch_scc1 L_dt2")
        dbg_time(g, opt, 6)
        g("L_dt2:")
    g("s_waitcnt vmcnt(0)\ns_endpgm")
    return bad


def worker_roles(g, opt):
    m0 = g.mark()
    worker_init(g)
    bad = hazard.check(g.lines[m0:], "worker init")
    g(f"s_cmp_ge_u32 s{S_WI}, 160\ns_cbranch_scc1 L_ffn")
    bad += qkv_role(g, opt)
    g("s_branch L_p3\nL_ffn:")
    bad += ffn_role(g, opt)
    g("L_p3:")
    wstamp(g, opt, 2)
    bad += p3_role(g, opt)
    return bad
```

```python
from asmlib import *
from layout import *

S_WS = 4
S_W = 8
P_X, P_MEM0, P_WQ, P_WK, P_WV, P_WO, P_SEG, P_BX, P_WG, P_WU, P_WD, P_OUT, P_DBG, P_WSP = range(16, 44, 2)
S_XCC, S_TK, S_WAVE = 44, 45, 46
S_SPIN = 3
S_SENT = 12
SENT = 0xffbfffbf
S_T0, S_T1, S_T2, S_T3 = 47, 48, 49, 50
S_STEP, S_H1ST, S_H1ST2, S_H1LD, S_H1LD2, S_TAG, S_H2LD, S_H2LD2, S_H2ST, S_KV, S_PUB, S_FREE0, S_SC, S_FL, S_FREE1 = range(51, 66)
S_HF = 66
S_RDY = 68
S_ONE = 70
S_H2RS, S_F12 = 72, 73
S_KV2, S_VV = 100, 101
IDX, LW, LM, H1ST, H2ST, QW, QR, KR, OW, FLG, TCH = range(1, 12)
VN, PA, VX, ACC, M, POOL, KN, WRES = 12, 20, 24, 40, 64, 96, 144, 152
FV, GM, FAD, FST = VX + 3, VX + 7, VX + 11, VX + 15
A = [ACC + 4 * i for i in range(6)]
LDS_WAVE = 38912
LDS_MISC = 155648
L_KX = LDS_MISC
L_QK = LDS_MISC
L_O = L_QK + 4096
SPIN_MAX = 1 << 13

G_R = [[(m, 0, t), (m, 1, t)] for m, t in (("q", 0), ("v", 1), ("k", 3), ("q", 7), ("k", 7), ("v", 7))]
G_M = G_R[1] + G_R[2] + G_R[3]
G_QK = G_R[4] + G_R[5] + G_R[0]
G_O = [("o", 4, 1), ("o", 5, 0), ("o", 5, 1), ("o", 6, 0), ("o", 6, 1), ("o", 7, 0), ("o", 7, 1)]
LDS_IDX = {k: i for i, k in enumerate(G_M + G_O[:2] + G_O[4:6] + G_R[4] + G_R[0] + G_R[5] + G_O[2:4] + G_O[6:])}
LOC = {}
for k, i in zip(G_O, (4, 5, 1, 2, 3, 0, 4)):
    LOC[k] = ("v", POOL + 8 * i)
for k in G_M + G_QK:
    LOC[k] = ("v", POOL + 32 + 8 * k[1])
_n = 0
for k in [(m, x, t) for m in "qkv" for t in range(8) for x in range(2)] + [("o", x, t) for x in range(8) for t in range(2)]:
    if k in LOC: continue
    LOC[k] = ("a", 8 * _n) if _n < 32 else ("v", WRES + 8 * (_n - 32))
    _n += 1
assert _n == 45


def rng(f, b, n):
    return a(b, n) if f == "a" else v(b, n)


def wop(k):
    return rng(LOC[k][0], LOC[k][1], 8)


def smf(d, aop, k, abid=0):
    b = wop(k) if isinstance(k, tuple) else k
    return f"v_smfmac_f32_16x16x64_bf16 {v(d,4)}, {v(aop,4)}, {b}, {v(IDX)}" + (" abid:1" if abid else "")


def mf(d, x, y, c):
    return f"v_mfma_f32_16x16x32_bf16 {v(d,4)}, {v(x,4)}, {v(y,4)}, " + ("0" if c is None else v(c, 4))


def stage_reads(grp):
    return [f"ds_read_b128 {v(LOC[k][1]+4*hh,4)}, {v(LW)} offset:{LDS_IDX[k]*2048+hh*1024}" for k in grp for hh in range(2)]


def zero(base, n):
    return [f"v_mov_b64 {v(base+2*i,2)}, 0" for i in range(n // 2)]


def set_srd(g, ptr, nbytes):
    g(f"s_mov_b32 s{S_W}, s{ptr}\ns_mov_b32 s{S_W+1}, s{ptr+1}\ns_mov_b32 s{S_W+2}, {nbytes}\ns_mov_b32 s{S_W+3}, 0x20000")


def dbg_time(g, opt, slot, neg=False):
    if not opt.get("dbgt"): return
    g(f"""
    s_memrealtime s[88:89]
    s_waitcnt lgkmcnt(0)
    {'s_not_b32 s88, s88' if neg else ''}
    v_mov_b32 v90, {4*slot}
    v_mov_b32 v91, s88
    s_mov_b64 exec, 1
    global_atomic_umax v90, v91, s[{P_DBG}:{P_DBG+1}]
    s_mov_b64 exec, -1
    """)


def load_weights(g, hooks, nt, order, ahead=0, tfl='', depth=4):
    RA, RO, DQ, DO = 10, 12, 20, 21
    T0, T1, T2, T3 = 56, 57, 58, 59
    g(f"""
    v_and_b32 v{T0}, 63, v0
    v_lshrrev_b32 v{T1}, 4, v{T0}
    v_and_b32 v{T2}, 15, v{T0}
    s_and_b32 s{S_T0}, s{S_WAVE}, 1
    s_lshr_b32 s{S_T1}, s{S_WAVE}, 1
    s_lshl_b32 s{S_T1}, s{S_T1}, 6
    s_add_u32 s{S_T1}, s{S_T1}, s{S_T0}
    s_lshl_b32 s{S_T1}, s{S_T1}, 14
    s_lshl_b32 s{S_T2}, s{S_TK}, 8
    s_add_u32 s{S_T1}, s{S_T1}, s{S_T2}
    s_lshl_b32 s{S_T0}, s{S_T0}, 3
    v_lshlrev_b32 v{T3}, 1, v{T1}
    v_xor_b32 v{T3}, v{T3}, v{T2}
    v_xor_b32 v{DQ}, s{S_T0}, v{T3}
    v_lshlrev_b32 v{DQ}, 4, v{DQ}
    v_lshlrev_b32 v{DO}, 4, v{T3}
    v_lshrrev_b32 v{T2}, 1, v{T1}
    v_and_b32 v{T3}, 1, v{T1}
    v_lshl_add_u32 v{DQ}, v{T2}, 16, v{DQ}
    v_lshl_add_u32 v{DQ}, v{T3}, 17, v{DQ}
    v_add_u32 v{DQ}, s{S_T1}, v{DQ}
    v_lshl_add_u32 v{DO}, v{T2}, 12, v{DO}
    v_lshl_add_u32 v{DO}, v{T3}, 14, v{DO}
    s_lshl_b32 s{S_T1}, s{S_TK}, 17
    s_lshl_b32 s{S_T2}, s{S_WAVE}, 8
    s_add_u32 s{S_T1}, s{S_T1}, s{S_T2}
    v_add_u32 v{DO}, s{S_T1}, v{DO}
    v_xor_b32 v{DO+1}, 0x80, v{DO}
    """)
    g(f"""
    v_bfe_u32 v{T2}, v{T0}, 2, 2
    v_and_b32 v{T3}, 1, v{T1}
    v_lshl_add_u32 v{T3}, v{T3}, 2, v{T2}
    v_lshlrev_b32 v{T3}, 5, v{T3}
    v_lshl_add_u32 v{T3}, v{T2}, 8, v{T3}
    v_and_b32 v{T2}, 3, v{T0}
    v_lshl_add_u32 v{T3}, v{T2}, 3, v{T3}
    s_lshl_b32 s{S_T0}, s{S_WAVE}, 6
    v_xor_b32 v{RA}, s{S_T0}, v{T3}
    s_mov_b32 s{S_T0}, {LDS_WAVE}
    v_mul_lo_u32 v{T2}, s{S_T0}, v{T1}
    v_add_u32 v{RA}, v{RA}, v{T2}
    v_xor_b32 v{RA+1}, 32, v{RA}
    s_mul_i32 s{S_T3}, s{S_WAVE}, {LDS_WAVE}
    v_lshl_add_u32 v{RO}, v{T1}, 10, v{T3}
    v_add_u32 v{RO}, s{S_T3}, v{RO}
    """)
    for tau in range(1, 8):
        g(f"v_xor_b32 v{RO+tau}, {32*tau}, v{RO}")
    TA_, TD_, S_W2 = 23, 9, 92
    if ahead:
        g(f"""
        v_bfe_u32 v{T2}, v{T0}, 4, 1
        v_lshlrev_b32 v{TA_}, 16, v{T2}
        v_bfe_u32 v{T2}, v{T0}, 3, 1
        v_lshl_add_u32 v{TA_}, v{T2}, 17, v{TA_}
        v_lshrrev_b32 v{T2}, 5, v{T0}
        v_lshl_add_u32 v{TA_}, v{T2}, 15, v{TA_}
        v_and_b32 v{T2}, 7, v{T0}
        v_lshl_add_u32 v{TA_}, v{T2}, 7, v{TA_}
        s_lshr_b32 s{S_T0}, s{S_WAVE}, 1
        s_lshl_b32 s{S_T0}, s{S_T0}, 20
        s_and_b32 s{S_T1}, s{S_WAVE}, 1
        s_lshl_b32 s{S_T1}, s{S_T1}, 14
        s_add_u32 s{S_T0}, s{S_T0}, s{S_T1}
        s_and_b32 s{S_T1}, s{S_TK}, 2
        s_lshl_b32 s{S_T1}, s{S_T1}, 20
        s_add_u32 s{S_T0}, s{S_T0}, s{S_T1}
        s_and_b32 s{S_T1}, s{S_TK}, 1
        s_lshl_b32 s{S_T1}, s{S_T1}, 13
        s_add_u32 s{S_T0}, s{S_T0}, s{S_T1}
        s_and_b32 s{S_T1}, s{S_TK}, 28
        s_lshl_b32 s{S_T1}, s{S_T1}, 8
        s_add_u32 s{S_T0}, s{S_T0}, s{S_T1}
        v_add_u32 v{TA_}, s{S_T0}, v{TA_}
        """)
    ops = []
    stages = [(m, t) for m in order for t in range(8)]

    def touch(j):
        if not ahead or j >= len(stages) or stages[j][0] == "o" or stages[j][1] & 1: return
        m, t = stages[j]
        if t == 0:
            p = {"q": P_WQ, "k": P_WK, "v": P_WV}[m]
            g(f"s_mov_b32 s{S_W2}, s{p}\ns_mov_b32 s{S_W2+1}, s{p+1}\ns_mov_b32 s{S_W2+2}, {4*MB}\ns_mov_b32 s{S_W2+3}, 0x20000")
        g(f"s_mov_b32 s{S_T0}, {(64 * (t >> 2) + 32 * ((t >> 1) & 1)) * 8192}\nbuffer_load_dword v{TD_}, v{TA_}, s[{S_W2}:{S_W2+3}], s{S_T0} offen {tfl}")
        ops.append(-1)
    park = {}
    for i, k in enumerate(G_QK): park[k] = ("v", POOL + 8 * i)
    for i, k in enumerate(G_O): park[k] = ("v", M + 8 * i) if i < 4 else ("v", VX + 8 * (i - 4)) if i < 6 else ("v", KN)
    for k in G_M: park[k] = ("v", ACC + 8 * k[1])

    assert stages[-1] == G_R[5][0][::2] and depth <= 3

    def unpark(idx):
        for k in park:
            if LDS_IDX[k] in idx:
                for hh in range(2): g(f"ds_write_b128 v{LW}, {v(park[k][1]+4*hh,4)} offset:{LDS_IDX[k]*2048+hh*1024}")

    def issue(i):
        m, t = stages[i]
        if t == 0:
            set_srd(g, {"q": P_WQ, "k": P_WK, "v": P_WV, "o": P_WO}[m], 4 * MB)
        for x in range(4):
            if m == "o":
                row = 64 * (t >> 2) + 32 * ((t >> 1) & 1) + (t & 1) + 8 * (x >> 1) + 2 * (x & 1)
                so, vo = row * 1024, DO + (x & 1)
            else:
                so, vo = (256 * (x >> 1) + (x & 1) + 64 * (t >> 2) + 32 * ((t >> 1) & 1) + 4 * (t & 1)) * 8192, DQ
            g(f"s_add_u32 m0, s{S_T3}, {16384 + (i % 4) * 4096 + x * 1024}")
            g(f"s_mov_b32 s{S_T0}, {so}")
            g(f"buffer_load_dwordx4 v{vo}, s[{S_W}:{S_W+3}], s{S_T0} offen {'nt' if m in nt else ''} lds")
            ops.append(i)
        touch(i + ahead)

    for i in range(depth):
        issue(i)
    if -1 in hooks:
        hooks[-1]()
        ops.extend([-1] * 7)
    for i, (m, t) in enumerate(stages):
        g(f"s_waitcnt vmcnt({ops[::-1].index(i)}) lgkmcnt(0)\ns_barrier")
        if i and stages[i - 1] == ("o", 7): unpark((6, 7, 16, 17, 18))
        if i > len(stages) - 4: unpark((8 + 2 * ((i - 1) % 4), 9 + 2 * ((i - 1) % 4)))
        if i in hooks: hooks[i]()
        if i + depth < len(stages):
            issue(i + depth)
        base = 16384 + (i % 4) * 4096
        for x in range(8):
            if m == "o":
                k, rho, ad, off = ("o", x, t >> 2), t & 3, RO + x, base
            else:
                k, rho, ad, off = (m, x >> 2, t), x & 3, RA + (x >> 2), base + (x & 3) * 1024
            f, b = park.get(k, LOC[k])
            g(f"ds_read_b64_tr_b16 {rng(f, b + 2*rho, 2)}, v{ad} offset:{off}")
        if (m, 0, t) in G_M:
            g("s_waitcnt lgkmcnt(0)")
            for sg in range(2):
                for hh in range(2):
                    g(f"ds_write_b128 v{LW}, {v(ACC+8*sg+4*hh,4)} offset:{LDS_IDX[(m,sg,t)]*2048+hh*1024}")
    g("s_waitcnt lgkmcnt(0)\ns_barrier")
    unpark((14, 15))


def setup_early(g, st):
    T0, T1, T2, T3 = 56, 57, 58, 59
    g(f"""
    v_and_b32 v{T0}, 63, v0
    v_lshlrev_b32 v{LM}, 4, v{T0}
    s_mul_i32 s{S_T0}, s{S_WAVE}, {LDS_WAVE}
    v_add_u32 v{LW}, s{S_T0}, v{LM}
    v_add_u32 v{LM}, {LDS_MISC}, v{LM}
    v_lshrrev_b32 v{T1}, 4, v{T0}
    v_and_b32 v{T2}, 15, v{T0}
    s_lshl_b32 s{S_T0}, s{S_WAVE}, 3
    v_lshrrev_b32 v{T3}, 3, v{T0}
    v_add_u32 v{T3}, s{S_T0}, v{T3}
    v_lshlrev_b32 v{H1ST}, 13, v{T3}
    v_lshl_add_u32 v{T3}, v{T3}, 1, s{S_TK}
    v_and_b32 v{T3}, 31, v{T3}
    v_lshl_add_u32 v{H1ST}, v{T3}, 7, v{H1ST}
    v_and_b32 v{T3}, 7, v{T0}
    v_lshl_add_u32 v{H1ST}, v{T3}, 3, v{H1ST}
    v_lshrrev_b32 v{T3}, 3, v{T2}
    v_lshlrev_b32 v{H2ST}, 29, v{T3}
    v_bfe_u32 v{T3}, v{T2}, 1, 1
    v_lshl_add_u32 v{H2ST}, v{T3}, 11, v{H2ST}
    v_bfe_u32 v{T3}, v{T2}, 2, 1
    v_lshl_add_u32 v{H2ST}, v{T3}, 7, v{H2ST}
    v_and_b32 v{T3}, 1, v{T2}
    v_lshl_add_u32 v{H2ST}, v{T3}, 3, v{H2ST}
    v_and_b32 v{T3}, 1, v{T1}
    v_lshl_add_u32 v{H2ST}, v{T3}, 4, v{H2ST}
    v_lshrrev_b32 v{T3}, 1, v{T1}
    v_lshl_add_u32 v{H2ST}, v{T3}, 30, v{H2ST}
    s_and_b32 s{S_T0}, s{S_TK}, 3
    s_lshl_b32 s{S_T0}, s{S_T0}, 5
    s_lshr_b32 s{S_T1}, s{S_TK}, 2
    s_lshl_b32 s{S_T1}, s{S_T1}, 8
    s_add_u32 s{S_T0}, s{S_T0}, s{S_T1}
    s_and_b32 s{S_T2}, s{S_WAVE}, 1
    s_lshl_b32 s{S_T2}, s{S_T2}, 12
    s_add_u32 s{S_T0}, s{S_T0}, s{S_T2}
    v_add_u32 v{H2ST}, s{S_T0}, v{H2ST}
    """)
    g(f"""
    s_mov_b32 s{S_STEP}, 0
    s_lshl_b32 s{S_T0}, s{S_TK}, 13
    s_add_u32 s{S_H1LD}, s{S_T0}, {WS_H1 - LDS_MISC}
    s_mov_b32 s{S_H1ST}, {WS_H1}
    s_mov_b32 s{S_H1ST2}, {WS_H1 + 4096}
    s_mov_b32 s{S_H2LD}, {WS_H2}
    s_mov_b32 s{S_H2LD2}, {WS_H2 + 4096}
    s_lshl_b32 s{S_T0}, s{S_TK}, 14
    s_add_u32 s{S_KV}, s{S_T0}, {WS_KV - LDS_MISC}
    s_lshl_b32 s{S_T0}, s{S_TK}, 2
    s_add_u32 s{S_T0}, s{S_T0}, s{S_WAVE}
    s_lshl_b32 s{S_T0}, s{S_T0}, 10
    s_add_u32 s{S_F12}, s{S_T0}, {WS_PUB - LDS_MISC}
    s_mov_b32 s{S_PUB}, 0x40000000
    s_lshl_b32 s{S_T0}, s{S_TK}, 8
    s_add_u32 s{S_FL}, s{S_T0}, {WS_FLAGS}
    s_mov_b32 s{S_HF}, 0xcccccccc
    s_mov_b32 s{S_HF+1}, 0xcccccccc
    s_mov_b32 s{S_SC}, 0x3e0293ee
    s_mov_b32 s{S_SC-1}, 0x3e0293ee
    v_mov_b64 v[60:61], -1
    v_mov_b64 v[62:63], -1
    s_lshl_b32 s{S_T1}, s{S_WAVE}, 11
    s_add_u32 s{S_T1}, s{S_T1}, s{S_H1LD}
    s_add_u32 s{S_H1LD}, s{S_H1LD}, s{S_T2}
    """)
    for x in range(2):
        g(f"buffer_store_dwordx4 v[60:63], v{LM}, s[{S_WS}:{S_WS+3}], s{S_T1} offen offset:{x*1024} {st}")
    g(f"""
    s_mov_b32 s{S_H2RS}, {WS_H2 + 8192}
    v_mov_b32 v51, 0
    s_mov_b32 s{S_FREE1}, {WS_H2 + 16384}
    s_lshl_b32 s{S_H1LD2}, s{S_TK}, 2
    s_add_u32 s{S_H1LD2}, s{S_H1LD2}, s{S_FREE1}
    buffer_store_dword v51, v51, s[{S_WS}:{S_WS+3}], s{S_H1LD2} offen {st}
    """)
    set_srd(g, P_MEM0, 8192)
    g(f"""
    s_lshr_b32 s{S_T0}, s{S_TK}, 3
    s_lshl_b32 s{S_T0}, s{S_T0}, 8
    s_and_b32 s{S_T1}, s{S_TK}, 1
    s_lshl_b32 s{S_T1}, s{S_T1}, 4
    s_add_u32 s{S_T0}, s{S_T0}, s{S_T1}
    s_lshr_b32 s{S_T1}, s{S_T2}, 5
    s_add_u32 s{S_T0}, s{S_T0}, s{S_T1}
    s_and_b32 s{S_T1}, s{S_TK}, 6
    s_lshl_b32 s{S_T1}, s{S_T1}, 10
    s_add_u32 s{S_T0}, s{S_T0}, s{S_T1}
    v_and_b32 v{T3}, 1, v{T1}
    v_lshlrev_b32 v{T3}, 10, v{T3}
    v_and_b32 v52, 3, v{T2}
    v_lshl_add_u32 v{T3}, v52, 2, v{T3}
    v_bfe_u32 v52, v{T2}, 2, 1
    v_lshl_add_u32 v{T3}, v52, 6, v{T3}
    buffer_load_ushort v52, v{T3}, s[{S_W}:{S_W+3}], s{S_T0} offen
    buffer_load_ushort v53, v{T3}, s[{S_W}:{S_W+3}], s{S_T0} offen offset:32
    buffer_load_ushort v54, v{T3}, s[{S_W}:{S_W+3}], s{S_T0} offen offset:2
    buffer_load_ushort v55, v{T3}, s[{S_W}:{S_W+3}], s{S_T0} offen offset:34
    """)


def store_mem0(g, st):
    g(f"""
    s_mov_b32 s{S_T0}, {WS_H2}
    v_lshl_or_b32 v52, v53, 16, v52
    v_lshl_or_b32 v53, v55, 16, v54
    v_cmp_ne_u32 vcc, s{S_SENT}, v52
    s_nop 1
    v_cndmask_b32 v52, -1, v52, vcc
    v_cmp_ne_u32 vcc, s{S_SENT}, v53
    s_nop 1
    v_cndmask_b32 v53, -1, v53, vcc
    buffer_store_dwordx2 v[52:53], v{H2ST}, s[{S_WS}:{S_WS+3}], s{S_T0} offen {st}
    """)


def setup_late(g):
    T0, T1, T2, T3 = 56, 57, 58, 59
    g(f"""
    v_and_b32 v{T0}, 63, v0
    v_lshrrev_b32 v{T1}, 4, v{T0}
    v_and_b32 v{T2}, 15, v{T0}
    v_mov_b32 v{IDX}, 0x44444444
    v_mov_b32 v{T3}, 0x4e1eeeee
    v_cndmask_b32 v{IDX}, v{IDX}, v{T3}, s[{S_HF}:{S_HF+1}]
    s_lshl_b32 s{S_T0}, s{S_WAVE}, 10
    s_add_u32 s{S_T0}, s{S_T0}, {L_QK}
    v_lshrrev_b32 v{T3}, 2, v{T2}
    v_lshlrev_b32 v{QW}, 7, v{T3}
    v_lshl_add_u32 v{QW}, v{T1}, 5, v{QW}
    v_and_b32 v{T3}, 1, v{T3}
    v_lshlrev_b32 v{T3}, 6, v{T3}
    v_xor_b32 v{QW}, v{QW}, v{T3}
    v_and_b32 v{T3}, 3, v{T2}
    v_lshl_add_u32 v{QW}, v{T3}, 2, v{QW}
    v_add_u32 v{QW}, s{S_T0}, v{QW}
    v_lshlrev_b32 v{QR}, 7, v{T1}
    v_add_u32 v{QR}, {L_QK}, v{QR}
    v_and_b32 v{T3}, 1, v{T2}
    v_lshl_add_u32 v{QR}, v{T3}, 4, v{QR}
    v_add_u32 v{KR}, 512, v{QR}
    v_lshrrev_b32 v{T3}, 2, v{T2}
    v_lshl_add_u32 v{QR}, v{T3}, 5, v{QR}
    v_lshrrev_b32 v{T3}, 3, v{T2}
    v_lshl_add_u32 v{KR}, v{T3}, 5, v{KR}
    v_lshrrev_b32 v{T3}, 1, v{T2}
    v_xor_b32 v{T3}, v{T3}, v{T2}
    v_and_b32 v{T3}, 2, v{T3}
    v_lshl_add_u32 v{KR}, v{T3}, 5, v{KR}
    v_and_b32 v{T3}, 1, v{T1}
    v_lshlrev_b32 v{T3}, 6, v{T3}
    v_xor_b32 v{QR}, v{QR}, v{T3}
    v_xor_b32 v{KR}, v{KR}, v{T3}
    s_lshl_b32 s{S_T0}, s{S_WAVE}, 9
    s_add_u32 s{S_T0}, s{S_T0}, {L_O}
    v_lshrrev_b32 v{T3}, 3, v{T2}
    v_lshlrev_b32 v{OW}, 8, v{T3}
    v_lshl_add_u32 v{OW}, v{T1}, 6, v{OW}
    v_bfe_u32 v{T3}, v{T2}, 2, 1
    v_lshl_add_u32 v{OW}, v{T3}, 5, v{OW}
    v_and_b32 v{T3}, 3, v{T2}
    v_lshl_add_u32 v{OW}, v{T3}, 2, v{OW}
    v_add_u32 v{OW}, s{S_T0}, v{OW}
    """)
    g(f"s_mov_b32 s{S_ONE}, 0x3f803f80\ns_mov_b32 s{S_ONE+1}, 0x3f803f80")
    for x in zero(PA, 4) + zero(VX, 16) + zero(ACC, 16): g(x)
    g(f"""
    v_lshrrev_b32 v{T3}, 3, v{T0}
    v_lshlrev_b32 v{GM}, 8, v{T3}
    v_and_b32 v{T3}, 7, v{T0}
    v_lshl_add_u32 v{GM}, v{T3}, 4, v{GM}
    v_and_b32 v{FAD}, 31, v0
    v_lshlrev_b32 v{FAD}, 2, v{FAD}
    v_min_u32 v{FST}, 1, v{T0}
    v_lshlrev_b32 v{FST}, 30, v{FST}
    """)


def kv_addr(w):
    return [f"s_add_u32 s{S_KV2}, s{S_KV}, {w*2048}", f"s_add_u32 s{S_VV}, s{S_KV}, {8192 + w*2048}"]


def k_loads():
    return [f"buffer_load_dwordx4 {v(KN+4*x,4)}, v{LM}, s[{S_WS}:{S_WS+3}], s{S_KV2} offen offset:{x*1024} ;@kv" for x in range(2)]


def v_loads():
    return [f"buffer_load_dwordx4 {v(VN+4*sg,4)}, v{LM}, s[{S_WS}:{S_WS+3}], s{S_VV} offen offset:{sg*1024} ;@kv" for sg in range(2)]


def mzero(base, n):
    op = {4: "4x4x1_16b", 16: "16x16x1_4b"}[n]
    return f"v_mfma_f32_{op}_f32 {v(base,n)}, v{PA+3}, v{PA+3}, 0"


def v_moves(src_):
    return [f"v_mov_b64 {v(VX+4*i,2)}, {v(src_+2*i,2)}" for i in range(4)]


def wait_flag(g, tag, seg_sgpr):
    g(f"""
    L_{tag}:
    buffer_load_dword v{FLG}, v{TCH}, s[{S_WS}:{S_WS+3}], s{S_FL} offen sc1
    s_add_u32 s{S_SPIN}, s{S_SPIN}, 1
    s_cmp_gt_u32 s{S_SPIN}, {SPIN_MAX}
    s_cbranch_scc1 L_{tag}_out
    s_waitcnt vmcnt(0)
    v_cmp_eq_u32 s[{S_RDY}:{S_RDY+1}], 1, v{FLG}
    s_nop 4
    s_bitcmp1_b64 s[{S_RDY}:{S_RDY+1}], s{seg_sgpr}
    s_cbranch_scc0 L_{tag}
    L_{tag}_out:
    s_waitcnt vmcnt(0)
    """)


def wave_loop(g, w, st, tag, opt):
    stamps = opt.get("stamps")
    WSD = f"s[{S_WS}:{S_WS+3}]"
    nst = [0]

    def stamp():
        if not stamps: return []
        i = nst[0]; nst[0] += 1
        if isinstance(stamps, list) and i not in stamps: return []
        if opt.get("rt") and w + 1 != opt["rt"]: return []
        return [f"s_mem{'real' if opt.get('rt') and not opt.get('cyc') else ''}time s[{74+2*i}:{75+2*i}]"]

    L = lambda x: f"L_{tag}{w}_{x}"
    T0 = 56
    KR_, OW_, SEL = (FAD, FST, KR) if w >= 2 else (KR, OW, None)
    kpos = lambda c: ((6, 4, 0, 2)[c >> 1] + (c & 1)) * 1024
    kxr = [f"ds_read_b128 {v(POOL+4*c,4)}, v{LM} offset:{kpos(c)}" for c in range(8)]
    if w == 0:
        g(f"v_lshlrev_b32 v{TCH}, 2, v0\nv_mov_b32 v{FV}, 1")
    if w == 1 and opt.get("wb"):
        g(f"s_cmp_lt_u32 s{S_TK}, {opt['wb'][1]}\ns_cselect_b32 s{S_H1LD}, {opt['wb'][0]}, 64")
    if w >= 2:
        g(f"""
        v_and_b32 v{T0}, 15, v0
        v_and_b32 v{T0+1}, 1, v0
        v_mov_b32 v{KR_}, v{KR}
        v_mov_b32 v{OW_}, v{OW}
        v_lshlrev_b32 v{T0+1}, 4, v{T0+1}
        v_mov_b32 v{T0+2}, 0x3f80
        v_lshlrev_b32 v{T0+1}, v{T0+1}, v{T0+2}
        v_lshrrev_b32 v{T0}, 1, v{T0}
        """)
        for i in range(4):
            g(f"v_cmp_eq_u32 vcc, {(0, 2, 1, 3)[i]}, v{T0}\ns_nop 1\nv_cndmask_b32 v{SEL+i}, 0, v{T0+1}, vcc")
    for x in zero(ACC + 16, 8): g(x)
    kwr = [f"ds_write_b128 v{LM}, {v(KN+4*x,4)} offset:{kpos(2*w + x)} ;@kxw" for x in range(2)]
    nxt = [f"s_add_u32 s{S_KV}, s{S_KV}, {512*KB}"] + kv_addr(w)
    for x in ["s_waitcnt vmcnt(0)"] + kwr + v_moves(VN) + ["s_waitcnt lgkmcnt(0)", "s_barrier"] + kxr + stage_reads(G_R[(0, 1, 2, 2)[opt.get("r0", [0, 1, 0, 1])[w]]]) + nxt + ["s_waitcnt lgkmcnt(0)"]:
        g(x.split(";@")[0])
    if w == 0: dbg_time(g, opt, 4)
    if opt.get("count"):
        g("s_memtime s[92:93]\ns_memrealtime s[94:95]\ns_waitcnt lgkmcnt(0)\ns_mov_b32 s15, s94")
    body = []
    E = body.extend
    nops = lambda k: [f"s_nop {x}" for x in opt.get(k, [])]
    red = w >= 2
    MB_ = lambda t: L_O + (t - 4) * 1024
    mo = lambda t: (t & 1) * 2048 + ((t >> 1) & 1) * 128
    mld = lambda t: f"buffer_load_dwordx4 {v(M+4*t,4)}, v{GM}, {WSD}, s{S_H2LD if t < 4 else S_H2LD2} offen offset:{mo(t)} sc1"
    dma = f"buffer_load_dwordx4 v{GM}, {WSD}, s{S_H2LD2} offen offset:{mo(w)} sc1 lds ;@dma"
    SP, CK = M + 16 + 4 * w, PA + 2
    smp = mld(4 + w) + " ;@smp"
    R = A[5]
    pc = opt.get("pace", 15)
    pace = [f"s_nop {min(pc, 15)}"] + ([f"s_nop {pc - 16}"] if pc > 15 else [])
    cl = [mld(t) + f" ;@c{t}" for t in range(4)]
    r0 = opt.get("r0", [0, 1, 0, 1])[w]
    PRE = (0, 1, 2, 2)
    gap = lambda c: [f"s_nop {min(c, 15)}"] + ([f"s_nop {c - 16}"] if c > 15 else [])
    gather = [cl[r0]] + pace + [cl[(r0 + 1) & 3]] + gap(opt.get("pace2", pc)) + [cl[(r0 + 2) & 3]] + gap(opt.get("pace3", pc)) + [cl[(r0 + 3) & 3]]
    nt = opt.get("nt", "sc1")
    vl = v_loads()
    kvl = [x.replace(" ;@", f" {nt} ;@") for x in k_loads() + vl]
    cv = lambda d, q: f"v_cvt_pk_bf16_f32 v{d}, v{q}, v{q+1}"
    h1l = lambda HB: [f"buffer_load_dwordx4 {v(HB+4*t,4)}, v{LM}, {WSD}, s{S_H1LD} offen offset:{t*1024} sc1" for t in range(4)]
    two = opt.get("two", [1, 1])[w & 1]

    def reduce(HB, name, younger=None):
        out = [f"{L(name)}:"]
        for t in range(4):
            out += [f"s_waitcnt vmcnt({3 - t + (4*two if younger is None else younger)})", mf(R, SEL or 0, HB + 4*t, None if t == 0 else R)]
            out += [f"v_xor_b32 v{PA}, s{S_TAG}, v{HB}" if t == 0 else f"v_bitop3_b32 v{PA}, v{PA}, v{HB+4*t}, s{S_TAG} bitop3:0xf6",
                    f"v_bitop3_b32 v{PA}, v{PA}, v{HB+4*t+2}, s{S_TAG} bitop3:0xf6"]
        if opt.get("eb"):
            fold = [f"v_add_f32_dpp v{HB+r}, v{R+r}, v{R+r} row_ror:8 row_mask:0xf bank_mask:0xf" for r in range(4)] + [cv(HB + 4, HB), cv(HB + 5, HB + 2)]
            out = out[:-3] + out[-2:] + [f"v_and_b32 v{PA}, 1, v{PA}", out[-3]] if opt["eb"] == 2 else out + [f"v_and_b32 v{PA}, 1, v{PA}"]
            k_ = 0 if opt["eb"] == 2 else 3
            return out + ([f"v_cmp_eq_u32 vcc, 1, v{PA}", "s_nop 4" if opt["eb"] == 2 else "s_nop 2"] + fold[:k_] +
                          [f"s_cbranch_vccnz {L(name + 'no')}", f"{L(name + 'ok')}:"] + fold[k_:] + [h2st(HB)])
        if opt.get("cp"):
            fold = [f"v_add_f32_dpp v{HB+r}, v{R+r}, v{R+r} row_ror:8 row_mask:0xf bank_mask:0xf" for r in range(4)] + [cv(HB + 4, HB), cv(HB + 5, HB + 2)]
            k_ = 2 if w == 3 else 6
            return out + ([f"v_and_b32 v{PA}, 1, v{PA}", f"v_cmp_eq_u32 vcc, 1, v{PA}", "s_nop 2"] + fold[:k_] +
                          [f"s_cbranch_vccnz {L(name + 'no')}", f"{L(name + 'ok')}:", "s_barrier"] + fold[k_:] + [h2st(HB)])
        return out + ([f"v_and_b32 v{PA}, 1, v{PA}", f"v_cmp_eq_u32 vcc, 1, v{PA}", "s_nop 2"] +
                      [f"v_add_f32_dpp v{HB+r}, v{R+r}, v{R+r} row_ror:8 row_mask:0xf bank_mask:0xf" for r in range(4)] +
                      [cv(HB + 4, HB), cv(HB + 5, HB + 2), f"s_cbranch_vccnz {L(name + 'no')}", f"{L(name + 'ok')}:"] +
                      ([h2st(HB)] if not late_st else [] if HB != M else [h2st(HB), f"s_mov_b32 s{S_H2ST}, 0x40000000"]))
    clean = [f"v_mov_b64 {v(PA,2)}, s[{S_SENT}:{S_SENT+1}]", mzero(R, 4)]
    h2rs = f"buffer_store_dwordx2 {v(PA,2)}, v{H2ST}, {WSD}, s{S_H2RS} offen {st} ;@h2rs"
    E([f"{L('top')}:", "s_barrier"] + (stamp() if opt.get("rt") else []) + [f"{L('again')}:"])
    gather = [cl[r0], f"s_mov_b32 m0, {MB_(4 + w) - mo(w)}"] + gather[1:]
    dp = opt.get("dtop", 0)
    if dp:
        i = gather.index(cl[(r0 + dp - 1) & 3]) + (2 if dp == 1 else 1)
        gather[i:i] = nops("p5") + [dma]
    late_st = opt.get("ls", 0) and w == 3
    h2st = lambda HB: f"buffer_store_dwordx2 {v(HB+4,2)}, v{H2ST}, {WSD}, s{S_H2ST} offen {st}"
    if late_st:
        i = gather.index(pace[0])
        E(gather[:i] + nops("d6") + [h2st(M + 16), f"s_mov_b32 s{S_H2ST}, 0x40000000"] + clean + [f"s_nop {max(9 - sum(x + 1 for x in opt.get('d6', [])), 0)}"] + gather[i+1:])
        g(f"s_mov_b32 s{S_H2ST}, 0x40000000")
    elif red:
        i = gather.index(pace[0])
        E(gather[:i] + clean + [f"s_nop {max(min(pc, 15) - 3, 0)}"] + gather[i+1:])
    else:
        E(gather)
    pubv = f"buffer_store_dwordx4 {v(VN+4,4)}, v{LM}, {WSD}, s{S_PUB} offen {opt.get('pfl', 'sc1')}"
    dump = []
    DT = M + 18
    if stamps:
        dump.extend(["s_waitcnt lgkmcnt(0)"] + [f"v_writelane_b32 v{DT}, s{74+2*i}, {i}" for i in range(9)])
        dump.extend([f"v_subrev_u32 v{DT+1}, {LDS_MISC}, v{LM}", f"v_lshrrev_b32 v{DT+1}, 2, v{DT+1}",
           f"s_lshl_b32 s{S_T0}, s{S_TK}, 2", f"s_add_u32 s{S_T0}, s{S_T0}, {w}", f"s_lshl_b32 s{S_T0}, s{S_T0}, 6", f"s_add_u32 s{S_T0}, s{S_T0}, s{S_STEP}",
           f"s_lshl_b32 s{S_T0}, s{S_T0}, 6", f"s_add_u32 s{S_T0}, s{S_T0}, {WS_STAMP}", "s_mov_b64 exec, 0xffff",
           f"buffer_store_dword v{DT}, v{DT+1}, {WSD}, s{S_T0} offen", "s_mov_b64 exec, -1"])
    if red and opt.get('rt', w + 1) == w + 1: E(dump)
    top_part = list(body)
    c0stamp = stamp()
    order = [(m, sg, t) for t in range(4) for m in "qkv" for sg in range(2)]
    order += [(m, sg, t) for m in "qkv" for t in range(4, 8) for sg in range(2)]
    ch = opt.get("ch", 0)
    if ch:
        order = order[:24] + [("q", sg, t + u) for t in (4, 6) for sg in range(2) for u in range(2)] + [(m, sg, t) for m in "kv" for sg in range(2) for t in range(4, 8)]
    acc = lambda k: A["qkv".index(k[0]) * 2 + k[1]]
    mm = [smf(acc(k), M + 4 * k[2], k) for k in order]
    rs = [tagged(stage_reads(x), f"r{i}") for i, x in enumerate(G_R)]
    mr = [f"ds_read_b128 {v(M+4*t,4)}, v{LM} offset:{MB_(t) - LDS_MISC} ;@m{t}" for t in range(4, 8)]
    add = lambda q, b: f"v_add_f32 v{q+b}, v{q+b}, v{q+2+b}"
    qr = [f"ds_read_b128 {v(M+4*x,4)}, v{QR} offset:{1024*x} ;@qr{x}" for x in range(4)]
    kr = [f"ds_read_b128 {v(M+16+4*x,4)}, v{KR_} offset:{1024*x} ;@kr{x}" for x in range(4)]
    ost = stage_reads(G_O)
    qfin = [add(A[0], 0), add(A[0], 1), add(A[1], 0), add(A[1], 1),
            f"v_cvt_pk_bf16_f32 v{A[0]+2}, v{A[0]}, v{A[1]}", f"v_cvt_pk_bf16_f32 v{A[0]+3}, v{A[0]+1}, v{A[1]+1}",
            f"ds_write_b32 v{QW}, v{A[0]+2} ;@qw", f"ds_write_b32 v{QW}, v{A[0]+3} offset:16 ;@qw"]
    kfin = [add(A[2], 0), add(A[2], 1), add(A[3], 0), add(A[3], 1),
            f"v_cvt_pk_bf16_f32 v{A[3]}, v{A[2]}, v{A[3]}", f"v_cvt_pk_bf16_f32 v{A[3]+1}, v{A[2]+1}, v{A[3]+1}",
            f"ds_write_b32 v{QW}, v{A[3]} offset:512 ;@kw", f"ds_write_b32 v{QW}, v{A[3]+1} offset:528 ;@kw"]
    b0stamp = stamp()

    b0 = opt.get("b0", 18)
    cg = opt.get("cg", 17)

    nd = opt.get("nd", 0)
    pp = opt.get("pp", 0)
    pg2 = opt.get("pg2", [22, 24, 27, 29, 31, 34])
    PR2 = [FLG, TCH, H2ST, 0, FV, FST]

    def common():
        F = Gaps()
        if red: F.put("x", min(4 + w, opt.get("kb", 10) or 9), h2rs)
        if opt.get("kb", 10): F.put("x", opt.get("kb", 10), "s_barrier")
        po = opt.get("po", 0)
        seq = list(kvl)
        if not pp: seq.insert(po, pubv)
        free = [i for i in range(opt.get("k0", 11), 32) if i not in (cg, cg + 1, b0)]
        kgs = [free[min(opt.get("ks", 4) * j + w * opt.get("ks", 4) // 4, len(free) - 1 - (3 - w))] for j in range(5)]
        for j, x in enumerate(seq):
            if not ((x == pubv and opt.get("nopub")) or (x in kvl[:2] and opt.get("nok"))): F.put("x", kgs[j], x)
        if w == 0: F.put("d", 28, f"buffer_load_dword v{FLG}, v{TCH}, {WSD}, s{S_FL} offen sc1 ;@kv")
        if opt.get("al") == 2:
            if w == 0: F.put("x", opt.get("kb", 10), f"buffer_store_dword v{FV}, v{FST}, {WSD}, s{S_H1LD2} offen {st}")
            if w == 1:
                for j, i in enumerate(pg2): F.put("x" if i < 32 else "s", i, f"buffer_load_dword v{PR2[j]}, v{FAD}, {WSD}, s{S_FREE1} offen sc1 ;@p{j}")
        if opt.get("wb") and w == 1:
            F.put("s", 24, f"s_cmp_eq_u32 s{S_STEP}, s{S_H1LD}"); F.put("s", 26, f"s_cbranch_scc1 {L('wb')}", f"{L('wbok')}:")
        F.put("s", 32 if ch else 34, f"s_mov_b32 s{S_PUB}, s{S_F12}"); F.put("s", 33 if ch else 35, f"s_add_u32 s{S_F12}, s{S_F12}, {128*KB}")
        F.put("s", b0, "@wait vm=dma" if w >= nd else "@wait vm=c4", "s_barrier", *b0stamp)
        if ch:
            assert b0 == 18 and not nd
            for i, x in zip((19, 20, 22, 23), mr): F.put("d", i, x)
            for r_, gs in ((3, (21, 24, 25, 26)), (4, (29, 30, 31, 32)), (5, (37, 38, 39, 42))):
                for j in range(4): F.put("d", gs[j], rs[r_][j])
            for i, t_ in ((23, "m4"), (24, "m5"), (27, "m7"), (28, "r3x"), (30, "r3"), (34, "r4x"), (38, "r4"), (42, "r5x"), (46, "r5"), (47, "qr1")):
                F.put("s", i, f"@wait lg={t_}")
            for j, i in enumerate((31, 32, 33, 33, 34, 35)): F.put("v", i, qfin[j])
            for j, i in enumerate((37, 38, 41, 42, 43, 44)): F.put("v", i, kfin[j])
            F.put("d", 35, qfin[6]); F.put("d", 36, qfin[7]); F.put("d", 44, kfin[6]); F.put("d", 45, kfin[7])
            F.put("v", 36, f"v_cmp_u_f32 vcc, v{A[0]}, v{A[0]+1}")
            F.put("s", 39, f"s_cbranch_vccnz {L('nan')}", f"{L('nanok')}:")
            F.put("s", 40, "@wait lg=qw" + (" vm=h2rs" if red else ""), "s_barrier")
            for j, i in enumerate((41, 43, 46, 47)): F.put("d", i, qr[j])
            F.put("v", 45, add(A[4], 0)); F.put("v", 46, add(A[4], 1)); F.put("v", 47, cv(VX + 2, A[4]))
            return F
        mg, r3g = {15: ((16, 17, 18, 19), (21, 22, 23, 24)), 16: ((17, 18, 19, 20), (21, 22, 23, 24)), 17: ((18, 19, 20, 22), (21, 23, 24, 25)), 18: ((19, 20, 22, 24), (21, 23, 25, 26)), 19: ((20, 21, 23, 25), (22, 24, 26, 27)), 20: ((21, 22, 24, 25), (23, 23, 26, 27))}.get(b0, (0, 0))
        if nd == 1: mg, r3g = {19: ((20, 22, 24), (21, 23, 25, 26)), 20: ((21, 23, 24), (22, 25, 26, 27)), 21: ((22, 23, 25), (20, 24, 26, 27))}[b0]
        if nd == 2: mg, r3g = {21: ((22, 24), (20, 23, 25, 26)), 22: ((23, 24), (20, 21, 25, 26)), 23: ((24, 25), (20, 21, 22, 26))}[b0]
        for j, i in enumerate(mg): F.put("d", i, mr[j + nd])
        for i, t in ((23, 4), (25, 5), (27, 6), (29, 7)):
            if t < 4 + nd: F.put("x" if i == b0 else "s", i, f"@wait vm=c{t}")
            elif nd and t == 7: F.put("s", i, "@wait lg=" + ("m7" if mg[-1] > r3g[1] else "r3x"))
            elif b0 >= 18 or t < 7: F.put("s", i, f"@wait lg=m{t}")
        for r_, gs, u in ((3, r3g, 30 if b0 >= 18 else 29), (4, (30, 31, 32, 33), 37), (5, (38, 39, 40, 42), 46)):
            for j in range(4): F.put("d", gs[j], rs[r_][j])
            F.put("s", u, f"@wait lg=r{r_}")
        for j, i in enumerate((32, 32, 33, 34, 35, 36)): F.put("v", i, qfin[j])
        for j, i in enumerate((40, 42, 43, 43, 44, 45)): F.put("v", i, kfin[j])
        F.put("d", 36, qfin[6]); F.put("d", 37, qfin[7])
        F.put("v", 37, f"v_cmp_u_f32 vcc, v{A[0]}, v{A[0]+1}")
        F.put("s", 40, f"s_cbranch_vccnz {L('nan')}", f"{L('nanok')}:")
        F.put("s", 41, "@wait lg=qw" + (" vm=h2rs" if red else ""), "s_barrier")
        F.put("s", 45, "@wait lg=r5x")
        for j, i in enumerate((43, 44, 47)): F.put("d", i, qr[j])
        F.put("d", 45, kfin[6]); F.put("d", 46, kfin[7])
        F.put("s", 47, "@wait lg=qr0")
        return F
    rs[5][1] += "x"
    rs[3][1] += "x"
    rs[4][1] += "x"

    pair = lambda m, t: [(m, 0, t), (m, 1, t)]
    HEAD = {0: ("q0 k0 v0 q1 k1 v1 q2 k2 v2 q3 k3 v3", ((1, (2, 3, 4, 5)), (2, (10, 11, 12, 13)))),
            1: ("q1 k1 v1 q2 k2 v2 k3 q3 v3 k0 q0 v0", ((2, (4, 5, 6, 7)), (0, (12, 13, 14, 15)))),
            2: ("q2 k2 v2 k3 q3 v3 k0 q0 v0 q1 v1 k1", ((0, (6, 7, 8, 9)), (1, (14, 15, 16, 17)))),
            3: ("q3 k3 v3 k0 v0 q0 q1 k1 v1 q2 k2 v2", ((0, (2, 3, 4, 5)), (1, (10, 11, 12, 13))))}
    cg = opt.get("cg", 17)

    if opt.get("hc"):
        HEAD[0] = ("q0 v0 k10 k00 k01 q1 k11 k12 v01 v02 v11 v12 q12 q13 k02 k03 v3 k13 q02 q03", ((1, (2, 3, 4, 5)), (2, (11, 12, 13, 14))))
    fast1 = opt.get("fast1", 0)
    if fast1:
        assert r0 == 0 and dp == 4
        HEAD[1] = ("k1 q1 q2 k2 v1 v2 q3 k3 v3 k0 q0 v0", ((1, (1, 2, 3, 4)), (2, (8, 9, 10, 11)), (0, (14, 15, 16, 17))))

    def head(r, n=24):
        od = sum([pair(x[0], int(x[1])) if len(x) == 2 else [(x[0], int(x[1]), int(x[2]))] for x in HEAD[r][0].split()], []) + order[24:]
        F = common()
        f1_ = fast1 and r == 1
        if f1_: F.put("d", 0, dma); F.put("s", 1, cl[0])
        F.put("s", 1, f"s_cbranch_vccnz {L(f'no{r}')}", f"{L(f'go{r}')}:")
        if f1_:
            F.put("s", 1, mzero(A[0], 4), mzero(A[1], 4)); F.put("x", 1, "s_nop 0")
        elif nd:
            dg = opt.get("dg", 1)
            for j in range(nd): F.put("x", dg + 2 * j, mld(4 + j) + f" ;@c{4+j}")
            if w >= nd: F.put("x", dg + 1, dma)
        elif r != r0 or not opt.get("dtop"): F.put("x", opt.get("dg", 1), dma)
        seen = {r}
        c_ = cg
        for i, k in enumerate(od[:24]):
            wt = []
            if k[2] not in seen:
                seen.add(k[2])
                if i <= c_: wt.append(f"vm=c{k[2]}")
            for r_ in range(3):
                staged = r_ != PRE[r] or f1_
                if k == G_R[r_][0] and i: wt.append((f"lg=r{r_}x" if r != r0 else f"lg=r{r_}") if staged else "lg=0")
                if k == G_R[r_][1] and staged and r != r0: wt.append(f"lg=r{r_}")
            if wt and i - 1 == b0: F.t[b0]["s"][0] += " " + " ".join(wt)
            elif wt: F.put("s", i - 1, "@wait " + " ".join(wt))
        if [k[2] for k in od].index((r + 3) & 3) > c_: F.put("x" if c_ == b0 else "s", c_, f"@wait vm=c{(r+3)&3}")
        if not opt.get("kb", 10):
            F.put("v", c_, f"v_max3_u32 v{CK}, v{M+4*((r+1)&3)}, v{M+4*((r+2)&3)}, v{M+4*((r+3)&3)}")
            F.put("v", c_ + 1, f"v_cmp_eq_u32 vcc, s{S_SENT}, v{CK}")
            F.t.setdefault(c_ + 3, {"s": [], "d": [], "v": [], "x": []})["s"][:0] = [f"s_cbranch_vccnz {L(f'late{r}')}", f"{L(f'lok{r}')}:"]
        e1 = opt.get("e1", 7)
        if e1:
            F.put("v", e1, f"v_cmp_eq_u32 vcc, s{S_SENT}, v{M+4*((r+1)&3)}")
            F.put("s", e1 + 3, f"s_cbranch_vccnz {L(f'soon{r}')}", f"{L(f'sok{r}')}:")
        for r_, gs in HEAD[r][1]:
            for j in range(4): F.put("d", gs[j], rs[r_][j] + ("x" if j == 1 else ""))
        return ([f"{L(f'c{r}')}:", f"@wait vm=c{r}" + (" lg=0" if r == 0 else "")] + (c0stamp if r == r0 else []) +
                [f"v_cmp_eq_u32 vcc, s{S_SENT}, v{M+4*r}"] + F.emit([smf(acc(k), M + 4 * k[2], k) for k in od[:n]]))
    full = head(r0, 48)
    i = full.index(mm[24])
    E(full[:i] + [f"{L('j20')}:"] + full[i:])
    E(stamp())
    S0, S1, SM = A[0], A[1], A[2]
    sx = []
    for x in range(4):
        sx += [mf(S0, POOL + 4*x, M + 4*x, None if x == 0 else S0), mf(S1, POOL + 16 + 4*x, M + 4*x, None if x == 0 else S1)]
    sm = [mf(SM, M + 16 + 4*x, M + 4*x, None if x == 0 else SM) for x in range(4)]
    cv = lambda d, q: f"v_cvt_pk_bf16_f32 v{d}, v{q}, v{q+1}"
    cnd = lambda d, x, y: f"v_cndmask_b32 v{d}, v{x}, v{y}, s[{S_HF}:{S_HF+1}]"
    pub = f"buffer_store_dwordx4 {v(A[3],4)}, v{LM}, {WSD}, s{S_PUB} offen sc1"
    MX, MY = S1, S1 + 1
    z = zero(A[4], 8)
    if ch:
        sx = sx[0::2] + sx[1::2]
        E([sx[0], f"s_cmp_eq_u32 s{S_STEP}, {NSEG-1}", cv(A[3] + 2, A[4]),
           sx[1], "@wait lg=qr2", "s_barrier",
           sx[2], "@wait lg=qr3", kr[0], add(A[5], 0),
           sx[3], kr[1], add(A[5], 1),
           sx[4], kr[2], cv(VX + 10, A[5]),
           sx[5], kr[3], cv(A[3] + 3, A[5]),
           sx[6], f"v_permlane16_swap_b32 v{VX+2}, v{VX+6}",
           sx[7], "@wait lg=kr1", f"v_permlane16_swap_b32 v{VX+10}, v{VX+14}",
           sm[0], f"s_cbranch_scc1 {L('done')}", z[0], z[1],
           sm[1], "@wait lg=kr3", cnd(S0, S0, S1), cnd(S0 + 1, S0 + 1, S1 + 1),
           sm[2], cnd(S0 + 2, S0 + 2, S1 + 2), cnd(S0 + 3, S0 + 3, S1 + 3)])
    else:
      E([sx[0], f"s_cmp_eq_u32 s{S_STEP}, {NSEG-1}", qr[3],
       sx[1], "@wait lg=qr1", add(A[4], 0), add(A[4], 1),
       sx[2], "@wait lg=kw", "s_barrier",
       sx[3], "@wait lg=qr2", kr[0], add(A[5], 0),
       sx[4], kr[1], add(A[5], 1),
       sx[5], "@wait lg=qr3", kr[2], cv(VX + 2, A[4]),
       sx[6], kr[3], cv(VX + 10, A[5]),
       sx[7], "@wait lg=kr0", cv(A[3] + 2, A[4]), cv(A[3] + 3, A[5]),
       sm[0], "@wait lg=kr2", f"v_permlane16_swap_b32 v{VX+2}, v{VX+6}",
       sm[1], f"s_cbranch_scc1 {L('done')}", cnd(S0, S0, S1), cnd(S0 + 1, S0 + 1, S1 + 1),
       sm[2], "@wait lg=kr3", cnd(S0 + 2, S0 + 2, S1 + 2), cnd(S0 + 3, S0 + 3, S1 + 3)])
    E([sm[3], f"v_max3_f32 v{MX}, v{S0}, v{S0+1}, v{S0+2}", f"v_max_f32 v{MX}, v{MX}, v{S0+3}",
       *(z[2:] if ch else [f"v_permlane16_swap_b32 v{VX+10}, v{VX+14}"]),
       f"v_max_f32_dpp v{MX}, v{MX}, v{MX} quad_perm:[2,3,0,1] row_mask:0xf bank_mask:0xf",
       f"v_mov_b32 v{MY}, v{MX}",
       f"v_mov_b64 {v(POOL,2)}, s[{S_ONE}:{S_ONE+1}]",
       f"v_max3_f32 v{S1+2}, v{SM}, v{SM+1}, v{SM+2}",
       f"v_permlane16_swap_b32 v{MX}, v{MY}",
       f"v_max3_f32 v{MX}, v{MX}, v{MY}, v{SM+3}",
       f"v_max_f32 v{MY}, v{MX}, v{S1+2}",
       f"v_max_f32 v{MX}, v{MX}, v{S1+2}",
       cnd(SM, SM, SM + 1), f"v_mov_b64 {v(POOL+2,2)}, s[{S_ONE}:{S_ONE+1}]",
       f"v_permlane32_swap_b32 v{MX}, v{MY}",
       f"v_max_f32 v{MX}, v{MX}, v{MY}",
       f"v_mul_f32 v{MX}, s{S_SC}, v{MX}"])
    for r in (S0, S0 + 2):
        E([f"v_pk_fma_f32 {v(r,2)}, {v(r,2)}, s[{S_SC-1}:{S_SC}], {v(MX,2)} op_sel_hi:[1,1,0] neg_lo:[0,0,1] neg_hi:[0,0,1]"])
    E([f"v_fma_f32 v{SM}, v{SM}, s{S_SC}, -v{MX}"])
    E([f"v_exp_f32 v{S0}, v{S0}", f"v_exp_f32 v{S0+1}, v{S0+1}", f"v_exp_f32 v{S0+2}, v{S0+2}", cv(PA, S0),
       f"v_exp_f32 v{S0+3}, v{S0+3}", f"v_exp_f32 v{SM}, v{SM}", cv(PA + 2, S0 + 2),
       f"v_cvt_pk_bf16_f32 v{PA+1}, v{SM}, v{PA+3}"])
    E(stamp())
    LQ = A[1]
    ring = [f"s_and_b32 s{S_TAG}, s{S_STEP}, 1", f"s_add_u32 s{S_STEP}, s{S_STEP}, 1",
            f"s_lshl_b32 s{S_T0}, s{S_TAG}, 13", f"s_sub_u32 s{S_H2LD}, {WS_H2 + 8192}, s{S_T0}",
            f"s_add_u32 s{S_H2LD2}, s{S_H2LD}, 4096"]
    ring2 = nxt[:1] + [f"s_cmp_eq_u32 s{S_STEP}, {NSEG-1}", f"s_cselect_b32 s{S_KV}, 0x40000000, s{S_KV}"] + nxt[1:]
    if red:
        ring += [f"s_add_u32 s{S_H2RS}, s{S_T0}, {WS_H2}", f"s_xor_b32 s{S_H2ST}, s{S_H2RS}, 8192"]
    E([*(["s_nop 1"] if ch else z[:2]),
       mf(LQ, PA, POOL, None), *([] if ch else z[2:]),
       smf(A[4], PA, v(VX, 8), 1), ost[0],
       smf(A[5], PA, v(VX + 8, 8), 1), ost[1], add(LQ, 0),
       add(LQ, 1), f"v_rcp_f32 v{LQ}, v{LQ}", f"v_rcp_f32 v{LQ+1}, v{LQ+1}",
       f"v_pk_add_f32 {v(A[4],2)}, {v(A[4],2)}, {v(A[4]+2,2)}",
       f"v_pk_mul_f32 {v(A[4],2)}, {v(A[4],2)}, {v(LQ,2)}",
       f"v_pk_add_f32 {v(A[5],2)}, {v(A[5],2)}, {v(A[5]+2,2)}",
       f"v_pk_mul_f32 {v(A[5],2)}, {v(A[5],2)}, {v(LQ,2)}",
       f"v_cvt_pk_bf16_f32 v{A[4]+2}, v{A[4]}, v{A[5]}", f"v_cvt_pk_bf16_f32 v{A[4]+3}, v{A[4]+1}, v{A[5]+1}",
       mzero(M + 16, 4),
       f"ds_write2_b32 v{OW_}, v{A[4]+2}, v{A[4]+3} offset0:0 offset1:4", mzero(M, 16)] + ring +
      ["s_waitcnt lgkmcnt(0)", "s_barrier",
       f"ds_read_b128 {v(A[0],4)}, v{LM} offset:{L_O - LDS_MISC} ;@o0", mzero(M + 20, 4),
       f"ds_read_b128 {v(A[1],4)}, v{LM} offset:{L_O - LDS_MISC + 1024} ;@o1", mzero(M + 24, 4)] + [mzero(M + 28, 4)] + ost[2:2+opt.get("ow", 2)])
    E(stamp())
    if pp == 1: body.insert(body.index(mzero(M, 16)) + 1, pub.replace('sc1', opt.get('pfl', 'sc1')) + " ;@kv")
    if pp == 4: body.insert(body.index(mzero(M + 24, 4)) + 1, pub.replace('sc1', opt.get('pfl', 'sc1')) + " ;@kv")
    if pp == 5 or (pp == 6 and (w == 2 or (w == 3 and not opt.get("p6all")))): body.insert(body.index(ring[-1]) + 1, pub.replace('sc1', opt.get('pfl', 'sc1')) + " ;@kv")
    if pp == 7:
        n_ = opt["ppi"][w]
        for x in ring[n_:]: body.remove(x)
        i = body.index(mzero(M + 28, 4)) + 1
        body[i:i] = ring[n_:]
        i = body.index(mzero(M, 16)) + 1 + min(n_, len(ring))
        body[i:i] = ["s_nop 0"] * max(0, n_ - len(ring)) + [pub.replace('sc1', opt.get('pfl', 'sc1')) + " ;@kv"]
    if pp == 8:
        x = pub.replace('sc1', opt.get('pfl', 'sc1')) + " ;@kv"
        body.insert(body.index(ring[opt.get("ppi", 4)] if w in opt.get("p8", (0, 1)) else mzero(M + 24, 4)) + 1, x)
    pth = opt.get("pth")
    if pth:
        i = body.index(ring[-1]) + 1
        body[i:i+1] = [f"s_cmp_ge_u32 s{S_STEP}, {pth}", f"s_cbranch_scc1 {L('pnt')}", pub.replace("sc1", "") + " ;@kv", f"{L('pntok')}:"]
    if opt.get("z0") == 0:
        i = body.index(mzero(M + 16, 4)); body[i], body[i + 1] = body[i + 1], body[i]
    if opt.get("w1"):
        i = [j for j, x in enumerate(body) if x.startswith("ds_write2_b32")][0]
        body[i] = f"ds_write_b32 v{OW_}, v{A[4]+3} offset:16"
        j = body.index(f"v_cvt_pk_bf16_f32 v{A[4]+3}, v{A[4]+1}, v{A[5]+1}")
        body.insert(j + (opt["w1"] - 1), f"ds_write_b32 v{OW_}, v{A[4]+2}")
    if pp == 2: body.insert(body.index([sm[1], sm[2], sm[3], z[0]][w]) + (2 if w < 2 else 1), pub.replace('sc1', opt.get('pfl', 'sc1')))
    if pp == 3: body.insert(body.index([z[0], mf(LQ, PA, POOL, None), ost[0], ost[1]][w]) + 1, pub.replace('sc1', opt.get('pfl', 'sc1')))
    oo = [(0, 0), (1, 0), (0, 1), (1, 1)] + [(tau, tp) for tau in range(2, 8) for tp in range(2)]
    om = [smf(M + 4*tau, A[tp], ("o", tau, tp)) for tau, tp in oo]
    D0, D1 = A[2], A[4]
    pk = lambda d, ta, b: f"v_cvt_pk_bf16_f32 v{d}, v{M+4*ta+b}, v{M+4*ta+4+b}"
    ad = lambda ta: [add(M + 4*ta, 0), add(M + 4*ta, 1)]
    G = Gaps()
    G.put("s", 1, "@wait lg=o1")
    gs = {2: [0, 1, 2, 3, 4, 5, 6, 8, 9, 10], 1: [0, 1, 2, 3, 3, 4, 5, 6, 8, 9, 10], 0: [0, 1, 2, 2, 3, 3, 4, 5, 6, 8, 9, 10]}[opt.get("ow", 2)]
    for i, j in zip(gs, range(2 + opt.get("ow", 2), 14)): G.put("d", i, ost[j] + f" ;@w{j >> 1}")
    G.put("s", 8, "@wait lg=w2"); G.put("s", 11, "@wait lg=w4"); G.put("s", 13, "@wait lg=w5"); G.put("s", 14, "@wait lg=w6")
    al = opt.get("al", 0)
    poll1 = lambda d, tg_: f"buffer_load_dword v{d}, v{FAD}, {WSD}, s{S_FREE1} offen sc1 ;@{tg_}"
    PR = [FLG, TCH, PA, PA + 1, PA + 2]
    if al == 1 and w == 0:
        body.insert(body.index({-3: sm[0], -2: sm[3], -1: z[0], 0: ost[0], 1: ost[1], 2: mzero(M, 16)}[opt.get("f1", 1)]) + 1, f"buffer_store_dword v{FV}, v{FST}, {WSD}, s{S_H1LD2} offen {st}")
    if al == 2: PR = PR2[:len(pg2)]
    if al == 1 and w == 1:
        body.insert(body.index(ring[-1]) + 1, poll1(PR[0], "p0"))
        body.insert(body.index(mzero(M + 24, 4)) + 1, poll1(PR[1], "p1"))
        for j, i in enumerate(opt.get("pg1", [0, 2, 4])): G.put("x" if i < 4 else "s", i, poll1(PR[j + 2], f"p{j+2}"))
    tg = lambda d: f"v_bfi_b32 v{d}, 1, s{S_TAG}, v{d}"
    if opt.get('wob', 0):
        stq = lambda q, D: f"buffer_store_dwordx2 {v(D,2)}, v{H1ST}, {WSD}, s{S_H1ST2 if q >> 1 else S_H1ST} offen offset:{64 * (q & 1)} {st}"
        for h, D in enumerate((D0, D1)):
            t0, g0 = 4 * h, 8 * h
            if h == 0: G.put("v", 4, *ad(0))
            else: G.put("v", 11, ad(4)[0]); G.put("v", 12, ad(4)[1])
            G.put("v", g0 + 5, *ad(t0 + 1))
            G.put("v", g0 + 6, pk(D, t0, 0))
            x = M + 4 * (t0 + 3)
            G.put("v", g0 + 7, pk(D + 1, t0, 1), tg(D), stq(2 * h, D), *ad(t0 + 2), "s_nop 0", f"v_pk_add_f32 {v(x,2)}, {v(x,2)}, {v(x+2,2)}",
                  pk(D + 2, t0 + 2, 0), pk(D + 3, t0 + 2, 1), tg(D + 2), stq(2 * h + 1, D + 2))
    else:
        for q in range(4):
            D = (D0, D0 + 2, D1, D1 + 2)[q]
            e, o_ = ad(2 * q), ad(2 * q + 1)
            stq = f"buffer_store_dwordx2 {v(D,2)}, v{H1ST}, {WSD}, s{S_H1ST2 if q >> 1 else S_H1ST} offen offset:{64 * (q & 1)} {st}"
            rest = [o_[0], o_[1], pk(D, 2 * q, 0), pk(D + 1, 2 * q, 1), tg(D)]
            if q == 0:
                G.put("v", 4, *e)
            elif q < 3:
                G.put("v", 4 * q + 3, e[0]); G.put("v", 4 * q + 4, e[1])
            if q < 3:
                n1 = opt.get("wo1", 2)
                G.put("v", 4 * q + 5, *rest[:n1]); G.put("v", 4 * q + 6, *rest[n1:])
                G.put("d", 4 * q + 7, stq)
            else:
                G.put("v", 15, *(e + ["s_nop 3"] + rest + [stq]))
    E(["@wait lg=o0"] + G.emit(om))
    E(stamp())
    house = ring2 + rs[PRE[r0]] + [mzero(A[i], 4) for i in (0, 1, 2)]
    mv = v_moves(VN) + ([] if pp else [f"v_mov_b64 {v(VN+4,2)}, {v(A[3],2)}", f"v_mov_b64 {v(VN+6,2)}, {v(A[3]+2,2)}"]) + [mzero(A[3], 4), mzero(A[4], 4)]
    after = kxr + mv
    xo = opt.get("xo", 0)
    if al and w == 1:
        for j in range(len(PR)):
            E([f"@wait vm=p{j}" if al == 1 else f"@wait vm=p{len(PR)-1}" if j == 0 else "s_nop 0", f"v_cmp_gt_u32 vcc, s{S_STEP}, v{PR[j]}"] + (house[:5] if j == 0 else nops("d7")) +
              (["s_add_u32 s99, s99, 1"] if opt.get("count") else []) + [f"s_cbranch_vccz {L('al')}"])
        E(["s_nop 7", f"{L('al')}:", "s_barrier"])
    else:
        E(["@wait vm=kv"] + (kwr if xo and w == 2 else []) + ["s_barrier"])
    x2 = ["@wait lg=kxw", "s_barrier"]
    hs = house[5:] if al and w == 1 else house
    if pp == 6 and (w < 2 or opt.get("p6all")):
        if w < 2 or w == 3: kxr = [pub.replace('sc1', opt.get('pfl', 'sc1'))] + kxr if w == 3 else kxr
        if w < 2: hs = [pub.replace('sc1', opt.get('pfl', 'sc1'))] + hs
    if red:
        shots = h1l(M + 16) + (nops("d4") + h1l(M) if two else [])
        e2, e3 = opt.get("e2", 8), opt.get("e3", 8)
        if xo and w == 2:
            rest = hs + kxr + mv
            E(nops("d1") + stamp() + shots[:4] + x2 + shots[4:] + rest[:e2] + reduce(M + 16, "ra") + [f"{L('rdone')}:"] + stamp() + rest[e2:] +
              ["s_waitcnt lgkmcnt(0)"] + nops("d2"))
        elif xo:
            pre = kxr + mv
            E(kwr + hs + x2 + pre[:len(pre)-e3] + nops("d3") + stamp() + shots + pre[len(pre)-e3:] +
              reduce(M + 16, "ra") + [f"{L('rdone')}:"] + stamp() + ["s_waitcnt lgkmcnt(0)"] + nops("d5"))
        elif w == 2:
            rest = kxr + mv
            E(nops("d1") + stamp() + shots + kwr + hs + x2 + rest[:e2] + reduce(M + 16, "ra") + [f"{L('rdone')}:"] + stamp() + rest[e2:] +
              ["s_waitcnt lgkmcnt(0)"] + nops("d2"))
        else:
            pre = kwr + hs + mv
            E(pre[:len(pre)-e3] + nops("d3") + stamp() + shots + pre[len(pre)-e3:] + x2 + kxr[:opt.get("e4", 8)] +
              reduce(M + 16, "ra") + [f"{L('rdone')}:"] + stamp() + kxr[opt.get("e4", 8):] + ["s_waitcnt lgkmcnt(0)"] + nops("d5"))
    else:
        E(stamp() + (kwr + x2 + nops("d8") + hs + mv + kxr if xo else kwr + hs + mv + x2 + kxr) + stamp() + (dump if opt.get('rt', w + 1) == w + 1 else []))
    if w < 2:
        E([mzero(A[5], 4)])
    if w == 0:
        E([f"v_add_u32 v{FV}, 1, v{FV}", f"v_cmp_eq_u32 s[{S_RDY}:{S_RDY+1}], 1, v{FLG}", f"s_add_u32 s{S_T2}, s{S_STEP}, 1", "s_nop 3",
           f"s_bitcmp1_b64 s[{S_RDY}:{S_RDY+1}], s{S_T2}", f"s_cbranch_scc0 {L('flag')}", f"{L('flagok')}:"])
    E(([] if red else ["s_waitcnt lgkmcnt(0)"] + ["s_barrier"] * opt.get("cp", 0)) + [f"s_branch {L('top')}"])
    if opt.get("free"):
        body = [x for x in body if not (x.startswith("s_cbranch_vccnz") or x.startswith("v_cmpx"))]
        body = [x.replace("s_cbranch_vccz " + L('al'), "s_branch " + L('al')) for x in body]
    if True:
        for pat in opt.get("drop", []):
            keep = lambda x: ("s_nop 0" if opt.get("keepslot") else None)
            tags = [x.split(";@")[1] for x in body if pat in x and ";@" in x]
            body = [x for x in body if pat not in x or x.endswith(":")]
            live = {x.split(";@")[1] for x in body if ";@" in x}
            nb = []
            for x in body:
                if x.startswith("@wait"):
                    t = [k for k in x.split()[1:] if k.split("=")[1] in live or k.split("=")[1] == "0"]
                    if t: nb.append("@wait " + " ".join(t))
                else: nb.append(x)
            body = nb
    body = resolve_waits(body)
    if opt.get("seg"):
        pos = [i for i, x in enumerate(body) if x.startswith(("v_mfma_f32_16x16x32", "v_smfmac"))]
        i0, i1 = opt["seg"]
        labels = [x for x in body if x.endswith(":")]
        cut = [x for x in body[pos[i0]:pos[i1]] if not x.endswith(":") and f"s{S_STEP}" not in x and "branch" not in x]
        body = labels + cut[:1] + [f"s_add_u32 s{S_STEP}, s{S_STEP}, 1", f"s_cmp_eq_u32 s{S_STEP}, 64", f"s_cbranch_scc1 {L('done')}"] + cut[1:] + [f"s_branch {L('top')}"]
    if opt.get("sw") and opt.get("rt") == w + 1:
        pos = [i for i, x in enumerate(body) if x.startswith(("v_mfma_f32_16x16x32", "v_smfmac"))]
        for k, o_ in reversed(list(enumerate(opt["sw"]))):
            if o_ < len(pos): body.insert(pos[o_] + 1, f"s_memtime s[{76+2*k}:{77+2*k}]")
    npad = [0]

    def pad(last=False):
        k = npad[0]; npad[0] += 1
        g(f"{L(f'pad{k}')}:\ns_branch " + (f"L_{tag}_warm1" if last else f"L_{tag}_warm0" if k == 3 else L(f"pad{k+1}")))
    if red and opt.get("rotl", 0) and not opt.get("seg"):
        i = body.index(f"{L('ra')}:")
        body = body[i:-1] + body[:i] + [f"s_branch {L('ra')}"]
    body, left = align_body(body)
    g(f"s_branch {L('top')}")
    pad()
    g(".p2align 5")
    for x in body: g(x)
    bad = hazard.check(body + body[:40], f"chain w{w}") if not (opt.get("drop") or opt.get("seg")) else []
    m1 = g.mark()
    strip = lambda lst: [x.split(";@")[0] for x in lst]
    cnt = lambda out: f"s_add_u32 s{S_SPIN}, s{S_SPIN}, 1\ns_cmp_gt_u32 s{S_SPIN}, {SPIN_MAX}\ns_cbranch_scc1 {out}"
    dbg = lambda k: (f"s_add_u32 s{96+k}, s{96+k}, 1" if opt.get("count") else "")
    anysent = [f"v_mov_b32 v{PA}, 0"] + [f"v_max3_u32 v{PA}, v{PA}, v{M+2*i}, v{M+2*i+1}" for i in range(16)] + [f"v_cmp_eq_u32 vcc, s{S_SENT}, v{PA}"]
    pad()
    if pth: g(f"{L('pnt')}:\n{pub.replace('sc1', 'nt')}\ns_branch {L('pntok')}")
    if red:
        if opt.get("eb"):
            rb = reduce(M, "rb", 4)
            k_ = 0
            for x in [f"{L('rano')}:", dbg(2)] + rb[:1]: g(x)
            for t in range(4):
                i = [j for j, x in enumerate(rb) if x.startswith("s_waitcnt")][t]
                rb[i] = f"s_waitcnt vmcnt(3)"
                j = [j for j, x in enumerate(rb) if x.startswith("v_mfma")][t]
                rb.insert(j + 1, h1l(M + 16)[t])
            for x in rb[1:] + [f"s_branch {L('rdone')}", f"{L('rbno')}:", dbg(3)] + cnt(L("rbok")).split("\n") + h1l(M): g(x)
        else:
            g(f"{L('rano')}:\n{dbg(2)}\n{cnt(L('raok'))}")
            for x in h1l(M + 16): g(x)
        if two and not opt.get("eb"):
            for x in reduce(M, "rb") + [f"s_branch {L('rdone')}", f"{L('rbno')}:", dbg(3)] + h1l(M): g(x)
        g(f"s_branch {L('ra')}")
    for r in range(4):
        if not opt.get("kb", 10): g(f"{L(f'late{r}')}:\n{cnt(L(f'lok{r}'))}\ns_branch {L('restart')}")
        if opt.get("e1", 7): g(f"{L(f'soon{r}')}:\n{cnt(L(f'sok{r}'))}\ns_branch {L('restart')}")
    g(f"{L('restart')}:\n{dbg(1)}\ns_waitcnt lgkmcnt(0)")
    for x in strip(rs[PRE[r0]]) + [mzero(A[i], 4) for i in range(6)] + [f"s_branch {L('again')}"]: g(x)
    path = list(top_part)
    for j in range(4):
        r, nx = (r0 + j) & 3, (r0 + j + 1) & 3
        part = ([f"{L(f'no{r}')}:"] + ([dbg(0)] if opt.get("count") else []) + (cnt(L(f"go{r}")).split("\n") if j == 3 else []) + [cl[r], dma if j == dp - 1 else h2st(M + 16) if j == 0 and late_st else "s_nop 0"] +
                (rs[PRE[nx]] if PRE[nx] != PRE[r] else ["s_nop 3"]) + [mzero(A[0], 4), mzero(A[1], 4), "s_nop 0"])
        if fast1 and j == 0: part = part[:2 if opt.get("count") else 1]
        if fast1 and j == 1: part = part[:-1] + [mzero(A[2], 4), mzero(A[3], 4)]
        hd = head(nx) + [f"s_branch {L('j20')}"] if j < 3 else [f"s_branch {L(f'c{r0}')}"]
        res = resolve_waits(path + part + hd, loop=False)[len(path):]
        path = path + part + ([dma, cl[0]] if fast1 and j == 0 else [])
        bad += hazard.check((mm[2:4] if fast1 and j == 1 else mm[:2]) + ["s_branch x"] + res + (mm[24:28] if j < 3 else mm[:2]), f"chain head {r} w{w}")
        res, _ = align_body(res)
        pad()
        g(".p2align 5")
        for x in res: g(x)
    m1 = g.mark()
    g(f"{L('nan')}:\n" + ("s_add_u32 s97, s97, 0x10000" if opt.get("count") else ""))
    for x in anysent: g(x)
    g(f"s_cbranch_vccz {L('nanok')}\n{L('nanl')}:")
    for x in [mld(t) for t in range(8)] + ["s_waitcnt vmcnt(0)"] + anysent: g(x)
    g(f"s_cbranch_vccz {L('nanr')}\n{cnt(L('nanr'))}\ns_branch {L('nanl')}\n{L('nanr')}:\ns_waitcnt lgkmcnt(0)")
    for x in zero(ACC, 24): g(x)
    for i in range(40 if ch else 41):
        for r_ in range(5):
            if order[i] == G_R[r_][0]:
                for x in strip(rs[r_]) + ["s_waitcnt lgkmcnt(0)"]: g(x)
        g(mm[i])
    for x in strip(rs[5][:2] + qfin + (kfin[:2] if ch else [])) + ["s_waitcnt lgkmcnt(0)", f"s_branch {L('nanok')}"]: g(x)
    bad += hazard.check(g.lines[m1:], f"chain rare w{w}")
    if opt.get("wb") and w == 1:
        g(f"{L('wb')}:\nbuffer_wbl2 sc1\ns_branch {L('wbok')}")
    pad(True)
    if w == 0:
        g(f"{L('flag')}:")
        wait_flag(g, f"{tag}{w}_f1", S_T2)
        g(f"s_branch {L('flagok')}")
    g(f"{L('done')}:\n{pub}")
    if w == 0: dbg_time(g, opt, 5)
    if opt.get("cal") and w + 1 == opt.get("rt"):
        g(f"""
        s_mov_b32 s90, 0
        v_mov_b32 v60, 0
        {L('cal')}:
        s_memrealtime s[74:75]
        s_waitcnt lgkmcnt(0)
        s_add_u32 s78, s74, 8
        s_or_b32 s78, s78, 31
        {L('cal2')}:
        s_memrealtime s[74:75]
        s_memtime s[76:77]
        s_waitcnt lgkmcnt(0)
        s_cmp_le_u32 s74, s78
        s_cbranch_scc1 {L('cal2')}
        s_mov_b32 m0, s90
        v_writelane_b32 v60, s78, m0
        s_add_u32 m0, s90, 1
        v_writelane_b32 v60, s76, m0
        s_add_u32 s90, s90, 2
        s_cmp_lt_u32 s90, 64
        s_cbranch_scc1 {L('cal')}
        v_subrev_u32 v61, {LDS_MISC}, v{LM}
        v_lshrrev_b32 v61, 2, v61
        s_lshl_b32 s{S_T0}, s{S_TK}, 8
        s_add_u32 s{S_T0}, s{S_T0}, {100*MB}
        buffer_store_dword v60, v61, {WSD}, s{S_T0} offen
        """)
    if opt.get("count"):
        g(f"""
        s_memtime s[94:95]
        s_memrealtime s[74:75]
        s_waitcnt lgkmcnt(0)
        
        s_sub_u32 s94, s94, s92
        v_mov_b32 v40, s96
        v_mov_b32 v41, s97
        v_mov_b32 v42, s98
        v_mov_b32 v43, s94
        s_lshl_b32 s{S_T0}, s{S_TK}, 2
        s_add_u32 s{S_T0}, s{S_T0}, {w}
        s_lshl_b32 s{S_T0}, s{S_T0}, 12
        s_add_u32 s{S_T0}, s{S_T0}, {WS_STAMP}
        v_mov_b32 v44, 0
        v_mov_b32 v46, s99
        v_mov_b32 v47, s14
        v_mov_b32 v48, s15
        v_mov_b32 v49, s74
        buffer_store_dwordx4 v[40:43], v44, {WSD}, s{S_T0} offen
        v_mov_b32 v50, s2
        v_mov_b32 v52, s79
        v_mov_b32 v53, s80
        v_mov_b32 v54, s81
        v_mov_b32 v55, s82
        v_mov_b32 v56, s83
        v_mov_b32 v57, s84
        buffer_store_dwordx4 v[52:55], v44, {WSD}, s{S_T0} offen offset:36
        buffer_store_dwordx2 v[56:57], v44, {WSD}, s{S_T0} offen offset:52
        buffer_store_dword v50, v44, {WSD}, s{S_T0} offen offset:32
        buffer_store_dwordx4 v[46:49], v44, {WSD}, s{S_T0} offen offset:16
        """)
    if opt.get("pfl", "sc1") != "sc1" and w == 0:
        g(f"s_cmp_ge_u32 s{S_TK}, {opt.get('nwb', 1)}\ns_cbranch_scc1 {L('fin')}\n{'s_waitcnt vmcnt(0)' if opt.get('wbd') else ''}\nbuffer_wbl2 sc1\n{L('fin')}:")
    g("s_waitcnt vmcnt(0)\ns_endpgm")
    return bad


def chain_role(g, st, tag, opt):
    m0 = g.mark()
    if opt.get("count"):
        g("s_mov_b32 s96, 0\ns_mov_b32 s97, 0\ns_mov_b32 s98, 0\ns_mov_b32 s99, 0")
    g(f"s_cmp_lg_u32 s{S_WAVE}, 0\ns_cbranch_scc1 L_dt" if opt.get("dbgt") else "")
    if opt.get("dbgt"):
        g(f"s_not_b32 s88, s14\nv_mov_b32 v90, 12\nv_mov_b32 v91, s88\ns_mov_b64 exec, 1\nglobal_atomic_umax v90, v91, s[{P_DBG}:{P_DBG+1}]\ns_mov_b64 exec, -1\nL_dt:")
    late_setup = opt.get("les", 0)
    if not late_setup: setup_early(g, st)
    arrive = lambda off=DBG_TEAM: g(f"""
    s_cmp_lg_u32 s{S_WAVE}, 0
    s_cbranch_scc1 L_{tag}_arrived{off}
    v_mov_b32 v56, {off}
    v_mov_b32 v57, 1
    s_mov_b64 exec, 1
    global_atomic_add v56, v57, s[{P_DBG}:{P_DBG+1}]
    s_mov_b64 exec, -1
    L_{tag}_arrived{off}:
    """)
    def code_touch():
        g(f"""
        s_getpc_b64 s[{S_RDY}:{S_RDY+1}]
        L_{tag}_pc:
        s_add_u32 s{S_RDY}, s{S_RDY}, L_{tag}_w0-L_{tag}_pc
        s_addc_u32 s{S_RDY+1}, s{S_RDY+1}, 0
        v_lshlrev_b32 v56, 7, v0
        v_min_u32 v56, L_{tag}_end-L_{tag}_w0-4, v56
        global_load_dword v57, v56, s[{S_RDY}:{S_RDY+1}]
        """)

    def warm(k):
        for w in range(3):
            g(f"s_cmp_eq_u32 s{S_WAVE}, {w}\ns_cbranch_scc1 L_{tag}{w}_pad{4*k}")
        g(f"s_branch L_{tag}3_pad{4*k}\nL_{tag}_warm{k}:")

    assert DBG_INIT == DBG_TEAM + 4
    ask = f"global_load_dwordx2 v[60:61], v62, s[{P_DBG}:{P_DBG+1}] sc1"

    flg = f"buffer_load_dword v63, v62, s[{S_WS}:{S_WS+3}], s{S_FL} offen sc1"

    def counters():
        g(f"""
        L_{tag}_cnt:
        v_cmp_gt_u32 vcc, 32, v60
        v_cmp_gt_u32 s[{S_RDY}:{S_RDY+1}], s{S_T2}, v61
        s_add_u32 s{S_SPIN}, s{S_SPIN}, 1
        s_cmp_gt_u32 s{S_SPIN}, {SPIN_MAX}
        s_cbranch_scc1 L_{tag}_cntok
        s_or_b64 vcc, vcc, s[{S_RDY}:{S_RDY+1}]
        s_cbranch_scc0 L_{tag}_cntok
        {ask}
        s_waitcnt vmcnt(0)
        s_branch L_{tag}_cnt
        L_{tag}_cntok:
        v_and_b32 v62, 1, v0
        v_lshlrev_b32 v62, 2, v62
        s_mov_b32 s{S_TAG}, 0
        {flg}
        """)

    def kv_issue():
        g(f"s_lshl_b32 s{S_T0}, s{S_WAVE}, 11\ns_add_u32 s{S_T0}, s{S_T0}, s{S_KV}\ns_add_u32 s{S_T1}, s{S_T0}, 8192")
        for x in range(2):
            g(f"buffer_load_dwordx4 {v(KN+4*x,4)}, v{LM}, s[{S_WS}:{S_WS+3}], s{S_T0} offen offset:{x*1024} sc1")
            g(f"buffer_load_dwordx4 {v(VN+4*x,4)}, v{LM}, s[{S_WS}:{S_WS+3}], s{S_T1} offen offset:{x*1024} sc1")

    def try_kv():
        g(f"v_cmp_ne_u32 vcc, 1, v63\ns_cbranch_vccnz L_{tag}_notyet\ns_mov_b32 s{S_TAG}, 1")
        kv_issue()
        g(f"L_{tag}_notyet:")

    def first_kv():
        if opt.get("count"): g("s_memrealtime s[90:91]\ns_waitcnt lgkmcnt(0)\ns_mov_b32 s2, s90")
        g(f"""
        s_cmp_eq_u32 s{S_TAG}, 1
        s_cbranch_scc1 L_{tag}_kvok
        L_{tag}_fl:
        v_cmp_ne_u32 vcc, 1, v63
        s_add_u32 s{S_SPIN}, s{S_SPIN}, 1
        s_cmp_gt_u32 s{S_SPIN}, {SPIN_MAX}
        s_cbranch_scc1 L_{tag}_flok
        s_cbranch_vccz L_{tag}_flok
        {flg}
        s_waitcnt vmcnt(0)
        s_branch L_{tag}_fl
        L_{tag}_flok:
        """)
        kv_issue()
        g(f"L_{tag}_kvok:")
    hooks = {0: lambda: store_mem0(g, st), 2: code_touch, 5: arrive, 8: lambda: warm(0), 10: lambda: warm(1),
             19: lambda: g(f"v_mov_b32 v62, {DBG_TEAM}\ns_mov_b32 s{S_T2}, {0 if opt.get('chainonly') else 224}\n{ask}"),
             22: lambda: g(f"v_lshlrev_b32 v56, 6, v0\nbuffer_load_dword v57, v56, s[{S_WS}:{S_WS+3}], s{S_H2LD} offen sc1"),
             25: counters, 29: try_kv, 30: lambda: (g(flg), setup_late(g)), 31: first_kv}
    if late_setup:
        hooks.update({-1: lambda: (setup_early(g, st), set_srd(g, P_WO, 4 * MB)), 0: lambda: None, 3: hooks[0], 5: lambda: None, 7: hooks[5]})
    if opt.get("lst"):
        for j, i in enumerate(opt["lst"]):
            hooks[i] = lambda j=j, h=hooks.get(i): (g(f"s_memrealtime s[90:91]\ns_waitcnt lgkmcnt(0)\ns_mov_b32 s{80+j}, s90"), h and h())
        g("s_memrealtime s[90:91]\ns_waitcnt lgkmcnt(0)\ns_mov_b32 s79, s90")
    load_weights(g, hooks, opt.get("wnt", ""), opt.get("word", "oqkv"), opt.get("ahead", 0), opt.get("tfl", ""), opt.get("depth", 3))
    bad = hazard.check(g.lines[m0:], "chain prologue")
    for w in range(1, 4):
        g(f"s_cmp_eq_u32 s{S_WAVE}, {w}\ns_cbranch_scc1 L_{tag}_w{w}")
    for w in range(4):
        g(f"L_{tag}_w{w}:")
        bad += wave_loop(g, w, st, tag, opt)
    g(f"L_{tag}_end:")
    return bad
```

```python
from asmlib import *
from layout import *
from chain import (S_WS, S_W, P_X, P_WQ, P_WK, P_WV, P_WO, P_WG, P_WU, P_WD, P_OUT, P_DBG, S_XCC, S_TK, S_WAVE,
                   S_T0, S_T1, S_T2, S_T3, SPIN_MAX, set_srd, S_SPIN, S_SENT, dbg_time)

WSD = f"s[{S_WS}:{S_WS+3}]"
WD = f"s[{S_W}:{S_W+3}]"
S_WI, S_COL, S_SEG, S_HD, S_NXT, S_XO, S_O1, S_O2, S_FA, S_PREV, S_LB, S_C0, S_C1, S_C2 = range(51, 65)
S_R, S_IT, S_O3 = 65, 66, 67
S_OUT = 68
S_MK = 72
RING = 65536
NROWG, NFFG, NTEAM = 5, 3, 6


def rg(f, b, n):
    return a(b, n) if f == "a" else v(b, n)


def mf32(d, x, y, first):
    return f"v_mfma_f32_32x32x16_bf16 {v(d,16)}, {x}, {y}, " + ("0" if first else v(d, 16))


def mf16(d, x, y, first):
    return f"v_mfma_f32_16x16x32_bf16 {v(d,4)}, {x}, {y}, " + ("0" if first else v(d, 4))


def spin_counter(g, tag, off, target, sleep=8):
    g(f"""
    s_cmp_lg_u32 s{S_WAVE}, 0
    s_cbranch_scc1 L_{tag}_out
    v_mov_b32 v10, {off}
    L_{tag}:
    global_load_dword v11, v10, s[{P_DBG}:{P_DBG+1}] sc1
    s_add_u32 s{S_SPIN}, s{S_SPIN}, 1
    s_cmp_gt_u32 s{S_SPIN}, {SPIN_MAX}
    s_waitcnt vmcnt(0)
    s_cbranch_scc1 L_{tag}_out
    v_cmp_gt_u32 vcc, {target}, v11
    s_cbranch_vccz L_{tag}_out
    s_sleep {sleep}
    s_branch L_{tag}
    L_{tag}_out:
    s_barrier
    """)


def spin_flags(g, tag, vaddr, soff, sleep=1):
    g(f"""
    L_{tag}:
    buffer_load_dword v11, v{vaddr}, {WSD}, s{soff} offen sc1
    s_add_u32 s{S_SPIN}, s{S_SPIN}, 1
    s_cmp_gt_u32 s{S_SPIN}, {SPIN_MAX}
    s_cbranch_scc1 L_{tag}_out
    s_waitcnt vmcnt(0)
    v_cmp_ne_u32 vcc, 1, v11
    s_cbranch_vccz L_{tag}_out
    {f's_sleep {sleep}' if sleep else ''}
    s_branch L_{tag}
    L_{tag}_out:
    s_waitcnt vmcnt(0)
    """)


def count_up(g, tag, off, wait=True, by=1):
    if wait: g("s_waitcnt vmcnt(0)\ns_barrier")
    g(f"""
    s_cmp_lg_u32 s{S_WAVE}, 0
    s_cbranch_scc1 L_{tag}
    v_mov_b32 v10, {off}
    v_mov_b32 v11, {by}
    s_mov_b64 exec, 1
    global_atomic_add v10, v11, s[{P_DBG}:{P_DBG+1}]
    s_mov_b64 exec, -1
    L_{tag}:
    """)


def set_flag(g, tag, soff, st="sc1"):
    g(f"""
    s_cmp_lg_u32 s{S_WAVE}, 0
    s_cbranch_scc1 L_{tag}
    v_mov_b32 v10, 0
    v_mov_b32 v11, 1
    s_mov_b64 exec, 1
    buffer_store_dword v11, v10, {WSD}, s{soff} offen {st}
    s_mov_b64 exec, -1
    L_{tag}:
    """)


def wstamp(g, opt, i, dump=False):
    if not opt.get("count"): return
    g(f"s_waitcnt vmcnt(0)" if dump else "")
    g(f"s_memrealtime s[88:89]\ns_waitcnt lgkmcnt(0)\ns_mov_b32 s{90+i}, s88")
    if dump:
        for k in range(5): g(f"v_mov_b32 v{21+k}, s{90+k}")
        g(f"""
        v_mov_b32 v20, s14
        s_lshl_b32 s{S_T0}, s{S_WI}, 5
        s_add_u32 s{S_T0}, s{S_T0}, {WS_STAMP - 8192}
        v_mov_b32 v10, 0
        buffer_store_dwordx4 v[20:23], v10, {WSD}, s{S_T0} offen
        buffer_store_dwordx2 v[24:25], v10, {WSD}, s{S_T0} offen offset:16
        """)


def pstamp(g, opt, i):
    if opt.get("tst") and 4 <= i <= 7:
        g(f"s_memrealtime s[88:89]\ns_waitcnt lgkmcnt(0)\ns_mov_b32 s{86+i}, s88")
    if not opt.get("pst"): return
    g(f"""
    s_memrealtime s[88:89]
    s_lshl_b32 s96, s{S_XCC}, 5
    s_add_u32 s96, s96, s{S_TK}
    s_sub_u32 s96, s96, 32
    s_lshl_b32 s96, s96, 6
    s_add_u32 s96, s96, s{S_SEG}
    s_lshl_b32 s96, s96, 6
    s_add_u32 s96, s96, {96*MB + 4*i}
    s_waitcnt lgkmcnt(0)
    v_mov_b32 v18, s88
    v_mov_b32 v19, 0
    s_mov_b64 exec, 1
    buffer_store_dword v18, v19, {WSD}, s96 offen
    s_mov_b64 exec, -1
    s_waitcnt vmcnt(0)
    """)


def worker_init(g):
    g(f"""
    s_add_u32 s{S_WI}, s{S_TK}, 192
    s_cmp_eq_u32 s{S_XCC}, 1
    s_cbranch_scc1 L_wi
    s_sub_u32 s{S_T0}, s{S_XCC}, 2
    s_min_u32 s{S_T1}, s{S_T0}, 2
    s_mul_i32 s{S_T1}, s{S_T1}, 5
    s_mul_i32 s{S_T2}, s{S_T0}, 25
    s_add_u32 s{S_T2}, s{S_T2}, s{S_T1}
    s_cmp_lt_u32 s{S_T0}, 2
    s_cselect_b32 s{S_T3}, 30, 25
    s_add_u32 s{S_WI}, s{S_T2}, s{S_TK}
    s_cmp_lt_u32 s{S_TK}, s{S_T3}
    s_cbranch_scc1 L_wi
    s_lshl_b32 s{S_WI}, s{S_T0}, 5
    s_sub_u32 s{S_WI}, s{S_WI}, s{S_T2}
    s_add_u32 s{S_WI}, s{S_WI}, s{S_TK}
    s_sub_u32 s{S_WI}, s{S_WI}, s{S_T3}
    s_add_u32 s{S_WI}, s{S_WI}, 160
    L_wi:
    """)


def worker_fill(g):
    g(f"""
    s_sub_u32 s{S_T0}, s{S_XCC}, 2
    s_cselect_b32 s{S_T0}, 64, s{S_T0}
    """)
    g(f"""
    v_mov_b32 v11, 0
    v_mul_u32_u24 v10, {NTEAM}, v0
    v_add_u32 v10, s{S_T0}, v10
    v_cmp_gt_u32 vcc, 64, v10
    v_lshlrev_b32 v10, 7, v10
    s_lshl_b32 s{S_T1}, s{S_TK}, 2
    s_add_u32 s{S_T1}, s{S_T1}, {WS_OF}
    v_mov_b32 v12, 0x40000000
    v_cndmask_b32 v10, v12, v10, vcc
    buffer_store_dword v11, v10, {WSD}, s{S_T1} offen sc1
    """)


def clear_flags(g, shift):
    g(f"""
    v_mov_b32 v11, 0
    v_mul_u32_u24 v10, {NROWG}, v0
    v_add_u32 v10, s{S_SEG}, v10
    v_cmp_gt_u32 vcc, 64, v10
    v_lshlrev_b32 v10, {shift}, v10
    v_mov_b32 v12, 0x40000000
    v_cndmask_b32 v10, v12, v10, vcc
    buffer_store_dword v11, v10, {WSD}, s{S_FA} offen sc1
    """)


def layernorm(g, seg, extra=None, seg2=None):
    X, T = 16, 80
    set_srd(g, P_X, 2 * MB)
    g(f"""
    v_lshrrev_b32 v1, 3, v0
    v_and_b32 v2, 7, v0
    v_lshlrev_b32 v3, 10, v1
    v_lshl_add_u32 v3, v2, 4, v3
    s_lshl_b32 s{S_T0}, s{seg}, 15
    """)
    for j in range(8):
        g(f"buffer_load_dwordx4 {v(T+4*j,4)}, v3, {WD}, s{S_T0} offen offset:{128*j}")
    if extra: extra[0]()
    if seg2:
        g(f"s_lshl_b32 s{S_T2}, s{seg2}, 15")
        for j in range(8): g(f"buffer_load_dwordx4 {v(128+4*j,4)}, v3, {WD}, s{S_T2} offen offset:{128*j}")
    g(f"""
    v_lshrrev_b32 v4, 1, v2
    v_lshlrev_b32 v4, 10, v4
    v_and_b32 v5, 1, v2
    v_lshl_add_u32 v4, v5, 9, v4
    v_lshl_add_u32 v4, v1, 4, v4
    s_add_u32 s{S_T0}, s{S_T0}, {WS_XN}
    s_mov_b32 s{S_T1}, 0xffff0000
    s_waitcnt vmcnt({extra[1] if extra else 8 if seg2 else 0})
    """)
    def rows(T):
        for i in range(32):
            g(f"v_lshlrev_b32 v{X+2*i}, 16, v{T+i}\nv_and_b32 v{X+2*i+1}, s{S_T1}, v{T+i}")

        def reduce8(r):
            for m in ("quad_perm:[1,0,3,2]", "quad_perm:[2,3,0,1]", "row_half_mirror"):
                g(f"s_nop 1\nv_add_f32_dpp v{r}, v{r}, v{r} {m} row_mask:0xf bank_mask:0xf")

        g(f"v_pk_add_f32 v[6:7], {v(X,2)}, {v(X+2,2)}")
        for i in range(2, 32):
            g(f"v_pk_add_f32 v[6:7], v[6:7], {v(X+2*i,2)}")
        g("v_add_f32 v6, v6, v7")
        reduce8(6)
        g(f"v_mul_f32 v6, 0x3b000000, v6\nv_mov_b32 v8, 0\nv_mov_b32 v9, 0")
        for i in range(64):
            g(f"v_sub_f32 v7, v{X+i}, v6\nv_fmac_f32 v{8+(i&1)}, v7, v7")
        g("v_add_f32 v8, v8, v9")
        reduce8(8)
        g(f"""
        v_mul_f32 v8, 0x3b000000, v8
        v_cvt_pk_bf16_f32 v6, v6, v8
        v_and_b32 v8, s{S_T1}, v6
        v_lshlrev_b32 v6, 16, v6
        v_add_f32 v8, 0x3727c5ac, v8
        v_cvt_pk_bf16_f32 v8, v8, v8
        v_and_b32 v8, s{S_T1}, v8
        v_sqrt_f32 v8, v8
        s_nop 0
        v_cvt_pk_bf16_f32 v8, v8, v8
        v_and_b32 v8, s{S_T1}, v8
        v_rcp_f32 v8, v8
        """)
        for i in range(32):
            p = X + 2 * i
            g(f"""
            v_sub_f32 v{p}, v{p}, v6
            v_sub_f32 v{p+1}, v{p+1}, v6
            v_cvt_pk_bf16_f32 v{p}, v{p}, v{p+1}
            v_and_b32 v{p+1}, s{S_T1}, v{p}
            v_lshlrev_b32 v{p}, 16, v{p}
            v_mul_f32 v{p}, v{p}, v8
            v_mul_f32 v{p+1}, v{p+1}, v8
            v_cvt_pk_bf16_f32 v{T+i}, v{p}, v{p+1}
            """)
            if i % 4 == 3:
                g(f"buffer_store_dwordx4 {v(T+i-3,4)}, v4, {WSD}, s{S_T0} offen sc1\ns_add_u32 s{S_T0}, s{S_T0}, 4096")
    rows(T)
    if seg2:
        g(f"s_add_u32 s{S_T0}, s{S_T2}, {WS_XN}\ns_waitcnt vmcnt(8)")
        rows(128)


def load_w32(g, mats, stride, touch, hooks={}, late={}, strict={}):
    DM, RT, RN = 13, 14, 15
    g(f"""
    v_and_b32 v4, 63, v0
    v_lshrrev_b32 v5, 4, v4
    v_and_b32 v6, 15, v4
    v_lshlrev_b32 v7, 2, v5
    v_xor_b32 v6, v6, v7
    v_lshlrev_b32 v{DM}, 4, v6
    s_lshl_b32 s{S_T0}, s{S_WAVE}, 4
    v_add_u32 v6, s{S_T0}, v5
    v_mul_u32_u24 v6, {stride}, v6
    v_add3_u32 v{DM}, v{DM}, v6, s{S_COL}
    v_bfe_u32 v6, v4, 2, 2
    v_xor_b32 v7, s{S_WAVE}, v6
    v_lshlrev_b32 v7, 6, v7
    v_lshl_add_u32 v7, v6, 8, v7
    v_lshrrev_b32 v6, 5, v4
    v_lshl_add_u32 v7, v6, 11, v7
    v_add_u32 v7, {RING}, v7
    v_and_b32 v5, 1, v5
    v_and_b32 v6, 3, v4
    v_lshl_add_u32 v{RN}, v5, 5, v7
    v_lshl_add_u32 v{RN}, v6, 3, v{RN}
    v_lshl_add_u32 v{RT}, v5, 4, v7
    v_and_b32 v6, 1, v4
    v_lshl_add_u32 v{RT}, v6, 3, v{RT}
    v_bfe_u32 v6, v4, 1, 1
    v_lshl_add_u32 v{RT}, v6, 5, v{RT}
    s_lshl_b32 s{S_T3}, s{S_WAVE}, 12
    s_add_u32 s{S_T3}, s{S_T3}, {RING}
    """)
    if touch is not None:
        g(f"""
        s_mul_i32 s{S_T1}, s{S_SEG}, 104
        s_mul_i32 s{S_T2}, s{S_WAVE}, 26
        s_add_u32 s{S_T1}, s{S_T1}, s{S_T2}
        v_lshrrev_b32 v5, 1, v4
        v_min_u32 v5, 25, v5
        v_add_u32 v5, s{S_T1}, v5
        v_mul_u32_u24 v5, {stride}, v5
        v_and_b32 v6, 1, v4
        v_lshl_add_u32 v5, v6, 7, v5
        """)
        for m in mats:
            set_srd(g, m[0], m[1])
            g(f"buffer_load_dword v127, v5, {WD}, s{S_COL} offen {touch}")
    stages = [(m, S) for m in mats for S in range(8)]

    def issue(i):
        m, S = stages[i]
        if S == 0: set_srd(g, m[0], m[1])
        for x in range(4):
            g(f"s_add_u32 m0, s{S_T3}, {(i % 4) * 16384 + x * 1024}\ns_mov_b32 s{S_T0}, {(64 * S + 4 * x) * stride}")
            g(f"buffer_load_dwordx4 v{DM}, {WD}, s{S_T0} offen lds")

    for i in range(3): issue(i)
    for i, (m, S) in enumerate(stages):
        g(f"s_waitcnt vmcnt({strict.get(i, 4 * min(2, len(stages) - 1 - i))}) lgkmcnt(0)\ns_barrier")
        if i in hooks: hooks[i]()
        if i + 3 < len(stages): issue(i + 3)
        if i in late: late[i]()
        for ks in range(4):
            for x in range(2):
                g(f"ds_read_b64_tr_b16 {rg(m[2], m[3] + 4*(4*S+ks) + 2*x, 2)}, v{RT if m[4] else RN} offset:{(i % 4)*16384 + ks*4096 + x*1024}")
    g("s_waitcnt lgkmcnt(0)")


def xn_dma():
    out = [[f"s_lshl_b32 s{S_T2}, s{S_NXT}, 15", f"s_add_u32 s{S_T2}, s{S_T2}, s{S_XO}"]]
    for hh in range(2):
        out[-1] += [f"s_add_u32 m0, s{S_LB}, {hh*4096}", f"s_add_u32 s{S_T1}, s{S_T2}, {hh*4096}"]
        for x in range(4):
            out[-1] += [f"buffer_load_dwordx4 v1, {WSD}, s{S_T1} offen offset:{x*1024} sc1 lds"]
            out.append([])
    out[-1] += [f"s_xor_b32 s{S_LB}, s{S_LB}, 32768"]
    return out


XF, ACC = 16, 32


def gemm_setup(g):
    g(f"""
    v_and_b32 v4, 63, v0
    v_lshlrev_b32 v1, 4, v4
    v_mov_b32 v2, v1
    s_lshl_b32 s{S_LB}, s{S_WAVE}, 13
    s_add_u32 s{S_XO}, s{S_LB}, {WS_XN}
    s_mov_b32 s{S_PREV}, -1
    s_mov_b32 s{S_NXT}, s{S_SEG}
    """)


def k_steps(g, mats, k0, k1, side=None, mid=None, fill=None):
    rd = lambda ks: f"ds_read_b128 {v(XF+4*(ks%4),4)}, v2 offset:{ks*1024}"
    for ks in range(k0, k0 + 3): g(rd(ks))
    for ks in range(k0, k1):
        g(f"s_waitcnt lgkmcnt({min(2, k1-1-ks)})")
        for n_, (j, m) in enumerate(mats):
            w_, x_ = rg(m[2], m[3] + 4*ks, 4), v(XF + 4*(ks % 4), 4)
            g(mf32(ACC + 16*j, w_, x_, ks == 0) if m[4] else mf32(ACC + 16*j, x_, w_, ks == 0))
            if n_ == 0 and ks + 3 < k1: g(rd(ks + 3))
            if n_ == 1 and side:
                for x in side.pop(0): g(x)
            room = 4
            while fill and room > 0:
                x = fill.pop(0); g(x)
                room -= 2 if x.startswith(("v_exp", "v_rcp", "buffer")) else 1
        if mid and ks == 24: mid()


def gemm_loop(g, tag, mats, stores, epilogue, flags, step=NROWG, fill=None):
    g(f"L_{tag}_seg:")
    m0 = g.mark()
    g(f"s_add_u32 s{S_NXT}, s{S_SEG}, {step}\ns_waitcnt vmcnt({2 if fill else 0})\ns_barrier")

    fl = list(fill or [])

    def mid():
        g(f"s_cmp_lt_i32 s{S_PREV}, 0\ns_cbranch_scc1 L_{tag}_nf\ns_waitcnt vmcnt(8)\ns_barrier")
        set_flag(g, f"{tag}_nf", S_PREV)
    k_steps(g, list(enumerate(mats)), 0, 32, [[x] for x in stores] + xn_dma(), mid if flags else None, fl)
    assert not fl
    g("v_xor_b32 v2, 0x8000, v2\ns_nop 7\ns_nop 1")
    epilogue()
    if flags: g(f"s_lshl_b32 s{S_PREV}, s{S_SEG}, 2\ns_add_u32 s{S_PREV}, s{S_PREV}, s{S_FA}")
    g(f"s_mov_b32 s{S_SEG}, s{S_NXT}\ns_cmp_lt_u32 s{S_SEG}, {NSEG}\ns_cbranch_scc1 L_{tag}_seg")
    bad = hazard.check(g.lines[m0:] + g.lines[m0:m0 + 40], tag)
    m1 = g.mark()
    for x in stores + (fill or []): g(x)
    bad += hazard.check(g.lines[m1 - 10:], tag + " end")
    count_up(g, f"{tag}_done", DBG_ADONE)
    if flags: set_flag(g, f"{tag}_lf", S_PREV)
    return bad


def tile_addr(g, dst, tshift):
    g(f"""
    v_bfe_u32 v5, v0, 4, 1
    v_mul_u32_u24 v{dst}, {tshift}, v5
    v_bfe_u32 v5, v0, 5, 1
    v_lshl_add_u32 v{dst}, v5, 8, v{dst}
    v_and_b32 v5, 15, v0
    v_lshl_add_u32 v{dst}, v5, 4, v{dst}
    s_lshl_b32 s{S_T0}, s{S_WAVE}, 10
    v_add_u32 v{dst}, s{S_T0}, v{dst}
    """)


def qkv_role(g, opt):
    mats = [(P_WK, 4*MB, "a", 0, 1), (P_WV, 4*MB, "a", 128, 0), (P_WQ, 4*MB, "v", 128, 1)]
    m0 = g.mark()
    g(f"""
    s_mul_i32 s{S_HD}, s{S_WI}, 52429
    s_lshr_b32 s{S_HD}, s{S_HD}, 18
    s_mul_i32 s{S_T0}, s{S_HD}, {NROWG}
    s_sub_u32 s{S_SEG}, s{S_WI}, s{S_T0}
    s_lshl_b32 s{S_COL}, s{S_HD}, 8
    s_add_u32 s{S_FA}, s{S_COL}, {WS_FLAGS}
    """)
    wstamp(g, opt, 0)
    if opt.get("pf4"):
        set_srd(g, P_WO, 4 * MB)
        g(f"v_min_u32 v126, 207, v0\nv_lshlrev_b32 v126, 7, v126\ns_mul_i32 s{S_T2}, s{S_WI}, {208*128}\nbuffer_load_dword v127, v126, {WD}, s{S_T2} offen")
        if opt["pf4"] == 2: g("s_waitcnt vmcnt(0)")
        for m_ in opt.get("pf5", ""):
            if m_ == "w": g("s_waitcnt vmcnt(0)"); continue
            set_srd(g, {"k": P_WK, "v": P_WV, "q": P_WQ}[m_], 4 * MB)
            g(f"buffer_load_dword v127, v126, {WD}, s{S_T2} offen")
    worker_fill(g)
    clear_flags(g, 2)
    for _ in range(opt.get("xq", 0)): g("s_sleep 37")
    gemm_setup(g)
    tile_addr(g, 8, 4096)
    g(f"""
    v_bfe_u32 v5, v0, 4, 1
    v_lshlrev_b32 v9, 10, v5
    v_bfe_u32 v5, v0, 5, 1
    v_lshl_add_u32 v9, v5, 9, v9
    v_and_b32 v5, 15, v0
    v_lshl_add_u32 v9, v5, 4, v9
    s_lshl_b32 s{S_T0}, s{S_WAVE}, 11
    s_add_u32 s{S_T0}, s{S_T0}, 8192
    v_add_u32 v9, s{S_T0}, v9
    v_lshlrev_b32 v3, 4, v0
    v_mov_b64 v[104:105], s[{S_SENT}:{S_SENT+1}]
    v_mov_b64 v[106:107], s[{S_SENT}:{S_SENT+1}]
    """)
    P = 80

    def epi(parts="akq"):
        if "a" in parts: g(f"""
        s_lshl_b32 s{S_O1}, s{S_SEG}, 5
        s_add_u32 s{S_O1}, s{S_O1}, s{S_HD}
        s_lshl_b32 s{S_O3}, s{S_O1}, 12
        s_add_u32 s{S_O3}, s{S_O3}, {WS_PUB}
        s_lshl_b32 s{S_O2}, s{S_O1}, 13
        s_add_u32 s{S_O2}, s{S_O2}, {WS_Q}
        s_lshl_b32 s{S_O1}, s{S_O1}, 14
        s_add_u32 s{S_O1}, s{S_O1}, {WS_KV}
        """)
        for rho in range(2 if "k" in parts else 0):
            for x in range(4): g(f"v_cvt_pk_bf16_f32 v{P+4*rho+x}, v{ACC+8*rho+x}, v{ACC+8*rho+4+x}")
        for be in range(2 if "k" in parts else 0):
            for ri in range(4):
                r = ACC + 16 + 8*(ri & 1) + 4*(ri >> 1) + 2*be
                g(f"v_cvt_pk_bf16_f32 v{P+8+4*be+ri}, v{r}, v{r+1}")
        for rho in range(2 if "q" in parts else 0):
            for x in range(4): g(f"v_cvt_pk_bf16_f32 v{P+16+4*rho+x}, v{ACC+32+8*rho+x}, v{ACC+32+8*rho+4+x}")

    stores = ([f"buffer_store_dwordx4 {v(80+4*x,4)}, v8, {WSD}, s{S_O1} offen offset:{512*x} sc1" for x in range(2)] +
              [f"buffer_store_dwordx4 {v(88+4*x,4)}, v9, {WSD}, s{S_O1} offen offset:{256*x} sc1" for x in range(2)] +
              [f"buffer_store_dwordx4 v[104:107], v3, {WSD}, s{S_O3} offen sc1"] +
              [f"buffer_store_dwordx4 {v(96+4*x,4)}, v8, {WSD}, s{S_O2} offen offset:{512*x} sc1" for x in range(2)])
    em = list(enumerate(mats))

    def stage_x():
        spin_counter(g, "qkv_ln", DBG_LN, 64)
        for x in sum(xn_dma(), []): g(x)

    def hand_over():
        k_steps(g, em[:2], 28, 32)
        g("s_nop 3")
        epi("ak")
        for x in stores[:5]: g(x)

    def flag_first():
        g(f"s_lshl_b32 s{S_T1}, s{S_SEG}, 2\ns_add_u32 s{S_T1}, s{S_T1}, s{S_FA}")
        set_flag(g, "qkv_ff", S_T1)
        g(f"s_mov_b32 s{S_O1}, 0x40000000\ns_mov_b32 s{S_O3}, 0x40000000")

    def next_x():
        g(f"s_add_u32 s{S_NXT}, s{S_SEG}, {NROWG}")
        for x in sum(xn_dma(), []): g(x)
    sx = opt.get("sx", 10)
    hooks = {0: lambda: count_up(g, "qkv_in", DBG_INIT, False), sx: stage_x, 16: hand_over, 17: flag_first, 20: next_x}
    cuts = {8: (0, 8, 16, 20, 24, 28), 9: (0, 8, 16, 24, 28), 10: (0, 10, 20, 28), 11: (0, 14, 28)}[sx]
    late = {sx + 3 + j: (lambda a_=cuts[j], b_=cuts[j + 1]: k_steps(g, em[:2], a_, b_)) for j in range(len(cuts) - 1)}
    for i in range(17, 24): late[i] = lambda i=i: k_steps(g, em[2:], 4 * (i - 17), 4 * (i - 16))
    load_w32(g, mats, 8192, None, hooks, late, {17: 4})
    wstamp(g, opt, 1)
    k_steps(g, em[2:], 28, 32)
    g(f"v_xor_b32 v2, 0x8000, v2\ns_mov_b32 s{S_SEG}, s{S_NXT}\ns_nop 7\ns_nop 1")
    epi("q")
    bad = hazard.check(g.lines[m0:], "qkv prologue")
    return bad + gemm_loop(g, "qkv", mats, stores, epi, True)


def ffn_role(g, opt):
    mats = [(P_WG, 512*2752, "a", 0, 1), (P_WU, 512*2752, "a", 128, 1)]
    m0 = g.mark()
    g(f"""
    s_sub_u32 s{S_O1}, s{S_WI}, 160
    s_mul_i32 s{S_HD}, s{S_O1}, 43691
    s_lshr_b32 s{S_HD}, s{S_HD}, 17
    s_mul_i32 s{S_T0}, s{S_HD}, {NFFG}
    s_sub_u32 s{S_SEG}, s{S_O1}, s{S_T0}
    s_mov_b32 s{S_O2}, {NFFG}
    s_cmp_lg_u32 s{S_XCC}, {1 if opt.get('sf', 1) else 9}
    s_cbranch_scc1 L_ffn_own
    s_mul_i32 s{S_SEG}, s{S_TK}, {NFFG}
    s_add_u32 s{S_SEG}, s{S_SEG}, 2
    s_mov_b32 s{S_O2}, {NSEG}
    s_cmp_lt_u32 s{S_SEG}, {NSEG}
    s_cselect_b32 s{S_HD}, 10, 11
    L_ffn_own:
    s_lshl_b32 s{S_COL}, s{S_HD}, 8
    """)
    def pf2(n=2):
        g(f"v_lshlrev_b32 v126, 7, v0")
        if opt.get("pf3"):
            set_srd(g, P_WO, 4 * MB)
            g(f"s_lshr_b32 s{S_T2}, s{S_O1}, 1\ns_lshl_b32 s{S_T2}, s{S_T2}, 17\ns_and_b32 s{S_T3}, s{S_O1}, 1\ns_lshl_b32 s{S_T3}, s{S_T3}, 15")
            g(f"s_add_u32 s{S_T2}, s{S_T2}, s{S_T3}\ns_add_u32 s{S_T2}, s{S_T2}, 65536\nbuffer_load_dword v127, v126, {WD}, s{S_T2} offen")
            if opt["pf3"] == 2: g(f"s_sub_u32 s{S_T2}, s{S_T2}, 65536\nbuffer_load_dword v127, v126, {WD}, s{S_T2} offen")
        set_srd(g, P_WQ, 4 * MB)
        g(f"s_mul_i32 s{S_T2}, s{S_O1}, {n*32768}")
        for x in range(n): g(f"buffer_load_dword v127, v126, {WD}, s{S_T2} offen\ns_add_u32 s{S_T2}, s{S_T2}, 32768")
    worker_fill(g)
    if opt.get("ln2", 1):
        g(f"s_cmp_eq_u32 s{S_XCC}, 1\ns_cbranch_scc1 L_ln")
        if opt.get("pf2"): pf2(4)
        count_up(g, "ffn_in2", DBG_INIT)
        wstamp(g, opt, 0)
        g("s_branch L_ffn_w\nL_ln:")
        layernorm(g, S_TK, None, S_O1)
        count_up(g, "ffn_lnup", DBG_LN, True, 2)
    else:
        layernorm(g, S_O1, (pf2, 2 + opt.get("pf3", 0)) if opt.get("pf2") == 2 else None)
        count_up(g, "ffn_lnup", DBG_LN)
    count_up(g, "ffn_in", DBG_INIT, False)
    wstamp(g, opt, 0)
    if opt.get("pf2") == 1 and not opt.get("ln2", 1): pf2()
    for _ in range(opt.get("xf", 0)): g("s_sleep 37")
    g(f"s_cmp_ge_u32 s{S_HD}, 11\ns_cbranch_scc1 L_leave\nL_ffn_w:")
    load_w32(g, mats, 2752, opt.get("touch"))
    wstamp(g, opt, 1)
    tile_addr(g, 8, HM_SEG // 2)
    g(f"s_mov_b32 s{S_C0}, 0xffff0000\ns_mov_b32 s{S_C1}, 0xbdd2d3e8\ns_mov_b32 s{S_C2}, 0xc0135761")
    bad = hazard.check(g.lines[m0:], "ffn prologue")

    P, T, GA, U = 80, 96, 128, 144

    def epi():
        g(f"""
        s_mul_i32 s{S_O1}, s{S_SEG}, {HM_SEG}
        s_lshl_b32 s{S_T0}, s{S_HD}, 12
        s_add_u32 s{S_O1}, s{S_O1}, s{S_T0}
        s_add_u32 s{S_O1}, s{S_O1}, {WS_HMID}
        """)
        for j in range(4):
            for x in range(4): g(f"v_cvt_pk_bf16_f32 v{GA+8*j+x}, v{ACC+8*j+x}, v{ACC+8*j+4+x}")
    unp = lambda x: [f"v_and_b32 v{x+4}, s{S_C0}, v{x}", f"v_lshlrev_b32 v{x}, 16, v{x}"]
    fill = []
    for rho in range(2):
        idx = [8*rho + i for i in range(8)]
        for x in range(4): fill += unp(GA + 8*rho + x) + unp(U + 8*rho + x)
        fill += [f"v_mul_f32 v{T+i}, v{GA+i}, v{GA+i}" for i in idx]
        fill += [f"v_fma_f32 v{T+i}, v{T+i}, s{S_C1}, v{T+16}" for i in idx]
        fill += [f"v_mul_f32 v{T+i}, v{T+i}, v{GA+i}" for i in idx]
        fill += [f"v_exp_f32 v{T+i}, v{T+i}" for i in idx]
        fill += [f"v_add_f32 v{T+i}, 1.0, v{T+i}" for i in idx]
        fill += [f"v_rcp_f32 v{T+i}, v{T+i}" for i in idx]
        fill += [f"v_mul_f32 v{GA+i}, v{GA+i}, v{T+i}" for i in idx]
        for x in range(4): fill += [f"v_cvt_pk_bf16_f32 v{GA+8*rho+x}, v{GA+8*rho+x}, v{GA+8*rho+4+x}"] + unp(GA + 8*rho + x)
        fill += [f"v_mul_f32 v{GA+i}, v{GA+i}, v{U+i}" for i in idx]
        fill += [f"v_cvt_pk_bf16_f32 v{P+4*rho+x}, v{GA+8*rho+x}, v{GA+8*rho+4+x}" for x in range(4)]
        fill += [f"buffer_store_dwordx4 {v(P+4*rho,4)}, v8, {WSD}, s{S_O1} offen offset:{512*rho} sc1"]
    gemm_setup(g)
    g(f"s_mov_b32 s{S_O1}, 0x40000000\nv_mov_b32 v{T+16}, s{S_C2}")
    spin_counter(g, "ffn_ln", DBG_LN, 64)
    for x in sum(xn_dma(), []) + ["s_waitcnt vmcnt(0)"]: g(x)
    bad += gemm_loop(g, "ffn", mats, [], epi, False, f"s{S_O2}", fill)
    g(f"s_cmp_lg_u32 s{S_XCC}, 1\ns_cbranch_scc1 L_p3\nL_leave:")
    spin_counter(g, "lv_init", DBG_INIT, 224, 32)
    spin_counter(g, "lv_team", DBG_TEAM, 32, 32)
    for i in (2, 3): wstamp(g, opt, i)
    wstamp(g, opt, 4, True)
    g("s_waitcnt vmcnt(0)\ns_endpgm")
    return bad


def p3_role(g, opt):
    LN16, KPA, RWA, RRA, XA, KMW, KMR, VMW, VMR, HFA, OFA = 1, 2, 3, 4, 5, 6, 7, 8, 9, 12, 13
    GV, XV = 14, 16
    ACC, SC, PB, OA, KM, VM = 20, 28, 44, 52, 68, 84
    ST = 92
    WDR = 168
    L_RED, L_KM, L_VM = 0, 8192, 12288
    S_TH, S_SCL, S_QO, S_KO, S_PO, S_HO = S_HD, S_C1, S_O1, S_O2, S_FA, S_PREV
    st = opt.get("st", "")
    sto = opt.get("sto", st)
    S_OB = S_LB
    m0 = g.mark()
    DM, RA = 1, 2
    g(f"""
    s_lshr_b32 s{S_TH}, s{S_TK}, 4
    s_and_b32 s{S_COL}, s{S_TK}, 15
    s_lshl_b32 s{S_COL}, s{S_COL}, 6
    v_and_b32 v4, 63, v0
    v_lshrrev_b32 v5, 4, v4
    v_bfe_u32 v6, v4, 2, 2
    v_and_b32 v7, 1, v6
    v_lshlrev_b32 v{DM}, 4, v7
    v_lshl_add_u32 v{DM}, v5, 2, v{DM}
    v_lshrrev_b32 v7, 1, v6
    v_add_u32 v{DM}, v{DM}, v7
    v_lshlrev_b32 v{DM}, 10, v{DM}
    v_and_b32 v7, 1, v5
    v_lshlrev_b32 v7, 1, v7
    v_and_b32 v8, 3, v4
    v_xor_b32 v8, v8, v7
    v_lshl_add_u32 v{DM}, v8, 4, v{DM}
    v_add_u32 v{DM}, s{S_COL}, v{DM}
    v_lshrrev_b32 v8, 2, v4
    v_lshlrev_b32 v{RA}, 6, v8
    v_lshl_add_u32 v{RA}, v7, 4, v{RA}
    v_and_b32 v8, 3, v4
    v_lshl_add_u32 v{RA}, v8, 3, v{RA}
    s_lshl_b32 s{S_T3}, s{S_WAVE}, 15
    v_add_u32 v{RA}, s{S_T3}, v{RA}
    v_xor_b32 v{RA+1}, 32, v{RA}
    s_lshl_b32 s{S_T1}, s{S_WAVE}, 20
    s_mul_i32 s{S_T2}, s{S_WAVE}, {11*32768}
    """)
    S_RHO, S_GB = S_R, S_IT
    g(f"s_and_b32 s{S_RHO}, s{S_TK}, 1\ns_lshl_b32 s{S_RHO}, s{S_RHO}, 1\ns_add_u32 s{S_RHO}, s{S_RHO}, s{S_TH}" if opt.get("rho", 1) else f"s_mov_b32 s{S_RHO}, 0")
    quarter = lambda j, sh, base: f"s_add_u32 s{S_GB}, s{S_RHO}, {j}\ns_and_b32 s{S_GB}, s{S_GB}, 3\ns_lshl_b32 s{S_GB}, s{S_GB}, {sh}\ns_add_u32 s{S_GB}, s{S_GB}, s{base}"
    steps = [("o", k) for k in range(32)] + [("d", k) for k in range(11)]
    AH = 12

    def issue(i):
        m, k = steps[i]
        if k == 0: set_srd(g, P_WO if m == "o" else P_WD, 4*MB if m == "o" else 1376*1024)
        if m == "o" and k & 7 == 0: g(quarter(k >> 3, 18, S_T1))
        for x in range(2):
            g(f"s_add_u32 m0, s{S_T3}, {(i % 16)*2048 + x*1024}\ns_add_u32 s{S_T0}, s{S_GB if m == 'o' else S_T2}, {(k & 7 if m == 'o' else k)*32768 + x*2048}")
            g(f"buffer_load_dwordx4 v{DM}, {WD}, s{S_T0} offen lds")

    wreg = lambda m, k, t, o=0, n=4: a(8*k + 4*t + o, n) if m == "o" else v(WDR + 8*k + 4*t + o, n)
    for i in range(AH): issue(i)
    for i, (m, k) in enumerate(steps):
        g(f"s_waitcnt vmcnt({2*min(AH - 1, len(steps) - 1 - i)}) lgkmcnt(8)")
        if i + AH < len(steps): issue(i + AH)
        for t in range(2):
            for x in range(2):
                g(f"ds_read_b64_tr_b16 {wreg(m, k, t, 2*x, 2)}, v{RA+t} offset:{(i % 16)*2048 + x*1024}")
    g("s_waitcnt lgkmcnt(0)\ns_barrier")
    g(f"""
    v_and_b32 v20, 63, v0
    v_lshrrev_b32 v21, 4, v20
    v_and_b32 v22, 15, v20
    v_lshlrev_b32 v{LN16}, 4, v20
    v_bfe_u32 v23, v22, 1, 1
    v_lshlrev_b32 v{KPA}, 3, v23
    v_lshrrev_b32 v23, 2, v22
    v_lshl_add_u32 v{KPA}, v23, 1, v{KPA}
    v_and_b32 v24, 1, v22
    v_add_u32 v{KPA}, v{KPA}, v24
    v_lshl_add_u32 v{KPA}, v21, 4, v{KPA}
    v_lshlrev_b32 v{KPA}, 4, v{KPA}
    v_lshl_add_u32 v{KMR}, v23, 1, v24
    v_lshlrev_b32 v{KMR}, 4, v{KMR}
    v_mul_u32_u24 v24, 144, v21
    v_add_u32 v{KMR}, v{KMR}, v24
    v_add_u32 v{KMR}, {L_KM}, v{KMR}
    v_mul_u32_u24 v{KMW}, 144, v23
    v_lshl_add_u32 v{KMW}, v21, 5, v{KMW}
    v_and_b32 v24, 3, v22
    v_lshl_add_u32 v{KMW}, v24, 2, v{KMW}
    s_mul_i32 s{S_T0}, s{S_WAVE}, 576
    s_add_u32 s{S_T0}, s{S_T0}, {L_KM}
    v_add_u32 v{KMW}, s{S_T0}, v{KMW}
    v_lshlrev_b32 v{VMW}, 3, v0
    v_add_u32 v{VMW}, {L_VM}, v{VMW}
    s_lshr_b32 s{S_T0}, s{S_WAVE}, 1
    s_lshl_b32 s{S_T0}, s{S_T0}, 10
    s_add_u32 s{S_T0}, s{S_T0}, {L_VM}
    v_lshlrev_b32 v{VMR}, 3, v20
    v_add_u32 v{VMR}, s{S_T0}, v{VMR}
    s_lshl_b32 s{S_T0}, s{S_WAVE}, 11
    v_and_b32 v24, 7, v22
    v_xor_b32 v24, v24, v21
    v_lshlrev_b32 v{RWA}, 7, v22
    v_lshl_add_u32 v{RWA}, v24, 4, v{RWA}
    v_add_u32 v{RWA}, s{S_T0}, v{RWA}
    v_xor_b32 v{HFA}, 64, v{RWA}
    v_lshlrev_b32 v{RRA}, 3, v0
    v_lshrrev_b32 v24, 4, v0
    v_and_b32 v25, 7, v24
    v_lshlrev_b32 v25, 4, v25
    v_xor_b32 v{RRA}, v{RRA}, v25
    v_lshlrev_b32 v{XA}, 10, v24
    v_lshl_add_u32 v{XA}, v22, 2, v{XA}
    s_lshl_b32 s{S_T0}, s{S_TH}, 14
    s_add_u32 s{S_T0}, s{S_T0}, s{S_COL}
    v_add_u32 v{XA}, s{S_T0}, v{XA}
    v_and_b32 v{OFA}, 7, v20
    s_lshl_b32 s{S_T0}, s{S_WAVE}, 3
    v_add_u32 v{OFA}, s{S_T0}, v{OFA}
    v_lshlrev_b32 v{OFA}, 2, v{OFA}
    s_and_b32 s{S_T0}, s{S_WAVE}, 1
    s_lshl_b32 s{S_T0}, s{S_T0}, 4
    v_add_u32 v22, s{S_T0}, v22
    v_lshlrev_b32 v21, 1, v21
    v_sub_u32 v22, v22, v21
    """)
    for T in range(2):
        for r in range(4):
            g(f"v_cmp_le_i32 s[{S_MK+2*(4*T+r)}:{S_MK+2*(4*T+r)+1}], {16*T + 8*(r >> 1) + (r & 1)}, v22")
    g(f"""
    s_mov_b32 s{S_OUT}, s{P_OUT}
    s_mov_b32 s{S_OUT+1}, s{P_OUT+1}
    s_mov_b32 s{S_OUT+2}, {2*MB}
    s_mov_b32 s{S_OUT+3}, 0x20000
    s_mov_b32 s{S_SCL}, 0x3db504f3
    s_mov_b32 s{S_C0}, 0xffff0000
    s_mov_b32 s{S_C2}, 0xbfb8aa3b
    s_sub_u32 s{S_SEG}, s{S_XCC}, 2
    s_lshl_b32 s{S_OB}, s{S_SEG}, 1
    v_mov_b32 v{PB+5}, 0
    v_mov_b32 v{PB+6}, 0
    """)
    set_srd(g, P_X, 2 * MB)
    spin_counter(g, "p3_init", DBG_INIT, 224)
    spin_counter(g, "p3_adone", DBG_ADONE, 213 if opt.get('sf', 1) else 193, 32)
    bad = hazard.check(g.lines[m0:], "p3 prologue")

    def reduce(dst):
        g("s_nop 7")
        for t in range(2): g(f"ds_write_b128 v{HFA if t else RWA}, {v(ACC+4*t,4)} offset:{L_RED}")
        g("s_waitcnt lgkmcnt(0)\ns_barrier")
        for x in range(4): g(f"ds_read_b64 {v(ACC+2*x,2)}, v{RRA} offset:{L_RED + 2048*x}")
        g(f"""
        s_waitcnt lgkmcnt(0)
        v_pk_add_f32 {v(ACC,2)}, {v(ACC,2)}, {v(ACC+2,2)}
        v_pk_add_f32 {v(ACC+4,2)}, {v(ACC+4,2)}, {v(ACC+6,2)}
        v_pk_add_f32 {v(ACC,2)}, {v(ACC,2)}, {v(ACC+4,2)}
        v_cvt_pk_bf16_f32 v{dst}, v{ACC}, v{ACC+1}
        v_and_b32 v{dst+1}, s{S_C0}, v{dst}
        v_lshlrev_b32 v{dst}, 16, v{dst}
        """)

    QR_, KR_, VR_, HM, PU = ST, ST + 16, ST + 48, SC, ST + 64
    L_KV, L_Q, L_HM = 16384, 32768, 40960
    QA, VA, HA = 88, 89, 90

    def stage_in(seg):
        g(f"""
        s_lshl_b32 s{S_T0}, s{seg}, 5
        s_add_u32 s{S_T0}, s{S_T0}, s{S_TK}
        s_lshl_b32 s{S_T0}, s{S_T0}, 2
        s_add_u32 s{S_T0}, s{S_T0}, s{S_WAVE}
        s_lshl_b32 s{S_T1}, s{S_WAVE}, 12
        s_add_u32 m0, s{S_T1}, {L_KV}
        s_lshl_b32 s{S_KO}, s{S_T0}, 12
        s_add_u32 s{S_KO}, s{S_KO}, {WS_KV}
        """)
        for x in range(4): g(f"buffer_load_dwordx4 v{LN16}, {WSD}, s{S_KO} offen offset:{x*1024} sc1 lds")
        g(f"s_lshl_b32 s{S_T1}, s{S_WAVE}, 11\ns_add_u32 m0, s{S_T1}, {L_Q}\ns_lshl_b32 s{S_QO}, s{S_T0}, 11\ns_add_u32 s{S_QO}, s{S_QO}, {WS_Q}")
        for x in range(2): g(f"buffer_load_dwordx4 v{LN16}, {WSD}, s{S_QO} offen offset:{x*1024} sc1 lds")
        g(f"""
        s_lshl_b32 s{S_T0}, s{seg}, 1
        s_add_u32 s{S_T0}, s{S_T0}, s{S_TH}
        s_mul_i32 s{S_QO}, s{S_T0}, {HM_SEG // 2}
        s_mul_i32 s{S_T1}, s{S_WAVE}, {11*1024}
        s_add_u32 s{S_QO}, s{S_QO}, s{S_T1}
        s_add_u32 s{S_QO}, s{S_QO}, {WS_HMID - 4096}
        s_cmp_eq_u32 s{S_WAVE}, 3
        s_cselect_b32 s{S_T2}, 0x40000000, 0
        """)
        for k in range(11):
            if k & 3 == 0: g(f"s_add_u32 m0, s{S_T1}, {L_HM + k*1024}\ns_add_u32 s{S_QO}, s{S_QO}, 4096")
            if k == 10: g(f"s_add_u32 s{S_QO}, s{S_QO}, s{S_T2}")
            g(f"buffer_load_dwordx4 v{LN16}, {WSD}, s{S_QO} offen offset:{(k & 3)*1024} sc1 lds")
    stage_in(S_SEG)
    g(f"""
    s_and_b32 s{S_T0}, s{S_WAVE}, 1
    s_lshl_b32 s{S_T0}, s{S_T0}, 12
    s_add_u32 s{S_T0}, s{S_T0}, {L_Q}
    v_add_u32 v{QA}, s{S_T0}, v{LN16}
    s_lshr_b32 s{S_T0}, s{S_WAVE}, 1
    s_lshl_b32 s{S_T0}, s{S_T0}, 12
    s_add_u32 s{S_T0}, s{S_T0}, {L_KV + 8192}
    v_add_u32 v{VA}, s{S_T0}, v{LN16}
    s_add_u32 s{S_T0}, s{S_T1}, {L_HM}
    v_add_u32 v{HA}, s{S_T0}, v{LN16}
    s_waitcnt vmcnt(0)
    s_barrier
    """)
    for _ in range(opt.get("xp", 0)): g("s_sleep 37")
    wstamp(g, opt, 3)
    g("L_p3_seg:")
    m1 = g.mark()
    pstamp(g, opt, 0)
    g(f"""
    s_lshl_b32 s{S_XO}, s{S_SEG}, 15
    buffer_load_dword v{XV}, v{XA}, {WD}, s{S_XO} offen
    s_lshl_b32 s{S_T0}, s{S_SEG}, 5
    s_add_u32 s{S_T0}, s{S_T0}, s{S_TK}
    s_lshl_b32 s{S_PO}, s{S_T0}, 2
    s_add_u32 s{S_PO}, s{S_PO}, s{S_WAVE}
    s_lshl_b32 s{S_PO}, s{S_PO}, 10
    s_add_u32 s{S_PO}, s{S_PO}, {WS_PUB}
    buffer_load_dwordx4 {v(PU,4)}, v{LN16}, {WSD}, s{S_PO} offen sc1
    """)
    for k in range(11): g(f"ds_read_b128 {v(HM+4*k,4)}, v{HA} offset:{k*1024}")
    more = ([f"ds_read_b128 {v(QR_+4*x,4)}, v{QA} offset:{x*1024}" for x in range(4)] +
            [f"ds_read_b128 {v(KR_+4*x,4)}, v{KPA} offset:{L_KV + x*1024}" for x in range(8)] +
            [f"ds_read_b128 {v(VR_+4*x,4)}, v{VA} offset:{x*1024}" for x in range(4)])
    issued = 0
    for k in range(11):
        g(f"s_waitcnt lgkmcnt({min(15, 10 - k + issued)})")
        for t in range(2):
            g(mf16(ACC + 4*t, wreg("d", k, t), v(HM + 4*k, 4), k == 0))
            if more and k >= 3: g(more.pop(0)); issued += 1
    reduce(GV)
    g(f"s_add_u32 s{S_NXT}, s{S_SEG}, {NTEAM}\ns_cmp_ge_u32 s{S_NXT}, {NSEG}\ns_waitcnt vmcnt(0)\ns_cbranch_scc1 L_p3_last")
    stage_in(S_NXT)
    g("L_p3_last:")
    g(f"""
    v_mul_f32 v{ACC}, s{S_C2}, v{GV}
    v_mul_f32 v{ACC+1}, s{S_C2}, v{GV+1}
    v_exp_f32 v{ACC}, v{ACC}
    v_exp_f32 v{ACC+1}, v{ACC+1}
    s_nop 0
    v_add_f32 v{ACC}, 1.0, v{ACC}
    v_add_f32 v{ACC+1}, 1.0, v{ACC+1}
    v_rcp_f32 v{ACC}, v{ACC}
    v_rcp_f32 v{ACC+1}, v{ACC+1}
    s_nop 0
    v_pk_mul_f32 {v(GV,2)}, {v(GV,2)}, {v(ACC,2)}
    v_cvt_pk_bf16_f32 v{GV}, v{GV}, v{GV+1}
    v_and_b32 v{GV+1}, s{S_C0}, v{GV}
    v_lshlrev_b32 v{GV}, 16, v{GV}
    v_and_b32 v{XV+1}, s{S_C0}, v{XV}
    v_lshlrev_b32 v{XV}, 16, v{XV}
    """)
    g(f"v_mov_b32 v{PB+5}, 0\nv_mov_b32 v{PB+6}, 0\nv_mov_b32 v10, 0")
    for x in range(4):
        for T in range(2): g(mf16(SC + 4*T, v(KR_ + 16*T + 4*x, 4), v(QR_ + 4*x, 4), x == 0))
    MX, MY = SC + 12, SC + 13
    def scale(x):
        for k_ in range(2):
            g(f"v_cvt_pk_bf16_f32 v{x}, v{x}, v{x+1}\nv_and_b32 v{x+1}, s{S_C0}, v{x}\nv_lshlrev_b32 v{x}, 16, v{x}")
            if k_ == 0: g(f"v_mul_f32 v{x}, s{S_SCL}, v{x}\nv_mul_f32 v{x+1}, s{S_SCL}, v{x+1}")
    g(f"v_mov_b32 v{MY}, 0xce6e0000\ns_nop 7")
    for i in range(4): scale(SC + 2 * i)
    for i in range(8): g(f"v_cndmask_b32 v{SC+i}, v{MY}, v{SC+i}, s[{S_MK+2*i}:{S_MK+2*i+1}]")
    g(f"v_max3_f32 v{MX}, v{SC}, v{SC+1}, v{SC+2}\nv_max3_f32 v{MX}, v{MX}, v{SC+3}, v{SC+4}\nv_max3_f32 v{MX}, v{MX}, v{SC+5}, v{SC+6}\nv_max_f32 v{MX}, v{MX}, v{SC+7}")
    pstamp(g, opt, 3)
    g(f"""
    L_p3_pub:
    s_add_u32 s{S_SPIN}, s{S_SPIN}, 1
    s_cmp_gt_u32 s{S_SPIN}, {SPIN_MAX}
    s_cbranch_scc1 L_p3_pub_out
    v_max3_u32 v11, v{PU}, v{PU+1}, v{PU+2}
    v_max_u32 v11, v11, v{PU+3}
    v_cmp_eq_u32 vcc, s{S_SENT}, v11
    s_cbranch_vccz L_p3_pub_out
    s_cmp_ge_u32 s{S_SEG}, {NSEG - 2}
    s_cbranch_scc1 L_p3_again
    s_sleep {opt.get('psleep', 6)}
    L_p3_again:
    buffer_load_dwordx4 {v(PU,4)}, v{LN16}, {WSD}, s{S_PO} offen sc1
    s_waitcnt vmcnt(0)
    s_branch L_p3_pub
    L_p3_pub_out:
    ds_write2_b32 v{KMW}, v{PU}, v{PU+1} offset0:0 offset1:4
    ds_write_b64 v{VMW}, {v(PU+2,2)}
    s_waitcnt lgkmcnt(0)
    s_barrier
    """)
    pstamp(g, opt, 4)
    for x in range(4): g(f"ds_read_b128 {v(KM+4*x,4)}, v{KMR} offset:{576*x}")
    for x in range(2): g(f"ds_read_b64 {v(VM+2*x,2)}, v{VMR} offset:{512*x}")
    for x in range(4):
        g(f"s_waitcnt lgkmcnt({5-x})")
        g(mf16(SC + 8, v(KM + 4*x, 4), v(QR_ + 4*x, 4), x == 0))
    g(f"""
    s_lshl_b32 s{S_T0}, s{S_OB}, 1
    s_and_b32 s{S_T1}, s{S_WAVE}, 1
    s_add_u32 s{S_T0}, s{S_T0}, s{S_T1}
    s_lshl_b32 s{S_T0}, s{S_T0}, 5
    s_add_u32 s{S_T0}, s{S_T0}, s{S_TK}
    s_lshl_b32 s{S_T0}, s{S_T0}, 2
    s_and_b32 s{S_T1}, s{S_WAVE}, 2
    s_add_u32 s{S_T0}, s{S_T0}, s{S_T1}
    s_lshl_b32 s{S_T0}, s{S_T0}, 10
    s_add_u32 s{S_T0}, s{S_T0}, {WS_O}
    """)
    scale(SC + 8)
    g(f"v_max3_f32 v{MX}, v{MX}, v{SC+8}, v{SC+9}")

    def cross(r, t, op):
        for sw in (16, 32):
            g(f"v_mov_b32 v{t}, v{r}\ns_nop 1\nv_permlane{sw}_swap_b32 v{r}, v{t}\n{op} v{r}, v{r}, v{t}")
    cross(MX, MY, "v_max_f32")
    g(f"v_mul_f32 v{MX}, s{S_C2}, v{MX}")
    for i in range(10): g(f"v_fma_f32 v{SC+i}, -v{SC+i}, s{S_C2}, v{MX}")
    for i in range(10): g(f"v_exp_f32 v{SC+i}, v{SC+i}")
    g(f"v_pk_add_f32 {v(MX,2)}, {v(SC,2)}, {v(SC+2,2)}\nv_pk_add_f32 {v(MX+2,2)}, {v(SC+4,2)}, {v(SC+6,2)}")
    g(f"v_pk_add_f32 {v(MX,2)}, {v(MX,2)}, {v(SC+8,2)}\nv_pk_add_f32 {v(MX,2)}, {v(MX,2)}, {v(MX+2,2)}\nv_add_f32 v{MX}, v{MX}, v{MY}")
    cross(MX, MY, "v_add_f32")
    g(f"v_rcp_f32 v{MX}, v{MX}\ns_waitcnt lgkmcnt(0)")
    for i in range(5): g(f"v_pk_mul_f32 {v(SC+2*i,2)}, {v(SC+2*i,2)}, {v(MX,2)} op_sel_hi:[1,0]")
    for ri in range(4):
        r = SC + 4*(ri & 1) + 2*(ri >> 1)
        g(f"v_cvt_pk_bf16_f32 v{PB+ri}, v{r}, v{r+1}")
    g(f"v_cvt_pk_bf16_f32 v{PB+4}, v{SC+8}, v{SC+9}\nv_cvt_pk_bf16_f32 v{PB+7}, v{SC+8}, v{SC+9}")
    for x in range(2):
        for e in (2*x, 2*x + 1): g(mf16(OA + 4*e, v(VR_ + 4*e, 4), v(PB, 4), True))
        for e in (2*x, 2*x + 1): g(f"v_mfma_f32_16x16x16_bf16 {v(OA+4*e,4)}, {v(VM+2*(e >> 1),2)}, {v(PB+4+2*(e & 1),2)}, {v(OA+4*e,4)}")
    for x in range(2):
        if x: g("s_nop 2")
        for r in range(4): g(f"v_cvt_pk_bf16_f32 v{KM+4*x+r}, v{OA+8*x+r}, v{OA+8*x+4+r}")
        g(f"buffer_store_dwordx4 {v(KM+4*x,4)}, v{LN16}, {WSD}, s{S_T0} offen offset:{x*1024} {sto}")
    g(f"""
    s_lshl_b32 s{S_T2}, s{S_SEG}, 7
    s_add_u32 s{S_T2}, s{S_T2}, {WS_OF}
    s_lshl_b32 s{S_T1}, s{S_TK}, 2
    s_add_u32 s{S_T1}, s{S_T1}, s{S_T2}
    s_lshl_b32 s{S_T0}, s{S_OB}, 1
    s_add_u32 s{S_T0}, s{S_T0}, s{S_TH}
    s_lshl_b32 s{S_T0}, s{S_T0}, 2
    s_add_u32 s{S_T0}, s{S_T0}, s{S_WAVE}
    s_lshl_b32 s{S_T0}, s{S_T0}, 15
    s_add_u32 s{S_HO}, s{S_T0}, {WS_O}
    s_waitcnt vmcnt(0)
    s_barrier
    """)
    pstamp(g, opt, 5)
    set_flag(g, "p3_of", S_T1, st)
    spin_flags(g, "p3_ow", OFA, S_T2, 0)
    pstamp(g, opt, 6)
    NB = 16

    def old(k):
        if k & 7 == 0: g(quarter(k >> 3, 13, S_HO))
        g(f"buffer_load_dwordx4 {v(ST+4*(k % NB),4)}, v{LN16}, {WSD}, s{S_GB} offen offset:{(k & 3)*1024} sc1")
        if k & 7 == 3: g(f"s_add_u32 s{S_GB}, s{S_GB}, 4096")
    for k in range(NB): old(k)
    for k in range(32):
        g(f"s_waitcnt vmcnt({min(NB - 1, 31 - k)})")
        for t in range(2): g(mf16(ACC + 4*t, wreg("o", k, t), v(ST + 4*(k % NB), 4), k == 0))
        if k + NB < 32: old(k + NB)
    pstamp(g, opt, 7)
    reduce(SC)
    pstamp(g, opt, 8)
    g(f"""
    v_pk_mul_f32 {v(SC,2)}, {v(SC,2)}, {v(GV,2)}
    v_cvt_pk_bf16_f32 v{SC}, v{SC}, v{SC+1}
    v_and_b32 v{SC+1}, s{S_C0}, v{SC}
    v_lshlrev_b32 v{SC}, 16, v{SC}
    v_pk_add_f32 {v(SC,2)}, {v(SC,2)}, {v(XV,2)}
    v_cvt_pk_bf16_f32 v{SC}, v{SC}, v{SC+1}
    buffer_store_dword v{SC}, v{XA}, s[{S_OUT}:{S_OUT+3}], s{S_XO} offen {opt.get('ofl', '')}
    s_xor_b32 s{S_OB}, s{S_OB}, 1
    s_add_u32 s{S_SEG}, s{S_SEG}, {NTEAM}
    s_cmp_lt_u32 s{S_SEG}, {NSEG}
    s_barrier
    s_cbranch_scc1 L_p3_seg
    """)
    bad += hazard.check(g.lines[m1:], "p3 loop")
    wstamp(g, opt, 4, True)
    if opt.get("dbgt"):
        g(f"s_cmp_lg_u32 s{S_WAVE}, 0\ns_cbranch_scc1 L_dt2\ns_cmp_lg_u32 s{S_XCC}, 5\ns_cbranch_scc1 L_dt2")
        dbg_time(g, opt, 6)
        g("L_dt2:")
    g("s_waitcnt vmcnt(0)\ns_endpgm")
    return bad


def worker_roles(g, opt):
    m0 = g.mark()
    worker_init(g)
    bad = hazard.check(g.lines[m0:], "worker init")
    g(f"s_cmp_ge_u32 s{S_WI}, 160\ns_cbranch_scc1 L_ffn")
    bad += qkv_role(g, opt)
    g("s_branch L_p3\nL_ffn:")
    bad += ffn_role(g, opt)
    g("L_p3:")
    wstamp(g, opt, 2)
    bad += p3_role(g, opt)
    return bad
```

```python
from asmlib import *
from layout import *

S_WS = 4
S_W = 8
P_X, P_MEM0, P_WQ, P_WK, P_WV, P_WO, P_SEG, P_BX, P_WG, P_WU, P_WD, P_OUT, P_DBG, P_WSP = range(16, 44, 2)
S_XCC, S_TK, S_WAVE = 44, 45, 46
S_SPIN = 3
S_SENT = 12
SENT = 0xffbfffbf
S_T0, S_T1, S_T2, S_T3 = 47, 48, 49, 50
S_STEP, S_H1ST, S_H1ST2, S_H1LD, S_H1LD2, S_TAG, S_H2LD, S_H2LD2, S_H2ST, S_KV, S_PUB, S_FREE0, S_SC, S_FL, S_FREE1 = range(51, 66)
S_HF = 66
S_RDY = 68
S_ONE = 70
S_H2RS, S_F12 = 72, 73
S_KV2, S_VV = 100, 101
IDX, LW, LM, H1ST, H2ST, QW, QR, KR, OW, FLG, TCH = range(1, 12)
VN, PA, VX, ACC, M, POOL, KN, WRES = 12, 20, 24, 40, 64, 96, 144, 152
FV, GM, FAD, FST = VX + 3, VX + 7, VX + 11, VX + 15
A = [ACC + 4 * i for i in range(6)]
LDS_WAVE = 38912
LDS_MISC = 155648
L_KX = LDS_MISC
L_QK = LDS_MISC
L_O = L_QK + 4096
SPIN_MAX = 1 << 13

G_R = [[(m, 0, t), (m, 1, t)] for m, t in (("q", 0), ("v", 1), ("k", 3), ("q", 7), ("k", 7), ("v", 7))]
G_M = G_R[1] + G_R[2] + G_R[3]
G_QK = G_R[4] + G_R[5] + G_R[0]
G_O = [("o", 4, 1), ("o", 5, 0), ("o", 5, 1), ("o", 6, 0), ("o", 6, 1), ("o", 7, 0), ("o", 7, 1)]
LDS_IDX = {k: i for i, k in enumerate(G_M + G_O[:2] + G_O[4:6] + G_R[4] + G_R[0] + G_R[5] + G_O[2:4] + G_O[6:])}
LOC = {}
for k, i in zip(G_O, (4, 5, 1, 2, 3, 0, 4)):
    LOC[k] = ("v", POOL + 8 * i)
for k in G_M + G_QK:
    LOC[k] = ("v", POOL + 32 + 8 * k[1])
_n = 0
for k in [(m, x, t) for m in "qkv" for t in range(8) for x in range(2)] + [("o", x, t) for x in range(8) for t in range(2)]:
    if k in LOC: continue
    LOC[k] = ("a", 8 * _n) if _n < 32 else ("v", WRES + 8 * (_n - 32))
    _n += 1
assert _n == 45


def rng(f, b, n):
    return a(b, n) if f == "a" else v(b, n)


def wop(k):
    return rng(LOC[k][0], LOC[k][1], 8)


def smf(d, aop, k, abid=0):
    b = wop(k) if isinstance(k, tuple) else k
    return f"v_smfmac_f32_16x16x64_bf16 {v(d,4)}, {v(aop,4)}, {b}, {v(IDX)}" + (" abid:1" if abid else "")


def mf(d, x, y, c):
    return f"v_mfma_f32_16x16x32_bf16 {v(d,4)}, {v(x,4)}, {v(y,4)}, " + ("0" if c is None else v(c, 4))


def stage_reads(grp):
    return [f"ds_read_b128 {v(LOC[k][1]+4*hh,4)}, {v(LW)} offset:{LDS_IDX[k]*2048+hh*1024}" for k in grp for hh in range(2)]


def zero(base, n):
    return [f"v_mov_b64 {v(base+2*i,2)}, 0" for i in range(n // 2)]


def set_srd(g, ptr, nbytes):
    g(f"s_mov_b32 s{S_W}, s{ptr}\ns_mov_b32 s{S_W+1}, s{ptr+1}\ns_mov_b32 s{S_W+2}, {nbytes}\ns_mov_b32 s{S_W+3}, 0x20000")


def dbg_time(g, opt, slot, neg=False):
    if not opt.get("dbgt"): return
    g(f"""
    s_memrealtime s[88:89]
    s_waitcnt lgkmcnt(0)
    {'s_not_b32 s88, s88' if neg else ''}
    v_mov_b32 v90, {4*slot}
    v_mov_b32 v91, s88
    s_mov_b64 exec, 1
    global_atomic_umax v90, v91, s[{P_DBG}:{P_DBG+1}]
    s_mov_b64 exec, -1
    """)


def load_weights(g, hooks, nt, order, ahead=0, tfl='', depth=4):
    RA, RO, DQ, DO = 10, 12, 20, 21
    T0, T1, T2, T3 = 56, 57, 58, 59
    g(f"""
    v_and_b32 v{T0}, 63, v0
    v_lshrrev_b32 v{T1}, 4, v{T0}
    v_and_b32 v{T2}, 15, v{T0}
    s_and_b32 s{S_T0}, s{S_WAVE}, 1
    s_lshr_b32 s{S_T1}, s{S_WAVE}, 1
    s_lshl_b32 s{S_T1}, s{S_T1}, 6
    s_add_u32 s{S_T1}, s{S_T1}, s{S_T0}
    s_lshl_b32 s{S_T1}, s{S_T1}, 14
    s_lshl_b32 s{S_T2}, s{S_TK}, 8
    s_add_u32 s{S_T1}, s{S_T1}, s{S_T2}
    s_lshl_b32 s{S_T0}, s{S_T0}, 3
    v_lshlrev_b32 v{T3}, 1, v{T1}
    v_xor_b32 v{T3}, v{T3}, v{T2}
    v_xor_b32 v{DQ}, s{S_T0}, v{T3}
    v_lshlrev_b32 v{DQ}, 4, v{DQ}
    v_lshlrev_b32 v{DO}, 4, v{T3}
    v_lshrrev_b32 v{T2}, 1, v{T1}
    v_and_b32 v{T3}, 1, v{T1}
    v_lshl_add_u32 v{DQ}, v{T2}, 16, v{DQ}
    v_lshl_add_u32 v{DQ}, v{T3}, 17, v{DQ}
    v_add_u32 v{DQ}, s{S_T1}, v{DQ}
    v_lshl_add_u32 v{DO}, v{T2}, 12, v{DO}
    v_lshl_add_u32 v{DO}, v{T3}, 14, v{DO}
    s_lshl_b32 s{S_T1}, s{S_TK}, 17
    s_lshl_b32 s{S_T2}, s{S_WAVE}, 8
    s_add_u32 s{S_T1}, s{S_T1}, s{S_T2}
    v_add_u32 v{DO}, s{S_T1}, v{DO}
    v_xor_b32 v{DO+1}, 0x80, v{DO}
    """)
    g(f"""
    v_bfe_u32 v{T2}, v{T0}, 2, 2
    v_and_b32 v{T3}, 1, v{T1}
    v_lshl_add_u32 v{T3}, v{T3}, 2, v{T2}
    v_lshlrev_b32 v{T3}, 5, v{T3}
    v_lshl_add_u32 v{T3}, v{T2}, 8, v{T3}
    v_and_b32 v{T2}, 3, v{T0}
    v_lshl_add_u32 v{T3}, v{T2}, 3, v{T3}
    s_lshl_b32 s{S_T0}, s{S_WAVE}, 6
    v_xor_b32 v{RA}, s{S_T0}, v{T3}
    s_mov_b32 s{S_T0}, {LDS_WAVE}
    v_mul_lo_u32 v{T2}, s{S_T0}, v{T1}
    v_add_u32 v{RA}, v{RA}, v{T2}
    v_xor_b32 v{RA+1}, 32, v{RA}
    s_mul_i32 s{S_T3}, s{S_WAVE}, {LDS_WAVE}
    v_lshl_add_u32 v{RO}, v{T1}, 10, v{T3}
    v_add_u32 v{RO}, s{S_T3}, v{RO}
    """)
    for tau in range(1, 8):
        g(f"v_xor_b32 v{RO+tau}, {32*tau}, v{RO}")
    TA_, TD_, S_W2 = 23, 9, 92
    if ahead:
        g(f"""
        v_bfe_u32 v{T2}, v{T0}, 4, 1
        v_lshlrev_b32 v{TA_}, 16, v{T2}
        v_bfe_u32 v{T2}, v{T0}, 3, 1
        v_lshl_add_u32 v{TA_}, v{T2}, 17, v{TA_}
        v_lshrrev_b32 v{T2}, 5, v{T0}
        v_lshl_add_u32 v{TA_}, v{T2}, 15, v{TA_}
        v_and_b32 v{T2}, 7, v{T0}
        v_lshl_add_u32 v{TA_}, v{T2}, 7, v{TA_}
        s_lshr_b32 s{S_T0}, s{S_WAVE}, 1
        s_lshl_b32 s{S_T0}, s{S_T0}, 20
        s_and_b32 s{S_T1}, s{S_WAVE}, 1
        s_lshl_b32 s{S_T1}, s{S_T1}, 14
        s_add_u32 s{S_T0}, s{S_T0}, s{S_T1}
        s_and_b32 s{S_T1}, s{S_TK}, 2
        s_lshl_b32 s{S_T1}, s{S_T1}, 20
        s_add_u32 s{S_T0}, s{S_T0}, s{S_T1}
        s_and_b32 s{S_T1}, s{S_TK}, 1
        s_lshl_b32 s{S_T1}, s{S_T1}, 13
        s_add_u32 s{S_T0}, s{S_T0}, s{S_T1}
        s_and_b32 s{S_T1}, s{S_TK}, 28
        s_lshl_b32 s{S_T1}, s{S_T1}, 8
        s_add_u32 s{S_T0}, s{S_T0}, s{S_T1}
        v_add_u32 v{TA_}, s{S_T0}, v{TA_}
        """)
    ops = []
    stages = [(m, t) for m in order for t in range(8)]

    def touch(j):
        if not ahead or j >= len(stages) or stages[j][0] == "o" or stages[j][1] & 1: return
        m, t = stages[j]
        if t == 0:
            p = {"q": P_WQ, "k": P_WK, "v": P_WV}[m]
            g(f"s_mov_b32 s{S_W2}, s{p}\ns_mov_b32 s{S_W2+1}, s{p+1}\ns_mov_b32 s{S_W2+2}, {4*MB}\ns_mov_b32 s{S_W2+3}, 0x20000")
        g(f"s_mov_b32 s{S_T0}, {(64 * (t >> 2) + 32 * ((t >> 1) & 1)) * 8192}\nbuffer_load_dword v{TD_}, v{TA_}, s[{S_W2}:{S_W2+3}], s{S_T0} offen {tfl}")
        ops.append(-1)
    park = {}
    for i, k in enumerate(G_QK): park[k] = ("v", POOL + 8 * i)
    for i, k in enumerate(G_O): park[k] = ("v", M + 8 * i) if i < 4 else ("v", VX + 8 * (i - 4)) if i < 6 else ("v", KN)
    for k in G_M: park[k] = ("v", ACC + 8 * k[1])

    assert stages[-1] == G_R[5][0][::2] and depth <= 3

    def unpark(idx):
        for k in park:
            if LDS_IDX[k] in idx:
                for hh in range(2): g(f"ds_write_b128 v{LW}, {v(park[k][1]+4*hh,4)} offset:{LDS_IDX[k]*2048+hh*1024}")

    def issue(i):
        m, t = stages[i]
        if t == 0:
            set_srd(g, {"q": P_WQ, "k": P_WK, "v": P_WV, "o": P_WO}[m], 4 * MB)
        for x in range(4):
            if m == "o":
                row = 64 * (t >> 2) + 32 * ((t >> 1) & 1) + (t & 1) + 8 * (x >> 1) + 2 * (x & 1)
                so, vo = row * 1024, DO + (x & 1)
            else:
                so, vo = (256 * (x >> 1) + (x & 1) + 64 * (t >> 2) + 32 * ((t >> 1) & 1) + 4 * (t & 1)) * 8192, DQ
            g(f"s_add_u32 m0, s{S_T3}, {16384 + (i % 4) * 4096 + x * 1024}")
            g(f"s_mov_b32 s{S_T0}, {so}")
            g(f"buffer_load_dwordx4 v{vo}, s[{S_W}:{S_W+3}], s{S_T0} offen {'nt' if m in nt else ''} lds")
            ops.append(i)
        touch(i + ahead)

    for i in range(depth):
        issue(i)
    if -1 in hooks:
        hooks[-1]()
        ops.extend([-1] * 6)
    for i, (m, t) in enumerate(stages):
        g(f"s_waitcnt vmcnt({ops[::-1].index(i)}) lgkmcnt(0)\ns_barrier")
        if i and stages[i - 1] == ("o", 7): unpark((6, 7, 16, 17, 18))
        if i > len(stages) - 4: unpark((8 + 2 * ((i - 1) % 4), 9 + 2 * ((i - 1) % 4)))
        if i in hooks: hooks[i]()
        if i + depth < len(stages):
            issue(i + depth)
        base = 16384 + (i % 4) * 4096
        for x in range(8):
            if m == "o":
                k, rho, ad, off = ("o", x, t >> 2), t & 3, RO + x, base
            else:
                k, rho, ad, off = (m, x >> 2, t), x & 3, RA + (x >> 2), base + (x & 3) * 1024
            f, b = park.get(k, LOC[k])
            g(f"ds_read_b64_tr_b16 {rng(f, b + 2*rho, 2)}, v{ad} offset:{off}")
        if (m, 0, t) in G_M:
            g("s_waitcnt lgkmcnt(0)")
            for sg in range(2):
                for hh in range(2):
                    g(f"ds_write_b128 v{LW}, {v(ACC+8*sg+4*hh,4)} offset:{LDS_IDX[(m,sg,t)]*2048+hh*1024}")
    g("s_waitcnt lgkmcnt(0)\ns_barrier")
    unpark((14, 15))


def setup_early(g, st, al=0, pp=1):
    T0, T1, T2, T3 = 56, 57, 58, 59
    g(f"""
    v_and_b32 v{T0}, 63, v0
    v_lshlrev_b32 v{LM}, 4, v{T0}
    s_mul_i32 s{S_T0}, s{S_WAVE}, {LDS_WAVE}
    v_add_u32 v{LW}, s{S_T0}, v{LM}
    v_add_u32 v{LM}, {LDS_MISC}, v{LM}
    v_lshrrev_b32 v{T1}, 4, v{T0}
    v_and_b32 v{T2}, 15, v{T0}
    s_lshl_b32 s{S_T0}, s{S_WAVE}, 3
    v_lshrrev_b32 v{T3}, 3, v{T0}
    v_add_u32 v{T3}, s{S_T0}, v{T3}
    v_lshlrev_b32 v{H1ST}, 13, v{T3}
    v_lshl_add_u32 v{T3}, v{T3}, 1, s{S_TK}
    v_and_b32 v{T3}, 31, v{T3}
    v_lshl_add_u32 v{H1ST}, v{T3}, 7, v{H1ST}
    v_and_b32 v{T3}, 7, v{T0}
    v_lshl_add_u32 v{H1ST}, v{T3}, 3, v{H1ST}
    v_lshrrev_b32 v{T3}, 3, v{T2}
    v_lshlrev_b32 v{H2ST}, 29, v{T3}
    v_bfe_u32 v{T3}, v{T2}, 1, 1
    v_lshl_add_u32 v{H2ST}, v{T3}, 11, v{H2ST}
    v_bfe_u32 v{T3}, v{T2}, 2, 1
    v_lshl_add_u32 v{H2ST}, v{T3}, 7, v{H2ST}
    v_and_b32 v{T3}, 1, v{T2}
    v_lshl_add_u32 v{H2ST}, v{T3}, 3, v{H2ST}
    v_and_b32 v{T3}, 1, v{T1}
    v_lshl_add_u32 v{H2ST}, v{T3}, 4, v{H2ST}
    v_lshrrev_b32 v{T3}, 1, v{T1}
    v_lshl_add_u32 v{H2ST}, v{T3}, 30, v{H2ST}
    s_and_b32 s{S_T0}, s{S_TK}, 3
    s_lshl_b32 s{S_T0}, s{S_T0}, 5
    s_lshr_b32 s{S_T1}, s{S_TK}, 2
    s_lshl_b32 s{S_T1}, s{S_T1}, 8
    s_add_u32 s{S_T0}, s{S_T0}, s{S_T1}
    s_and_b32 s{S_T2}, s{S_WAVE}, 1
    s_lshl_b32 s{S_T2}, s{S_T2}, 12
    s_add_u32 s{S_T0}, s{S_T0}, s{S_T2}
    v_add_u32 v{H2ST}, s{S_T0}, v{H2ST}
    """)
    g(f"""
    s_mov_b32 s{S_STEP}, 0
    s_lshl_b32 s{S_T0}, s{S_TK}, 13
    s_add_u32 s{S_H1LD}, s{S_T0}, {WS_H1 - LDS_MISC}
    s_mov_b32 s{S_H1ST}, {WS_H1}
    s_mov_b32 s{S_H1ST2}, {WS_H1 + 4096}
    s_mov_b32 s{S_H2LD}, {WS_H2}
    s_mov_b32 s{S_H2LD2}, {WS_H2 + 4096}
    s_lshl_b32 s{S_T0}, s{S_TK}, 14
    s_add_u32 s{S_KV}, s{S_T0}, {WS_KV - LDS_MISC}
    s_lshl_b32 s{S_T0}, s{S_TK}, 2
    s_add_u32 s{S_T0}, s{S_T0}, s{S_WAVE}
    s_lshl_b32 s{S_T0}, s{S_T0}, 10
    s_add_u32 s{S_PUB if pp else S_F12}, s{S_T0}, {WS_PUB - LDS_MISC}
    {'' if pp else f's_mov_b32 s{S_PUB}, 0x40000000'}
    s_lshl_b32 s{S_T0}, s{S_TK}, 8
    s_add_u32 s{S_FL}, s{S_T0}, {WS_FLAGS}
    s_mov_b32 s{S_HF}, 0xcccccccc
    s_mov_b32 s{S_HF+1}, 0xcccccccc
    s_mov_b32 s{S_SC}, 0x3e0293ee
    s_mov_b32 s{S_SC-1}, 0x3e0293ee
    v_mov_b64 v[60:61], -1
    v_mov_b64 v[62:63], -1
    s_lshl_b32 s{S_T1}, s{S_WAVE}, 11
    s_add_u32 s{S_T1}, s{S_T1}, s{S_H1LD}
    s_add_u32 s{S_H1LD}, s{S_H1LD}, s{S_T2}
    """)
    for x in range(2):
        g(f"buffer_store_dwordx4 v[60:63], v{LM}, s[{S_WS}:{S_WS+3}], s{S_T1} offen offset:{x*1024} {st}")
    g(f"""
    s_mov_b32 s{S_H2RS}, {WS_H2 + 8192}
    """)
    if al: g(f"""
    v_mov_b32 v51, 0
    s_mov_b32 s{S_FREE1}, {WS_H2 + 16384}
    s_lshl_b32 s{S_H1LD2}, s{S_TK}, 2
    s_add_u32 s{S_H1LD2}, s{S_H1LD2}, s{S_FREE1}
    buffer_store_dword v51, v51, s[{S_WS}:{S_WS+3}], s{S_H1LD2} offen {st}
    """)
    set_srd(g, P_MEM0, 8192)
    g(f"""
    s_lshr_b32 s{S_T0}, s{S_TK}, 3
    s_lshl_b32 s{S_T0}, s{S_T0}, 8
    s_and_b32 s{S_T1}, s{S_TK}, 1
    s_lshl_b32 s{S_T1}, s{S_T1}, 4
    s_add_u32 s{S_T0}, s{S_T0}, s{S_T1}
    s_lshr_b32 s{S_T1}, s{S_T2}, 5
    s_add_u32 s{S_T0}, s{S_T0}, s{S_T1}
    s_and_b32 s{S_T1}, s{S_TK}, 6
    s_lshl_b32 s{S_T1}, s{S_T1}, 10
    s_add_u32 s{S_T0}, s{S_T0}, s{S_T1}
    v_and_b32 v{T3}, 1, v{T1}
    v_lshlrev_b32 v{T3}, 10, v{T3}
    v_and_b32 v52, 3, v{T2}
    v_lshl_add_u32 v{T3}, v52, 2, v{T3}
    v_bfe_u32 v52, v{T2}, 2, 1
    v_lshl_add_u32 v{T3}, v52, 6, v{T3}
    buffer_load_ushort v52, v{T3}, s[{S_W}:{S_W+3}], s{S_T0} offen
    buffer_load_ushort v53, v{T3}, s[{S_W}:{S_W+3}], s{S_T0} offen offset:32
    buffer_load_ushort v54, v{T3}, s[{S_W}:{S_W+3}], s{S_T0} offen offset:2
    buffer_load_ushort v55, v{T3}, s[{S_W}:{S_W+3}], s{S_T0} offen offset:34
    """)


def store_mem0(g, st):
    g(f"""
    s_mov_b32 s{S_T0}, {WS_H2}
    v_lshl_or_b32 v52, v53, 16, v52
    v_lshl_or_b32 v53, v55, 16, v54
    v_cmp_ne_u32 vcc, s{S_SENT}, v52
    s_nop 1
    v_cndmask_b32 v52, -1, v52, vcc
    v_cmp_ne_u32 vcc, s{S_SENT}, v53
    s_nop 1
    v_cndmask_b32 v53, -1, v53, vcc
    buffer_store_dwordx2 v[52:53], v{H2ST}, s[{S_WS}:{S_WS+3}], s{S_T0} offen {st}
    """)


def setup_late(g, al=0):
    T0, T1, T2, T3 = 56, 57, 58, 59
    g(f"""
    v_and_b32 v{T0}, 63, v0
    v_lshrrev_b32 v{T1}, 4, v{T0}
    v_and_b32 v{T2}, 15, v{T0}
    v_mov_b32 v{IDX}, 0x44444444
    v_mov_b32 v{T3}, 0x4e1eeeee
    v_cndmask_b32 v{IDX}, v{IDX}, v{T3}, s[{S_HF}:{S_HF+1}]
    s_lshl_b32 s{S_T0}, s{S_WAVE}, 10
    s_add_u32 s{S_T0}, s{S_T0}, {L_QK}
    v_lshrrev_b32 v{T3}, 2, v{T2}
    v_lshlrev_b32 v{QW}, 7, v{T3}
    v_lshl_add_u32 v{QW}, v{T1}, 5, v{QW}
    v_and_b32 v{T3}, 1, v{T3}
    v_lshlrev_b32 v{T3}, 6, v{T3}
    v_xor_b32 v{QW}, v{QW}, v{T3}
    v_and_b32 v{T3}, 3, v{T2}
    v_lshl_add_u32 v{QW}, v{T3}, 2, v{QW}
    v_add_u32 v{QW}, s{S_T0}, v{QW}
    v_lshlrev_b32 v{QR}, 7, v{T1}
    v_add_u32 v{QR}, {L_QK}, v{QR}
    v_and_b32 v{T3}, 1, v{T2}
    v_lshl_add_u32 v{QR}, v{T3}, 4, v{QR}
    v_add_u32 v{KR}, 512, v{QR}
    v_lshrrev_b32 v{T3}, 2, v{T2}
    v_lshl_add_u32 v{QR}, v{T3}, 5, v{QR}
    v_lshrrev_b32 v{T3}, 3, v{T2}
    v_lshl_add_u32 v{KR}, v{T3}, 5, v{KR}
    v_lshrrev_b32 v{T3}, 1, v{T2}
    v_xor_b32 v{T3}, v{T3}, v{T2}
    v_and_b32 v{T3}, 2, v{T3}
    v_lshl_add_u32 v{KR}, v{T3}, 5, v{KR}
    v_and_b32 v{T3}, 1, v{T1}
    v_lshlrev_b32 v{T3}, 6, v{T3}
    v_xor_b32 v{QR}, v{QR}, v{T3}
    v_xor_b32 v{KR}, v{KR}, v{T3}
    s_lshl_b32 s{S_T0}, s{S_WAVE}, 9
    s_add_u32 s{S_T0}, s{S_T0}, {L_O}
    v_lshrrev_b32 v{T3}, 3, v{T2}
    v_lshlrev_b32 v{OW}, 8, v{T3}
    v_lshl_add_u32 v{OW}, v{T1}, 6, v{OW}
    v_bfe_u32 v{T3}, v{T2}, 2, 1
    v_lshl_add_u32 v{OW}, v{T3}, 5, v{OW}
    v_and_b32 v{T3}, 3, v{T2}
    v_lshl_add_u32 v{OW}, v{T3}, 2, v{OW}
    v_add_u32 v{OW}, s{S_T0}, v{OW}
    """)
    g(f"s_mov_b32 s{S_ONE}, 0x3f803f80\ns_mov_b32 s{S_ONE+1}, 0x3f803f80")
    for x in zero(PA, 4) + zero(VX, 16) + zero(ACC, 16): g(x)
    g(f"""
    v_lshrrev_b32 v{T3}, 3, v{T0}
    v_lshlrev_b32 v{GM}, 8, v{T3}
    v_and_b32 v{T3}, 7, v{T0}
    v_lshl_add_u32 v{GM}, v{T3}, 4, v{GM}
    """)
    if al: g(f"""
    v_and_b32 v{FAD}, 31, v0
    v_lshlrev_b32 v{FAD}, 2, v{FAD}
    v_min_u32 v{FST}, 1, v{T0}
    v_lshlrev_b32 v{FST}, 30, v{FST}
    """)


def kv_addr(w):
    return [f"s_add_u32 s{S_KV2}, s{S_KV}, {w*2048}", f"s_add_u32 s{S_VV}, s{S_KV}, {8192 + w*2048}"]


def k_loads():
    return [f"buffer_load_dwordx4 {v(KN+4*x,4)}, v{LM}, s[{S_WS}:{S_WS+3}], s{S_KV2} offen offset:{x*1024} ;@kv" for x in range(2)]


def v_loads():
    return [f"buffer_load_dwordx4 {v(VN+4*sg,4)}, v{LM}, s[{S_WS}:{S_WS+3}], s{S_VV} offen offset:{sg*1024} ;@kv" for sg in range(2)]


def mzero(base, n):
    op = {4: "4x4x1_16b", 16: "16x16x1_4b"}[n]
    return f"v_mfma_f32_{op}_f32 {v(base,n)}, v{PA+3}, v{PA+3}, 0"


def v_moves(src_):
    return [f"v_mov_b64 {v(VX+4*i,2)}, {v(src_+2*i,2)}" for i in range(4)]


def wait_flag(g, tag, seg_sgpr):
    g(f"""
    L_{tag}:
    buffer_load_dword v{FLG}, v{TCH}, s[{S_WS}:{S_WS+3}], s{S_FL} offen sc1
    s_add_u32 s{S_SPIN}, s{S_SPIN}, 1
    s_cmp_gt_u32 s{S_SPIN}, {SPIN_MAX}
    s_cbranch_scc1 L_{tag}_out
    s_waitcnt vmcnt(0)
    v_cmp_eq_u32 s[{S_RDY}:{S_RDY+1}], 1, v{FLG}
    s_nop 4
    s_bitcmp1_b64 s[{S_RDY}:{S_RDY+1}], s{seg_sgpr}
    s_cbranch_scc0 L_{tag}
    L_{tag}_out:
    s_waitcnt vmcnt(0)
    """)


def wave_loop(g, w, st, tag, opt):
    stamps = opt.get("stamps")
    WSD = f"s[{S_WS}:{S_WS+3}]"
    nst = [0]

    def stamp():
        if not stamps: return []
        i = nst[0]; nst[0] += 1
        if isinstance(stamps, list) and i not in stamps: return []
        if opt.get("rt") and w + 1 != opt["rt"]: return []
        return [f"s_mem{'real' if opt.get('rt') and not opt.get('cyc') else ''}time s[{74+2*i}:{75+2*i}]"]

    L = lambda x: f"L_{tag}{w}_{x}"
    T0 = 56
    KR_, OW_, SEL = (FAD, FST, KR) if w >= 2 else (KR, OW, None)
    kpos = lambda c: ((6, 4, 0, 2)[c >> 1] + (c & 1)) * 1024
    kxr = [f"ds_read_b128 {v(POOL+4*c,4)}, v{LM} offset:{kpos(c)}" for c in range(8)]
    if w == 0:
        g(f"v_lshlrev_b32 v{TCH}, 2, v0" + (f"\nv_mov_b32 v{FV}, 1" if opt.get("al") else ""))
    if w == 1 and opt.get("wb"):
        g(f"s_cmp_lt_u32 s{S_TK}, {opt['wb'][1]}\ns_cselect_b32 s{S_H1LD}, {opt['wb'][0]}, 64")
    if w >= 2:
        g(f"""
        v_and_b32 v{T0}, 15, v0
        v_and_b32 v{T0+1}, 1, v0
        v_mov_b32 v{KR_}, v{KR}
        v_mov_b32 v{OW_}, v{OW}
        v_lshlrev_b32 v{T0+1}, 4, v{T0+1}
        v_mov_b32 v{T0+2}, 0x3f80
        v_lshlrev_b32 v{T0+1}, v{T0+1}, v{T0+2}
        v_lshrrev_b32 v{T0}, 1, v{T0}
        """)
        for i in range(4):
            g(f"v_cmp_eq_u32 vcc, {(0, 2, 1, 3)[i]}, v{T0}\ns_nop 1\nv_cndmask_b32 v{SEL+i}, 0, v{T0+1}, vcc")
    for x in zero(ACC + 16, 8): g(x)
    kwr = [f"ds_write_b128 v{LM}, {v(KN+4*x,4)} offset:{kpos(2*w + x)} ;@kxw" for x in range(2)]
    nxt = [f"s_add_u32 s{S_KV}, s{S_KV}, {512*KB}"] + kv_addr(w)
    for x in ["s_waitcnt vmcnt(0)"] + kwr + v_moves(VN) + ["s_waitcnt lgkmcnt(0)", "s_barrier"] + kxr + stage_reads(G_R[(0, 1, 2, 2)[opt.get("r0", [0, 1, 0, 1])[w]]]) + nxt + ["s_waitcnt lgkmcnt(0)"]:
        g(x.split(";@")[0])
    if opt.get("until"):
        g(f"{L('until')}:\ns_memrealtime s[90:91]\ns_waitcnt lgkmcnt(0)\ns_sub_u32 s90, s90, s14\ns_cmp_lt_u32 s90, {opt['until']}\ns_cbranch_scc1 {L('until')}")
    if w == 0: dbg_time(g, opt, 4)
    if opt.get("count"):
        g("s_memtime s[92:93]\ns_memrealtime s[94:95]\ns_waitcnt lgkmcnt(0)\ns_mov_b32 s15, s94")
    body = []
    E = body.extend
    nops = lambda k: [f"s_nop {x}" for x in opt.get(k, [])]
    red = w >= 2
    MB_ = lambda t: L_O + (t - 4) * 1024
    mo = lambda t: (t & 1) * 2048 + ((t >> 1) & 1) * 128
    mld = lambda t: f"buffer_load_dwordx4 {v(M+4*t,4)}, v{GM}, {WSD}, s{S_H2LD if t < 4 else S_H2LD2} offen offset:{mo(t)} sc1"
    dma = f"buffer_load_dwordx4 v{GM}, {WSD}, s{S_H2LD2} offen offset:{mo(w)} sc1 lds ;@dma"
    SP, CK = M + 16 + 4 * w, PA + 2
    smp = mld(4 + w) + " ;@smp"
    R = A[5]
    pc = opt.get("pace", 15)
    pace = [f"s_nop {min(pc, 15)}"] + ([f"s_nop {pc - 16}"] if pc > 15 else [])
    cl = [mld(t) + f" ;@c{t}" for t in range(4)]
    r0 = opt.get("r0", [0, 1, 0, 1])[w]
    PRE = (0, 1, 2, 2)
    gap = lambda c: [f"s_nop {min(c, 15)}"] + ([f"s_nop {c - 16}"] if c > 15 else [])
    gather = [cl[r0]] + pace + [cl[(r0 + 1) & 3]] + gap(opt.get("pace2", pc)) + [cl[(r0 + 2) & 3]] + gap(opt.get("pace3", pc)) + [cl[(r0 + 3) & 3]]
    nt = opt.get("nt", "sc1")
    vl = v_loads()
    kvl = [x.replace(" ;@", f" {nt} ;@") for x in k_loads() + vl]
    cv = lambda d, q: f"v_cvt_pk_bf16_f32 v{d}, v{q}, v{q+1}"
    h1l = lambda HB: [f"buffer_load_dwordx4 {v(HB+4*t,4)}, v{LM}, {WSD}, s{S_H1LD} offen offset:{t*1024} sc1" for t in range(4)]
    two = opt.get("two", [1, 1])[w & 1]

    def reduce(HB, name, younger=None):
        out = [f"{L(name)}:"]
        for t in range(4):
            out += [f"s_waitcnt vmcnt({3 - t + (4*two if younger is None else younger)})", mf(R, SEL or 0, HB + 4*t, None if t == 0 else R)]
            out += [f"v_xor_b32 v{PA}, s{S_TAG}, v{HB}" if t == 0 else f"v_bitop3_b32 v{PA}, v{PA}, v{HB+4*t}, s{S_TAG} bitop3:0xf6",
                    f"v_bitop3_b32 v{PA}, v{PA}, v{HB+4*t+2}, s{S_TAG} bitop3:0xf6"]
        if opt.get("eb"):
            fold = [f"v_add_f32_dpp v{HB+r}, v{R+r}, v{R+r} row_ror:8 row_mask:0xf bank_mask:0xf" for r in range(4)] + [cv(HB + 4, HB), cv(HB + 5, HB + 2)]
            out = out[:-3] + out[-2:] + [f"v_and_b32 v{PA}, 1, v{PA}", out[-3]] if opt["eb"] == 2 else out + [f"v_and_b32 v{PA}, 1, v{PA}"]
            k_ = 0 if opt["eb"] == 2 else 3
            return out + ([f"v_cmp_eq_u32 vcc, 1, v{PA}", "s_nop 4" if opt["eb"] == 2 else "s_nop 2"] + fold[:k_] +
                          [f"s_cbranch_vccnz {L(name + 'no')}", f"{L(name + 'ok')}:"] + fold[k_:] + [h2st(HB)])
        if opt.get("cp"):
            fold = [f"v_add_f32_dpp v{HB+r}, v{R+r}, v{R+r} row_ror:8 row_mask:0xf bank_mask:0xf" for r in range(4)] + [cv(HB + 4, HB), cv(HB + 5, HB + 2)]
            k_ = 2 if w == 3 else 6
            return out + ([f"v_and_b32 v{PA}, 1, v{PA}", f"v_cmp_eq_u32 vcc, 1, v{PA}", "s_nop 2"] + fold[:k_] +
                          [f"s_cbranch_vccnz {L(name + 'no')}", f"{L(name + 'ok')}:", "s_barrier"] + fold[k_:] + [h2st(HB)])
        return out + ([f"v_and_b32 v{PA}, 1, v{PA}", f"v_cmp_eq_u32 vcc, 1, v{PA}", "s_nop 2"] +
                      [f"v_add_f32_dpp v{HB+r}, v{R+r}, v{R+r} row_ror:8 row_mask:0xf bank_mask:0xf" for r in range(4)] +
                      [cv(HB + 4, HB), cv(HB + 5, HB + 2), f"s_cbranch_vccnz {L(name + 'no')}", f"{L(name + 'ok')}:"] +
                      ([h2st(HB)] if not late_st else [] if HB != M else [h2st(HB), f"s_mov_b32 s{S_H2ST}, 0x40000000"]))
    clean = [f"v_mov_b64 {v(PA,2)}, s[{S_SENT}:{S_SENT+1}]", mzero(R, 4)]
    h2rs = f"buffer_store_dwordx2 {v(PA,2)}, v{H2ST}, {WSD}, s{S_H2RS} offen {st} ;@h2rs"
    E([f"{L('top')}:", "s_barrier"] + (stamp() if opt.get("rt") else []) + [f"{L('again')}:"])
    gather = [cl[r0], f"s_mov_b32 m0, {MB_(4 + w) - mo(w)}"] + gather[1:]
    dp = opt.get("dtop", 0)
    if dp:
        i = gather.index(cl[(r0 + dp - 1) & 3]) + (2 if dp == 1 else 1)
        gather[i:i] = nops("p5") + [dma]
    late_st = opt.get("ls", 0) and w == 3
    h2st = lambda HB: f"buffer_store_dwordx2 {v(HB+4,2)}, v{H2ST}, {WSD}, s{S_H2ST} offen {st}"
    if late_st:
        i = gather.index(pace[0])
        E(gather[:i] + nops("d6") + [h2st(M + 16), f"s_mov_b32 s{S_H2ST}, 0x40000000"] + clean + [f"s_nop {max(9 - sum(x + 1 for x in opt.get('d6', [])), 0)}"] + gather[i+1:])
        g(f"s_mov_b32 s{S_H2ST}, 0x40000000")
    elif red:
        i = gather.index(pace[0])
        E(gather[:i] + clean + [f"s_nop {max(min(pc, 15) - 3, 0)}"] + gather[i+1:])
    else:
        E(gather)
    pubv = f"buffer_store_dwordx4 {v(VN+4,4)}, v{LM}, {WSD}, s{S_PUB} offen {opt.get('pfl', 'sc1')}"
    dump = []
    DT = M + 18
    if stamps:
        dump.extend(["s_waitcnt lgkmcnt(0)"] + [f"v_writelane_b32 v{DT}, s{74+2*i}, {i}" for i in range(9)])
        dump.extend([f"v_subrev_u32 v{DT+1}, {LDS_MISC}, v{LM}", f"v_lshrrev_b32 v{DT+1}, 2, v{DT+1}",
           f"s_lshl_b32 s{S_T0}, s{S_TK}, 2", f"s_add_u32 s{S_T0}, s{S_T0}, {w}", f"s_lshl_b32 s{S_T0}, s{S_T0}, 6", f"s_add_u32 s{S_T0}, s{S_T0}, s{S_STEP}",
           f"s_lshl_b32 s{S_T0}, s{S_T0}, 6", f"s_add_u32 s{S_T0}, s{S_T0}, {WS_STAMP}", "s_mov_b64 exec, 0xffff",
           f"buffer_store_dword v{DT}, v{DT+1}, {WSD}, s{S_T0} offen", "s_mov_b64 exec, -1"])
    if red and opt.get('rt', w + 1) == w + 1: E(dump)
    top_part = list(body)
    c0stamp = stamp()
    order = [(m, sg, t) for t in range(4) for m in "qkv" for sg in range(2)]
    order += [(m, sg, t) for m in "qkv" for t in range(4, 8) for sg in range(2)]
    ch = opt.get("ch", 0)
    if ch:
        order = order[:24] + [("q", sg, t + u) for t in (4, 6) for sg in range(2) for u in range(2)] + [(m, sg, t) for m in "kv" for sg in range(2) for t in range(4, 8)]
    acc = lambda k: A["qkv".index(k[0]) * 2 + k[1]]
    mm = [smf(acc(k), M + 4 * k[2], k) for k in order]
    rs = [tagged(stage_reads(x), f"r{i}") for i, x in enumerate(G_R)]
    mr = [f"ds_read_b128 {v(M+4*t,4)}, v{LM} offset:{MB_(t) - LDS_MISC} ;@m{t}" for t in range(4, 8)]
    add = lambda q, b: f"v_add_f32 v{q+b}, v{q+b}, v{q+2+b}"
    qr = [f"ds_read_b128 {v(M+4*x,4)}, v{QR} offset:{1024*x} ;@qr{x}" for x in range(4)]
    kr = [f"ds_read_b128 {v(M+16+4*x,4)}, v{KR_} offset:{1024*x} ;@kr{x}" for x in range(4)]
    ost = stage_reads(G_O)
    qfin = [add(A[0], 0), add(A[0], 1), add(A[1], 0), add(A[1], 1),
            f"v_cvt_pk_bf16_f32 v{A[0]+2}, v{A[0]}, v{A[1]}", f"v_cvt_pk_bf16_f32 v{A[0]+3}, v{A[0]+1}, v{A[1]+1}",
            f"ds_write_b32 v{QW}, v{A[0]+2} ;@qw", f"ds_write_b32 v{QW}, v{A[0]+3} offset:16 ;@qw"]
    kfin = [add(A[2], 0), add(A[2], 1), add(A[3], 0), add(A[3], 1),
            f"v_cvt_pk_bf16_f32 v{A[3]}, v{A[2]}, v{A[3]}", f"v_cvt_pk_bf16_f32 v{A[3]+1}, v{A[2]+1}, v{A[3]+1}",
            f"ds_write_b32 v{QW}, v{A[3]} offset:512 ;@kw", f"ds_write_b32 v{QW}, v{A[3]+1} offset:528 ;@kw"]
    b0stamp = stamp()

    b0 = opt.get("b0", 18)
    cg = opt.get("cg", 17)

    nd = opt.get("nd", 0)
    pp = opt.get("pp", 0)
    pg2 = opt.get("pg2", [22, 24, 27, 29, 31, 34])
    PR2 = [FLG, TCH, H2ST, 0, FV, FST]

    def common():
        F = Gaps()
        if red: F.put("x", min(4 + w, opt.get("kb", 10) or 9), h2rs)
        if opt.get("kb", 10): F.put("x", opt.get("kb", 10), "s_barrier")
        po = opt.get("po", 0)
        seq = list(kvl)
        if not pp: seq.insert(po, pubv)
        free = [i for i in range(opt.get("k0", 11), 32) if i not in (cg, cg + 1, b0)]
        kgs = [free[min(opt.get("ks", 4) * j + w * opt.get("ks", 4) // 4, len(free) - 1 - (3 - w))] for j in range(5)]
        for j, x in enumerate(seq):
            if not ((x == pubv and opt.get("nopub")) or (x in kvl[:2] and opt.get("nok"))): F.put("x", kgs[j], x)
        if w == 0: F.put("d", 28, f"buffer_load_dword v{FLG}, v{TCH}, {WSD}, s{S_FL} offen sc1 ;@kv")
        if opt.get("al") == 2:
            if w == 0: F.put("x", opt.get("kb", 10), f"buffer_store_dword v{FV}, v{FST}, {WSD}, s{S_H1LD2} offen {st}")
            if w == 1:
                for j, i in enumerate(pg2): F.put("x" if i < 32 else "s", i, f"buffer_load_dword v{PR2[j]}, v{FAD}, {WSD}, s{S_FREE1} offen sc1 ;@p{j}")
        if opt.get("wb") and w == 1:
            F.put("s", 24, f"s_cmp_eq_u32 s{S_STEP}, s{S_H1LD}"); F.put("s", 26, f"s_cbranch_scc1 {L('wb')}", f"{L('wbok')}:")
        if not pp: F.put("s", 32 if ch else 34, f"s_mov_b32 s{S_PUB}, s{S_F12}"); F.put("s", 33 if ch else 35, f"s_add_u32 s{S_F12}, s{S_F12}, {128*KB}")
        F.put("s", b0, "@wait vm=dma" if w >= nd else "@wait vm=c4", "s_barrier", *b0stamp)
        if ch:
            assert b0 == 18 and not nd
            for i, x in zip((19, 20, 22, 23), mr): F.put("d", i, x)
            for r_, gs in ((3, (21, 24, 25, 26)), (4, (29, 30, 31, 32)), (5, (37, 38, 39, 42))):
                for j in range(4): F.put("d", gs[j], rs[r_][j])
            for i, t_ in ((23, "m4"), (24, "m5"), (27, "m7"), (28, "r3x"), (30, "r3"), (34, "r4x"), (38, "r4"), (42, "r5x"), (46, "r5"), (47, "qr1")):
                F.put("s", i, f"@wait lg={t_}")
            for j, i in enumerate((31, 32, 33, 33, 34, 35)): F.put("v", i, qfin[j])
            for j, i in enumerate((37, 38, 41, 42, 43, 44)): F.put("v", i, kfin[j])
            F.put("d", 35, qfin[6]); F.put("d", 36, qfin[7]); F.put("d", 44, kfin[6]); F.put("d", 45, kfin[7])
            F.put("v", 36, f"v_cmp_u_f32 vcc, v{A[0]}, v{A[0]+1}")
            F.put("s", 39, f"s_cbranch_vccnz {L('nan')}", f"{L('nanok')}:")
            F.put("s", 40, "@wait lg=qw" + (" vm=h2rs" if red else ""), "s_barrier")
            for j, i in enumerate((41, 43, 46, 47)): F.put("d", i, qr[j])
            F.put("v", 45, add(A[4], 0)); F.put("v", 46, add(A[4], 1)); F.put("v", 47, cv(VX + 2, A[4]))
            return F
        mg, r3g = {15: ((16, 17, 18, 19), (21, 22, 23, 24)), 16: ((17, 18, 19, 20), (21, 22, 23, 24)), 17: ((18, 19, 20, 22), (21, 23, 24, 25)), 18: ((19, 20, 22, 24), (21, 23, 25, 26)), 19: ((20, 21, 23, 25), (22, 24, 26, 27)), 20: ((21, 22, 24, 25), (23, 23, 26, 27))}.get(b0, (0, 0))
        if nd == 1: mg, r3g = {19: ((20, 22, 24), (21, 23, 25, 26)), 20: ((21, 23, 24), (22, 25, 26, 27)), 21: ((22, 23, 25), (20, 24, 26, 27))}[b0]
        if nd == 2: mg, r3g = {21: ((22, 24), (20, 23, 25, 26)), 22: ((23, 24), (20, 21, 25, 26)), 23: ((24, 25), (20, 21, 22, 26))}[b0]
        for j, i in enumerate(mg): F.put("d", i, mr[j + nd])
        for i, t in ((23, 4), (25, 5), (27, 6), (29, 7)):
            if t < 4 + nd: F.put("x" if i == b0 else "s", i, f"@wait vm=c{t}")
            elif nd and t == 7: F.put("s", i, "@wait lg=" + ("m7" if mg[-1] > r3g[1] else "r3x"))
            elif b0 >= 18 or t < 7: F.put("s", i, f"@wait lg=m{t}")
        for r_, gs, u in ((3, r3g, 30 if b0 >= 18 else 29), (4, (30, 31, 32, 33), 37), (5, (38, 39, 40, 42), 46)):
            for j in range(4): F.put("d", gs[j], rs[r_][j])
            F.put("s", u, f"@wait lg=r{r_}")
        for j, i in enumerate((32, 32, 33, 34, 35, 36)): F.put("v", i, qfin[j])
        for j, i in enumerate((40, 42, 43, 43, 44, 45)): F.put("v", i, kfin[j])
        F.put("d", 36, qfin[6]); F.put("d", 37, qfin[7])
        F.put("v", 37, f"v_cmp_u_f32 vcc, v{A[0]}, v{A[0]+1}")
        F.put("s", 40, f"s_cbranch_vccnz {L('nan')}", f"{L('nanok')}:")
        F.put("s", 41, "@wait lg=qw" + (" vm=h2rs" if red else ""), "s_barrier")
        F.put("s", 45, "@wait lg=r5x")
        for j, i in enumerate((43, 44, 47)): F.put("d", i, qr[j])
        F.put("d", 45, kfin[6]); F.put("d", 46, kfin[7])
        F.put("s", 47, "@wait lg=qr0")
        return F
    rs[5][1] += "x"
    rs[3][1] += "x"
    rs[4][1] += "x"

    pair = lambda m, t: [(m, 0, t), (m, 1, t)]
    HEAD = {0: ("q0 k0 v0 q1 k1 v1 q2 k2 v2 q3 k3 v3", ((1, (2, 3, 4, 5)), (2, (10, 11, 12, 13)))),
            1: ("q1 k1 v1 q2 k2 v2 k3 q3 v3 k0 q0 v0", ((2, (4, 5, 6, 7)), (0, (12, 13, 14, 15)))),
            2: ("q2 k2 v2 k3 q3 v3 k0 q0 v0 q1 v1 k1", ((0, (6, 7, 8, 9)), (1, (14, 15, 16, 17)))),
            3: ("q3 k3 v3 k0 v0 q0 q1 k1 v1 q2 k2 v2", ((0, (2, 3, 4, 5)), (1, (10, 11, 12, 13))))}
    cg = opt.get("cg", 17)

    if opt.get("hc"):
        HEAD[0] = ("q0 v0 k10 k00 k01 q1 k11 k12 v01 v02 v11 v12 q12 q13 k02 k03 v3 k13 q02 q03", ((1, (2, 3, 4, 5)), (2, (11, 12, 13, 14))))
    if opt.get("hc") == 2:
        HEAD[0] = ("q0 v0 k10 k00 k01 q1 k11 k12 v01 v02 v11 v12 q2 k02 k03 v3 k13 q13 q03", ((1, (2, 3, 4, 5)), (2, (11, 12, 13, 14))))
    if opt.get("hc") == 3:
        HEAD[0] = ("q0 v0 k10 k00 k01 q1 k11 v1 v12 v02 k12 q2 k02 k03 v3 k13 q13 q03", ((1, (2, 3, 4, 5)), (2, (10, 11, 12, 13))))
    fast1 = opt.get("fast1", 0)
    if fast1:
        assert r0 == 0 and dp == 4
        HEAD[1] = ("k1 q1 q2 k2 v1 v2 q3 k3 v3 k0 q0 v0", ((1, (1, 2, 3, 4)), (2, (8, 9, 10, 11)), (0, (14, 15, 16, 17))))

    def head(r, n=24):
        od = sum([pair(x[0], int(x[1])) if len(x) == 2 else [(x[0], int(x[1]), int(x[2]))] for x in HEAD[r][0].split()], []) + order[24:]
        F = common()
        f1_ = fast1 and r == 1
        if f1_: F.put("d", 0, dma); F.put("s", 1, cl[0])
        F.put("s", 1, f"s_cbranch_vccnz {L(f'no{r}')}", f"{L(f'go{r}')}:")
        if f1_:
            F.put("s", 1, mzero(A[0], 4), mzero(A[1], 4)); F.put("x", 1, "s_nop 0")
        elif nd:
            dg = opt.get("dg", 1)
            for j in range(nd): F.put("x", dg + 2 * j, mld(4 + j) + f" ;@c{4+j}")
            if w >= nd: F.put("x", dg + 1, dma)
        elif r != r0 or not opt.get("dtop"): F.put("x", opt.get("dg", 1), dma)
        seen = {r}
        c_ = cg
        for i, k in enumerate(od[:24]):
            wt = []
            if k[2] not in seen:
                seen.add(k[2])
                if i <= c_: wt.append(f"vm=c{k[2]}")
            for r_ in range(3):
                staged = r_ != PRE[r] or f1_
                if k == G_R[r_][0] and i: wt.append((f"lg=r{r_}x" if r != r0 else f"lg=r{r_}") if staged else "lg=0")
                if k == G_R[r_][1] and staged and r != r0: wt.append(f"lg=r{r_}")
            if wt and i - 1 == b0: F.t[b0]["s"][0] += " " + " ".join(wt)
            elif wt: F.put("s", i - 1, "@wait " + " ".join(wt))
        if [k[2] for k in od].index((r + 3) & 3) > c_: F.put("x" if c_ == b0 else "s", c_, f"@wait vm=c{(r+3)&3}")
        if not opt.get("kb", 10):
            F.put("v", c_, f"v_max3_u32 v{CK}, v{M+4*((r+1)&3)}, v{M+4*((r+2)&3)}, v{M+4*((r+3)&3)}")
            F.put("v", c_ + 1, f"v_cmp_eq_u32 vcc, s{S_SENT}, v{CK}")
            F.t.setdefault(c_ + 3, {"s": [], "d": [], "v": [], "x": []})["s"][:0] = [f"s_cbranch_vccnz {L(f'late{r}')}", f"{L(f'lok{r}')}:"]
        e1 = opt.get("e1", 7)
        if e1:
            F.put("v", e1, f"v_cmp_eq_u32 vcc, s{S_SENT}, v{M+4*((r+1)&3)}")
            F.put("s", e1 + 3, f"s_cbranch_vccnz {L(f'soon{r}')}", f"{L(f'sok{r}')}:")
        for r_, gs in HEAD[r][1]:
            for j in range(4): F.put("d", gs[j], rs[r_][j] + ("x" if j == 1 else ""))
        return ([f"{L(f'c{r}')}:", f"@wait vm=c{r}" + (" lg=0" if r == 0 else "")] + (c0stamp if r == r0 else []) +
                [f"v_cmp_eq_u32 vcc, s{S_SENT}, v{M+4*r}"] + F.emit([smf(acc(k), M + 4 * k[2], k) for k in od[:n]]))
    full = head(r0, 48)
    i = full.index(mm[24])
    E(full[:i] + [f"{L('j20')}:"] + full[i:])
    E(stamp())
    S0, S1, SM = A[0], A[1], A[2]
    sx = []
    for x in range(4):
        sx += [mf(S0, POOL + 4*x, M + 4*x, None if x == 0 else S0), mf(S1, POOL + 16 + 4*x, M + 4*x, None if x == 0 else S1)]
    sm = [mf(SM, M + 16 + 4*x, M + 4*x, None if x == 0 else SM) for x in range(4)]
    cv = lambda d, q: f"v_cvt_pk_bf16_f32 v{d}, v{q}, v{q+1}"
    cnd = lambda d, x, y: f"v_cndmask_b32 v{d}, v{x}, v{y}, s[{S_HF}:{S_HF+1}]"
    pub = f"buffer_store_dwordx4 {v(A[3],4)}, v{LM}, {WSD}, s{S_PUB} offen sc1"
    MX, MY = S1, S1 + 1
    z = zero(A[4], 8)
    if ch:
        sx = sx[0::2] + sx[1::2]
        E([sx[0], f"s_cmp_eq_u32 s{S_STEP}, {NSEG-1}", cv(A[3] + 2, A[4]),
           sx[1], "@wait lg=qr2", "s_barrier",
           sx[2], "@wait lg=qr3", kr[0], add(A[5], 0),
           sx[3], kr[1], add(A[5], 1),
           sx[4], kr[2], cv(VX + 10, A[5]),
           sx[5], kr[3], cv(A[3] + 3, A[5]),
           sx[6], f"v_permlane16_swap_b32 v{VX+2}, v{VX+6}",
           sx[7], "@wait lg=kr1", f"v_permlane16_swap_b32 v{VX+10}, v{VX+14}",
           sm[0], f"s_cbranch_scc1 {L('done')}", z[0], z[1],
           sm[1], "@wait lg=kr3", cnd(S0, S0, S1), cnd(S0 + 1, S0 + 1, S1 + 1),
           sm[2], cnd(S0 + 2, S0 + 2, S1 + 2), cnd(S0 + 3, S0 + 3, S1 + 3)])
    else:
      E([sx[0], f"s_cmp_eq_u32 s{S_STEP}, {NSEG-1}", qr[3],
       sx[1], "@wait lg=qr1", add(A[4], 0), add(A[4], 1),
       sx[2], "@wait lg=kw", "s_barrier",
       sx[3], "@wait lg=qr2", kr[0], add(A[5], 0),
       sx[4], kr[1], add(A[5], 1),
       sx[5], "@wait lg=qr3", kr[2], cv(VX + 2, A[4]),
       sx[6], kr[3], cv(VX + 10, A[5]),
       sx[7], "@wait lg=kr0", cv(A[3] + 2, A[4]), cv(A[3] + 3, A[5]),
       sm[0], "@wait lg=kr2", f"v_permlane16_swap_b32 v{VX+2}, v{VX+6}",
       sm[1], f"s_cbranch_scc1 {L('done')}", cnd(S0, S0, S1), cnd(S0 + 1, S0 + 1, S1 + 1),
       sm[2], "@wait lg=kr3", cnd(S0 + 2, S0 + 2, S1 + 2), cnd(S0 + 3, S0 + 3, S1 + 3)])
    E([sm[3], f"v_max3_f32 v{MX}, v{S0}, v{S0+1}, v{S0+2}", f"v_max_f32 v{MX}, v{MX}, v{S0+3}",
       *(z[2:] if ch else [f"v_permlane16_swap_b32 v{VX+10}, v{VX+14}"]),
       f"v_max_f32_dpp v{MX}, v{MX}, v{MX} quad_perm:[2,3,0,1] row_mask:0xf bank_mask:0xf",
       f"v_mov_b32 v{MY}, v{MX}",
       f"v_mov_b64 {v(POOL,2)}, s[{S_ONE}:{S_ONE+1}]",
       f"v_max3_f32 v{S1+2}, v{SM}, v{SM+1}, v{SM+2}",
       f"v_permlane16_swap_b32 v{MX}, v{MY}",
       f"v_max3_f32 v{MX}, v{MX}, v{MY}, v{SM+3}",
       f"v_max_f32 v{MY}, v{MX}, v{S1+2}",
       f"v_max_f32 v{MX}, v{MX}, v{S1+2}",
       cnd(SM, SM, SM + 1), f"v_mov_b64 {v(POOL+2,2)}, s[{S_ONE}:{S_ONE+1}]",
       f"v_permlane32_swap_b32 v{MX}, v{MY}",
       f"v_max_f32 v{MX}, v{MX}, v{MY}",
       f"v_mul_f32 v{MX}, s{S_SC}, v{MX}"])
    for r in (S0, S0 + 2):
        E([f"v_pk_fma_f32 {v(r,2)}, {v(r,2)}, s[{S_SC-1}:{S_SC}], {v(MX,2)} op_sel_hi:[1,1,0] neg_lo:[0,0,1] neg_hi:[0,0,1]"])
    E([f"v_fma_f32 v{SM}, v{SM}, s{S_SC}, -v{MX}"])
    E([f"v_exp_f32 v{S0}, v{S0}", f"v_exp_f32 v{S0+1}, v{S0+1}", f"v_exp_f32 v{S0+2}, v{S0+2}", cv(PA, S0),
       f"v_exp_f32 v{S0+3}, v{S0+3}", f"v_exp_f32 v{SM}, v{SM}", cv(PA + 2, S0 + 2),
       f"v_cvt_pk_bf16_f32 v{PA+1}, v{SM}, v{PA+3}"])
    E(stamp())
    LQ = A[1]
    ring = [f"s_and_b32 s{S_TAG}, s{S_STEP}, 1", f"s_add_u32 s{S_STEP}, s{S_STEP}, 1",
            f"s_lshl_b32 s{S_T0}, s{S_TAG}, 13", f"s_sub_u32 s{S_H2LD}, {WS_H2 + 8192}, s{S_T0}",
            f"s_add_u32 s{S_H2LD2}, s{S_H2LD}, 4096"]
    ring2 = nxt[:1] + [f"s_cmp_eq_u32 s{S_STEP}, {NSEG-1}", f"s_cselect_b32 s{S_KV}, 0x40000000, s{S_KV}"] + nxt[1:]
    if pp: ring2.append(f"s_add_u32 s{S_PUB}, s{S_PUB}, {128*KB}")
    if red:
        ring += [f"s_add_u32 s{S_H2RS}, s{S_T0}, {WS_H2}", f"s_xor_b32 s{S_H2ST}, s{S_H2RS}, 8192"]
    E([*(["s_nop 1"] if ch else z[:2]),
       mf(LQ, PA, POOL, None), *([] if ch else z[2:]),
       smf(A[4], PA, v(VX, 8), 1), ost[0],
       smf(A[5], PA, v(VX + 8, 8), 1), ost[1], add(LQ, 0),
       add(LQ, 1), f"v_rcp_f32 v{LQ}, v{LQ}", f"v_rcp_f32 v{LQ+1}, v{LQ+1}",
       f"v_pk_add_f32 {v(A[4],2)}, {v(A[4],2)}, {v(A[4]+2,2)}",
       f"v_pk_mul_f32 {v(A[4],2)}, {v(A[4],2)}, {v(LQ,2)}",
       f"v_pk_add_f32 {v(A[5],2)}, {v(A[5],2)}, {v(A[5]+2,2)}",
       f"v_pk_mul_f32 {v(A[5],2)}, {v(A[5],2)}, {v(LQ,2)}",
       f"v_cvt_pk_bf16_f32 v{A[4]+2}, v{A[4]}, v{A[5]}", f"v_cvt_pk_bf16_f32 v{A[4]+3}, v{A[4]+1}, v{A[5]+1}",
       mzero(M + 16, 4),
       f"ds_write2_b32 v{OW_}, v{A[4]+2}, v{A[4]+3} offset0:0 offset1:4", mzero(M, 16)] + ring +
      ["s_waitcnt lgkmcnt(0)", "s_barrier",
       f"ds_read_b128 {v(A[0],4)}, v{LM} offset:{L_O - LDS_MISC} ;@o0", mzero(M + 20, 4),
       f"ds_read_b128 {v(A[1],4)}, v{LM} offset:{L_O - LDS_MISC + 1024} ;@o1", mzero(M + 24, 4)] + [mzero(M + 28, 4)] + ost[2:2+opt.get("ow", 2)])
    E(stamp())
    if pp == 1: body.insert(body.index(mzero(M, 16)) + 1, pub.replace('sc1', opt.get('pfl', 'sc1')) + " ;@kv")
    if pp == 4: body.insert(body.index(mzero(M + 24, 4)) + 1, pub.replace('sc1', opt.get('pfl', 'sc1')) + " ;@kv")
    if pp == 5 or (pp == 6 and (w == 2 or (w == 3 and not opt.get("p6all")))): body.insert(body.index(ring[-1]) + 1, pub.replace('sc1', opt.get('pfl', 'sc1')) + " ;@kv")
    if pp == 7:
        n_ = opt["ppi"][w]
        for x in ring[n_:]: body.remove(x)
        i = body.index(mzero(M + 28, 4)) + 1
        body[i:i] = ring[n_:]
        i = body.index(mzero(M, 16)) + 1 + min(n_, len(ring))
        body[i:i] = ["s_nop 0"] * max(0, n_ - len(ring)) + [pub.replace('sc1', opt.get('pfl', 'sc1')) + " ;@kv"]
    if pp == 8:
        x = pub.replace('sc1', opt.get('pfl', 'sc1')) + " ;@kv"
        body.insert(body.index(ring[opt.get("ppi", 4)] if w in opt.get("p8", (0, 1)) else mzero(M + 24, 4)) + 1, x)
    if opt.get("nw") is not None:
        i = [j for j, x in enumerate(body) if x.startswith("ds_write2_b32")][0]
        j = body.index("s_waitcnt lgkmcnt(0)", i)
        moved = body[i + 2 + opt["nw"]:j]
        del body[i + 2 + opt["nw"]:j + 1]
        k_ = body.index(mzero(M + 28, 4)) + 1
        body[k_:k_] = moved
    pth = opt.get("pth")
    if pth:
        i = body.index(ring[-1]) + 1
        body[i:i+1] = [f"s_cmp_ge_u32 s{S_STEP}, {pth}", f"s_cbranch_scc1 {L('pnt')}", pub.replace("sc1", "") + " ;@kv", f"{L('pntok')}:"]
    if opt.get("z0") == 0:
        i = body.index(mzero(M + 16, 4)); body[i], body[i + 1] = body[i + 1], body[i]
    if opt.get("w1"):
        i = [j for j, x in enumerate(body) if x.startswith("ds_write2_b32")][0]
        body[i] = f"ds_write_b32 v{OW_}, v{A[4]+3} offset:16"
        j = body.index(f"v_cvt_pk_bf16_f32 v{A[4]+3}, v{A[4]+1}, v{A[5]+1}")
        body.insert(j + (opt["w1"] - 1), f"ds_write_b32 v{OW_}, v{A[4]+2}")
    if pp == 2: body.insert(body.index([sm[1], sm[2], sm[3], z[0]][w]) + (2 if w < 2 else 1), pub.replace('sc1', opt.get('pfl', 'sc1')))
    if pp == 3: body.insert(body.index([z[0], mf(LQ, PA, POOL, None), ost[0], ost[1]][w]) + 1, pub.replace('sc1', opt.get('pfl', 'sc1')))
    oo = [(0, 0), (1, 0), (0, 1), (1, 1)] + [(tau, tp) for tau in range(2, 8) for tp in range(2)]
    om = [smf(M + 4*tau, A[tp], ("o", tau, tp)) for tau, tp in oo]
    D0, D1 = A[2], A[4]
    pk = lambda d, ta, b: f"v_cvt_pk_bf16_f32 v{d}, v{M+4*ta+b}, v{M+4*ta+4+b}"
    ad = lambda ta: [add(M + 4*ta, 0), add(M + 4*ta, 1)]
    G = Gaps()
    G.put("s", 1, "@wait lg=o1")
    gs = {2: [0, 1, 2, 3, 4, 5, 6, 8, 9, 10], 1: [0, 1, 2, 3, 3, 4, 5, 6, 8, 9, 10], 0: [0, 1, 2, 2, 3, 3, 4, 5, 6, 8, 9, 10]}[opt.get("ow", 2)]
    for i, j in zip(gs, range(2 + opt.get("ow", 2), 14)): G.put("d", i, ost[j] + f" ;@w{j >> 1}")
    G.put("s", 8, "@wait lg=w2"); G.put("s", 11, "@wait lg=w4"); G.put("s", 13, "@wait lg=w5"); G.put("s", 14, "@wait lg=w6")
    al = opt.get("al", 0)
    poll1 = lambda d, tg_: f"buffer_load_dword v{d}, v{FAD}, {WSD}, s{S_FREE1} offen sc1 ;@{tg_}"
    PR = [FLG, TCH, PA, PA + 1, PA + 2]
    if al == 1 and w == 0:
        body.insert(body.index({-3: sm[0], -2: sm[3], -1: z[0], 0: ost[0], 1: ost[1], 2: mzero(M, 16)}[opt.get("f1", 1)]) + 1, f"buffer_store_dword v{FV}, v{FST}, {WSD}, s{S_H1LD2} offen {st}")
    if al == 2: PR = PR2[:len(pg2)]
    if al == 1 and w == 1:
        body.insert(body.index(ring[-1]) + 1, poll1(PR[0], "p0"))
        body.insert(body.index(mzero(M + 24, 4)) + 1, poll1(PR[1], "p1"))
        for j, i in enumerate(opt.get("pg1", [0, 2, 4])): G.put("x" if i < 4 else "s", i, poll1(PR[j + 2], f"p{j+2}"))
    tg = lambda d: f"v_bfi_b32 v{d}, 1, s{S_TAG}, v{d}"
    if opt.get('wob', 0):
        stq = lambda q, D: f"buffer_store_dwordx2 {v(D,2)}, v{H1ST}, {WSD}, s{S_H1ST2 if q >> 1 else S_H1ST} offen offset:{64 * (q & 1)} {st}"
        for h, D in enumerate((D0, D1)):
            t0, g0 = 4 * h, 8 * h
            if h == 0: G.put("v", 4, *ad(0))
            else: G.put("v", 11, ad(4)[0]); G.put("v", 12, ad(4)[1])
            G.put("v", g0 + 5, *ad(t0 + 1))
            G.put("v", g0 + 6, pk(D, t0, 0))
            x = M + 4 * (t0 + 3)
            G.put("v", g0 + 7, pk(D + 1, t0, 1), tg(D), stq(2 * h, D), *ad(t0 + 2), "s_nop 0", f"v_pk_add_f32 {v(x,2)}, {v(x,2)}, {v(x+2,2)}",
                  pk(D + 2, t0 + 2, 0), pk(D + 3, t0 + 2, 1), tg(D + 2), stq(2 * h + 1, D + 2))
    else:
        for q in range(4):
            D = (D0, D0 + 2, D1, D1 + 2)[q]
            e, o_ = ad(2 * q), ad(2 * q + 1)
            stq = f"buffer_store_dwordx2 {v(D,2)}, v{H1ST}, {WSD}, s{S_H1ST2 if q >> 1 else S_H1ST} offen offset:{64 * (q & 1)} {st}"
            rest = [o_[0], o_[1], pk(D, 2 * q, 0), pk(D + 1, 2 * q, 1), tg(D)]
            if q == 0:
                G.put("v", 4, *e)
            elif q < 3:
                G.put("v", 4 * q + 3, e[0]); G.put("v", 4 * q + 4, e[1])
            if q < 3:
                n1 = opt.get("wo1", 2)
                G.put("v", 4 * q + 5, *rest[:n1]); G.put("v", 4 * q + 6, *rest[n1:])
                G.put("d", 4 * q + 7, stq)
            else:
                G.put("v", 15, *(e + ["s_nop 3"] + rest + [stq]))
    E(["@wait lg=o0"] + G.emit(om))
    E(stamp())
    house = ring2 + rs[PRE[r0]] + [mzero(A[i], 4) for i in (0, 1, 2)]
    mv = v_moves(VN) + ([] if pp else [f"v_mov_b64 {v(VN+4,2)}, {v(A[3],2)}", f"v_mov_b64 {v(VN+6,2)}, {v(A[3]+2,2)}"]) + [mzero(A[3], 4), mzero(A[4], 4)]
    after = kxr + mv
    xo = opt.get("xo", 0)
    if al and w == 1:
        for j in range(len(PR)):
            E([f"@wait vm=p{j}" if al == 1 else f"@wait vm=p{len(PR)-1}" if j == 0 else "s_nop 0", f"v_cmp_gt_u32 vcc, s{S_STEP}, v{PR[j]}"] + (house[:5] if j == 0 else nops("d7")) +
              (["s_add_u32 s99, s99, 1"] if opt.get("count") else []) + [f"s_cbranch_vccz {L('al')}"])
        E(["s_nop 7", f"{L('al')}:", "s_barrier"])
    else:
        E(["@wait vm=kv"] + (kwr if xo and w == 2 else []) + ["s_barrier"])
    x2 = ["@wait lg=kxw", "s_barrier"]
    hs = house[5:] if al and w == 1 else house
    if pp == 6 and (w < 2 or opt.get("p6all")):
        if w < 2 or w == 3: kxr = [pub.replace('sc1', opt.get('pfl', 'sc1'))] + kxr if w == 3 else kxr
        if w < 2: hs = [pub.replace('sc1', opt.get('pfl', 'sc1'))] + hs
    if red:
        shots = h1l(M + 16) + (nops("d4") + h1l(M) if two else [])
        e2, e3 = opt.get("e2", 8), opt.get("e3", 8)
        if xo and w == 2:
            rest = hs + kxr + mv
            E(nops("d1") + stamp() + shots[:4] + x2 + shots[4:] + rest[:e2] + reduce(M + 16, "ra") + [f"{L('rdone')}:"] + stamp() + rest[e2:] +
              ["s_waitcnt lgkmcnt(0)"] + nops("d2"))
        elif xo:
            pre = kxr + mv
            E(kwr + hs + x2 + pre[:len(pre)-e3] + nops("d3") + stamp() + shots + pre[len(pre)-e3:] +
              reduce(M + 16, "ra") + [f"{L('rdone')}:"] + stamp() + ["s_waitcnt lgkmcnt(0)"] + nops("d5"))
        elif w == 2:
            rest = kxr + mv
            E(nops("d1") + stamp() + shots + kwr + hs + x2 + rest[:e2] + reduce(M + 16, "ra") + [f"{L('rdone')}:"] + stamp() + rest[e2:] +
              ["s_waitcnt lgkmcnt(0)"] + nops("d2"))
        else:
            pre = kwr + hs + mv
            E(pre[:len(pre)-e3] + nops("d3") + stamp() + shots + pre[len(pre)-e3:] + x2 + kxr[:opt.get("e4", 8)] +
              reduce(M + 16, "ra") + [f"{L('rdone')}:"] + stamp() + kxr[opt.get("e4", 8):] + ["s_waitcnt lgkmcnt(0)"] + nops("d5"))
    else:
        E(stamp() + (kwr + x2 + nops("d8") + hs + mv + kxr if xo else kwr + hs + mv + x2 + kxr) + stamp() + (dump if opt.get('rt', w + 1) == w + 1 else []))
    if w < 2:
        E([mzero(A[5], 4)])
    if w == 0:
        E([f"v_add_u32 v{FV}, 1, v{FV}"] * bool(al) + [f"v_cmp_eq_u32 s[{S_RDY}:{S_RDY+1}], 1, v{FLG}", f"s_add_u32 s{S_T2}, s{S_STEP}, 1", "s_nop 3",
           f"s_bitcmp1_b64 s[{S_RDY}:{S_RDY+1}], s{S_T2}", f"s_cbranch_scc0 {L('flag')}", f"{L('flagok')}:"])
    E(([] if red else ["s_waitcnt lgkmcnt(0)"] + ["s_barrier"] * opt.get("cp", 0)) + [f"s_branch {L('top')}"])
    if opt.get("free"):
        body = [x for x in body if not (x.startswith("s_cbranch_vccnz") or x.startswith("v_cmpx"))]
        body = [x.replace("s_cbranch_vccz " + L('al'), "s_branch " + L('al')) for x in body]
    if True:
        for pat in opt.get("drop", []):
            keep = lambda x: ("s_nop 0" if opt.get("keepslot") else None)
            tags = [x.split(";@")[1] for x in body if pat in x and ";@" in x]
            body = [x for x in body if pat not in x or x.endswith(":")]
            live = {x.split(";@")[1] for x in body if ";@" in x}
            nb = []
            for x in body:
                if x.startswith("@wait"):
                    t = [k for k in x.split()[1:] if k.split("=")[1] in live or k.split("=")[1] == "0"]
                    if t: nb.append("@wait " + " ".join(t))
                else: nb.append(x)
            body = nb
    body = resolve_waits(body)
    if opt.get("seg"):
        pos = [i for i, x in enumerate(body) if x.startswith(("v_mfma_f32_16x16x32", "v_smfmac"))]
        i0, i1 = opt["seg"]
        labels = [x for x in body if x.endswith(":")]
        cut = [x for x in body[pos[i0]:pos[i1]] if not x.endswith(":") and f"s{S_STEP}" not in x and "branch" not in x]
        body = labels + cut[:1] + [f"s_add_u32 s{S_STEP}, s{S_STEP}, 1", f"s_cmp_eq_u32 s{S_STEP}, 64", f"s_cbranch_scc1 {L('done')}"] + cut[1:] + [f"s_branch {L('top')}"]
    if opt.get("sw") and opt.get("rt") == w + 1:
        pos = [i for i, x in enumerate(body) if x.startswith(("v_mfma_f32_16x16x32", "v_smfmac"))]
        for k, o_ in reversed(list(enumerate(opt["sw"]))):
            if o_ < len(pos): body.insert(pos[o_] + 1, f"s_memtime s[{76+2*k}:{77+2*k}]")
    npad = [0]

    def pad(last=False):
        k = npad[0]; npad[0] += 1
        g(f"{L(f'pad{k}')}:\ns_branch " + (f"L_{tag}_warm1" if last else f"L_{tag}_warm0" if k == 3 else L(f"pad{k+1}")))
    if red and opt.get("rotl", 0) and not opt.get("seg"):
        i = body.index(f"{L('ra')}:")
        body = body[i:-1] + body[:i] + [f"s_branch {L('ra')}"]
    body, left = align_body(body)
    if opt.get("pre"):
        assert dp == 4 and not late_st
        for x in ["s_barrier", f"s_mov_b32 m0, {MB_(4 + w) - mo(w)}"] + (clean[:1] if red else ["s_nop 0"]) + [dma.split(";@")[0], f"s_branch {L(f'c{r0}')}"]: g(x)
    else:
        g(f"s_branch {L('top')}")
    pad()
    g(".p2align 5")
    for x in body: g(x)
    bad = hazard.check(body + body[:40], f"chain w{w}") if not (opt.get("drop") or opt.get("seg")) else []
    m1 = g.mark()
    strip = lambda lst: [x.split(";@")[0] for x in lst]
    cnt = lambda out: f"s_add_u32 s{S_SPIN}, s{S_SPIN}, 1\ns_cmp_gt_u32 s{S_SPIN}, {SPIN_MAX}\ns_cbranch_scc1 {out}"
    dbg = lambda k: (f"s_add_u32 s{96+k}, s{96+k}, 1" if opt.get("count") else "")
    anysent = [f"v_mov_b32 v{PA}, 0"] + [f"v_max3_u32 v{PA}, v{PA}, v{M+2*i}, v{M+2*i+1}" for i in range(16)] + [f"v_cmp_eq_u32 vcc, s{S_SENT}, v{PA}"]
    pad()
    if pth: g(f"{L('pnt')}:\n{pub.replace('sc1', 'nt')}\ns_branch {L('pntok')}")
    if red:
        if opt.get("eb"):
            rb = reduce(M, "rb", 4)
            k_ = 0
            for x in [f"{L('rano')}:", dbg(2)] + rb[:1]: g(x)
            for t in range(4):
                i = [j for j, x in enumerate(rb) if x.startswith("s_waitcnt")][t]
                rb[i] = f"s_waitcnt vmcnt(3)"
                j = [j for j, x in enumerate(rb) if x.startswith("v_mfma")][t]
                rb.insert(j + 1, h1l(M + 16)[t])
            for x in rb[1:] + [f"s_branch {L('rdone')}", f"{L('rbno')}:", dbg(3)] + cnt(L("rbok")).split("\n") + h1l(M): g(x)
        else:
            g(f"{L('rano')}:\n{dbg(2)}\n{cnt(L('raok'))}")
            for x in h1l(M + 16): g(x)
        if two and not opt.get("eb"):
            for x in reduce(M, "rb") + [f"s_branch {L('rdone')}", f"{L('rbno')}:", dbg(3)] + h1l(M): g(x)
        g(f"s_branch {L('ra')}")
    for r in range(4):
        if not opt.get("kb", 10): g(f"{L(f'late{r}')}:\n{cnt(L(f'lok{r}'))}\ns_branch {L('restart')}")
        if opt.get("e1", 7): g(f"{L(f'soon{r}')}:\n{cnt(L(f'sok{r}'))}\ns_branch {L('restart')}")
    used = opt.get("e1", 7) or not opt.get("kb", 10)
    if used: g(f"{L('restart')}:\n{dbg(1)}\ns_waitcnt lgkmcnt(0)")
    for x in [] if not used else strip(rs[PRE[r0]]) + [mzero(A[i], 4) for i in range(6)] + [f"s_branch {L('again')}"]: g(x)
    path = list(top_part)
    for j in range(4):
        r, nx = (r0 + j) & 3, (r0 + j + 1) & 3
        part = ([f"{L(f'no{r}')}:"] + ([dbg(0)] if opt.get("count") else []) + (cnt(L(f"go{r}")).split("\n") if j == 3 else []) + [cl[r], dma if j == dp - 1 else h2st(M + 16) if j == 0 and late_st else "s_nop 0"] +
                (rs[PRE[nx]] if PRE[nx] != PRE[r] else ["s_nop 3"]) + [mzero(A[0], 4), mzero(A[1], 4), "s_nop 0"])
        if fast1 and j == 0: part = part[:2 if opt.get("count") else 1]
        if fast1 and j == 1: part = part[:-1] + [mzero(A[2], 4), mzero(A[3], 4)]
        hd = head(nx) + [f"s_branch {L('j20')}"] if j < 3 else [f"s_branch {L(f'c{r0}')}"]
        res = resolve_waits(path + part + hd, loop=False)[len(path):]
        path = path + part + ([dma, cl[0]] if fast1 and j == 0 else [])
        bad += hazard.check((mm[2:4] if fast1 and j == 1 else mm[:2]) + ["s_branch x"] + res + (mm[24:28] if j < 3 else mm[:2]), f"chain head {r} w{w}")
        res, _ = align_body(res)
        pad()
        g(".p2align 5")
        for x in res: g(x)
    m1 = g.mark()
    g(f"{L('nan')}:\n" + ("s_add_u32 s97, s97, 0x10000" if opt.get("count") else ""))
    for x in anysent: g(x)
    g(f"s_cbranch_vccz {L('nanok')}\n{L('nanl')}:")
    for x in [mld(t) for t in range(8)] + ["s_waitcnt vmcnt(0)"] + anysent: g(x)
    g(f"s_cbranch_vccz {L('nanr')}\n{cnt(L('nanr'))}\ns_branch {L('nanl')}\n{L('nanr')}:\ns_waitcnt lgkmcnt(0)")
    for x in zero(ACC, 24): g(x)
    for i in range(40 if ch else 41):
        for r_ in range(5):
            if order[i] == G_R[r_][0]:
                for x in strip(rs[r_]) + ["s_waitcnt lgkmcnt(0)"]: g(x)
        g(mm[i])
    for x in strip(rs[5][:2] + qfin + (kfin[:2] if ch else [])) + ["s_waitcnt lgkmcnt(0)", f"s_branch {L('nanok')}"]: g(x)
    bad += hazard.check(g.lines[m1:], f"chain rare w{w}")
    if opt.get("wb") and w == 1:
        g(f"{L('wb')}:\nbuffer_wbl2 sc1\ns_branch {L('wbok')}")
    pad(True)
    if w == 0:
        g(f"{L('flag')}:")
        wait_flag(g, f"{tag}{w}_f1", S_T2)
        g(f"s_branch {L('flagok')}")
    g(f"{L('done')}:\n{pub}")
    if w == 0: dbg_time(g, opt, 5)
    if opt.get("cal") and w + 1 == opt.get("rt"):
        g(f"""
        s_mov_b32 s90, 0
        v_mov_b32 v60, 0
        {L('cal')}:
        s_memrealtime s[74:75]
        s_waitcnt lgkmcnt(0)
        s_add_u32 s78, s74, 8
        s_or_b32 s78, s78, 31
        {L('cal2')}:
        s_memrealtime s[74:75]
        s_memtime s[76:77]
        s_waitcnt lgkmcnt(0)
        s_cmp_le_u32 s74, s78
        s_cbranch_scc1 {L('cal2')}
        s_mov_b32 m0, s90
        v_writelane_b32 v60, s78, m0
        s_add_u32 m0, s90, 1
        v_writelane_b32 v60, s76, m0
        s_add_u32 s90, s90, 2
        s_cmp_lt_u32 s90, 64
        s_cbranch_scc1 {L('cal')}
        v_subrev_u32 v61, {LDS_MISC}, v{LM}
        v_lshrrev_b32 v61, 2, v61
        s_lshl_b32 s{S_T0}, s{S_TK}, 8
        s_add_u32 s{S_T0}, s{S_T0}, {100*MB}
        buffer_store_dword v60, v61, {WSD}, s{S_T0} offen
        """)
    if opt.get("count"):
        g(f"""
        s_memtime s[94:95]
        s_memrealtime s[74:75]
        s_waitcnt lgkmcnt(0)
        
        s_sub_u32 s94, s94, s92
        v_mov_b32 v40, s96
        v_mov_b32 v41, s97
        v_mov_b32 v42, s98
        v_mov_b32 v43, s94
        s_lshl_b32 s{S_T0}, s{S_TK}, 2
        s_add_u32 s{S_T0}, s{S_T0}, {w}
        s_lshl_b32 s{S_T0}, s{S_T0}, 12
        s_add_u32 s{S_T0}, s{S_T0}, {WS_STAMP}
        v_mov_b32 v44, 0
        v_mov_b32 v46, s99
        v_mov_b32 v47, s14
        v_mov_b32 v48, s15
        v_mov_b32 v49, s74
        buffer_store_dwordx4 v[40:43], v44, {WSD}, s{S_T0} offen
        v_mov_b32 v50, s2
        v_mov_b32 v52, s79
        v_mov_b32 v53, s80
        v_mov_b32 v54, s81
        v_mov_b32 v55, s82
        v_mov_b32 v56, s83
        v_mov_b32 v57, s84
        buffer_store_dwordx4 v[52:55], v44, {WSD}, s{S_T0} offen offset:36
        buffer_store_dwordx2 v[56:57], v44, {WSD}, s{S_T0} offen offset:52
        buffer_store_dword v50, v44, {WSD}, s{S_T0} offen offset:32
        buffer_store_dwordx4 v[46:49], v44, {WSD}, s{S_T0} offen offset:16
        """)
    if opt.get("pfl", "sc1") != "sc1" and w == 0:
        g(f"s_cmp_ge_u32 s{S_TK}, {opt.get('nwb', 1)}\ns_cbranch_scc1 {L('fin')}\n{'s_waitcnt vmcnt(0)' if opt.get('wbd') else ''}\nbuffer_wbl2 sc1\n{L('fin')}:")
    g("s_waitcnt vmcnt(0)\ns_endpgm")
    return bad


def chain_role(g, st, tag, opt):
    m0 = g.mark()
    if opt.get("count"):
        g("s_mov_b32 s96, 0\ns_mov_b32 s97, 0\ns_mov_b32 s98, 0\ns_mov_b32 s99, 0")
    g(f"s_cmp_lg_u32 s{S_WAVE}, 0\ns_cbranch_scc1 L_dt" if opt.get("dbgt") else "")
    if opt.get("dbgt"):
        g(f"s_not_b32 s88, s14\nv_mov_b32 v90, 12\nv_mov_b32 v91, s88\ns_mov_b64 exec, 1\nglobal_atomic_umax v90, v91, s[{P_DBG}:{P_DBG+1}]\ns_mov_b64 exec, -1\nL_dt:")
    late_setup = opt.get("les", 0)
    if not late_setup: setup_early(g, st, opt.get('al', 0), opt.get('pp', 0))
    arrive = lambda off=DBG_TEAM: g(f"""
    s_cmp_lg_u32 s{S_WAVE}, 0
    s_cbranch_scc1 L_{tag}_arrived{off}
    v_mov_b32 v56, {off}
    v_mov_b32 v57, 1
    s_mov_b64 exec, 1
    global_atomic_add v56, v57, s[{P_DBG}:{P_DBG+1}]
    s_mov_b64 exec, -1
    L_{tag}_arrived{off}:
    """)
    def code_touch():
        g(f"""
        s_getpc_b64 s[{S_RDY}:{S_RDY+1}]
        L_{tag}_pc:
        s_add_u32 s{S_RDY}, s{S_RDY}, L_{tag}_w0-L_{tag}_pc
        s_addc_u32 s{S_RDY+1}, s{S_RDY+1}, 0
        v_lshlrev_b32 v56, 7, v0
        v_min_u32 v56, L_{tag}_end-L_{tag}_w0-4, v56
        global_load_dword v57, v56, s[{S_RDY}:{S_RDY+1}]
        """)

    def warm(k):
        for w in range(3):
            g(f"s_cmp_eq_u32 s{S_WAVE}, {w}\ns_cbranch_scc1 L_{tag}{w}_pad{4*k}")
        g(f"s_branch L_{tag}3_pad{4*k}\nL_{tag}_warm{k}:")

    assert DBG_INIT == DBG_TEAM + 4
    ask = f"global_load_dwordx2 v[60:61], v62, s[{P_DBG}:{P_DBG+1}] sc1"

    flg = f"buffer_load_dword v63, v62, s[{S_WS}:{S_WS+3}], s{S_FL} offen sc1"

    def counters():
        g(f"""
        L_{tag}_cnt:
        v_cmp_gt_u32 vcc, 32, v60
        v_cmp_gt_u32 s[{S_RDY}:{S_RDY+1}], s{S_T2}, v61
        s_add_u32 s{S_SPIN}, s{S_SPIN}, 1
        s_cmp_gt_u32 s{S_SPIN}, {SPIN_MAX}
        s_cbranch_scc1 L_{tag}_cntok
        s_or_b64 vcc, vcc, s[{S_RDY}:{S_RDY+1}]
        s_cbranch_scc0 L_{tag}_cntok
        {ask}
        s_waitcnt vmcnt(0)
        s_branch L_{tag}_cnt
        L_{tag}_cntok:
        v_and_b32 v62, 1, v0
        v_lshlrev_b32 v62, 2, v62
        s_mov_b32 s{S_TAG}, 0
        {flg}
        """)

    def kv_issue():
        g(f"s_lshl_b32 s{S_T0}, s{S_WAVE}, 11\ns_add_u32 s{S_T0}, s{S_T0}, s{S_KV}\ns_add_u32 s{S_T1}, s{S_T0}, 8192")
        for x in range(2):
            g(f"buffer_load_dwordx4 {v(KN+4*x,4)}, v{LM}, s[{S_WS}:{S_WS+3}], s{S_T0} offen offset:{x*1024} sc1")
            g(f"buffer_load_dwordx4 {v(VN+4*x,4)}, v{LM}, s[{S_WS}:{S_WS+3}], s{S_T1} offen offset:{x*1024} sc1")

    def try_kv():
        g(f"v_cmp_ne_u32 vcc, 1, v63\ns_cbranch_vccnz L_{tag}_notyet\ns_mov_b32 s{S_TAG}, 1")
        kv_issue()
        g(f"L_{tag}_notyet:")

    def first_kv():
        if opt.get("count"): g("s_memrealtime s[90:91]\ns_waitcnt lgkmcnt(0)\ns_mov_b32 s2, s90")
        g(f"""
        s_cmp_eq_u32 s{S_TAG}, 1
        s_cbranch_scc1 L_{tag}_kvok
        L_{tag}_fl:
        v_cmp_ne_u32 vcc, 1, v63
        s_add_u32 s{S_SPIN}, s{S_SPIN}, 1
        s_cmp_gt_u32 s{S_SPIN}, {SPIN_MAX}
        s_cbranch_scc1 L_{tag}_flok
        s_cbranch_vccz L_{tag}_flok
        {flg}
        s_waitcnt vmcnt(0)
        s_branch L_{tag}_fl
        L_{tag}_flok:
        """)
        kv_issue()
        g(f"L_{tag}_kvok:")
        for t in range(4 if opt.get("pre") else 0):
            g(f"buffer_load_dwordx4 {v(M+4*t,4)}, v{GM}, s[{S_WS}:{S_WS+3}], s{S_H2LD} offen offset:{(t & 1) * 2048 + (t >> 1) * 128} sc1")
    hooks = {0: lambda: store_mem0(g, st), 2: code_touch, 5: arrive, 8: lambda: warm(0), 10: lambda: warm(1),
             19: lambda: g(f"v_mov_b32 v62, {DBG_TEAM}\ns_mov_b32 s{S_T2}, {0 if opt.get('chainonly') else 224}\n{ask}"),
             22: lambda: g(f"v_lshlrev_b32 v56, 6, v0\nbuffer_load_dword v57, v56, s[{S_WS}:{S_WS+3}], s{S_H2LD} offen sc1"),
             25: counters, 29: try_kv, 30: lambda: (g(flg), setup_late(g, opt.get('al', 0))), 31: first_kv}
    if late_setup:
        hooks.update({-1: lambda: (setup_early(g, st, opt.get('al', 0), opt.get('pp', 0)), set_srd(g, P_WO, 4 * MB)), 0: lambda: None, 3: hooks[0], 5: lambda: None, 7: hooks[5]})
    if opt.get("lst"):
        for j, i in enumerate(opt["lst"]):
            hooks[i] = lambda j=j, h=hooks.get(i): (g(f"s_memrealtime s[90:91]\ns_waitcnt lgkmcnt(0)\ns_mov_b32 s{80+j}, s90"), h and h())
        g("s_memrealtime s[90:91]\ns_waitcnt lgkmcnt(0)\ns_mov_b32 s79, s90")
    load_weights(g, hooks, opt.get("wnt", ""), opt.get("word", "oqkv"), opt.get("ahead", 0), opt.get("tfl", ""), opt.get("depth", 3))
    bad = hazard.check(g.lines[m0:], "chain prologue")
    for w in range(1, 4):
        g(f"s_cmp_eq_u32 s{S_WAVE}, {w}\ns_cbranch_scc1 L_{tag}_w{w}")
    for w in range(4):
        g(f"L_{tag}_w{w}:")
        bad += wave_loop(g, w, st, tag, opt)
    g(f"L_{tag}_end:")
    return bad
```

```python
from asmlib import *
from layout import *
from chain import (S_WS, S_W, P_X, P_WQ, P_WK, P_WV, P_WO, P_WG, P_WU, P_WD, P_OUT, P_DBG, S_XCC, S_TK, S_WAVE,
                   S_T0, S_T1, S_T2, S_T3, SPIN_MAX, set_srd, S_SPIN, S_SENT, dbg_time)

WSD = f"s[{S_WS}:{S_WS+3}]"
WD = f"s[{S_W}:{S_W+3}]"
S_WI, S_COL, S_SEG, S_HD, S_NXT, S_XO, S_O1, S_O2, S_FA, S_PREV, S_LB, S_C0, S_C1, S_C2 = range(51, 65)
S_R, S_IT, S_O3 = 65, 66, 67
S_OUT = 68
S_MK = 72
RING = 65536
NROWG, NFFG, NTEAM = 5, 3, 6


def rg(f, b, n):
    return a(b, n) if f == "a" else v(b, n)


def mf32(d, x, y, first):
    return f"v_mfma_f32_32x32x16_bf16 {v(d,16)}, {x}, {y}, " + ("0" if first else v(d, 16))


def mf16(d, x, y, first):
    return f"v_mfma_f32_16x16x32_bf16 {v(d,4)}, {x}, {y}, " + ("0" if first else v(d, 4))


def spin_counter(g, tag, off, target, sleep=8):
    g(f"""
    s_cmp_lg_u32 s{S_WAVE}, 0
    s_cbranch_scc1 L_{tag}_out
    v_mov_b32 v10, {off}
    L_{tag}:
    global_load_dword v11, v10, s[{P_DBG}:{P_DBG+1}] sc1
    s_add_u32 s{S_SPIN}, s{S_SPIN}, 1
    s_cmp_gt_u32 s{S_SPIN}, {SPIN_MAX}
    s_waitcnt vmcnt(0)
    s_cbranch_scc1 L_{tag}_out
    v_cmp_gt_u32 vcc, {target}, v11
    s_cbranch_vccz L_{tag}_out
    s_sleep {sleep}
    s_branch L_{tag}
    L_{tag}_out:
    s_barrier
    """)


def spin_flags(g, tag, vaddr, soff, sleep=1):
    g(f"""
    L_{tag}:
    buffer_load_dword v11, v{vaddr}, {WSD}, s{soff} offen sc1
    s_add_u32 s{S_SPIN}, s{S_SPIN}, 1
    s_cmp_gt_u32 s{S_SPIN}, {SPIN_MAX}
    s_cbranch_scc1 L_{tag}_out
    s_waitcnt vmcnt(0)
    v_cmp_ne_u32 vcc, 1, v11
    s_cbranch_vccz L_{tag}_out
    {f's_sleep {sleep}' if sleep else ''}
    s_branch L_{tag}
    L_{tag}_out:
    s_waitcnt vmcnt(0)
    """)


def count_up(g, tag, off, wait=True, by=1):
    if wait: g("s_waitcnt vmcnt(0)\ns_barrier")
    g(f"""
    s_cmp_lg_u32 s{S_WAVE}, 0
    s_cbranch_scc1 L_{tag}
    v_mov_b32 v10, {off}
    v_mov_b32 v11, {by}
    s_mov_b64 exec, 1
    global_atomic_add v10, v11, s[{P_DBG}:{P_DBG+1}]
    s_mov_b64 exec, -1
    L_{tag}:
    """)


def set_flag(g, tag, soff, st="sc1"):
    g(f"""
    s_cmp_lg_u32 s{S_WAVE}, 0
    s_cbranch_scc1 L_{tag}
    v_mov_b32 v10, 0
    v_mov_b32 v11, 1
    s_mov_b64 exec, 1
    buffer_store_dword v11, v10, {WSD}, s{soff} offen {st}
    s_mov_b64 exec, -1
    L_{tag}:
    """)


def wstamp(g, opt, i, dump=False):
    if not opt.get("count"): return
    g(f"s_waitcnt vmcnt(0)" if dump else "")
    g(f"s_memrealtime s[88:89]\ns_waitcnt lgkmcnt(0)\ns_mov_b32 s{90+i}, s88")
    if dump:
        for k in range(5): g(f"v_mov_b32 v{21+k}, s{90+k}")
        g(f"""
        v_mov_b32 v20, s14
        s_lshl_b32 s{S_T0}, s{S_WI}, 5
        s_add_u32 s{S_T0}, s{S_T0}, {WS_STAMP - 8192}
        v_mov_b32 v10, 0
        buffer_store_dwordx4 v[20:23], v10, {WSD}, s{S_T0} offen
        buffer_store_dwordx2 v[24:25], v10, {WSD}, s{S_T0} offen offset:16
        """)


def pstamp(g, opt, i):
    if opt.get("tst") and 4 <= i <= 7:
        g(f"s_memrealtime s[88:89]\ns_waitcnt lgkmcnt(0)\ns_mov_b32 s{86+i}, s88")
    if not opt.get("pst"): return
    g(f"""
    s_memrealtime s[88:89]
    s_lshl_b32 s96, s{S_XCC}, 5
    s_add_u32 s96, s96, s{S_TK}
    s_sub_u32 s96, s96, 32
    s_lshl_b32 s96, s96, 6
    s_add_u32 s96, s96, s{S_SEG}
    s_lshl_b32 s96, s96, 6
    s_add_u32 s96, s96, {96*MB + 4*i}
    s_waitcnt lgkmcnt(0)
    v_mov_b32 v18, s88
    v_mov_b32 v19, 0
    s_mov_b64 exec, 1
    buffer_store_dword v18, v19, {WSD}, s96 offen
    s_mov_b64 exec, -1
    s_waitcnt vmcnt(0)
    """)


def worker_init(g):
    g(f"""
    s_add_u32 s{S_WI}, s{S_TK}, 192
    s_cmp_eq_u32 s{S_XCC}, 1
    s_cbranch_scc1 L_wi
    s_sub_u32 s{S_T0}, s{S_XCC}, 2
    s_min_u32 s{S_T1}, s{S_T0}, 2
    s_mul_i32 s{S_T1}, s{S_T1}, 5
    s_mul_i32 s{S_T2}, s{S_T0}, 25
    s_add_u32 s{S_T2}, s{S_T2}, s{S_T1}
    s_cmp_lt_u32 s{S_T0}, 2
    s_cselect_b32 s{S_T3}, 30, 25
    s_add_u32 s{S_WI}, s{S_T2}, s{S_TK}
    s_cmp_lt_u32 s{S_TK}, s{S_T3}
    s_cbranch_scc1 L_wi
    s_lshl_b32 s{S_WI}, s{S_T0}, 5
    s_sub_u32 s{S_WI}, s{S_WI}, s{S_T2}
    s_add_u32 s{S_WI}, s{S_WI}, s{S_TK}
    s_sub_u32 s{S_WI}, s{S_WI}, s{S_T3}
    s_add_u32 s{S_WI}, s{S_WI}, 160
    L_wi:
    """)


def worker_fill(g):
    g(f"""
    s_sub_u32 s{S_T0}, s{S_XCC}, 2
    s_cselect_b32 s{S_T0}, 64, s{S_T0}
    """)
    g(f"""
    v_mov_b32 v11, 0
    v_mul_u32_u24 v10, {NTEAM}, v0
    v_add_u32 v10, s{S_T0}, v10
    v_cmp_gt_u32 vcc, 64, v10
    v_lshlrev_b32 v10, 7, v10
    s_lshl_b32 s{S_T1}, s{S_TK}, 2
    s_add_u32 s{S_T1}, s{S_T1}, {WS_OF}
    v_mov_b32 v12, 0x40000000
    v_cndmask_b32 v10, v12, v10, vcc
    buffer_store_dword v11, v10, {WSD}, s{S_T1} offen sc1
    """)


def clear_flags(g, shift):
    g(f"""
    v_mov_b32 v11, 0
    v_mul_u32_u24 v10, {NROWG}, v0
    v_add_u32 v10, s{S_SEG}, v10
    v_cmp_gt_u32 vcc, 64, v10
    v_lshlrev_b32 v10, {shift}, v10
    v_mov_b32 v12, 0x40000000
    v_cndmask_b32 v10, v12, v10, vcc
    buffer_store_dword v11, v10, {WSD}, s{S_FA} offen sc1
    """)


def layernorm(g, seg, extra=None, seg2=None):
    X, T = 16, 80
    set_srd(g, P_X, 2 * MB)
    g(f"""
    v_lshrrev_b32 v1, 3, v0
    v_and_b32 v2, 7, v0
    v_lshlrev_b32 v3, 10, v1
    v_lshl_add_u32 v3, v2, 4, v3
    s_lshl_b32 s{S_T0}, s{seg}, 15
    """)
    for j in range(8):
        g(f"buffer_load_dwordx4 {v(T+4*j,4)}, v3, {WD}, s{S_T0} offen offset:{128*j}")
    if extra: extra[0]()
    if seg2:
        g(f"s_lshl_b32 s{S_T2}, s{seg2}, 15")
        for j in range(8): g(f"buffer_load_dwordx4 {v(128+4*j,4)}, v3, {WD}, s{S_T2} offen offset:{128*j}")
    g(f"""
    v_lshrrev_b32 v4, 1, v2
    v_lshlrev_b32 v4, 10, v4
    v_and_b32 v5, 1, v2
    v_lshl_add_u32 v4, v5, 9, v4
    v_lshl_add_u32 v4, v1, 4, v4
    s_add_u32 s{S_T0}, s{S_T0}, {WS_XN}
    s_mov_b32 s{S_T1}, 0xffff0000
    s_waitcnt vmcnt({extra[1] if extra else 8 if seg2 else 0})
    """)
    def rows(T):
        for i in range(32):
            g(f"v_lshlrev_b32 v{X+2*i}, 16, v{T+i}\nv_and_b32 v{X+2*i+1}, s{S_T1}, v{T+i}")

        def reduce8(r):
            for m in ("quad_perm:[1,0,3,2]", "quad_perm:[2,3,0,1]", "row_half_mirror"):
                g(f"s_nop 1\nv_add_f32_dpp v{r}, v{r}, v{r} {m} row_mask:0xf bank_mask:0xf")

        g(f"v_pk_add_f32 v[6:7], {v(X,2)}, {v(X+2,2)}")
        for i in range(2, 32):
            g(f"v_pk_add_f32 v[6:7], v[6:7], {v(X+2*i,2)}")
        g("v_add_f32 v6, v6, v7")
        reduce8(6)
        g(f"v_mul_f32 v6, 0x3b000000, v6\nv_mov_b32 v8, 0\nv_mov_b32 v9, 0")
        for i in range(64):
            g(f"v_sub_f32 v7, v{X+i}, v6\nv_fmac_f32 v{8+(i&1)}, v7, v7")
        g("v_add_f32 v8, v8, v9")
        reduce8(8)
        g(f"""
        v_mul_f32 v8, 0x3b000000, v8
        v_cvt_pk_bf16_f32 v6, v6, v8
        v_and_b32 v8, s{S_T1}, v6
        v_lshlrev_b32 v6, 16, v6
        v_add_f32 v8, 0x3727c5ac, v8
        v_cvt_pk_bf16_f32 v8, v8, v8
        v_and_b32 v8, s{S_T1}, v8
        v_sqrt_f32 v8, v8
        s_nop 0
        v_cvt_pk_bf16_f32 v8, v8, v8
        v_and_b32 v8, s{S_T1}, v8
        v_rcp_f32 v8, v8
        """)
        for i in range(32):
            p = X + 2 * i
            g(f"""
            v_sub_f32 v{p}, v{p}, v6
            v_sub_f32 v{p+1}, v{p+1}, v6
            v_cvt_pk_bf16_f32 v{p}, v{p}, v{p+1}
            v_and_b32 v{p+1}, s{S_T1}, v{p}
            v_lshlrev_b32 v{p}, 16, v{p}
            v_mul_f32 v{p}, v{p}, v8
            v_mul_f32 v{p+1}, v{p+1}, v8
            v_cvt_pk_bf16_f32 v{T+i}, v{p}, v{p+1}
            """)
            if i % 4 == 3:
                g(f"buffer_store_dwordx4 {v(T+i-3,4)}, v4, {WSD}, s{S_T0} offen sc1\ns_add_u32 s{S_T0}, s{S_T0}, 4096")
    rows(T)
    if seg2:
        g(f"s_add_u32 s{S_T0}, s{S_T2}, {WS_XN}\ns_waitcnt vmcnt(8)")
        rows(128)


def load_w32(g, mats, stride, touch, hooks={}, late={}, strict={}):
    DM, RT, RN = 13, 14, 15
    g(f"""
    v_and_b32 v4, 63, v0
    v_lshrrev_b32 v5, 4, v4
    v_and_b32 v6, 15, v4
    v_lshlrev_b32 v7, 2, v5
    v_xor_b32 v6, v6, v7
    v_lshlrev_b32 v{DM}, 4, v6
    s_lshl_b32 s{S_T0}, s{S_WAVE}, 4
    v_add_u32 v6, s{S_T0}, v5
    v_mul_u32_u24 v6, {stride}, v6
    v_add3_u32 v{DM}, v{DM}, v6, s{S_COL}
    v_bfe_u32 v6, v4, 2, 2
    v_xor_b32 v7, s{S_WAVE}, v6
    v_lshlrev_b32 v7, 6, v7
    v_lshl_add_u32 v7, v6, 8, v7
    v_lshrrev_b32 v6, 5, v4
    v_lshl_add_u32 v7, v6, 11, v7
    v_add_u32 v7, {RING}, v7
    v_and_b32 v5, 1, v5
    v_and_b32 v6, 3, v4
    v_lshl_add_u32 v{RN}, v5, 5, v7
    v_lshl_add_u32 v{RN}, v6, 3, v{RN}
    v_lshl_add_u32 v{RT}, v5, 4, v7
    v_and_b32 v6, 1, v4
    v_lshl_add_u32 v{RT}, v6, 3, v{RT}
    v_bfe_u32 v6, v4, 1, 1
    v_lshl_add_u32 v{RT}, v6, 5, v{RT}
    s_lshl_b32 s{S_T3}, s{S_WAVE}, 12
    s_add_u32 s{S_T3}, s{S_T3}, {RING}
    """)
    if touch is not None:
        g(f"""
        s_mul_i32 s{S_T1}, s{S_SEG}, 104
        s_mul_i32 s{S_T2}, s{S_WAVE}, 26
        s_add_u32 s{S_T1}, s{S_T1}, s{S_T2}
        v_lshrrev_b32 v5, 1, v4
        v_min_u32 v5, 25, v5
        v_add_u32 v5, s{S_T1}, v5
        v_mul_u32_u24 v5, {stride}, v5
        v_and_b32 v6, 1, v4
        v_lshl_add_u32 v5, v6, 7, v5
        """)
        for m in mats:
            set_srd(g, m[0], m[1])
            g(f"buffer_load_dword v127, v5, {WD}, s{S_COL} offen {touch}")
    stages = [(m, S) for m in mats for S in range(8)]

    def issue(i):
        m, S = stages[i]
        if S == 0: set_srd(g, m[0], m[1])
        for x in range(4):
            g(f"s_add_u32 m0, s{S_T3}, {(i % 4) * 16384 + x * 1024}\ns_mov_b32 s{S_T0}, {(64 * S + 4 * x) * stride}")
            g(f"buffer_load_dwordx4 v{DM}, {WD}, s{S_T0} offen lds")

    for i in range(3): issue(i)
    for i, (m, S) in enumerate(stages):
        g(f"s_waitcnt vmcnt({strict.get(i, 4 * min(2, len(stages) - 1 - i))}) lgkmcnt(0)\ns_barrier")
        if i in hooks: hooks[i]()
        if i + 3 < len(stages): issue(i + 3)
        if i in late: late[i]()
        for ks in range(4):
            for x in range(2):
                g(f"ds_read_b64_tr_b16 {rg(m[2], m[3] + 4*(4*S+ks) + 2*x, 2)}, v{RT if m[4] else RN} offset:{(i % 4)*16384 + ks*4096 + x*1024}")
    g("s_waitcnt lgkmcnt(0)")


def xn_dma():
    out = [[f"s_lshl_b32 s{S_T2}, s{S_NXT}, 15", f"s_add_u32 s{S_T2}, s{S_T2}, s{S_XO}"]]
    for hh in range(2):
        out[-1] += [f"s_add_u32 m0, s{S_LB}, {hh*4096}", f"s_add_u32 s{S_T1}, s{S_T2}, {hh*4096}"]
        for x in range(4):
            out[-1] += [f"buffer_load_dwordx4 v1, {WSD}, s{S_T1} offen offset:{x*1024} sc1 lds"]
            out.append([])
    out[-1] += [f"s_xor_b32 s{S_LB}, s{S_LB}, 32768"]
    return out


XF, ACC = 16, 32


def gemm_setup(g):
    g(f"""
    v_and_b32 v4, 63, v0
    v_lshlrev_b32 v1, 4, v4
    v_mov_b32 v2, v1
    s_lshl_b32 s{S_LB}, s{S_WAVE}, 13
    s_add_u32 s{S_XO}, s{S_LB}, {WS_XN}
    s_mov_b32 s{S_PREV}, -1
    s_mov_b32 s{S_NXT}, s{S_SEG}
    """)


def k_steps(g, mats, k0, k1, side=None, mid=None, fill=None):
    rd = lambda ks: f"ds_read_b128 {v(XF+4*(ks%4),4)}, v2 offset:{ks*1024}"
    for ks in range(k0, k0 + 3): g(rd(ks))
    for ks in range(k0, k1):
        g(f"s_waitcnt lgkmcnt({min(2, k1-1-ks)})")
        for n_, (j, m) in enumerate(mats):
            w_, x_ = rg(m[2], m[3] + 4*ks, 4), v(XF + 4*(ks % 4), 4)
            g(mf32(ACC + 16*j, w_, x_, ks == 0) if m[4] else mf32(ACC + 16*j, x_, w_, ks == 0))
            if n_ == 0 and ks + 3 < k1: g(rd(ks + 3))
            if n_ == 1 and side:
                for x in side.pop(0): g(x)
            room = 4
            while fill and room > 0:
                x = fill.pop(0); g(x)
                room -= 2 if x.startswith(("v_exp", "v_rcp", "buffer")) else 1
        if mid and ks == 24: mid()


def gemm_loop(g, tag, mats, stores, epilogue, flags, step=NROWG, fill=None):
    g(f"L_{tag}_seg:")
    m0 = g.mark()
    g(f"s_add_u32 s{S_NXT}, s{S_SEG}, {step}\ns_waitcnt vmcnt({2 if fill else 0})\ns_barrier")

    fl = list(fill or [])

    def mid():
        g(f"s_cmp_lt_i32 s{S_PREV}, 0\ns_cbranch_scc1 L_{tag}_nf\ns_waitcnt vmcnt(8)\ns_barrier")
        set_flag(g, f"{tag}_nf", S_PREV)
    k_steps(g, list(enumerate(mats)), 0, 32, [[x] for x in stores] + xn_dma(), mid if flags else None, fl)
    assert not fl
    g("v_xor_b32 v2, 0x8000, v2\ns_nop 7\ns_nop 1")
    epilogue()
    if flags: g(f"s_lshl_b32 s{S_PREV}, s{S_SEG}, 2\ns_add_u32 s{S_PREV}, s{S_PREV}, s{S_FA}")
    g(f"s_mov_b32 s{S_SEG}, s{S_NXT}\ns_cmp_lt_u32 s{S_SEG}, {NSEG}\ns_cbranch_scc1 L_{tag}_seg")
    bad = hazard.check(g.lines[m0:] + g.lines[m0:m0 + 40], tag)
    m1 = g.mark()
    for x in stores + (fill or []): g(x)
    bad += hazard.check(g.lines[m1 - 10:], tag + " end")
    count_up(g, f"{tag}_done", DBG_ADONE)
    if flags: set_flag(g, f"{tag}_lf", S_PREV)
    return bad


def tile_addr(g, dst, tshift):
    g(f"""
    v_bfe_u32 v5, v0, 4, 1
    v_mul_u32_u24 v{dst}, {tshift}, v5
    v_bfe_u32 v5, v0, 5, 1
    v_lshl_add_u32 v{dst}, v5, 8, v{dst}
    v_and_b32 v5, 15, v0
    v_lshl_add_u32 v{dst}, v5, 4, v{dst}
    s_lshl_b32 s{S_T0}, s{S_WAVE}, 10
    v_add_u32 v{dst}, s{S_T0}, v{dst}
    """)


def qkv_role(g, opt):
    mats = [(P_WK, 4*MB, "a", 0, 1), (P_WV, 4*MB, "a", 128, 0), (P_WQ, 4*MB, "v", 128, 1)]
    m0 = g.mark()
    g(f"""
    s_mul_i32 s{S_HD}, s{S_WI}, 52429
    s_lshr_b32 s{S_HD}, s{S_HD}, 18
    s_mul_i32 s{S_T0}, s{S_HD}, {NROWG}
    s_sub_u32 s{S_SEG}, s{S_WI}, s{S_T0}
    s_lshl_b32 s{S_COL}, s{S_HD}, 8
    s_add_u32 s{S_FA}, s{S_COL}, {WS_FLAGS}
    """)
    wstamp(g, opt, 0)
    if opt.get("pf4"):
        set_srd(g, P_WO, 4 * MB)
        g(f"v_min_u32 v126, 207, v0\nv_lshlrev_b32 v126, 7, v126\ns_mul_i32 s{S_T2}, s{S_WI}, {208*128}\nbuffer_load_dword v127, v126, {WD}, s{S_T2} offen")
        if opt["pf4"] == 2: g("s_waitcnt vmcnt(0)")
        for m_ in opt.get("pf5", ""):
            if m_ == "w": g("s_waitcnt vmcnt(0)"); continue
            set_srd(g, {"k": P_WK, "v": P_WV, "q": P_WQ}[m_], 4 * MB)
            g(f"buffer_load_dword v127, v126, {WD}, s{S_T2} offen")
    worker_fill(g)
    clear_flags(g, 2)
    for _ in range(opt.get("xq", 0)): g("s_sleep 37")
    gemm_setup(g)
    tile_addr(g, 8, 4096)
    g(f"""
    v_bfe_u32 v5, v0, 4, 1
    v_lshlrev_b32 v9, 10, v5
    v_bfe_u32 v5, v0, 5, 1
    v_lshl_add_u32 v9, v5, 9, v9
    v_and_b32 v5, 15, v0
    v_lshl_add_u32 v9, v5, 4, v9
    s_lshl_b32 s{S_T0}, s{S_WAVE}, 11
    s_add_u32 s{S_T0}, s{S_T0}, 8192
    v_add_u32 v9, s{S_T0}, v9
    v_lshlrev_b32 v3, 4, v0
    v_mov_b64 v[104:105], s[{S_SENT}:{S_SENT+1}]
    v_mov_b64 v[106:107], s[{S_SENT}:{S_SENT+1}]
    """)
    P = 80

    def epi(parts="akq"):
        if "a" in parts: g(f"""
        s_lshl_b32 s{S_O1}, s{S_SEG}, 5
        s_add_u32 s{S_O1}, s{S_O1}, s{S_HD}
        s_lshl_b32 s{S_O3}, s{S_O1}, 12
        s_add_u32 s{S_O3}, s{S_O3}, {WS_PUB}
        s_lshl_b32 s{S_O2}, s{S_O1}, 13
        s_add_u32 s{S_O2}, s{S_O2}, {WS_Q}
        s_lshl_b32 s{S_O1}, s{S_O1}, 14
        s_add_u32 s{S_O1}, s{S_O1}, {WS_KV}
        """)
        for rho in range(2 if "k" in parts else 0):
            for x in range(4): g(f"v_cvt_pk_bf16_f32 v{P+4*rho+x}, v{ACC+8*rho+x}, v{ACC+8*rho+4+x}")
        for be in range(2 if "k" in parts else 0):
            for ri in range(4):
                r = ACC + 16 + 8*(ri & 1) + 4*(ri >> 1) + 2*be
                g(f"v_cvt_pk_bf16_f32 v{P+8+4*be+ri}, v{r}, v{r+1}")
        for rho in range(2 if "q" in parts else 0):
            for x in range(4): g(f"v_cvt_pk_bf16_f32 v{P+16+4*rho+x}, v{ACC+32+8*rho+x}, v{ACC+32+8*rho+4+x}")

    stores = ([f"buffer_store_dwordx4 {v(80+4*x,4)}, v8, {WSD}, s{S_O1} offen offset:{512*x} sc1" for x in range(2)] +
              [f"buffer_store_dwordx4 {v(88+4*x,4)}, v9, {WSD}, s{S_O1} offen offset:{256*x} sc1" for x in range(2)] +
              [f"buffer_store_dwordx4 v[104:107], v3, {WSD}, s{S_O3} offen sc1"] +
              [f"buffer_store_dwordx4 {v(96+4*x,4)}, v8, {WSD}, s{S_O2} offen offset:{512*x} sc1" for x in range(2)])
    em = list(enumerate(mats))

    def stage_x():
        spin_counter(g, "qkv_ln", DBG_LN, 64)
        for x in sum(xn_dma(), []): g(x)

    def hand_over():
        k_steps(g, em[:2], 28, 32)
        g("s_nop 3")
        epi("ak")
        for x in stores[:5]: g(x)

    def flag_first():
        g(f"s_lshl_b32 s{S_T1}, s{S_SEG}, 2\ns_add_u32 s{S_T1}, s{S_T1}, s{S_FA}")
        set_flag(g, "qkv_ff", S_T1)
        g(f"s_mov_b32 s{S_O1}, 0x40000000\ns_mov_b32 s{S_O3}, 0x40000000")

    def next_x():
        g(f"s_add_u32 s{S_NXT}, s{S_SEG}, {NROWG}")
        for x in sum(xn_dma(), []): g(x)
    sx = opt.get("sx", 10)
    hooks = {0: lambda: count_up(g, "qkv_in", DBG_INIT, False), sx: stage_x, 16: hand_over, 17: flag_first, 20: next_x}
    cuts = {8: (0, 8, 16, 20, 24, 28), 9: (0, 8, 16, 24, 28), 10: (0, 10, 20, 28), 11: (0, 14, 28)}[sx]
    late = {sx + 3 + j: (lambda a_=cuts[j], b_=cuts[j + 1]: k_steps(g, em[:2], a_, b_)) for j in range(len(cuts) - 1)}
    for i in range(17, 24): late[i] = lambda i=i: k_steps(g, em[2:], 4 * (i - 17), 4 * (i - 16))
    load_w32(g, mats, 8192, None, hooks, late, {17: 4})
    wstamp(g, opt, 1)
    k_steps(g, em[2:], 28, 32)
    g(f"v_xor_b32 v2, 0x8000, v2\ns_mov_b32 s{S_SEG}, s{S_NXT}\ns_nop 7\ns_nop 1")
    epi("q")
    bad = hazard.check(g.lines[m0:], "qkv prologue")
    return bad + gemm_loop(g, "qkv", mats, stores, epi, True)


def ffn_role(g, opt):
    mats = [(P_WG, 512*2752, "a", 0, 1), (P_WU, 512*2752, "a", 128, 1)]
    m0 = g.mark()
    g(f"""
    s_sub_u32 s{S_O1}, s{S_WI}, 160
    s_mul_i32 s{S_HD}, s{S_O1}, 43691
    s_lshr_b32 s{S_HD}, s{S_HD}, 17
    s_mul_i32 s{S_T0}, s{S_HD}, {NFFG}
    s_sub_u32 s{S_SEG}, s{S_O1}, s{S_T0}
    s_mov_b32 s{S_O2}, {NFFG}
    s_cmp_lg_u32 s{S_XCC}, {1 if opt.get('sf', 1) else 9}
    s_cbranch_scc1 L_ffn_own
    s_mul_i32 s{S_SEG}, s{S_TK}, {NFFG}
    s_add_u32 s{S_SEG}, s{S_SEG}, 2
    s_mov_b32 s{S_O2}, {NSEG}
    s_cmp_lt_u32 s{S_SEG}, {NSEG}
    s_cselect_b32 s{S_HD}, 10, 11
    L_ffn_own:
    s_lshl_b32 s{S_COL}, s{S_HD}, 8
    """)
    def pf2(n=2):
        g(f"v_lshlrev_b32 v126, 7, v0")
        if opt.get("pf3"):
            set_srd(g, P_WO, 4 * MB)
            g(f"s_lshr_b32 s{S_T2}, s{S_O1}, 1\ns_lshl_b32 s{S_T2}, s{S_T2}, 17\ns_and_b32 s{S_T3}, s{S_O1}, 1\ns_lshl_b32 s{S_T3}, s{S_T3}, 15")
            g(f"s_add_u32 s{S_T2}, s{S_T2}, s{S_T3}\ns_add_u32 s{S_T2}, s{S_T2}, 65536\nbuffer_load_dword v127, v126, {WD}, s{S_T2} offen")
            if opt["pf3"] == 2: g(f"s_sub_u32 s{S_T2}, s{S_T2}, 65536\nbuffer_load_dword v127, v126, {WD}, s{S_T2} offen")
        set_srd(g, P_WQ, 4 * MB)
        g(f"s_mul_i32 s{S_T2}, s{S_O1}, {n*32768}")
        for x in range(n): g(f"buffer_load_dword v127, v126, {WD}, s{S_T2} offen\ns_add_u32 s{S_T2}, s{S_T2}, 32768")
    worker_fill(g)
    if opt.get("ln2", 1):
        g(f"s_cmp_eq_u32 s{S_XCC}, 1\ns_cbranch_scc1 L_ln")
        if opt.get("pf2"): pf2(4)
        count_up(g, "ffn_in2", DBG_INIT)
        wstamp(g, opt, 0)
        g("s_branch L_ffn_w\nL_ln:")
        layernorm(g, S_TK, None, S_O1)
        count_up(g, "ffn_lnup", DBG_LN, True, 2)
    else:
        layernorm(g, S_O1, (pf2, 2 + opt.get("pf3", 0)) if opt.get("pf2") == 2 else None)
        count_up(g, "ffn_lnup", DBG_LN)
    count_up(g, "ffn_in", DBG_INIT, False)
    wstamp(g, opt, 0)
    if opt.get("pf2") == 1 and not opt.get("ln2", 1): pf2()
    for _ in range(opt.get("xf", 0)): g("s_sleep 37")
    g(f"s_cmp_ge_u32 s{S_HD}, 11\ns_cbranch_scc1 L_leave\nL_ffn_w:")
    load_w32(g, mats, 2752, opt.get("touch"))
    wstamp(g, opt, 1)
    tile_addr(g, 8, HM_SEG // 2)
    g(f"s_mov_b32 s{S_C0}, 0xffff0000\ns_mov_b32 s{S_C1}, 0xbdd2d3e8\ns_mov_b32 s{S_C2}, 0xc0135761")
    bad = hazard.check(g.lines[m0:], "ffn prologue")

    P, T, GA, U = 80, 96, 128, 144

    def epi():
        g(f"""
        s_mul_i32 s{S_O1}, s{S_SEG}, {HM_SEG}
        s_lshl_b32 s{S_T0}, s{S_HD}, 12
        s_add_u32 s{S_O1}, s{S_O1}, s{S_T0}
        s_add_u32 s{S_O1}, s{S_O1}, {WS_HMID}
        """)
        for j in range(4):
            for x in range(4): g(f"v_cvt_pk_bf16_f32 v{GA+8*j+x}, v{ACC+8*j+x}, v{ACC+8*j+4+x}")
    unp = lambda x: [f"v_and_b32 v{x+4}, s{S_C0}, v{x}", f"v_lshlrev_b32 v{x}, 16, v{x}"]
    fill = []
    for rho in range(2):
        idx = [8*rho + i for i in range(8)]
        for x in range(4): fill += unp(GA + 8*rho + x) + unp(U + 8*rho + x)
        fill += [f"v_mul_f32 v{T+i}, v{GA+i}, v{GA+i}" for i in idx]
        fill += [f"v_fma_f32 v{T+i}, v{T+i}, s{S_C1}, v{T+16}" for i in idx]
        fill += [f"v_mul_f32 v{T+i}, v{T+i}, v{GA+i}" for i in idx]
        fill += [f"v_exp_f32 v{T+i}, v{T+i}" for i in idx]
        fill += [f"v_add_f32 v{T+i}, 1.0, v{T+i}" for i in idx]
        fill += [f"v_rcp_f32 v{T+i}, v{T+i}" for i in idx]
        fill += [f"v_mul_f32 v{GA+i}, v{GA+i}, v{T+i}" for i in idx]
        for x in range(4): fill += [f"v_cvt_pk_bf16_f32 v{GA+8*rho+x}, v{GA+8*rho+x}, v{GA+8*rho+4+x}"] + unp(GA + 8*rho + x)
        fill += [f"v_mul_f32 v{GA+i}, v{GA+i}, v{U+i}" for i in idx]
        fill += [f"v_cvt_pk_bf16_f32 v{P+4*rho+x}, v{GA+8*rho+x}, v{GA+8*rho+4+x}" for x in range(4)]
        fill += [f"buffer_store_dwordx4 {v(P+4*rho,4)}, v8, {WSD}, s{S_O1} offen offset:{512*rho} sc1"]
    gemm_setup(g)
    g(f"s_mov_b32 s{S_O1}, 0x40000000\nv_mov_b32 v{T+16}, s{S_C2}")
    spin_counter(g, "ffn_ln", DBG_LN, 64)
    for x in sum(xn_dma(), []) + ["s_waitcnt vmcnt(0)"]: g(x)
    bad += gemm_loop(g, "ffn", mats, [], epi, False, f"s{S_O2}", fill)
    g(f"s_cmp_lg_u32 s{S_XCC}, 1\ns_cbranch_scc1 L_p3\nL_leave:")
    spin_counter(g, "lv_init", DBG_INIT, 224, 32)
    spin_counter(g, "lv_team", DBG_TEAM, 32, 32)
    for i in (2, 3): wstamp(g, opt, i)
    wstamp(g, opt, 4, True)
    g("s_waitcnt vmcnt(0)\ns_endpgm")
    return bad


def p3_role(g, opt):
    LN16, KPA, RWA, RRA, XA, KMW, KMR, VMW, VMR, HFA, OFA = 1, 2, 3, 4, 5, 6, 7, 8, 9, 12, 13
    GV, XV = 14, 16
    ACC, SC, PB, OA, KM, VM = 20, 28, 44, 52, 68, 84
    ST = 92
    WDR = 168
    L_RED, L_KM, L_VM = 0, 8192, 12288
    S_TH, S_SCL, S_QO, S_KO, S_PO, S_HO = S_HD, S_C1, S_O1, S_O2, S_FA, S_PREV
    st = opt.get("st", "")
    sto = opt.get("sto", st)
    S_OB = S_LB
    m0 = g.mark()
    DM, RA = 1, 2
    g(f"""
    s_lshr_b32 s{S_TH}, s{S_TK}, 4
    s_and_b32 s{S_COL}, s{S_TK}, 15
    s_lshl_b32 s{S_COL}, s{S_COL}, 6
    v_and_b32 v4, 63, v0
    v_lshrrev_b32 v5, 4, v4
    v_bfe_u32 v6, v4, 2, 2
    v_and_b32 v7, 1, v6
    v_lshlrev_b32 v{DM}, 4, v7
    v_lshl_add_u32 v{DM}, v5, 2, v{DM}
    v_lshrrev_b32 v7, 1, v6
    v_add_u32 v{DM}, v{DM}, v7
    v_lshlrev_b32 v{DM}, 10, v{DM}
    v_and_b32 v7, 1, v5
    v_lshlrev_b32 v7, 1, v7
    v_and_b32 v8, 3, v4
    v_xor_b32 v8, v8, v7
    v_lshl_add_u32 v{DM}, v8, 4, v{DM}
    v_add_u32 v{DM}, s{S_COL}, v{DM}
    v_lshrrev_b32 v8, 2, v4
    v_lshlrev_b32 v{RA}, 6, v8
    v_lshl_add_u32 v{RA}, v7, 4, v{RA}
    v_and_b32 v8, 3, v4
    v_lshl_add_u32 v{RA}, v8, 3, v{RA}
    s_lshl_b32 s{S_T3}, s{S_WAVE}, 15
    v_add_u32 v{RA}, s{S_T3}, v{RA}
    v_xor_b32 v{RA+1}, 32, v{RA}
    s_lshl_b32 s{S_T1}, s{S_WAVE}, 20
    s_mul_i32 s{S_T2}, s{S_WAVE}, {11*32768}
    """)
    S_RHO, S_GB = S_R, S_IT
    g(f"s_and_b32 s{S_RHO}, s{S_TK}, 1\ns_lshl_b32 s{S_RHO}, s{S_RHO}, 1\ns_add_u32 s{S_RHO}, s{S_RHO}, s{S_TH}" if opt.get("rho", 1) else f"s_mov_b32 s{S_RHO}, 0")
    quarter = lambda j, sh, base: f"s_add_u32 s{S_GB}, s{S_RHO}, {j}\ns_and_b32 s{S_GB}, s{S_GB}, 3\ns_lshl_b32 s{S_GB}, s{S_GB}, {sh}\ns_add_u32 s{S_GB}, s{S_GB}, s{base}"
    steps = [("o", k) for k in range(32)] + [("d", k) for k in range(11)]
    AH = 12

    def issue(i):
        m, k = steps[i]
        if k == 0: set_srd(g, P_WO if m == "o" else P_WD, 4*MB if m == "o" else 1376*1024)
        if m == "o" and k & 7 == 0: g(quarter(k >> 3, 18, S_T1))
        for x in range(2):
            g(f"s_add_u32 m0, s{S_T3}, {(i % 16)*2048 + x*1024}\ns_add_u32 s{S_T0}, s{S_GB if m == 'o' else S_T2}, {(k & 7 if m == 'o' else k)*32768 + x*2048}")
            g(f"buffer_load_dwordx4 v{DM}, {WD}, s{S_T0} offen lds")

    wreg = lambda m, k, t, o=0, n=4: a(8*k + 4*t + o, n) if m == "o" else v(WDR + 8*k + 4*t + o, n)
    for i in range(AH): issue(i)
    for i, (m, k) in enumerate(steps):
        g(f"s_waitcnt vmcnt({2*min(AH - 1, len(steps) - 1 - i)}) lgkmcnt(8)")
        if i + AH < len(steps): issue(i + AH)
        for t in range(2):
            for x in range(2):
                g(f"ds_read_b64_tr_b16 {wreg(m, k, t, 2*x, 2)}, v{RA+t} offset:{(i % 16)*2048 + x*1024}")
    g("s_waitcnt lgkmcnt(0)\ns_barrier")
    g(f"""
    v_and_b32 v20, 63, v0
    v_lshrrev_b32 v21, 4, v20
    v_and_b32 v22, 15, v20
    v_lshlrev_b32 v{LN16}, 4, v20
    v_bfe_u32 v23, v22, 1, 1
    v_lshlrev_b32 v{KPA}, 3, v23
    v_lshrrev_b32 v23, 2, v22
    v_lshl_add_u32 v{KPA}, v23, 1, v{KPA}
    v_and_b32 v24, 1, v22
    v_add_u32 v{KPA}, v{KPA}, v24
    v_lshl_add_u32 v{KPA}, v21, 4, v{KPA}
    v_lshlrev_b32 v{KPA}, 4, v{KPA}
    v_lshl_add_u32 v{KMR}, v23, 1, v24
    v_lshlrev_b32 v{KMR}, 4, v{KMR}
    v_mul_u32_u24 v24, 144, v21
    v_add_u32 v{KMR}, v{KMR}, v24
    v_add_u32 v{KMR}, {L_KM}, v{KMR}
    v_mul_u32_u24 v{KMW}, 144, v23
    v_lshl_add_u32 v{KMW}, v21, 5, v{KMW}
    v_and_b32 v24, 3, v22
    v_lshl_add_u32 v{KMW}, v24, 2, v{KMW}
    s_mul_i32 s{S_T0}, s{S_WAVE}, 576
    s_add_u32 s{S_T0}, s{S_T0}, {L_KM}
    v_add_u32 v{KMW}, s{S_T0}, v{KMW}
    v_lshlrev_b32 v{VMW}, 3, v0
    v_add_u32 v{VMW}, {L_VM}, v{VMW}
    s_lshr_b32 s{S_T0}, s{S_WAVE}, 1
    s_lshl_b32 s{S_T0}, s{S_T0}, 10
    s_add_u32 s{S_T0}, s{S_T0}, {L_VM}
    v_lshlrev_b32 v{VMR}, 3, v20
    v_add_u32 v{VMR}, s{S_T0}, v{VMR}
    s_lshl_b32 s{S_T0}, s{S_WAVE}, 11
    v_and_b32 v24, 7, v22
    v_xor_b32 v24, v24, v21
    v_lshlrev_b32 v{RWA}, 7, v22
    v_lshl_add_u32 v{RWA}, v24, 4, v{RWA}
    v_add_u32 v{RWA}, s{S_T0}, v{RWA}
    v_xor_b32 v{HFA}, 64, v{RWA}
    v_lshlrev_b32 v{RRA}, 3, v0
    v_lshrrev_b32 v24, 4, v0
    v_and_b32 v25, 7, v24
    v_lshlrev_b32 v25, 4, v25
    v_xor_b32 v{RRA}, v{RRA}, v25
    v_lshlrev_b32 v{XA}, 10, v24
    v_lshl_add_u32 v{XA}, v22, 2, v{XA}
    s_lshl_b32 s{S_T0}, s{S_TH}, 14
    s_add_u32 s{S_T0}, s{S_T0}, s{S_COL}
    v_add_u32 v{XA}, s{S_T0}, v{XA}
    v_and_b32 v{OFA}, 7, v20
    s_lshl_b32 s{S_T0}, s{S_WAVE}, 3
    v_add_u32 v{OFA}, s{S_T0}, v{OFA}
    v_lshlrev_b32 v{OFA}, 2, v{OFA}
    s_and_b32 s{S_T0}, s{S_WAVE}, 1
    s_lshl_b32 s{S_T0}, s{S_T0}, 4
    v_add_u32 v22, s{S_T0}, v22
    v_lshlrev_b32 v21, 1, v21
    v_sub_u32 v22, v22, v21
    """)
    for T in range(2):
        for r in range(4):
            g(f"v_cmp_le_i32 s[{S_MK+2*(4*T+r)}:{S_MK+2*(4*T+r)+1}], {16*T + 8*(r >> 1) + (r & 1)}, v22")
    g(f"""
    s_mov_b32 s{S_OUT}, s{P_OUT}
    s_mov_b32 s{S_OUT+1}, s{P_OUT+1}
    s_mov_b32 s{S_OUT+2}, {2*MB}
    s_mov_b32 s{S_OUT+3}, 0x20000
    s_mov_b32 s{S_SCL}, 0x3db504f3
    s_mov_b32 s{S_C0}, 0xffff0000
    s_mov_b32 s{S_C2}, 0xbfb8aa3b
    s_sub_u32 s{S_SEG}, s{S_XCC}, 2
    s_lshl_b32 s{S_OB}, s{S_SEG}, 1
    v_mov_b32 v{PB+5}, 0
    v_mov_b32 v{PB+6}, 0
    """)
    set_srd(g, P_X, 2 * MB)
    spin_counter(g, "p3_init", DBG_INIT, 224)
    spin_counter(g, "p3_adone", DBG_ADONE, 213 if opt.get('sf', 1) else 193, 32)
    bad = hazard.check(g.lines[m0:], "p3 prologue")

    def reduce(dst):
        g("s_nop 7")
        for t in range(2): g(f"ds_write_b128 v{HFA if t else RWA}, {v(ACC+4*t,4)} offset:{L_RED}")
        g("s_waitcnt lgkmcnt(0)\ns_barrier")
        for x in range(4): g(f"ds_read_b64 {v(ACC+2*x,2)}, v{RRA} offset:{L_RED + 2048*x}")
        g(f"""
        s_waitcnt lgkmcnt(0)
        v_pk_add_f32 {v(ACC,2)}, {v(ACC,2)}, {v(ACC+2,2)}
        v_pk_add_f32 {v(ACC+4,2)}, {v(ACC+4,2)}, {v(ACC+6,2)}
        v_pk_add_f32 {v(ACC,2)}, {v(ACC,2)}, {v(ACC+4,2)}
        v_cvt_pk_bf16_f32 v{dst}, v{ACC}, v{ACC+1}
        v_and_b32 v{dst+1}, s{S_C0}, v{dst}
        v_lshlrev_b32 v{dst}, 16, v{dst}
        """)

    QR_, KR_, VR_, HM, PU = ST, ST + 16, ST + 48, SC, ST + 64
    L_KV, L_Q, L_HM = 16384, 32768, 40960
    QA, VA, HA, FO = 88, 89, 90, 91

    def stage_in(seg):
        g(f"""
        s_lshl_b32 s{S_T0}, s{seg}, 5
        s_add_u32 s{S_T0}, s{S_T0}, s{S_TK}
        s_lshl_b32 s{S_T0}, s{S_T0}, 2
        s_add_u32 s{S_T0}, s{S_T0}, s{S_WAVE}
        s_lshl_b32 s{S_T1}, s{S_WAVE}, 12
        s_add_u32 m0, s{S_T1}, {L_KV}
        s_lshl_b32 s{S_KO}, s{S_T0}, 12
        s_add_u32 s{S_KO}, s{S_KO}, {WS_KV}
        """)
        for x in range(4): g(f"buffer_load_dwordx4 v{LN16}, {WSD}, s{S_KO} offen offset:{x*1024} sc1 lds")
        g(f"s_lshl_b32 s{S_T1}, s{S_WAVE}, 11\ns_add_u32 m0, s{S_T1}, {L_Q}\ns_lshl_b32 s{S_QO}, s{S_T0}, 11\ns_add_u32 s{S_QO}, s{S_QO}, {WS_Q}")
        for x in range(2): g(f"buffer_load_dwordx4 v{LN16}, {WSD}, s{S_QO} offen offset:{x*1024} sc1 lds")
        g(f"""
        s_lshl_b32 s{S_T0}, s{seg}, 1
        s_add_u32 s{S_T0}, s{S_T0}, s{S_TH}
        s_mul_i32 s{S_QO}, s{S_T0}, {HM_SEG // 2}
        s_mul_i32 s{S_T1}, s{S_WAVE}, {11*1024}
        s_add_u32 s{S_QO}, s{S_QO}, s{S_T1}
        s_add_u32 s{S_QO}, s{S_QO}, {WS_HMID - 4096}
        s_cmp_eq_u32 s{S_WAVE}, 3
        s_cselect_b32 s{S_T2}, 0x40000000, 0
        """)
        for k in range(11):
            if k & 3 == 0: g(f"s_add_u32 m0, s{S_T1}, {L_HM + k*1024}\ns_add_u32 s{S_QO}, s{S_QO}, 4096")
            if k == 10: g(f"s_add_u32 s{S_QO}, s{S_QO}, s{S_T2}")
            g(f"buffer_load_dwordx4 v{LN16}, {WSD}, s{S_QO} offen offset:{(k & 3)*1024} sc1 lds")
    stage_in(S_SEG)
    g(f"""
    s_and_b32 s{S_T0}, s{S_WAVE}, 1
    s_lshl_b32 s{S_T0}, s{S_T0}, 12
    s_add_u32 s{S_T0}, s{S_T0}, {L_Q}
    v_add_u32 v{QA}, s{S_T0}, v{LN16}
    s_lshr_b32 s{S_T0}, s{S_WAVE}, 1
    s_lshl_b32 s{S_T0}, s{S_T0}, 12
    s_add_u32 s{S_T0}, s{S_T0}, {L_KV + 8192}
    v_add_u32 v{VA}, s{S_T0}, v{LN16}
    s_add_u32 s{S_T0}, s{S_T1}, {L_HM}
    v_add_u32 v{HA}, s{S_T0}, v{LN16}
    v_min_u32 v{FO}, 1, v0
    v_lshlrev_b32 v{FO}, 30, v{FO}
    s_waitcnt vmcnt(0)
    s_barrier
    """)
    for _ in range(opt.get("xp", 0)): g("s_sleep 37")
    wstamp(g, opt, 3)
    g("L_p3_seg:")
    m1 = g.mark()
    pstamp(g, opt, 0)
    g(f"""
    s_lshl_b32 s{S_XO}, s{S_SEG}, 15
    buffer_load_dword v{XV}, v{XA}, {WD}, s{S_XO} offen
    s_lshl_b32 s{S_T0}, s{S_SEG}, 5
    s_add_u32 s{S_T0}, s{S_T0}, s{S_TK}
    s_lshl_b32 s{S_PO}, s{S_T0}, 2
    s_add_u32 s{S_PO}, s{S_PO}, s{S_WAVE}
    s_lshl_b32 s{S_PO}, s{S_PO}, 10
    s_add_u32 s{S_PO}, s{S_PO}, {WS_PUB}
    buffer_load_dwordx4 {v(PU,4)}, v{LN16}, {WSD}, s{S_PO} offen sc1
    """)
    for k in range(11): g(f"ds_read_b128 {v(HM+4*k,4)}, v{HA} offset:{k*1024}")
    more = ([f"ds_read_b128 {v(QR_+4*x,4)}, v{QA} offset:{x*1024}" for x in range(4)] +
            [f"ds_read_b128 {v(KR_+4*x,4)}, v{KPA} offset:{L_KV + x*1024}" for x in range(8)] +
            [f"ds_read_b128 {v(VR_+4*x,4)}, v{VA} offset:{x*1024}" for x in range(4)])
    issued = 0
    for k in range(11):
        g(f"s_waitcnt lgkmcnt({min(15, 10 - k + issued)})")
        for t in range(2):
            g(mf16(ACC + 4*t, wreg("d", k, t), v(HM + 4*k, 4), k == 0))
            if more and k >= 3: g(more.pop(0)); issued += 1
    reduce(GV)
    g(f"s_add_u32 s{S_NXT}, s{S_SEG}, {NTEAM}\ns_cmp_ge_u32 s{S_NXT}, {NSEG}\ns_waitcnt vmcnt(0)\ns_cbranch_scc1 L_p3_last")
    stage_in(S_NXT)
    g("L_p3_last:")
    g(f"""
    v_mul_f32 v{ACC}, s{S_C2}, v{GV}
    v_mul_f32 v{ACC+1}, s{S_C2}, v{GV+1}
    v_exp_f32 v{ACC}, v{ACC}
    v_exp_f32 v{ACC+1}, v{ACC+1}
    s_nop 0
    v_add_f32 v{ACC}, 1.0, v{ACC}
    v_add_f32 v{ACC+1}, 1.0, v{ACC+1}
    v_rcp_f32 v{ACC}, v{ACC}
    v_rcp_f32 v{ACC+1}, v{ACC+1}
    s_nop 0
    v_pk_mul_f32 {v(GV,2)}, {v(GV,2)}, {v(ACC,2)}
    v_cvt_pk_bf16_f32 v{GV}, v{GV}, v{GV+1}
    v_and_b32 v{GV+1}, s{S_C0}, v{GV}
    v_lshlrev_b32 v{GV}, 16, v{GV}
    v_and_b32 v{XV+1}, s{S_C0}, v{XV}
    v_lshlrev_b32 v{XV}, 16, v{XV}
    """)
    g(f"v_mov_b32 v{PB+5}, 0\nv_mov_b32 v{PB+6}, 0\nv_mov_b32 v10, 0")
    for x in range(4):
        for T in range(2): g(mf16(SC + 4*T, v(KR_ + 16*T + 4*x, 4), v(QR_ + 4*x, 4), x == 0))
    MX, MY = SC + 12, SC + 13
    def scale(x):
        for k_ in range(2):
            g(f"v_cvt_pk_bf16_f32 v{x}, v{x}, v{x+1}\nv_and_b32 v{x+1}, s{S_C0}, v{x}\nv_lshlrev_b32 v{x}, 16, v{x}")
            if k_ == 0: g(f"v_mul_f32 v{x}, s{S_SCL}, v{x}\nv_mul_f32 v{x+1}, s{S_SCL}, v{x+1}")
    g(f"v_mov_b32 v{MY}, 0xce6e0000\ns_nop 7")
    for i in range(4): scale(SC + 2 * i)
    for i in range(8): g(f"v_cndmask_b32 v{SC+i}, v{MY}, v{SC+i}, s[{S_MK+2*i}:{S_MK+2*i+1}]")
    g(f"v_max3_f32 v{MX}, v{SC}, v{SC+1}, v{SC+2}\nv_max3_f32 v{MX}, v{MX}, v{SC+3}, v{SC+4}\nv_max3_f32 v{MX}, v{MX}, v{SC+5}, v{SC+6}\nv_max_f32 v{MX}, v{MX}, v{SC+7}")
    pstamp(g, opt, 3)
    g(f"""
    L_p3_pub:
    s_add_u32 s{S_SPIN}, s{S_SPIN}, 1
    s_cmp_gt_u32 s{S_SPIN}, {SPIN_MAX}
    s_cbranch_scc1 L_p3_pub_out
    v_max3_u32 v11, v{PU}, v{PU+1}, v{PU+2}
    v_max_u32 v11, v11, v{PU+3}
    v_cmp_eq_u32 vcc, s{S_SENT}, v11
    s_cbranch_vccz L_p3_pub_out
    s_cmp_ge_u32 s{S_SEG}, {NSEG - 2}
    s_cbranch_scc1 L_p3_again
    s_sleep {opt.get('psleep', 6)}
    L_p3_again:
    buffer_load_dwordx4 {v(PU,4)}, v{LN16}, {WSD}, s{S_PO} offen sc1
    s_waitcnt vmcnt(0)
    s_branch L_p3_pub
    L_p3_pub_out:
    ds_write2_b32 v{KMW}, v{PU}, v{PU+1} offset0:0 offset1:4
    ds_write_b64 v{VMW}, {v(PU+2,2)}
    s_waitcnt lgkmcnt(0)
    s_barrier
    """)
    pstamp(g, opt, 4)
    for x in range(4): g(f"ds_read_b128 {v(KM+4*x,4)}, v{KMR} offset:{576*x}")
    for x in range(2): g(f"ds_read_b64 {v(VM+2*x,2)}, v{VMR} offset:{512*x}")
    for x in range(4):
        g(f"s_waitcnt lgkmcnt({5-x})")
        g(mf16(SC + 8, v(KM + 4*x, 4), v(QR_ + 4*x, 4), x == 0))
    g(f"""
    s_lshl_b32 s{S_T0}, s{S_OB}, 1
    s_and_b32 s{S_T1}, s{S_WAVE}, 1
    s_add_u32 s{S_T0}, s{S_T0}, s{S_T1}
    s_lshl_b32 s{S_T0}, s{S_T0}, 5
    s_add_u32 s{S_T0}, s{S_T0}, s{S_TK}
    s_lshl_b32 s{S_T0}, s{S_T0}, 2
    s_and_b32 s{S_T1}, s{S_WAVE}, 2
    s_add_u32 s{S_T0}, s{S_T0}, s{S_T1}
    s_lshl_b32 s{S_T0}, s{S_T0}, 10
    s_add_u32 s{S_T0}, s{S_T0}, {WS_O}
    """)
    scale(SC + 8)
    g(f"v_max3_f32 v{MX}, v{MX}, v{SC+8}, v{SC+9}")

    def cross(r, t, op):
        for sw in (16, 32):
            g(f"v_mov_b32 v{t}, v{r}\ns_nop 1\nv_permlane{sw}_swap_b32 v{r}, v{t}\n{op} v{r}, v{r}, v{t}")
    cross(MX, MY, "v_max_f32")
    g(f"v_mul_f32 v{MX}, s{S_C2}, v{MX}")
    for i in range(10): g(f"v_fma_f32 v{SC+i}, -v{SC+i}, s{S_C2}, v{MX}")
    for i in range(10): g(f"v_exp_f32 v{SC+i}, v{SC+i}")
    g(f"v_pk_add_f32 {v(MX,2)}, {v(SC,2)}, {v(SC+2,2)}\nv_pk_add_f32 {v(MX+2,2)}, {v(SC+4,2)}, {v(SC+6,2)}")
    g(f"v_pk_add_f32 {v(MX,2)}, {v(MX,2)}, {v(SC+8,2)}\nv_pk_add_f32 {v(MX,2)}, {v(MX,2)}, {v(MX+2,2)}\nv_add_f32 v{MX}, v{MX}, v{MY}")
    cross(MX, MY, "v_add_f32")
    g(f"v_rcp_f32 v{MX}, v{MX}\ns_waitcnt lgkmcnt(0)")
    for i in range(5): g(f"v_pk_mul_f32 {v(SC+2*i,2)}, {v(SC+2*i,2)}, {v(MX,2)} op_sel_hi:[1,0]")
    for ri in range(4):
        r = SC + 4*(ri & 1) + 2*(ri >> 1)
        g(f"v_cvt_pk_bf16_f32 v{PB+ri}, v{r}, v{r+1}")
    g(f"v_cvt_pk_bf16_f32 v{PB+4}, v{SC+8}, v{SC+9}\nv_cvt_pk_bf16_f32 v{PB+7}, v{SC+8}, v{SC+9}")
    for x in range(2):
        for e in (2*x, 2*x + 1): g(mf16(OA + 4*e, v(VR_ + 4*e, 4), v(PB, 4), True))
        for e in (2*x, 2*x + 1): g(f"v_mfma_f32_16x16x16_bf16 {v(OA+4*e,4)}, {v(VM+2*(e >> 1),2)}, {v(PB+4+2*(e & 1),2)}, {v(OA+4*e,4)}")
    for x in range(2):
        if x: g("s_nop 2")
        for r in range(4): g(f"v_cvt_pk_bf16_f32 v{KM+4*x+r}, v{OA+8*x+r}, v{OA+8*x+4+r}")
        g(f"buffer_store_dwordx4 {v(KM+4*x,4)}, v{LN16}, {WSD}, s{S_T0} offen offset:{x*1024} {sto}")
    g(f"""
    s_lshl_b32 s{S_T2}, s{S_SEG}, 7
    s_add_u32 s{S_T2}, s{S_T2}, {WS_OF}
    s_lshl_b32 s{S_T1}, s{S_TK}, 2
    s_add_u32 s{S_T1}, s{S_T1}, s{S_T2}
    s_lshl_b32 s{S_T0}, s{S_OB}, 1
    s_add_u32 s{S_T0}, s{S_T0}, s{S_TH}
    s_lshl_b32 s{S_T0}, s{S_T0}, 2
    s_add_u32 s{S_T0}, s{S_T0}, s{S_WAVE}
    s_lshl_b32 s{S_T0}, s{S_T0}, 15
    s_add_u32 s{S_HO}, s{S_T0}, {WS_O}
    v_mov_b32 v11, 1
    s_waitcnt vmcnt(0)
    s_barrier
    """)
    pstamp(g, opt, 5)
    if opt.get("ff"):
        g(f"buffer_store_dword v11, v{FO}, {WSD}, s{S_T1} offen {st}")
        poll = lambda i: f"buffer_load_dword v{SC+i}, v{OFA}, {WSD}, s{S_T2} offen sc1"
        g(f"s_nop 15\n{poll(0)}\ns_nop 13\n{poll(1)}\ns_nop 13\nL_p3_ow:")
        for i in range(3):
            g(f"{poll((i + 2) % 3)}\ns_waitcnt vmcnt(2)\nv_cmp_ne_u32 vcc, 1, v{SC+i}\ns_cbranch_vccz L_p3_ow_out")
        g(f"s_add_u32 s{S_SPIN}, s{S_SPIN}, 1\ns_cmp_le_u32 s{S_SPIN}, {SPIN_MAX}\ns_cbranch_scc1 L_p3_ow\nL_p3_ow_out:")
    else:
        set_flag(g, "p3_of", S_T1, st)
        spin_flags(g, "p3_ow", OFA, S_T2, 0)
    pstamp(g, opt, 6)
    NB = 16

    def old(k):
        if k & 7 == 0: g(quarter(k >> 3, 13, S_HO))
        g(f"buffer_load_dwordx4 {v(ST+4*(k % NB),4)}, v{LN16}, {WSD}, s{S_GB} offen offset:{(k & 3)*1024} sc1")
        if k & 7 == 3: g(f"s_add_u32 s{S_GB}, s{S_GB}, 4096")
    for k in range(NB): old(k)
    for k in range(32):
        g(f"s_waitcnt vmcnt({min(NB - 1, 31 - k)})")
        for t in range(2): g(mf16(ACC + 4*t, wreg("o", k, t), v(ST + 4*(k % NB), 4), k == 0))
        if k + NB < 32: old(k + NB)
    pstamp(g, opt, 7)
    reduce(SC)
    pstamp(g, opt, 8)
    g(f"""
    v_pk_mul_f32 {v(SC,2)}, {v(SC,2)}, {v(GV,2)}
    v_cvt_pk_bf16_f32 v{SC}, v{SC}, v{SC+1}
    v_and_b32 v{SC+1}, s{S_C0}, v{SC}
    v_lshlrev_b32 v{SC}, 16, v{SC}
    v_pk_add_f32 {v(SC,2)}, {v(SC,2)}, {v(XV,2)}
    v_cvt_pk_bf16_f32 v{SC}, v{SC}, v{SC+1}
    buffer_store_dword v{SC}, v{XA}, s[{S_OUT}:{S_OUT+3}], s{S_XO} offen {opt.get('ofl', '')}
    s_xor_b32 s{S_OB}, s{S_OB}, 1
    s_add_u32 s{S_SEG}, s{S_SEG}, {NTEAM}
    s_cmp_lt_u32 s{S_SEG}, {NSEG}
    s_barrier
    s_cbranch_scc1 L_p3_seg
    """)
    bad += hazard.check(g.lines[m1:], "p3 loop")
    wstamp(g, opt, 4, True)
    if opt.get("dbgt"):
        g(f"s_cmp_lg_u32 s{S_WAVE}, 0\ns_cbranch_scc1 L_dt2\ns_cmp_lg_u32 s{S_XCC}, 5\ns_cbranch_scc1 L_dt2")
        dbg_time(g, opt, 6)
        g("L_dt2:")
    g("s_waitcnt vmcnt(0)\ns_endpgm")
    return bad


def worker_roles(g, opt):
    m0 = g.mark()
    worker_init(g)
    bad = hazard.check(g.lines[m0:], "worker init")
    g(f"s_cmp_ge_u32 s{S_WI}, 160\ns_cbranch_scc1 L_ffn")
    bad += qkv_role(g, opt)
    g("s_branch L_p3\nL_ffn:")
    bad += ffn_role(g, opt)
    g("L_p3:")
    wstamp(g, opt, 2)
    bad += p3_role(g, opt)
    return bad
```
